```python
import torch

def _softmax(x, axis=-1):
    return torch.softmax(x, dim=axis)
def _gelu(x):
    return torch.nn.functional.gelu(x, approximate="tanh")
def _silu(x):
    return torch.nn.functional.silu(x)
def _sigmoid(x):
    return torch.sigmoid(x)
def _layernorm(x, axis=-1, eps=1e-5):
    m = x.mean(dim=axis, keepdim=True)
    v = x.var(dim=axis, keepdim=True, unbiased=False)
    return (x - m) / torch.sqrt(v + eps)
def _scatter_add(tgt, idx, src, axis=0):
    return tgt.clone().index_add_(axis, idx, src)
def _segment_sum(src, seg, n):
    out = torch.zeros((n,) + src.shape[1:], dtype=src.dtype)
    return out.index_add_(0, seg, src)
def _pad(x, pw):
    flat = tuple(v for pair in reversed(pw) for v in pair)
    return torch.nn.functional.pad(x, flat)

kernel_name = 'recurrent_scan__sliding_local_dilated__swiglu_ffn__prompt'

def setup_inputs():

    _w = (lambda a: (lambda t: t.to(torch.bfloat16) if t.is_floating_point() else t)(torch.as_tensor(a)))
    def _A_setup():
        B, S, D = 1, 2048, 512
        return {
            "x": _w((lambda *s: torch.randn(*s, dtype=torch.bfloat16) * 0.05)(B, S, D)),
            "wqkv": _w((lambda *s: torch.randn(*s, dtype=torch.bfloat16) * 0.05)(D, 3 * D)),
            "wo": _w((lambda *s: torch.randn(*s, dtype=torch.bfloat16) * 0.05)(D, D)),
        }
    _A_in = _A_setup()

    def _B_setup():
        B, S, D, F = 1, 2048, 512, 1792
        return {
            "x": _w((lambda *s: torch.randn(*s, dtype=torch.bfloat16) * 0.05)(B, S, D)),
            "w_gate": _w((lambda *s: torch.randn(*s, dtype=torch.bfloat16) * 0.05)(D, F)),
            "w_up": _w((lambda *s: torch.randn(*s, dtype=torch.bfloat16) * 0.05)(D, F)),
            "w_down": _w((lambda *s: torch.randn(*s, dtype=torch.bfloat16) * 0.05)(F, D)),
        }
    _B_in = _B_setup()

    return {
        "A_x": _A_in["x"],
        "A_wqkv": _A_in["wqkv"],
        "A_wo": _A_in["wo"],
        "B_x": _B_in["x"],
        "B_w_gate": _B_in["w_gate"],
        "B_w_up": _B_in["w_up"],
        "B_w_down": _B_in["w_down"],
    }

def reference(A_x, A_wqkv, A_wo, B_x, B_w_gate, B_w_up, B_w_down):
    def _A_ref(x, wqkv, wo):
        B, S, D = x.shape
        H = 32; Dh = D // H
        W, dil = 8, 2
        qkv = (lambda x, *d: x.permute(*d))((x @ wqkv).reshape(B, S, 3, H, Dh), 2, 0, 3, 1, 4)
        q, k, v = qkv[0], qkv[1], qkv[2]
        scale = Dh ** -0.5
        pos = torch.arange(S)
        off = torch.arange(W) * dil
        idx = pos[:, None] - off[None, :]
        mask = idx >= 0
        idx_c = torch.where(mask, idx, 0).reshape(-1)
        kg = k[:, :, idx_c, :].reshape(B, H, S, W, Dh)
        vg = v[:, :, idx_c, :].reshape(B, H, S, W, Dh)
        logits = torch.einsum("bhsd,bhswd->bhsw", q, kg) * scale
        logits = torch.where(mask[None, None, :, :], logits, -1e9)
        attn = _softmax(logits, axis=-1)
        o = torch.einsum("bhsw,bhswd->bhsd", attn, vg)
        return (lambda x, *d: x.permute(*d))(o, 0, 2, 1, 3).reshape(B, S, D) @ wo

    def _B_ref(x, w_gate, w_up, w_down):
        g = _silu(x @ w_gate)
        u = x @ w_up
        return (g * u) @ w_down

    x = A_x
    xn = _layernorm(x, axis=-1)
    s = _A_ref(xn, A_wqkv, A_wo)
    g = _silu(_B_ref(xn, B_w_gate, B_w_up, B_w_down))
    return x + s * g
```

```python
KNAME = "recurrent_scan__sliding_local_dilated__swiglu_ffn__prompt_kernel"

def header(launch_lines):
    s = ""
    for l in launch_lines:
        s += "; @launch " + l + "\n"
    s += '.amdgcn_target "amdgcn-amd-amdhsa--gfx950"\n.text\n'
    return s

def kernel_begin(name):
    return f".globl {name}\n.p2align 8\n.type {name},@function\n{name}:\n"

def kd(name, vgpr, sgpr=102, accum=None):
    if accum is None:
        accum = min(256, (vgpr + 3) // 4 * 4)
    return (f".amdhsa_kernel {name}\n  .amdhsa_next_free_vgpr {vgpr}\n  .amdhsa_next_free_sgpr {sgpr}\n"
            f"  .amdhsa_accum_offset {accum}\n  .amdhsa_group_segment_fixed_size 0\n  .amdhsa_kernarg_size 80\n"
            f"  .amdhsa_user_sgpr_count 2\n  .amdhsa_user_sgpr_kernarg_segment_ptr 1\n"
            f"  .amdhsa_system_sgpr_workgroup_id_x 1\n.end_amdhsa_kernel\n")

def rodata(kds):
    s = '.section .rodata,"a"\n'
    for k in kds:
        s += ".p2align 6\n" + k
    return s
```

```python
import re

def R(kind, lo, n=1):
    return [f"{kind}{lo+i}" for i in range(n)]

def rs(kind, lo, n=1):
    return f"{kind}{lo}" if n == 1 else f"{kind}[{lo}:{lo+n-1}]"

class Reg:
    def __init__(self, kind, lo, n=1):
        self.kind, self.lo, self.n = kind, lo, n
    def __str__(self):
        return rs(self.kind, self.lo, self.n)
    __repr__ = __str__
    def regs(self):
        return R(self.kind, self.lo, self.n)
    def sub(self, off, n=1):
        assert 0 <= off and off + n <= self.n, (self, off, n)
        return Reg(self.kind, self.lo + off, n)
    def __getitem__(self, i):
        return self.sub(i, 1)

def V(lo, n=1): return Reg("v", lo, n)
def A(lo, n=1): return Reg("a", lo, n)
def S(lo, n=1): return Reg("s", lo, n)

def regs_of(x):
    if isinstance(x, Reg): return x.regs()
    if isinstance(x, str):
        t = x.strip()
        if t.startswith("-"): t = t[1:]
        if t in ("vcc", "exec", "m0", "scc"): return [t]
        m = re.fullmatch(r"([vas])(\d+)", t)
        if m: return [t]
        m = re.fullmatch(r"([vas])\[(\d+):(\d+)\]", t)
        if m: return R(m.group(1), int(m.group(2)), int(m.group(3)) - int(m.group(2)) + 1)
    return []

class Ins:
    __slots__ = ("text", "kind", "rd", "wr", "passes", "srcc", "ab", "tag", "need", "cost", "wide", "op")
    def __init__(self, text, kind, rd=(), wr=(), passes=0, srcc=(), ab=(), tag=None, need=None, cost=1, wide=(), op=""):
        self.text, self.kind = text, kind
        self.rd, self.wr = set(rd), set(wr)
        self.passes, self.srcc, self.ab = passes, tuple(srcc), set(ab)
        self.tag, self.need, self.cost, self.wide, self.op = tag, need, cost, set(wide), op

TRANS = ("v_exp_f32", "v_log_f32", "v_rcp_f32", "v_rsq_f32", "v_sqrt_f32")

def valu(op, dst, *src, rmw=False, extra="", wr2=None):
    rd = []
    for s in src: rd += regs_of(s)
    wr = regs_of(dst)
    if rmw: rd += wr
    if wr2 is not None: wr = wr + regs_of(wr2)
    kind = "trans" if op in TRANS else ("dot" if op.startswith("v_dot") else "valu")
    t = f"{op} {dst}" + "".join(f", {s}" for s in src) + (" " + extra if extra else "")
    return Ins(t, kind, rd, wr, cost=2 if kind == "trans" else 1, op=op)

def salu(op, dst, *src, scc=True):
    rd = []
    for s in src: rd += regs_of(s)
    if op.startswith("s_cselect") or op.startswith("s_addc") or op.startswith("s_subb"): rd.append("scc")
    wr = regs_of(dst) if dst is not None else []
    ops = ([str(dst)] if dst is not None else []) + [str(s) for s in src]
    return Ins(f"{op} " + ", ".join(ops), "salu", rd, wr, op=op)

def mfma(shape, d, a, b, c):
    name, passes = {32: ("v_mfma_f32_32x32x16_bf16", 8), 16: ("v_mfma_f32_16x16x32_bf16", 4), 4: ("v_mfma_f32_4x4x4_16b_bf16", 2)}[shape]
    ab = regs_of(a) + regs_of(b)
    sc = regs_of(c)
    return Ins(f"{name} {d}, {a}, {b}, {c}", "mfma", ab + sc, regs_of(d), passes=passes, srcc=sc, ab=ab, cost=2, op=name)

def ds_read(op, dst, addr, off=0, tag=None):
    assert 0 <= off < 65536, off
    return Ins(f"{op} {dst}, {addr}" + (f" offset:{off}" if off else ""), "dsr", regs_of(addr), regs_of(dst), tag=tag, op=op)

def ds_write(op, addr, src, off=0, tag=None):
    assert 0 <= off < 65536, off
    return Ins(f"{op} {addr}, {src}" + (f" offset:{off}" if off else ""), "dsw", regs_of(addr) + regs_of(src), [], tag=tag, op=op)

def buf_load(op, dst, voff, srd, soff=0, off=0, flags="", tag=None):
    assert 0 <= off < 4096
    t = f"{op} {dst}, {voff}, {srd}, {soff} offen" + (f" offset:{off}" if off else "") + (" " + flags if flags else "")
    return Ins(t, "vml", regs_of(voff) + regs_of(srd) + regs_of(soff), regs_of(dst), tag=tag, op=op)

def buf_dma(voff, srd, soff=0, off=0, flags="", tag=None):
    assert 0 <= off < 4096
    t = f"buffer_load_dwordx4 {voff}, {srd}, {soff} offen" + (f" offset:{off}" if off else "") + (" " + flags if flags else "") + " lds"
    return Ins(t, "dma", regs_of(voff) + regs_of(srd) + regs_of(soff) + ["m0"], [], tag=tag, op="dma")

def buf_store(op, src, voff, srd, soff=0, off=0, flags="", tag=None):
    assert 0 <= off < 4096
    t = f"{op} {src}, {voff}, {srd}, {soff} offen" + (f" offset:{off}" if off else "") + (" " + flags if flags else "")
    wide = regs_of(src) if op.endswith("x4") or op.endswith("x3") else []
    return Ins(t, "vms", regs_of(src) + regs_of(voff) + regs_of(srd) + regs_of(soff), [], tag=tag, wide=wide, op=op)

def wait(vm=None, lg=None):
    return Ins("", "wait", need=(vm, lg))

def wait_regs(*regs):
    rd = []
    for r in regs: rd += regs_of(r)
    return Ins("", "waitr", rd)

def barrier():
    return Ins("s_barrier", "bar")

def raw(text, kind="salu", rd=(), wr=()):
    r, w = [], []
    for x in rd: r += regs_of(x)
    for x in wr: w += regs_of(x)
    return Ins(text, kind, r, w)

VALUK = ("valu", "trans", "dot")
XD_RD = {2: 5, 4: 8, 8: 12}
XD_OV = {2: 4, 4: 6, 8: 10}
XD_WAR = {2: 1, 4: 3, 8: 7}

class Emitter:
    def __init__(self):
        self.lines = []
        self.vm = []
        self.lg = []
        self.hist = []
        self.count = {}
        self.slots = 0
        self.nops = 0
    def text(self):
        return "\n".join(self.lines) + "\n"
    def comment(self, c):
        self.lines.append("    ; " + c)
    def label(self, l):
        self.lines.append(l + ":")
    def _out(self, ins, ws=1):
        self.lines.append("    " + ins.text)
        self.hist.append((ins, ws))
        if len(self.hist) > 40: self.hist.pop(0)
        self.count[ins.kind] = self.count.get(ins.kind, 0) + 1
        self.slots += ins.cost if ws == 1 else ws
    def _emit_wait(self, nvm, nlg):
        parts = []
        if nvm is not None and nvm < len(self.vm):
            assert nvm <= 63
            parts.append(f"vmcnt({nvm})"); self.vm = self.vm[len(self.vm) - nvm:] if nvm else []
        if nlg is not None and nlg < len(self.lg):
            n = min(nlg, 15)
            parts.append(f"lgkmcnt({n})"); self.lg = self.lg[len(self.lg) - n:] if n else []
        if parts:
            self._out(Ins("s_waitcnt " + " ".join(parts), "waitcnt"))
    @staticmethod
    def _need(q, pred):
        last = -1
        for i, e in enumerate(q):
            if pred(e): last = i
        return None if last < 0 else len(q) - 1 - last
    def _hazard(self, ins):
        need = 0
        dist = 0
        touch = ins.rd | ins.wr
        for p, ws in reversed(self.hist):
            req = 0
            if p.kind in VALUK:
                vw = {r for r in p.wr if r[0] in "va" and r != "vcc"}
                sw = p.wr - vw
                if ins.kind == "mfma" and vw & ins.rd: req = max(req, 3 if p.kind == "dot" else 2)
                if p.kind == "trans" and ins.kind in ("valu", "dot") and vw & ins.rd: req = max(req, 1)
                if p.kind == "dot" and vw & touch:
                    if not (ins.op == p.op): req = max(req, 3)
                if ins.op.startswith("v_permlane") and vw & touch: req = max(req, 2)
                if "dpp" in ins.op and vw & ins.rd: req = max(req, 2)
                if ins.op.startswith("v_read") and vw & ins.rd: req = max(req, 1)
                if ins.kind in VALUK and sw & ins.rd: req = max(req, 2)
                if ins.kind in ("vml", "vms", "dma") and sw & ins.rd: req = max(req, 5)
                if ins.kind in ("salu", "branch") and sw & ins.rd: req = max(req, 4)
            elif p.kind == "mfma":
                if ins.kind == "mfma":
                    if p.wr & ins.ab: req = max(req, XD_RD[p.passes])
                    if p.wr & set(ins.srcc):
                        if set(ins.srcc) == p.wr and ins.passes == p.passes:
                            req = max(req, 2 if p.passes == 2 else 0)
                        else: req = max(req, XD_OV[p.passes])
                    elif p.wr & ins.wr: req = max(req, XD_OV[p.passes])
                else:
                    if p.wr & touch: req = max(req, XD_RD[p.passes])
                    if set(p.srcc) & ins.wr: req = max(req, XD_WAR[p.passes])
            elif p.kind == "salu":
                if "m0" in p.wr and ins.kind == "dma": req = max(req, 1)
            elif p.kind == "vms":
                if p.wide & ins.wr: req = max(req, 2)
            need = max(need, req - dist)
            dist += ws
            if dist >= 20: break
        return need
    def add(self, ins):
        if isinstance(ins, (list, tuple)):
            for i in ins: self.add(i)
            return
        if ins.kind == "wait":
            vm, lg = ins.need
            nvm = nlg = None
            if vm == "all": nvm = 0
            elif vm is not None:
                tags = vm if isinstance(vm, (list, tuple, set)) else [vm]
                nvm = self._need(self.vm, lambda e: e[0] in tags)
            if lg == "all": nlg = 0
            elif lg is not None:
                tags = lg if isinstance(lg, (list, tuple, set)) else [lg]
                nlg = self._need(self.lg, lambda e: e[0] in tags)
            self._emit_wait(nvm, nlg)
            return
        touch = ins.rd | ins.wr
        nvm = self._need(self.vm, lambda e: e[1] & touch)
        nlg = self._need(self.lg, lambda e: e[1] & touch)
        self._emit_wait(nvm, nlg)
        if ins.kind == "waitr": return
        if ins.kind in ("vml", "vms", "dma") and len(self.vm) >= 63: self._emit_wait(62, None)
        n = self._hazard(ins)
        while n > 0:
            k = min(n, 16)
            self._out(Ins(f"s_nop {k-1}", "nop"), ws=k); self.nops += k
            n -= k
        self._out(ins)
        if ins.kind in ("vml", "vms", "dma"): self.vm.append((ins.tag, set(ins.wr)))
        if ins.kind in ("dsr", "dsw"): self.lg.append((ins.tag, set(ins.wr)))
    def drained(self, vm=True, lg=True):
        if vm: self.vm = []
        if lg: self.lg = []
```

```python
import sys
sys.path.insert(0, "tools")
from emit import *
from asmlib import KNAME

H_OFF, HALO_OFF, FLAG_OFF, WS_USED = 0, 0xA00000, 0xB00000, 0xC00000
STAMP_OFF = 0xB80000
OOB = 0x40000000
SLOT = 16384
PL = 2176
LOG2E = 1.4426950408889634

import struct
def f32(x): return "0x%08x" % struct.unpack("<I", struct.pack("<f", x))[0]

class Cfg:
    stamps = False
    xown = 8
    LA = 8
    NB = 12
    NA = 4
    spin = 20000

sWG = S(2)
pX, pQKV, pWO, pG, pU, pD, pOUT, pDBG, pWS = S(4, 2), S(6, 2), S(8, 2), S(12, 2), S(14, 2), S(16, 2), S(18, 2), S(20, 2), S(22, 2)
rX, rQKV, rGU, rD, rWO, rOUT, rWS, rDBG = S(24, 4), S(28, 4), S(32, 4), S(36, 4), S(40, 4), S(44, 4), S(48, 4), S(52, 4)
sW, sRB, sGQ, sJ, sTB2, sCB2, sWQ = S(56), S(57), S(58), S(59), S(60), S(61), S(62)
sT = [S(3), S(84), S(85), S(63)]
sOA = [0, S(64), S(65), S(66)]
sOB = [0, S(67), S(68), S(69)]
sXG = [S(70), S(71), S(72), S(73)]
sXL = [S(74), S(75), S(76), S(77)]
sM1, sM2, sEX0 = S(70, 2), S(72, 2), S(74, 2)
sJ1, sJ2, sJ3 = S(76, 2), S(78, 2), S(80, 2)
sTHR, sCNT = S(82), S(83)
sHu = [S(4), S(5), S(6)]
sCS, sC1, sHd, sHo = S(7), S(8), S(9), S(10)
sOC = [0, S(11), S(12), S(13)]
STAMP0 = 86

X = V(0, 128)
ACC1, ACC2 = V(128, 64), V(192, 32)
vLane, vTR0, vTR1, vDMA, vHST, vSCR, vVTR, vFLG = V(255), V(254), V(253), V(252), V(251), V(250), V(249), V(248)
vR, vB = V(247), V(246)
vHALO, vPOLL, vW2d = V(245), V(244), V(243)
vPV, vFV, vW2o = V(242), V(241), V(240)
vDMA1, vDMA2, vHLD, vHDS, vPOLLH, vA01, vA23 = V(239), V(238), V(237), V(236), V(235), V(234), V(233)
T = V(224, 8)
vT2 = V(222, 2)
XA = A(0, 16)
WF = A(16, 48)
KA, VA = A(64, 24), A(88, 24)

def slab_slot(n):
    if n < 10: return n
    if n < 17: return n - 7
    return n - 14

class Gen:
    def __init__(self, typ, cfg):
        self.typ, self.cfg = typ, cfg
        self.e = Emitter()
        self.nst = 0
        self.nlab = 0
    def add(self, *ins):
        for i in ins: self.e.add(i)
    def stamp(self):
        if not self.cfg.stamps: return []
        r = S(STAMP0 + 2 * self.nst, 2); self.nst += 1
        assert self.nst <= 8
        return [raw(f"s_memrealtime {r}", "smem")]
    def xreg(self, j):
        return XA.sub(4 * j, 4) if j < self.cfg.NA else X.sub(4 * j, 4)

    def poll_issue(self, vaddr, srd):
        return [buf_load("buffer_load_dword", vPV, vaddr, srd, flags="sc1")]
    def poll_check(self, vaddr, srd, thr):
        self.nlab += 1
        l = f"L_{self.typ}_p{self.nlab}"
        body = (f"s_cbranch_vccz {l}_ok\n    s_mov_b32 {sCNT}, 0\n{l}_spin:\n"
                f"    buffer_load_dword {vPV}, {vaddr}, {srd}, 0 offen sc1\n    s_add_u32 {sCNT}, {sCNT}, 1\n    s_waitcnt vmcnt(0)\n"
                f"    v_cmp_gt_u32 vcc, {thr}, {vPV}\n    s_cmp_ge_u32 {sCNT}, {self.cfg.spin}\n    s_cbranch_scc1 {l}_ok\n    s_nop 2\n"
                f"    s_cbranch_vccnz {l}_spin\n{l}_ok:")
        return [valu("v_cmp_gt_u32", "vcc", thr, vPV), raw(body, "branch", rd=["vcc"])]

    def ramp(self):
        c, add, typ = self.cfg, self.add, self.typ
        t0, t1, t2, t3 = V(200), V(201), V(202), V(203)
        vXa, vXb = V(204), V(205)
        add(salu("s_lshl_b32", sT[0], sRB, 7), salu("s_lshl_b32", sT[1], sW, 5), salu("s_add_u32", sT[0], sT[0], sT[1]),
            salu("s_and_b32", sT[1], sT[0], 1023), salu("s_lshl_b32", sT[1], sT[1], 11), salu("s_lshr_b32", sT[2], sT[0], 10),
            salu("s_lshl_b32", sT[2], sT[2], 10), salu("s_add_u32", sT[1], sT[1], sT[2]),
            salu("s_and_b32", sT[2], sJ, 1), salu("s_lshl_b32", sT[2], sT[2], 2))
        add(valu("v_lshrrev_b32", t0, 3, vLane), valu("v_and_b32", t1, 7, vLane), valu("v_lshrrev_b32", t2, 4, vLane),
            valu("v_xor_b32", t2, t1, t2), valu("v_xor_b32", t2, sT[2], t2), valu("v_lshlrev_b32", t2, 4, t2),
            valu("v_lshl_add_u32", t2, t0, 11, t2), valu("v_add_u32", vXa, sT[1], t2), valu("v_xor_b32", vXb, 64, vXa))
        for q in range(4):
            add(salu("s_add_u32", sT[2], sJ, q), salu("s_and_b32", sT[2], sT[2], 3), salu("s_lshl_b32", sXG[q], sT[2], 14),
                salu("s_lshl_b32", sT[2], sT[2], 10), salu("s_add_u32", sXL[q], sT[2], sWQ))
        add(raw("s_waitcnt lgkmcnt(0)", "waitcnt"))
        srd = lambda r, p, n: [salu("s_mov_b32", r[0], p[0]), salu("s_mov_b32", r[1], p[1]), salu("s_mov_b32", r[2], n), salu("s_mov_b32", r[3], "0x20000")]
        add(srd(rX, pX, 2048 * 1024))
        def xdma(ks, q):
            return [salu("s_add_u32", "m0", sXL[q], (2 + ks) * SLOT - ks * 128),
                    buf_dma(vXa if q % 2 == 0 else vXb, rX, sXG[q], ks * 128, tag=f"x{ks}")]
        order = [(ks, 0) for ks in range(min(8, c.xown))]
        nxt = min(8, c.xown)
        for ks in range(8):
            if ks >= nxt: order.append((ks, 0)); nxt = ks + 1
            order += [(ks, 1), (ks, 2), (ks, 3)]
            if nxt < 8: order.append((nxt, 0)); nxt += 1
        for n, (ks, q) in enumerate(order):
            add(xdma(ks, q))
            if n == 3:
                add(srd(rWS, pWS, WS_USED), srd(rDBG, pDBG, 256))
                add(salu("s_lshl_b32", sT[2], sW, 13), salu("s_add_u32", sT[2], sT[2], FLAG_OFF), salu("s_cmp_eq_u32", None, sWG, 0),
                    salu("s_cselect_b32", sT[2], sT[2], OOB))
                add(valu("v_lshrrev_b32", t2, 1, vLane), valu("v_and_b32", t3, 1, vLane), valu("v_lshlrev_b32", t3, 4, t3),
                    valu("v_lshl_add_u32", t2, t2, 8, t3), valu("v_add_u32", t2, sT[2], t2))
                z = V(208, 4)
                add([valu("v_mov_b32", z[i], 0) for i in range(4)])
                add(buf_store("buffer_store_dwordx4", z, t2, rWS, flags="sc1", tag="reset"))
        add(srd(rQKV, pQKV, 512 * 3072), srd(rD, pD, 1792 * 1024), srd(rWO, pWO, 512 * 1024), srd(rOUT, pOUT, 2048 * 1024))
        add(salu("s_cmp_lt_u32", None, sW, 2), salu("s_cselect_b32", rGU[0], pG[0], pU[0]), salu("s_cselect_b32", rGU[1], pG[1], pU[1]),
            salu("s_mov_b32", rGU[2], 512 * 3584), salu("s_mov_b32", rGU[3], "0x20000"))
        sa, sb = (8 * 3072, 8 * 3584) if typ == "B" else (8 * 3584, 16 * 3584)
        for i in (1, 2, 3):
            add(salu("s_mov_b32", sOA[i], i * (sa - 1024)), salu("s_mov_b32", sOB[i], i * (sb - 1024)))
        add(self.dma_setup(0))
        add(self.dma_slab(0), self.dma_slab(1))
        add(valu("v_and_b32", t0, 3, vLane), valu("v_bfe_u32", t1, vLane, 2, 2), valu("v_bfe_u32", t2, vLane, 4, 1), valu("v_lshrrev_b32", t3, 5, vLane),
            valu("v_lshl_add_u32", vTR0, t3, 3, t1), valu("v_lshlrev_b32", vTR0, 7, vTR0),
            valu("v_lshrrev_b32", t1, 1, t1), valu("v_lshl_add_u32", vTR0, t1, 6, vTR0),
            valu("v_and_b32", t1, 1, t0), valu("v_lshl_add_u32", vTR0, t1, 5, vTR0),
            valu("v_lshrrev_b32", t0, 1, t0), valu("v_lshl_add_u32", t0, t2, 1, t0), valu("v_lshl_add_u32", vTR0, t0, 3, vTR0),
            valu("v_xor_b32", vTR1, 64, vTR0))
        self.win = [0, 0, 0]
        add(valu("v_and_b32", t0, 31, vLane), valu("v_bfe_u32", t1, vLane, 1, 3), valu("v_xor_b32", t1, t3, t1), valu("v_lshlrev_b32", t1, 4, t1),
            valu("v_lshl_add_u32", t1, t0, 7, t1), valu("v_add_u32", t1, sWQ, t1))
        vXRs = [V(212 + i) for i in range(4)]
        for jj in range(4):
            add(valu("v_xor_b32", vXRs[jj], jj * 32, t1), valu("v_add_u32", vXRs[jj], 2 * SLOT, vXRs[jj]))
        sm, sq = V(192, 2), V(194, 2)
        one = V(196)
        add([valu("v_mov_b32", r, 0) for r in (sm[0], sm[1], sq[0], sq[1])], valu("v_mov_b32", one, "0x3f803f80"))
        self.misc_setup()
        add(self.stamp())
        def stats(ks):
            for r in range(16):
                x = X[16 * ks + r]
                add(valu("v_dot2c_f32_bf16", sm[r & 1], x, one, rmw=True), valu("v_dot2c_f32_bf16", sq[r & 1], x, x, rmw=True))
        for ks in range(8):
            if ks == 4:
                add([valu("v_add_u32", r, 4 * SLOT, r) for r in vXRs])
            add(wait(vm=f"x{ks}"))
            for jj in range(4):
                add(ds_read("ds_read_b128", X.sub(16 * ks + 4 * jj, 4), vXRs[jj], (ks & 3) * SLOT, tag=f"xr{ks}"))
            if ks == 0:
                add(salu("s_lshl_b32", sT[2], sW, 2), salu("s_cmp_eq_u32", None, sWG, 0), salu("s_cselect_b32", sT[2], sT[2], OOB),
                    valu("v_mov_b32", t0, sT[2]), valu("v_mov_b32", t1, 1), wait(vm="reset"),
                    buf_store("buffer_store_dword", t1, t0, rDBG, flags="sc1"))
            if ks >= 1:
                add(wait(lg=f"xr{ks-1}"), self.dma_slab(1 + ks))
                stats(ks - 1)
        add(wait(lg="xr7"), self.dma_slab(9))
        stats(7)
        add(valu("v_add_f32", sm[0], sm[0], sm[1]), valu("v_add_f32", sq[0], sq[0], sq[1]),
            valu("v_mov_b32", sm[1], sm[0]), valu("v_mov_b32", sq[1], sq[0]))
        add(valu("v_permlane32_swap_b32", sm[0], sm[1], rmw=True, wr2=sm[1]), valu("v_permlane32_swap_b32", sq[0], sq[1], rmw=True, wr2=sq[1]))
        add(valu("v_add_f32", sm[0], sm[0], sm[1]), valu("v_add_f32", sq[0], sq[0], sq[1]),
            valu("v_mul_f32", sm[0], f32(1 / 512), sm[0]), valu("v_mul_f32", sq[0], f32(1 / 512), sq[0]),
            valu("v_fma_f32", sq[0], f"-{sm[0]}", sm[0], sq[0]), valu("v_max_f32", sq[0], 0, sq[0]),
            valu("v_cvt_pk_bf16_f32", sq[0], sq[0], sm[0]),
            valu("v_and_b32", sm[0], "0xffff0000", sq[0]), valu("v_lshlrev_b32", sq[0], 16, sq[0]),
            valu("v_add_f32", sq[0], f32(1e-5), sq[0]), valu("v_cvt_pk_bf16_f32", sq[0], sq[0], sq[0]), valu("v_lshlrev_b32", sq[0], 16, sq[0]),
            valu("v_sqrt_f32", sq[0], sq[0]), valu("v_cvt_pk_bf16_f32", sq[0], sq[0], sq[0]), valu("v_lshlrev_b32", sq[0], 16, sq[0]),
            valu("v_rcp_f32", vR, sq[0]), valu("v_mul_f32", vB, f"-{sm[0]}", vR, extra=""))
        add(self.stamp())

    def misc_setup(self):
        add = self.add
        t0, t1, t2, t3 = V(200), V(201), V(202), V(203)
        add(self.dma_setup(1), self.dma_setup(2), self.w2_setup())
        for ch in range(3):
            if not (self.typ == "B" and ch == 0): add(self.set_hu(ch))
        if self.typ == "B": add(self.att_setup())
        else: add(valu("v_bfe_u32", t0, vTR0, 7, 4), valu("v_and_b32", t1, 63, vTR0), valu("v_lshl_add_u32", vVTR, t0, 6, t1))
        add(salu("s_lshl_b32", sT[1], sRB, 2), salu("s_add_u32", sT[1], sT[1], sW), salu("s_mul_i32", sT[2], sT[1], 144 * 1024),
            valu("v_lshl_add_u32", vHST, vLane, 4, sT[2]))
        add(salu("s_lshr_b32", sT[1], sT[1], 1), salu("s_lshl_b32", sT[1], sT[1], 2), salu("s_add_u32", sT[1], sT[1], sGQ), salu("s_lshl_b32", sT[1], sT[1], 8),
            salu("s_and_b32", sT[2], sW, 1), salu("s_lshl_b32", sT[3], sJ, 1), salu("s_add_u32", sT[2], sT[2], sT[3]), salu("s_lshl_b32", sT[2], sT[2], 2),
            salu("s_add_u32", sT[1], sT[1], sT[2]), salu("s_add_u32", sT[1], sT[1], FLAG_OFF),
            valu("v_mov_b32", t0, OOB), valu("v_mov_b32", t1, sT[1]), valu("v_cmp_eq_u32", "vcc", 0, vLane), valu("v_cndmask_b32", vFLG, t0, t1, "vcc"))
        add(valu("v_and_b32", vPOLL, 3, vLane), valu("v_lshlrev_b32", vPOLL, 2, vPOLL))

    def chunk_of(self, n): return 0 if n < 8 else (1 if n < 12 else 2)
    def dma_setup(self, ch):
        t0, t1 = vT2[0], vT2[1]
        o = []
        B = self.typ == "B"
        half = (not B) and ch == 1
        stride = 3072 if (B and ch < 2) else 3584
        if half:
            o += [valu("v_lshrrev_b32", t0, 2, vLane), valu("v_and_b32", t1, 3, vLane)]
        else:
            o += [valu("v_lshrrev_b32", t0, 2, vLane), valu("v_and_b32", t0, 4, t0), valu("v_and_b32", t1, 7, vLane), valu("v_xor_b32", t1, t0, t1),
                  valu("v_lshrrev_b32", t0, 3, vLane)]
        o += [valu("v_mul_u32_u24", t0, stride, t0), valu("v_lshl_add_u32", t0, t1, 4, t0)]
        a, b = sT[1], sT[2]
        if B and ch == 0:
            o += [salu("s_lshl_b32", a, sGQ, 1), salu("s_add_u32", a, a, sJ), salu("s_lshl_b32", a, a, 7), salu("s_lshr_b32", b, sW, 1),
                  salu("s_add_u32", b, b, 1), salu("s_lshl_b32", b, b, 10), salu("s_add_u32", a, a, b), salu("s_and_b32", b, sW, 1),
                  salu("s_mul_i32", b, b, 32 * stride), salu("s_add_u32", a, a, b)]
        elif B and ch == 1:
            o += [salu("s_lshl_b32", a, sGQ, 1), salu("s_add_u32", a, a, sJ), salu("s_lshl_b32", a, a, 7), salu("s_mul_i32", b, sW, 32 * stride),
                  salu("s_add_u32", a, a, b)]
        else:
            if B: o += [salu("s_lshl_b32", b, sJ, 7)]
            elif half: o += [salu("s_lshl_b32", b, sJ, 6), salu("s_add_u32", b, b, 6 * 128 - 128)]
            else: o += [salu("s_lshl_b32", b, sJ, 8), salu("s_sub_u32", b, b, 256 if ch == 0 else 128)]
            o += [salu("s_mul_i32", a, sGQ, 7 * 128), salu("s_add_u32", a, a, b), salu("s_and_b32", b, sW, 1),
                  salu("s_mul_i32", b, b, (64 if half else 32) * stride), salu("s_add_u32", a, a, b)]
        o += [valu("v_add_u32", (vDMA, vDMA1, vDMA2)[ch], a, t0)]
        return o
    def dma_slab(self, n):
        ch = self.chunk_of(n)
        B = self.typ == "B"
        o = []
        vd = (vDMA, vDMA1, vDMA2)[ch]
        srd = rQKV if (B and ch < 2) else rGU
        so = (sOA if ch < 2 else sOB) if B else (sOB if ch == 1 else sOA)
        stride = 3072 if (B and ch < 2) else 3584
        o += [salu("s_add_u32", "m0", sWQ, slab_slot(n) * SLOT)]
        o += [buf_dma(vd, srd, so[i], i * 1024, tag=f"w{n}") for i in range(4)]
        if n not in (7, 11, 19): o += [valu("v_add_u32", vd, (128 if ch == 1 else 64) * stride, vd)]
        return o

    def frag_list(self):
        L = []
        for n in range(20):
            ch = self.chunk_of(n)
            base = slab_slot(n) * SLOT
            if ch != 1:
                n0 = 0 if ch == 0 else 12
                for jj in range(4):
                    for blk in range(4):
                        L.append((ACC1.sub(16 * blk, 16), 4 * (n - n0) + jj, n, base + (blk & 1) * 8192 + jj * 2048, blk >> 1, 512))
            else:
                for jj in range(8):
                    for blk in range(2):
                        if self.typ == "B": L.append((ACC2.sub(16 * blk, 16), 8 * (n - 8) + jj, n, base + jj * 2048, blk, 512))
                        else: L.append((ACC2.sub(16 * blk, 16), 8 * (n - 8) + jj, n, base + blk * 8192 + jj * 1024, 2, 256))
        return L
    def frag_reads(self, k, f):
        acc, step, n, off, which, ustep = f
        o = []
        w = off // 65536 * 65536
        if w != self.win[which]:
            d = w - self.win[which]
            op, d = ("v_add_u32", d) if d > 0 else ("v_subrev_u32", -d)
            r = (vTR0, vTR1, vVTR)[which]
            o += [valu(op, r, d, r)]
            self.win[which] = w
        b = (vTR0, vTR1, vVTR)[which]
        dst = WF.sub(4 * (k % self.cfg.NB), 4)
        o += [ds_read("ds_read_b64_tr_b16", dst.sub(0, 2), b, off - w, tag=f"f{k}"), ds_read("ds_read_b64_tr_b16", dst.sub(2, 2), b, off - w + ustep, tag=f"f{k}")]
        return o
    def norm_step(self, j):
        o = []
        x = X.sub(4 * j, 4)
        lo = [T[i] for i in range(4)]
        o += [valu("v_lshlrev_b32", lo[i], 16, x[i]) for i in range(4)]
        o += [valu("v_and_b32", x[i], "0xffff0000", x[i]) for i in range(4)]
        o += [valu("v_fma_f32", lo[i], lo[i], vR, vB) for i in range(4)]
        o += [valu("v_fma_f32", x[i], x[i], vR, vB) for i in range(4)]
        o += [valu("v_cvt_pk_bf16_f32", x[i], lo[i], x[i]) for i in range(4)]
        if j < self.cfg.NA: o += [valu("v_accvgpr_write_b32", XA[4 * j + i], x[i]) for i in range(4)]
        return o
    def ffn_epi(self, G, U, ch, kst, tag):
        o = []
        for b in range(4):
            t = [T[4 + i] for i in range(4)]
            g = [G[4 * b + i] for i in range(4)]; u = [U[4 * b + i] for i in range(4)]
            o += [valu("v_mul_f32", t[i], f32(-LOG2E), g[i]) for i in range(4)]
            for i in range(4): o += [valu("v_exp_f32", t[i], t[i]), valu("v_mul_f32", u[i], g[i], u[i])]
            o += [valu("v_add_f32", t[i], "1.0", t[i]) for i in range(4)]
            o += [valu("v_rcp_f32", t[i], t[i]) for i in range(4)]
            o += [valu("v_mul_f32", u[i], u[i], t[i]) for i in range(4)]
            o += [valu("v_cvt_pk_bf16_f32", G[2 * b + i], u[2 * i], u[2 * i + 1]) for i in range(2)]
            if b & 1: o += [buf_store("buffer_store_dwordx4", G.sub(2 * (b - 1), 4), vHST, rWS, sHu[ch], kst + (b >> 1) * 1024, flags="sc1", tag=tag)]
        return o
    def set_hu(self, ch):
        B = self.typ == "B"
        a = sT[1]
        if B and ch == 1:
            return [salu("s_lshl_b32", a, sGQ, 1), salu("s_add_u32", a, a, sJ), salu("s_lshl_b32", a, a, 12), salu("s_add_u32", sHu[ch], a, 112 * 1024)]
        o = [salu("s_mul_i32", sHu[ch], sGQ, 28 * 1024)]
        if B: o += [salu("s_lshl_b32", a, sJ, 12)]
        elif ch == 1: o += [salu("s_lshl_b32", a, sJ, 11), salu("s_add_u32", a, a, 6 * 4096 - 4096)]
        else: o += [salu("s_lshl_b32", a, sJ, 13), salu("s_sub_u32", a, a, 8192 if ch == 0 else 4096)]
        return o + [salu("s_add_u32", sHu[ch], sHu[ch], a)]
    def flag(self, stage, tag):
        t = vFV
        return [wait(vm=tag), valu("v_mov_b32", t, stage), buf_store("buffer_store_dword", t, vFLG, rWS, flags="sc1")]

    def phase1(self):
        c, add = self.cfg, self.add
        F = self.frag_list()
        NM = len(F)
        gaps = [[] for _ in range(NM)]
        tail = [[] for _ in range(NM)]
        load = [0] * NM
        def put(k, ins, last=False):
            (tail if last else gaps)[k] += ins
            load[k] += sum(i.cost for i in ins if i.kind not in ("wait", "waitr"))
        def spread(ins, k0, k1):
            tot = sum(i.cost for i in ins) + sum(load[k0:k1])
            lvl = tot / (k1 - k0)
            k, acc, used = k0, 0.0, 0.0
            for i in ins:
                while k < k1 - 1 and used + load[k] + i.cost / 2 > (k - k0 + 1) * lvl:
                    used += load[k]; k += 1
                put(k, [i])
        bar_gap = {m: 32 * m - c.LA - 1 for m in range(1, 10)}
        self.bar_extra = {m: [] for m in range(1, 11)}
        refill = {}
        nxt = 10
        for m in range(1, 10):
            refill[m] = []
            while nxt < 20 and nxt - 7 <= 2 * m - 2:
                refill[m].append(nxt); nxt += 1
        for m in range(1, 10):
            k = bar_gap[m]
            load[k] += 4
            ins = []
            for n in refill[m]: ins += self.dma_slab(n)
            if m == 8: ins += self.w2_dma(0, 6) + self.w2_dma(1, 7)
            if m == 9: ins += self.w2_dma(2, 8) + self.w2_dma(3, 9)
            if ins: spread(ins, k + 1, k + 21)
        for j in range(1, 32): spread(self.norm_step(j), 4 * (j - 1), 4 * j)
        put(40, self.poll_issue(vPOLL, rDBG))
        put(bar_gap[3] + 22, self.poll_check(vPOLL, rDBG, 1))
        if self.typ == "C":
            ins = self.ffn_epi(ACC1.sub(0, 16), ACC1.sub(16, 16), 0, 0, "st1") + self.ffn_epi(ACC1.sub(32, 16), ACC1.sub(48, 16), 0, 2048, "st1")
            spread(ins, 129, 191)
            put(bar_gap[7] + 22, self.flag(1, "st1"))
            spread(self.ffn_epi(ACC2.sub(0, 16), ACC2.sub(16, 16), 1, 0, "st2"), 195, 235)
            put(bar_gap[9] + 22, self.flag(2, "st2"))
        else:
            self.attention(put, spread, bar_gap)
        add(self.norm_step(0))
        add(wait(vm="w1"), barrier())
        add(self.stamp())
        for k in range(c.LA): add(self.frag_reads(k, F[k]))
        seen = set()
        inv_bar = {v: m for m, v in bar_gap.items()}
        for k in range(NM):
            acc, step, n, off, which, us = F[k]
            if k % 4 == 0: add(wait(lg=[f"f{i}" for i in range(k, k + 4)]))
            first = step == 0
            add(mfma(32, acc, WF.sub(4 * (k % c.NB), 4), self.xreg(step) if n >= 8 else X.sub(4 * step, 4), 0 if first else acc))
            if k in inv_bar:
                m = inv_bar[k]
                add(wait(vm=f"w{2*m+1}", lg=self.bar_extra[m] or None), barrier())
            if k + c.LA < NM: add(self.frag_reads(k + c.LA, F[k + c.LA]))
            add(gaps[k]); add(tail[k])
            if k in (127, 191): add(self.stamp())
        add(self.stamp())

    def att_setup(self):
        t0, t1 = vT2[0], vT2[1]
        o = []
        o += [valu("v_and_b32", t0, 31, vLane), valu("v_lshrrev_b32", t1, 5, vLane), valu("v_mul_u32_u24", t1, 2 * PL, t1),
              salu("s_lshl_b32", sT[1], sW, 9), valu("v_lshl_add_u32", vSCR, t0, 4, t1), valu("v_add_u32", vSCR, sT[1], vSCR)]
        o += [salu("s_lshl_b32", sT[1], sRB, 3), salu("s_lshl_b32", sT[2], sGQ, 1), salu("s_add_u32", sT[1], sT[1], sT[2]), salu("s_add_u32", sT[1], sT[1], sJ),
              salu("s_lshl_b32", sC1, sT[1], 11), salu("s_add_u32", sC1, sC1, HALO_OFF), salu("s_sub_u32", sT[1], sC1, 24 * 16),
              salu("s_cmp_eq_u32", None, sW, 3), salu("s_cselect_b32", sT[1], sT[1], OOB),
              valu("v_lshrrev_b32", t1, 5, vLane), valu("v_lshlrev_b32", t1, 8, t1), valu("v_lshl_add_u32", t1, t0, 4, t1), valu("v_add_u32", t1, sT[1], t1),
              valu("v_cmp_lt_u32", "vcc", 23, t0), valu("v_mov_b32", t0, OOB), valu("v_cndmask_b32", vHALO, t0, t1, "vcc")]
        o += [valu("v_and_b32", t0, 3, vLane), valu("v_cmp_le_u32", sJ1, 1, t0), valu("v_cmp_le_u32", sJ2, 2, t0), valu("v_cmp_le_u32", sJ3, 3, t0),
             valu("v_mov_b32", t1, "0xffff"), valu("v_cndmask_b32", vA01, t1, -1, sJ1), valu("v_cndmask_b32", vA23, 0, t1, sJ2), valu("v_cndmask_b32", vA23, vA23, -1, sJ3),
             salu("s_and_b32", sT[1], sRB, 7), salu("s_or_b32", sT[2], sT[1], sW), salu("s_cmp_eq_u32", None, sT[2], 0),
             salu("s_cselect_b32", sM1[0], "0xf", 0), salu("s_cselect_b32", sM2[0], "0xff", 0), salu("s_mov_b32", sM1[1], sM1[0]), salu("s_mov_b32", sM2[1], sM2[0]),
             salu("s_cmp_eq_u32", None, sW, 0), salu("s_cselect_b64", sEX0, -1, 0), salu("s_cselect_b32", sT[1], sT[1], 0),
             salu("s_cmp_lg_u32", None, sT[1], 0), salu("s_cselect_b32", sTHR, 1, 0),
             salu("s_sub_u32", sT[2], sC1, 8 * 2048), salu("s_cmp_lg_u32", None, sTHR, 0), salu("s_cselect_b32", sT[2], sT[2], OOB),
             valu("v_lshl_add_u32", vHLD, vLane, 4, sT[2]),
             salu("s_lshl_b32", sT[1], sRB, 3), salu("s_add_u32", sT[1], sT[1], sGQ), salu("s_lshl_b32", sT[1], sT[1], 8), salu("s_lshl_b32", sT[2], sJ, 3),
             salu("s_add_u32", sT[1], sT[1], sT[2]), salu("s_add_u32", sT[1], sT[1], FLAG_OFF - 1024 + 4), salu("s_cmp_lg_u32", None, sTHR, 0),
             salu("s_cselect_b32", sT[1], sT[1], OOB), valu("v_mov_b32", vPOLLH, sT[1]),
             valu("v_bfe_u32", t1, vLane, 2, 2), valu("v_lshl_add_u32", t0, t0, 2, t1), valu("v_and_b32", t1, 16, vLane), valu("v_add_u32", t0, t0, t1),
             valu("v_lshrrev_b32", t1, 5, vLane), valu("v_mul_u32_u24", t1, 2 * PL, t1), valu("v_lshl_add_u32", t0, t0, 4, t1),
             salu("s_lshl_b32", sT[1], sW, 9), valu("v_add_u32", vVTR, sT[1], t0)]
        o += [valu("v_lshrrev_b32", t0, 3, vLane), valu("v_mul_u32_u24", t0, PL, t0), valu("v_and_b32", t1, 7, vLane), valu("v_lshl_add_u32", vHDS, t1, 4, t0),
              salu("s_mov_b32", sCS, f32(0.25 * LOG2E))]
        return o
    def attention(self, put, spread, bar_gap):
        o = []
        for blk in range(4):
            a = ACC1.sub(16 * blk, 16)
            kv, cb = blk & 1, blk >> 1
            for dh in range(2):
                o += [valu("v_cvt_pk_bf16_f32", a[4 * dh + i], a[8 * dh + 2 * i], a[8 * dh + 2 * i + 1]) for i in range(4)]
                pl = kv * 8 + cb * 4 + dh
                o += [buf_store("buffer_store_dwordx4", a.sub(4 * dh, 4), vHALO, rWS, 0, pl * 128, flags="sc1", tag="st1"),
                      ds_write("ds_write_b128", vSCR, a.sub(4 * dh, 4), pl * PL + 128, tag="kv")]
        spread(o, 130, 146)
        self.bar_extra[5] = ["kv"]
        put(176, self.flag(1, "st1"))
        Q = ACC2.sub(0, 16); O = ACC2.sub(16, 16)
        o = [valu("v_cvt_pk_bf16_f32", Q[i], ACC2[2 * i], ACC2[2 * i + 1]) for i in range(16)]
        spread(o, 195, 203)
        put(200, self.poll_issue(vPOLLH, rWS))
        hb = V(0, 8)
        put(218, self.poll_check(vPOLLH, rWS, sTHR) + [buf_load("buffer_load_dwordx4", hb.sub(4 * i, 4), vHLD, rWS, 0, 1024 * i, flags="sc1") for i in range(2)])
        o = [wait_regs(hb), salu("s_mov_b64", "exec", sEX0), ds_write("ds_write_b128", vHDS, hb.sub(0, 4), 0), ds_write("ds_write_b128", vHDS, hb.sub(4, 4), 8 * PL),
             salu("s_mov_b64", "exec", -1)]
        put(238, o)
        Sg = [V(0, 4), V(4, 4), V(8, 4)]
        P = [T.sub(0, 2), T.sub(2, 2), T.sub(4, 2)]
        tm, tz = V(12), V(13)
        big = V(14)
        k = 240
        cs = 0.25 * LOG2E
        for cb in range(2):
            for g in range(3):
                put(k + g, [ds_read("ds_read_b128", KA.sub(8 * g + 4 * dh, 4), vSCR, (cb * 4 + dh) * PL + (2 - g) * 64) for dh in range(2)])
            if cb == 0: put(k + 3, [valu("v_mov_b32", big, f32(-1e30))])
            for g in range(3):
                put(k + 4 + g, [ds_read("ds_read_b64_tr_b16", VA.sub(8 * g + 2 * m, 2), vVTR, (8 + cb * 4 + (m >> 1)) * PL + (2 - g) * 64 + (m & 1) * 8) for m in range(4)])
            k += 6
            for dq in range(4):
                put(k + dq // 2, [mfma(4, Sg[g], KA.sub(8 * g + 2 * dq, 2), Q.sub(8 * cb + 2 * dq, 2), Sg[g] if dq else 0) for g in range(3)], last=True)
            k += 3
            s = [Sg[0][i] for i in range(4)] + [Sg[1][i] for i in range(4)]
            o = [valu("v_cndmask_b32", Sg[2][r], Sg[2][r], big, sM2) for r in (1, 2, 3)]
            o += [valu("v_cndmask_b32", Sg[1][r], Sg[1][r], big, sM1) for r in range(4)]
            o += [valu("v_cndmask_b32", Sg[0][r], Sg[2][r], Sg[0][r], (None, sJ1, sJ2, sJ3)[r]) for r in (1, 2, 3)]
            o += [valu("v_max3_f32", tm, s[0], s[1], s[2]), valu("v_max3_f32", tz, s[3], s[4], s[5]), valu("v_max3_f32", tm, tm, s[6], s[7]), valu("v_max_f32", tm, tm, tz),
                  valu("v_mul_f32", tm, f32(-cs), tm)]
            o += [valu("v_fma_f32", s[i], s[i], sCS, tm) for i in range(8)]
            o += [valu("v_exp_f32", s[i], s[i]) for i in range(8)]
            u = [Sg[2][i] for i in range(4)]
            o += [valu("v_add_f32", u[i], s[2 * i], s[2 * i + 1]) for i in range(4)]
            o += [valu("v_add_f32", u[0], u[0], u[1]), valu("v_add_f32", u[2], u[2], u[3]), valu("v_add_f32", u[0], u[0], u[2]), valu("v_rcp_f32", tz, u[0])]
            o += [valu("v_mul_f32", s[i], s[i], tz) for i in range(8)]
            o += [valu("v_cvt_pk_bf16_f32", u[0], s[0], s[1]), valu("v_cvt_pk_bf16_f32", u[1], s[2], s[3]),
                  valu("v_cvt_pk_bf16_f32", P[1][0], s[4], s[5]), valu("v_cvt_pk_bf16_f32", P[1][1], s[6], s[7]),
                  valu("v_and_b32", P[0][0], u[0], vA01), valu("v_and_b32", P[0][1], u[1], vA23),
                  valu("v_bfi_b32", P[2][0], vA01, 0, u[0]), valu("v_bfi_b32", P[2][1], vA23, 0, u[1])]
            spread(o, k, k + 19)
            k += 19
            for g in range(3):
                put(k + g // 2 * 1, [mfma(4, O.sub(4 * m, 4), VA.sub(8 * g + 2 * m, 2), P[g], O.sub(4 * m, 4) if g else 0) for m in range(4)], last=True)
            k += 3
            o = []
            for dh in range(2):
                o += [valu("v_cvt_pk_bf16_f32", O[4 * dh + i], O[8 * dh + 2 * i], O[8 * dh + 2 * i + 1]) for i in range(4)]
                o += [buf_store("buffer_store_dwordx4", O.sub(4 * dh, 4), vHST, rWS, sHu[1], cb * 2048 + dh * 1024, flags="sc1", tag="st2")]
            spread(o, k, k + 3)
            k += 3
        assert k <= 318, k

    GORD = [("d", 4), ("d", 5), ("d", 8), ("d", 9), ("d", 12), ("d", 13), ("o", 0), ("o", 1), ("o", 2), ("o", 3),
            ("d", 0), ("d", 1), ("d", 2), ("d", 3), ("d", 6), ("d", 7), ("d", 10), ("d", 11)]
    def w2_setup(self):
        t0, t1 = vT2[0], vT2[1]
        o = [valu("v_lshrrev_b32", t0, 2, vLane), valu("v_and_b32", t0, 4, t0), valu("v_and_b32", t1, 7, vLane), valu("v_xor_b32", t1, t0, t1),
             valu("v_lshrrev_b32", t0, 3, vLane), valu("v_lshlrev_b32", t0, 10, t0), valu("v_lshl_add_u32", t0, t1, 4, t0),
             salu("s_lshl_b32", sT[1], sCB2, 7), salu("s_mul_i32", sT[2], sW, 448 * 1024), salu("s_add_u32", sT[2], sT[2], sT[1]), valu("v_add_u32", vW2d, sT[2], t0),
             salu("s_lshl_b32", sT[2], sW, 17), salu("s_add_u32", sT[2], sT[2], sT[1]), valu("v_add_u32", vW2o, sT[2], t0),
             salu("s_mul_i32", sHd, sW, 28 * 1024), salu("s_lshl_b32", sHo, sW, 13), salu("s_add_u32", sHo, sHo, 112 * 1024)]
        o += [salu("s_mov_b32", sOC[i], 7168 * i) for i in (1, 2, 3)]
        self.w2pos = {"d": 0, "o": 0}
        return o
    def w2_dma(self, gi, slot):
        kind, g = self.GORD[gi]
        self.w2slot[gi] = slot
        v = vW2d if kind == "d" else vW2o
        o = [salu("s_add_u32", "m0", sWQ, slot * SLOT)]
        d = (g - self.w2pos[kind]) * 32768
        self.w2pos[kind] = g
        if d: o += [valu("v_add_u32" if d > 0 else "v_subrev_u32", v, abs(d), v)]
        o += [buf_dma(v, rD if kind == "d" else rWO, sOC[i], i * 1024, tag=f"g{gi}") for i in range(4)]
        return o
    def phase2(self):
        c, add = self.cfg, self.add
        accF, accS = A(0, 64), A(64, 64)
        W2 = A(128, 128)
        HB = V(0, 128)
        add(barrier())
        e0 = self.ffn_epi(ACC1.sub(0, 16), ACC1.sub(16, 16), 2, 0, "st3")
        e1 = self.ffn_epi(ACC1.sub(32, 16), ACC1.sub(48, 16), 2, 2048, "st3")
        add(self.w2_dma(4, 0), self.w2_dma(5, 1))
        add(e0, e1)
        for gi in range(6, 10): add(self.w2_dma(gi, gi - 4))
        vb = [[V(192 + 2 * w + i) for i in range(2)] for w in range(3)]
        t0, t1, t2 = V(224), V(225), V(226)
        add(valu("v_and_b32", t0, "0x3ff", vTR0), valu("v_lshrrev_b32", t1, 5, vLane), valu("v_lshl_add_u32", t0, t1, 11, t0), valu("v_add_u32", vb[0][0], sWQ, t0),
            valu("v_xor_b32", vb[0][1], 64, vb[0][0]))
        for w in (1, 2):
            for i in range(2): add(valu("v_add_u32", vb[w][i], w * 65536, vb[0][i]))
        def w2_read(gi):
            base = self.w2slot[gi] * SLOT
            w = base // 65536
            dst = W2.sub(16 * (gi % 8), 16)
            o = [wait(vm=f"g{gi}")]
            for s in range(2):
                for cb in range(2):
                    for u in range(2):
                        o += [ds_read("ds_read_b64_tr_b16", dst.sub(8 * s + 4 * cb + 2 * u, 2), vb[w][cb], base - w * 65536 + s * 1024 + u * 512, tag=f"r{gi}")]
            return o
        vH = [V(198), V(199)]
        vXO = V(200)
        XR = V(204, 8)
        add(salu("s_mul_i32", sT[1], sTB2, 288 * 1024), valu("v_lshl_add_u32", vH[0], vLane, 4, sT[1]), valu("v_add_u32", vH[1], 144 * 1024, vH[0]))
        add(salu("s_lshl_b32", sT[1], sTB2, 2), salu("s_add_u32", sT[1], sT[1], sW), salu("s_lshl_b32", sT[1], sT[1], 8), salu("s_add_u32", sT[1], sT[1], FLAG_OFF),
            valu("v_and_b32", t0, 7, vLane), valu("v_lshl_add_u32", vPOLL, t0, 2, sT[1]))
        add(salu("s_lshl_b32", sT[1], sTB2, 6), salu("s_lshr_b32", sT[2], sW, 1), salu("s_lshl_b32", sT[2], sT[2], 5), salu("s_add_u32", sT[1], sT[1], sT[2]),
            salu("s_and_b32", sT[2], sT[1], 1023), salu("s_lshl_b32", sT[2], sT[2], 11), salu("s_lshr_b32", sT[1], sT[1], 10), salu("s_lshl_b32", sT[1], sT[1], 10),
            salu("s_add_u32", sT[1], sT[1], sT[2]), salu("s_lshl_b32", sT[2], sCB2, 7), salu("s_add_u32", sT[1], sT[1], sT[2]),
            salu("s_and_b32", sT[2], sW, 1), salu("s_lshl_b32", sT[2], sT[2], 6), salu("s_add_u32", sT[1], sT[1], sT[2]),
            valu("v_and_b32", t0, 31, vLane), valu("v_lshlrev_b32", t0, 11, t0), valu("v_lshl_add_u32", t0, t1, 5, t0), valu("v_add_u32", vXO, sT[1], t0))
        for gi in range(4):
            add(w2_read(gi))
        add(self.flag(3, "st3"))
        add(self.stamp())
        for gi in range(4):
            add(wait(lg=f"r{gi}"), self.w2_dma(10 + gi, self.w2slot[gi]))
        for gi in range(4, 8):
            add(w2_read(gi))
            add(wait(lg=f"r{gi}"), self.w2_dma(10 + gi, self.w2slot[gi]))
        add([buf_load("buffer_load_dwordx4", XR.sub(4 * i, 4), vXO, rX, 0, 16 * i) for i in range(2)])
        add(self.poll_issue(vPOLL, rWS), self.poll_check(vPOLL, rWS, 3))
        add(self.stamp())
        def h_load(gi):
            kind, g = self.GORD[gi]
            o = [salu("s_add_u32", sT[0], sHd if kind == "d" else sHo, g * 2048)]
            dst = HB.sub(16 * (gi % 8), 16)
            for s in range(2):
                for tb in range(2):
                    o += [buf_load("buffer_load_dwordx4", dst.sub(8 * s + 4 * tb, 4), vH[tb], rWS, sT[0], s * 1024, flags="sc1")]
            return o
        for gi in range(8): add(h_load(gi))
        started = set()
        for gi in range(18):
            kind, g = self.GORD[gi]
            acc = accF if kind == "d" else accS
            wreg, hreg = W2.sub(16 * (gi % 8), 16), HB.sub(16 * (gi % 8), 16)
            add(wait_regs(wreg, hreg))
            for s in range(2):
                for tb in range(2):
                    for cb in range(2):
                        a = acc.sub(16 * (2 * tb + cb), 16)
                        key = (kind, tb, cb)
                        add(mfma(32, a, wreg.sub(8 * s + 4 * cb, 4), hreg.sub(8 * s + 4 * tb, 4), a if key in started else 0))
                        started.add(key)
            if gi + 8 < 18: add(h_load(gi + 8), w2_read(gi + 8))
        add(self.stamp())
        vRW, vRW2, vRR, vRR2 = V(201), V(202), V(203), V(212)
        add(valu("v_lshl_add_u32", vRW, vLane, 4, sWQ), valu("v_add_u32", vRW2, 65536, vRW),
            salu("s_lshl_b32", sT[1], sW, 14), valu("v_lshl_add_u32", vRR, vLane, 4, sT[1]), valu("v_add_u32", vRR2, 65536, vRR))
        for acc, va in ((accS, vRW2), (accF, vRW)):
            for b in range(4):
                for q in range(4): add(ds_write("ds_write_b128", va, acc.sub(16 * b + 4 * q, 4), b * SLOT + q * 1024))
        add(wait(lg="all"), barrier())
        Fp, Sp = V(0, 64), V(64, 64)
        for P_, va in ((Fp, vRR), (Sp, vRR2)):
            for w in range(4):
                for q in range(4): add(ds_read("ds_read_b128", P_.sub(16 * w + 4 * q, 4), va, w * 4096 + q * 1024))
        for P_ in (Fp, Sp):
            for i in range(0, 16, 2): add(valu("v_pk_add_f32", P_.sub(i, 2), P_.sub(i, 2), P_.sub(16 + i, 2)))
            for i in range(0, 16, 2): add(valu("v_pk_add_f32", P_.sub(32 + i, 2), P_.sub(32 + i, 2), P_.sub(48 + i, 2)))
            for i in range(0, 16, 2): add(valu("v_pk_add_f32", P_.sub(i, 2), P_.sub(i, 2), P_.sub(32 + i, 2)))
        t = V(128, 16); xf = V(144, 16)
        add([valu("v_mul_f32", t[i], f32(-LOG2E), Fp[i]) for i in range(16)])
        add([valu("v_exp_f32", t[i], t[i]) for i in range(16)])
        add([valu("v_mul_f32", Sp[i], Sp[i], Fp[i]) for i in range(16)])
        add([valu("v_add_f32", t[i], "1.0", t[i]) for i in range(16)])
        add([valu("v_rcp_f32", t[i], t[i]) for i in range(16)])
        for i in range(8): add(valu("v_lshlrev_b32", xf[2 * i], 16, XR[i]), valu("v_and_b32", xf[2 * i + 1], "0xffff0000", XR[i]))
        add([valu("v_fma_f32", xf[i], Sp[i], t[i], xf[i]) for i in range(16)])
        add([valu("v_cvt_pk_bf16_f32", t[i], xf[2 * i], xf[2 * i + 1]) for i in range(8)])
        add([buf_store("buffer_store_dwordx4", t.sub(4 * i, 4), vXO, rOUT, 0, 16 * i) for i in range(2)])

    def finish(self):
        add = self.add
        if self.cfg.stamps:
            add(wait(vm="all"))
            add(raw(f"s_memrealtime s[14:15]\n    s_waitcnt lgkmcnt(0)", "smem"))
            add(valu("v_mov_b32", V(0), 0))
            for i in range(self.nst): add(raw(f"v_writelane_b32 v0, s{STAMP0 + 2*i}, {1+i}", "valu", wr=["v0"]))
            add(raw(f"v_writelane_b32 v0, s0, 0", "valu", wr=["v0"]), raw(f"v_writelane_b32 v0, s14, {1+self.nst}", "valu", wr=["v0"]))
            add(salu("s_lshl_b32", sT[1], sWG, 2), salu("s_add_u32", sT[1], sT[1], sW), salu("s_lshl_b32", sT[1], sT[1], 6), salu("s_add_u32", sT[1], sT[1], STAMP_OFF),
                valu("v_lshl_add_u32", V(1), vLane, 2, sT[1]), salu("s_mov_b64", "exec", "0xffff"), buf_store("buffer_store_dword", V(0), V(1), rWS))
        add(raw("s_endpgm", "end"))

    def program(self):
        self.w2slot = {}
        self.ramp(); self.phase1(); self.phase2(); self.finish()
        return self.e.text()

HEAD = open("recurrent_scan__sliding_local_dilated__swiglu_ffn__prompt.s.ref").read().split("; Override launch")[0]

def build(cfg):
    s = HEAD + "; @launch grid=(256,1,1) block=(256,1,1) lds=163840\n"
    s += f'.amdgcn_target "amdgcn-amd-amdhsa--gfx950"\n.text\n.globl {KNAME}\n.p2align 8\n.type {KNAME},@function\n{KNAME}:\n'
    s += f"""    s_cmp_ge_u32 s2, 256
    s_cbranch_scc0 L_go
    s_endpgm
L_go:
    s_load_dwordx16 s[4:19], s[0:1], 0
    s_load_dwordx4 s[20:23], s[0:1], 64
    v_and_b32 {vLane}, 63, v0
    v_lshrrev_b32 v1, 6, v0
    s_getpc_b64 s[24:25]
    v_readfirstlane_b32 {sW}, v1
    s_lshr_b32 s3, s2, 3
    s_and_b32 s26, s3, 7
    s_lshl_b32 s26, s26, 13
    v_and_b32 v2, 15, v0
    v_lshl_add_u32 v2, v1, 4, v2
    v_lshl_add_u32 v2, v2, 7, s26
    v_min_u32 v2, L_end-L_go-256, v2
    global_load_dword v3, v2, s[24:25]
    s_and_b32 s26, s2, 7
    s_and_b32 {sRB}, s26, 1
    s_lshl_b32 {sRB}, {sRB}, 3
    s_and_b32 s27, s3, 7
    s_add_u32 {sRB}, {sRB}, s27
    s_lshr_b32 {sGQ}, s26, 1
    s_lshr_b32 {sJ}, s3, 3
    s_lshl_b32 {sTB2}, s26, 2
    s_and_b32 s27, s3, 3
    s_add_u32 {sTB2}, {sTB2}, s27
    s_lshr_b32 {sCB2}, s3, 2
    s_lshl_b32 {sWQ}, {sW}, 12
"""
    if cfg.stamps: s += "    s_waitcnt lgkmcnt(0)\n    s_memrealtime s[0:1]\n"
    s += f"""    s_cmp_ge_u32 {sJ}, 2
    s_cbranch_scc1 L_typeC
"""
    info = {}
    for typ in ("B", "C"):
        g = Gen(typ, cfg)
        g.e.vm.append(("pf", {"v3"}))
        s += f"L_type{typ}:\n" + g.program()
        info[typ] = (g.e.slots, g.e.nops, dict(g.e.count))
    s += "L_end:\n"
    s += f""".section .rodata,"a"
.p2align 6
.amdhsa_kernel {KNAME}
  .amdhsa_next_free_vgpr 512
  .amdhsa_next_free_sgpr 102
  .amdhsa_accum_offset 256
  .amdhsa_group_segment_fixed_size 0
  .amdhsa_kernarg_size 80
  .amdhsa_user_sgpr_count 2
  .amdhsa_user_sgpr_kernarg_segment_ptr 1
  .amdhsa_system_sgpr_workgroup_id_x 1
.end_amdhsa_kernel
"""
    return s, info

if __name__ == "__main__":
    cfg = Cfg()
    out = sys.argv[1]
    for a in sys.argv[2:]:
        k, v = a.split("=")
        setattr(cfg, k, int(v))
    s, info = build(cfg)
    open(out, "w").write(s)
    print(info)
```

```python
import re

def R(kind, lo, n=1):
    return [f"{kind}{lo+i}" for i in range(n)]

def rs(kind, lo, n=1):
    return f"{kind}{lo}" if n == 1 else f"{kind}[{lo}:{lo+n-1}]"

class Reg:
    def __init__(self, kind, lo, n=1):
        self.kind, self.lo, self.n = kind, lo, n
    def __str__(self):
        return rs(self.kind, self.lo, self.n)
    __repr__ = __str__
    def regs(self):
        return R(self.kind, self.lo, self.n)
    def sub(self, off, n=1):
        assert 0 <= off and off + n <= self.n, (self, off, n)
        return Reg(self.kind, self.lo + off, n)
    def __getitem__(self, i):
        return self.sub(i, 1)

def V(lo, n=1): return Reg("v", lo, n)
def A(lo, n=1): return Reg("a", lo, n)
def S(lo, n=1): return Reg("s", lo, n)

def regs_of(x):
    if isinstance(x, Reg): return x.regs()
    if isinstance(x, str):
        t = x.strip()
        if t.startswith("-"): t = t[1:]
        if t in ("vcc", "exec", "m0", "scc"): return [t]
        m = re.fullmatch(r"([vas])(\d+)", t)
        if m: return [t]
        m = re.fullmatch(r"([vas])\[(\d+):(\d+)\]", t)
        if m: return R(m.group(1), int(m.group(2)), int(m.group(3)) - int(m.group(2)) + 1)
    return []

class Ins:
    __slots__ = ("text", "kind", "rd", "wr", "passes", "srcc", "ab", "tag", "need", "cost", "wide", "op")
    def __init__(self, text, kind, rd=(), wr=(), passes=0, srcc=(), ab=(), tag=None, need=None, cost=1, wide=(), op=""):
        self.text, self.kind = text, kind
        self.rd, self.wr = set(rd), set(wr)
        self.passes, self.srcc, self.ab = passes, tuple(srcc), set(ab)
        self.tag, self.need, self.cost, self.wide, self.op = tag, need, cost, set(wide), op

TRANS = ("v_exp_f32", "v_log_f32", "v_rcp_f32", "v_rsq_f32", "v_sqrt_f32")

def valu(op, dst, *src, rmw=False, extra="", wr2=None):
    rd = []
    for s in src: rd += regs_of(s)
    wr = regs_of(dst)
    if rmw: rd += wr
    if wr2 is not None: wr = wr + regs_of(wr2)
    kind = "trans" if op in TRANS else ("dot" if op.startswith("v_dot") else "valu")
    t = f"{op} {dst}" + "".join(f", {s}" for s in src) + (" " + extra if extra else "")
    return Ins(t, kind, rd, wr, cost=2 if kind == "trans" else 1, op=op)

def salu(op, dst, *src, scc=True):
    rd = []
    for s in src: rd += regs_of(s)
    if op.startswith("s_cselect") or op.startswith("s_addc") or op.startswith("s_subb"): rd.append("scc")
    wr = regs_of(dst) if dst is not None else []
    ops = ([str(dst)] if dst is not None else []) + [str(s) for s in src]
    return Ins(f"{op} " + ", ".join(ops), "salu", rd, wr, op=op)

def set_m0(base, const, tag):
    i = salu("s_add_u32", "m0", base, const)
    i.tag = tag
    return i

def mfma(shape, d, a, b, c):
    name, passes = {32: ("v_mfma_f32_32x32x16_bf16", 8), 16: ("v_mfma_f32_16x16x32_bf16", 4), 4: ("v_mfma_f32_4x4x4_16b_bf16", 2)}[shape]
    ab = regs_of(a) + regs_of(b)
    sc = regs_of(c)
    return Ins(f"{name} {d}, {a}, {b}, {c}", "mfma", ab + sc, regs_of(d), passes=passes, srcc=sc, ab=ab, cost=2, op=name)

def ds_read(op, dst, addr, off=0, tag=None):
    assert 0 <= off < 65536, off
    return Ins(f"{op} {dst}, {addr}" + (f" offset:{off}" if off else ""), "dsr", regs_of(addr), regs_of(dst), tag=tag, op=op)

def ds_write(op, addr, src, off=0, tag=None):
    assert 0 <= off < 65536, off
    return Ins(f"{op} {addr}, {src}" + (f" offset:{off}" if off else ""), "dsw", regs_of(addr) + regs_of(src), [], tag=tag, op=op)

def buf_load(op, dst, voff, srd, soff=0, off=0, flags="", tag=None):
    assert 0 <= off < 4096
    t = f"{op} {dst}, {voff}, {srd}, {soff} offen" + (f" offset:{off}" if off else "") + (" " + flags if flags else "")
    return Ins(t, "vml", regs_of(voff) + regs_of(srd) + regs_of(soff), regs_of(dst), tag=tag, op=op)

def buf_dma(voff, srd, soff=0, off=0, flags="", tag=None):
    assert 0 <= off < 4096
    t = f"buffer_load_dwordx4 {voff}, {srd}, {soff} offen" + (f" offset:{off}" if off else "") + (" " + flags if flags else "") + " lds"
    return Ins(t, "dma", regs_of(voff) + regs_of(srd) + regs_of(soff) + ["m0"], [], tag=tag, op="dma")

def buf_store(op, src, voff, srd, soff=0, off=0, flags="", tag=None):
    assert 0 <= off < 4096
    t = f"{op} {src}, {voff}, {srd}, {soff} offen" + (f" offset:{off}" if off else "") + (" " + flags if flags else "")
    wide = regs_of(src) if op.endswith("x4") or op.endswith("x3") else []
    return Ins(t, "vms", regs_of(src) + regs_of(voff) + regs_of(srd) + regs_of(soff), [], tag=tag, wide=wide, op=op)

def wait(vm=None, lg=None):
    return Ins("", "wait", need=(vm, lg))

def wait_regs(*regs):
    rd = []
    for r in regs: rd += regs_of(r)
    return Ins("", "waitr", rd)

def barrier():
    return Ins("s_barrier", "bar")

def raw(text, kind="salu", rd=(), wr=()):
    r, w = [], []
    for x in rd: r += regs_of(x)
    for x in wr: w += regs_of(x)
    return Ins(text, kind, r, w)

VALUK = ("valu", "trans", "dot")
XD_RD = {2: 5, 4: 8, 8: 12}
XD_OV = {2: 4, 4: 6, 8: 10}
XD_WAR = {2: 1, 4: 3, 8: 7}

class Emitter:
    def __init__(self):
        self.lines = []
        self.vm = []
        self.lg = []
        self.hist = []
        self.count = {}
        self.slots = 0
        self.m0tag = None
        self.nops = 0
    def text(self):
        return "\n".join(self.lines) + "\n"
    def comment(self, c):
        self.lines.append("    ; " + c)
    def label(self, l):
        self.lines.append(l + ":")
    def _out(self, ins, ws=1):
        self.lines.append("    " + ins.text)
        self.hist.append((ins, ws))
        if len(self.hist) > 40: self.hist.pop(0)
        self.count[ins.kind] = self.count.get(ins.kind, 0) + 1
        self.slots += ins.cost if ws == 1 else ws
    def _emit_wait(self, nvm, nlg):
        parts = []
        if nvm is not None and nvm < len(self.vm):
            assert nvm <= 63
            parts.append(f"vmcnt({nvm})"); self.vm = self.vm[len(self.vm) - nvm:] if nvm else []
        if nlg is not None and nlg < len(self.lg):
            n = min(nlg, 14)
            parts.append(f"lgkmcnt({n})"); self.lg = self.lg[len(self.lg) - n:] if n else []
        if parts:
            self._out(Ins("s_waitcnt " + " ".join(parts), "waitcnt"))
    @staticmethod
    def _need(q, pred):
        last = -1
        for i, e in enumerate(q):
            if pred(e): last = i
        return None if last < 0 else len(q) - 1 - last
    def _hazard(self, ins):
        need = 0
        dist = 0
        touch = ins.rd | ins.wr
        for p, ws in reversed(self.hist):
            req = 0
            if p.kind in VALUK:
                vw = {r for r in p.wr if r[0] in "va" and r != "vcc"}
                sw = p.wr - vw
                if ins.kind == "mfma" and vw & ins.rd: req = max(req, 3 if p.kind == "dot" else 2)
                if p.kind == "trans" and ins.kind in ("valu", "dot") and vw & ins.rd: req = max(req, 1)
                if p.kind == "dot" and vw & touch:
                    if not (ins.op == p.op): req = max(req, 3)
                if ins.op.startswith("v_permlane") and vw & touch: req = max(req, 2)
                if "dpp" in ins.op and vw & ins.rd: req = max(req, 2)
                if ins.op.startswith("v_read") and vw & ins.rd: req = max(req, 1)
                if ins.kind in VALUK and sw & ins.rd: req = max(req, 2)
                if ins.kind in ("vml", "vms", "dma") and sw & ins.rd: req = max(req, 5)
                if ins.kind in ("salu",) and sw & ins.rd: req = max(req, 4)
            elif p.kind == "mfma":
                if ins.kind == "mfma":
                    if p.wr & ins.ab: req = max(req, XD_RD[p.passes])
                    if p.wr & set(ins.srcc):
                        if set(ins.srcc) == p.wr and ins.passes == p.passes:
                            req = max(req, 2 if p.passes == 2 else 0)
                        else: req = max(req, XD_OV[p.passes])
                    elif p.wr & ins.wr: req = max(req, XD_OV[p.passes])
                else:
                    if p.wr & touch: req = max(req, XD_RD[p.passes])
                    if set(p.srcc) & ins.wr: req = max(req, XD_WAR[p.passes])
            elif p.kind == "salu":
                if "m0" in p.wr and ins.kind == "dma": req = max(req, 1)
            elif p.kind == "vms":
                if p.wide & ins.wr: req = max(req, 2)
            need = max(need, req - dist)
            dist += ws
            if dist >= 20: break
        return need
    def add(self, ins):
        if isinstance(ins, (list, tuple)):
            for i in ins: self.add(i)
            return
        if ins.kind == "wait":
            vm, lg = ins.need
            nvm = nlg = None
            if vm == "all": nvm = 0
            elif vm is not None:
                tags = vm if isinstance(vm, (list, tuple, set)) else [vm]
                nvm = self._need(self.vm, lambda e: e[0] in tags)
            if lg == "all": nlg = 0
            elif lg is not None:
                tags = lg if isinstance(lg, (list, tuple, set)) else [lg]
                nlg = self._need(self.lg, lambda e: e[0] in tags)
            self._emit_wait(nvm, nlg)
            return
        touch = ins.rd | ins.wr
        nvm = self._need(self.vm, lambda e: e[1] & touch)
        nlg = self._need(self.lg, lambda e: e[1] & touch)
        self._emit_wait(nvm, nlg)
        if ins.kind == "waitr": return
        if ins.kind in ("vml", "vms", "dma") and len(self.vm) >= 63: self._emit_wait(62, None)
        if "m0" in ins.wr: self.m0tag = ins.tag
        if ins.kind == "dma": assert self.m0tag == ins.tag, (self.m0tag, ins.tag)
        n = self._hazard(ins)
        while n > 0:
            k = min(n, 16)
            self._out(Ins(f"s_nop {k-1}", "nop"), ws=k); self.nops += k
            n -= k
        self._out(ins)
        if ins.kind in ("vml", "vms", "dma"): self.vm.append((ins.tag, set(ins.wr)))
        if ins.kind in ("dsr", "dsw"): self.lg.append((ins.tag, set(ins.wr)))
    def drained(self, vm=True, lg=True):
        if vm: self.vm = []
        if lg: self.lg = []
```

```python
import sys, struct
sys.path.insert(0, "tools")
from emit import *
from asmlib import KNAME

FLAG_OFF, XN_OFF, HALO_OFF, WS_USED = 0x910000, 0x938000, 0xB38000, 0xF00000
FLAG2_OFF, WT_OFF, P6_OFF = 0x918000, 0xC01000, 0xE50000
STAMP_OFF = 0xB80000
OOB = 0x40000000
SLOT = 16384
HSTR = 145 * 1024
RP = 272
SCR = 7 * SLOT
SPARE = SCR + 137 * RP
LOG2E = 1.4426950408889634
def f32(x): return "0x%08x" % struct.unpack("<I", struct.pack("<f", x))[0]

class Cfg:
    stamps = 0
    clock = "s_memrealtime"
    sg = ()
    sp = ()
    p1only = 0
    LA = 8
    NB = 10
    spin = 20000
    cbx = 0
    rot = 1
    sleep = 0
    setup_early = 0
    w_0 = 0
    w_a = 1
    w_b = 2
    w_c = 4
    nx0 = 8
    xrate = 4
    planB = "7:l,8:l,9:l,10:l,11:l,12:l.P,13:l,14:H.l,15:l,16:l,17:l.l,18:h.l,19:h.h.h"
    planC = "7:l,8:l,9:l,10:l,11:l,12:l,13:l,14:l,15:l,16:l,17:l.l,18:h.h,19:h.h.l"
    ts_pos = 0
    f2_bar = 3
    pw_lead = 16
    pw_per = 7
    NS = 7
    xfree = 1
    kv_end = 146
    kv_mode = 3
    c_delay = 1
    g_flag1 = 172
    g_halo = 236
    att_w = 20
    g_f1c = 214
    g_pa = 250
    h2_end = 240
    g_f2c = 264
    g_pa2 = 297
    epi_mem = 10
    m_f3 = 24
    m_pb = 24
    m_pc = 62
    m_pd = 12
    m_sb = 106
    defer = 4
    vstep = 1
    vnum = 1
    wlead = 1
    rlead = 12
    keep = 4
    ahead = 12
    outflags = ""

sWG = S(2)
pX, pQKV, pWO, pG, pU, pD, pOUT, pDBG, pWS = S(4, 2), S(6, 2), S(8, 2), S(12, 2), S(14, 2), S(16, 2), S(18, 2), S(20, 2), S(22, 2)
rX, rQKV, rGU, rD, rWO, rOUT, rWS, rDBG = S(24, 4), S(28, 4), S(32, 4), S(36, 4), S(40, 4), S(44, 4), S(48, 4), S(52, 4)
sW, sRB, sGQ, sJ, sTB2, sCB2, sWQ = S(56), S(57), S(58), S(59), S(60), S(61), S(62)
sT = [S(3), S(63), S(64), S(65)]
sM1, sM2 = S(66, 2), S(68, 2)
sHM0, sXS = S(70), S(71)
sJ1, sJ2, sJ3 = S(72, 2), S(74, 2), S(76, 2)
sTHR, sCNT = S(78), S(79)
sU = [S(60), S(61), S(58), S(59)]
sUh = [S(0), S(1)]
sHu = [S(4), S(5), S(6)]
sCS, sC1, sHd, sHo = S(7), S(8), S(9), S(10)
sWd, sWo, sWS, sW0 = S(40), S(41), S(42), S(43)
sOA = [0, S(11), S(12), S(13)]
sOB = [0, S(14), S(15), S(16)]
sOC = [0, S(17), S(18), S(19)]
sP2h, sP2f, sP2x, sHS = S(20), S(21), S(22), S(23)
STAMPS = list(range(82, 102, 2))
ST0 = 80

ACC1, ACC2 = V(0, 64), V(64, 32)
VBUF = [V(96 + 16 * i, 16) for i in range(8)]
KA, SG = V(176, 24), V(200, 16)
T = V(224, 8)
(vF2, vA23, vA01, vP2, vHRB, vWB, vDMA2, vDMA1, vW1, vFV, vPV, vW0, vPOLL, vHALO, vPOLLH, vHLD,
 vFLG, vVTR, vSCR, vHST, vDMA0, vTR1, vTR0, vLane) = [V(232 + i) for i in range(24)]
vW = [vW0, vW1]
vP6 = vA01
vXN = V(216)
vTCH = [V(217), V(218), V(219), V(220), V(221)]
vH = [vHRB, vHALO]
vXO, vTHR = vDMA1, vDMA0
X = A(0, 128)
WF = A(128, 40)
aDUM = A(168)
ABUF = [A(176 + 16 * i, 16) for i in range(5)]
NS = [5]
def slab_slot(n): return n % NS[0]

def cyc(i):
    k = i.kind
    if k in ("wait", "waitr", "waitcnt", "mfma"): return 0
    if k == "trans": return 8
    if k in ("dma", "vml"): return 14
    if k == "vms": return 30 if i.op.endswith("x4") else 20
    if k == "dsw": return 26
    if k == "dsr": return 11 if i.op.endswith("b128") else 4
    if k == "bar": return 14
    if k == "branch": return 8
    return 4

class Gen:
    def __init__(self, typ, cfg):
        self.typ, self.cfg = typ, cfg
        self.B = typ == "B"
        self.e = Emitter()
        self.nst = 0
        self.nlab = 0
        self.slow = ""
    def add(self, *ins):
        for i in ins: self.e.add(i)
    def stamp(self, mode=1):
        if not (self.cfg.stamps & mode): return []
        r = S(STAMPS[self.nst], 2); self.nst += 1
        return [raw(f"{self.cfg.clock} {r}", "smem")]
    def touch(self, va, srd, flags=""):
        i = buf_load("buffer_load_dword", aDUM, va, srd, flags=flags)
        i.wr = set()
        return [i]
    def poll_issue(self, vaddr, srd):
        return [buf_load("buffer_load_dword", vPV, vaddr, srd, flags="sc1")]
    def poll_check(self, vaddr, srd, thr):
        self.nlab += 1
        l = f"L_{self.typ}_p{self.nlab}"
        self.slow += (f"{l}_slow:\n    s_mov_b32 {sCNT}, 0\n{l}_spin:\n"
                f"    s_sleep {self.cfg.sleep}\n    buffer_load_dword {vPV}, {vaddr}, {srd}, 0 offen sc1\n    s_add_u32 {sCNT}, {sCNT}, 1\n    s_waitcnt vmcnt(0)\n"
                f"    v_cmp_gt_u32 vcc, {thr}, {vPV}\n    s_cmp_ge_u32 {sCNT}, {self.cfg.spin}\n    s_cbranch_scc1 {l}_ok\n"
                f"    s_cbranch_vccnz {l}_spin\n    s_branch {l}_ok\n")
        return [valu("v_cmp_gt_u32", "vcc", thr, vPV), raw(f"s_cbranch_vccnz {l}_slow\n{l}_ok:", "branch")]
    def flag(self, stage, tag):
        return [valu("v_mov_b32", vFV, stage), wait(vm=tag), buf_store("buffer_store_dword", vFV, vFLG, rWS, flags="sc1")]

    def ramp(self):
        c, add, B = self.cfg, self.add, self.B
        t0, t1, t2, t3 = V(96), V(97), V(98), V(99)
        vXL, vXS, vRS, vST, vF0, vP0, vDB, vTLB, vSG, vXR, vTL, vTS = [V(100 + i) for i in range(12)]
        vR2, vTB0, vTB1, vPL, vPS = [V(162 + i) for i in range(5)]
        tl, p6 = V(168, 16), V(184, 4)
        xr, lo, z, part = V(112, 16), V(128, 16), V(144, 4), V(148, 8)
        sm, sq, one = V(156), V(157), V(158)
        rb = V(160, 2)
        srd = lambda r, p, n: [salu("s_mov_b32", r[0], p[0]), salu("s_mov_b32", r[1], p[1]), salu("s_mov_b32", r[2], n), salu("s_mov_b32", r[3], "0x20000")]
        gu = [salu("s_cmp_lt_u32", None, sW, 2), salu("s_cselect_b32", rGU[0], pG[0], pU[0]), salu("s_cselect_b32", rGU[1], pG[1], pU[1])]
        sizes = ((rX, pX, 2048 * 1024), (rWS, pWS, WS_USED), (rDBG, pDBG, 256), (rQKV, pQKV, 512 * 3072), (rOUT, pOUT, 2048 * 1024))
        XL = 8 * SLOT
        self.nslab = 0
        add(valu("v_lshrrev_b32", t0, 3, vLane), valu("v_and_b32", t1, 7, vLane))
        TL = 7 * SLOT
        def tile_setup():
            o = [salu("s_lshl_b32", sT[1], sRB, 2), salu("s_add_u32", sT[1], sT[1], sW), salu("s_lshl_b32", sT[2], sT[1], 13 if B else 15),
                 salu("s_lshl_b32", sT[3], sGQ, 1), salu("s_add_u32", sT[3], sT[3], sJ)]
            o += srd(rD, pWO, 512 * 1024) if B else srd(rD, pD, 1792 * 1024) + [salu("s_sub_u32", sT[3], sT[3], 2)]
            o += [salu("s_lshl_b32", sCNT, sT[3], 7), salu("s_add_u32", sT[2], sT[2], sCNT),
                  valu("v_lshrrev_b32", t2, 2, vLane), valu("v_and_b32", t2, 4, t2), valu("v_xor_b32", t2, t2, t1), valu("v_lshlrev_b32", t2, 4, t2),
                  valu("v_lshl_add_u32", t2, t0, 10, t2), valu("v_add_u32", vTL, sT[2], t2)]
            if not B:
                o += [set_m0(sWQ, TL, "tl"), salu("s_mov_b32", sT[2], 7168)]
                for i in range(4):
                    o += [buf_dma(vTL, rD, sT[2] if i else 0, 1024 * i, tag="tl")]
                    if 0 < i < 3: o += [salu("s_add_u32", sT[2], sT[2], 7168)]
            o += [salu("s_mul_i32", sT[2], sT[3], 72 * 4096), salu("s_lshl_b32", sT[1], sT[1], 10 if B else 12), salu("s_add_u32", sT[2], sT[2], sT[1]),
                  salu("s_add_u32", sT[2], sT[2], WT_OFF + (56 * 4096 if B else 0)),
                  salu("s_lshl_b32", sT[1], sRB, 2), salu("s_add_u32", sT[1], sT[1], sCNT), salu("s_add_u32", sT[1], sT[1], FLAG2_OFF + (0 if B else 64))]
            if not B: o += [salu("s_cmp_lt_u32", None, sRB, 14), salu("s_cselect_b32", sT[2], sT[2], OOB)]
            o += [salu("s_cmp_eq_u32", None, sW, 0), salu("s_cselect_b32", sT[1], sT[1], OOB),
                  valu("v_lshl_add_u32", vTS, vLane, 4, sT[2]), valu("v_mov_b32", vF2, OOB), raw(f"v_writelane_b32 {vF2}, {sT[1]}, 0", "valu", rd=[vF2], wr=[vF2])]
            return o
        def tile_store():
            o = [valu("v_and_b32", vTB0, "0x3ff", vTR0), valu("v_and_b32", vTB1, 32, vLane), valu("v_lshl_add_u32", vTB0, vTB1, 6, vTB0)]
            if B:
                o += [salu("s_and_b32", sT[1], sW, 1), salu("s_lshl_b32", sT[1], sT[1], 6), valu("v_xor_b32", vTB0, sT[1], vTB0),
                      salu("s_lshr_b32", sT[1], sW, 1), salu("s_lshl_b32", sT[1], sT[1], 10), salu("s_add_u32", sT[1], sT[1], TL), valu("v_add_u32", vTB0, sT[1], vTB0)]
                return o, [ds_read("ds_read_b64_tr_b16", tl.sub(2 * u, 2), vTB0, u * 512) for u in range(2)], [buf_store("buffer_store_dwordx4", tl.sub(0, 4), vTS, rWS, flags="sc1", tag="ts")]
            o += [salu("s_add_u32", sT[1], sWQ, TL), valu("v_add_u32", vTB0, sT[1], vTB0), valu("v_xor_b32", vTB1, 64, vTB0), wait(vm="tl")]
            for s_ in range(2):
                for cb in range(2):
                    for u in range(2): o += [ds_read("ds_read_b64_tr_b16", tl.sub(8 * s_ + 4 * cb + 2 * u, 2), (vTB0, vTB1)[cb], s_ * 1024 + u * 512)]
            return o, [buf_store("buffer_store_dword", vFV, vPL, rWS, flags="sc1")], [buf_store("buffer_store_dwordx4", tl.sub(4 * i, 4), vTS, rWS, 0, 1024 * i, flags="sc1", tag="ts") for i in range(4)]
        if B:
            add(salu("s_lshl_b32", sT[0], sRB, 2), salu("s_add_u32", sT[0], sT[0], sGQ),
                salu("s_lshl_b32", sT[1], sT[0], 1), salu("s_add_u32", sT[1], sT[1], sJ),
                salu("s_and_b32", sT[2], sT[1], 63), salu("s_lshl_b32", sT[2], sT[2], 15), salu("s_lshr_b32", sT[1], sT[1], 6),
                salu("s_lshl_b32", sT[1], sT[1], 10), salu("s_add_u32", sT[1], sT[1], sT[2]), salu("s_lshl_b32", sT[2], sW, 8), salu("s_add_u32", sT[1], sT[1], sT[2]),
                valu("v_xor_b32", t2, t0, t1), valu("v_lshlrev_b32", t2, 4, t2), valu("v_lshl_add_u32", t2, t0, 11, t2), valu("v_add_u32", vXL, sT[1], t2),
                salu("s_mov_b32", sXS, 16384 - 1024))
            add(salu("s_lshl_b32", sCNT, sWG, 8), salu("s_add_u32", sCNT, sCNT, FLAG2_OFF), salu("s_lshl_b32", sT[2], sWG, 12), salu("s_add_u32", sT[2], sT[2], FLAG_OFF), salu("s_lshl_b32", sT[1], sWG, 2),
                salu("s_lshr_b32", sT[3], sWG, 3), salu("s_or_b32", sT[3], sT[3], sW), salu("s_cselect_b32", sT[2], OOB, sT[2]), salu("s_cselect_b32", sT[1], OOB, sT[1]),
                salu("s_cselect_b32", sT[3], OOB, sCNT), valu("v_and_b32", t2, 15, vLane), valu("v_lshl_add_u32", vR2, t2, 4, sT[3]),
                valu("v_lshrrev_b32", t2, 2, vLane), valu("v_and_b32", t3, 3, vLane), valu("v_lshlrev_b32", t3, 4, t3), valu("v_lshl_add_u32", t2, t2, 8, t3),
                valu("v_add_u32", vRS, sT[2], t2), valu("v_mov_b32", vSG, sT[1]), [valu("v_mov_b32", z[i], 0) for i in range(4)])
            add(srd(*sizes[0])[2:], srd(*sizes[1])[2:], set_m0(sWQ, XL, "x"))
            add(raw("s_waitcnt lgkmcnt(0)", "waitcnt"))
            add(srd(*sizes[0])[:2], srd(*sizes[1])[:2])
            add(buf_store("buffer_store_dwordx4", z, vRS, rWS, flags="sc1"), buf_store("buffer_store_dwordx4", z, vR2, rWS, flags="sc1"))
            add(buf_dma(vXL, rX, 0, 0, tag="x"), buf_dma(vXL, rX, sXS, 1024, tag="x"), set_m0(sWQ, XL + 2048 - 128, "x"),
                buf_dma(vXL, rX, 0, 128, tag="x"), buf_dma(vXL, rX, sXS, 1024 + 128, tag="x"))
            add(tile_setup())
            for q in sizes[2:]: add(srd(*q))
            add(gu, srd(rGU, pG, 512 * 3584)[2:])
            add(valu("v_mov_b32", t2, 0), self.touch(t2, rGU))
        else:
            add(salu("s_lshl_b32", sT[0], sRB, 1), salu("s_add_u32", sT[0], sT[0], sJ), salu("s_sub_u32", sT[0], sT[0], 2),
                salu("s_lshl_b32", sT[1], sT[0], 1), salu("s_and_b32", sT[2], sW, 1), salu("s_add_u32", sT[1], sT[1], sT[2]), salu("s_mul_i32", sT[1], sT[1], 8 * 3584),
                salu("s_mul_i32", sT[2], sGQ, 7 * 128), salu("s_add_u32", sT[1], sT[1], sT[2]),
                valu("v_min_u32", t2, 5, t1), valu("v_mul_u32_u24", t3, 3584, t0), valu("v_lshl_add_u32", t2, t2, 7, t3), valu("v_add_u32", vTCH[0], sT[1], t2),
                valu("v_bfe_u32", t2, vLane, 2, 3), valu("v_mul_u32_u24", t2, 3584, t2), valu("v_and_b32", t3, 3, vLane), valu("v_lshl_add_u32", t2, t3, 4, t2),
                valu("v_lshrrev_b32", t3, 5, vLane), valu("v_lshl_add_u32", t2, t3, 6, t2), salu("s_add_u32", sT[1], sT[1], 768), valu("v_add_u32", vPL, sT[1], t2),
                salu("s_lshr_b32", sT[1], sT[0], 3), salu("s_lshl_b32", sT[1], sT[1], 14), salu("s_and_b32", sT[2], sT[0], 7), salu("s_lshl_b32", sT[2], sT[2], 10),
                salu("s_add_u32", sT[1], sT[1], sT[2]), salu("s_and_b32", sT[2], sW, 1), salu("s_lshl_b32", sT[2], sT[2], 9), salu("s_add_u32", sT[1], sT[1], sT[2]),
                salu("s_lshr_b32", sT[2], sW, 1), salu("s_lshl_b32", sT[2], sT[2], 13), salu("s_add_u32", sT[1], sT[1], sT[2]),
                salu("s_lshl_b32", sT[2], sGQ, 17), salu("s_add_u32", sT[1], sT[1], sT[2]), salu("s_add_u32", sT[1], sT[1], P6_OFF),
                valu("v_and_b32", t2, 31, vLane), valu("v_lshlrev_b32", t2, 4, t2), valu("v_lshl_add_u32", t2, t3, 16, t2), valu("v_add_u32", vPS, sT[1], t2),
                salu("s_lshl_b32", sTHR, sT[0], 2),
                salu("s_lshl_b32", sT[0], sT[0], 2), salu("s_add_u32", sT[0], sT[0], sW), salu("s_mul_i32", sT[1], sT[0], 4 * 3072), salu("s_lshl_b32", sT[2], sGQ, 8),
                salu("s_add_u32", sT[1], sT[1], sT[2]),
                valu("v_min_u32", t2, 5, t1), valu("v_and_b32", t3, 1, t2), valu("v_lshrrev_b32", t2, 1, t2), valu("v_lshl_add_u32", t2, t2, 3, t3),
                valu("v_and_b32", t3, 3, t0), valu("v_mul_u32_u24", t3, 3072, t3), valu("v_lshl_add_u32", t2, t2, 7, t3), valu("v_add_u32", vTCH[1], sT[1], t2),
                )
            add(srd(*sizes[3])[2:], srd(rGU, pG, 512 * 3584)[2:])
            add(raw("s_waitcnt lgkmcnt(0)", "waitcnt"))
            if c.c_delay: add(self.dma_setup(0), self.dma_setup(1), self.dma_setup(2))
            add(gu, buf_load("buffer_load_dwordx4", p6, vPL, rGU), tile_setup())
            add(srd(*sizes[3])[:2], self.touch(vTCH[1], rQKV), self.touch(vTCH[0], rGU))
            for q in sizes[:3] + sizes[4:]: add(srd(*q))
            add(salu("s_lshl_b32", sT[1], sGQ, 7), salu("s_add_u32", sT[1], sT[1], sTHR), salu("s_add_u32", sT[1], sT[1], FLAG2_OFF + 1024),
                salu("s_cmp_eq_u32", None, sW, 0), salu("s_cselect_b32", sT[1], sT[1], OOB), valu("v_mov_b32", vPL, OOB), raw(f"v_writelane_b32 {vPL}, {sT[1]}, 0", "valu", rd=[vPL], wr=[vPL]))
        add(valu("v_min_u32", t2, 5, vLane), valu("v_mul_u32_u24", t2, 16 * HSTR, t2), valu("v_add_u32", vTLB, 144 * 1024, t2), valu("v_mov_b32", vDB, 128),
            salu("s_mov_b32", sT[1], WT_OFF - 4096), raw(f"v_writelane_b32 {vTLB}, {sT[1]}, 6", "valu", rd=[vTLB], wr=[vTLB]),
            salu("s_mov_b32", sT[1], WS_USED - 4096), raw(f"v_writelane_b32 {vTLB}, {sT[1]}, 7", "valu", rd=[vTLB], wr=[vTLB]),
            valu("v_mov_b32", vFV, 1))
        add(self.touch(vDB, rDBG), self.touch(vTLB, rWS))
        sa, sb = (8 * 3072, 8 * 3584) if B else (8 * 3584, 16 * 3584)
        for i in (1, 2, 3):
            add(salu("s_mov_b32", sOA[i], i * (sa - 1024)), salu("s_mov_b32", sOB[i], i * (sb - 1024)))
        if B or not c.c_delay: add(self.dma_setup(0))
        if B:
            for _ in range(c.w_0): add(self.dma_slab())
            add(valu("v_lshrrev_b32", t2, 4, vLane), valu("v_xor_b32", t3, t2, t1), valu("v_lshlrev_b32", t3, 4, t3), valu("v_and_b32", vST, 15, vLane),
                valu("v_lshl_add_u32", t3, vST, 7, t3), salu("s_add_u32", sT[1], sWQ, XL), valu("v_add_u32", vXR, sT[1], t3), valu("v_xor_b32", vXL, 64, vXR),
                salu("s_lshl_b32", sT[1], sT[0], 15), salu("s_lshl_b32", sT[2], sW, 13), salu("s_add_u32", sT[1], sT[1], sT[2]), salu("s_lshl_b32", sT[2], sJ, 8),
                salu("s_add_u32", sT[1], sT[1], sT[2]), salu("s_add_u32", sT[1], sT[1], XN_OFF),
                valu("v_lshlrev_b32", t3, 4, vST), valu("v_lshl_add_u32", t3, t2, 9, t3), valu("v_add_u32", vXS, sT[1], t3),
                valu("v_lshlrev_b32", vST, 5, vST), valu("v_add_u32", vST, SPARE, vST),
                salu("s_lshl_b32", sT[2], sW, 2), valu("v_lshrrev_b32", t3, 5, vLane), valu("v_lshl_add_u32", t3, t3, 4, sT[2]), valu("v_add_u32", vRS, t3, vST),
                salu("s_lshl_b32", sT[1], sT[0], 9), salu("s_lshl_b32", sT[2], sJ, 2), salu("s_add_u32", sT[1], sT[1], sT[2]), salu("s_add_u32", sT[1], sT[1], FLAG_OFF + 32),
                salu("s_cmp_eq_u32", None, sW, 0), salu("s_cselect_b32", sT[1], sT[1], OOB),
                valu("v_mov_b32", t2, OOB), valu("v_mov_b32", t3, sT[1]), valu("v_cmp_eq_u32", "vcc", 0, vLane), valu("v_cndmask_b32", vF0, t2, t3, "vcc"),
                valu("v_mov_b32", one, "0x3f803f80"), valu("v_mov_b32", sm, 0), valu("v_mov_b32", sq, 0), salu("s_mov_b32", sXS, 4096))
        add(salu("s_lshl_b32", sT[1], sRB, 2), salu("s_add_u32", sT[1], sT[1], sW), salu("s_lshl_b32", sT[2], sT[1], 9), salu("s_add_u32", sT[2], sT[2], FLAG_OFF + 32),
            valu("v_and_b32", vPOLL, 1, vLane), valu("v_lshlrev_b32", vPOLL, 2, vPOLL), valu("v_add_u32", vP0, sT[2], vPOLL),
            salu("s_lshl_b32", sT[1], sT[1], 15), salu("s_add_u32", sT[1], sT[1], XN_OFF), valu("v_lshl_add_u32", vXN, vLane, 4, sT[1]),
            salu("s_cmp_eq_u32", None, sW, 0), salu("s_cselect_b32", sT[1], 0, OOB), salu("s_cselect_b32", sT[3], 1, 0),
            valu("v_lshl_add_u32", vDB, t1, 2, sT[1]), valu("v_mov_b32", vTLB, sT[3]))
        if B or not c.c_delay: add(self.dma_setup(1), self.dma_setup(2))
        add(self.w2_setup())
        if c.setup_early or not B: self.misc_setup()
        add(self.stamp(65))
        if B:
            add(wait(vm="x"))
            add([ds_read("ds_read_b128", xr.sub(4 * i, 4), vXL if i & 1 else vXR, 2048 * (i >> 1)) for i in range(4)])
            add(buf_store("buffer_store_dword", vFV, vSG, rDBG, flags="sc1"))
            add(self.stamp(64))
            for r in range(16): add(valu("v_dot2c_f32_bf16", sm, xr[r], one, rmw=True), valu("v_dot2c_f32_bf16", sq, xr[r], xr[r], rmw=True))
            add([valu("v_lshlrev_b32", lo[i], 16, xr[i]) for i in range(3)])
            add(valu("v_permlane32_swap_b32", sm, sq, rmw=True, wr2=sq), valu("v_add_f32", sm, sm, sq), valu("v_mov_b32", sq, sm))
            add([valu("v_lshlrev_b32", lo[i], 16, xr[i]) for i in (3, 4)])
            add(valu("v_permlane16_swap_b32", sm, sq, rmw=True, wr2=sq), valu("v_add_f32", sm, sm, sq))
            add(ds_write("ds_write_b32", vRS, sm, tag="st"))
            add([valu("v_lshlrev_b32", lo[i], 16, xr[i]) for i in range(5, 16)])
            add(wait(lg="st"), barrier())
            add([ds_read("ds_read_b128", part.sub(4 * i, 4), vST, 16 * i) for i in range(2)])
            add([valu("v_and_b32", xr[i], "0xffff0000", xr[i]) for i in range(16)])
            add(valu("v_pk_add_f32", part.sub(0, 2), part.sub(0, 2), part.sub(2, 2)), valu("v_pk_add_f32", part.sub(4, 2), part.sub(4, 2), part.sub(6, 2)),
                valu("v_add_f32", sm, part[0], part[1]), valu("v_add_f32", sq, part[4], part[5]),
                valu("v_mul_f32", sm, f32(1 / 512), sm), valu("v_mul_f32", sq, f32(1 / 512), sq),
                valu("v_fma_f32", sq, f"-{sm}", sm, sq), valu("v_max_f32", sq, 0, sq),
                valu("v_cvt_pk_bf16_f32", sq, sq, sm),
                valu("v_and_b32", sm, "0xffff0000", sq), valu("v_lshlrev_b32", sq, 16, sq),
                valu("v_add_f32", sq, f32(1e-5), sq), valu("v_cvt_pk_bf16_f32", sq, sq, sq), valu("v_lshlrev_b32", sq, 16, sq),
                valu("v_sqrt_f32", sq, sq), valu("v_cvt_pk_bf16_f32", sq, sq, sq), valu("v_lshlrev_b32", sq, 16, sq),
                valu("v_rcp_f32", rb[1], sq), valu("v_mul_f32", rb[0], f"-{sm}", rb[1]))
            for h in range(4):
                for r in (lo, xr):
                    add([valu("v_pk_fma_f32", r.sub(i, 2), r.sub(i, 2), rb, rb, extra="op_sel:[0,1,0] op_sel_hi:[1,1,0]") for i in (4 * h, 4 * h + 2)])
                add([valu("v_cvt_pk_bf16_f32", xr[i], lo[i], xr[i]) for i in range(4 * h, 4 * h + 4)])
                add(buf_store("buffer_store_dwordx4", xr.sub(4 * h, 4), vXS, rWS, sXS if h >> 1 else 0, 2048 * (h & 1), flags="sc1"))
            add(self.poll_issue(vDB, rDBG))
            add(self.stamp(64))
            for _ in range(c.w_a): add(self.dma_slab())
            if not c.setup_early: self.misc_setup()
            pre, rd, self.ts = tile_store()
            add(pre)
            add(self.poll_check(vDB, rDBG, vTLB))
            add(self.stamp(64))
            add(barrier(), buf_store("buffer_store_dword", vFV, vF0, rWS, flags="sc1"))
            add(salu("s_lshr_b32", sT[1], sWQ, 2), set_m0(sT[1], TL, "tl"), buf_dma(vTL, rD, tag="tl"))
            for _ in range(c.w_b): add(self.dma_slab())
        else:
            pre, rd, self.ts = tile_store()
            add(pre)
            add(self.stamp(64), self.dma_slab(), wait(vm="w0"), self.stamp(64))
            add(buf_store("buffer_store_dwordx4", p6, vPS, rWS, flags="sc1"))
            if c.ts_pos < 0: add(self.ts); self.ts = []
            add(self.poll_issue(vDB, rDBG))
            for _ in range(c.w_c - 1): add(self.dma_slab())
            add(self.poll_check(vDB, rDBG, vTLB), self.stamp(64), barrier())
        add(self.poll_issue(vP0, rWS), self.poll_check(vP0, rWS, 1))
        add(self.stamp(65))
        self.nx = 0
        for _ in range(c.nx0 // 2): add(self.x_load())
        add(wait(vm=["w0", "tl"]), barrier(), rd)
        F = self.frag_list()
        for k in range(c.LA):
            add(self.frag_reads(k, F[k]))
            if k % 2 and self.nx < c.nx0: add(self.x_load())
        while self.nx < c.nx0: add(self.x_load())
    def x_load(self):
        j = self.nx; self.nx += 1
        o = []
        if j % 4 == 0: o += [salu("s_mov_b32", sXS, j * 1024)]
        return o + [buf_load("buffer_load_dwordx4", X.sub(4 * j, 4), vXN, rWS, sXS, (j % 4) * 1024, flags="sc1")]

    def misc_setup(self):
        add = self.add
        t0, t1, t2, t3 = T[0], T[1], T[2], T[3]
        add(valu("v_and_b32", t0, 3, vLane), valu("v_bfe_u32", t1, vLane, 2, 2), valu("v_bfe_u32", t2, vLane, 4, 1), valu("v_lshrrev_b32", t3, 5, vLane),
            valu("v_lshl_add_u32", vTR0, t3, 3, t1), valu("v_lshlrev_b32", vTR0, 7, vTR0),
            valu("v_lshrrev_b32", t1, 1, t1), valu("v_lshl_add_u32", vTR0, t1, 6, vTR0),
            valu("v_and_b32", t1, 1, t0), valu("v_lshl_add_u32", vTR0, t1, 5, vTR0),
            valu("v_lshrrev_b32", t0, 1, t0), valu("v_lshl_add_u32", t0, t2, 1, t0), valu("v_lshl_add_u32", vTR0, t0, 3, vTR0),
            valu("v_xor_b32", vTR1, 64, vTR0))
        self.win = [0, 0, 0]
        for ch in range(3):
            if not (self.B and ch == 0): add(self.set_hu(ch))
        if self.B: add(self.att_setup())
        else: add(valu("v_bfe_u32", t0, vTR0, 7, 4), valu("v_and_b32", t1, 63, vTR0), valu("v_lshl_add_u32", vVTR, t0, 6, t1))
        add(salu("s_lshl_b32", sT[1], sRB, 2), salu("s_add_u32", sT[1], sT[1], sW), salu("s_mul_i32", sT[2], sT[1], HSTR),
            valu("v_lshl_add_u32", vHST, vLane, 4, sT[2]))
        add(salu("s_lshr_b32", sT[1], sT[1], 1), salu("s_lshl_b32", sT[1], sT[1], 2), salu("s_add_u32", sT[1], sT[1], sGQ), salu("s_lshl_b32", sT[1], sT[1], 8),
            salu("s_and_b32", sT[2], sW, 1), salu("s_lshl_b32", sT[3], sJ, 1), salu("s_add_u32", sT[2], sT[2], sT[3]), salu("s_lshl_b32", sT[2], sT[2], 2),
            salu("s_add_u32", sT[1], sT[1], sT[2]), salu("s_add_u32", sT[1], sT[1], FLAG_OFF),
            valu("v_mov_b32", t0, OOB), valu("v_mov_b32", t1, sT[1]), valu("v_cmp_eq_u32", "vcc", 0, vLane), valu("v_cndmask_b32", vFLG, t0, t1, "vcc"))
        add(salu("s_lshl_b32", sT[1], sTB2, 1), salu("s_lshr_b32", sT[2], sW, 1), salu("s_add_u32", sT[1], sT[1], sT[2]), salu("s_mul_i32", sP2h, sT[1], HSTR),
            salu("s_xor_b32", sT[2], sT[1], 1), salu("s_mul_i32", sHS, sT[2], HSTR),
            salu("s_lshl_b32", sT[1], sT[1], 5),
            salu("s_and_b32", sT[2], sT[1], 1023), salu("s_lshl_b32", sT[2], sT[2], 11), salu("s_lshr_b32", sT[1], sT[1], 10), salu("s_lshl_b32", sT[1], sT[1], 10),
            salu("s_add_u32", sT[1], sT[1], sT[2]), salu("s_lshl_b32", sT[2], sCB2, 7), salu("s_add_u32", sT[1], sT[1], sT[2]),
            salu("s_and_b32", sT[2], sW, 1), salu("s_lshl_b32", sT[2], sT[2], 6), salu("s_add_u32", sP2x, sT[1], sT[2]),
            salu("s_lshl_b32", sT[1], sTB2, 2), salu("s_add_u32", sT[1], sT[1], sW), salu("s_lshl_b32", sT[1], sT[1], 8), salu("s_add_u32", sP2f, sT[1], FLAG_OFF))
        add(salu("s_mul_i32", sT[1], sCB2, 72 * 4096), salu("s_add_u32", sT[1], sT[1], WT_OFF), salu("s_lshl_b32", sT[2], sT[2], 4),
            salu("s_add_u32", sT[3], sT[1], sT[2]), valu("v_lshl_add_u32", vW[0], vLane, 4, sT[3]),
            salu("s_sub_u32", sT[3], sT[1], sT[2]), valu("v_lshl_add_u32", vW[1], vLane, 4, sT[3]), valu("v_lshl_add_u32", vWB, vLane, 4, sWQ),
            salu("s_lshl_b32", sT[1], sCB2, 7), salu("s_add_u32", sT[1], sT[1], FLAG2_OFF), salu("s_lshl_b32", sT[2], sGQ, 7), salu("s_add_u32", sT[2], sT[2], FLAG2_OFF + 1024),
            salu("s_cmp_eq_u32", None, sW, 0), salu("s_cselect_b32", sT[1], sT[1], OOB), salu("s_cselect_b32", sT[2], sT[2], OOB), salu("s_cselect_b32", sW0, 1, 0),
            valu("v_and_b32", t0, 31, vLane), valu("v_lshl_add_u32", vP2, t0, 2, sT[1]))
        if not self.B: add(valu("v_lshl_add_u32", vP6, t0, 2, sT[2]))
        add(salu("s_xor_b32", sU[0], sTB2, sCB2), salu("s_and_b32", sU[0], sU[0], 3 if self.cfg.rot else 0), salu("s_lshl_b32", sU[0], sU[0], 11),
            [salu("s_xor_b32", sU[t], sU[0], t << 11) for t in (1, 2, 3)], [salu("s_and_b32", sUh[t], sU[t], 1 << 11) for t in (0, 1)])

    def chunk_of(self, n): return 0 if n < 8 else (1 if n < 12 else 2)
    def dma_setup(self, ch):
        t0, t1 = T[0], T[1]
        o = []
        B = self.B
        half = (not B) and ch == 1
        stride = 3072 if (B and ch < 2) else 3584
        if half:
            return [salu("s_lshl_b32", sT[1], sGQ, 1), salu("s_add_u32", sT[1], sT[1], sJ), salu("s_lshl_b32", sT[1], sT[1], 16), salu("s_add_u32", sT[1], sT[1], sWQ),
                    salu("s_add_u32", sT[1], sT[1], P6_OFF - 2 * 65536), valu("v_lshl_add_u32", vDMA1, vLane, 4, sT[1])]
        else:
            o += [valu("v_lshrrev_b32", t0, 2, vLane), valu("v_and_b32", t0, 4, t0), valu("v_and_b32", t1, 7, vLane), valu("v_xor_b32", t1, t0, t1),
                  valu("v_lshrrev_b32", t0, 3, vLane)]
        o += [valu("v_mul_u32_u24", t0, stride, t0), valu("v_lshl_add_u32", t0, t1, 4, t0)]
        a, b = sT[1], sT[2]
        if B and ch == 0:
            o += [salu("s_lshl_b32", a, sGQ, 1), salu("s_add_u32", a, a, sJ), salu("s_lshl_b32", a, a, 7), salu("s_lshr_b32", b, sW, 1),
                  salu("s_add_u32", b, b, 1), salu("s_lshl_b32", b, b, 10), salu("s_add_u32", a, a, b), salu("s_and_b32", b, sW, 1),
                  salu("s_mul_i32", b, b, 32 * stride), salu("s_add_u32", a, a, b)]
        elif B and ch == 1:
            o += [salu("s_lshl_b32", a, sGQ, 1), salu("s_add_u32", a, a, sJ), salu("s_lshl_b32", a, a, 7), salu("s_mul_i32", b, sW, 32 * stride),
                  salu("s_add_u32", a, a, b)]
        else:
            if half: o += [salu("s_lshl_b32", b, sJ, 6), salu("s_add_u32", b, b, 6 * 128 - 128)]
            else: o += [salu("s_lshl_b32", b, sJ, 7), salu("s_sub_u32" if ch == 0 else "s_add_u32", b, b, 256)]
            o += [salu("s_mul_i32", a, sGQ, 7 * 128), salu("s_add_u32", a, a, b), salu("s_and_b32", b, sW, 1),
                  salu("s_mul_i32", b, b, (64 if half else 32) * stride), salu("s_add_u32", a, a, b)]
        o += [valu("v_add_u32", (vDMA0, vDMA1, vDMA2)[ch], a, t0)]
        return o
    def dma_slab(self):
        n = self.nslab; self.nslab += 1
        ch = self.chunk_of(n)
        B = self.B
        vd = (vDMA0, vDMA1, vDMA2)[ch]
        srd = rQKV if (B and ch < 2) else rGU
        so = (sOA if ch < 2 else sOB) if B else (sOB if ch == 1 else sOA)
        stride = 3072 if (B and ch < 2) else 3584
        o = [set_m0(sWQ, slab_slot(n) * SLOT, f"w{n}")]
        if ch == 1 and not B:
            if n > 8: o += [valu("v_add_u32", vd, 16384, vd)]
            return o + [buf_dma(vd, rWS, 0, i * 1024, flags="sc1", tag=f"w{n}") for i in range(4)]
        if n not in (0, 8, 12): o += [valu("v_add_u32", vd, (128 if ch == 1 else 64) * stride, vd)]
        o += [buf_dma(vd, srd, so[i], i * 1024, tag=f"w{n}") for i in range(4)]
        return o
    def frag_list(self):
        L = []
        for n in range(20):
            ch = self.chunk_of(n)
            base = slab_slot(n) * SLOT
            if ch != 1:
                n0 = 0 if ch == 0 else 12
                for jj in range(4):
                    for blk in range(4):
                        L.append((ACC1.sub(16 * blk, 16), 4 * (n - n0) + jj, n, base + (blk & 1) * 8192 + jj * 2048, blk >> 1, 512))
            else:
                for jj in range(8):
                    for blk in range(2):
                        if self.B: L.append((ACC2.sub(16 * blk, 16), 8 * (n - 8) + jj, n, base + jj * 2048, blk, 512))
                        else: L.append((ACC2.sub(16 * blk, 16), 8 * (n - 8) + jj, n, base + blk * 8192 + jj * 1024, 2, 256))
        return L
    def window(self, wins, which, reg, off, span):
        o = []
        if not (wins[which] <= off and off + span <= wins[which] + 65536):
            w = off // SLOT * SLOT
            d = w - wins[which]
            o += [valu("v_add_u32" if d > 0 else "v_subrev_u32", reg, abs(d), reg)]
            wins[which] = w
        return o, off - wins[which]
    def frag_reads(self, k, f):
        acc, step, n, off, which, ustep = f
        b = (vTR0, vTR1, vVTR)[which]
        o, imm = self.window(self.win, which, b, off, 1024)
        dst = WF.sub(4 * (k % self.cfg.NB), 4)
        o += [ds_read("ds_read_b64_tr_b16", dst.sub(0, 2), b, imm, tag=f"f{k}"), ds_read("ds_read_b64_tr_b16", dst.sub(2, 2), b, imm + ustep, tag=f"f{k}")]
        return o
    def ffn_epi(self, G, U, ch, kst, tag, pk=False):
        o = []
        for b in range(4):
            t = [T[4 + i] for i in range(4)]
            g = [G[4 * b + i] for i in range(4)]; u = [U[4 * b + i] for i in range(4)]
            if pk:
                t2 = [T.sub(4, 2), T.sub(6, 2)]; g2 = [G.sub(4 * b, 2), G.sub(4 * b + 2, 2)]; u2 = [U.sub(4 * b, 2), U.sub(4 * b + 2, 2)]
                o += [valu("v_pk_mul_f32", t2[i], g2[i], T.sub(0, 2)) for i in range(2)]
                o += [valu("v_exp_f32", t[i], t[i]) for i in range(4)]
                o += [valu("v_pk_mul_f32", u2[i], g2[i], u2[i]) for i in range(2)]
                o += [valu("v_pk_add_f32", t2[i], t2[i], T.sub(2, 2)) for i in range(2)]
                o += [valu("v_rcp_f32", t[i], t[i]) for i in range(4)]
                o += [valu("v_pk_mul_f32", u2[i], u2[i], t2[i]) for i in range(2)]
            else:
                o += [valu("v_mul_f32", t[i], f32(-LOG2E), g[i]) for i in range(4)]
                for i in range(4): o += [valu("v_exp_f32", t[i], t[i]), valu("v_mul_f32", u[i], g[i], u[i])]
                o += [valu("v_add_f32", t[i], "1.0", t[i]) for i in range(4)]
                o += [valu("v_rcp_f32", t[i], t[i]) for i in range(4)]
                o += [valu("v_mul_f32", u[i], u[i], t[i]) for i in range(4)]
            o += [valu("v_cvt_pk_bf16_f32", G[2 * b + i], u[2 * i], u[2 * i + 1]) for i in range(2)]
            if b & 1: o += [buf_store("buffer_store_dwordx4", G.sub(2 * (b - 1), 4), vHST, rWS, sHu[ch], kst + (b >> 1) * 1024, flags="sc1", tag=tag)]
        return o
    def set_hu(self, ch):
        a = sT[1]
        if self.B and ch == 1:
            return [salu("s_lshl_b32", a, sGQ, 1), salu("s_add_u32", a, a, sJ), salu("s_lshl_b32", a, a, 12), salu("s_add_u32", sHu[ch], a, 112 * 1024)]
        o = [salu("s_mul_i32", sHu[ch], sGQ, 28 * 1024)]
        if ch == 1: o += [salu("s_lshl_b32", a, sJ, 11), salu("s_add_u32", a, a, 6 * 4096 - 4096)]
        else: o += [salu("s_lshl_b32", a, sJ, 12), salu("s_sub_u32" if ch == 0 else "s_add_u32", a, a, 8192)]
        return o + [salu("s_add_u32", sHu[ch], sHu[ch], a)]

    def phase1(self):
        c, add, B = self.cfg, self.add, self.B
        F = self.frag_list()
        NM = len(F)
        gaps = [[] for _ in range(NM)]
        tail = [[] for _ in range(NM)]
        load = [0] * NM
        def put(k, ins, last=False):
            (tail if last else gaps)[k] += ins
            load[k] += sum(cyc(i) for i in ins)
        def spread(ins, k0, k1):
            tot = sum(cyc(i) for i in ins)
            lo, hi = 0.0, 1000.0
            for _ in range(40):
                mid = (lo + hi) / 2
                if sum(max(0, mid - load[k]) for k in range(k0, k1)) >= tot: hi = mid
                else: lo = mid
            cap, acc = [], 0.0
            for k in range(k0, k1):
                acc += max(0, hi - load[k]); cap.append(acc)
            k, used = 0, 0.0
            for i in ins:
                while k < len(cap) - 1 and used + cyc(i) / 2 > cap[k] and i.kind != "branch": k += 1
                put(k0 + k, [i]); used += cyc(i)
        bar_gap = {n: 16 * n - c.LA - 1 for n in range(1, 20)}
        bar_gap[0], bar_gap[20] = -1, NM
        self.bar_extra = {n: [] for n in range(1, 21)}
        plan = dict((int(p.split(":")[0]), p.split(":")[1].split(".")) for p in (c.planB if B else c.planC).split(",") if p)
        self.pool = list(ABUF) + VBUF[:5] + ([] if B else VBUF[5:7])
        put(bar_gap[c.pw_per] - 1 - c.pw_lead, self.poll_issue(vP2, rWS))
        put(bar_gap[c.pw_per] - 1, self.poll_check(vP2, rWS, sW0))
        if not B:
            assert bar_gap[5] < bar_gap[c.pw_per] - 1 - c.pw_lead
            put(bar_gap[5] - 1 - c.pw_lead, self.poll_issue(vP6, rWS))
            put(bar_gap[5] - 1, self.poll_check(vP6, rWS, sW0))
        put(bar_gap[c.f2_bar] + 1, [buf_store("buffer_store_dword", vFV, vF2, rWS, flags="sc1")])
        for n in range(20):
            k = bar_gap[n]
            if n: load[k] += 14
            if n == 19 and B: self.pool += VBUF[5:]
            if n == 9 and not B: self.pool += VBUF[7:]
            ops = list(plan.get(n, []))
            ins = []
            while ops and ops[0] in ("r", "H"):
                ins += self.plan_op(ops.pop(0), n)
            w = []
            nw = 0
            while self.nslab < 20 and self.nslab <= n + c.NS - 2 and (B or self.nslab < 8 or n >= 5) and (self.nslab <= n + 3 or nw + ops.count("w") < 1 or "w" in ops):
                if nw and "w" in ops: ops.remove("w")
                w += self.dma_slab(); nw += 1
            ops = [x for x in ops if x != "w"]
            assert self.nslab >= min(20, n + 3)
            if n == max(c.ts_pos, 0): ins += self.ts
            if c.xfree and 14 <= n <= 18: self.pool += [A(16 * (n - 14), 16)]
            nxl = min(32 - self.nx, c.xrate if n else max(1, c.xrate // 2))
            for i in w:
                if i.kind == "dma" and nxl: ins += self.x_load(); nxl -= 1
                ins.append(i)
            for _ in range(nxl): ins += self.x_load()
            assert self.nx >= min(32, (bar_gap[n + 1] + 16) // 4 + 1), n
            if n == 6: ins += self.touch(vPOLL, rOUT)
            for op in ops: ins += self.plan_op(op, n)
            if ins: spread(ins, k + 1, bar_gap[n + 1])
        if not B:
            ins = self.ffn_epi(ACC1.sub(0, 16), ACC1.sub(16, 16), 0, 0, "st1") + self.ffn_epi(ACC1.sub(32, 16), ACC1.sub(48, 16), 0, 2048, "st1")
            spread(ins, 129, 191)
            put(c.g_f1c, self.flag(1, "st1"))
            spread(self.ffn_epi(ACC2.sub(0, 16), ACC2.sub(16, 16), 1, 0, "st2"), 194, c.h2_end)
            put(c.g_f2c, self.flag(2, "st2"))
        else:
            self.attention(put, spread, bar_gap, load)
        o = [valu("v_lshl_add_u32", vH[0], vLane, 4, sP2h), valu("v_lshl_add_u32", vH[1], vLane, 4, sHS),
             valu("v_and_b32", vPOLL, 7, vLane), valu("v_lshrrev_b32", vTHR, 2, vPOLL), valu("v_lshl_add_u32", vPOLL, vPOLL, 2, sP2f),
             valu("v_and_b32", vXO, 31, vLane), valu("v_lshlrev_b32", vXO, 11, vXO), valu("v_and_or_b32", vXO, vLane, 32, vXO), valu("v_add_u32", vXO, sP2x, vXO)]
        spread(o, *((176, 192) if B else (c.h2_end, c.g_pa)))
        put(c.g_pa, self.poll_issue(vPOLL, rWS))
        put(278, self.poll_check(vPOLL, rWS, vTHR) + [valu("v_lshlrev_b32", vTHR, 1, vTHR)])
        put(c.g_pa2, self.poll_issue(vPOLL, rWS))
        put(319, self.poll_check(vPOLL, rWS, vTHR))
        spread([valu("v_mov_b32", T[0], f32(-LOG2E)), valu("v_mov_b32", T[1], f32(-LOG2E)), valu("v_mov_b32", T[2], "1.0"), valu("v_mov_b32", T[3], "1.0")], 312, 320)
        inv_bar = {v: n for n, v in bar_gap.items() if 1 <= n <= 19}
        for k in range(NM):
            acc, step, n, off, which, us = F[k]
            if k % 2 == 0: add(wait(lg=[f"f{i}" for i in range(k, k + 2)]))
            add(mfma(32, acc, WF.sub(4 * (k % c.NB), 4), X.sub(4 * step, 4), 0 if step == 0 else acc))
            if k == 0: add(self.stamp(67))
            if k + c.LA < NM: add(self.frag_reads(k + c.LA, F[k + c.LA]))
            add(gaps[k]); add(tail[k])
            if k in inv_bar:
                n = inv_bar[k]
                add(wait(vm=[f"w{n}"] + (["ts"] if n == c.f2_bar else []), lg=self.bar_extra[n] or None), barrier())
            if k in (127, 191): add(self.stamp())
            if k in (15, 31, 63): add(self.stamp(64))
            if k % 32 == 31 and 31 < k < 319: add(self.stamp(2))
            if k in c.sg: add(self.stamp(32))
        add(self.stamp(131))
        self.load = load
    def plan_op(self, op, n):
        if op == "l":
            assert n >= self.cfg.pw_per
            return self.w2_load()
        if op == "h":
            assert n >= 18 and self.h_n < 4
            return self.h_load()
        if op == "P": return self.poll_issue(vPOLLH, rWS)
        if op == "H":
            self.halo_period = n
            i = salu("s_mov_b32", "m0", sHM0); i.tag = "halo"
            return self.poll_check(vPOLLH, rWS, sTHR) + [i] + [buf_dma(vHLD, rWS, 0, 1024 * q, flags="sc1", tag="halo") for q in range(2)]
        slot = int(op[1:])
        if slot < self.cfg.NS: assert n >= 2 + max(x for x in range(20) if slab_slot(x) == slot)
        if self.B and slot >= 7: assert n >= 19
        assert n >= self.cfg.pw_per
        return self.w2_dma(slot)

    def att_setup(self):
        t0, t1 = T[0], T[1]
        o = [valu("v_and_b32", t0, 31, vLane), valu("v_mul_u32_u24", t0, RP, t0), valu("v_and_or_b32", t1, vLane, 32, 0), valu("v_add_u32", t0, t0, t1),
             salu("s_mul_i32", sT[0], sW, 32 * RP), salu("s_add_u32", sT[0], sT[0], SCR), valu("v_add_u32", vSCR, sT[0], t0),
             valu("v_and_b32", t0, 3, vLane), valu("v_bfe_u32", vVTR, vLane, 2, 2), valu("v_lshl_add_u32", t0, t0, 2, vVTR), valu("v_and_or_b32", t0, vLane, 16, t0),
             valu("v_mul_u32_u24", t0, RP, t0), valu("v_add3_u32", vVTR, sT[0], t0, t1),
             salu("s_mov_b32", sT[0], SCR + 128 * RP + 128), valu("v_lshl_add_u32", vHRB, vLane, 4, sT[0])]
        o += [salu("s_lshl_b32", sT[1], sRB, 3), salu("s_lshl_b32", sT[2], sGQ, 1), salu("s_add_u32", sT[1], sT[1], sT[2]), salu("s_add_u32", sT[1], sT[1], sJ),
              salu("s_lshl_b32", sC1, sT[1], 11), salu("s_add_u32", sC1, sC1, HALO_OFF),
              salu("s_cmp_eq_u32", None, sW, 3), salu("s_cselect_b32", sT[1], sC1, OOB), valu("v_lshl_add_u32", vHALO, vLane, 4, sT[1]),
              salu("s_and_b32", sT[1], sRB, 7), salu("s_or_b32", sT[2], sT[1], sW), salu("s_cselect_b32", sM1[0], 0, "0xf"), salu("s_cselect_b32", sM2[0], 0, "0xff"),
              salu("s_mov_b32", sM1[1], sM1[0]), salu("s_mov_b32", sM2[1], sM2[0]), salu("s_mov_b32", sHM0, SPARE),
              salu("s_cmp_eq_u32", None, sW, 0), salu("s_cselect_b32", sHM0, SCR + 128, sHM0), salu("s_cselect_b32", sT[1], sT[1], 0),
              salu("s_cmp_lg_u32", None, sT[1], 0), salu("s_cselect_b32", sTHR, 1, 0),
              salu("s_sub_u32", sT[2], sC1, 8 * 2048), salu("s_cmp_lg_u32", None, sTHR, 0), salu("s_cselect_b32", sT[2], sT[2], OOB),
              valu("v_lshl_add_u32", vHLD, vLane, 4, sT[2]),
              salu("s_lshl_b32", sT[1], sRB, 3), salu("s_add_u32", sT[1], sT[1], sGQ), salu("s_lshl_b32", sT[1], sT[1], 8), salu("s_lshl_b32", sT[2], sJ, 3),
              salu("s_add_u32", sT[1], sT[1], sT[2]), salu("s_add_u32", sT[1], sT[1], FLAG_OFF - 1024 + 4), salu("s_cmp_lg_u32", None, sTHR, 0),
              salu("s_cselect_b32", sT[1], sT[1], OOB), valu("v_mov_b32", vPOLLH, sT[1]), salu("s_mov_b32", sCS, f32(0.25 * LOG2E))]
        o += [valu("v_and_b32", t0, 3, vLane), valu("v_mov_b32", t1, "0xffff"),
              valu("v_cmp_le_u32", sJ1, 1, t0), valu("v_cmp_le_u32", sJ2, 2, t0), valu("v_cmp_le_u32", sJ3, 3, t0),
              valu("v_cndmask_b32", vA01, t1, -1, sJ1), valu("v_cndmask_b32", vA23, 0, t1, sJ2), valu("v_cndmask_b32", vA23, vA23, -1, sJ3)]
        return o
    def attention(self, put, spread, bar_gap, load):
        c = self.cfg
        units = []
        for blk in range(4):
            a = ACC1.sub(16 * blk, 16)
            kv, cb = blk & 1, blk >> 1
            for dh in range(2):
                cv = [valu("v_cvt_pk_bf16_f32", a[4 * dh + i], a[8 * dh + 2 * i], a[8 * dh + 2 * i + 1]) for i in range(4)]
                off = (kv * 8 + cb * 4 + dh) * 16 + 8 * RP
                if c.kv_mode == 2:
                    for q in range(2): units.append((cv[2 * q:2 * q + 2], ds_write("ds_write_b64", vSCR, a.sub(4 * dh + 2 * q, 2), off + 8 * q, tag="kv")))
                else: units.append((cv, ds_write("ds_write_b128", vSCR, a.sub(4 * dh, 4), off, tag="kv")))
        hs = ACC1.sub(8, 8)
        rd = [ds_read("ds_read_b128", hs.sub(4 * i, 4), vHRB, 1024 * i) for i in range(2)]
        if c.kv_mode == 0:
            spread([i for u in units for i in u[0] + [u[1]]] + rd, 129, c.kv_end)
        elif c.kv_mode == 3:
            spread([i for u in units for i in u[0]], 129, c.kv_end - 3)
            put(c.kv_end - 3, [u[1] for u in units]); put(c.kv_end - 1, rd)
        else:
            k0 = 129
            for n, (cv, wr) in enumerate(units):
                k1 = 129 + (c.kv_end - 2 - 129) * (n + 1) // len(units) - 1
                while load[k1] > 0 and k1 > k0 + 1: k1 -= 1
                spread(cv, k0, k1); put(k1, [wr], last=True); load[k1] += 100
                k0 = k1 + 1
            spread(rd, max(k0, c.kv_end - 2), c.kv_end)
        put(c.kv_end + 2, [buf_store("buffer_store_dwordx4", hs.sub(0, 4), vHALO, rWS, 0, 0, flags="sc1", tag="st1")])
        put(c.kv_end + 4, [buf_store("buffer_store_dwordx4", hs.sub(4, 4), vHALO, rWS, 0, 1024, flags="sc1", tag="st1")])
        assert c.kv_end + 4 < min(176, c.g_flag1)
        self.bar_extra[12] = ["kv"]
        put(c.g_flag1, self.flag(1, "st1"))
        Q = ACC2.sub(0, 16); O = ACC2.sub(16, 16)
        Sg = [SG.sub(0, 4), SG.sub(4, 4), SG.sub(8, 4)]
        P = [T.sub(0, 2), T.sub(2, 2), T.sub(4, 2)]
        tm, tz, big = SG[12], SG[13], SG[14]
        spread([valu("v_cvt_pk_bf16_f32", Q[i], ACC2[2 * i], ACC2[2 * i + 1]) for i in range(16)] + [valu("v_mov_b32", big, f32(-1e30))], 195, 215)
        k = c.g_halo
        assert k > bar_gap[self.halo_period + 1]
        put(k, [wait(vm="halo")])
        cs = 0.25 * LOG2E
        for cb in range(2):
            spread([ds_read("ds_read_b128", KA.sub(8 * g + 4 * dh, 4), vSCR, (cb * 4 + dh) * 16 + (2 - g) * 4 * RP) for g in range(3) for dh in range(2)], k, k + 4)
            k += 5
            for dq in range(4):
                put(k + dq // 2, [mfma(4, Sg[g], KA.sub(8 * g + 2 * dq, 2), Q.sub(8 * cb + 2 * dq, 2), Sg[g] if dq else 0) for g in range(3)], last=True)
            k += 2
            vr = [ds_read("ds_read_b64_tr_b16", KA.sub(8 * g + 2 * m, 2), vVTR, (8 + cb * 4) * 16 + m * 8 + (2 - g) * 4 * RP, tag="vr") for g in range(3) for m in range(4)]
            s = [Sg[0][i] for i in range(4)] + [Sg[1][i] for i in range(4)]
            o = vr[:4]
            o += [valu("v_cndmask_b32", Sg[2][r], Sg[2][r], big, sM2) for r in (1, 2, 3)]
            o += [valu("v_cndmask_b32", Sg[1][r], Sg[1][r], big, sM1) for r in range(4)]
            o += [valu("v_cndmask_b32", Sg[0][r], Sg[2][r], Sg[0][r], (None, sJ1, sJ2, sJ3)[r]) for r in (1, 2, 3)]
            o += [valu("v_max3_f32", tm, s[0], s[1], s[2]), valu("v_max3_f32", tz, s[3], s[4], s[5]), valu("v_max3_f32", tm, tm, s[6], s[7]), valu("v_max_f32", tm, tm, tz),
                  valu("v_mul_f32", tm, f32(-cs), tm)]
            o += vr[4:8]
            o += [valu("v_fma_f32", s[i], s[i], sCS, tm) for i in range(8)]
            o += [valu("v_exp_f32", s[i], s[i]) for i in range(8)]
            u = [Sg[2][i] for i in range(4)]
            o += [valu("v_add_f32", u[i], s[2 * i], s[2 * i + 1]) for i in range(4)]
            o += [valu("v_add_f32", u[0], u[0], u[1]), valu("v_add_f32", u[2], u[2], u[3]), valu("v_add_f32", u[0], u[0], u[2]), valu("v_rcp_f32", tz, u[0])]
            o += vr[8:]
            o += [valu("v_mul_f32", s[i], s[i], tz) for i in range(8)]
            o += [valu("v_cvt_pk_bf16_f32", u[0], s[0], s[1]), valu("v_cvt_pk_bf16_f32", u[1], s[2], s[3]),
                  valu("v_cvt_pk_bf16_f32", P[1][0], s[4], s[5]), valu("v_cvt_pk_bf16_f32", P[1][1], s[6], s[7]),
                  valu("v_and_b32", P[0][0], u[0], vA01), valu("v_and_b32", P[0][1], u[1], vA23),
                  valu("v_bfi_b32", P[2][0], vA01, 0, u[0]), valu("v_bfi_b32", P[2][1], vA23, 0, u[1])]
            spread(o, k, k + c.att_w)
            k += c.att_w
            for g in range(3):
                put(k + g // 2, [mfma(4, O.sub(4 * m, 4), KA.sub(8 * g + 2 * m, 2), P[g], O.sub(4 * m, 4) if g else 0) for m in range(4)], last=True)
            k += 2
            o = []
            for dh in range(2):
                o += [valu("v_cvt_pk_bf16_f32", O[4 * dh + i], O[8 * dh + 2 * i], O[8 * dh + 2 * i + 1]) for i in range(4)]
                o += [buf_store("buffer_store_dwordx4", O.sub(4 * dh, 4), vHST, rWS, sHu[1], cb * 2048 + dh * 1024, flags="sc1", tag="st2")]
            spread(o, k + 1, k + 7)
        assert k <= bar_gap[19], k
        put(min(k + 28, 317), self.flag(2, "st2"))

    GORD = ([("d", 0, 1, t) for t in range(4)] + [("d", 12, 1, 4 + t) for t in range(2)] + [("o", 0, 1, t) for t in range(4)]
            + [("d", 4, 2, t) for t in range(4)] + [("d", 5, 2, t) for t in range(4)])
    def w2_setup(self):
        return [salu("s_mul_i32", sHd, sW, 28 * 1024), salu("s_lshl_b32", sHo, sW, 13), salu("s_add_u32", sHo, sHo, 112 * 1024),
                salu("s_lshl_b32", sWd, sHd, 1), salu("s_lshl_b32", sWo, sHo, 1)]
    def h_load(self):
        gi = self.h_n; self.h_n += 1
        kind, g0, st, t = self.GORD[gi]
        o = []
        base = sHd if kind == "d" else sHo
        d = ((g0 & ~1) - self.hpos[kind]) * 2048
        self.hpos[kind] = g0 & ~1
        if d: o += [salu("s_add_u32" if d > 0 else "s_sub_u32", base, base, abs(d))]
        o += [salu("s_add_u32" if st == 1 else "s_lshl1_add_u32", sT[0], (sU + sUh)[t], base)]
        dst = self.hreg[gi] = self.pool.pop(0)
        for s in range(2):
            for tb in range(2):
                o += [buf_load("buffer_load_dwordx4", dst.sub(8 * s + 4 * tb, 4), vH[tb], rWS, sT[0], s * 1024 + (g0 & 1) * 2048, flags="sc1", tag=f"h{gi}")]
        return o
    def w2_addr(self):
        gi = self.w2_nd; self.w2_nd += 1
        kind, g, st, t = self.GORD[gi]
        base = sWd if kind == "d" else sWo
        d = (g - self.w2pos[kind]) * 4096
        self.w2pos[kind] = g
        o = [salu("s_add_u32" if d > 0 else "s_sub_u32", base, base, abs(d))] if d else []
        return gi, o + [salu(f"s_lshl{st}_add_u32", sWS, (sU + sUh)[t], base)]
    def w2_load(self):
        gi, o = self.w2_addr()
        dst = self.wreg[gi] = self.pool.pop(0)
        return o + [buf_load("buffer_load_dwordx4", dst.sub(4 * i, 4), vW[i & 1], rWS, sWS, i * 1024, flags="sc1", tag=f"g{gi}") for i in range(4)]
    def w2_dma(self, slot):
        gi, o = self.w2_addr()
        assert slot not in self.w2slot.values()
        self.w2slot[gi] = slot
        return [set_m0(sWQ, slot * SLOT, f"g{gi}")] + o + [buf_dma(vW[i & 1], rWS, sWS, i * 1024, flags="sc1", tag=f"g{gi}") for i in range(4)]
    def w2_read(self):
        gi = min(self.w2slot)
        base = self.w2slot.pop(gi) * SLOT
        dst = self.wreg[gi] = self.pool.pop(0)
        o, imm = self.window(self.win2, 0, vWB, base, 4096)
        for i in o: i.tag = f"r{gi}"
        return [wait(vm=f"g{gi}")] + o + [ds_read("ds_read_b128", dst.sub(4 * i, 4), vWB, imm + i * 1024, tag=f"r{gi}") for i in range(4)]
    def phase2(self):
        c, add = self.cfg, self.add
        accF = [ACC2.sub(0, 16), A(80, 16), A(96, 16), A(112, 16)]
        accS = [ACC2.sub(16, 16)]
        PR = [None, ACC1.sub(0, 16), ACC1.sub(16, 16), ACC1.sub(32, 16)]
        xf = ACC1.sub(48, 16)
        red = [vSCR, vVTR, vTR0, vTR1, vDMA2, vHST]
        pool, hreg, wreg, h_load = self.pool, self.hreg, self.wreg, self.h_load
        pool += [A(128, 16), A(144, 16), A(160, 16)] + ([] if c.xfree else [A(16 * i, 16) for i in range(5)])
        light = []
        heavy = []
        pend = lambda q, tag: any(i.tag == tag for i in q)
        e = self.ffn_epi(ACC1.sub(0, 16), ACC1.sub(16, 16), 2, 0, "st3", pk=True) + self.ffn_epi(ACC1.sub(32, 16), ACC1.sub(48, 16), 2, 2048, "st3", pk=True)
        assert 9 not in self.w2slot.values()
        seq = []
        for gi in range(18):
            bl = (1, 2, 3) if gi >= 18 - c.defer else (0, 1, 2, 3)
            seq += [(gi, s, b) for b in bl for s in range(2)] if gi == 17 else [(gi, s, b) for s in range(2) for b in bl]
        seq += [(gi, s, 0) for gi in range(18 - c.defer, 18) for s in range(2)]
        last = {gi: max(m for m, x in enumerate(seq) if x[0] == gi) for gi in range(18)}
        first = {gi: min(m for m, x in enumerate(seq) if x[0] == gi) for gi in range(18)}
        lastb = {b: max(m for m, x in enumerate(seq) if x[2] == b) for b in range(4)}
        st = {"q": [], "gate": 6, "x": False, "m": -1, "sw": False}
        def refill():
            okw = self.w2_nd < 18 and len(pool) > (1 if self.w2_nd <= self.h_n else c.keep)
            okh = self.h_n < st["gate"] and len(pool) > 1
            if okh and not (okw and self.w2_nd <= self.h_n + c.wlead): st["q"] += h_load()
            elif okw: st["q"] += self.w2_load()
            elif not st["x"] and st["m"] >= 0 and not pend(light, "ra"):
                st["x"] = True
                st["q"] += [set_m0(sWQ, 9 * SLOT, "xs"), salu("s_mov_b32", sT[1], 16384 - 1024),
                            buf_dma(red[4], rX, 0, 0, tag="xs"), buf_dma(red[4], rX, sT[1], 1024, tag="xs")]
        def pump():
            if not st["q"]: refill()
            while st["q"]:
                x = st["q"].pop(0); add(x)
                if x.kind in ("dma", "vml"): return True
            return False
        step = max(1, len(e) * 3 // 4 // max(1, c.epi_mem))
        k = 0
        for n, i in enumerate(e):
            if n % step == 0 and k < c.epi_mem: pump(); k += 1
            add(i)
        add(self.stamp(129))
        started = set()
        ra = [valu("v_lshl_add_u32", red[0], vLane, 4, sWQ)] + [valu("v_xor_b32", red[b], b * 4096, red[0]) for b in (1, 2, 3)]
        ra += [salu("s_and_b32", sT[2], sP2x, 64), salu("s_mul_i32", sT[3], sT[2], 511), salu("s_add_u32", sT[3], sT[3], sP2x),
               valu("v_lshrrev_b32", red[4], 3, vLane), valu("v_and_b32", red[5], 7, vLane), valu("v_lshlrev_b32", red[5], 4, red[5]),
               valu("v_lshl_add_u32", red[4], red[4], 11, red[5]), valu("v_add_u32", red[4], sT[3], red[4]),
               salu("s_lshr_b32", sT[3], sW, 1), salu("s_lshl_b32", sT[3], sT[3], 13), salu("s_add_u32", sT[3], sT[3], sT[2]), salu("s_add_u32", sT[3], sT[3], 9 * SLOT),
               valu("v_and_b32", red[5], 16, vLane), valu("v_lshlrev_b32", red[5], 1, red[5]), valu("v_and_or_b32", red[5], vLane, 15, red[5]), valu("v_lshlrev_b32", red[5], 7, red[5]),
               valu("v_and_or_b32", red[5], vLane, 32, red[5]), valu("v_add_u32", red[5], sT[3], red[5])]
        for i in ra: i.tag = "ra"
        light += ra
        used = set()
        for m, (gi, s, b) in enumerate(seq):
            st["m"] = m
            kind = self.GORD[gi][0]
            if gi in self.w2slot or pend(light, f"r{gi}"):
                add(light); light.clear()
                while gi in self.w2slot: add(self.w2_read())
            while gi >= self.w2_nd or pend(st["q"], f"g{gi}"): assert pump(), (m, gi)
            while gi >= self.h_n or pend(st["q"], f"h{gi}"): assert pump(), (m, gi)
            a = (accF if kind == "d" else accS)[b]
            add(mfma(32, a, wreg[gi].sub(8 * s + 4 * (b & 1), 4), hreg[gi].sub(8 * s + 4 * (b >> 1), 4), a if (kind, b) in started else 0))
            started.add((kind, b))
            if m == last[gi]:
                pool += [hreg[gi], wreg[gi]]
                if gi in (3, 4, 5): accS.append(pool.pop())
                if gi in c.sp: add(self.stamp(128))
            busy = False
            if m == c.m_f3: add(self.flag(3, "st3"), self.stamp()); busy = True
            if m in (c.m_pb - c.m_pd, c.m_pc - c.m_pd): add(self.poll_issue(vPOLL, rWS)); busy = True
            if m == c.m_pb: add(self.poll_check(vPOLL, rWS, 2)); st["gate"] = 10
            if m == c.m_pc: add(self.poll_check(vPOLL, rWS, 3), self.stamp()); st["gate"] = 18; self.pre += (self.w2_nd, self.h_n)
            used.add((gi, s, b >> 1))
            ahead = 4 * self.h_n - sum(1 for i in st["q"] if i.kind == "vml") - len(used)
            if ((m % c.vstep < c.vnum if m < c.m_pc else m % 2 == 0) or ahead < c.ahead) and not busy: busy = pump()
            if not light and self.w2slot and pool and m >= first[min(self.w2slot)] - c.rlead: light += self.w2_read()
            if m == last[9] + 2:
                add(light); light.clear()
                while any(s_ < 3 for s_ in self.w2slot.values()): add(self.w2_read())
                st["sw"] = True
                heavy += [wait(lg=[f"r{g}" for g in range(18)])]
                heavy += [ds_write("ds_write_b128", red[0], accS[b2].sub(4 * q, 4), (b2 - 1) * SLOT + q * 1024, tag="sw") for b2 in (1, 2, 3) for q in range(4)]
            if m == c.m_sb:
                while not st["x"] or pend(st["q"], "xs"):
                    g18, nd = st["gate"], self.w2_nd; st["gate"] = 0; self.w2_nd = 18; assert pump(); st["gate"], self.w2_nd = g18, nd
                add(heavy); heavy = []
                add(wait(vm="xs", lg="sw"), barrier()); busy = True
                light += [ds_read("ds_read_b128", xf.sub(8 * i + 4, 4), red[5], 16 * i) for i in range(2)]
                light += [ds_read("ds_read_b128", PR[b2].sub(4 * q, 4), red[b2], (b2 - 1) * SLOT + q * 1024) for b2 in (1, 2, 3) for q in range(4)]
                for b2 in range(4):
                    i = valu("v_add_u32", red[b2], 3 * SLOT, red[b2]); i.tag = "ra"; light.append(i)
                for h in range(2):
                    for i in range(4):
                        src = xf[8 * h + 4 + i]
                        pr = [valu("v_lshlrev_b32", xf[8 * h + 2 * i], 16, src), valu("v_and_b32", xf[8 * h + 2 * i + 1], "0xffff0000", src)]
                        light += pr
                light += [valu("v_add_f32", accS[0][i], accS[0][i], PR[1][i]) for i in range(16)] + [valu("v_add_f32", PR[2][i], PR[2][i], PR[3][i]) for i in range(16)]
                light += [valu("v_add_f32", accS[0][i], accS[0][i], PR[2][i]) for i in range(16)]
            for b2 in (1, 2, 3):
                if m == lastb[b2] + 2:
                    while pend(light, "ra"): add(light.pop(0))
                    heavy += [ds_write("ds_write_b128", red[0], accF[b2].sub(4 * q, 4), (b2 - 1) * SLOT + q * 1024) for q in range(4)]
            budget = 11 if busy else 24
            if heavy and not busy:
                while heavy:
                    x = heavy.pop(0); add(x)
                    if x.kind == "dsw": break
                budget = 0
            while light and cyc(light[0]) <= budget:
                budget -= cyc(light[0]); add(light.pop(0))
        assert self.h_n == 18 and self.w2_nd == 18 and not self.w2slot and not st["q"] and st["x"]
        add(self.stamp())
        add(heavy, light)
        add(wait(lg="all"), barrier())
        for q in range(4):
            for b in (1, 2, 3): add(ds_read("ds_read_b128", PR[b].sub(4 * q, 4), red[b], (b - 1) * SLOT + q * 1024))
        Fp, Sp, t = accF[0], accS[0], PR[1]
        for hq in range(2):
            r2 = range(8 * hq, 8 * hq + 8, 2); r1 = range(8 * hq, 8 * hq + 8)
            add([valu("v_pk_add_f32", Fp.sub(i, 2), Fp.sub(i, 2), PR[1].sub(i, 2)) for i in r2])
            add([valu("v_pk_add_f32", PR[2].sub(i, 2), PR[2].sub(i, 2), PR[3].sub(i, 2)) for i in r2])
            add([valu("v_pk_add_f32", Fp.sub(i, 2), Fp.sub(i, 2), PR[2].sub(i, 2)) for i in r2])
            add([valu("v_pk_mul_f32", t.sub(i, 2), Fp.sub(i, 2), T.sub(0, 2)) for i in r2])
            add([valu("v_exp_f32", t[i], t[i]) for i in r1])
            add([valu("v_pk_mul_f32", Sp.sub(i, 2), Sp.sub(i, 2), Fp.sub(i, 2)) for i in r2])
            add([valu("v_pk_add_f32", t.sub(i, 2), t.sub(i, 2), T.sub(2, 2)) for i in r2])
            add([valu("v_rcp_f32", t[i], t[i]) for i in r1])
            add([valu("v_pk_fma_f32", xf.sub(i, 2), Sp.sub(i, 2), t.sub(i, 2), xf.sub(i, 2)) for i in r2])
            add([valu("v_cvt_pk_bf16_f32", t[8 * hq + i], xf[8 * hq + 2 * i], xf[8 * hq + 2 * i + 1]) for i in range(4)])
            add(buf_store("buffer_store_dwordx4", t.sub(8 * hq, 4), vXO, rOUT, 0, 16 * hq, flags=c.outflags))

    def finish(self):
        add = self.add
        if self.cfg.stamps:
            add(raw(f"{self.cfg.clock} s[14:15]", "smem"))
            add(wait(vm="all"))
            add(raw(f"{self.cfg.clock} s[16:17]\n    s_waitcnt lgkmcnt(0)", "smem"))
            add(valu("v_mov_b32", V(96), 0))
            for i in range(self.nst): add(raw(f"v_writelane_b32 v96, s{STAMPS[i]}, {1+i}", "valu", wr=["v96"]))
            add(raw(f"v_writelane_b32 v96, s{ST0}, 0", "valu", wr=["v96"]), raw(f"v_writelane_b32 v96, s14, {1+self.nst}", "valu", wr=["v96"]),
                raw(f"v_writelane_b32 v96, s16, {2+self.nst}", "valu", wr=["v96"]))
            add(salu("s_lshl_b32", sT[1], sWG, 2), salu("s_add_u32", sT[1], sT[1], sW), salu("s_lshl_b32", sT[1], sT[1], 6), salu("s_add_u32", sT[1], sT[1], STAMP_OFF),
                valu("v_lshl_add_u32", V(97), vLane, 2, sT[1]), salu("s_mov_b64", "exec", "0xffff"), buf_store("buffer_store_dword", V(96), V(97), rWS))
        add(raw("s_endpgm", "end"))

    def program(self):
        self.w2slot, self.slot_used, self.w2pos = {}, {}, {"d": 0, "o": 0}
        self.w2_nd = self.w2_nr = 0
        self.win2 = [0, 0]
        self.h_n, self.hreg, self.wreg, self.hpos = 0, {}, {}, {"d": 0, "o": 0}
        self.ramp(); self.phase1()
        self.pre = (self.w2_nd, len(self.w2slot), self.h_n)
        if not self.cfg.p1only: self.phase2()
        self.finish()
        return self.e.text() + self.slow

HEAD = open("recurrent_scan__sliding_local_dilated__swiglu_ffn__prompt.s.ref").read().split("; Override launch")[0]

def build(cfg):
    NS[0] = cfg.NS
    s = HEAD + "; @launch grid=(256,1,1) block=(256,1,1) lds=163840\n"
    s += f'.amdgcn_target "amdgcn-amd-amdhsa--gfx950"\n.text\n.globl {KNAME}\n.p2align 8\n.type {KNAME},@function\n{KNAME}:\n'
    s += f"""    s_cmp_ge_u32 s2, 256
    s_cbranch_scc0 L_go
    s_endpgm
L_go:
"""
    if cfg.stamps: s += f"    {cfg.clock} s[{ST0}:{ST0+1}]\n"
    s += f"""    s_load_dwordx16 s[4:19], s[0:1], 0
    s_load_dwordx4 s[20:23], s[0:1], 64
    v_and_b32 {vLane}, 63, v0
    v_lshrrev_b32 v1, 6, v0
    s_getpc_b64 s[28:29]
    v_readfirstlane_b32 {sW}, v1
    s_lshr_b32 s3, s2, 3
    s_and_b32 s26, s3, 7
    s_lshl_b32 s26, s26, 13
    v_and_b32 v2, 15, v0
    v_lshl_add_u32 v2, v1, 4, v2
    v_lshl_add_u32 v2, v2, 7, s26
    v_min_u32 v2, L_end-L_go-256, v2
    global_load_dword v3, v2, s[28:29]
    s_and_b32 s26, s2, 7
    s_and_b32 {sRB}, s26, 1
    s_lshl_b32 {sRB}, {sRB}, 3
    s_and_b32 s27, s3, 7
    s_add_u32 {sRB}, {sRB}, s27
    s_lshr_b32 {sGQ}, s26, 1
    s_lshr_b32 {sJ}, s3, 3
    s_lshl_b32 {sTB2}, s26, 2
    s_and_b32 s27, s3, 3
    s_add_u32 {sTB2}, {sTB2}, s27
    s_lshr_b32 {sCB2}, s3, 2
    s_xor_b32 {sCB2}, {sCB2}, {cfg.cbx}
    s_lshl_b32 {sWQ}, {sW}, 12
    s_cmp_ge_u32 {sJ}, 2
    s_cbranch_scc1 L_typeC
"""
    info = {}
    for typ in ("B", "C"):
        g = Gen(typ, cfg)
        g.e.vm.append(("pf", {"v3"}))
        s += f"L_type{typ}:\n" + g.program()
        info[typ] = (g.e.slots, g.e.nops, dict(g.e.count), [sum(max(32, 20 + x) for x in g.load[i:i + 32]) for i in range(0, 320, 32)], g.pre, g.nst + 3)
    s += "L_end:\n"
    s += f""".section .rodata,"a"
.p2align 6
.amdhsa_kernel {KNAME}
  .amdhsa_next_free_vgpr 512
  .amdhsa_next_free_sgpr 102
  .amdhsa_accum_offset 256
  .amdhsa_group_segment_fixed_size 0
  .amdhsa_kernarg_size 80
  .amdhsa_user_sgpr_count 2
  .amdhsa_user_sgpr_kernarg_segment_ptr 1
  .amdhsa_system_sgpr_workgroup_id_x 1
.end_amdhsa_kernel
"""
    return s, info

if __name__ == "__main__":
    cfg = Cfg()
    out = sys.argv[1]
    for a in sys.argv[2:]:
        k, v = a.split("=")
        assert hasattr(cfg, k), k
        if k == "outflags": v = v.replace("_", " ")
        elif k in ("sg", "sp"): v = [int(x) for x in v.split(",")]
        elif k not in ("clock", "planB", "planC"): v = int(v)
        setattr(cfg, k, v)
    s, info = build(cfg)
    open(out, "w").write(s)
    for k, v in info.items(): print(k, v)
```

```python
import sys, struct
sys.path.insert(0, "tools")
from emit import *
from asmlib import KNAME

FLAG_OFF, XN_OFF, HALO_OFF, WS_USED = 0x910000, 0x938000, 0xB38000, 0xF00000
WT_OFF, P6_OFF = 0xC01000, 0xE50000
L_HALO, L_P1, L_HALF, L_O, L_L0, L_END = [128 * i for i in range(6)]
FLAGA_OFF = 0x930000
STAMP_OFF = 0xB80000
OOB = 0x40000000
SLOT = 16384
HSTR = 145 * 1024
RP = 272
SCR = 7 * SLOT
SPARE = SCR + 137 * RP
LOG2E = 1.4426950408889634
def f32(x): return "0x%08x" % struct.unpack("<I", struct.pack("<f", x))[0]

class Cfg:
    stamps = 0
    clock = "s_memrealtime"
    sg = ()
    sp = ()
    p1only = 0
    LA = 8
    NB = 10
    spin = 20000
    cbx = 0
    rot = 0
    sleep = 0
    rsel = 1
    tx = 1
    b_rest = None
    tlin = 0
    wo_late = -1
    sig_early = 0
    nodbg = 0
    f2_epi = 30
    pa2_epi = -1
    dbg = 0
    nspl = 0
    e0_end = 312
    f3_at = 30
    setup_early = 0
    w_0 = 0
    w_a = 1
    w_b = 3
    w_c = 4
    nx0 = 8
    xrate = 4
    planB = "7:l,8:l,9:l,10:l,11:l,12:l.P,13:l,14:H.l,15:l,16:l,17:l.l,18:h.l,19:h.h.h"
    planC = "7:l,8:l,9:l,10:l,11:l,12:l,13:l,14:l,15:l,16:l,17:l.l,18:h.h,19:h.h.l"
    ts_pos = 0
    f2_bar = 2
    pw_lead = 16
    pw_per = 7
    NS = 7
    xfree = 1
    kv_end = 146
    kv_mode = 3
    kw_end = 214
    p6_per = 5
    c_rest = -1
    c_tile = -1
    g_flag1 = 172
    g_halo = 236
    att_w = 20
    g_f1c = 210
    g_pa = 262
    h2_end = 240
    g_f2c = 264
    g_pa2 = 304
    epi_mem = 10
    m_f4 = 24
    m_pe = -99
    pa_per = 18
    m_f3 = -1
    m_pb = 24
    m_pc = 62
    m_pd = 12
    m_sb = 106
    defer = 4
    vstep = 1
    vnum = 1
    m_v1 = 62
    wlead = 1
    rlead = 12
    keep = 4
    ahead = 12
    outflags = ""
    hflags = "sc1"
    pflags = "sc1"

sWG = S(2)
pX, pQKV, pWO, pG, pU, pD, pOUT, pDBG, pWS = S(4, 2), S(6, 2), S(8, 2), S(12, 2), S(14, 2), S(16, 2), S(18, 2), S(20, 2), S(22, 2)
rX, rQKV, rGU, rD, rWO, rOUT, rWS, rDBG = S(24, 4), S(28, 4), S(32, 4), S(36, 4), S(40, 4), S(44, 4), S(48, 4), S(52, 4)
sW, sRB, sGQ, sJ, sTB2, sCB2, sWQ = S(56), S(57), S(58), S(59), S(60), S(61), S(62)
sT = [S(3), S(63), S(64), S(65)]
sM1, sM2 = S(66, 2), S(68, 2)
sHM0, sXS = S(70), S(71)
sJ1, sJ2, sJ3 = S(72, 2), S(74, 2), S(76, 2)
sTHR, sCNT = S(78), S(79)
sU = [S(60), S(61), S(58), S(59)]
sUh = [S(0), S(1)]
sHu = [S(4), S(5), S(6)]
sCS, sC1, sHd, sHo = S(7), S(8), S(9), S(10)
sWd, sWo, sWS, sW0 = S(40), S(41), S(42), S(43)
sOA = [0, S(11), S(12), S(13)]
sOB = [0, S(14), S(15), S(16)]
sOC = [0, S(17), S(18), S(19)]
sP2h, sP2f, sP2x, sHS = S(20), S(21), S(22), S(23)
STAMPS = list(range(82, 102, 2))
ST0 = 80

ACC1, ACC2 = V(0, 64), V(64, 32)
VBUF = [V(96 + 16 * i, 16) for i in range(8)]
KA, SG = V(176, 24), V(200, 16)
T = V(224, 8)
(vF2, vA23, vA01, vP2, vHRB, vWB, vDMA2, vDMA1, vW1, vFV, vPV, vW0, vPOLL, vHALO, vPOLLH, vHLD,
 vFLG, vVTR, vSCR, vHST, vDMA0, vTR1, vTR0, vLane) = [V(232 + i) for i in range(24)]
vW = [vW0, vW1]
vP6 = vA01
vHLD2 = V(222)
vXN = V(216)
vTCH = [V(217), V(218), V(219), V(220), V(221)]
vH = [vHRB, vHALO]
vXO, vTHR = vDMA1, vDMA0
X = A(0, 128)
WF = A(128, 40)
aDUM = A(168)
ABUF = [A(176 + 16 * i, 16) for i in range(5)]
NS = [5]
def slab_slot(n): return n % NS[0]

def cyc(i):
    k = i.kind
    if k in ("wait", "waitr", "waitcnt", "mfma"): return 0
    if k == "trans": return 8
    if k in ("dma", "vml"): return 14
    if k == "vms": return 30 if i.op.endswith("x4") else 20
    if k == "dsw": return 26
    if k == "dsr": return 11 if i.op.endswith("b128") else 4
    if k == "bar": return 14
    if k == "branch": return 8
    return 4

class Gen:
    def __init__(self, typ, cfg):
        self.typ, self.cfg = typ, cfg
        self.B = typ == "B"
        import copy
        self.cfg = cfg = copy.copy(cfg)
        for k, v in list(vars(cfg).items()) + list(vars(Cfg).items()):
            if k.endswith('_' + typ): setattr(cfg, k[:-2], getattr(cfg, k))
        self.e = Emitter()
        self.nst = 0
        self.nlab = 0
        self.slow = ""
    def add(self, *ins):
        for i in ins: self.e.add(i)
    def stamp(self, mode=1):
        if not (self.cfg.stamps & mode): return []
        r = S(STAMPS[self.nst], 2); self.nst += 1
        return [raw(f"{self.cfg.clock} {r}", "smem")]
    def touch(self, va, srd, flags=""):
        i = buf_load("buffer_load_dword", aDUM, va, srd, flags=flags)
        i.wr = set()
        return [i]
    def poll_issue(self, vaddr, srd, off=0):
        return [buf_load("buffer_load_dword", vPV, vaddr, srd, 0, off, flags=self.cfg.pflags)]
    def poll_check(self, vaddr, srd, thr, off=0):
        self.nlab += 1
        l = f"L_{self.typ}_p{self.nlab}"
        sl = f"    s_sleep {self.cfg.sleep}\n" if self.cfg.sleep else ""
        self.slow += (f"{l}_slow:\n    s_mov_b32 {sCNT}, 0\n{l}_spin:\n"
                f"{sl}    buffer_load_dword {vPV}, {vaddr}, {srd}, 0 offen offset:{off} {self.cfg.pflags}\n    s_add_u32 {sCNT}, {sCNT}, 1\n    s_waitcnt vmcnt(0)\n"
                f"    v_cmp_gt_u32 vcc, {thr}, {vPV}\n    s_cmp_ge_u32 {sCNT}, {self.cfg.spin}\n    s_cbranch_scc1 {l}_ok\n"
                f"    s_cbranch_vccnz {l}_spin\n    s_branch {l}_ok\n")
        return [valu("v_cmp_gt_u32", "vcc", thr, vPV), raw(f"s_cbranch_vccnz {l}_slow\n{l}_ok:", "branch")]
    def flag(self, stage, tag):
        return [wait(vm=tag), buf_store("buffer_store_dword", vFV, vFLG, rWS, 0, stage, flags="sc1")]

    def ramp(self):
        c, add, B = self.cfg, self.add, self.B
        t0, t1, t2, t3 = V(96), V(97), V(98), V(99)
        vXL, vXS, vRS, vST, vF0, vP0, vDB, vTLB, vSG, vXR, vTL, vTS = [V(100 + i) for i in range(12)]
        vR2, vTB0, vTB1, vPL, vPS = [V(162 + i) for i in range(5)]
        tl, p6 = V(168, 16), V(184, 4)
        xr, lo, z, part = V(112, 16), V(128, 16), V(144, 4), V(148, 8)
        sm, sq, one = V(156), V(157), V(158)
        rb = V(160, 2)
        srd = lambda r, p, n: [salu("s_mov_b32", r[0], p[0]), salu("s_mov_b32", r[1], p[1]), salu("s_mov_b32", r[2], n), salu("s_mov_b32", r[3], "0x20000")]
        gu = [salu("s_cmp_lt_u32", None, sW, 2), salu("s_cselect_b32", rGU[0], pG[0], pU[0]), salu("s_cselect_b32", rGU[1], pG[1], pU[1])]
        sizes = ((rX, pX, 2048 * 1024), (rWS, pWS, WS_USED), (rDBG, pDBG, 256), (rQKV, pQKV, 512 * 3072), (rOUT, pOUT, 2048 * 1024))
        XL = 8 * SLOT
        self.nslab = 0
        add(self.stamp(256))
        TL = 7 * SLOT
        roles = [salu("s_lshr_b32", sT[0], sWG, 3), salu("s_and_b32", sT[1], sWG, 7), salu("s_and_b32", sRB, sWG, 1), salu("s_lshl_b32", sRB, sRB, 3),
                 salu("s_and_b32", sT[2], sT[0], 7), salu("s_add_u32", sRB, sRB, sT[2]), salu("s_lshr_b32", sGQ, sT[1], 1), salu("s_lshr_b32", sJ, sT[0], 3),
                 salu("s_lshl_b32", sTB2, sT[1], 2), salu("s_and_b32", sT[2], sT[0], 3), salu("s_add_u32", sTB2, sTB2, sT[2]), salu("s_lshr_b32", sCB2, sT[0], 2)]
        if c.cbx: roles += [salu("s_xor_b32", sCB2, sCB2, c.cbx)]
        def tile_setup():
            if B:
                o = [salu("s_lshl2_add_u32", sT[1], sRB, sW), salu("s_lshl_b32", sT[2], sT[1], 13), salu("s_lshl1_add_u32", sT[3], sGQ, sJ)] + srd(rD, pWO, 512 * 1024)
            else:
                o = [salu("s_lshr_b32", sT[1], sW, 1), salu("s_lshl1_add_u32", sT[1], sT[0], sT[1]), salu("s_lshl_b32", sT[2], sT[1], 15),
                     salu("s_xor_b32", sCNT, sGQ, c.tx), salu("s_and_b32", sT[3], sW, 1), salu("s_lshl1_add_u32", sT[3], sCNT, sT[3])] + srd(rD, pD, 1792 * 1024)
            o += [salu("s_lshl_b32", sCNT, sT[3], 7), salu("s_add_u32", sT[2], sT[2], sCNT),
                  valu("v_lshrrev_b32", t2, 2, vLane), valu("v_and_b32", t2, 4, t2), valu("v_xor_b32", t2, t2, t1), valu("v_lshlrev_b32", t2, 4, t2),
                  valu("v_lshl_add_u32", t2, t0, 10, t2), valu("v_add_u32", vTL, sT[2], t2)]
            o += [salu("s_mul_i32", sT[2], sT[3], 72 * 4096), salu("s_lshl_b32", sT[1], sT[1], 10 if B else 12), salu("s_add_u32", sT[2], sT[2], sT[1]),
                  salu("s_add_u32", sT[2], sT[2], WT_OFF + (56 * 4096 if B else 0)),
                  ]
            if B: o += [salu("s_lshl4_add_u32", sT[1], sT[3], sRB)]
            else: o += [salu("s_lshl_b32", sT[1], sGQ, 5), salu("s_add_u32", sT[1], sT[1], sT[0])]
            o += [salu("s_and_b32", sT[3], sT[1], 7), salu("s_lshr_b32", sT[1], sT[1], 3), salu("s_lshl_b32", sT[1], sT[1], 7), salu("s_lshl2_add_u32", sT[1], sT[3], sT[1]),
                  salu("s_add_u32", sT[1], sT[1], FLAGA_OFF + (80 if B else 64) * 128)]
            if not B: o += [salu("s_cmp_lt_u32", None, sRB, 14), salu("s_cselect_b32", sT[2], sT[2], OOB)]
            o += [salu("s_cmp_eq_u32", None, sW, 0), salu("s_cselect_b32", sT[1], sT[1], OOB),
                  valu("v_lshl_add_u32", vTS, vLane, 4, sT[2]), valu("v_mov_b32", vF2, OOB), raw(f"v_writelane_b32 {vF2}, {sT[1]}, 0", "valu", rd=[vF2], wr=[vF2])]
            return o
        def tile_store():
            o = [valu("v_and_b32", vTB0, "0x3ff", vTR0), valu("v_and_b32", vTB1, 32, vLane), valu("v_lshl_add_u32", vTB0, vTB1, 6, vTB0)]
            if B:
                o += [salu("s_and_b32", sT[1], sW, 1), salu("s_lshl_b32", sT[1], sT[1], 6), valu("v_xor_b32", vTB0, sT[1], vTB0),
                      salu("s_lshr_b32", sT[1], sW, 1), salu("s_lshl_b32", sT[1], sT[1], 10), salu("s_add_u32", sT[1], sT[1], TL), valu("v_add_u32", vTB0, sT[1], vTB0)]
                return o, [ds_read("ds_read_b64_tr_b16", tl.sub(2 * u, 2), vTB0, u * 512) for u in range(2)], [buf_store("buffer_store_dwordx4", tl.sub(0, 4), vTS, rWS, flags="sc1", tag="ts")]
            o += [salu("s_add_u32", sT[1], sWQ, TL), valu("v_add_u32", vTB0, sT[1], vTB0), valu("v_xor_b32", vTB1, 64, vTB0), wait(vm="tl")]
            for s_ in range(2):
                for cb in range(2):
                    for u in range(2): o += [ds_read("ds_read_b64_tr_b16", tl.sub(8 * s_ + 4 * cb + 2 * u, 2), (vTB0, vTB1)[cb], s_ * 1024 + u * 512)]
            return o, [buf_store("buffer_store_dword", vFV, vF2, rWS, flags="sc1")], [buf_store("buffer_store_dwordx4", tl.sub(4 * i, 4), vTS, rWS, 0, 1024 * i, flags="sc1", tag="ts") for i in range(4)]
        if B:
            add(salu("s_and_b32", sT[2], sWG, 63), salu("s_lshl_b32", sT[2], sT[2], 15), salu("s_lshr_b32", sT[1], sWG, 6), salu("s_lshl2_add_u32", sT[1], sT[1], sW),
                salu("s_lshl_b32", sT[1], sT[1], 8), salu("s_add_u32", sT[1], sT[1], sT[2]),
                valu("v_xor_b32", t2, t0, t1), valu("v_lshlrev_b32", t2, 4, t2), valu("v_lshl_add_u32", vXL, t0, 11, t2),
                salu("s_add_u32", sXS, sT[1], 16384 - 1024), srd(*sizes[0])[2:], set_m0(sWQ, XL, "x"))
            add(self.stamp(256), raw("s_waitcnt lgkmcnt(0)", "waitcnt"), self.stamp(256))
            add(buf_dma(vXL, rX, sT[1], 0, tag="x"), buf_dma(vXL, rX, sXS, 1024, tag="x"), set_m0(sWQ, XL + 2048 - 128, "x"), salu("s_mov_b32", rWS[0], pWS[0]),
                buf_dma(vXL, rX, sT[1], 128, tag="x"), buf_dma(vXL, rX, sXS, 1024 + 128, tag="x"))
            add(self.stamp(256))
            add(srd(*sizes[1])[1:])
            if c.rsel: add(salu("s_lshr_b32", sT[1], sWG, 3), salu("s_and_b32", sT[2], sWG, 1), salu("s_lshl1_add_u32", sT[1], sT[1], sT[2]), salu("s_and_b32", sT[3], sWG, "0xe6"))
            else: add(salu("s_mov_b32", sT[1], sWG), salu("s_lshr_b32", sT[3], sWG, 3))
            add(salu("s_lshl_b32", sT[2], sT[1], 11), salu("s_add_u32", sT[2], sT[2], FLAGA_OFF), salu("s_lshl_b32", sT[1], sT[1], 2),
                salu("s_or_b32", sT[3], sT[3], sW), salu("s_cselect_b32", sT[2], OOB, sT[2]), salu("s_cselect_b32", sT[1], OOB, sT[1]),
                salu("s_lshl_b32", sT[3], sWG, 10), salu("s_add_u32", sT[3], sT[3], FLAG_OFF), salu("s_cmp_eq_u32", None, sW, 1),
                salu("s_cselect_b32", sT[2], sT[3], sT[2]), salu("s_cselect_b32", sT[3], 6, 7),
                valu("v_lshrrev_b32", t2, 2, vLane), valu("v_and_b32", t3, 3, vLane), valu("v_lshlrev_b32", t3, 4, t3), valu("v_lshl_add_u32", t2, t2, sT[3], t3),
                valu("v_add_u32", vRS, sT[2], t2), valu("v_mov_b32", vSG, sT[1]), [valu("v_mov_b32", z[i], 0) for i in range(4)])
            add(buf_store("buffer_store_dwordx4", z, vRS, rWS, flags="sc1", tag="reset"))
            add(roles)
            for q in sizes[2:]: add(srd(*q))
            add(gu, srd(rGU, pG, 512 * 3584)[2:], tile_setup())
            if c.wo_late == -1: add(salu("s_lshr_b32", sT[1], sWQ, 2), set_m0(sT[1], TL, "tl"), buf_dma(vTL, rD, tag="tl"))
        else:
            add(roles)
            add(salu("s_lshl_b32", sT[0], sRB, 1), salu("s_add_u32", sT[0], sT[0], sJ), salu("s_sub_u32", sT[0], sT[0], 2),
                salu("s_lshl2_add_u32", sT[1], sT[0], sW), salu("s_mul_i32", sT[1], sT[1], 4 * 3072), salu("s_lshl_b32", sT[2], sGQ, 8), salu("s_add_u32", sT[1], sT[1], sT[2]),
                valu("v_and_b32", t2, 3, t0), valu("v_mul_u32_u24", t2, 3072, t2), valu("v_and_b32", t3, 1, t1), valu("v_lshl_add_u32", t2, t3, 7, t2),
                valu("v_add_u32", vTCH[3], sT[1], t2), valu("v_bfe_u32", t2, t1, 1, 1), valu("v_add_u32", t2, 1, t2), valu("v_lshl_add_u32", vTCH[1], t2, 10, vTCH[3]),
                salu("s_and_b32", sT[2], sW, 1), salu("s_lshl1_add_u32", sT[1], sT[0], sT[2]), salu("s_mul_i32", sT[1], sT[1], 8 * 3584),
                salu("s_mul_i32", sT[2], sGQ, 7 * 128), salu("s_add_u32", sT[1], sT[1], sT[2]),
                valu("v_mul_u32_u24", t2, 3584, t0), valu("v_add_u32", t2, sT[1], t2), valu("v_lshl_add_u32", vTCH[0], t3, 7, t2))
            if c.tlin:
                add(salu("s_sub_u32", sT[2], sWG, 128), salu("s_lshl2_add_u32", sT[3], sT[2], sW), salu("s_mul_i32", sCNT, sT[3], 3072),
                    valu("v_min_u32", vTCH[1], 23, vLane), valu("v_lshl_add_u32", vTCH[1], vTCH[1], 7, sCNT),
                    salu("s_mul_i32", sCNT, sT[3], 3584), valu("v_min_u32", vTCH[4], 27, vLane), valu("v_lshl_add_u32", vTCH[4], vTCH[4], 7, sCNT),
                    salu("s_and_b32", sT[3], sW, 1), salu("s_lshl1_add_u32", sT[3], sT[2], sT[3]), salu("s_mul_i32", sT[3], sT[3], 7168),
                    valu("v_min_u32", vTCH[0], 55, vLane), valu("v_lshl_add_u32", vTCH[0], vTCH[0], 7, sT[3]))
            add(srd(*sizes[3])[2:], srd(rGU, pG, 512 * 3584)[2:])
            add(self.stamp(256), raw("s_waitcnt lgkmcnt(0)", "waitcnt"), self.stamp(256))
            if c.tlin == 2: add(srd(rD, pD, 1792 * 1024), self.touch(vTCH[4], rD))
            add(srd(*sizes[3])[:2], self.touch(vTCH[1], rQKV), gu, self.touch(vTCH[0], rGU), self.stamp(256))
            add(valu("v_and_b32", t3, 3, t1), valu("v_add_u32", t3, 2, t3), valu("v_lshl_add_u32", vTCH[2], t3, 7, t2),
                valu("v_bfe_u32", t2, vLane, 2, 3), valu("v_mul_u32_u24", t2, 3584, t2), valu("v_and_b32", t3, 3, vLane), valu("v_lshl_add_u32", t2, t3, 4, t2),
                valu("v_lshrrev_b32", t3, 5, vLane), valu("v_lshl_add_u32", t2, t3, 6, t2), salu("s_add_u32", sT[1], sT[1], 768), valu("v_add_u32", vPL, sT[1], t2),
                buf_load("buffer_load_dwordx4", p6, vPL, rGU),
                salu("s_lshr_b32", sT[1], sT[0], 3), salu("s_lshl_b32", sT[1], sT[1], 14), salu("s_and_b32", sT[2], sT[0], 7), salu("s_lshl_b32", sT[2], sT[2], 10),
                salu("s_add_u32", sT[1], sT[1], sT[2]), salu("s_and_b32", sT[2], sW, 1), salu("s_lshl_b32", sT[2], sT[2], 9), salu("s_add_u32", sT[1], sT[1], sT[2]),
                salu("s_lshr_b32", sT[2], sW, 1), salu("s_lshl_b32", sT[2], sT[2], 13), salu("s_add_u32", sT[1], sT[1], sT[2]),
                salu("s_lshl_b32", sT[2], sGQ, 17), salu("s_add_u32", sT[1], sT[1], sT[2]), salu("s_add_u32", sT[1], sT[1], P6_OFF),
                valu("v_and_b32", t2, 31, vLane), valu("v_lshlrev_b32", t2, 4, t2), valu("v_lshl_add_u32", t2, t3, 16, t2), valu("v_add_u32", vPS, sT[1], t2),
                )
            add(tile_setup())
            tdma = [set_m0(sWQ, TL, "tl"), salu("s_mov_b32", sTHR, 7168)]
            for i in range(4):
                tdma += [buf_dma(vTL, rD, sTHR if i else 0, 1024 * i, tag="tl")]
                if 0 < i < 3: tdma += [salu("s_add_u32", sTHR, sTHR, 7168)]
            self.rest = [] if (c.tlin or c.b_rest is not None) else self.touch(vTCH[3], rQKV) + self.touch(vTCH[2], rGU)
            add(tdma)
            if c.c_rest == -1: add(self.rest)
            add(srd(*sizes[0])[2:])
            for q in sizes[1:3] + sizes[4:]: add(srd(*q))
        add(valu("v_mov_b32", vFV, 1))
        sa, sb = (8 * 3072, 8 * 3584) if B else (8 * 3584, 16 * 3584)
        for i in (1, 2, 3):
            add(salu("s_mov_b32", sOA[i], i * (sa - 1024)), salu("s_mov_b32", sOB[i], i * (sb - 1024)))
        add(self.dma_setup(0))
        if B:
            for _ in range(c.w_0): add(self.dma_slab())
            add(valu("v_lshrrev_b32", t2, 4, vLane), valu("v_xor_b32", t3, t2, t1), valu("v_lshlrev_b32", t3, 4, t3), valu("v_and_b32", vST, 15, vLane),
                valu("v_lshl_add_u32", t3, vST, 7, t3), salu("s_add_u32", sT[1], sWQ, XL), valu("v_add_u32", vXR, sT[1], t3), valu("v_xor_b32", vXL, 64, vXR),
                salu("s_lshr_b32", sT[0], sWG, 1), salu("s_and_b32", sT[3], sWG, 1),
                salu("s_lshl_b32", sT[1], sT[0], 15), salu("s_lshl_b32", sT[2], sW, 13), salu("s_add_u32", sT[1], sT[1], sT[2]), salu("s_lshl_b32", sT[2], sT[3], 8),
                salu("s_add_u32", sT[1], sT[1], sT[2]), salu("s_add_u32", sT[1], sT[1], XN_OFF),
                valu("v_lshlrev_b32", t3, 4, vST), valu("v_lshl_add_u32", t3, t2, 9, t3), valu("v_add_u32", vXS, sT[1], t3),
                valu("v_lshlrev_b32", vST, 5, vST), valu("v_add_u32", vST, SPARE, vST),
                salu("s_lshl_b32", sT[2], sW, 2), valu("v_lshrrev_b32", t3, 5, vLane), valu("v_lshl_add_u32", t3, t3, 4, sT[2]), valu("v_add_u32", vRS, t3, vST),
                salu("s_lshl_b32", sT[1], sT[0], 7), salu("s_lshl_b32", sT[2], sT[3], 2), salu("s_add_u32", sT[1], sT[1], sT[2]), salu("s_add_u32", sT[1], sT[1], FLAGA_OFF),
                salu("s_cmp_eq_u32", None, sW, 0), salu("s_cselect_b32", sT[1], sT[1], OOB),
                valu("v_mov_b32", t2, OOB), valu("v_mov_b32", t3, sT[1]), valu("v_cmp_eq_u32", "vcc", 0, vLane), valu("v_cndmask_b32", vF0, t2, t3, "vcc"),
                valu("v_mov_b32", one, "0x3f803f80"), valu("v_mov_b32", sm, 0), valu("v_mov_b32", sq, 0), salu("s_mov_b32", sXS, 4096))
        add(salu("s_lshl_b32", sT[1], sRB, 2), salu("s_add_u32", sT[1], sT[1], sW), salu("s_lshl_b32", sT[2], sT[1], 7), salu("s_add_u32", sT[2], sT[2], FLAGA_OFF),
            valu("v_and_b32", vPOLL, 1, vLane), valu("v_lshlrev_b32", vPOLL, 2, vPOLL), valu("v_add_u32", vP0, sT[2], vPOLL),
            salu("s_lshl_b32", sT[1], sT[1], 15), salu("s_add_u32", sT[1], sT[1], XN_OFF), valu("v_lshl_add_u32", vXN, vLane, 4, sT[1]),
            salu("s_cmp_eq_u32", None, sW, 0), salu("s_cselect_b32", sT[1], 0, OOB), salu("s_cselect_b32", sT[3], 0 if c.nodbg else 1, 0),
            valu("v_lshl_add_u32", vDB, t1, 2, sT[1]), valu("v_mov_b32", vTLB, sT[3]))
        add(self.dma_setup(1), self.dma_setup(2))
        add(self.w2_setup())
        if c.setup_early or not B: self.misc_setup()
        add(self.stamp(65 + 256))
        if B:
            add(wait(vm="x"))
            add([ds_read("ds_read_b128", xr.sub(4 * i, 4), vXL if i & 1 else vXR, 2048 * (i >> 1)) for i in range(4)])
            add(self.stamp(64 + 256))
            for r in range(16): add(valu("v_dot2c_f32_bf16", sm, xr[r], one, rmw=True), valu("v_dot2c_f32_bf16", sq, xr[r], xr[r], rmw=True))
            add([valu("v_lshlrev_b32", lo[i], 16, xr[i]) for i in range(3)])
            add(valu("v_permlane32_swap_b32", sm, sq, rmw=True, wr2=sq), valu("v_add_f32", sm, sm, sq), valu("v_mov_b32", sq, sm))
            add([valu("v_lshlrev_b32", lo[i], 16, xr[i]) for i in (3, 4)])
            add(valu("v_permlane16_swap_b32", sm, sq, rmw=True, wr2=sq), valu("v_add_f32", sm, sm, sq))
            add(ds_write("ds_write_b32", vRS, sm, tag="st"))
            add(wait(vm="reset"), buf_store("buffer_store_dword", vFV, vSG, rDBG, flags="sc1"))
            add([valu("v_lshlrev_b32", lo[i], 16, xr[i]) for i in range(5, 16)])
            add(wait(lg="st"), self.stamp(256), barrier(), self.stamp(256))
            add([ds_read("ds_read_b128", part.sub(4 * i, 4), vST, 16 * i) for i in range(2)])
            add([valu("v_and_b32", xr[i], "0xffff0000", xr[i]) for i in range(16)])
            add(valu("v_pk_add_f32", part.sub(0, 2), part.sub(0, 2), part.sub(2, 2)), valu("v_pk_add_f32", part.sub(4, 2), part.sub(4, 2), part.sub(6, 2)),
                valu("v_add_f32", sm, part[0], part[1]), valu("v_add_f32", sq, part[4], part[5]),
                valu("v_mul_f32", sm, f32(1 / 512), sm), valu("v_mul_f32", sq, f32(1 / 512), sq),
                valu("v_fma_f32", sq, f"-{sm}", sm, sq), valu("v_max_f32", sq, 0, sq),
                valu("v_cvt_pk_bf16_f32", sq, sq, sm),
                valu("v_and_b32", sm, "0xffff0000", sq), valu("v_lshlrev_b32", sq, 16, sq),
                valu("v_add_f32", sq, f32(1e-5), sq), valu("v_cvt_pk_bf16_f32", sq, sq, sq), valu("v_lshlrev_b32", sq, 16, sq),
                valu("v_sqrt_f32", sq, sq), valu("v_cvt_pk_bf16_f32", sq, sq, sq), valu("v_lshlrev_b32", sq, 16, sq),
                valu("v_rcp_f32", rb[1], sq), valu("v_mul_f32", rb[0], f"-{sm}", rb[1]))
            for h in range(4):
                for r in (lo, xr):
                    add([valu("v_pk_fma_f32", r.sub(i, 2), r.sub(i, 2), rb, rb, extra="op_sel:[0,1,0] op_sel_hi:[1,1,0]") for i in (4 * h, 4 * h + 2)])
                add([valu("v_cvt_pk_bf16_f32", xr[i], lo[i], xr[i]) for i in range(4 * h, 4 * h + 4)])
                add(buf_store("buffer_store_dwordx4", xr.sub(4 * h, 4), vXS, rWS, sXS if h >> 1 else 0, 2048 * (h & 1), flags="sc1"))
            add(self.poll_issue(vDB, rDBG))
            add(self.stamp(64))
            for _ in range(c.w_a): add(self.dma_slab())
            if c.b_rest is not None:
                add(salu("s_lshl1_add_u32", sT[0], sRB, sJ), salu("s_lshl2_add_u32", sT[1], sT[0], sW), salu("s_mul_i32", sT[1], sT[1], 4 * 3072), salu("s_lshl_b32", sT[2], sGQ, 8),
                    salu("s_add_u32", sT[1], sT[1], sT[2]), valu("v_and_b32", t2, 3, t0), valu("v_mul_u32_u24", t2, 3072, t2), valu("v_and_b32", t3, 1, t1),
                    valu("v_lshl_add_u32", t2, t3, 7, t2), valu("v_add_u32", vTCH[3], sT[1], t2),
                    salu("s_and_b32", sT[2], sW, 1), salu("s_lshl1_add_u32", sT[1], sT[0], sT[2]), salu("s_mul_i32", sT[1], sT[1], 8 * 3584),
                    salu("s_mul_i32", sT[2], sGQ, 7 * 128), salu("s_add_u32", sT[1], sT[1], sT[2]), salu("s_add_u32", sT[1], sT[1], 256),
                    valu("v_mul_u32_u24", t2, 3584, t0), valu("v_add_u32", t2, sT[1], t2), valu("v_and_b32", t3, 3, t1), valu("v_lshl_add_u32", vTCH[2], t3, 7, t2))
                self.rest = self.touch(vTCH[3], rQKV) + self.touch(vTCH[2], rGU)
            if not c.setup_early: self.misc_setup()
            pre, rd, self.ts = tile_store()
            add(pre)
            add(self.poll_check(vDB, rDBG, vTLB))
            add(self.stamp(64))
            add(barrier(), self.stamp(64), buf_store("buffer_store_dword", vFV, vF0, rWS, flags="sc1"))
            wo = [salu("s_lshr_b32", sT[1], sWQ, 2), set_m0(sT[1], TL, "tl"), buf_dma(vTL, rD, tag="tl")]
            if c.wo_late == 0: add(wo)
            for _ in range(c.w_b): add(self.dma_slab())
        else:
            pre, rd, self.ts = tile_store()
            add(pre)
            add(self.stamp(64 + 256), self.dma_slab(), self.stamp(256), wait(vm="w0"), self.stamp(64 + 256))
            add(buf_store("buffer_store_dwordx4", p6, vPS, rWS, flags="sc1"))
            if c.ts_pos < 0: add(self.ts); self.ts = []
            add(self.poll_issue(vDB, rDBG))
            for _ in range(c.w_c - 1): add(self.dma_slab())
            if c.c_rest == -2: add(self.rest)
            add(self.poll_check(vDB, rDBG, vTLB), self.stamp(64), barrier(), self.stamp(64))
        add(self.poll_issue(vP0, rWS), wait_regs(vPV), self.stamp(64), self.poll_check(vP0, rWS, 1))
        add(self.stamp(65 + 256))
        self.nx = 0
        for _ in range(c.nx0 // 2): add(self.x_load())
        add(wait(vm=["w0", "tl"]), barrier(), rd)
        F = self.frag_list()
        for k in range(c.LA):
            add(self.frag_reads(k, F[k]))
            if k % 2 and self.nx < c.nx0: add(self.x_load())
        while self.nx < c.nx0: add(self.x_load())
    def x_load(self):
        j = self.nx; self.nx += 1
        o = []
        if j % 4 == 0: o += [salu("s_mov_b32", sXS, j * 1024)]
        return o + [buf_load("buffer_load_dwordx4", X.sub(4 * j, 4), vXN, rWS, 0 if self.cfg.dbg & 8 else sXS, (j % 4) * 1024, flags="sc1")]

    def misc_setup(self):
        add = self.add
        t0, t1, t2, t3 = T[0], T[1], T[2], T[3]
        add(valu("v_and_b32", t0, 3, vLane), valu("v_bfe_u32", t1, vLane, 2, 2), valu("v_bfe_u32", t2, vLane, 4, 1), valu("v_lshrrev_b32", t3, 5, vLane),
            valu("v_lshl_add_u32", vTR0, t3, 3, t1), valu("v_lshlrev_b32", vTR0, 7, vTR0),
            valu("v_lshrrev_b32", t1, 1, t1), valu("v_lshl_add_u32", vTR0, t1, 6, vTR0),
            valu("v_and_b32", t1, 1, t0), valu("v_lshl_add_u32", vTR0, t1, 5, vTR0),
            valu("v_lshrrev_b32", t0, 1, t0), valu("v_lshl_add_u32", t0, t2, 1, t0), valu("v_lshl_add_u32", vTR0, t0, 3, vTR0),
            valu("v_xor_b32", vTR1, 64, vTR0))
        self.win = [0, 0, 0]
        for ch in range(3):
            if not (self.B and ch == 0): add(self.set_hu(ch))
        if self.B: add(self.att_setup())
        else: add(valu("v_bfe_u32", t0, vTR0, 7, 4), valu("v_and_b32", t1, 63, vTR0), valu("v_lshl_add_u32", vVTR, t0, 6, t1))
        add(salu("s_lshl_b32", sT[1], sRB, 2), salu("s_add_u32", sT[1], sT[1], sW), salu("s_mul_i32", sT[2], sT[1], HSTR),
            valu("v_lshl_add_u32", vHST, vLane, 4, sT[2]))
        if self.cfg.dbg & 1: add(valu("v_mov_b32", vHST, OOB))
        add(salu("s_lshr_b32", sT[1], sT[1], 1), salu("s_lshl_b32", sT[1], sT[1], 2), salu("s_add_u32", sT[1], sT[1], sGQ), salu("s_lshl_b32", sT[1], sT[1], 10),
            salu("s_and_b32", sT[2], sW, 1), salu("s_lshl_b32", sT[3], sJ, 1), salu("s_add_u32", sT[2], sT[2], sT[3]), salu("s_lshl_b32", sT[2], sT[2], 2),
            salu("s_add_u32", sT[1], sT[1], sT[2]), salu("s_add_u32", sT[1], sT[1], FLAG_OFF),
            valu("v_mov_b32", t0, OOB), valu("v_mov_b32", t1, sT[1]), valu("v_cmp_eq_u32", "vcc", 0, vLane), valu("v_cndmask_b32", vFLG, t0, t1, "vcc"))
        add(salu("s_lshl_b32", sT[1], sTB2, 1), salu("s_lshr_b32", sT[2], sW, 1), salu("s_add_u32", sT[1], sT[1], sT[2]), salu("s_mul_i32", sP2h, sT[1], HSTR),
            salu("s_xor_b32", sT[2], sT[1], 1), salu("s_mul_i32", sHS, sT[2], HSTR),
            salu("s_lshl_b32", sT[1], sT[1], 5),
            salu("s_and_b32", sT[2], sT[1], 1023), salu("s_lshl_b32", sT[2], sT[2], 11), salu("s_lshr_b32", sT[1], sT[1], 10), salu("s_lshl_b32", sT[1], sT[1], 10),
            salu("s_add_u32", sT[1], sT[1], sT[2]), salu("s_lshl_b32", sT[2], sCB2, 7), salu("s_add_u32", sT[1], sT[1], sT[2]),
            salu("s_and_b32", sT[2], sW, 1), salu("s_lshl_b32", sT[2], sT[2], 6), salu("s_add_u32", sP2x, sT[1], sT[2]),
            salu("s_lshl_b32", sT[1], sTB2, 2), salu("s_add_u32", sT[1], sT[1], sW), salu("s_lshl_b32", sT[1], sT[1], 10), salu("s_add_u32", sP2f, sT[1], FLAG_OFF))
        add(salu("s_mul_i32", sT[1], sCB2, 72 * 4096), salu("s_add_u32", sT[1], sT[1], WT_OFF), salu("s_lshl_b32", sT[2], sT[2], 4),
            salu("s_add_u32", sT[3], sT[1], sT[2]), valu("v_lshl_add_u32", vW[0], vLane, 4, sT[3]),
            salu("s_sub_u32", sT[3], sT[1], sT[2]), valu("v_lshl_add_u32", vW[1], vLane, 4, sT[3]), valu("v_lshl_add_u32", vWB, vLane, 4, sWQ),
            salu("s_lshl_b32", sT[1], sCB2, 8), salu("s_add_u32", sT[1], sT[1], FLAGA_OFF + 96 * 128), salu("s_lshl_b32", sT[2], sGQ, 9), salu("s_add_u32", sT[2], sT[2], FLAGA_OFF + 64 * 128),
            salu("s_lshr_b32", sT[3], sCB2, 1), salu("s_xor_b32", sT[3], sT[3], self.cfg.tx), salu("s_lshl_b32", sT[3], sT[3], 9), salu("s_add_u32", sT[3], sT[3], FLAGA_OFF + 80 * 128),
            salu("s_cmp_eq_u32", None, sW, 0), salu("s_cselect_b32", sT[1], sT[1], OOB), salu("s_cselect_b32", sT[2], sT[2], OOB), salu("s_cselect_b32", sT[3], sT[3], OOB),
            salu("s_cselect_b32", sW0, 1, 0),
            valu("v_and_b32", t0, 24, vLane), valu("v_lshlrev_b32", t0, 2, t0), valu("v_and_or_b32", t0, vLane, 7, t0), valu("v_and_b32", t1, 63, t0),
            valu("v_lshl_add_u32", t1, t1, 2, sT[1]), valu("v_lshl_add_u32", vP2, t0, 2, sT[3]),
            valu("v_cmp_lt_u32", "vcc", 31, vLane), valu("v_cndmask_b32", vP2, vP2, t1, "vcc"))
        if not self.B: add(valu("v_lshl_add_u32", vP6, t0, 2, sT[2]))
        add(salu("s_xor_b32", sU[0], sTB2, sCB2), salu("s_and_b32", sU[0], sU[0], 3 if self.cfg.rot else 0), salu("s_lshl_b32", sU[0], sU[0], 11),
            [salu("s_xor_b32", sU[t], sU[0], t << 11) for t in (1, 2, 3)], [salu("s_and_b32", sUh[t], sU[t], 1 << 11) for t in (0, 1)])

    def chunk_of(self, n): return 0 if n < 8 else (1 if n < 12 else 2)
    def dma_setup(self, ch):
        t0, t1 = T[0], T[1]
        o = []
        B = self.B
        half = (not B) and ch == 1
        stride = 3072 if (B and ch < 2) else 3584
        if half:
            return [salu("s_lshl_b32", sT[1], sGQ, 1), salu("s_add_u32", sT[1], sT[1], sJ), salu("s_lshl_b32", sT[1], sT[1], 16), salu("s_add_u32", sT[1], sT[1], sWQ),
                    salu("s_add_u32", sT[1], sT[1], P6_OFF - 2 * 65536), valu("v_lshl_add_u32", vDMA1, vLane, 4, sT[1])]
        else:
            o += [valu("v_lshrrev_b32", t0, 2, vLane), valu("v_and_b32", t0, 4, t0), valu("v_and_b32", t1, 7, vLane), valu("v_xor_b32", t1, t0, t1),
                  valu("v_lshrrev_b32", t0, 3, vLane)]
        o += [valu("v_mul_u32_u24", t0, stride, t0), valu("v_lshl_add_u32", t0, t1, 4, t0)]
        a, b = sT[1], sT[2]
        if B and ch == 0:
            o += [salu("s_lshl_b32", a, sGQ, 1), salu("s_add_u32", a, a, sJ), salu("s_lshl_b32", a, a, 7), salu("s_lshr_b32", b, sW, 1),
                  salu("s_add_u32", b, b, 1), salu("s_lshl_b32", b, b, 10), salu("s_add_u32", a, a, b), salu("s_and_b32", b, sW, 1),
                  salu("s_mul_i32", b, b, 32 * stride), salu("s_add_u32", a, a, b)]
        elif B and ch == 1:
            o += [salu("s_lshl_b32", a, sGQ, 1), salu("s_add_u32", a, a, sJ), salu("s_lshl_b32", a, a, 7), salu("s_mul_i32", b, sW, 32 * stride),
                  salu("s_add_u32", a, a, b)]
        else:
            if half: o += [salu("s_lshl_b32", b, sJ, 6), salu("s_add_u32", b, b, 6 * 128 - 128)]
            else: o += [salu("s_lshl_b32", b, sJ, 7), salu("s_sub_u32" if ch == 0 else "s_add_u32", b, b, 256)]
            o += [salu("s_mul_i32", a, sGQ, 7 * 128), salu("s_add_u32", a, a, b), salu("s_and_b32", b, sW, 1),
                  salu("s_mul_i32", b, b, (64 if half else 32) * stride), salu("s_add_u32", a, a, b)]
        o += [valu("v_add_u32", (vDMA0, vDMA1, vDMA2)[ch], a, t0)]
        return o
    def dma_slab(self):
        n = self.nslab; self.nslab += 1
        ch = self.chunk_of(n)
        B = self.B
        vd = (vDMA0, vDMA1, vDMA2)[ch]
        srd = rQKV if (B and ch < 2) else rGU
        so = (sOA if ch < 2 else sOB) if B else (sOB if ch == 1 else sOA)
        stride = 3072 if (B and ch < 2) else 3584
        o = [set_m0(sWQ, slab_slot(n) * SLOT, f"w{n}")]
        if ch == 1 and not B:
            if n > 8: o += [valu("v_add_u32", vd, 16384, vd)]
            return o + [buf_dma(vd, rWS, 0, i * 1024, flags="sc1", tag=f"w{n}") for i in range(4)]
        if n not in (0, 8, 12) and not self.cfg.dbg & 16: o += [valu("v_add_u32", vd, (128 if ch == 1 else 64) * stride, vd)]
        o += [buf_dma(vd, srd, so[i], i * 1024, flags="sc1" if self.cfg.dbg & 16 else "", tag=f"w{n}") for i in range(4)]
        return o
    def frag_list(self):
        L = []
        for n in range(20):
            ch = self.chunk_of(n)
            base = slab_slot(n) * SLOT
            if ch != 1:
                n0 = 0 if ch == 0 else 12
                for jj in range(4):
                    for blk in range(4):
                        L.append((ACC1.sub(16 * blk, 16), 4 * (n - n0) + jj, n, base + (blk & 1) * 8192 + jj * 2048, blk >> 1, 512))
            else:
                for jj in range(8):
                    for blk in range(2):
                        if self.B: L.append((ACC2.sub(16 * blk, 16), 8 * (n - 8) + jj, n, base + jj * 2048, blk, 512))
                        else: L.append((ACC2.sub(16 * blk, 16), 8 * (n - 8) + jj, n, base + blk * 8192 + jj * 1024, 2, 256))
        k0 = 320 - 16 * self.cfg.nspl
        L[k0:] = [f for f in L[k0:] if f[4] == 0] + [f for f in L[k0:] if f[4] == 1]
        return L
    def window(self, wins, which, reg, off, span):
        o = []
        if not (wins[which] <= off and off + span <= wins[which] + 65536):
            w = off // SLOT * SLOT
            d = w - wins[which]
            o += [valu("v_add_u32" if d > 0 else "v_subrev_u32", reg, abs(d), reg)]
            wins[which] = w
        return o, off - wins[which]
    def frag_reads(self, k, f):
        acc, step, n, off, which, ustep = f
        b = (vTR0, vTR1, vVTR)[which]
        o, imm = self.window(self.win, which, b, off, 1024)
        dst = WF.sub(4 * (k % self.cfg.NB), 4)
        o += [ds_read("ds_read_b64_tr_b16", dst.sub(0, 2), b, imm, tag=f"f{k}"), ds_read("ds_read_b64_tr_b16", dst.sub(2, 2), b, imm + ustep, tag=f"f{k}")]
        return o
    def ffn_epi(self, G, U, ch, kst, tag, pk=False):
        o = []
        for b in range(4):
            t = [T[4 + i] for i in range(4)]
            g = [G[4 * b + i] for i in range(4)]; u = [U[4 * b + i] for i in range(4)]
            if pk:
                t2 = [T.sub(4, 2), T.sub(6, 2)]; g2 = [G.sub(4 * b, 2), G.sub(4 * b + 2, 2)]; u2 = [U.sub(4 * b, 2), U.sub(4 * b + 2, 2)]
                o += [valu("v_pk_mul_f32", t2[i], g2[i], T.sub(0, 2)) for i in range(2)]
                o += [valu("v_exp_f32", t[i], t[i]) for i in range(4)]
                o += [valu("v_pk_mul_f32", u2[i], g2[i], u2[i]) for i in range(2)]
                o += [valu("v_pk_add_f32", t2[i], t2[i], T.sub(2, 2)) for i in range(2)]
                o += [valu("v_rcp_f32", t[i], t[i]) for i in range(4)]
                o += [valu("v_pk_mul_f32", u2[i], u2[i], t2[i]) for i in range(2)]
            else:
                o += [valu("v_mul_f32", t[i], f32(-LOG2E), g[i]) for i in range(4)]
                for i in range(4): o += [valu("v_exp_f32", t[i], t[i]), valu("v_mul_f32", u[i], g[i], u[i])]
                o += [valu("v_add_f32", t[i], "1.0", t[i]) for i in range(4)]
                o += [valu("v_rcp_f32", t[i], t[i]) for i in range(4)]
                o += [valu("v_mul_f32", u[i], u[i], t[i]) for i in range(4)]
            o += [valu("v_cvt_pk_bf16_f32", G[2 * b + i], u[2 * i], u[2 * i + 1]) for i in range(2)]
            if b & 1: o += [buf_store("buffer_store_dwordx4", G.sub(2 * (b - 1), 4), vHST, rWS, sHu[ch], kst + (b >> 1) * 1024, flags=self.cfg.hflags, tag=tag)]
        return o
    def set_hu(self, ch):
        a = sT[1]
        if self.B and ch == 1:
            return [salu("s_lshl_b32", a, sGQ, 1), salu("s_add_u32", a, a, sJ), salu("s_lshl_b32", a, a, 12), salu("s_add_u32", sHu[ch], a, 112 * 1024)]
        o = [salu("s_mul_i32", sHu[ch], sGQ, 28 * 1024)]
        if ch == 1: o += [salu("s_lshl_b32", a, sJ, 11), salu("s_add_u32", a, a, 6 * 4096 - 4096)]
        else: o += [salu("s_lshl_b32", a, sJ, 12), salu("s_sub_u32" if ch == 0 else "s_add_u32", a, a, 8192)]
        return o + [salu("s_add_u32", sHu[ch], sHu[ch], a)]

    def phase1(self):
        c, add, B = self.cfg, self.add, self.B
        F = self.frag_list()
        NM = len(F)
        gaps = [[] for _ in range(NM)]
        tail = [[] for _ in range(NM)]
        load = [0] * NM
        def put(k, ins, last=False):
            (tail if last else gaps)[k] += ins
            load[k] += sum(cyc(i) for i in ins)
        def spread(ins, k0, k1):
            tot = sum(cyc(i) for i in ins)
            lo, hi = 0.0, 1000.0
            for _ in range(40):
                mid = (lo + hi) / 2
                if sum(max(0, mid - load[k]) for k in range(k0, k1)) >= tot: hi = mid
                else: lo = mid
            cap, acc = [], 0.0
            for k in range(k0, k1):
                acc += max(0, hi - load[k]); cap.append(acc)
            k, used = 0, 0.0
            for i in ins:
                while k < len(cap) - 1 and used + cyc(i) / 2 > cap[k] and i.kind != "branch": k += 1
                put(k0 + k, [i]); used += cyc(i)
        bar_gap = {n: 16 * n - c.LA - 1 for n in range(1, 20)}
        bar_gap[0], bar_gap[20] = -1, NM
        self.bar_extra = {n: [] for n in range(1, 21)}
        need = {n: max(f[2] for f in F[:min(NM, bar_gap[n + 1] + c.LA + 1)]) for n in range(20)}
        lastx = lambda i: max(k for k, f in enumerate(F) if f[1] // 4 == i)
        plan = dict((int(p.split(":")[0]), p.split(":")[1].split(".")) for p in (c.planB if B else c.planC).split(",") if p)
        self.pool = list(ABUF) + VBUF[:5] + ([] if B else VBUF[5:7])
        put(bar_gap[c.pw_per] - 1 - c.pw_lead, self.poll_issue(vP2, rWS))
        put(bar_gap[c.pw_per] - 1, self.poll_check(vP2, rWS, sW0))
        if not B:
            assert bar_gap[c.p6_per] <= bar_gap[c.pw_per] - 1 - c.pw_lead
            put(bar_gap[c.p6_per] - 1 - c.pw_lead, self.poll_issue(vP6, rWS))
            put(bar_gap[c.p6_per] - 1, self.poll_check(vP6, rWS, sW0))
        put(bar_gap[c.f2_bar] + 1, [buf_store("buffer_store_dword", vFV, vF2, rWS, 0, 2048, flags="sc1")])
        for n in range(20):
            k = bar_gap[n]
            if n: load[k] += 14
            if n == 19 and B: self.pool += VBUF[5:]
            if n == 9 and not B: self.pool += VBUF[7:]
            ops = list(plan.get(n, []))
            ins = []
            while ops and ops[0] in ("r", "H"):
                ins += self.plan_op(ops.pop(0), n)
            w = []
            nw = 0
            while self.nslab < 20 and self.nslab <= n + c.NS - 2 and (B or self.nslab < 8 or n >= c.p6_per) and (self.nslab <= need[min(19, n + 2)] or nw + ops.count("w") < 1 or "w" in ops):
                if nw and "w" in ops: ops.remove("w")
                w += self.dma_slab(); nw += 1
            ops = [x for x in ops if x != "w"]
            assert self.nslab > need[min(19, n + 2)], n
            if n == max(c.ts_pos, 0): ins += self.ts
            while c.xfree and self.xf_n < 5 and lastx(self.xf_n) <= k: self.pool += [A(16 * self.xf_n, 16)]; self.xf_n += 1
            nxl = min(32 - self.nx, c.xrate if n else max(1, c.xrate // 2))
            for i in w:
                if i.kind == "dma" and nxl: ins += self.x_load(); nxl -= 1
                ins.append(i)
            for _ in range(nxl): ins += self.x_load()
            assert self.nx >= min(32, (bar_gap[n + 1] + 16) // 4 + 1), n
            if n == (c.b_rest if B else c.c_rest): ins += self.rest
            for op in ops: ins += self.plan_op(op, n)
            if ins: spread(ins, k + 1, bar_gap[n + 1])
        if not B:
            ins = self.ffn_epi(ACC1.sub(0, 16), ACC1.sub(16, 16), 0, 0, "st1") + self.ffn_epi(ACC1.sub(32, 16), ACC1.sub(48, 16), 0, 2048, "st1")
            spread(ins, 129, 191)
            put(c.g_f1c, self.flag(L_P1, "st1"))
            spread(self.ffn_epi(ACC2.sub(0, 16), ACC2.sub(16, 16), 1, 0, "st2"), 194, c.h2_end)
            put(c.g_f2c, self.flag(L_HALF, "st2"))
        else:
            self.attention(put, spread, bar_gap, load)
        if c.nspl:
            k0 = max(320 - 8 * c.nspl + 2, self.att_end + 7 if B else 0)
            spread(self.ffn_epi(ACC1.sub(0, 16), ACC1.sub(16, 16), 2, 0, "st3"), k0, c.e0_end)
        o = [valu("v_lshl_add_u32", vH[0], vLane, 4, sP2h), valu("v_lshl_add_u32", vH[1], vLane, 4, sHS),
             valu("v_and_b32", vPOLL, 7, vLane), valu("v_lshrrev_b32", vTHR, 2, vPOLL), valu("v_lshl_add_u32", vPOLL, vPOLL, 2, sP2f),
             valu("v_and_b32", vXO, 31, vLane), valu("v_lshlrev_b32", vXO, 11, vXO), valu("v_and_or_b32", vXO, vLane, 32, vXO), valu("v_add_u32", vXO, sP2x, vXO)]
        spread(o, *((176, 192) if B else (200, c.g_pa)))
        put(c.g_pa, self.poll_issue(vPOLL, rWS, L_P1))
        assert c.g_pa < bar_gap[c.pa_per] - 1
        put(bar_gap[c.pa_per] - 1, self.poll_check(vPOLL, rWS, vTHR, L_P1))
        put(c.g_pa2, self.poll_issue(vPOLL, rWS, L_HALF))
        if c.pa2_epi < 0: put(319, self.poll_check(vPOLL, rWS, vTHR, L_HALF))
        spread([valu("v_mov_b32", T[0], f32(-LOG2E)), valu("v_mov_b32", T[1], f32(-LOG2E)), valu("v_mov_b32", T[2], "1.0"), valu("v_mov_b32", T[3], "1.0")], 312, 320)
        inv_bar = {v: n for n, v in bar_gap.items() if 1 <= n <= 19}
        for k in range(NM):
            acc, step, n, off, which, us = F[k]
            if k % 2 == 0: add(wait(lg=[f"f{i}" for i in range(k, k + 2)]))
            add(mfma(32, acc, WF.sub(4 * (k % c.NB), 4), X.sub(4 * step, 4), 0 if step == 0 else acc))
            if k == 0: add(self.stamp(67))
            if k + c.LA < NM: add(self.frag_reads(k + c.LA, F[k + c.LA]))
            add(gaps[k]); add(tail[k])
            if k in inv_bar:
                n = inv_bar[k]
                if n == 19 or need[n] > need[n - 1]: add(wait(vm=[f"w{need[n]}"] + (["ts"] if n == c.f2_bar else []), lg=self.bar_extra[n] or None), barrier())
            if k in (127, 191): add(self.stamp())
            if k in (31, 63): add(self.stamp(64))
            if k % 32 == 31 and 31 < k < 319: add(self.stamp(2))
            if k in c.sg: add(self.stamp(32))
        add(self.stamp(131))
        self.load = load
    def plan_op(self, op, n):
        if op == "l":
            assert n >= self.cfg.pw_per
            return self.w2_load()
        if op == "h":
            assert n >= self.cfg.pa_per and self.h_n < 4
            return self.h_load()
        if op == "P": return self.poll_issue(vPOLLH, rWS)
        if op == "H":
            self.halo_period = n
            i = salu("s_mov_b32", "m0", sHM0); i.tag = "halo"
            return self.poll_check(vPOLLH, rWS, sTHR) + [i] + [buf_dma((vHLD, vHLD2)[q], rWS, 0, 1024 * q, flags="sc1", tag="halo") for q in range(2)]
        slot = int(op[1:])
        if slot < self.cfg.NS: assert n >= 2 + max(x for x in range(20) if slab_slot(x) == slot)
        if self.B and slot >= 7: assert n >= 19
        assert n >= self.cfg.pw_per
        return self.w2_dma(slot)

    def att_setup(self):
        t0, t1 = T[0], T[1]
        o = [valu("v_and_b32", t0, 31, vLane), valu("v_mul_u32_u24", t0, RP, t0), valu("v_and_or_b32", t1, vLane, 32, 0), valu("v_add_u32", t0, t0, t1),
             salu("s_mul_i32", sT[0], sW, 32 * RP), salu("s_add_u32", sT[0], sT[0], SCR), valu("v_add_u32", vSCR, sT[0], t0),
             valu("v_and_b32", t0, 3, vLane), valu("v_bfe_u32", vVTR, vLane, 2, 2), valu("v_lshl_add_u32", t0, t0, 2, vVTR), valu("v_and_or_b32", t0, vLane, 16, t0),
             valu("v_mul_u32_u24", t0, RP, t0), valu("v_add3_u32", vVTR, sT[0], t0, t1),
             salu("s_mov_b32", sT[0], SCR + 128 * RP + 128), valu("v_lshl_add_u32", vHRB, vLane, 4, sT[0])]
        o += [salu("s_lshl_b32", sT[1], sRB, 3), salu("s_lshl_b32", sT[2], sGQ, 1), salu("s_add_u32", sT[1], sT[1], sT[2]), salu("s_add_u32", sT[1], sT[1], sJ),
              salu("s_lshl_b32", sC1, sT[1], 11), salu("s_add_u32", sC1, sC1, HALO_OFF),
              salu("s_cmp_eq_u32", None, sW, 3), salu("s_cselect_b32", sT[1], sC1, OOB), valu("v_lshl_add_u32", vHALO, vLane, 4, sT[1]),
              salu("s_and_b32", sT[1], sRB, 7), salu("s_or_b32", sT[2], sT[1], sW), salu("s_cselect_b32", sM1[0], 0, "0xf"), salu("s_cselect_b32", sM2[0], 0, "0xff"),
              salu("s_mov_b32", sM1[1], sM1[0]), salu("s_mov_b32", sM2[1], sM2[0]), salu("s_mov_b32", sHM0, SPARE),
              salu("s_cmp_eq_u32", None, sW, 0), salu("s_cselect_b32", sHM0, SCR + 128, sHM0), salu("s_cselect_b32", sT[1], sT[1], 0),
              salu("s_cmp_lg_u32", None, sT[1], 0), salu("s_cselect_b32", sTHR, 1, 0),
              salu("s_sub_u32", sT[2], sC1, 8 * 2048), salu("s_cmp_lg_u32", None, sTHR, 0), salu("s_cselect_b32", sT[2], sT[2], OOB),
              valu("v_lshl_add_u32", vHLD, vLane, 4, sT[2]), valu("v_mov_b32", vHLD2, vHLD)]
        if self.cfg.kv_mode == 4:
            for q, dst in enumerate((vHLD, vHLD2)):
                o += [valu("v_add_u32", t0, 8 + 64 * q, vLane), valu("v_mul_u32_u24", t1, 241, t0), valu("v_lshrrev_b32", t1, 12, t1), valu("v_mul_u32_u24", dst, 17, t1),
                      valu("v_sub_u32", t0, t0, dst), valu("v_min_u32", t0, 15, t0), valu("v_lshlrev_b32", t1, 4, t1), valu("v_lshl_add_u32", t0, t0, 7, t1),
                      valu("v_add_u32", dst, sT[2], t0)]
                if q: o += [valu("v_subrev_u32", dst, 1024, dst)]
            o += [salu("s_sub_u32", sT[1], sC1, 24 * 16), salu("s_cmp_eq_u32", None, sW, 3), salu("s_cselect_b32", sT[1], sT[1], OOB),
                  valu("v_and_b32", t0, 31, vLane), valu("v_lshrrev_b32", t1, 5, vLane), valu("v_lshlrev_b32", t1, 8, t1), valu("v_lshl_add_u32", t1, t0, 4, t1),
                  valu("v_add_u32", t1, sT[1], t1), valu("v_cmp_lt_u32", "vcc", 23, t0), valu("v_mov_b32", t0, OOB), valu("v_cndmask_b32", vHALO, t0, t1, "vcc")]
        o += [
              salu("s_lshl_b32", sT[1], sRB, 3), salu("s_add_u32", sT[1], sT[1], sGQ), salu("s_lshl_b32", sT[1], sT[1], 10), salu("s_lshl_b32", sT[2], sJ, 3),
              salu("s_add_u32", sT[1], sT[1], sT[2]), salu("s_add_u32", sT[1], sT[1], FLAG_OFF - 4096 + 4), salu("s_cmp_lg_u32", None, sTHR, 0),
              salu("s_cselect_b32", sT[1], sT[1], OOB), valu("v_mov_b32", vPOLLH, sT[1]), salu("s_mov_b32", sCS, f32(0.25 * LOG2E))]
        o += [valu("v_and_b32", t0, 3, vLane), valu("v_mov_b32", t1, "0xffff"),
              valu("v_cmp_le_u32", sJ1, 1, t0), valu("v_cmp_le_u32", sJ2, 2, t0), valu("v_cmp_le_u32", sJ3, 3, t0),
              valu("v_cndmask_b32", vA01, t1, -1, sJ1), valu("v_cndmask_b32", vA23, 0, t1, sJ2), valu("v_cndmask_b32", vA23, vA23, -1, sJ3)]
        return o
    def attention(self, put, spread, bar_gap, load):
        c = self.cfg
        units = []
        if c.kv_mode == 4:
            PK = V(176, 32)
            o, wr = [], []
            for blk in range(4):
                a = ACC1.sub(16 * blk, 16)
                for dh in range(2):
                    d = PK.sub(8 * blk + 4 * dh, 4); pl = (blk & 1) * 8 + (blk >> 1) * 4 + dh
                    o += [valu("v_cvt_pk_bf16_f32", d[i], a[8 * dh + 2 * i], a[8 * dh + 2 * i + 1]) for i in range(4)]
                    o += [buf_store("buffer_store_dwordx4", d, vHALO, rWS, 0, pl * 128, flags="sc1", tag="st1")]
                    wr += [ds_write("ds_write_b128", vSCR, d, pl * 16 + 8 * RP, tag="kv")]
            spread(o, 129, c.kv_end)
            for n, x in enumerate(wr):
                k1 = c.kv_end + (c.kw_end - c.kv_end) * n // 8
                while load[k1] > 0: k1 += 1
                put(k1, [x], last=True)
            nb = min(n for n in range(1, 20) if bar_gap[n] > k1)
            assert bar_gap[nb] < c.g_halo
            self.bar_extra[nb] = ["kv"]
        for blk in range(4):
            a = ACC1.sub(16 * blk, 16)
            kv, cb = blk & 1, blk >> 1
            for dh in range(2):
                cv = [valu("v_cvt_pk_bf16_f32", a[4 * dh + i], a[8 * dh + 2 * i], a[8 * dh + 2 * i + 1]) for i in range(4)]
                off = (kv * 8 + cb * 4 + dh) * 16 + 8 * RP
                if c.kv_mode == 2:
                    for q in range(2): units.append((cv[2 * q:2 * q + 2], ds_write("ds_write_b64", vSCR, a.sub(4 * dh + 2 * q, 2), off + 8 * q, tag="kv")))
                else: units.append((cv, ds_write("ds_write_b128", vSCR, a.sub(4 * dh, 4), off, tag="kv")))
        hs = ACC1.sub(8, 8)
        rd = [ds_read("ds_read_b128", hs.sub(4 * i, 4), vHRB, 1024 * i) for i in range(2)]
        if c.kv_mode == 4: pass
        elif c.kv_mode == 0:
            spread([i for u in units for i in u[0] + [u[1]]] + rd, 129, c.kv_end)
        elif c.kv_mode == 3:
            spread([i for u in units for i in u[0]], 129, c.kv_end - 3)
            put(c.kv_end - 3, [u[1] for u in units]); put(c.kv_end - 1, rd)
        else:
            k0 = 129
            for n, (cv, wr) in enumerate(units):
                k1 = 129 + (c.kv_end - 2 - 129) * (n + 1) // len(units) - 1
                while load[k1] > 0 and k1 > k0 + 1: k1 -= 1
                spread(cv, k0, k1); put(k1, [wr], last=True); load[k1] += 100
                k0 = k1 + 1
            spread(rd, max(k0, c.kv_end - 2), c.kv_end)
        if c.kv_mode != 4:
            put(c.kv_end + 2, [buf_store("buffer_store_dwordx4", hs.sub(0, 4), vHALO, rWS, 0, 0, flags="sc1", tag="st1")])
            put(c.kv_end + 4, [buf_store("buffer_store_dwordx4", hs.sub(4, 4), vHALO, rWS, 0, 1024, flags="sc1", tag="st1")])
            self.bar_extra[12] = ["kv"]
        assert c.kv_end + 4 < min(176, c.g_flag1)
        put(c.g_flag1, self.flag(L_HALO, "st1"))
        Q = ACC2.sub(0, 16); O = ACC2.sub(16, 16)
        Sg = [SG.sub(0, 4), SG.sub(4, 4), SG.sub(8, 4)]
        P = [T.sub(0, 2), T.sub(2, 2), T.sub(4, 2)]
        tm, tz, big = SG[12], SG[13], SG[14]
        spread([valu("v_cvt_pk_bf16_f32", Q[i], ACC2[2 * i], ACC2[2 * i + 1]) for i in range(16)] + [valu("v_mov_b32", big, f32(-1e30))], 195, 215)
        k = c.g_halo
        assert k > bar_gap[self.halo_period + 1]
        put(k, [wait(vm="halo")])
        cs = 0.25 * LOG2E
        for cb in range(2):
            spread([ds_read("ds_read_b128", KA.sub(8 * g + 4 * dh, 4), vSCR, (cb * 4 + dh) * 16 + (2 - g) * 4 * RP) for g in range(3) for dh in range(2)], k, k + 4)
            k += 5
            for dq in range(4):
                put(k + dq // 2, [mfma(4, Sg[g], KA.sub(8 * g + 2 * dq, 2), Q.sub(8 * cb + 2 * dq, 2), Sg[g] if dq else 0) for g in range(3)], last=True)
            k += 2
            vr = [ds_read("ds_read_b64_tr_b16", KA.sub(8 * g + 2 * m, 2), vVTR, (8 + cb * 4) * 16 + m * 8 + (2 - g) * 4 * RP, tag="vr") for g in range(3) for m in range(4)]
            s = [Sg[0][i] for i in range(4)] + [Sg[1][i] for i in range(4)]
            o = vr[:4]
            o += [valu("v_cndmask_b32", Sg[2][r], Sg[2][r], big, sM2) for r in (1, 2, 3)]
            o += [valu("v_cndmask_b32", Sg[1][r], Sg[1][r], big, sM1) for r in range(4)]
            o += [valu("v_cndmask_b32", Sg[0][r], Sg[2][r], Sg[0][r], (None, sJ1, sJ2, sJ3)[r]) for r in (1, 2, 3)]
            o += [valu("v_max3_f32", tm, s[0], s[1], s[2]), valu("v_max3_f32", tz, s[3], s[4], s[5]), valu("v_max3_f32", tm, tm, s[6], s[7]), valu("v_max_f32", tm, tm, tz),
                  valu("v_mul_f32", tm, f32(-cs), tm)]
            o += vr[4:8]
            o += [valu("v_fma_f32", s[i], s[i], sCS, tm) for i in range(8)]
            o += [valu("v_exp_f32", s[i], s[i]) for i in range(8)]
            u = [Sg[2][i] for i in range(4)]
            o += [valu("v_add_f32", u[i], s[2 * i], s[2 * i + 1]) for i in range(4)]
            o += [valu("v_add_f32", u[0], u[0], u[1]), valu("v_add_f32", u[2], u[2], u[3]), valu("v_add_f32", u[0], u[0], u[2]), valu("v_rcp_f32", tz, u[0])]
            o += vr[8:]
            o += [valu("v_mul_f32", s[i], s[i], tz) for i in range(8)]
            o += [valu("v_cvt_pk_bf16_f32", u[0], s[0], s[1]), valu("v_cvt_pk_bf16_f32", u[1], s[2], s[3]),
                  valu("v_cvt_pk_bf16_f32", P[1][0], s[4], s[5]), valu("v_cvt_pk_bf16_f32", P[1][1], s[6], s[7]),
                  valu("v_and_b32", P[0][0], u[0], vA01), valu("v_and_b32", P[0][1], u[1], vA23),
                  valu("v_bfi_b32", P[2][0], vA01, 0, u[0]), valu("v_bfi_b32", P[2][1], vA23, 0, u[1])]
            spread(o, k, k + c.att_w)
            k += c.att_w
            for g in range(3):
                put(k + g // 2, [mfma(4, O.sub(4 * m, 4), KA.sub(8 * g + 2 * m, 2), P[g], O.sub(4 * m, 4) if g else 0) for m in range(4)], last=True)
            k += 2
            o = []
            for dh in range(2):
                o += [valu("v_cvt_pk_bf16_f32", O[4 * dh + i], O[8 * dh + 2 * i], O[8 * dh + 2 * i + 1]) for i in range(4)]
                o += [buf_store("buffer_store_dwordx4", O.sub(4 * dh, 4), vHST, rWS, sHu[1], cb * 2048 + dh * 1024, flags=c.hflags, tag="st2")]
            spread(o, k + 1, k + 7)
        assert k <= bar_gap[19], k
        self.att_end = k
        if not c.nspl and c.f2_epi < 0: put(min(k + 28, 317), self.flag(L_O, "st2"))

    GORD = ([("d", 0, 1, t) for t in range(4)] + [("d", 12, 1, 4 + t) for t in range(2)] + [("o", 0, 1, t) for t in range(4)]
            + [("d", 4, 2, t) for t in range(4)] + [("d", 5, 2, t) for t in range(4)])
    def w2_setup(self):
        return [salu("s_mul_i32", sHd, sW, 28 * 1024), salu("s_lshl_b32", sHo, sW, 13), salu("s_add_u32", sHo, sHo, 112 * 1024),
                salu("s_lshl_b32", sWd, sHd, 1), salu("s_lshl_b32", sWo, sHo, 1)]
    def h_load(self):
        gi = self.h_n; self.h_n += 1
        kind, g0, st, t = self.GORD[gi]
        o = []
        base = sHd if kind == "d" else sHo
        d = ((g0 & ~1) - self.hpos[kind]) * 2048
        self.hpos[kind] = g0 & ~1
        if d: o += [salu("s_add_u32" if d > 0 else "s_sub_u32", base, base, abs(d))]
        o += [salu("s_add_u32" if st == 1 else "s_lshl1_add_u32", sT[0], (sU + sUh)[t], base)]
        dst = self.hreg[gi] = self.pool.pop(0)
        for s in range(2):
            for tb in range(2):
                o += [buf_load("buffer_load_dwordx4", dst.sub(8 * s + 4 * tb, 4), vW[0] if self.cfg.dbg & 2 else vH[tb], rWS, 0 if self.cfg.dbg & 2 else sT[0], s * 1024 + (g0 & 1) * 2048, flags="sc1", tag=f"h{gi}")]
        return o
    def w2_addr(self):
        gi = self.w2_nd; self.w2_nd += 1
        kind, g, st, t = self.GORD[gi]
        base = sWd if kind == "d" else sWo
        d = (g - self.w2pos[kind]) * 4096
        self.w2pos[kind] = g
        o = [salu("s_add_u32" if d > 0 else "s_sub_u32", base, base, abs(d))] if d else []
        return gi, o + [salu(f"s_lshl{st}_add_u32", sWS, (sU + sUh)[t], base)]
    def w2_load(self):
        gi, o = self.w2_addr()
        dst = self.wreg[gi] = self.pool.pop(0)
        return o + [buf_load("buffer_load_dwordx4", dst.sub(4 * i, 4), vW[i & 1], rWS, 0 if self.cfg.dbg & 4 else sWS, i * 1024, flags="sc1", tag=f"g{gi}") for i in range(4)]
    def w2_dma(self, slot):
        gi, o = self.w2_addr()
        assert slot not in self.w2slot.values()
        self.w2slot[gi] = slot
        return [set_m0(sWQ, slot * SLOT, f"g{gi}")] + o + [buf_dma(vW[i & 1], rWS, sWS, i * 1024, flags="sc1", tag=f"g{gi}") for i in range(4)]
    def w2_read(self):
        gi = min(self.w2slot)
        base = self.w2slot.pop(gi) * SLOT
        dst = self.wreg[gi] = self.pool.pop(0)
        o, imm = self.window(self.win2, 0, vWB, base, 4096)
        for i in o: i.tag = f"r{gi}"
        return [wait(vm=f"g{gi}")] + o + [ds_read("ds_read_b128", dst.sub(4 * i, 4), vWB, imm + i * 1024, tag=f"r{gi}") for i in range(4)]
    def phase2(self):
        c, add = self.cfg, self.add
        accF = [ACC2.sub(0, 16), A(80, 16), A(96, 16), A(112, 16)]
        accS = [ACC2.sub(16, 16)]
        PR = [None, ACC1.sub(0, 16), ACC1.sub(16, 16), ACC1.sub(32, 16)]
        xf = ACC1.sub(48, 16)
        red = [vSCR, vVTR, vTR0, vTR1, vDMA2, vHST]
        pool, hreg, wreg, h_load = self.pool, self.hreg, self.wreg, self.h_load
        pool += [A(128, 16), A(144, 16), A(160, 16)] + [A(16 * i, 16) for i in range(self.xf_n, 5)]
        light = []
        heavy = []
        pend = lambda q, tag: any(i.tag == tag for i in q)
        e = ([] if c.nspl else self.ffn_epi(ACC1.sub(0, 16), ACC1.sub(16, 16), 2, 0, "st3", pk=True)) + self.ffn_epi(ACC1.sub(32, 16), ACC1.sub(48, 16), 2, 2048, "st4", pk=True)
        assert 9 not in self.w2slot.values()
        seq = []
        for gi in range(18):
            bl = (1, 2, 3) if gi >= 18 - c.defer else (0, 1, 2, 3)
            seq += [(gi, s, b) for b in bl for s in range(2)] if gi == 17 else [(gi, s, b) for s in range(2) for b in bl]
        seq += [(gi, s, 0) for gi in range(18 - c.defer, 18) for s in range(2)]
        last = {gi: max(m for m, x in enumerate(seq) if x[0] == gi) for gi in range(18)}
        first = {gi: min(m for m, x in enumerate(seq) if x[0] == gi) for gi in range(18)}
        lastb = {b: max(m for m, x in enumerate(seq) if x[2] == b) for b in range(4)}
        st = {"q": [], "gate": 6 if c.pa2_epi < 0 else 4, "x": False, "m": -1, "sw": False}
        def refill():
            okw = self.w2_nd < 18 and len(pool) > (1 if self.w2_nd <= self.h_n else c.keep)
            okh = self.h_n < st["gate"] and len(pool) > 1
            if okh and not (okw and self.w2_nd <= self.h_n + c.wlead): st["q"] += h_load()
            elif okw: st["q"] += self.w2_load()
            elif not st["x"] and st["m"] >= 0 and not pend(light, "ra"):
                st["x"] = True
                st["q"] += [set_m0(sWQ, 9 * SLOT, "xs"), salu("s_mov_b32", sT[1], 16384 - 1024),
                            buf_dma(red[4], rX, 0, 0, tag="xs"), buf_dma(red[4], rX, sT[1], 1024, tag="xs")]
        def pump():
            if not st["q"]: refill()
            while st["q"]:
                x = st["q"].pop(0); add(x)
                if x.kind in ("dma", "vml"): return True
            return False
        step = max(1, len(e) * 3 // 4 // max(1, c.epi_mem))
        k = 0
        for n, i in enumerate(e):
            if self.B and not c.nspl and n == c.f2_epi: add(self.flag(L_O, "st2"))
            if n == c.pa2_epi: add(self.poll_check(vPOLL, rWS, vTHR, L_HALF)); st["gate"] = 6
            if c.nspl and c.m_f3 < 0 and n == c.f3_at: add(self.flag(L_L0, "st3"))
            if n % step == 0 and k < c.epi_mem: pump(); k += 1
            add(i)
        add(self.stamp(129))
        started = set()
        ra = [salu("s_add_u32", sT[2], sWQ, 6 * SLOT), valu("v_lshl_add_u32", red[0], vLane, 4, sT[2])] + [valu("v_xor_b32", red[b], b * 4096, red[0]) for b in (1, 2, 3)]
        ra += [salu("s_and_b32", sT[2], sP2x, 64), salu("s_mul_i32", sT[3], sT[2], 511), salu("s_add_u32", sT[3], sT[3], sP2x),
               valu("v_lshrrev_b32", red[4], 3, vLane), valu("v_and_b32", red[5], 7, vLane), valu("v_lshlrev_b32", red[5], 4, red[5]),
               valu("v_lshl_add_u32", red[4], red[4], 11, red[5]), valu("v_add_u32", red[4], sT[3], red[4]),
               salu("s_lshr_b32", sT[3], sW, 1), salu("s_lshl_b32", sT[3], sT[3], 13), salu("s_add_u32", sT[3], sT[3], sT[2]), salu("s_add_u32", sT[3], sT[3], 9 * SLOT),
               valu("v_and_b32", red[5], 16, vLane), valu("v_lshlrev_b32", red[5], 1, red[5]), valu("v_and_or_b32", red[5], vLane, 15, red[5]), valu("v_lshlrev_b32", red[5], 7, red[5]),
               valu("v_and_or_b32", red[5], vLane, 32, red[5]), valu("v_add_u32", red[5], sT[3], red[5])]
        for i in ra: i.tag = "ra"
        light += ra
        used = set()
        for m, (gi, s, b) in enumerate(seq):
            st["m"] = m
            kind = self.GORD[gi][0]
            if gi in self.w2slot or pend(light, f"r{gi}"):
                add(light); light.clear()
                while gi in self.w2slot: add(self.w2_read())
            while gi >= self.w2_nd or pend(st["q"], f"g{gi}"): assert pump(), (m, gi)
            while gi >= self.h_n or pend(st["q"], f"h{gi}"): assert pump(), (m, gi)
            a = (accF if kind == "d" else accS)[b]
            add(mfma(32, a, wreg[gi].sub(8 * s + 4 * (b & 1), 4), hreg[gi].sub(8 * s + 4 * (b >> 1), 4), a if (kind, b) in started else 0))
            started.add((kind, b))
            if m == last[gi]:
                pool += [hreg[gi], wreg[gi]]
                if gi in (3, 4, 5): accS.append(pool.pop())
                if gi in c.sp: add(self.stamp(128))
            busy = False
            if m == c.m_f3: add(self.flag(L_L0, "st3")); busy = True
            if m == c.m_f4: add(self.flag(L_END, "st4"), self.stamp()); busy = True
            lb, lc = (L_L0 if c.nspl else L_O), (L_L0 if c.m_pe > 0 else L_END)
            for mm, ln in ((c.m_pb, lb), (c.m_pc, lc), (c.m_pe, L_END)):
                if m == mm - c.m_pd: add(self.poll_issue(vPOLL, rWS, ln)); busy = True
            if m == c.m_pb - 1: add(valu("v_xor_b32", vTHR, 1, vTHR))
            if m == c.m_pe: add(self.poll_check(vPOLL, rWS, 1, L_END)); st["gate"] = 18
            if m == c.m_pb: add(self.poll_check(vPOLL, rWS, 1 if c.nspl else vTHR, lb)); st["gate"] = 14 if c.nspl else 10
            if m == c.m_pc: add(self.poll_check(vPOLL, rWS, 1, lc), self.stamp()); st["gate"] = 14 if c.m_pe > 0 else 18; self.pre += (self.w2_nd, self.h_n)
            used.add((gi, s, b >> 1))
            ahead = 4 * self.h_n - sum(1 for i in st["q"] if i.kind == "vml") - len(used)
            if ((m % c.vstep < c.vnum if m < c.m_v1 else m % 2 == 0) or ahead < c.ahead) and not busy: busy = pump()
            if not light and self.w2slot and pool and m >= first[min(self.w2slot)] - c.rlead: light += self.w2_read()
            if m == last[9] + 2:
                add(light); light.clear()
                while any(6 <= s_ <= 8 for s_ in self.w2slot.values()): add(self.w2_read())
                st["sw"] = True
                heavy += [wait(lg=[f"r{g}" for g in range(18)])]
                heavy += [ds_write("ds_write_b128", red[0], accS[b2].sub(4 * q, 4), (b2 - 1) * SLOT + q * 1024, tag="sw") for b2 in (1, 2, 3) for q in range(4)]
            if m == c.m_sb:
                while not st["x"] or pend(st["q"], "xs"):
                    g18, nd = st["gate"], self.w2_nd; st["gate"] = 0; self.w2_nd = 18; assert pump(); st["gate"], self.w2_nd = g18, nd
                add(heavy); heavy = []
                add(wait(vm="xs", lg="sw"), barrier()); busy = True
                light += [ds_read("ds_read_b128", xf.sub(8 * i + 4, 4), red[5], 16 * i) for i in range(2)]
                light += [ds_read("ds_read_b128", PR[b2].sub(4 * q, 4), red[b2], (b2 - 1) * SLOT + q * 1024) for b2 in (1, 2, 3) for q in range(4)]
                for b2 in range(4):
                    i = valu("v_subrev_u32", red[b2], 6 * SLOT, red[b2]); i.tag = "ra"; light.append(i)
                for h in range(2):
                    for i in range(4):
                        src = xf[8 * h + 4 + i]
                        pr = [valu("v_lshlrev_b32", xf[8 * h + 2 * i], 16, src), valu("v_and_b32", xf[8 * h + 2 * i + 1], "0xffff0000", src)]
                        light += pr
                light += [valu("v_add_f32", accS[0][i], accS[0][i], PR[1][i]) for i in range(16)] + [valu("v_add_f32", PR[2][i], PR[2][i], PR[3][i]) for i in range(16)]
                light += [valu("v_add_f32", accS[0][i], accS[0][i], PR[2][i]) for i in range(16)]
            for b2 in (1, 2, 3):
                if m == lastb[b2] + 2:
                    while pend(light, "ra"): add(light.pop(0))
                    heavy += [ds_write("ds_write_b128", red[0], accF[b2].sub(4 * q, 4), (b2 - 1) * SLOT + q * 1024) for q in range(4)]
            budget = 11 if busy else 24
            if heavy and not busy:
                while heavy:
                    x = heavy.pop(0); add(x)
                    if x.kind == "dsw": break
                budget = 0
            while light and cyc(light[0]) <= budget:
                budget -= cyc(light[0]); add(light.pop(0))
        assert self.h_n == 18 and self.w2_nd == 18 and not self.w2slot and not st["q"] and st["x"]
        add(self.stamp())
        add(heavy, light)
        add(wait(lg="all"), barrier())
        for q in range(4):
            for b in (1, 2, 3): add(ds_read("ds_read_b128", PR[b].sub(4 * q, 4), red[b], (b - 1) * SLOT + q * 1024))
        Fp, Sp, t = accF[0], accS[0], PR[1]
        for hq in range(2):
            r2 = range(8 * hq, 8 * hq + 8, 2); r1 = range(8 * hq, 8 * hq + 8)
            add([valu("v_pk_add_f32", Fp.sub(i, 2), Fp.sub(i, 2), PR[1].sub(i, 2)) for i in r2])
            add([valu("v_pk_add_f32", PR[2].sub(i, 2), PR[2].sub(i, 2), PR[3].sub(i, 2)) for i in r2])
            add([valu("v_pk_add_f32", Fp.sub(i, 2), Fp.sub(i, 2), PR[2].sub(i, 2)) for i in r2])
            add([valu("v_pk_mul_f32", t.sub(i, 2), Fp.sub(i, 2), T.sub(0, 2)) for i in r2])
            add([valu("v_exp_f32", t[i], t[i]) for i in r1])
            add([valu("v_pk_mul_f32", Sp.sub(i, 2), Sp.sub(i, 2), Fp.sub(i, 2)) for i in r2])
            add([valu("v_pk_add_f32", t.sub(i, 2), t.sub(i, 2), T.sub(2, 2)) for i in r2])
            add([valu("v_rcp_f32", t[i], t[i]) for i in r1])
            add([valu("v_pk_fma_f32", xf.sub(i, 2), Sp.sub(i, 2), t.sub(i, 2), xf.sub(i, 2)) for i in r2])
            add([valu("v_cvt_pk_bf16_f32", t[8 * hq + i], xf[8 * hq + 2 * i], xf[8 * hq + 2 * i + 1]) for i in range(4)])
            add(buf_store("buffer_store_dwordx4", t.sub(8 * hq, 4), vXO, rOUT, 0, 16 * hq, flags=c.outflags))

    def finish(self):
        add = self.add
        if self.cfg.stamps:
            add(raw(f"{self.cfg.clock} s[14:15]", "smem"))
            add(wait(vm="all"))
            add(raw(f"{self.cfg.clock} s[16:17]\n    s_waitcnt lgkmcnt(0)", "smem"))
            add(valu("v_mov_b32", V(96), 0))
            for i in range(self.nst): add(raw(f"v_writelane_b32 v96, s{STAMPS[i]}, {1+i}", "valu", wr=["v96"]))
            add(raw(f"v_writelane_b32 v96, s{ST0}, 0", "valu", wr=["v96"]), raw(f"v_writelane_b32 v96, s14, {1+self.nst}", "valu", wr=["v96"]),
                raw(f"v_writelane_b32 v96, s16, {2+self.nst}", "valu", wr=["v96"]))
            add(salu("s_lshl_b32", sT[1], sWG, 2), salu("s_add_u32", sT[1], sT[1], sW), salu("s_lshl_b32", sT[1], sT[1], 6), salu("s_add_u32", sT[1], sT[1], STAMP_OFF),
                valu("v_lshl_add_u32", V(97), vLane, 2, sT[1]), salu("s_mov_b64", "exec", "0xffff"), buf_store("buffer_store_dword", V(96), V(97), rWS))
        add(raw("s_endpgm", "end"))

    def program(self):
        self.w2slot, self.slot_used, self.w2pos = {}, {}, {"d": 0, "o": 0}
        self.w2_nd = self.w2_nr = 0
        self.win2 = [0, 0]
        self.xf_n = 0
        self.h_n, self.hreg, self.wreg, self.hpos = 0, {}, {}, {"d": 0, "o": 0}
        self.ramp(); self.phase1()
        self.pre = (self.w2_nd, len(self.w2slot), self.h_n)
        if not self.cfg.p1only: self.phase2()
        self.finish()
        return self.e.text() + self.slow

HEAD = open("recurrent_scan__sliding_local_dilated__swiglu_ffn__prompt.s.ref").read().split("; Override launch")[0]

def build(cfg):
    NS[0] = cfg.NS
    s = HEAD + "; @launch grid=(256,1,1) block=(256,1,1) lds=163840\n"
    s += f'.amdgcn_target "amdgcn-amd-amdhsa--gfx950"\n.text\n.globl {KNAME}\n.p2align 8\n.type {KNAME},@function\n{KNAME}:\n'
    s += f"""    s_cmp_ge_u32 s2, 256
    s_cbranch_scc0 L_go
    s_endpgm
L_go:
"""
    if cfg.stamps: s += f"    {cfg.clock} s[{ST0}:{ST0+1}]\n"
    s += f"""    s_load_dwordx2 s[24:25], s[0:1], 0
    s_load_dwordx16 s[4:19], s[0:1], 0
    s_load_dwordx4 s[20:23], s[0:1], 64
    v_lshrrev_b32 v1, 6, v0
    s_getpc_b64 s[28:29]
    v_readfirstlane_b32 {sW}, v1
    s_bfe_u32 s26, s2, 0x30003
    s_lshl_b32 s26, s26, 13
    v_lshrrev_b32 v2, 2, v0
    v_lshl_add_u32 v2, v2, 7, s26
    v_min_u32 v2, L_end-L_go-256, v2
    global_load_dword v3, v2, s[28:29]
    v_and_b32 {vLane}, 63, v0
    v_lshrrev_b32 v96, 3, {vLane}
    v_and_b32 v97, 7, v0
    s_lshl_b32 {sWQ}, {sW}, 12
    s_cmp_ge_u32 s2, 128
    s_cbranch_scc1 L_typeC
"""
    info = {}
    for typ in ("B", "C"):
        g = Gen(typ, cfg)
        g.e.vm.append(("pf", {"v3"}))
        s += f"L_type{typ}:\n" + g.program()
        info[typ] = (g.e.slots, g.e.nops, dict(g.e.count), [sum(max(32, 20 + x) for x in g.load[i:i + 32]) for i in range(0, 320, 32)], g.pre, g.nst + 3)
    s += "L_end:\n"
    s += f""".section .rodata,"a"
.p2align 6
.amdhsa_kernel {KNAME}
  .amdhsa_next_free_vgpr 512
  .amdhsa_next_free_sgpr 102
  .amdhsa_accum_offset 256
  .amdhsa_group_segment_fixed_size 0
  .amdhsa_kernarg_size 80
  .amdhsa_user_sgpr_count 2
  .amdhsa_user_sgpr_kernarg_segment_ptr 1
  .amdhsa_system_sgpr_workgroup_id_x 1
.end_amdhsa_kernel
"""
    return s, info

if __name__ == "__main__":
    cfg = Cfg()
    out = sys.argv[1]
    for a in sys.argv[2:]:
        k, v = a.split("=")
        assert hasattr(cfg, k) or hasattr(cfg, k[:-2]), k
        if k in ("outflags", "hflags", "pflags"): v = v.replace("_", " ")
        elif k in ("sg", "sp"): v = [int(x) for x in v.split(",")]
        elif k not in ("clock", "planB", "planC"): v = int(v)
        setattr(cfg, k, v)
    s, info = build(cfg)
    open(out, "w").write(s)
    for k, v in info.items(): print(k, v)
```

```python
import sys, struct
sys.path.insert(0, "tools")
from emit import *
from asmlib import KNAME

FLAG_OFF, XN_OFF, HALO_OFF, WS_USED = 0x910000, 0x938000, 0xB38000, 0xF00000
WT_OFF, P6_OFF = 0xC01000, 0xE50000
L_HALO, L_P1, L_HALF, L_O, L_L0, L_END = [128 * i for i in range(6)]
FLAGA_OFF = 0x930000
STAMP_OFF = 0xB80000
OOB = 0x40000000
SLOT = 16384
HSTR = 145 * 1024
RP = 272
SCR = 7 * SLOT
SPARE = SCR + 137 * RP
LOG2E = 1.4426950408889634
def f32(x): return "0x%08x" % struct.unpack("<I", struct.pack("<f", x))[0]

class Cfg:
    stamps = 0
    clock = "s_memrealtime"
    sg = ()
    sp = ()
    p1only = 0
    LA = 8
    NB = 10
    spin = 20000
    cbx = 0
    rot = 0
    sleep = 0
    rsel = 1
    tx = 1
    b_rest = None
    tlin = 0
    wo_late = -1
    sig_early = 0
    nodbg = 0
    f2_epi = 30
    pa2_epi = -1
    dbg = 0
    nspl = 0
    e0_end = 312
    f3_at = 30
    setup_early = 0
    w_0 = 0
    w_a = 1
    w_b = 2
    w_c = 4
    nx0 = 8
    xrate = 6
    planB = "7:l,8:l,9:l,10:l,11:l,12:l.P,13:l,14:H.l,15:l,16:l,17:l.l,18:h.l,19:h.h.h"
    planC = "7:l,8:l,9:l,10:l,11:l,12:l,13:l,14:l,15:l,16:l,17:l.l,18:h.h,19:h.h.l"
    ts_pos = 0
    f2_bar = 2
    pw_lead = 16
    pw_per = 7
    NS = 7
    xfree = 1
    kv_end = 146
    kv_mode = 3
    kw_end = 214
    p6_per = 5
    c_rest = 4
    c_tile = -1
    g_flag1 = 172
    g_halo = 236
    att_w = 20
    g_f1c = 210
    g_pa = 262
    h2_end = 240
    g_f2c = 264
    g_pa2 = 304
    epi_mem = 10
    m_f4 = 24
    m_pe = -99
    pa_per = 18
    m_f3 = -1
    m_pb = 24
    m_pc = 62
    m_pd = 12
    m_sb = 106
    defer = 4
    vstep = 1
    vnum = 1
    m_v1 = 62
    wlead = 1
    rlead = 12
    keep = 4
    ahead = 12
    outflags = ""
    hflags = "sc1"
    pflags = "sc1"

sWG = S(2)
pX, pQKV, pWO, pG, pU, pD, pOUT, pDBG, pWS = S(4, 2), S(6, 2), S(8, 2), S(12, 2), S(14, 2), S(16, 2), S(18, 2), S(20, 2), S(22, 2)
rX, rQKV, rGU, rD, rWO, rOUT, rWS, rDBG = S(24, 4), S(28, 4), S(32, 4), S(36, 4), S(40, 4), S(44, 4), S(48, 4), S(52, 4)
sW, sRB, sGQ, sJ, sTB2, sCB2, sWQ = S(56), S(57), S(58), S(59), S(60), S(61), S(62)
sT = [S(3), S(63), S(64), S(65)]
sM1, sM2 = S(66, 2), S(68, 2)
sHM0, sXS = S(70), S(71)
sJ1, sJ2, sJ3 = S(72, 2), S(74, 2), S(76, 2)
sTHR, sCNT = S(78), S(79)
sU = [S(60), S(61), S(58), S(59)]
sUh = [S(0), S(1)]
sHu = [S(4), S(5), S(6)]
sCS, sC1, sHd, sHo = S(7), S(8), S(9), S(10)
sWd, sWo, sWS, sW0 = S(40), S(41), S(42), S(43)
sOA = [0, S(11), S(12), S(13)]
sOB = [0, S(14), S(15), S(16)]
sOC = [0, S(17), S(18), S(19)]
sP2h, sP2f, sP2x, sHS = S(20), S(21), S(22), S(23)
STAMPS = list(range(82, 102, 2))
ST0 = 80

ACC1, ACC2 = V(0, 64), V(64, 32)
VBUF = [V(96 + 16 * i, 16) for i in range(8)]
KA, SG = V(176, 24), V(200, 16)
T = V(224, 8)
(vF2, vA23, vA01, vP2, vHRB, vWB, vDMA2, vDMA1, vW1, vFV, vPV, vW0, vPOLL, vHALO, vPOLLH, vHLD,
 vFLG, vVTR, vSCR, vHST, vDMA0, vTR1, vTR0, vLane) = [V(232 + i) for i in range(24)]
vW = [vW0, vW1]
vP6 = vA01
vHLD2 = V(222)
vXN = V(216)
vTCH = [V(217), V(218), V(219), V(220), V(221)]
vH = [vHRB, vHALO]
vXO, vTHR = vDMA1, vDMA0
X = A(0, 128)
WF = A(128, 40)
aDUM = A(168)
ABUF = [A(176 + 16 * i, 16) for i in range(5)]
NS = [5]
def slab_slot(n): return n % NS[0]

def cyc(i):
    k = i.kind
    if k in ("wait", "waitr", "waitcnt", "mfma"): return 0
    if k == "trans": return 8
    if k in ("dma", "vml"): return 14
    if k == "vms": return 30 if i.op.endswith("x4") else 20
    if k == "dsw": return 26
    if k == "dsr": return 11 if i.op.endswith("b128") else 4
    if k == "bar": return 14
    if k == "branch": return 8
    return 4

class Gen:
    def __init__(self, typ, cfg):
        self.typ, self.cfg = typ, cfg
        self.B = typ == "B"
        import copy
        self.cfg = cfg = copy.copy(cfg)
        for k, v in list(vars(cfg).items()) + list(vars(Cfg).items()):
            if k.endswith('_' + typ): setattr(cfg, k[:-2], getattr(cfg, k))
        self.e = Emitter()
        self.nst = 0
        self.nlab = 0
        self.slow = ""
    def add(self, *ins):
        for i in ins: self.e.add(i)
    def stamp(self, mode=1):
        if not (self.cfg.stamps & mode): return []
        r = S(STAMPS[self.nst], 2); self.nst += 1
        return [raw(f"{self.cfg.clock} {r}", "smem")]
    def touch(self, va, srd, flags=""):
        i = buf_load("buffer_load_dword", aDUM, va, srd, flags=flags)
        i.wr = set()
        return [i]
    def poll_issue(self, vaddr, srd, off=0):
        return [buf_load("buffer_load_dword", vPV, vaddr, srd, 0, off, flags=self.cfg.pflags)]
    def poll_check(self, vaddr, srd, thr, off=0):
        self.nlab += 1
        l = f"L_{self.typ}_p{self.nlab}"
        sl = f"    s_sleep {self.cfg.sleep}\n" if self.cfg.sleep else ""
        if self.cfg.stamps & 512:
            sl += f"    s_add_u32 s{STAMPS[self.nlab - 1]}, s{STAMPS[self.nlab - 1]}, 1\n"; self.nst = 8
        self.slow += (f"{l}_slow:\n    s_mov_b32 {sCNT}, 0\n{l}_spin:\n"
                f"{sl}    buffer_load_dword {vPV}, {vaddr}, {srd}, 0 offen offset:{off} {self.cfg.pflags}\n    s_add_u32 {sCNT}, {sCNT}, 1\n    s_waitcnt vmcnt(0)\n"
                f"    v_cmp_gt_u32 vcc, {thr}, {vPV}\n    s_cmp_ge_u32 {sCNT}, {self.cfg.spin}\n    s_cbranch_scc1 {l}_ok\n"
                f"    s_cbranch_vccnz {l}_spin\n    s_branch {l}_ok\n")
        return [valu("v_cmp_gt_u32", "vcc", thr, vPV), raw(f"s_cbranch_vccnz {l}_slow\n{l}_ok:", "branch")]
    def flag(self, stage, tag):
        return [wait(vm=tag), buf_store("buffer_store_dword", vFV, vFLG, rWS, 0, stage, flags="sc1")]

    def ramp(self):
        c, add, B = self.cfg, self.add, self.B
        t0, t1, t2, t3 = V(96), V(97), V(98), V(99)
        vXL, vXS, vRS, vST, vF0, vP0, vDB, vTLB, vSG, vXR, vTL, vTS = [V(100 + i) for i in range(12)]
        vR2, vTB0, vTB1, vPL, vPS = [V(162 + i) for i in range(5)]
        tl, p6 = V(168, 16), V(184, 4)
        xr, lo, z, part = V(112, 16), V(128, 16), V(144, 4), V(148, 8)
        sm, sq, one = V(156), V(157), V(158)
        rb = V(160, 2)
        srd = lambda r, p, n: [salu("s_mov_b32", r[0], p[0]), salu("s_mov_b32", r[1], p[1]), salu("s_mov_b32", r[2], n), salu("s_mov_b32", r[3], "0x20000")]
        gu = [salu("s_cmp_lt_u32", None, sW, 2), salu("s_cselect_b32", rGU[0], pG[0], pU[0]), salu("s_cselect_b32", rGU[1], pG[1], pU[1])]
        sizes = ((rX, pX, 2048 * 1024), (rWS, pWS, WS_USED), (rDBG, pDBG, 256), (rQKV, pQKV, 512 * 3072), (rOUT, pOUT, 2048 * 1024))
        XL = 8 * SLOT
        self.nslab = 0
        if c.stamps & 1024:
            add(raw(f"s_getreg_b32 s{STAMPS[0]}, hwreg(HW_REG_XCC_ID)\n    s_getreg_b32 s{STAMPS[1]}, hwreg(HW_REG_HW_ID)", "salu")); self.nst = 2
        if c.stamps & 512: add([salu("s_mov_b32", S(r), 0) for r in STAMPS])
        add(self.stamp(256))
        TL = 7 * SLOT
        roles = [salu("s_lshr_b32", sT[0], sWG, 3), salu("s_and_b32", sT[1], sWG, 7), salu("s_and_b32", sRB, sWG, 1), salu("s_lshl_b32", sRB, sRB, 3),
                 salu("s_and_b32", sT[2], sT[0], 7), salu("s_add_u32", sRB, sRB, sT[2]), salu("s_lshr_b32", sGQ, sT[1], 1), salu("s_lshr_b32", sJ, sT[0], 3),
                 salu("s_lshl_b32", sTB2, sT[1], 2), salu("s_and_b32", sT[2], sT[0], 3), salu("s_add_u32", sTB2, sTB2, sT[2]), salu("s_lshr_b32", sCB2, sT[0], 2)]
        if c.cbx: roles += [salu("s_xor_b32", sCB2, sCB2, c.cbx)]
        def tile_setup():
            if B:
                o = [salu("s_lshl2_add_u32", sT[1], sRB, sW), salu("s_lshl_b32", sT[2], sT[1], 13), salu("s_lshl1_add_u32", sT[3], sGQ, sJ)] + srd(rD, pWO, 512 * 1024)
            else:
                o = [salu("s_lshr_b32", sT[1], sW, 1), salu("s_lshl1_add_u32", sT[1], sT[0], sT[1]), salu("s_lshl_b32", sT[2], sT[1], 15),
                     salu("s_xor_b32", sCNT, sGQ, c.tx), salu("s_and_b32", sT[3], sW, 1), salu("s_lshl1_add_u32", sT[3], sCNT, sT[3])] + srd(rD, pD, 1792 * 1024)
            o += [salu("s_lshl_b32", sCNT, sT[3], 7), salu("s_add_u32", sT[2], sT[2], sCNT),
                  valu("v_lshrrev_b32", t2, 2, vLane), valu("v_and_b32", t2, 4, t2), valu("v_xor_b32", t2, t2, t1), valu("v_lshlrev_b32", t2, 4, t2),
                  valu("v_lshl_add_u32", t2, t0, 10, t2), valu("v_add_u32", vTL, sT[2], t2)]
            o += [salu("s_mul_i32", sT[2], sT[3], 72 * 4096), salu("s_lshl_b32", sT[1], sT[1], 10 if B else 12), salu("s_add_u32", sT[2], sT[2], sT[1]),
                  salu("s_add_u32", sT[2], sT[2], WT_OFF + (56 * 4096 if B else 0)),
                  ]
            if B: o += [salu("s_lshl4_add_u32", sT[1], sT[3], sRB)]
            else: o += [salu("s_lshl_b32", sT[1], sGQ, 5), salu("s_add_u32", sT[1], sT[1], sT[0])]
            o += [salu("s_and_b32", sT[3], sT[1], 7), salu("s_lshr_b32", sT[1], sT[1], 3), salu("s_lshl_b32", sT[1], sT[1], 7), salu("s_lshl2_add_u32", sT[1], sT[3], sT[1]),
                  salu("s_add_u32", sT[1], sT[1], FLAGA_OFF + (80 if B else 64) * 128)]
            if not B: o += [salu("s_cmp_lt_u32", None, sRB, 14), salu("s_cselect_b32", sT[2], sT[2], OOB)]
            o += [salu("s_cmp_eq_u32", None, sW, 0), salu("s_cselect_b32", sT[1], sT[1], OOB),
                  valu("v_lshl_add_u32", vTS, vLane, 4, sT[2]), valu("v_mov_b32", vF2, OOB), raw(f"v_writelane_b32 {vF2}, {sT[1]}, 0", "valu", rd=[vF2], wr=[vF2])]
            return o
        def tile_store():
            o = [valu("v_and_b32", vTB0, "0x3ff", vTR0), valu("v_and_b32", vTB1, 32, vLane), valu("v_lshl_add_u32", vTB0, vTB1, 6, vTB0)]
            if B:
                o += [salu("s_and_b32", sT[1], sW, 1), salu("s_lshl_b32", sT[1], sT[1], 6), valu("v_xor_b32", vTB0, sT[1], vTB0),
                      salu("s_lshr_b32", sT[1], sW, 1), salu("s_lshl_b32", sT[1], sT[1], 10), salu("s_add_u32", sT[1], sT[1], TL), valu("v_add_u32", vTB0, sT[1], vTB0)]
                return o, [ds_read("ds_read_b64_tr_b16", tl.sub(2 * u, 2), vTB0, u * 512) for u in range(2)], [buf_store("buffer_store_dwordx4", tl.sub(0, 4), vTS, rWS, flags="sc1", tag="ts")]
            o += [salu("s_add_u32", sT[1], sWQ, TL), valu("v_add_u32", vTB0, sT[1], vTB0), valu("v_xor_b32", vTB1, 64, vTB0), wait(vm="tl")]
            for s_ in range(2):
                for cb in range(2):
                    for u in range(2): o += [ds_read("ds_read_b64_tr_b16", tl.sub(8 * s_ + 4 * cb + 2 * u, 2), (vTB0, vTB1)[cb], s_ * 1024 + u * 512)]
            return o, [buf_store("buffer_store_dword", vFV, vF2, rWS, flags="sc1")], [buf_store("buffer_store_dwordx4", tl.sub(4 * i, 4), vTS, rWS, 0, 1024 * i, flags="sc1", tag="ts") for i in range(4)]
        if B:
            add(salu("s_and_b32", sT[2], sWG, 63), salu("s_lshl_b32", sT[2], sT[2], 15), salu("s_lshr_b32", sT[1], sWG, 6), salu("s_lshl2_add_u32", sT[1], sT[1], sW),
                salu("s_lshl_b32", sT[1], sT[1], 8), salu("s_add_u32", sT[1], sT[1], sT[2]),
                valu("v_xor_b32", t2, t0, t1), valu("v_lshlrev_b32", t2, 4, t2), valu("v_lshl_add_u32", vXL, t0, 11, t2),
                salu("s_add_u32", sXS, sT[1], 16384 - 1024), srd(*sizes[0])[2:], set_m0(sWQ, XL, "x"))
            add(self.stamp(256), raw("s_waitcnt lgkmcnt(0)", "waitcnt"), self.stamp(256))
            add(buf_dma(vXL, rX, sT[1], 0, tag="x"), buf_dma(vXL, rX, sXS, 1024, tag="x"), set_m0(sWQ, XL + 2048 - 128, "x"), salu("s_mov_b32", rWS[0], pWS[0]),
                buf_dma(vXL, rX, sT[1], 128, tag="x"), buf_dma(vXL, rX, sXS, 1024 + 128, tag="x"))
            add(self.stamp(256))
            add(srd(*sizes[1])[1:])
            if c.rsel: add(salu("s_lshr_b32", sT[1], sWG, 3), salu("s_and_b32", sT[2], sWG, 1), salu("s_lshl1_add_u32", sT[1], sT[1], sT[2]), salu("s_and_b32", sT[3], sWG, "0xe6"))
            else: add(salu("s_mov_b32", sT[1], sWG), salu("s_lshr_b32", sT[3], sWG, 3))
            add(salu("s_lshl_b32", sT[2], sT[1], 11), salu("s_add_u32", sT[2], sT[2], FLAGA_OFF), salu("s_lshl_b32", sT[1], sT[1], 2),
                salu("s_or_b32", sT[3], sT[3], sW), salu("s_cselect_b32", sT[2], OOB, sT[2]), salu("s_cselect_b32", sT[1], OOB, sT[1]),
                salu("s_lshl_b32", sT[3], sWG, 10), salu("s_add_u32", sT[3], sT[3], FLAG_OFF), salu("s_cmp_eq_u32", None, sW, 1),
                salu("s_cselect_b32", sT[2], sT[3], sT[2]), salu("s_cselect_b32", sT[3], 6, 7),
                valu("v_lshrrev_b32", t2, 2, vLane), valu("v_and_b32", t3, 3, vLane), valu("v_lshlrev_b32", t3, 4, t3), valu("v_lshl_add_u32", t2, t2, sT[3], t3),
                valu("v_add_u32", vRS, sT[2], t2), valu("v_mov_b32", vSG, sT[1]), [valu("v_mov_b32", z[i], 0) for i in range(4)])
            add(buf_store("buffer_store_dwordx4", z, vRS, rWS, flags="sc1", tag="reset"))
            add(roles)
            for q in sizes[2:]: add(srd(*q))
            add(gu, srd(rGU, pG, 512 * 3584)[2:], tile_setup())
            if c.wo_late == -1: add(salu("s_lshr_b32", sT[1], sWQ, 2), set_m0(sT[1], TL, "tl"), buf_dma(vTL, rD, tag="tl"))
        else:
            add(roles)
            add(salu("s_lshl_b32", sT[0], sRB, 1), salu("s_add_u32", sT[0], sT[0], sJ), salu("s_sub_u32", sT[0], sT[0], 2),
                salu("s_lshl2_add_u32", sT[1], sT[0], sW), salu("s_mul_i32", sT[1], sT[1], 4 * 3072), salu("s_lshl_b32", sT[2], sGQ, 8), salu("s_add_u32", sT[1], sT[1], sT[2]),
                valu("v_and_b32", t2, 3, t0), valu("v_mul_u32_u24", t2, 3072, t2), valu("v_and_b32", t3, 1, t1), valu("v_lshl_add_u32", t2, t3, 7, t2),
                valu("v_add_u32", vTCH[3], sT[1], t2), valu("v_bfe_u32", t2, t1, 1, 1), valu("v_add_u32", t2, 1, t2), valu("v_lshl_add_u32", vTCH[1], t2, 10, vTCH[3]),
                salu("s_and_b32", sT[2], sW, 1), salu("s_lshl1_add_u32", sT[1], sT[0], sT[2]), salu("s_mul_i32", sT[1], sT[1], 8 * 3584),
                salu("s_mul_i32", sT[2], sGQ, 7 * 128), salu("s_add_u32", sT[1], sT[1], sT[2]),
                valu("v_mul_u32_u24", t2, 3584, t0), valu("v_add_u32", t2, sT[1], t2), valu("v_lshl_add_u32", vTCH[0], t3, 7, t2))
            if c.tlin:
                add(salu("s_sub_u32", sT[2], sWG, 128), salu("s_lshl2_add_u32", sT[3], sT[2], sW), salu("s_mul_i32", sCNT, sT[3], 3072),
                    valu("v_min_u32", vTCH[1], 23, vLane), valu("v_lshl_add_u32", vTCH[1], vTCH[1], 7, sCNT),
                    salu("s_mul_i32", sCNT, sT[3], 3584), valu("v_min_u32", vTCH[4], 27, vLane), valu("v_lshl_add_u32", vTCH[4], vTCH[4], 7, sCNT),
                    salu("s_and_b32", sT[3], sW, 1), salu("s_lshl1_add_u32", sT[3], sT[2], sT[3]), salu("s_mul_i32", sT[3], sT[3], 7168),
                    valu("v_min_u32", vTCH[0], 55, vLane), valu("v_lshl_add_u32", vTCH[0], vTCH[0], 7, sT[3]))
            add(srd(*sizes[3])[2:], srd(rGU, pG, 512 * 3584)[2:])
            add(self.stamp(256), raw("s_waitcnt lgkmcnt(0)", "waitcnt"), self.stamp(256))
            if c.tlin == 2: add(srd(rD, pD, 1792 * 1024), self.touch(vTCH[4], rD))
            add(srd(*sizes[3])[:2], self.touch(vTCH[1], rQKV), gu, self.touch(vTCH[0], rGU), self.stamp(256))
            add(valu("v_and_b32", t3, 3, t1), valu("v_add_u32", t3, 2, t3), valu("v_lshl_add_u32", vTCH[2], t3, 7, t2),
                valu("v_bfe_u32", t2, vLane, 2, 3), valu("v_mul_u32_u24", t2, 3584, t2), valu("v_and_b32", t3, 3, vLane), valu("v_lshl_add_u32", t2, t3, 4, t2),
                valu("v_lshrrev_b32", t3, 5, vLane), valu("v_lshl_add_u32", t2, t3, 6, t2), salu("s_add_u32", sT[1], sT[1], 768), valu("v_add_u32", vPL, sT[1], t2),
                buf_load("buffer_load_dwordx4", p6, vPL, rGU),
                salu("s_lshr_b32", sT[1], sT[0], 3), salu("s_lshl_b32", sT[1], sT[1], 14), salu("s_and_b32", sT[2], sT[0], 7), salu("s_lshl_b32", sT[2], sT[2], 10),
                salu("s_add_u32", sT[1], sT[1], sT[2]), salu("s_and_b32", sT[2], sW, 1), salu("s_lshl_b32", sT[2], sT[2], 9), salu("s_add_u32", sT[1], sT[1], sT[2]),
                salu("s_lshr_b32", sT[2], sW, 1), salu("s_lshl_b32", sT[2], sT[2], 13), salu("s_add_u32", sT[1], sT[1], sT[2]),
                salu("s_lshl_b32", sT[2], sGQ, 17), salu("s_add_u32", sT[1], sT[1], sT[2]), salu("s_add_u32", sT[1], sT[1], P6_OFF),
                valu("v_and_b32", t2, 31, vLane), valu("v_lshlrev_b32", t2, 4, t2), valu("v_lshl_add_u32", t2, t3, 16, t2), valu("v_add_u32", vPS, sT[1], t2),
                )
            add(tile_setup())
            tdma = [set_m0(sWQ, TL, "tl"), salu("s_mov_b32", sTHR, 7168)]
            for i in range(4):
                tdma += [buf_dma(vTL, rD, sTHR if i else 0, 1024 * i, tag="tl")]
                if 0 < i < 3: tdma += [salu("s_add_u32", sTHR, sTHR, 7168)]
            self.rest = [] if (c.tlin or c.b_rest is not None) else self.touch(vTCH[3], rQKV) + self.touch(vTCH[2], rGU)
            add(tdma)
            if c.c_rest == -1: add(self.rest)
            add(srd(*sizes[0])[2:])
            for q in sizes[1:3] + sizes[4:]: add(srd(*q))
        add(valu("v_mov_b32", vFV, 1))
        sa, sb = (8 * 3072, 8 * 3584) if B else (8 * 3584, 16 * 3584)
        for i in (1, 2, 3):
            add(salu("s_mov_b32", sOA[i], i * (sa - 1024)), salu("s_mov_b32", sOB[i], i * (sb - 1024)))
        add(self.dma_setup(0))
        if B:
            for _ in range(c.w_0): add(self.dma_slab())
            add(valu("v_lshrrev_b32", t2, 4, vLane), valu("v_xor_b32", t3, t2, t1), valu("v_lshlrev_b32", t3, 4, t3), valu("v_and_b32", vST, 15, vLane),
                valu("v_lshl_add_u32", t3, vST, 7, t3), salu("s_add_u32", sT[1], sWQ, XL), valu("v_add_u32", vXR, sT[1], t3), valu("v_xor_b32", vXL, 64, vXR),
                salu("s_lshr_b32", sT[0], sWG, 1), salu("s_and_b32", sT[3], sWG, 1),
                salu("s_lshl_b32", sT[1], sT[0], 15), salu("s_lshl_b32", sT[2], sW, 13), salu("s_add_u32", sT[1], sT[1], sT[2]), salu("s_lshl_b32", sT[2], sT[3], 8),
                salu("s_add_u32", sT[1], sT[1], sT[2]), salu("s_add_u32", sT[1], sT[1], XN_OFF),
                valu("v_lshlrev_b32", t3, 4, vST), valu("v_lshl_add_u32", t3, t2, 9, t3), valu("v_add_u32", vXS, sT[1], t3),
                valu("v_lshlrev_b32", vST, 5, vST), valu("v_add_u32", vST, SPARE, vST),
                salu("s_lshl_b32", sT[2], sW, 2), valu("v_lshrrev_b32", t3, 5, vLane), valu("v_lshl_add_u32", t3, t3, 4, sT[2]), valu("v_add_u32", vRS, t3, vST),
                salu("s_lshl_b32", sT[1], sT[0], 7), salu("s_lshl_b32", sT[2], sT[3], 2), salu("s_add_u32", sT[1], sT[1], sT[2]), salu("s_add_u32", sT[1], sT[1], FLAGA_OFF),
                salu("s_cmp_eq_u32", None, sW, 0), salu("s_cselect_b32", sT[1], sT[1], OOB),
                valu("v_mov_b32", t2, OOB), valu("v_mov_b32", t3, sT[1]), valu("v_cmp_eq_u32", "vcc", 0, vLane), valu("v_cndmask_b32", vF0, t2, t3, "vcc"),
                valu("v_mov_b32", one, "0x3f803f80"), valu("v_mov_b32", sm, 0), valu("v_mov_b32", sq, 0), salu("s_mov_b32", sXS, 4096))
        add(salu("s_lshl_b32", sT[1], sRB, 2), salu("s_add_u32", sT[1], sT[1], sW), salu("s_lshl_b32", sT[2], sT[1], 7), salu("s_add_u32", sT[2], sT[2], FLAGA_OFF),
            valu("v_and_b32", vPOLL, 1, vLane), valu("v_lshlrev_b32", vPOLL, 2, vPOLL), valu("v_add_u32", vP0, sT[2], vPOLL),
            salu("s_lshl_b32", sT[1], sT[1], 15), salu("s_add_u32", sT[1], sT[1], XN_OFF), valu("v_lshl_add_u32", vXN, vLane, 4, sT[1]),
            salu("s_cmp_eq_u32", None, sW, 0), salu("s_cselect_b32", sT[1], 0, OOB), salu("s_cselect_b32", sT[3], 0 if c.nodbg else 1, 0),
            valu("v_lshl_add_u32", vDB, t1, 2, sT[1]), valu("v_mov_b32", vTLB, sT[3]))
        add(self.dma_setup(1), self.dma_setup(2))
        add(self.w2_setup())
        if c.setup_early or not B: self.misc_setup()
        add(self.stamp(65 + 256))
        if B:
            add(wait(vm="x"))
            add([ds_read("ds_read_b128", xr.sub(4 * i, 4), vXL if i & 1 else vXR, 2048 * (i >> 1)) for i in range(4)])
            add(self.stamp(64 + 256))
            for r in range(16): add(valu("v_dot2c_f32_bf16", sm, xr[r], one, rmw=True), valu("v_dot2c_f32_bf16", sq, xr[r], xr[r], rmw=True))
            add([valu("v_lshlrev_b32", lo[i], 16, xr[i]) for i in range(3)])
            add(valu("v_permlane32_swap_b32", sm, sq, rmw=True, wr2=sq), valu("v_add_f32", sm, sm, sq), valu("v_mov_b32", sq, sm))
            add([valu("v_lshlrev_b32", lo[i], 16, xr[i]) for i in (3, 4)])
            add(valu("v_permlane16_swap_b32", sm, sq, rmw=True, wr2=sq), valu("v_add_f32", sm, sm, sq))
            add(ds_write("ds_write_b32", vRS, sm, tag="st"))
            add(wait(vm="reset"), buf_store("buffer_store_dword", vFV, vSG, rDBG, flags="sc1"))
            add([valu("v_lshlrev_b32", lo[i], 16, xr[i]) for i in range(5, 16)])
            add(wait(lg="st"), self.stamp(256), barrier(), self.stamp(256))
            add([ds_read("ds_read_b128", part.sub(4 * i, 4), vST, 16 * i) for i in range(2)])
            add([valu("v_and_b32", xr[i], "0xffff0000", xr[i]) for i in range(16)])
            add(valu("v_pk_add_f32", part.sub(0, 2), part.sub(0, 2), part.sub(2, 2)), valu("v_pk_add_f32", part.sub(4, 2), part.sub(4, 2), part.sub(6, 2)),
                valu("v_add_f32", sm, part[0], part[1]), valu("v_add_f32", sq, part[4], part[5]),
                valu("v_mul_f32", sm, f32(1 / 512), sm), valu("v_mul_f32", sq, f32(1 / 512), sq),
                valu("v_fma_f32", sq, f"-{sm}", sm, sq), valu("v_max_f32", sq, 0, sq),
                valu("v_cvt_pk_bf16_f32", sq, sq, sm),
                valu("v_and_b32", sm, "0xffff0000", sq), valu("v_lshlrev_b32", sq, 16, sq),
                valu("v_add_f32", sq, f32(1e-5), sq), valu("v_cvt_pk_bf16_f32", sq, sq, sq), valu("v_lshlrev_b32", sq, 16, sq),
                valu("v_sqrt_f32", sq, sq), valu("v_cvt_pk_bf16_f32", sq, sq, sq), valu("v_lshlrev_b32", sq, 16, sq),
                valu("v_rcp_f32", rb[1], sq), valu("v_mul_f32", rb[0], f"-{sm}", rb[1]))
            for h in range(4):
                for r in (lo, xr):
                    add([valu("v_pk_fma_f32", r.sub(i, 2), r.sub(i, 2), rb, rb, extra="op_sel:[0,1,0] op_sel_hi:[1,1,0]") for i in (4 * h, 4 * h + 2)])
                add([valu("v_cvt_pk_bf16_f32", xr[i], lo[i], xr[i]) for i in range(4 * h, 4 * h + 4)])
                add(buf_store("buffer_store_dwordx4", xr.sub(4 * h, 4), vXS, rWS, sXS if h >> 1 else 0, 2048 * (h & 1), flags="sc1"))
            add(self.poll_issue(vDB, rDBG))
            add(self.stamp(64))
            for _ in range(c.w_a): add(self.dma_slab())
            if c.b_rest is not None:
                add(salu("s_lshl1_add_u32", sT[0], sRB, sJ), salu("s_lshl2_add_u32", sT[1], sT[0], sW), salu("s_mul_i32", sT[1], sT[1], 4 * 3072), salu("s_lshl_b32", sT[2], sGQ, 8),
                    salu("s_add_u32", sT[1], sT[1], sT[2]), valu("v_and_b32", t2, 3, t0), valu("v_mul_u32_u24", t2, 3072, t2), valu("v_and_b32", t3, 1, t1),
                    valu("v_lshl_add_u32", t2, t3, 7, t2), valu("v_add_u32", vTCH[3], sT[1], t2),
                    salu("s_and_b32", sT[2], sW, 1), salu("s_lshl1_add_u32", sT[1], sT[0], sT[2]), salu("s_mul_i32", sT[1], sT[1], 8 * 3584),
                    salu("s_mul_i32", sT[2], sGQ, 7 * 128), salu("s_add_u32", sT[1], sT[1], sT[2]), salu("s_add_u32", sT[1], sT[1], 256),
                    valu("v_mul_u32_u24", t2, 3584, t0), valu("v_add_u32", t2, sT[1], t2), valu("v_and_b32", t3, 3, t1), valu("v_lshl_add_u32", vTCH[2], t3, 7, t2))
                self.rest = self.touch(vTCH[3], rQKV) + self.touch(vTCH[2], rGU)
            if not c.setup_early: self.misc_setup()
            pre, rd, self.ts = tile_store()
            add(pre)
            add(self.poll_check(vDB, rDBG, vTLB))
            add(self.stamp(64))
            add(barrier(), self.stamp(64), buf_store("buffer_store_dword", vFV, vF0, rWS, flags="sc1"))
            wo = [salu("s_lshr_b32", sT[1], sWQ, 2), set_m0(sT[1], TL, "tl"), buf_dma(vTL, rD, tag="tl")]
            if c.wo_late == 0: add(wo)
            for _ in range(c.w_b): add(self.dma_slab())
        else:
            pre, rd, self.ts = tile_store()
            add(pre)
            add(self.stamp(64 + 256), self.dma_slab(), self.stamp(256), wait(vm="w0"), self.stamp(64 + 256))
            add(buf_store("buffer_store_dwordx4", p6, vPS, rWS, flags="sc1"))
            if c.ts_pos < 0: add(self.ts); self.ts = []
            add(self.poll_issue(vDB, rDBG))
            for _ in range(c.w_c - 1): add(self.dma_slab())
            if c.c_rest == -2: add(self.rest)
            add(self.poll_check(vDB, rDBG, vTLB), self.stamp(64), barrier(), self.stamp(64))
        add(self.poll_issue(vP0, rWS), wait_regs(vPV), self.stamp(64), self.poll_check(vP0, rWS, 1))
        add(self.stamp(65 + 256))
        self.nx = 0
        for _ in range(c.nx0 // 2): add(self.x_load())
        add(wait(vm=["w0", "tl"]), barrier(), rd)
        F = self.frag_list()
        for k in range(c.LA):
            add(self.frag_reads(k, F[k]))
            if k % 2 and self.nx < c.nx0: add(self.x_load())
        while self.nx < c.nx0: add(self.x_load())
    def x_load(self):
        j = self.nx; self.nx += 1
        o = []
        if j % 4 == 0: o += [salu("s_mov_b32", sXS, j * 1024)]
        return o + [buf_load("buffer_load_dwordx4", X.sub(4 * j, 4), vXN, rWS, 0 if self.cfg.dbg & 8 else sXS, (j % 4) * 1024, flags="sc1")]

    def misc_setup(self):
        add = self.add
        t0, t1, t2, t3 = T[0], T[1], T[2], T[3]
        add(valu("v_and_b32", t0, 3, vLane), valu("v_bfe_u32", t1, vLane, 2, 2), valu("v_bfe_u32", t2, vLane, 4, 1), valu("v_lshrrev_b32", t3, 5, vLane),
            valu("v_lshl_add_u32", vTR0, t3, 3, t1), valu("v_lshlrev_b32", vTR0, 7, vTR0),
            valu("v_lshrrev_b32", t1, 1, t1), valu("v_lshl_add_u32", vTR0, t1, 6, vTR0),
            valu("v_and_b32", t1, 1, t0), valu("v_lshl_add_u32", vTR0, t1, 5, vTR0),
            valu("v_lshrrev_b32", t0, 1, t0), valu("v_lshl_add_u32", t0, t2, 1, t0), valu("v_lshl_add_u32", vTR0, t0, 3, vTR0),
            valu("v_xor_b32", vTR1, 64, vTR0))
        self.win = [0, 0, 0]
        for ch in range(3):
            if not (self.B and ch == 0): add(self.set_hu(ch))
        if self.B: add(self.att_setup())
        else: add(valu("v_bfe_u32", t0, vTR0, 7, 4), valu("v_and_b32", t1, 63, vTR0), valu("v_lshl_add_u32", vVTR, t0, 6, t1))
        add(salu("s_lshl_b32", sT[1], sRB, 2), salu("s_add_u32", sT[1], sT[1], sW), salu("s_mul_i32", sT[2], sT[1], HSTR),
            valu("v_lshl_add_u32", vHST, vLane, 4, sT[2]))
        if self.cfg.dbg & 1: add(valu("v_mov_b32", vHST, OOB))
        add(salu("s_lshr_b32", sT[1], sT[1], 1), salu("s_lshl_b32", sT[1], sT[1], 2), salu("s_add_u32", sT[1], sT[1], sGQ), salu("s_lshl_b32", sT[1], sT[1], 10),
            salu("s_and_b32", sT[2], sW, 1), salu("s_lshl_b32", sT[3], sJ, 1), salu("s_add_u32", sT[2], sT[2], sT[3]), salu("s_lshl_b32", sT[2], sT[2], 2),
            salu("s_add_u32", sT[1], sT[1], sT[2]), salu("s_add_u32", sT[1], sT[1], FLAG_OFF),
            valu("v_mov_b32", t0, OOB), valu("v_mov_b32", t1, sT[1]), valu("v_cmp_eq_u32", "vcc", 0, vLane), valu("v_cndmask_b32", vFLG, t0, t1, "vcc"))
        add(salu("s_lshl_b32", sT[1], sTB2, 1), salu("s_lshr_b32", sT[2], sW, 1), salu("s_add_u32", sT[1], sT[1], sT[2]), salu("s_mul_i32", sP2h, sT[1], HSTR),
            salu("s_xor_b32", sT[2], sT[1], 1), salu("s_mul_i32", sHS, sT[2], HSTR),
            salu("s_lshl_b32", sT[1], sT[1], 5),
            salu("s_and_b32", sT[2], sT[1], 1023), salu("s_lshl_b32", sT[2], sT[2], 11), salu("s_lshr_b32", sT[1], sT[1], 10), salu("s_lshl_b32", sT[1], sT[1], 10),
            salu("s_add_u32", sT[1], sT[1], sT[2]), salu("s_lshl_b32", sT[2], sCB2, 7), salu("s_add_u32", sT[1], sT[1], sT[2]),
            salu("s_and_b32", sT[2], sW, 1), salu("s_lshl_b32", sT[2], sT[2], 6), salu("s_add_u32", sP2x, sT[1], sT[2]),
            salu("s_lshl_b32", sT[1], sTB2, 2), salu("s_add_u32", sT[1], sT[1], sW), salu("s_lshl_b32", sT[1], sT[1], 10), salu("s_add_u32", sP2f, sT[1], FLAG_OFF))
        add(salu("s_mul_i32", sT[1], sCB2, 72 * 4096), salu("s_add_u32", sT[1], sT[1], WT_OFF), salu("s_lshl_b32", sT[2], sT[2], 4),
            salu("s_add_u32", sT[3], sT[1], sT[2]), valu("v_lshl_add_u32", vW[0], vLane, 4, sT[3]),
            salu("s_sub_u32", sT[3], sT[1], sT[2]), valu("v_lshl_add_u32", vW[1], vLane, 4, sT[3]), valu("v_lshl_add_u32", vWB, vLane, 4, sWQ),
            salu("s_lshl_b32", sT[1], sCB2, 8), salu("s_add_u32", sT[1], sT[1], FLAGA_OFF + 96 * 128), salu("s_lshl_b32", sT[2], sGQ, 9), salu("s_add_u32", sT[2], sT[2], FLAGA_OFF + 64 * 128),
            salu("s_lshr_b32", sT[3], sCB2, 1), salu("s_xor_b32", sT[3], sT[3], self.cfg.tx), salu("s_lshl_b32", sT[3], sT[3], 9), salu("s_add_u32", sT[3], sT[3], FLAGA_OFF + 80 * 128),
            salu("s_cmp_eq_u32", None, sW, 0), salu("s_cselect_b32", sT[1], sT[1], OOB), salu("s_cselect_b32", sT[2], sT[2], OOB), salu("s_cselect_b32", sT[3], sT[3], OOB),
            salu("s_cselect_b32", sW0, 1, 0),
            valu("v_and_b32", t0, 24, vLane), valu("v_lshlrev_b32", t0, 2, t0), valu("v_and_or_b32", t0, vLane, 7, t0), valu("v_and_b32", t1, 63, t0),
            valu("v_lshl_add_u32", t1, t1, 2, sT[1]), valu("v_lshl_add_u32", vP2, t0, 2, sT[3]),
            valu("v_cmp_lt_u32", "vcc", 31, vLane), valu("v_cndmask_b32", vP2, vP2, t1, "vcc"))
        if not self.B: add(valu("v_lshl_add_u32", vP6, t0, 2, sT[2]))
        add(salu("s_xor_b32", sU[0], sTB2, sCB2), salu("s_and_b32", sU[0], sU[0], 3 if self.cfg.rot else 0), salu("s_lshl_b32", sU[0], sU[0], 11),
            [salu("s_xor_b32", sU[t], sU[0], t << 11) for t in (1, 2, 3)], [salu("s_and_b32", sUh[t], sU[t], 1 << 11) for t in (0, 1)])

    def chunk_of(self, n): return 0 if n < 8 else (1 if n < 12 else 2)
    def dma_setup(self, ch):
        t0, t1 = T[0], T[1]
        o = []
        B = self.B
        half = (not B) and ch == 1
        stride = 3072 if (B and ch < 2) else 3584
        if half:
            return [salu("s_lshl_b32", sT[1], sGQ, 1), salu("s_add_u32", sT[1], sT[1], sJ), salu("s_lshl_b32", sT[1], sT[1], 16), salu("s_add_u32", sT[1], sT[1], sWQ),
                    salu("s_add_u32", sT[1], sT[1], P6_OFF - 2 * 65536), valu("v_lshl_add_u32", vDMA1, vLane, 4, sT[1])]
        else:
            o += [valu("v_lshrrev_b32", t0, 2, vLane), valu("v_and_b32", t0, 4, t0), valu("v_and_b32", t1, 7, vLane), valu("v_xor_b32", t1, t0, t1),
                  valu("v_lshrrev_b32", t0, 3, vLane)]
        o += [valu("v_mul_u32_u24", t0, stride, t0), valu("v_lshl_add_u32", t0, t1, 4, t0)]
        a, b = sT[1], sT[2]
        if B and ch == 0:
            o += [salu("s_lshl_b32", a, sGQ, 1), salu("s_add_u32", a, a, sJ), salu("s_lshl_b32", a, a, 7), salu("s_lshr_b32", b, sW, 1),
                  salu("s_add_u32", b, b, 1), salu("s_lshl_b32", b, b, 10), salu("s_add_u32", a, a, b), salu("s_and_b32", b, sW, 1),
                  salu("s_mul_i32", b, b, 32 * stride), salu("s_add_u32", a, a, b)]
        elif B and ch == 1:
            o += [salu("s_lshl_b32", a, sGQ, 1), salu("s_add_u32", a, a, sJ), salu("s_lshl_b32", a, a, 7), salu("s_mul_i32", b, sW, 32 * stride),
                  salu("s_add_u32", a, a, b)]
        else:
            if half: o += [salu("s_lshl_b32", b, sJ, 6), salu("s_add_u32", b, b, 6 * 128 - 128)]
            else: o += [salu("s_lshl_b32", b, sJ, 7), salu("s_sub_u32" if ch == 0 else "s_add_u32", b, b, 256)]
            o += [salu("s_mul_i32", a, sGQ, 7 * 128), salu("s_add_u32", a, a, b), salu("s_and_b32", b, sW, 1),
                  salu("s_mul_i32", b, b, (64 if half else 32) * stride), salu("s_add_u32", a, a, b)]
        o += [valu("v_add_u32", (vDMA0, vDMA1, vDMA2)[ch], a, t0)]
        return o
    def dma_slab(self):
        n = self.nslab; self.nslab += 1
        ch = self.chunk_of(n)
        B = self.B
        vd = (vDMA0, vDMA1, vDMA2)[ch]
        srd = rQKV if (B and ch < 2) else rGU
        so = (sOA if ch < 2 else sOB) if B else (sOB if ch == 1 else sOA)
        stride = 3072 if (B and ch < 2) else 3584
        o = [set_m0(sWQ, slab_slot(n) * SLOT, f"w{n}")]
        if ch == 1 and not B:
            if n > 8: o += [valu("v_add_u32", vd, 16384, vd)]
            return o + [buf_dma(vd, rWS, 0, i * 1024, flags="sc1", tag=f"w{n}") for i in range(4)]
        if n not in (0, 8, 12) and not self.cfg.dbg & 16: o += [valu("v_add_u32", vd, (128 if ch == 1 else 64) * stride, vd)]
        o += [buf_dma(vd, srd, so[i], i * 1024, flags="sc1" if self.cfg.dbg & 16 else "", tag=f"w{n}") for i in range(4)]
        return o
    def frag_list(self):
        L = []
        for n in range(20):
            ch = self.chunk_of(n)
            base = slab_slot(n) * SLOT
            if ch != 1:
                n0 = 0 if ch == 0 else 12
                for jj in range(4):
                    for blk in range(4):
                        L.append((ACC1.sub(16 * blk, 16), 4 * (n - n0) + jj, n, base + (blk & 1) * 8192 + jj * 2048, blk >> 1, 512))
            else:
                for jj in range(8):
                    for blk in range(2):
                        if self.B: L.append((ACC2.sub(16 * blk, 16), 8 * (n - 8) + jj, n, base + jj * 2048, blk, 512))
                        else: L.append((ACC2.sub(16 * blk, 16), 8 * (n - 8) + jj, n, base + blk * 8192 + jj * 1024, 2, 256))
        k0 = 320 - 16 * self.cfg.nspl
        L[k0:] = [f for f in L[k0:] if f[4] == 0] + [f for f in L[k0:] if f[4] == 1]
        return L
    def window(self, wins, which, reg, off, span):
        o = []
        if not (wins[which] <= off and off + span <= wins[which] + 65536):
            w = off // SLOT * SLOT
            d = w - wins[which]
            o += [valu("v_add_u32" if d > 0 else "v_subrev_u32", reg, abs(d), reg)]
            wins[which] = w
        return o, off - wins[which]
    def frag_reads(self, k, f):
        acc, step, n, off, which, ustep = f
        b = (vTR0, vTR1, vVTR)[which]
        o, imm = self.window(self.win, which, b, off, 1024)
        dst = WF.sub(4 * (k % self.cfg.NB), 4)
        o += [ds_read("ds_read_b64_tr_b16", dst.sub(0, 2), b, imm, tag=f"f{k}"), ds_read("ds_read_b64_tr_b16", dst.sub(2, 2), b, imm + ustep, tag=f"f{k}")]
        return o
    def ffn_epi(self, G, U, ch, kst, tag, pk=False):
        o = []
        for b in range(4):
            t = [T[4 + i] for i in range(4)]
            g = [G[4 * b + i] for i in range(4)]; u = [U[4 * b + i] for i in range(4)]
            if pk:
                t2 = [T.sub(4, 2), T.sub(6, 2)]; g2 = [G.sub(4 * b, 2), G.sub(4 * b + 2, 2)]; u2 = [U.sub(4 * b, 2), U.sub(4 * b + 2, 2)]
                o += [valu("v_pk_mul_f32", t2[i], g2[i], T.sub(0, 2)) for i in range(2)]
                o += [valu("v_exp_f32", t[i], t[i]) for i in range(4)]
                o += [valu("v_pk_mul_f32", u2[i], g2[i], u2[i]) for i in range(2)]
                o += [valu("v_pk_add_f32", t2[i], t2[i], T.sub(2, 2)) for i in range(2)]
                o += [valu("v_rcp_f32", t[i], t[i]) for i in range(4)]
                o += [valu("v_pk_mul_f32", u2[i], u2[i], t2[i]) for i in range(2)]
            else:
                o += [valu("v_mul_f32", t[i], f32(-LOG2E), g[i]) for i in range(4)]
                for i in range(4): o += [valu("v_exp_f32", t[i], t[i]), valu("v_mul_f32", u[i], g[i], u[i])]
                o += [valu("v_add_f32", t[i], "1.0", t[i]) for i in range(4)]
                o += [valu("v_rcp_f32", t[i], t[i]) for i in range(4)]
                o += [valu("v_mul_f32", u[i], u[i], t[i]) for i in range(4)]
            o += [valu("v_cvt_pk_bf16_f32", G[2 * b + i], u[2 * i], u[2 * i + 1]) for i in range(2)]
            if b & 1: o += [buf_store("buffer_store_dwordx4", G.sub(2 * (b - 1), 4), vHST, rWS, sHu[ch], kst + (b >> 1) * 1024, flags=self.cfg.hflags, tag=tag)]
        return o
    def set_hu(self, ch):
        a = sT[1]
        if self.B and ch == 1:
            return [salu("s_lshl_b32", a, sGQ, 1), salu("s_add_u32", a, a, sJ), salu("s_lshl_b32", a, a, 12), salu("s_add_u32", sHu[ch], a, 112 * 1024)]
        o = [salu("s_mul_i32", sHu[ch], sGQ, 28 * 1024)]
        if ch == 1: o += [salu("s_lshl_b32", a, sJ, 11), salu("s_add_u32", a, a, 6 * 4096 - 4096)]
        else: o += [salu("s_lshl_b32", a, sJ, 12), salu("s_sub_u32" if ch == 0 else "s_add_u32", a, a, 8192)]
        return o + [salu("s_add_u32", sHu[ch], sHu[ch], a)]

    def phase1(self):
        c, add, B = self.cfg, self.add, self.B
        F = self.frag_list()
        NM = len(F)
        gaps = [[] for _ in range(NM)]
        tail = [[] for _ in range(NM)]
        load = [0] * NM
        def put(k, ins, last=False):
            (tail if last else gaps)[k] += ins
            load[k] += sum(cyc(i) for i in ins)
        def spread(ins, k0, k1):
            tot = sum(cyc(i) for i in ins)
            lo, hi = 0.0, 1000.0
            for _ in range(40):
                mid = (lo + hi) / 2
                if sum(max(0, mid - load[k]) for k in range(k0, k1)) >= tot: hi = mid
                else: lo = mid
            cap, acc = [], 0.0
            for k in range(k0, k1):
                acc += max(0, hi - load[k]); cap.append(acc)
            k, used = 0, 0.0
            for i in ins:
                while k < len(cap) - 1 and used + cyc(i) / 2 > cap[k] and i.kind != "branch": k += 1
                put(k0 + k, [i]); used += cyc(i)
        bar_gap = {n: 16 * n - c.LA - 1 for n in range(1, 20)}
        bar_gap[0], bar_gap[20] = -1, NM
        self.bar_extra = {n: [] for n in range(1, 21)}
        need = {n: max(f[2] for f in F[:min(NM, bar_gap[n + 1] + c.LA + 1)]) for n in range(20)}
        lastx = lambda i: max(k for k, f in enumerate(F) if f[1] // 4 == i)
        plan = dict((int(p.split(":")[0]), p.split(":")[1].split(".")) for p in (c.planB if B else c.planC).split(",") if p)
        self.pool = list(ABUF) + VBUF[:5] + ([] if B else VBUF[5:7])
        put(bar_gap[c.pw_per] - 1 - c.pw_lead, self.poll_issue(vP2, rWS))
        put(bar_gap[c.pw_per] - 1, self.poll_check(vP2, rWS, sW0))
        if not B:
            assert bar_gap[c.p6_per] <= bar_gap[c.pw_per] - 1 - c.pw_lead
            put(bar_gap[c.p6_per] - 1 - c.pw_lead, self.poll_issue(vP6, rWS))
            put(bar_gap[c.p6_per] - 1, self.poll_check(vP6, rWS, sW0))
        put(bar_gap[c.f2_bar] + 1, [buf_store("buffer_store_dword", vFV, vF2, rWS, 0, 2048, flags="sc1")])
        for n in range(20):
            k = bar_gap[n]
            if n: load[k] += 14
            if n == 19 and B: self.pool += VBUF[5:]
            if n == 9 and not B: self.pool += VBUF[7:]
            ops = list(plan.get(n, []))
            ins = []
            while ops and ops[0] in ("r", "H"):
                ins += self.plan_op(ops.pop(0), n)
            w = []
            nw = 0
            while self.nslab < 20 and self.nslab <= n + c.NS - 2 and (B or self.nslab < 8 or n >= c.p6_per) and (self.nslab <= need[min(19, n + 2)] or nw + ops.count("w") < 1 or "w" in ops):
                if nw and "w" in ops: ops.remove("w")
                w += self.dma_slab(); nw += 1
            ops = [x for x in ops if x != "w"]
            assert self.nslab > need[min(19, n + 2)], n
            if n == max(c.ts_pos, 0): ins += self.ts
            while c.xfree and self.xf_n < 5 and lastx(self.xf_n) <= k: self.pool += [A(16 * self.xf_n, 16)]; self.xf_n += 1
            nxl = min(32 - self.nx, c.xrate if n else max(1, c.xrate // 2))
            for i in w:
                if i.kind == "dma" and nxl: ins += self.x_load(); nxl -= 1
                ins.append(i)
            for _ in range(nxl): ins += self.x_load()
            assert self.nx >= min(32, (bar_gap[n + 1] + 16) // 4 + 1), n
            if n == (c.b_rest if B else c.c_rest): ins += self.rest
            for op in ops: ins += self.plan_op(op, n)
            if ins: spread(ins, k + 1, bar_gap[n + 1])
        if not B:
            ins = self.ffn_epi(ACC1.sub(0, 16), ACC1.sub(16, 16), 0, 0, "st1") + self.ffn_epi(ACC1.sub(32, 16), ACC1.sub(48, 16), 0, 2048, "st1")
            spread(ins, 129, 191)
            put(c.g_f1c, self.flag(L_P1, "st1"))
            spread(self.ffn_epi(ACC2.sub(0, 16), ACC2.sub(16, 16), 1, 0, "st2"), 194, c.h2_end)
            put(c.g_f2c, self.flag(L_HALF, "st2"))
        else:
            self.attention(put, spread, bar_gap, load)
        if c.nspl:
            k0 = max(320 - 8 * c.nspl + 2, self.att_end + 7 if B else 0)
            spread(self.ffn_epi(ACC1.sub(0, 16), ACC1.sub(16, 16), 2, 0, "st3"), k0, c.e0_end)
        o = [valu("v_lshl_add_u32", vH[0], vLane, 4, sP2h), valu("v_lshl_add_u32", vH[1], vLane, 4, sHS),
             valu("v_and_b32", vPOLL, 7, vLane), valu("v_lshrrev_b32", vTHR, 2, vPOLL), valu("v_lshl_add_u32", vPOLL, vPOLL, 2, sP2f),
             valu("v_and_b32", vXO, 31, vLane), valu("v_lshlrev_b32", vXO, 11, vXO), valu("v_and_or_b32", vXO, vLane, 32, vXO), valu("v_add_u32", vXO, sP2x, vXO)]
        spread(o, *((176, 192) if B else (200, c.g_pa)))
        put(c.g_pa, self.poll_issue(vPOLL, rWS, L_P1))
        assert c.g_pa < bar_gap[c.pa_per] - 1
        put(bar_gap[c.pa_per] - 1, self.poll_check(vPOLL, rWS, vTHR, L_P1))
        put(c.g_pa2, self.poll_issue(vPOLL, rWS, L_HALF))
        if c.pa2_epi < 0: put(319, self.poll_check(vPOLL, rWS, vTHR, L_HALF))
        spread([valu("v_mov_b32", T[0], f32(-LOG2E)), valu("v_mov_b32", T[1], f32(-LOG2E)), valu("v_mov_b32", T[2], "1.0"), valu("v_mov_b32", T[3], "1.0")], 312, 320)
        inv_bar = {v: n for n, v in bar_gap.items() if 1 <= n <= 19}
        for k in range(NM):
            acc, step, n, off, which, us = F[k]
            if k % 2 == 0: add(wait(lg=[f"f{i}" for i in range(k, k + 2)]))
            add(mfma(32, acc, WF.sub(4 * (k % c.NB), 4), X.sub(4 * step, 4), 0 if step == 0 else acc))
            if k == 0: add(self.stamp(67))
            if k + c.LA < NM: add(self.frag_reads(k + c.LA, F[k + c.LA]))
            add(gaps[k]); add(tail[k])
            if k in inv_bar:
                n = inv_bar[k]
                if n == 19 or need[n] > need[n - 1]: add(wait(vm=[f"w{need[n]}"] + (["ts"] if n == c.f2_bar else []), lg=self.bar_extra[n] or None), barrier())
            if k in (127, 191): add(self.stamp())
            if k in (31, 63): add(self.stamp(64))
            if k % 32 == 31 and 31 < k < 319: add(self.stamp(2))
            if k in c.sg: add(self.stamp(32))
        add(self.stamp(131))
        self.load = load
    def plan_op(self, op, n):
        if op == "l":
            assert n >= self.cfg.pw_per
            return self.w2_load()
        if op == "h":
            assert n >= self.cfg.pa_per and self.h_n < 4
            return self.h_load()
        if op == "P": return self.poll_issue(vPOLLH, rWS)
        if op == "H":
            self.halo_period = n
            i = salu("s_mov_b32", "m0", sHM0); i.tag = "halo"
            return self.poll_check(vPOLLH, rWS, sTHR) + [i] + [buf_dma((vHLD, vHLD2)[q], rWS, 0, 1024 * q, flags="sc1", tag="halo") for q in range(2)]
        slot = int(op[1:])
        if slot < self.cfg.NS: assert n >= 2 + max(x for x in range(20) if slab_slot(x) == slot)
        if self.B and slot >= 7: assert n >= 19
        assert n >= self.cfg.pw_per
        return self.w2_dma(slot)

    def att_setup(self):
        t0, t1 = T[0], T[1]
        o = [valu("v_and_b32", t0, 31, vLane), valu("v_mul_u32_u24", t0, RP, t0), valu("v_and_or_b32", t1, vLane, 32, 0), valu("v_add_u32", t0, t0, t1),
             salu("s_mul_i32", sT[0], sW, 32 * RP), salu("s_add_u32", sT[0], sT[0], SCR), valu("v_add_u32", vSCR, sT[0], t0),
             valu("v_and_b32", t0, 3, vLane), valu("v_bfe_u32", vVTR, vLane, 2, 2), valu("v_lshl_add_u32", t0, t0, 2, vVTR), valu("v_and_or_b32", t0, vLane, 16, t0),
             valu("v_mul_u32_u24", t0, RP, t0), valu("v_add3_u32", vVTR, sT[0], t0, t1),
             salu("s_mov_b32", sT[0], SCR + 128 * RP + 128), valu("v_lshl_add_u32", vHRB, vLane, 4, sT[0])]
        o += [salu("s_lshl_b32", sT[1], sRB, 3), salu("s_lshl_b32", sT[2], sGQ, 1), salu("s_add_u32", sT[1], sT[1], sT[2]), salu("s_add_u32", sT[1], sT[1], sJ),
              salu("s_lshl_b32", sC1, sT[1], 11), salu("s_add_u32", sC1, sC1, HALO_OFF),
              salu("s_cmp_eq_u32", None, sW, 3), salu("s_cselect_b32", sT[1], sC1, OOB), valu("v_lshl_add_u32", vHALO, vLane, 4, sT[1]),
              salu("s_and_b32", sT[1], sRB, 7), salu("s_or_b32", sT[2], sT[1], sW), salu("s_cselect_b32", sM1[0], 0, "0xf"), salu("s_cselect_b32", sM2[0], 0, "0xff"),
              salu("s_mov_b32", sM1[1], sM1[0]), salu("s_mov_b32", sM2[1], sM2[0]), salu("s_mov_b32", sHM0, SPARE),
              salu("s_cmp_eq_u32", None, sW, 0), salu("s_cselect_b32", sHM0, SCR + 128, sHM0), salu("s_cselect_b32", sT[1], sT[1], 0),
              salu("s_cmp_lg_u32", None, sT[1], 0), salu("s_cselect_b32", sTHR, 1, 0),
              salu("s_sub_u32", sT[2], sC1, 8 * 2048), salu("s_cmp_lg_u32", None, sTHR, 0), salu("s_cselect_b32", sT[2], sT[2], OOB),
              valu("v_lshl_add_u32", vHLD, vLane, 4, sT[2]), valu("v_mov_b32", vHLD2, vHLD)]
        if self.cfg.kv_mode == 4:
            for q, dst in enumerate((vHLD, vHLD2)):
                o += [valu("v_add_u32", t0, 8 + 64 * q, vLane), valu("v_mul_u32_u24", t1, 241, t0), valu("v_lshrrev_b32", t1, 12, t1), valu("v_mul_u32_u24", dst, 17, t1),
                      valu("v_sub_u32", t0, t0, dst), valu("v_min_u32", t0, 15, t0), valu("v_lshlrev_b32", t1, 4, t1), valu("v_lshl_add_u32", t0, t0, 7, t1),
                      valu("v_add_u32", dst, sT[2], t0)]
                if q: o += [valu("v_subrev_u32", dst, 1024, dst)]
            o += [salu("s_sub_u32", sT[1], sC1, 24 * 16), salu("s_cmp_eq_u32", None, sW, 3), salu("s_cselect_b32", sT[1], sT[1], OOB),
                  valu("v_and_b32", t0, 31, vLane), valu("v_lshrrev_b32", t1, 5, vLane), valu("v_lshlrev_b32", t1, 8, t1), valu("v_lshl_add_u32", t1, t0, 4, t1),
                  valu("v_add_u32", t1, sT[1], t1), valu("v_cmp_lt_u32", "vcc", 23, t0), valu("v_mov_b32", t0, OOB), valu("v_cndmask_b32", vHALO, t0, t1, "vcc")]
        o += [
              salu("s_lshl_b32", sT[1], sRB, 3), salu("s_add_u32", sT[1], sT[1], sGQ), salu("s_lshl_b32", sT[1], sT[1], 10), salu("s_lshl_b32", sT[2], sJ, 3),
              salu("s_add_u32", sT[1], sT[1], sT[2]), salu("s_add_u32", sT[1], sT[1], FLAG_OFF - 4096 + 4), salu("s_cmp_lg_u32", None, sTHR, 0),
              salu("s_cselect_b32", sT[1], sT[1], OOB), valu("v_mov_b32", vPOLLH, sT[1]), salu("s_mov_b32", sCS, f32(0.25 * LOG2E))]
        o += [valu("v_and_b32", t0, 3, vLane), valu("v_mov_b32", t1, "0xffff"),
              valu("v_cmp_le_u32", sJ1, 1, t0), valu("v_cmp_le_u32", sJ2, 2, t0), valu("v_cmp_le_u32", sJ3, 3, t0),
              valu("v_cndmask_b32", vA01, t1, -1, sJ1), valu("v_cndmask_b32", vA23, 0, t1, sJ2), valu("v_cndmask_b32", vA23, vA23, -1, sJ3)]
        return o
    def attention(self, put, spread, bar_gap, load):
        c = self.cfg
        units = []
        if c.kv_mode == 4:
            PK = V(176, 32)
            o, wr = [], []
            for blk in range(4):
                a = ACC1.sub(16 * blk, 16)
                for dh in range(2):
                    d = PK.sub(8 * blk + 4 * dh, 4); pl = (blk & 1) * 8 + (blk >> 1) * 4 + dh
                    o += [valu("v_cvt_pk_bf16_f32", d[i], a[8 * dh + 2 * i], a[8 * dh + 2 * i + 1]) for i in range(4)]
                    o += [buf_store("buffer_store_dwordx4", d, vHALO, rWS, 0, pl * 128, flags="sc1", tag="st1")]
                    wr += [ds_write("ds_write_b128", vSCR, d, pl * 16 + 8 * RP, tag="kv")]
            spread(o, 129, c.kv_end)
            for n, x in enumerate(wr):
                k1 = c.kv_end + (c.kw_end - c.kv_end) * n // 8
                while load[k1] > 0: k1 += 1
                put(k1, [x], last=True)
            nb = min(n for n in range(1, 20) if bar_gap[n] > k1)
            assert bar_gap[nb] < c.g_halo
            self.bar_extra[nb] = ["kv"]
        for blk in range(4):
            a = ACC1.sub(16 * blk, 16)
            kv, cb = blk & 1, blk >> 1
            for dh in range(2):
                cv = [valu("v_cvt_pk_bf16_f32", a[4 * dh + i], a[8 * dh + 2 * i], a[8 * dh + 2 * i + 1]) for i in range(4)]
                off = (kv * 8 + cb * 4 + dh) * 16 + 8 * RP
                if c.kv_mode == 2:
                    for q in range(2): units.append((cv[2 * q:2 * q + 2], ds_write("ds_write_b64", vSCR, a.sub(4 * dh + 2 * q, 2), off + 8 * q, tag="kv")))
                else: units.append((cv, ds_write("ds_write_b128", vSCR, a.sub(4 * dh, 4), off, tag="kv")))
        hs = ACC1.sub(8, 8)
        rd = [ds_read("ds_read_b128", hs.sub(4 * i, 4), vHRB, 1024 * i) for i in range(2)]
        if c.kv_mode == 4: pass
        elif c.kv_mode == 0:
            spread([i for u in units for i in u[0] + [u[1]]] + rd, 129, c.kv_end)
        elif c.kv_mode == 3:
            spread([i for u in units for i in u[0]], 129, c.kv_end - 3)
            put(c.kv_end - 3, [u[1] for u in units]); put(c.kv_end - 1, rd)
        else:
            k0 = 129
            for n, (cv, wr) in enumerate(units):
                k1 = 129 + (c.kv_end - 2 - 129) * (n + 1) // len(units) - 1
                while load[k1] > 0 and k1 > k0 + 1: k1 -= 1
                spread(cv, k0, k1); put(k1, [wr], last=True); load[k1] += 100
                k0 = k1 + 1
            spread(rd, max(k0, c.kv_end - 2), c.kv_end)
        if c.kv_mode != 4:
            put(c.kv_end + 2, [buf_store("buffer_store_dwordx4", hs.sub(0, 4), vHALO, rWS, 0, 0, flags="sc1", tag="st1")])
            put(c.kv_end + 4, [buf_store("buffer_store_dwordx4", hs.sub(4, 4), vHALO, rWS, 0, 1024, flags="sc1", tag="st1")])
            self.bar_extra[12] = ["kv"]
        assert c.kv_end + 4 < min(176, c.g_flag1)
        put(c.g_flag1, self.flag(L_HALO, "st1"))
        Q = ACC2.sub(0, 16); O = ACC2.sub(16, 16)
        Sg = [SG.sub(0, 4), SG.sub(4, 4), SG.sub(8, 4)]
        P = [T.sub(0, 2), T.sub(2, 2), T.sub(4, 2)]
        tm, tz, big = SG[12], SG[13], SG[14]
        spread([valu("v_cvt_pk_bf16_f32", Q[i], ACC2[2 * i], ACC2[2 * i + 1]) for i in range(16)] + [valu("v_mov_b32", big, f32(-1e30))], 195, 215)
        k = c.g_halo
        assert k > bar_gap[self.halo_period + 1]
        put(k, [wait(vm="halo")])
        cs = 0.25 * LOG2E
        for cb in range(2):
            spread([ds_read("ds_read_b128", KA.sub(8 * g + 4 * dh, 4), vSCR, (cb * 4 + dh) * 16 + (2 - g) * 4 * RP) for g in range(3) for dh in range(2)], k, k + 4)
            k += 5
            for dq in range(4):
                put(k + dq // 2, [mfma(4, Sg[g], KA.sub(8 * g + 2 * dq, 2), Q.sub(8 * cb + 2 * dq, 2), Sg[g] if dq else 0) for g in range(3)], last=True)
            k += 2
            vr = [ds_read("ds_read_b64_tr_b16", KA.sub(8 * g + 2 * m, 2), vVTR, (8 + cb * 4) * 16 + m * 8 + (2 - g) * 4 * RP, tag="vr") for g in range(3) for m in range(4)]
            s = [Sg[0][i] for i in range(4)] + [Sg[1][i] for i in range(4)]
            o = vr[:4]
            o += [valu("v_cndmask_b32", Sg[2][r], Sg[2][r], big, sM2) for r in (1, 2, 3)]
            o += [valu("v_cndmask_b32", Sg[1][r], Sg[1][r], big, sM1) for r in range(4)]
            o += [valu("v_cndmask_b32", Sg[0][r], Sg[2][r], Sg[0][r], (None, sJ1, sJ2, sJ3)[r]) for r in (1, 2, 3)]
            o += [valu("v_max3_f32", tm, s[0], s[1], s[2]), valu("v_max3_f32", tz, s[3], s[4], s[5]), valu("v_max3_f32", tm, tm, s[6], s[7]), valu("v_max_f32", tm, tm, tz),
                  valu("v_mul_f32", tm, f32(-cs), tm)]
            o += vr[4:8]
            o += [valu("v_fma_f32", s[i], s[i], sCS, tm) for i in range(8)]
            o += [valu("v_exp_f32", s[i], s[i]) for i in range(8)]
            u = [Sg[2][i] for i in range(4)]
            o += [valu("v_add_f32", u[i], s[2 * i], s[2 * i + 1]) for i in range(4)]
            o += [valu("v_add_f32", u[0], u[0], u[1]), valu("v_add_f32", u[2], u[2], u[3]), valu("v_add_f32", u[0], u[0], u[2]), valu("v_rcp_f32", tz, u[0])]
            o += vr[8:]
            o += [valu("v_mul_f32", s[i], s[i], tz) for i in range(8)]
            o += [valu("v_cvt_pk_bf16_f32", u[0], s[0], s[1]), valu("v_cvt_pk_bf16_f32", u[1], s[2], s[3]),
                  valu("v_cvt_pk_bf16_f32", P[1][0], s[4], s[5]), valu("v_cvt_pk_bf16_f32", P[1][1], s[6], s[7]),
                  valu("v_and_b32", P[0][0], u[0], vA01), valu("v_and_b32", P[0][1], u[1], vA23),
                  valu("v_bfi_b32", P[2][0], vA01, 0, u[0]), valu("v_bfi_b32", P[2][1], vA23, 0, u[1])]
            spread(o, k, k + c.att_w)
            k += c.att_w
            for g in range(3):
                put(k + g // 2, [mfma(4, O.sub(4 * m, 4), KA.sub(8 * g + 2 * m, 2), P[g], O.sub(4 * m, 4) if g else 0) for m in range(4)], last=True)
            k += 2
            o = []
            for dh in range(2):
                o += [valu("v_cvt_pk_bf16_f32", O[4 * dh + i], O[8 * dh + 2 * i], O[8 * dh + 2 * i + 1]) for i in range(4)]
                o += [buf_store("buffer_store_dwordx4", O.sub(4 * dh, 4), vHST, rWS, sHu[1], cb * 2048 + dh * 1024, flags=c.hflags, tag="st2")]
            spread(o, k + 1, k + 7)
        assert k <= bar_gap[19], k
        self.att_end = k
        if not c.nspl and c.f2_epi < 0: put(min(k + 28, 317), self.flag(L_O, "st2"))

    GORD = ([("d", 0, 1, t) for t in range(4)] + [("d", 12, 1, 4 + t) for t in range(2)] + [("o", 0, 1, t) for t in range(4)]
            + [("d", 4, 2, t) for t in range(4)] + [("d", 5, 2, t) for t in range(4)])
    def w2_setup(self):
        return [salu("s_mul_i32", sHd, sW, 28 * 1024), salu("s_lshl_b32", sHo, sW, 13), salu("s_add_u32", sHo, sHo, 112 * 1024),
                salu("s_lshl_b32", sWd, sHd, 1), salu("s_lshl_b32", sWo, sHo, 1)]
    def h_load(self):
        gi = self.h_n; self.h_n += 1
        kind, g0, st, t = self.GORD[gi]
        o = []
        base = sHd if kind == "d" else sHo
        d = ((g0 & ~1) - self.hpos[kind]) * 2048
        self.hpos[kind] = g0 & ~1
        if d: o += [salu("s_add_u32" if d > 0 else "s_sub_u32", base, base, abs(d))]
        o += [salu("s_add_u32" if st == 1 else "s_lshl1_add_u32", sT[0], (sU + sUh)[t], base)]
        dst = self.hreg[gi] = self.pool.pop(0)
        for s in range(2):
            for tb in range(2):
                o += [buf_load("buffer_load_dwordx4", dst.sub(8 * s + 4 * tb, 4), vW[0] if self.cfg.dbg & 2 else vH[tb], rWS, 0 if self.cfg.dbg & 2 else sT[0], s * 1024 + (g0 & 1) * 2048, flags="sc1", tag=f"h{gi}")]
        return o
    def w2_addr(self):
        gi = self.w2_nd; self.w2_nd += 1
        kind, g, st, t = self.GORD[gi]
        base = sWd if kind == "d" else sWo
        d = (g - self.w2pos[kind]) * 4096
        self.w2pos[kind] = g
        o = [salu("s_add_u32" if d > 0 else "s_sub_u32", base, base, abs(d))] if d else []
        return gi, o + [salu(f"s_lshl{st}_add_u32", sWS, (sU + sUh)[t], base)]
    def w2_load(self):
        gi, o = self.w2_addr()
        dst = self.wreg[gi] = self.pool.pop(0)
        return o + [buf_load("buffer_load_dwordx4", dst.sub(4 * i, 4), vW[i & 1], rWS, 0 if self.cfg.dbg & 4 else sWS, i * 1024, flags="sc1", tag=f"g{gi}") for i in range(4)]
    def w2_dma(self, slot):
        gi, o = self.w2_addr()
        assert slot not in self.w2slot.values()
        self.w2slot[gi] = slot
        return [set_m0(sWQ, slot * SLOT, f"g{gi}")] + o + [buf_dma(vW[i & 1], rWS, sWS, i * 1024, flags="sc1", tag=f"g{gi}") for i in range(4)]
    def w2_read(self):
        gi = min(self.w2slot)
        base = self.w2slot.pop(gi) * SLOT
        dst = self.wreg[gi] = self.pool.pop(0)
        o, imm = self.window(self.win2, 0, vWB, base, 4096)
        for i in o: i.tag = f"r{gi}"
        return [wait(vm=f"g{gi}")] + o + [ds_read("ds_read_b128", dst.sub(4 * i, 4), vWB, imm + i * 1024, tag=f"r{gi}") for i in range(4)]
    def phase2(self):
        c, add = self.cfg, self.add
        accF = [ACC2.sub(0, 16), A(80, 16), A(96, 16), A(112, 16)]
        accS = [ACC2.sub(16, 16)]
        PR = [None, ACC1.sub(0, 16), ACC1.sub(16, 16), ACC1.sub(32, 16)]
        xf = ACC1.sub(48, 16)
        red = [vSCR, vVTR, vTR0, vTR1, vDMA2, vHST]
        pool, hreg, wreg, h_load = self.pool, self.hreg, self.wreg, self.h_load
        pool += [A(128, 16), A(144, 16), A(160, 16)] + [A(16 * i, 16) for i in range(self.xf_n, 5)]
        light = []
        heavy = []
        pend = lambda q, tag: any(i.tag == tag for i in q)
        e = ([] if c.nspl else self.ffn_epi(ACC1.sub(0, 16), ACC1.sub(16, 16), 2, 0, "st3", pk=True)) + self.ffn_epi(ACC1.sub(32, 16), ACC1.sub(48, 16), 2, 2048, "st4", pk=True)
        assert 9 not in self.w2slot.values()
        seq = []
        for gi in range(18):
            bl = (1, 2, 3) if gi >= 18 - c.defer else (0, 1, 2, 3)
            seq += [(gi, s, b) for b in bl for s in range(2)] if gi == 17 else [(gi, s, b) for s in range(2) for b in bl]
        seq += [(gi, s, 0) for gi in range(18 - c.defer, 18) for s in range(2)]
        last = {gi: max(m for m, x in enumerate(seq) if x[0] == gi) for gi in range(18)}
        first = {gi: min(m for m, x in enumerate(seq) if x[0] == gi) for gi in range(18)}
        lastb = {b: max(m for m, x in enumerate(seq) if x[2] == b) for b in range(4)}
        st = {"q": [], "gate": 6 if c.pa2_epi < 0 else 4, "x": False, "m": -1, "sw": False}
        def refill():
            okw = self.w2_nd < 18 and len(pool) > (1 if self.w2_nd <= self.h_n else c.keep)
            okh = self.h_n < st["gate"] and len(pool) > 1
            if okh and not (okw and self.w2_nd <= self.h_n + c.wlead): st["q"] += h_load()
            elif okw: st["q"] += self.w2_load()
            elif not st["x"] and st["m"] >= 0 and not pend(light, "ra"):
                st["x"] = True
                st["q"] += [set_m0(sWQ, 9 * SLOT, "xs"), salu("s_mov_b32", sT[1], 16384 - 1024),
                            buf_dma(red[4], rX, 0, 0, tag="xs"), buf_dma(red[4], rX, sT[1], 1024, tag="xs")]
        def pump():
            if not st["q"]: refill()
            while st["q"]:
                x = st["q"].pop(0); add(x)
                if x.kind in ("dma", "vml"): return True
            return False
        step = max(1, len(e) * 3 // 4 // max(1, c.epi_mem))
        k = 0
        for n, i in enumerate(e):
            if self.B and not c.nspl and n == c.f2_epi: add(self.flag(L_O, "st2"))
            if n == c.pa2_epi: add(self.poll_check(vPOLL, rWS, vTHR, L_HALF)); st["gate"] = 6
            if c.nspl and c.m_f3 < 0 and n == c.f3_at: add(self.flag(L_L0, "st3"))
            if n % step == 0 and k < c.epi_mem: pump(); k += 1
            add(i)
        add(self.stamp(129))
        started = set()
        ra = [salu("s_add_u32", sT[2], sWQ, 6 * SLOT), valu("v_lshl_add_u32", red[0], vLane, 4, sT[2])] + [valu("v_xor_b32", red[b], b * 4096, red[0]) for b in (1, 2, 3)]
        ra += [salu("s_and_b32", sT[2], sP2x, 64), salu("s_mul_i32", sT[3], sT[2], 511), salu("s_add_u32", sT[3], sT[3], sP2x),
               valu("v_lshrrev_b32", red[4], 3, vLane), valu("v_and_b32", red[5], 7, vLane), valu("v_lshlrev_b32", red[5], 4, red[5]),
               valu("v_lshl_add_u32", red[4], red[4], 11, red[5]), valu("v_add_u32", red[4], sT[3], red[4]),
               salu("s_lshr_b32", sT[3], sW, 1), salu("s_lshl_b32", sT[3], sT[3], 13), salu("s_add_u32", sT[3], sT[3], sT[2]), salu("s_add_u32", sT[3], sT[3], 9 * SLOT),
               valu("v_and_b32", red[5], 16, vLane), valu("v_lshlrev_b32", red[5], 1, red[5]), valu("v_and_or_b32", red[5], vLane, 15, red[5]), valu("v_lshlrev_b32", red[5], 7, red[5]),
               valu("v_and_or_b32", red[5], vLane, 32, red[5]), valu("v_add_u32", red[5], sT[3], red[5])]
        for i in ra: i.tag = "ra"
        light += ra
        used = set()
        for m, (gi, s, b) in enumerate(seq):
            st["m"] = m
            kind = self.GORD[gi][0]
            if gi in self.w2slot or pend(light, f"r{gi}"):
                add(light); light.clear()
                while gi in self.w2slot: add(self.w2_read())
            while gi >= self.w2_nd or pend(st["q"], f"g{gi}"): assert pump(), (m, gi)
            while gi >= self.h_n or pend(st["q"], f"h{gi}"): assert pump(), (m, gi)
            a = (accF if kind == "d" else accS)[b]
            add(mfma(32, a, wreg[gi].sub(8 * s + 4 * (b & 1), 4), hreg[gi].sub(8 * s + 4 * (b >> 1), 4), a if (kind, b) in started else 0))
            started.add((kind, b))
            if m == last[gi]:
                pool += [hreg[gi], wreg[gi]]
                if gi in (3, 4, 5): accS.append(pool.pop())
                if gi in c.sp: add(self.stamp(128))
            busy = False
            if m == c.m_f3: add(self.flag(L_L0, "st3")); busy = True
            if m == c.m_f4: add(self.flag(L_END, "st4"), self.stamp()); busy = True
            lb, lc = (L_L0 if c.nspl else L_O), (L_L0 if c.m_pe > 0 else L_END)
            for mm, ln in ((c.m_pb, lb), (c.m_pc, lc), (c.m_pe, L_END)):
                if m == mm - c.m_pd: add(self.poll_issue(vPOLL, rWS, ln)); busy = True
            if m == c.m_pb - 1: add(valu("v_xor_b32", vTHR, 1, vTHR))
            if m == c.m_pe: add(self.poll_check(vPOLL, rWS, 1, L_END)); st["gate"] = 18
            if m == c.m_pb: add(self.poll_check(vPOLL, rWS, 1 if c.nspl else vTHR, lb)); st["gate"] = 14 if c.nspl else 10
            if m == c.m_pc: add(self.poll_check(vPOLL, rWS, 1, lc), self.stamp()); st["gate"] = 14 if c.m_pe > 0 else 18; self.pre += (self.w2_nd, self.h_n)
            used.add((gi, s, b >> 1))
            ahead = 4 * self.h_n - sum(1 for i in st["q"] if i.kind == "vml") - len(used)
            if ((m % c.vstep < c.vnum if m < c.m_v1 else m % 2 == 0) or ahead < c.ahead) and not busy: busy = pump()
            if not light and self.w2slot and pool and m >= first[min(self.w2slot)] - c.rlead: light += self.w2_read()
            if m == last[9] + 2:
                add(light); light.clear()
                while any(6 <= s_ <= 8 for s_ in self.w2slot.values()): add(self.w2_read())
                st["sw"] = True
                heavy += [wait(lg=[f"r{g}" for g in range(18)])]
                heavy += [ds_write("ds_write_b128", red[0], accS[b2].sub(4 * q, 4), (b2 - 1) * SLOT + q * 1024, tag="sw") for b2 in (1, 2, 3) for q in range(4)]
            if m == c.m_sb:
                while not st["x"] or pend(st["q"], "xs"):
                    g18, nd = st["gate"], self.w2_nd; st["gate"] = 0; self.w2_nd = 18; assert pump(); st["gate"], self.w2_nd = g18, nd
                add(heavy); heavy = []
                add(wait(vm="xs", lg="sw"), barrier()); busy = True
                light += [ds_read("ds_read_b128", xf.sub(8 * i + 4, 4), red[5], 16 * i) for i in range(2)]
                light += [ds_read("ds_read_b128", PR[b2].sub(4 * q, 4), red[b2], (b2 - 1) * SLOT + q * 1024) for b2 in (1, 2, 3) for q in range(4)]
                for b2 in range(4):
                    i = valu("v_subrev_u32", red[b2], 6 * SLOT, red[b2]); i.tag = "ra"; light.append(i)
                for h in range(2):
                    for i in range(4):
                        src = xf[8 * h + 4 + i]
                        pr = [valu("v_lshlrev_b32", xf[8 * h + 2 * i], 16, src), valu("v_and_b32", xf[8 * h + 2 * i + 1], "0xffff0000", src)]
                        light += pr
                light += [valu("v_add_f32", accS[0][i], accS[0][i], PR[1][i]) for i in range(16)] + [valu("v_add_f32", PR[2][i], PR[2][i], PR[3][i]) for i in range(16)]
                light += [valu("v_add_f32", accS[0][i], accS[0][i], PR[2][i]) for i in range(16)]
            for b2 in (1, 2, 3):
                if m == lastb[b2] + 2:
                    while pend(light, "ra"): add(light.pop(0))
                    heavy += [ds_write("ds_write_b128", red[0], accF[b2].sub(4 * q, 4), (b2 - 1) * SLOT + q * 1024) for q in range(4)]
            budget = 11 if busy else 24
            if heavy and not busy:
                while heavy:
                    x = heavy.pop(0); add(x)
                    if x.kind == "dsw": break
                budget = 0
            while light and cyc(light[0]) <= budget:
                budget -= cyc(light[0]); add(light.pop(0))
        assert self.h_n == 18 and self.w2_nd == 18 and not self.w2slot and not st["q"] and st["x"]
        add(self.stamp())
        add(heavy, light)
        add(wait(lg="all"), barrier())
        for q in range(4):
            for b in (1, 2, 3): add(ds_read("ds_read_b128", PR[b].sub(4 * q, 4), red[b], (b - 1) * SLOT + q * 1024))
        Fp, Sp, t = accF[0], accS[0], PR[1]
        for hq in range(2):
            r2 = range(8 * hq, 8 * hq + 8, 2); r1 = range(8 * hq, 8 * hq + 8)
            add([valu("v_pk_add_f32", Fp.sub(i, 2), Fp.sub(i, 2), PR[1].sub(i, 2)) for i in r2])
            add([valu("v_pk_add_f32", PR[2].sub(i, 2), PR[2].sub(i, 2), PR[3].sub(i, 2)) for i in r2])
            add([valu("v_pk_add_f32", Fp.sub(i, 2), Fp.sub(i, 2), PR[2].sub(i, 2)) for i in r2])
            add([valu("v_pk_mul_f32", t.sub(i, 2), Fp.sub(i, 2), T.sub(0, 2)) for i in r2])
            add([valu("v_exp_f32", t[i], t[i]) for i in r1])
            add([valu("v_pk_mul_f32", Sp.sub(i, 2), Sp.sub(i, 2), Fp.sub(i, 2)) for i in r2])
            add([valu("v_pk_add_f32", t.sub(i, 2), t.sub(i, 2), T.sub(2, 2)) for i in r2])
            add([valu("v_rcp_f32", t[i], t[i]) for i in r1])
            add([valu("v_pk_fma_f32", xf.sub(i, 2), Sp.sub(i, 2), t.sub(i, 2), xf.sub(i, 2)) for i in r2])
            add([valu("v_cvt_pk_bf16_f32", t[8 * hq + i], xf[8 * hq + 2 * i], xf[8 * hq + 2 * i + 1]) for i in range(4)])
            add(buf_store("buffer_store_dwordx4", t.sub(8 * hq, 4), vXO, rOUT, 0, 16 * hq, flags=c.outflags))

    def finish(self):
        add = self.add
        if self.cfg.stamps:
            add(raw(f"{self.cfg.clock} s[14:15]", "smem"))
            add(wait(vm="all"))
            add(raw(f"{self.cfg.clock} s[16:17]\n    s_waitcnt lgkmcnt(0)", "smem"))
            add(valu("v_mov_b32", V(96), 0))
            for i in range(self.nst): add(raw(f"v_writelane_b32 v96, s{STAMPS[i]}, {1+i}", "valu", wr=["v96"]))
            add(raw(f"v_writelane_b32 v96, s{ST0}, 0", "valu", wr=["v96"]), raw(f"v_writelane_b32 v96, s14, {1+self.nst}", "valu", wr=["v96"]),
                raw(f"v_writelane_b32 v96, s16, {2+self.nst}", "valu", wr=["v96"]))
            add(salu("s_lshl_b32", sT[1], sWG, 2), salu("s_add_u32", sT[1], sT[1], sW), salu("s_lshl_b32", sT[1], sT[1], 6), salu("s_add_u32", sT[1], sT[1], STAMP_OFF),
                valu("v_lshl_add_u32", V(97), vLane, 2, sT[1]), salu("s_mov_b64", "exec", "0xffff"), buf_store("buffer_store_dword", V(96), V(97), rWS))
        add(raw("s_endpgm", "end"))

    def program(self):
        self.w2slot, self.slot_used, self.w2pos = {}, {}, {"d": 0, "o": 0}
        self.w2_nd = self.w2_nr = 0
        self.win2 = [0, 0]
        self.xf_n = 0
        self.h_n, self.hreg, self.wreg, self.hpos = 0, {}, {}, {"d": 0, "o": 0}
        self.ramp(); self.phase1()
        self.pre = (self.w2_nd, len(self.w2slot), self.h_n)
        if not self.cfg.p1only: self.phase2()
        self.finish()
        return self.e.text() + self.slow

HEAD = open("recurrent_scan__sliding_local_dilated__swiglu_ffn__prompt.s.ref").read().split("; Override launch")[0]

def build(cfg):
    NS[0] = cfg.NS
    s = HEAD + "; @launch grid=(256,1,1) block=(256,1,1) lds=163840\n"
    s += f'.amdgcn_target "amdgcn-amd-amdhsa--gfx950"\n.text\n.globl {KNAME}\n.p2align 8\n.type {KNAME},@function\n{KNAME}:\n'
    s += f"""    s_cmp_ge_u32 s2, 256
    s_cbranch_scc0 L_go
    s_endpgm
L_go:
"""
    if cfg.stamps: s += f"    {cfg.clock} s[{ST0}:{ST0+1}]\n"
    s += f"""    s_load_dwordx2 s[24:25], s[0:1], 0
    s_load_dwordx16 s[4:19], s[0:1], 0
    s_load_dwordx4 s[20:23], s[0:1], 64
    v_lshrrev_b32 v1, 6, v0
    s_getpc_b64 s[28:29]
    v_readfirstlane_b32 {sW}, v1
    s_bfe_u32 s26, s2, 0x30003
    s_lshl_b32 s26, s26, 13
    v_lshrrev_b32 v2, 2, v0
    v_lshl_add_u32 v2, v2, 7, s26
    v_min_u32 v2, L_end-L_go-256, v2
    global_load_dword v3, v2, s[28:29]
    v_and_b32 {vLane}, 63, v0
    v_lshrrev_b32 v96, 3, {vLane}
    v_and_b32 v97, 7, v0
    s_lshl_b32 {sWQ}, {sW}, 12
    s_cmp_ge_u32 s2, 128
    s_cbranch_scc1 L_typeC
"""
    info = {}
    for typ in ("B", "C"):
        g = Gen(typ, cfg)
        g.e.vm.append(("pf", {"v3"}))
        s += f"L_type{typ}:\n" + g.program()
        info[typ] = (g.e.slots, g.e.nops, dict(g.e.count), [sum(max(32, 20 + x) for x in g.load[i:i + 32]) for i in range(0, 320, 32)], g.pre, g.nst + 3)
    s += "L_end:\n"
    s += f""".section .rodata,"a"
.p2align 6
.amdhsa_kernel {KNAME}
  .amdhsa_next_free_vgpr 512
  .amdhsa_next_free_sgpr 102
  .amdhsa_accum_offset 256
  .amdhsa_group_segment_fixed_size 0
  .amdhsa_kernarg_size 80
  .amdhsa_user_sgpr_count 2
  .amdhsa_user_sgpr_kernarg_segment_ptr 1
  .amdhsa_system_sgpr_workgroup_id_x 1
.end_amdhsa_kernel
"""
    return s, info

if __name__ == "__main__":
    cfg = Cfg()
    out = sys.argv[1]
    for a in sys.argv[2:]:
        k, v = a.split("=")
        assert hasattr(cfg, k) or hasattr(cfg, k[:-2]), k
        if k in ("outflags", "hflags", "pflags"): v = v.replace("_", " ")
        elif k in ("sg", "sp"): v = [int(x) for x in v.split(",")]
        elif k not in ("clock", "planB", "planC"): v = int(v)
        setattr(cfg, k, v)
    s, info = build(cfg)
    open(out, "w").write(s)
    for k, v in info.items(): print(k, v)
```

```python
import sys, struct
sys.path.insert(0, "tools")
from emit import *
from asmlib import KNAME

FLAG_OFF, XN_OFF, HALO_OFF, WS_USED = 0x910000, 0x938000, 0xB38000, 0xF00000
WT_OFF, P6_OFF = 0xC01000, 0xE50000
L_HALO, L_P1, L_HALF, L_O, L_L0, L_END = [128 * i for i in range(6)]
FLAGA_OFF = 0x930000
STAMP_OFF = 0xB80000
OOB = 0x40000000
SLOT = 16384
HSTR = 145 * 1024
RP = 272
SCR = 7 * SLOT
SPARE = SCR + 137 * RP
LOG2E = 1.4426950408889634
def f32(x): return "0x%08x" % struct.unpack("<I", struct.pack("<f", x))[0]

class Cfg:
    stamps = 0
    clock = "s_memrealtime"
    sg = ()
    sp = ()
    p1only = 0
    LA = 6
    NB = 10
    spin = 20000
    cbx = 0
    rot = 0
    sleep = 0
    xr = ()
    splf = 0
    bar2 = 0
    map2 = 0
    one_pa = 0
    q_early = 1
    patom = 0
    f2_lag = 24
    rsel = 1
    tx = 1
    b_rest = None
    tlin = 0
    wo_late = -1
    sig_early = 0
    nodbg = 0
    f2_epi = -1
    pa2_epi = -1
    dbg = 0
    nspl = 0
    e0_end = 312
    f3_at = 30
    setup_early = 0
    w_0 = 0
    w_a = 1
    w_b = 2
    w_c = 4
    nx0 = 8
    xrate = 8
    planB = "4:w,5:w,6:l,7:l,8:l,9:l,10:l,11:P.l,12:l.H,13:l,14:l,15:l.l,16:l.d6,17:l.d0,18:h.h,19:h.h.l"
    planC = "5:w,6:l,7:l,8:l,9:l,10:l,11:l,12:l,13:l,14:l,15:l.l,16:l.l,17:l.d8,18:h.h,19:h.h.d7"
    ts_pos = 0
    f2_bar = 2
    pw_lead = 14
    pw_per = 6
    NS = 7
    xfree = 1
    kv_end = 140
    kv_mode = 3
    kw_end = 214
    p6_per = 4
    c_rest = 4
    c_tile = -1
    g_flag1 = 160
    g_halo = 212
    att_w = 24
    g_f1c = 210
    g_pa = 262
    h2_end = 240
    g_f2c = 264
    g_pa2 = 304
    epi_mem = 8
    m_f4 = 24
    m_pe = -99
    pa_per = 18
    m_f3 = -1
    m_pb = 24
    m_pc = 68
    m_pd = 12
    m_sb = 106
    defer = 4
    vstep = 1
    vnum = 1
    m_v1 = 0
    wlead = 1
    rlead = 12
    keep = 4
    ahead = 12
    outflags = ""
    hflags = "sc1"
    pflags = "sc1"

sWG = S(2)
pX, pQKV, pWO, pG, pU, pD, pOUT, pDBG, pWS = S(4, 2), S(6, 2), S(8, 2), S(12, 2), S(14, 2), S(16, 2), S(18, 2), S(20, 2), S(22, 2)
rX, rQKV, rGU, rD, rWO, rOUT, rWS, rDBG = S(24, 4), S(28, 4), S(32, 4), S(36, 4), S(40, 4), S(44, 4), S(48, 4), S(52, 4)
sW, sRB, sGQ, sJ, sTB2, sCB2, sWQ = S(56), S(57), S(58), S(59), S(60), S(61), S(62)
sT = [S(3), S(63), S(64), S(65)]
sM1, sM2 = S(66, 2), S(68, 2)
sHM0, sXS = S(70), S(71)
sJ1, sJ2, sJ3 = S(72, 2), S(74, 2), S(76, 2)
sTHR, sCNT = S(78), S(79)
sU = [S(60), S(61), S(58), S(59)]
sUh = [S(0), S(1)]
sHu = [S(4), S(5), S(6)]
sCS, sC1, sHd, sHo = S(7), S(8), S(9), S(10)
sWd, sWo, sWS, sW0 = S(40), S(41), S(42), S(43)
sOA = [0, S(11), S(12), S(13)]
sOB = [0, S(14), S(15), S(16)]
sOC = [0, S(17), S(18), S(19)]
sP2h, sP2f, sP2x, sHS = S(20), S(21), S(22), S(23)
STAMPS = list(range(82, 102, 2))
ST0 = 80

ACC1, ACC2 = V(0, 64), V(64, 32)
VBUF = [V(96 + 16 * i, 16) for i in range(8)]
KA, SG = V(176, 24), V(200, 16)
T = V(224, 8)
(vF2, vA23, vA01, vP2, vHRB, vWB, vDMA2, vDMA1, vW1, vFV, vPV, vW0, vPOLL, vHALO, vPOLLH, vHLD,
 vFLG, vVTR, vSCR, vHST, vDMA0, vTR1, vTR0, vLane) = [V(232 + i) for i in range(24)]
vW = [vW0, vW1]
vP6 = vA01
vHLD2 = V(222)
vXN = V(216)
vTCH = [V(217), V(218), V(219), V(220), V(221)]
vH = [vHRB, vHALO]
vXO, vTHR = vDMA1, vDMA0
X = A(0, 128)
WF = A(128, 40)
aDUM = A(168)
ABUF = [A(176 + 16 * i, 16) for i in range(5)]
NS = [5]
def slab_slot(n): return n % NS[0]

def cyc(i):
    k = i.kind
    if k in ("wait", "waitr", "waitcnt", "mfma"): return 0
    if k == "trans": return 8
    if k in ("dma", "vml"): return 14
    if k == "vms": return 30 if i.op.endswith("x4") else 20
    if k == "dsw": return 26
    if k == "dsr": return 11 if i.op.endswith("b128") else 4
    if k == "bar": return 14
    if k == "branch": return 8
    return 4

class Gen:
    def __init__(self, typ, cfg):
        self.typ, self.cfg = typ, cfg
        self.B = typ == "B"
        import copy
        self.cfg = cfg = copy.copy(cfg)
        for k, v in list(vars(cfg).items()) + list(vars(Cfg).items()):
            if k.endswith('_' + typ): setattr(cfg, k[:-2], getattr(cfg, k))
        self.e = Emitter()
        self.nst = 0
        self.nlab = 0
        self.slow = ""
    def add(self, *ins):
        for i in ins: self.e.add(i)
    def stamp(self, mode=1):
        if not (self.cfg.stamps & mode): return []
        r = S(STAMPS[self.nst], 2); self.nst += 1
        return [raw(f"{self.cfg.clock} {r}", "smem")]
    def touch(self, va, srd, flags=""):
        i = buf_load("buffer_load_dword", aDUM, va, srd, flags=flags)
        i.wr = set()
        return [i]
    def poll_text(self, vaddr, srd, off):
        n = {str(vPOLL): (8, 1), str(vPOLLH): (1, 2), str(vP2): (48, 4), str(vP6): (32, 4), "v105": (2, 8), "v106": (8, 16)}[str(vaddr)]
        if not self.cfg.patom & n[1]: return None
        return (f"v_mov_b32 {vPV}, 15\n    s_bfm_b64 exec, {n[0]}, 0\n    v_mov_b32 {vPV}, 0\n"
                f"    buffer_atomic_add {vPV}, {vaddr}, {srd}, 0 offen offset:{off} sc0 sc1\n    s_mov_b64 exec, -1")
    def poll_issue(self, vaddr, srd, off=0):
        t = self.poll_text(vaddr, srd, off)
        if t:
            i = buf_load("buffer_load_dword", vPV, vaddr, srd, 0, off); i.text = t
            return [i]
        return [buf_load("buffer_load_dword", vPV, vaddr, srd, 0, off, flags=self.cfg.pflags)]
    def poll_check(self, vaddr, srd, thr, off=0):
        self.nlab += 1
        l = f"L_{self.typ}_p{self.nlab}"
        sl = f"    s_sleep {self.cfg.sleep}\n" if self.cfg.sleep else ""
        if self.cfg.stamps & 512:
            sl += f"    s_add_u32 s{STAMPS[self.nlab - 1]}, s{STAMPS[self.nlab - 1]}, 1\n"; self.nst = 8
        self.slow += (f"{l}_slow:\n    s_mov_b32 {sCNT}, 0\n{l}_spin:\n"
                f"{sl}    {self.poll_issue(vaddr, srd, off)[0].text}\n    s_add_u32 {sCNT}, {sCNT}, 1\n    s_waitcnt vmcnt(0)\n"
                f"    v_cmp_gt_u32 vcc, {thr}, {vPV}\n    s_cmp_ge_u32 {sCNT}, {self.cfg.spin}\n    s_cbranch_scc1 {l}_ok\n"
                f"    s_cbranch_vccnz {l}_spin\n    s_branch {l}_ok\n")
        return [valu("v_cmp_gt_u32", "vcc", thr, vPV), raw(f"s_cbranch_vccnz {l}_slow\n{l}_ok:", "branch")]
    def flag(self, stage, tag):
        return [wait(vm=tag), buf_store("buffer_store_dword", vFV, vFLG, rWS, 0, stage, flags="sc1")]

    def ramp(self):
        c, add, B = self.cfg, self.add, self.B
        t0, t1, t2, t3 = V(96), V(97), V(98), V(99)
        vXL, vXS, vRS, vST, vF0, vP0, vDB, vTLB, vSG, vXR, vTL, vTS = [V(100 + i) for i in range(12)]
        vR2, vTB0, vTB1, vPL, vPS = [V(162 + i) for i in range(5)]
        tl, p6 = V(168, 16), V(184, 4)
        xr, lo, z, part = V(112, 16), V(128, 16), V(144, 4), V(148, 8)
        sm, sq, one = V(156), V(157), V(158)
        rb = V(160, 2)
        srd = lambda r, p, n: [salu("s_mov_b32", r[0], p[0]), salu("s_mov_b32", r[1], p[1]), salu("s_mov_b32", r[2], n), salu("s_mov_b32", r[3], "0x20000")]
        gu = [salu("s_cmp_lt_u32", None, sW, 2), salu("s_cselect_b32", rGU[0], pG[0], pU[0]), salu("s_cselect_b32", rGU[1], pG[1], pU[1])]
        sizes = ((rX, pX, 2048 * 1024), (rWS, pWS, WS_USED), (rDBG, pDBG, 256), (rQKV, pQKV, 512 * 3072), (rOUT, pOUT, 2048 * 1024))
        XL = 8 * SLOT
        self.nslab = 0
        if c.stamps & 1024:
            add(raw(f"s_getreg_b32 s{STAMPS[0]}, hwreg(HW_REG_XCC_ID)\n    s_getreg_b32 s{STAMPS[1]}, hwreg(HW_REG_HW_ID)", "salu")); self.nst = 2
        if c.stamps & 512: add([salu("s_mov_b32", S(r), 0) for r in STAMPS])
        add(self.stamp(256))
        TL = (7 if B else 9) * SLOT
        roles = [salu("s_lshr_b32", sT[0], sWG, 3), salu("s_and_b32", sT[1], sWG, 7), salu("s_and_b32", sRB, sWG, 1), salu("s_lshl_b32", sRB, sRB, 3),
                 salu("s_and_b32", sT[2], sT[0], 7), salu("s_add_u32", sRB, sRB, sT[2]), salu("s_lshr_b32", sGQ, sT[1], 1), salu("s_lshr_b32", sJ, sT[0], 3),
                 salu("s_lshl_b32", sTB2, sT[1], 2), salu("s_and_b32", sT[2], sT[0], 3), salu("s_add_u32", sTB2, sTB2, sT[2]), salu("s_lshr_b32", sCB2, sT[0], 2)]
        if c.map2 == 1:
            roles = roles[:8] + [salu("s_and_b32", sT[2], sT[0], 7), salu("s_lshl3_add_u32", sTB2, sGQ, sT[2]), salu("s_and_b32", sT[2], sWG, 1), salu("s_lshl2_add_u32", sCB2, sT[2], sJ)]
        if c.map2 == 2:
            roles = roles[:8] + [salu("s_lshr_b32", sT[2], sT[0], 2), salu("s_lshl3_add_u32", sTB2, sGQ, sT[2]), salu("s_and_b32", sT[2], sWG, 1), salu("s_and_b32", sCB2, sT[0], 3),
                                 salu("s_lshl2_add_u32", sCB2, sT[2], sCB2)]
        if c.map2 == 3:
            roles = roles[:8] + [salu("s_lshl2_add_u32", sTB2, sT[1], sJ), salu("s_and_b32", sCB2, sT[0], 7)]
        if c.cbx: roles += [salu("s_xor_b32", sCB2, sCB2, c.cbx)]
        def tile_setup():
            if B:
                o = [salu("s_lshl2_add_u32", sT[1], sRB, sW), salu("s_lshl_b32", sT[2], sT[1], 13), salu("s_lshl1_add_u32", sT[3], sGQ, sJ)] + srd(rD, pWO, 512 * 1024)
            else:
                o = [salu("s_lshr_b32", sT[1], sW, 1), salu("s_lshl1_add_u32", sT[1], sT[0], sT[1]), salu("s_lshl_b32", sT[2], sT[1], 15),
                     salu("s_xor_b32", sCNT, sGQ, c.tx), salu("s_and_b32", sT[3], sW, 1), salu("s_lshl1_add_u32", sT[3], sCNT, sT[3])] + srd(rD, pD, 1792 * 1024)
            o += [salu("s_lshl_b32", sCNT, sT[3], 7), salu("s_add_u32", sT[2], sT[2], sCNT),
                  valu("v_lshrrev_b32", t2, 2, vLane), valu("v_and_b32", t2, 4, t2), valu("v_xor_b32", t2, t2, t1), valu("v_lshlrev_b32", t2, 4, t2),
                  valu("v_lshl_add_u32", t2, t0, 10, t2), valu("v_add_u32", vTL, sT[2], t2)]
            o += [salu("s_mul_i32", sT[2], sT[3], 72 * 4096), salu("s_lshl_b32", sT[1], sT[1], 10 if B else 12), salu("s_add_u32", sT[2], sT[2], sT[1]),
                  salu("s_add_u32", sT[2], sT[2], WT_OFF + (56 * 4096 if B else 0)),
                  ]
            if B: o += [salu("s_lshl4_add_u32", sT[1], sT[3], sRB)]
            else: o += [salu("s_lshl_b32", sT[1], sGQ, 5), salu("s_add_u32", sT[1], sT[1], sT[0])]
            o += [salu("s_and_b32", sT[3], sT[1], 7), salu("s_lshr_b32", sT[1], sT[1], 3), salu("s_lshl_b32", sT[1], sT[1], 7), salu("s_lshl2_add_u32", sT[1], sT[3], sT[1]),
                  salu("s_add_u32", sT[1], sT[1], FLAGA_OFF + (80 if B else 64) * 128)]
            if not B: o += [salu("s_cmp_lt_u32", None, sRB, 14), salu("s_cselect_b32", sT[2], sT[2], OOB)]
            o += [salu("s_cmp_eq_u32", None, sW, 0), salu("s_cselect_b32", sT[1], sT[1], OOB),
                  valu("v_lshl_add_u32", vTS, vLane, 4, sT[2]), valu("v_mov_b32", vF2, OOB), raw(f"v_writelane_b32 {vF2}, {sT[1]}, 0", "valu", rd=[vF2], wr=[vF2])]
            return o
        def tile_store():
            o = [valu("v_and_b32", vTB0, "0x3ff", vTR0), valu("v_and_b32", vTB1, 32, vLane), valu("v_lshl_add_u32", vTB0, vTB1, 6, vTB0)]
            if B:
                o += [salu("s_and_b32", sT[1], sW, 1), salu("s_lshl_b32", sT[1], sT[1], 6), valu("v_xor_b32", vTB0, sT[1], vTB0),
                      salu("s_lshr_b32", sT[1], sW, 1), salu("s_lshl_b32", sT[1], sT[1], 10), salu("s_add_u32", sT[1], sT[1], TL), valu("v_add_u32", vTB0, sT[1], vTB0)]
                return o, [ds_read("ds_read_b64_tr_b16", tl.sub(2 * u, 2), vTB0, u * 512) for u in range(2)], [buf_store("buffer_store_dwordx4", tl.sub(0, 4), vTS, rWS, flags="sc1", tag="ts")]
            o += [salu("s_add_u32", sT[1], sWQ, TL), valu("v_add_u32", vTB0, sT[1], vTB0), valu("v_xor_b32", vTB1, 64, vTB0), wait(vm="tl")]
            for s_ in range(2):
                for cb in range(2):
                    for u in range(2): o += [ds_read("ds_read_b64_tr_b16", tl.sub(8 * s_ + 4 * cb + 2 * u, 2), (vTB0, vTB1)[cb], s_ * 1024 + u * 512)]
            return o, [buf_store("buffer_store_dword", vFV, vF2, rWS, flags="sc1")], [buf_store("buffer_store_dwordx4", tl.sub(4 * i, 4), vTS, rWS, 0, 1024 * i, flags="sc1", tag="ts") for i in range(4)]
        if B:
            add(salu("s_and_b32", sT[2], sWG, 63), salu("s_lshl_b32", sT[2], sT[2], 15), salu("s_lshr_b32", sT[1], sWG, 6), salu("s_lshl2_add_u32", sT[1], sT[1], sW),
                salu("s_lshl_b32", sT[1], sT[1], 8), salu("s_add_u32", sT[1], sT[1], sT[2]),
                valu("v_xor_b32", t2, t0, t1), valu("v_lshlrev_b32", t2, 4, t2), valu("v_lshl_add_u32", vXL, t0, 11, t2),
                salu("s_add_u32", sXS, sT[1], 16384 - 1024), srd(*sizes[0])[2:], set_m0(sWQ, XL, "x"))
            add(self.stamp(256), raw("s_waitcnt lgkmcnt(0)", "waitcnt"), self.stamp(256))
            add(buf_dma(vXL, rX, sT[1], 0, tag="x"), buf_dma(vXL, rX, sXS, 1024, tag="x"), set_m0(sWQ, XL + 2048 - 128, "x"), salu("s_mov_b32", rWS[0], pWS[0]),
                buf_dma(vXL, rX, sT[1], 128, tag="x"), buf_dma(vXL, rX, sXS, 1024 + 128, tag="x"))
            add(self.stamp(256))
            add(srd(*sizes[1])[1:])
            if c.rsel: add(salu("s_lshr_b32", sT[1], sWG, 3), salu("s_and_b32", sT[2], sWG, 1), salu("s_lshl1_add_u32", sT[1], sT[1], sT[2]), salu("s_and_b32", sT[3], sWG, "0xe6"))
            else: add(salu("s_mov_b32", sT[1], sWG), salu("s_lshr_b32", sT[3], sWG, 3))
            add(salu("s_lshl_b32", sT[2], sT[1], 11), salu("s_add_u32", sT[2], sT[2], FLAGA_OFF), salu("s_lshl_b32", sT[1], sT[1], 2),
                salu("s_or_b32", sT[3], sT[3], sW), salu("s_cselect_b32", sT[2], OOB, sT[2]), salu("s_cselect_b32", sT[1], OOB, sT[1]),
                salu("s_lshl_b32", sT[3], sWG, 10), salu("s_add_u32", sT[3], sT[3], FLAG_OFF), salu("s_cmp_eq_u32", None, sW, 1),
                salu("s_cselect_b32", sT[2], sT[3], sT[2]), salu("s_cselect_b32", sT[3], 6, 7),
                valu("v_lshrrev_b32", t2, 2, vLane), valu("v_and_b32", t3, 3, vLane), valu("v_lshlrev_b32", t3, 4, t3), valu("v_lshl_add_u32", t2, t2, sT[3], t3),
                valu("v_add_u32", vRS, sT[2], t2), valu("v_mov_b32", vSG, sT[1]), [valu("v_mov_b32", z[i], 0) for i in range(4)])
            add(buf_store("buffer_store_dwordx4", z, vRS, rWS, flags="sc1", tag="reset"))
            add(roles)
            for q in sizes[2:]: add(srd(*q))
            add(gu, srd(rGU, pG, 512 * 3584)[2:], tile_setup())
            if c.wo_late == -1: add(salu("s_lshr_b32", sT[1], sWQ, 2), set_m0(sT[1], TL, "tl"), buf_dma(vTL, rD, tag="tl"))
        else:
            add(roles)
            add(salu("s_lshl_b32", sT[0], sRB, 1), salu("s_add_u32", sT[0], sT[0], sJ), salu("s_sub_u32", sT[0], sT[0], 2),
                salu("s_lshl2_add_u32", sT[1], sT[0], sW), salu("s_mul_i32", sT[1], sT[1], 4 * 3072), salu("s_lshl_b32", sT[2], sGQ, 8), salu("s_add_u32", sT[1], sT[1], sT[2]),
                valu("v_and_b32", t2, 3, t0), valu("v_mul_u32_u24", t2, 3072, t2), valu("v_and_b32", t3, 1, t1), valu("v_lshl_add_u32", t2, t3, 7, t2),
                valu("v_add_u32", vTCH[3], sT[1], t2), valu("v_bfe_u32", t2, t1, 1, 1), valu("v_add_u32", t2, 1, t2), valu("v_lshl_add_u32", vTCH[1], t2, 10, vTCH[3]),
                salu("s_and_b32", sT[2], sW, 1), salu("s_lshl1_add_u32", sT[1], sT[0], sT[2]), salu("s_mul_i32", sT[1], sT[1], 8 * 3584),
                salu("s_mul_i32", sT[2], sGQ, 7 * 128), salu("s_add_u32", sT[1], sT[1], sT[2]),
                valu("v_mul_u32_u24", t2, 3584, t0), valu("v_add_u32", t2, sT[1], t2), valu("v_lshl_add_u32", vTCH[0], t3, 7, t2))
            if c.tlin:
                add(salu("s_sub_u32", sT[2], sWG, 128), salu("s_lshl2_add_u32", sT[3], sT[2], sW), salu("s_mul_i32", sCNT, sT[3], 3072),
                    valu("v_min_u32", vTCH[1], 23, vLane), valu("v_lshl_add_u32", vTCH[1], vTCH[1], 7, sCNT),
                    salu("s_mul_i32", sCNT, sT[3], 3584), valu("v_min_u32", vTCH[4], 27, vLane), valu("v_lshl_add_u32", vTCH[4], vTCH[4], 7, sCNT),
                    salu("s_and_b32", sT[3], sW, 1), salu("s_lshl1_add_u32", sT[3], sT[2], sT[3]), salu("s_mul_i32", sT[3], sT[3], 7168),
                    valu("v_min_u32", vTCH[0], 55, vLane), valu("v_lshl_add_u32", vTCH[0], vTCH[0], 7, sT[3]))
            add(srd(*sizes[3])[2:], srd(rGU, pG, 512 * 3584)[2:])
            add(self.stamp(256), raw("s_waitcnt lgkmcnt(0)", "waitcnt"), self.stamp(256))
            if c.tlin == 2: add(srd(rD, pD, 1792 * 1024), self.touch(vTCH[4], rD))
            add(srd(*sizes[3])[:2], self.touch(vTCH[1], rQKV), gu, self.touch(vTCH[0], rGU), self.stamp(256))
            add(valu("v_and_b32", t3, 3, t1), valu("v_add_u32", t3, 2, t3), valu("v_lshl_add_u32", vTCH[2], t3, 7, t2),
                valu("v_bfe_u32", t2, vLane, 2, 3), valu("v_mul_u32_u24", t2, 3584, t2), valu("v_and_b32", t3, 3, vLane), valu("v_lshl_add_u32", t2, t3, 4, t2),
                valu("v_lshrrev_b32", t3, 5, vLane), valu("v_lshl_add_u32", t2, t3, 6, t2), salu("s_add_u32", sT[1], sT[1], 768), valu("v_add_u32", vPL, sT[1], t2),
                buf_load("buffer_load_dwordx4", p6, vPL, rGU),
                salu("s_lshr_b32", sT[1], sT[0], 3), salu("s_lshl_b32", sT[1], sT[1], 14), salu("s_and_b32", sT[2], sT[0], 7), salu("s_lshl_b32", sT[2], sT[2], 10),
                salu("s_add_u32", sT[1], sT[1], sT[2]), salu("s_and_b32", sT[2], sW, 1), salu("s_lshl_b32", sT[2], sT[2], 9), salu("s_add_u32", sT[1], sT[1], sT[2]),
                salu("s_lshr_b32", sT[2], sW, 1), salu("s_lshl_b32", sT[2], sT[2], 13), salu("s_add_u32", sT[1], sT[1], sT[2]),
                salu("s_lshl_b32", sT[2], sGQ, 17), salu("s_add_u32", sT[1], sT[1], sT[2]), salu("s_add_u32", sT[1], sT[1], P6_OFF),
                valu("v_and_b32", t2, 31, vLane), valu("v_lshlrev_b32", t2, 4, t2), valu("v_lshl_add_u32", t2, t3, 16, t2), valu("v_add_u32", vPS, sT[1], t2),
                )
            add(tile_setup())
            tdma = [set_m0(sWQ, TL, "tl"), salu("s_mov_b32", sTHR, 7168)]
            for i in range(4):
                tdma += [buf_dma(vTL, rD, sTHR if i else 0, 1024 * i, tag="tl")]
                if 0 < i < 3: tdma += [salu("s_add_u32", sTHR, sTHR, 7168)]
            self.rest = [] if (c.tlin or c.b_rest is not None) else self.touch(vTCH[3], rQKV) + self.touch(vTCH[2], rGU)
            self.tdma = tdma
            if c.c_tile == -1: add(tdma)
            if c.q_early and self.rest: add(self.rest.pop(0))
            if c.c_rest == -1: add(self.rest)
            add(srd(*sizes[0])[2:])
            for q in sizes[1:3] + sizes[4:]: add(srd(*q))
        add(valu("v_mov_b32", vFV, 1))
        sa, sb = (8 * 3072, 8 * 3584) if B else (8 * 3584, 16 * 3584)
        for i in (1, 2, 3):
            add(salu("s_mov_b32", sOA[i], i * (sa - 1024)), salu("s_mov_b32", sOB[i], i * (sb - 1024)))
        add(self.dma_setup(0))
        if B:
            for _ in range(c.w_0): add(self.dma_slab())
            add(valu("v_lshrrev_b32", t2, 4, vLane), valu("v_xor_b32", t3, t2, t1), valu("v_lshlrev_b32", t3, 4, t3), valu("v_and_b32", vST, 15, vLane),
                valu("v_lshl_add_u32", t3, vST, 7, t3), salu("s_add_u32", sT[1], sWQ, XL), valu("v_add_u32", vXR, sT[1], t3), valu("v_xor_b32", vXL, 64, vXR),
                salu("s_lshr_b32", sT[0], sWG, 1), salu("s_and_b32", sT[3], sWG, 1),
                salu("s_lshl_b32", sT[1], sT[0], 15), salu("s_lshl_b32", sT[2], sW, 13), salu("s_add_u32", sT[1], sT[1], sT[2]), salu("s_lshl_b32", sT[2], sT[3], 8),
                salu("s_add_u32", sT[1], sT[1], sT[2]), salu("s_add_u32", sT[1], sT[1], XN_OFF),
                valu("v_lshlrev_b32", t3, 4, vST), valu("v_lshl_add_u32", t3, t2, 9, t3), valu("v_add_u32", vXS, sT[1], t3),
                valu("v_lshlrev_b32", vST, 5, vST), valu("v_add_u32", vST, SPARE, vST),
                salu("s_lshl_b32", sT[2], sW, 2), valu("v_lshrrev_b32", t3, 5, vLane), valu("v_lshl_add_u32", t3, t3, 4, sT[2]), valu("v_add_u32", vRS, t3, vST),
                salu("s_lshl_b32", sT[1], sT[0], 7), salu("s_lshl_b32", sT[2], sT[3], 2), salu("s_add_u32", sT[1], sT[1], sT[2]), salu("s_add_u32", sT[1], sT[1], FLAGA_OFF),
                salu("s_cmp_eq_u32", None, sW, 0), salu("s_cselect_b32", sT[1], sT[1], OOB),
                valu("v_mov_b32", t2, OOB), valu("v_mov_b32", t3, sT[1]), valu("v_cmp_eq_u32", "vcc", 0, vLane), valu("v_cndmask_b32", vF0, t2, t3, "vcc"),
                valu("v_mov_b32", one, "0x3f803f80"), valu("v_mov_b32", sm, 0), valu("v_mov_b32", sq, 0), salu("s_mov_b32", sXS, 4096))
        add(salu("s_lshl_b32", sT[1], sRB, 2), salu("s_add_u32", sT[1], sT[1], sW), salu("s_lshl_b32", sT[2], sT[1], 7), salu("s_add_u32", sT[2], sT[2], FLAGA_OFF),
            valu("v_and_b32", vPOLL, 1, vLane), valu("v_lshlrev_b32", vPOLL, 2, vPOLL), valu("v_add_u32", vP0, sT[2], vPOLL),
            salu("s_lshl_b32", sT[1], sT[1], 15), salu("s_add_u32", sT[1], sT[1], XN_OFF), valu("v_lshl_add_u32", vXN, vLane, 4, sT[1]),
            salu("s_cmp_eq_u32", None, sW, 0), salu("s_cselect_b32", sT[1], 0, OOB), salu("s_cselect_b32", sT[3], 0 if c.nodbg else 1, 0),
            valu("v_lshl_add_u32", vDB, t1, 2, sT[1]), valu("v_mov_b32", vTLB, sT[3]))
        add(self.dma_setup(1), self.dma_setup(2))
        add(self.w2_setup())
        if c.setup_early or not B: self.misc_setup()
        add(self.stamp(65 + 256))
        if B:
            add(wait(vm="x"))
            add([ds_read("ds_read_b128", xr.sub(4 * i, 4), vXL if i & 1 else vXR, 2048 * (i >> 1)) for i in range(4)])
            add(self.stamp(64 + 256))
            for r in range(16): add(valu("v_dot2c_f32_bf16", sm, xr[r], one, rmw=True), valu("v_dot2c_f32_bf16", sq, xr[r], xr[r], rmw=True))
            add([valu("v_lshlrev_b32", lo[i], 16, xr[i]) for i in range(3)])
            add(valu("v_permlane32_swap_b32", sm, sq, rmw=True, wr2=sq), valu("v_add_f32", sm, sm, sq), valu("v_mov_b32", sq, sm))
            add([valu("v_lshlrev_b32", lo[i], 16, xr[i]) for i in (3, 4)])
            add(valu("v_permlane16_swap_b32", sm, sq, rmw=True, wr2=sq), valu("v_add_f32", sm, sm, sq))
            add(ds_write("ds_write_b32", vRS, sm, tag="st"))
            add(wait(vm="reset"), buf_store("buffer_store_dword", vFV, vSG, rDBG, flags="sc1"))
            add([valu("v_lshlrev_b32", lo[i], 16, xr[i]) for i in range(5, 16)])
            add(wait(lg="st"), self.stamp(256), barrier(), self.stamp(256))
            add([ds_read("ds_read_b128", part.sub(4 * i, 4), vST, 16 * i) for i in range(2)])
            add([valu("v_and_b32", xr[i], "0xffff0000", xr[i]) for i in range(16)])
            add(valu("v_pk_add_f32", part.sub(0, 2), part.sub(0, 2), part.sub(2, 2)), valu("v_pk_add_f32", part.sub(4, 2), part.sub(4, 2), part.sub(6, 2)),
                valu("v_add_f32", sm, part[0], part[1]), valu("v_add_f32", sq, part[4], part[5]),
                valu("v_mul_f32", sm, f32(1 / 512), sm), valu("v_mul_f32", sq, f32(1 / 512), sq),
                valu("v_fma_f32", sq, f"-{sm}", sm, sq), valu("v_max_f32", sq, 0, sq),
                valu("v_cvt_pk_bf16_f32", sq, sq, sm),
                valu("v_and_b32", sm, "0xffff0000", sq), valu("v_lshlrev_b32", sq, 16, sq),
                valu("v_add_f32", sq, f32(1e-5), sq), valu("v_cvt_pk_bf16_f32", sq, sq, sq), valu("v_lshlrev_b32", sq, 16, sq),
                valu("v_sqrt_f32", sq, sq), valu("v_cvt_pk_bf16_f32", sq, sq, sq), valu("v_lshlrev_b32", sq, 16, sq),
                valu("v_rcp_f32", rb[1], sq), valu("v_mul_f32", rb[0], f"-{sm}", rb[1]))
            for h in range(4):
                for r in (lo, xr):
                    add([valu("v_pk_fma_f32", r.sub(i, 2), r.sub(i, 2), rb, rb, extra="op_sel:[0,1,0] op_sel_hi:[1,1,0]") for i in (4 * h, 4 * h + 2)])
                add([valu("v_cvt_pk_bf16_f32", xr[i], lo[i], xr[i]) for i in range(4 * h, 4 * h + 4)])
                add(buf_store("buffer_store_dwordx4", xr.sub(4 * h, 4), vXS, rWS, sXS if h >> 1 else 0, 2048 * (h & 1), flags="sc1"))
            add(self.poll_issue(vDB, rDBG))
            add(self.stamp(64))
            for _ in range(c.w_a): add(self.dma_slab())
            if c.b_rest is not None:
                add(salu("s_lshl1_add_u32", sT[0], sRB, sJ), salu("s_lshl2_add_u32", sT[1], sT[0], sW), salu("s_mul_i32", sT[1], sT[1], 4 * 3072), salu("s_lshl_b32", sT[2], sGQ, 8),
                    salu("s_add_u32", sT[1], sT[1], sT[2]), valu("v_and_b32", t2, 3, t0), valu("v_mul_u32_u24", t2, 3072, t2), valu("v_and_b32", t3, 1, t1),
                    valu("v_lshl_add_u32", t2, t3, 7, t2), valu("v_add_u32", vTCH[3], sT[1], t2),
                    salu("s_and_b32", sT[2], sW, 1), salu("s_lshl1_add_u32", sT[1], sT[0], sT[2]), salu("s_mul_i32", sT[1], sT[1], 8 * 3584),
                    salu("s_mul_i32", sT[2], sGQ, 7 * 128), salu("s_add_u32", sT[1], sT[1], sT[2]), salu("s_add_u32", sT[1], sT[1], 256),
                    valu("v_mul_u32_u24", t2, 3584, t0), valu("v_add_u32", t2, sT[1], t2), valu("v_and_b32", t3, 3, t1), valu("v_lshl_add_u32", vTCH[2], t3, 7, t2))
                self.rest = self.touch(vTCH[3], rQKV) + self.touch(vTCH[2], rGU)
            if not c.setup_early: self.misc_setup()
            pre, rd, self.ts = tile_store()
            add(pre)
            add(self.poll_check(vDB, rDBG, vTLB))
            add(self.stamp(64))
            add(barrier(), self.stamp(64), buf_store("buffer_store_dword", vFV, vF0, rWS, flags="sc1"))
            wo = [salu("s_lshr_b32", sT[1], sWQ, 2), set_m0(sT[1], TL, "tl"), buf_dma(vTL, rD, tag="tl")]
            if c.wo_late == 0: add(wo)
            for _ in range(c.w_b): add(self.dma_slab())
        else:
            pre, rd, self.ts = tile_store()
            if c.c_tile == -1: add(pre)
            else:
                assert c.ts_pos > c.c_tile and c.ts_pos >= 0
                add(pre[:6]); self.ts = pre[6:] + self.ts
            add(self.stamp(64 + 256), self.dma_slab(), self.stamp(256), wait(vm="w0"), self.stamp(64 + 256))
            add(buf_store("buffer_store_dwordx4", p6, vPS, rWS, flags="sc1"))
            if c.ts_pos < 0: add(self.ts); self.ts = []
            add(self.poll_issue(vDB, rDBG))
            for _ in range(c.w_c - 1): add(self.dma_slab())
            if c.c_tile == -2: add(tdma)
            if c.c_rest == -2: add(self.rest)
            add(self.poll_check(vDB, rDBG, vTLB), self.stamp(64), barrier(), self.stamp(64))
        add(self.poll_issue(vP0, rWS), wait_regs(vPV), self.stamp(64), self.poll_check(vP0, rWS, 1))
        add(self.stamp(65 + 256))
        self.nx = 0
        for _ in range(c.nx0 // 2): add(self.x_load())
        add(wait(vm=["w0", "tl"] if B else "w0"), barrier(), rd)
        F = self.frag_list()
        for k in range(c.LA):
            add(self.frag_reads(k, F[k]))
            if k % 2 and self.nx < c.nx0: add(self.x_load())
        while self.nx < c.nx0: add(self.x_load())
    def x_load(self):
        j = self.nx; self.nx += 1
        o = []
        if j % 4 == 0: o += [salu("s_mov_b32", sXS, j * 1024)]
        return o + [buf_load("buffer_load_dwordx4", X.sub(4 * j, 4), vXN, rWS, 0 if self.cfg.dbg & 8 else sXS, (j % 4) * 1024, flags="sc1")]

    def misc_setup(self):
        add = self.add
        t0, t1, t2, t3 = T[0], T[1], T[2], T[3]
        add(valu("v_and_b32", t0, 3, vLane), valu("v_bfe_u32", t1, vLane, 2, 2), valu("v_bfe_u32", t2, vLane, 4, 1), valu("v_lshrrev_b32", t3, 5, vLane),
            valu("v_lshl_add_u32", vTR0, t3, 3, t1), valu("v_lshlrev_b32", vTR0, 7, vTR0),
            valu("v_lshrrev_b32", t1, 1, t1), valu("v_lshl_add_u32", vTR0, t1, 6, vTR0),
            valu("v_and_b32", t1, 1, t0), valu("v_lshl_add_u32", vTR0, t1, 5, vTR0),
            valu("v_lshrrev_b32", t0, 1, t0), valu("v_lshl_add_u32", t0, t2, 1, t0), valu("v_lshl_add_u32", vTR0, t0, 3, vTR0),
            valu("v_xor_b32", vTR1, 64, vTR0))
        self.win = [0, 0, 0]
        for ch in range(3):
            if not (self.B and ch == 0): add(self.set_hu(ch))
        if self.B: add(self.att_setup())
        else: add(valu("v_bfe_u32", t0, vTR0, 7, 4), valu("v_and_b32", t1, 63, vTR0), valu("v_lshl_add_u32", vVTR, t0, 6, t1))
        add(salu("s_lshl_b32", sT[1], sRB, 2), salu("s_add_u32", sT[1], sT[1], sW), salu("s_mul_i32", sT[2], sT[1], HSTR),
            valu("v_lshl_add_u32", vHST, vLane, 4, sT[2]))
        if self.cfg.dbg & 1: add(valu("v_mov_b32", vHST, OOB))
        add(salu("s_lshr_b32", sT[1], sT[1], 1), salu("s_lshl_b32", sT[1], sT[1], 2), salu("s_add_u32", sT[1], sT[1], sGQ), salu("s_lshl_b32", sT[1], sT[1], 10),
            salu("s_and_b32", sT[2], sW, 1), salu("s_lshl_b32", sT[3], sJ, 1), salu("s_add_u32", sT[2], sT[2], sT[3]), salu("s_lshl_b32", sT[2], sT[2], 2),
            salu("s_add_u32", sT[1], sT[1], sT[2]), salu("s_add_u32", sT[1], sT[1], FLAG_OFF),
            valu("v_mov_b32", t0, OOB), valu("v_mov_b32", t1, sT[1]), valu("v_cmp_eq_u32", "vcc", 0, vLane), valu("v_cndmask_b32", vFLG, t0, t1, "vcc"))
        add(salu("s_lshl_b32", sT[1], sTB2, 1), salu("s_lshr_b32", sT[2], sW, 1), salu("s_add_u32", sT[1], sT[1], sT[2]), salu("s_mul_i32", sP2h, sT[1], HSTR),
            salu("s_xor_b32", sT[2], sT[1], 1), salu("s_mul_i32", sHS, sT[2], HSTR),
            salu("s_lshl_b32", sT[1], sT[1], 5),
            salu("s_and_b32", sT[2], sT[1], 1023), salu("s_lshl_b32", sT[2], sT[2], 11), salu("s_lshr_b32", sT[1], sT[1], 10), salu("s_lshl_b32", sT[1], sT[1], 10),
            salu("s_add_u32", sT[1], sT[1], sT[2]), salu("s_lshl_b32", sT[2], sCB2, 7), salu("s_add_u32", sT[1], sT[1], sT[2]),
            salu("s_and_b32", sT[2], sW, 1), salu("s_lshl_b32", sT[2], sT[2], 6), salu("s_add_u32", sP2x, sT[1], sT[2]),
            salu("s_lshl_b32", sT[1], sTB2, 2), salu("s_add_u32", sT[1], sT[1], sW), salu("s_lshl_b32", sT[1], sT[1], 10), salu("s_add_u32", sP2f, sT[1], FLAG_OFF))
        add(salu("s_mul_i32", sT[1], sCB2, 72 * 4096), salu("s_add_u32", sT[1], sT[1], WT_OFF), salu("s_lshl_b32", sT[2], sT[2], 4),
            salu("s_add_u32", sT[3], sT[1], sT[2]), valu("v_lshl_add_u32", vW[0], vLane, 4, sT[3]),
            salu("s_sub_u32", sT[3], sT[1], sT[2]), valu("v_lshl_add_u32", vW[1], vLane, 4, sT[3]), valu("v_lshl_add_u32", vWB, vLane, 4, sWQ),
            salu("s_lshl_b32", sT[1], sCB2, 8), salu("s_add_u32", sT[1], sT[1], FLAGA_OFF + 96 * 128), salu("s_lshl_b32", sT[2], sGQ, 9), salu("s_add_u32", sT[2], sT[2], FLAGA_OFF + 64 * 128),
            salu("s_lshr_b32", sT[3], sCB2, 1), salu("s_xor_b32", sT[3], sT[3], self.cfg.tx), salu("s_lshl_b32", sT[3], sT[3], 9), salu("s_add_u32", sT[3], sT[3], FLAGA_OFF + 80 * 128),
            salu("s_cmp_eq_u32", None, sW, 0), salu("s_cselect_b32", sT[1], sT[1], OOB), salu("s_cselect_b32", sT[2], sT[2], OOB), salu("s_cselect_b32", sT[3], sT[3], OOB),
            salu("s_cselect_b32", sW0, 1, 0),
            valu("v_and_b32", t0, 24, vLane), valu("v_lshlrev_b32", t0, 2, t0), valu("v_and_or_b32", t0, vLane, 7, t0), valu("v_and_b32", t1, 63, t0),
            valu("v_lshl_add_u32", t1, t1, 2, sT[1]), valu("v_lshl_add_u32", vP2, t0, 2, sT[3]),
            valu("v_cmp_lt_u32", "vcc", 31, vLane), valu("v_cndmask_b32", vP2, vP2, t1, "vcc"))
        if not self.B: add(valu("v_lshl_add_u32", vP6, t0, 2, sT[2]))
        add(salu("s_xor_b32", sU[0], sTB2, sCB2), salu("s_and_b32", sU[0], sU[0], 3 if self.cfg.rot else 0), salu("s_lshl_b32", sU[0], sU[0], 11),
            [salu("s_xor_b32", sU[t], sU[0], t << 11) for t in (1, 2, 3)], [salu("s_and_b32", sUh[t], sU[t], 1 << 11) for t in (0, 1)])

    def chunk_of(self, n): return 0 if n < 8 else (1 if n < 12 else 2)
    def dma_setup(self, ch):
        t0, t1 = T[0], T[1]
        o = []
        B = self.B
        half = (not B) and ch == 1
        stride = 3072 if (B and ch < 2) else 3584
        if half:
            return [salu("s_lshl_b32", sT[1], sGQ, 1), salu("s_add_u32", sT[1], sT[1], sJ), salu("s_lshl_b32", sT[1], sT[1], 16), salu("s_add_u32", sT[1], sT[1], sWQ),
                    salu("s_add_u32", sT[1], sT[1], P6_OFF - 2 * 65536), valu("v_lshl_add_u32", vDMA1, vLane, 4, sT[1])]
        else:
            o += [valu("v_lshrrev_b32", t0, 2, vLane), valu("v_and_b32", t0, 4, t0), valu("v_and_b32", t1, 7, vLane), valu("v_xor_b32", t1, t0, t1),
                  valu("v_lshrrev_b32", t0, 3, vLane)]
        o += [valu("v_mul_u32_u24", t0, stride, t0), valu("v_lshl_add_u32", t0, t1, 4, t0)]
        a, b = sT[1], sT[2]
        if B and ch == 0:
            o += [salu("s_lshl_b32", a, sGQ, 1), salu("s_add_u32", a, a, sJ), salu("s_lshl_b32", a, a, 7), salu("s_lshr_b32", b, sW, 1),
                  salu("s_add_u32", b, b, 1), salu("s_lshl_b32", b, b, 10), salu("s_add_u32", a, a, b), salu("s_and_b32", b, sW, 1),
                  salu("s_mul_i32", b, b, 32 * stride), salu("s_add_u32", a, a, b)]
        elif B and ch == 1:
            o += [salu("s_lshl_b32", a, sGQ, 1), salu("s_add_u32", a, a, sJ), salu("s_lshl_b32", a, a, 7), salu("s_mul_i32", b, sW, 32 * stride),
                  salu("s_add_u32", a, a, b)]
        else:
            if half: o += [salu("s_lshl_b32", b, sJ, 6), salu("s_add_u32", b, b, 6 * 128 - 128)]
            else: o += [salu("s_lshl_b32", b, sJ, 7), salu("s_sub_u32" if ch == 0 else "s_add_u32", b, b, 256)]
            o += [salu("s_mul_i32", a, sGQ, 7 * 128), salu("s_add_u32", a, a, b), salu("s_and_b32", b, sW, 1),
                  salu("s_mul_i32", b, b, (64 if half else 32) * stride), salu("s_add_u32", a, a, b)]
        o += [valu("v_add_u32", (vDMA0, vDMA1, vDMA2)[ch], a, t0)]
        return o
    def dma_slab(self):
        n = self.nslab; self.nslab += 1
        ch = self.chunk_of(n)
        B = self.B
        vd = (vDMA0, vDMA1, vDMA2)[ch]
        srd = rQKV if (B and ch < 2) else rGU
        so = (sOA if ch < 2 else sOB) if B else (sOB if ch == 1 else sOA)
        stride = 3072 if (B and ch < 2) else 3584
        o = [set_m0(sWQ, slab_slot(n) * SLOT, f"w{n}")]
        if ch == 1 and not B:
            if n > 8: o += [valu("v_add_u32", vd, 16384, vd)]
            return o + [buf_dma(vd, rWS, 0, i * 1024, flags="sc1", tag=f"w{n}") for i in range(4)]
        if n not in (0, 8, 12) and not self.cfg.dbg & 16: o += [valu("v_add_u32", vd, (128 if ch == 1 else 64) * stride, vd)]
        o += [buf_dma(vd, srd, so[i], i * 1024, flags="sc1" if self.cfg.dbg & 16 else "", tag=f"w{n}") for i in range(4)]
        return o
    def frag_list(self):
        L = []
        for n in range(20):
            ch = self.chunk_of(n)
            base = slab_slot(n) * SLOT
            if ch != 1:
                n0 = 0 if ch == 0 else 12
                for jj in range(4):
                    for blk in range(4):
                        L.append((ACC1.sub(16 * blk, 16), 4 * (n - n0) + jj, n, base + (blk & 1) * 8192 + jj * 2048, blk >> 1, 512))
            else:
                for jj in range(8):
                    for blk in range(2):
                        if self.B: L.append((ACC2.sub(16 * blk, 16), 8 * (n - 8) + jj, n, base + jj * 2048, blk, 512))
                        else: L.append((ACC2.sub(16 * blk, 16), 8 * (n - 8) + jj, n, base + blk * 8192 + jj * 1024, 2, 256))
        k0 = 320 - 16 * self.cfg.nspl
        L[k0:] = [f for f in L[k0:] if f[4] == 0] + [f for f in L[k0:] if f[4] == 1]
        return L
    def window(self, wins, which, reg, off, span):
        o = []
        if not (wins[which] <= off and off + span <= wins[which] + 65536):
            w = off // SLOT * SLOT
            d = w - wins[which]
            o += [valu("v_add_u32" if d > 0 else "v_subrev_u32", reg, abs(d), reg)]
            wins[which] = w
        return o, off - wins[which]
    def frag_reads(self, k, f):
        acc, step, n, off, which, ustep = f
        b = (vTR0, vTR1, vVTR)[which]
        o, imm = self.window(self.win, which, b, off, 1024)
        dst = WF.sub(4 * (k % self.cfg.NB), 4)
        o += [ds_read("ds_read_b64_tr_b16", dst.sub(0, 2), b, imm, tag=f"f{k}"), ds_read("ds_read_b64_tr_b16", dst.sub(2, 2), b, imm + ustep, tag=f"f{k}")]
        return o
    def ffn_epi(self, G, U, ch, kst, tag, pk=False):
        o = []
        for b in range(4):
            t = [T[4 + i] for i in range(4)]
            g = [G[4 * b + i] for i in range(4)]; u = [U[4 * b + i] for i in range(4)]
            if pk:
                t2 = [T.sub(4, 2), T.sub(6, 2)]; g2 = [G.sub(4 * b, 2), G.sub(4 * b + 2, 2)]; u2 = [U.sub(4 * b, 2), U.sub(4 * b + 2, 2)]
                o += [valu("v_pk_mul_f32", t2[i], g2[i], T.sub(0, 2)) for i in range(2)]
                o += [valu("v_exp_f32", t[i], t[i]) for i in range(4)]
                o += [valu("v_pk_mul_f32", u2[i], g2[i], u2[i]) for i in range(2)]
                o += [valu("v_pk_add_f32", t2[i], t2[i], T.sub(2, 2)) for i in range(2)]
                o += [valu("v_rcp_f32", t[i], t[i]) for i in range(4)]
                o += [valu("v_pk_mul_f32", u2[i], u2[i], t2[i]) for i in range(2)]
            else:
                o += [valu("v_mul_f32", t[i], f32(-LOG2E), g[i]) for i in range(4)]
                for i in range(4): o += [valu("v_exp_f32", t[i], t[i]), valu("v_mul_f32", u[i], g[i], u[i])]
                o += [valu("v_add_f32", t[i], "1.0", t[i]) for i in range(4)]
                o += [valu("v_rcp_f32", t[i], t[i]) for i in range(4)]
                o += [valu("v_mul_f32", u[i], u[i], t[i]) for i in range(4)]
            o += [valu("v_cvt_pk_bf16_f32", G[2 * b + i], u[2 * i], u[2 * i + 1]) for i in range(2)]
            if b & 1: o += [buf_store("buffer_store_dwordx4", G.sub(2 * (b - 1), 4), vHST, rWS, sHu[ch], kst + (b >> 1) * 1024, flags=self.cfg.hflags, tag=tag)]
        return o
    def set_hu(self, ch):
        a = sT[1]
        if self.B and ch == 1:
            return [salu("s_lshl_b32", a, sGQ, 1), salu("s_add_u32", a, a, sJ), salu("s_lshl_b32", a, a, 12), salu("s_add_u32", sHu[ch], a, 112 * 1024)]
        o = [salu("s_mul_i32", sHu[ch], sGQ, 28 * 1024)]
        if ch == 1: o += [salu("s_lshl_b32", a, sJ, 11), salu("s_add_u32", a, a, 6 * 4096 - 4096)]
        else: o += [salu("s_lshl_b32", a, sJ, 12), salu("s_sub_u32" if ch == 0 else "s_add_u32", a, a, 8192)]
        return o + [salu("s_add_u32", sHu[ch], sHu[ch], a)]

    def phase1(self):
        c, add, B = self.cfg, self.add, self.B
        F = self.frag_list()
        NM = len(F)
        gaps = [[] for _ in range(NM)]
        tail = [[] for _ in range(NM)]
        load = [0] * NM
        def put(k, ins, last=False):
            (tail if last else gaps)[k] += ins
            load[k] += sum(cyc(i) for i in ins)
        def spread(ins, k0, k1):
            tot = sum(cyc(i) for i in ins)
            lo, hi = 0.0, 1000.0
            for _ in range(40):
                mid = (lo + hi) / 2
                if sum(max(0, mid - load[k]) for k in range(k0, k1)) >= tot: hi = mid
                else: lo = mid
            cap, acc = [], 0.0
            for k in range(k0, k1):
                acc += max(0, hi - load[k]); cap.append(acc)
            k, used = 0, 0.0
            for i in ins:
                while k < len(cap) - 1 and used + cyc(i) / 2 > cap[k] and i.kind != "branch": k += 1
                put(k0 + k, [i]); used += cyc(i)
        bar_gap = {n: 16 * n - c.LA - 1 for n in range(1, 20)}
        bar_gap[0], bar_gap[20] = -1, NM
        self.bar_extra = {n: [] for n in range(1, 21)}
        need = {n: max(f[2] for f in F[:min(NM, bar_gap[n + 1] + c.LA + 1)]) for n in range(20)}
        skip = lambda n: c.bar2 and c.bar2 <= n < 19 and (n - c.bar2) % 2 == 1
        for n in range(18, 0, -1):
            if skip(n + 1): need[n] = need[n + 1]
        for n in (c.pw_per, c.p6_per, c.f2_bar): assert not skip(n)
        lastx = lambda i: max(k for k, f in enumerate(F) if f[1] // 4 == i)
        plan = dict((int(p.split(":")[0]), p.split(":")[1].split(".")) for p in (c.planB if B else c.planC).split(",") if p)
        self.pool = list(ABUF) + VBUF[:5] + ([] if B else VBUF[5:7])
        put(bar_gap[c.pw_per] - 1 - c.pw_lead, self.poll_issue(vP2, rWS))
        put(bar_gap[c.pw_per] - 1, self.poll_check(vP2, rWS, sW0))
        if not B:
            assert bar_gap[c.p6_per] <= bar_gap[c.pw_per] - 1 - c.pw_lead
            put(bar_gap[c.p6_per] - 1 - c.pw_lead, self.poll_issue(vP6, rWS))
            put(bar_gap[c.p6_per] - 1, self.poll_check(vP6, rWS, sW0))
        put(bar_gap[c.f2_bar] + 1, [buf_store("buffer_store_dword", vFV, vF2, rWS, 0, 2048, flags="sc1")])
        for n in range(20):
            k = bar_gap[n]
            if n and not skip(n): load[k] += 14
            if n == 19 and B: self.pool += VBUF[5:]
            if n == 9 and not B: self.pool += VBUF[7:]
            ops = list(plan.get(n, []))
            ins = []
            while ops and ops[0] in ("r", "H"):
                ins += self.plan_op(ops.pop(0), n)
            w = []
            nw = 0
            while self.nslab < 20 and self.nslab <= n - (1 if skip(n) else 0) + c.NS - 2 and (B or self.nslab < 8 or n >= c.p6_per) and (self.nslab <= need[min(19, n + 2)] or nw + ops.count("w") < 1 or "w" in ops):
                if nw and "w" in ops: ops.remove("w")
                w += self.dma_slab(); nw += 1
            ops = [x for x in ops if x != "w"]
            assert self.nslab > need[min(19, n + 2)], n
            if n == max(c.ts_pos, 0): ins += self.ts
            while c.xfree and self.xf_n < 5 and lastx(self.xf_n) <= k: self.pool += [A(16 * self.xf_n, 16)]; self.xf_n += 1
            nxl = min(32 - self.nx, c.xr[n] if n < len(c.xr) else (c.xrate if n else max(1, c.xrate // 2)))
            for i in w:
                if i.kind == "dma" and nxl: ins += self.x_load(); nxl -= 1
                ins.append(i)
            for _ in range(nxl): ins += self.x_load()
            assert self.nx >= min(32, (bar_gap[n + 1] + 16) // 4 + 1), n
            if n == c.c_tile and not B: ins += self.tdma
            if n == (c.b_rest if B else c.c_rest): ins += self.rest
            for op in ops: ins += self.plan_op(op, n)
            if ins: spread(ins, k + 1, bar_gap[n + 1])
        if not B:
            ins = self.ffn_epi(ACC1.sub(0, 16), ACC1.sub(16, 16), 0, 0, "st1") + self.ffn_epi(ACC1.sub(32, 16), ACC1.sub(48, 16), 0, 2048, "st1")
            spread(ins, 129, 191)
            if not c.one_pa: put(c.g_f1c, self.flag(L_P1, "st1"))
            spread(self.ffn_epi(ACC2.sub(0, 16), ACC2.sub(16, 16), 1, 0, "st2"), 194, c.h2_end)
            put(c.g_f2c, self.flag(L_HALF, "st2"))
        else:
            self.attention(put, spread, bar_gap, load)
        if c.nspl:
            k0 = max(320 - 8 * c.nspl + 2, self.att_end + 7 if B else 0)
            spread(self.ffn_epi(ACC1.sub(0, 16), ACC1.sub(16, 16), 2, 0, "st3"), k0, c.e0_end)
        o = [valu("v_lshl_add_u32", vH[0], vLane, 4, sP2h), valu("v_lshl_add_u32", vH[1], vLane, 4, sHS),
             valu("v_and_b32", vPOLL, 7, vLane), valu("v_lshrrev_b32", vTHR, 2, vPOLL), valu("v_lshl_add_u32", vPOLL, vPOLL, 2, sP2f),
             valu("v_and_b32", vXO, 31, vLane), valu("v_lshlrev_b32", vXO, 11, vXO), valu("v_and_or_b32", vXO, vLane, 32, vXO), valu("v_add_u32", vXO, sP2x, vXO)]
        spread(o, *((176, 192) if B else (200, c.g_pa)))
        la = L_HALF if c.one_pa else L_P1
        put(c.g_pa, self.poll_issue(vPOLL, rWS, la))
        assert c.g_pa < bar_gap[c.pa_per] - 1
        put(bar_gap[c.pa_per] - 1, self.poll_check(vPOLL, rWS, vTHR, la))
        self.pa2 = (vPOLL, rWS, vTHR, L_HALF)
        if c.m_pb == -1:
            put(c.g_pa2 - 2, [valu("v_lshlrev_b32", vP2, 7, vTHR), valu("v_sub_u32", vP2, vPOLL, vP2)])
            self.pa2 = (vP2, rWS, 1, L_O)
        if not c.one_pa: put(c.g_pa2, self.poll_issue(self.pa2[0], rWS, self.pa2[3]))
        if c.pa2_epi < 0 and not c.one_pa: put(319, self.poll_check(*self.pa2))
        spread([valu("v_mov_b32", T[0], f32(-LOG2E)), valu("v_mov_b32", T[1], f32(-LOG2E)), valu("v_mov_b32", T[2], "1.0"), valu("v_mov_b32", T[3], "1.0")], 312, 320)
        inv_bar = {v: n for n, v in bar_gap.items() if 1 <= n <= 19}
        for k in range(NM):
            acc, step, n, off, which, us = F[k]
            if k % 2 == 0: add(wait(lg=[f"f{i}" for i in range(k, k + 2)]))
            add(mfma(32, acc, WF.sub(4 * (k % c.NB), 4), X.sub(4 * step, 4), 0 if step == 0 else acc))
            if k == 0: add(self.stamp(67))
            if k + c.LA < NM: add(self.frag_reads(k + c.LA, F[k + c.LA]))
            add(gaps[k]); add(tail[k])
            if k in inv_bar:
                n = inv_bar[k]
                assert not (skip(n) and self.bar_extra[n])
                if n == 19 or need[n] > need[n - 1]: add(wait(vm=[f"w{need[n]}"] + (["ts"] if n == c.f2_bar else []), lg=self.bar_extra[n] or None), barrier())
            if k in (127, 191): add(self.stamp())
            if k in (31, 63): add(self.stamp(64))
            if k % 32 == 31 and 31 < k < 319: add(self.stamp(2))
            if k in c.sg: add(self.stamp(32))
        add(self.stamp(131))
        self.load = load
    def plan_op(self, op, n):
        if op == "l":
            assert n >= self.cfg.pw_per
            return self.w2_load()
        if op == "h":
            assert n >= self.cfg.pa_per and self.h_n < 4
            return self.h_load()
        if op == "P": return self.poll_issue(vPOLLH, rWS)
        if op == "H":
            self.halo_period = n
            i = salu("s_mov_b32", "m0", sHM0); i.tag = "halo"
            return self.poll_check(vPOLLH, rWS, sTHR) + [i] + [buf_dma((vHLD, vHLD2)[q], rWS, 0, 1024 * q, flags="sc1", tag="halo") for q in range(2)]
        slot = int(op[1:])
        if slot < self.cfg.NS: assert n >= 2 + max(x for x in range(20) if slab_slot(x) == slot)
        if self.B and slot >= 7: assert n >= 19
        assert n >= self.cfg.pw_per
        return self.w2_dma(slot)

    def att_setup(self):
        t0, t1 = T[0], T[1]
        o = [valu("v_and_b32", t0, 31, vLane), valu("v_mul_u32_u24", t0, RP, t0), valu("v_and_or_b32", t1, vLane, 32, 0), valu("v_add_u32", t0, t0, t1),
             salu("s_mul_i32", sT[0], sW, 32 * RP), salu("s_add_u32", sT[0], sT[0], SCR), valu("v_add_u32", vSCR, sT[0], t0),
             valu("v_and_b32", t0, 3, vLane), valu("v_bfe_u32", vVTR, vLane, 2, 2), valu("v_lshl_add_u32", t0, t0, 2, vVTR), valu("v_and_or_b32", t0, vLane, 16, t0),
             valu("v_mul_u32_u24", t0, RP, t0), valu("v_add3_u32", vVTR, sT[0], t0, t1),
             salu("s_mov_b32", sT[0], SCR + 128 * RP + 128), valu("v_lshl_add_u32", vHRB, vLane, 4, sT[0])]
        o += [salu("s_lshl_b32", sT[1], sRB, 3), salu("s_lshl_b32", sT[2], sGQ, 1), salu("s_add_u32", sT[1], sT[1], sT[2]), salu("s_add_u32", sT[1], sT[1], sJ),
              salu("s_lshl_b32", sC1, sT[1], 11), salu("s_add_u32", sC1, sC1, HALO_OFF),
              salu("s_cmp_eq_u32", None, sW, 3), salu("s_cselect_b32", sT[1], sC1, OOB), valu("v_lshl_add_u32", vHALO, vLane, 4, sT[1]),
              salu("s_and_b32", sT[1], sRB, 7), salu("s_or_b32", sT[2], sT[1], sW), salu("s_cselect_b32", sM1[0], 0, "0xf"), salu("s_cselect_b32", sM2[0], 0, "0xff"),
              salu("s_mov_b32", sM1[1], sM1[0]), salu("s_mov_b32", sM2[1], sM2[0]), salu("s_mov_b32", sHM0, SPARE),
              salu("s_cmp_eq_u32", None, sW, 0), salu("s_cselect_b32", sHM0, SCR + 128, sHM0), salu("s_cselect_b32", sT[1], sT[1], 0),
              salu("s_cmp_lg_u32", None, sT[1], 0), salu("s_cselect_b32", sTHR, 1, 0),
              salu("s_sub_u32", sT[2], sC1, 8 * 2048), salu("s_cmp_lg_u32", None, sTHR, 0), salu("s_cselect_b32", sT[2], sT[2], OOB),
              valu("v_lshl_add_u32", vHLD, vLane, 4, sT[2]), valu("v_mov_b32", vHLD2, vHLD)]
        if self.cfg.kv_mode == 4:
            for q, dst in enumerate((vHLD, vHLD2)):
                o += [valu("v_add_u32", t0, 8 + 64 * q, vLane), valu("v_mul_u32_u24", t1, 241, t0), valu("v_lshrrev_b32", t1, 12, t1), valu("v_mul_u32_u24", dst, 17, t1),
                      valu("v_sub_u32", t0, t0, dst), valu("v_min_u32", t0, 15, t0), valu("v_lshlrev_b32", t1, 4, t1), valu("v_lshl_add_u32", t0, t0, 7, t1),
                      valu("v_add_u32", dst, sT[2], t0)]
                if q: o += [valu("v_subrev_u32", dst, 1024, dst)]
            o += [salu("s_sub_u32", sT[1], sC1, 24 * 16), salu("s_cmp_eq_u32", None, sW, 3), salu("s_cselect_b32", sT[1], sT[1], OOB),
                  valu("v_and_b32", t0, 31, vLane), valu("v_lshrrev_b32", t1, 5, vLane), valu("v_lshlrev_b32", t1, 8, t1), valu("v_lshl_add_u32", t1, t0, 4, t1),
                  valu("v_add_u32", t1, sT[1], t1), valu("v_cmp_lt_u32", "vcc", 23, t0), valu("v_mov_b32", t0, OOB), valu("v_cndmask_b32", vHALO, t0, t1, "vcc")]
        o += [
              salu("s_lshl_b32", sT[1], sRB, 3), salu("s_add_u32", sT[1], sT[1], sGQ), salu("s_lshl_b32", sT[1], sT[1], 10), salu("s_lshl_b32", sT[2], sJ, 3),
              salu("s_add_u32", sT[1], sT[1], sT[2]), salu("s_add_u32", sT[1], sT[1], FLAG_OFF - 4096 + 4), salu("s_cmp_lg_u32", None, sTHR, 0),
              salu("s_cselect_b32", sT[1], sT[1], OOB), valu("v_mov_b32", vPOLLH, sT[1]), salu("s_mov_b32", sCS, f32(0.25 * LOG2E))]
        o += [valu("v_and_b32", t0, 3, vLane), valu("v_mov_b32", t1, "0xffff"),
              valu("v_cmp_le_u32", sJ1, 1, t0), valu("v_cmp_le_u32", sJ2, 2, t0), valu("v_cmp_le_u32", sJ3, 3, t0),
              valu("v_cndmask_b32", vA01, t1, -1, sJ1), valu("v_cndmask_b32", vA23, 0, t1, sJ2), valu("v_cndmask_b32", vA23, vA23, -1, sJ3)]
        return o
    def attention(self, put, spread, bar_gap, load):
        c = self.cfg
        units = []
        if c.kv_mode == 4:
            PK = V(176, 32)
            o, wr = [], []
            for blk in range(4):
                a = ACC1.sub(16 * blk, 16)
                for dh in range(2):
                    d = PK.sub(8 * blk + 4 * dh, 4); pl = (blk & 1) * 8 + (blk >> 1) * 4 + dh
                    o += [valu("v_cvt_pk_bf16_f32", d[i], a[8 * dh + 2 * i], a[8 * dh + 2 * i + 1]) for i in range(4)]
                    o += [buf_store("buffer_store_dwordx4", d, vHALO, rWS, 0, pl * 128, flags="sc1", tag="st1")]
                    wr += [ds_write("ds_write_b128", vSCR, d, pl * 16 + 8 * RP, tag="kv")]
            spread(o, 129, c.kv_end)
            for n, x in enumerate(wr):
                k1 = c.kv_end + (c.kw_end - c.kv_end) * n // 8
                while load[k1] > 0: k1 += 1
                put(k1, [x], last=True)
            nb = min(n for n in range(1, 20) if bar_gap[n] > k1)
            assert bar_gap[nb] < c.g_halo
            self.bar_extra[nb] = ["kv"]
        for blk in range(4):
            a = ACC1.sub(16 * blk, 16)
            kv, cb = blk & 1, blk >> 1
            for dh in range(2):
                cv = [valu("v_cvt_pk_bf16_f32", a[4 * dh + i], a[8 * dh + 2 * i], a[8 * dh + 2 * i + 1]) for i in range(4)]
                off = (kv * 8 + cb * 4 + dh) * 16 + 8 * RP
                if c.kv_mode == 2:
                    for q in range(2): units.append((cv[2 * q:2 * q + 2], ds_write("ds_write_b64", vSCR, a.sub(4 * dh + 2 * q, 2), off + 8 * q, tag="kv")))
                else: units.append((cv, ds_write("ds_write_b128", vSCR, a.sub(4 * dh, 4), off, tag="kv")))
        hs = ACC1.sub(8, 8)
        rd = [ds_read("ds_read_b128", hs.sub(4 * i, 4), vHRB, 1024 * i) for i in range(2)]
        if c.kv_mode == 4: pass
        elif c.kv_mode == 0:
            spread([i for u in units for i in u[0] + [u[1]]] + rd, 129, c.kv_end)
        elif c.kv_mode == 3:
            spread([i for u in units for i in u[0]], 129, c.kv_end - 3)
            put(c.kv_end - 3, [u[1] for u in units]); put(c.kv_end - 1, rd)
        else:
            k0 = 129
            for n, (cv, wr) in enumerate(units):
                k1 = 129 + (c.kv_end - 2 - 129) * (n + 1) // len(units) - 1
                while load[k1] > 0 and k1 > k0 + 1: k1 -= 1
                spread(cv, k0, k1); put(k1, [wr], last=True); load[k1] += 100
                k0 = k1 + 1
            spread(rd, max(k0, c.kv_end - 2), c.kv_end)
        if c.kv_mode != 4:
            put(c.kv_end + 2, [buf_store("buffer_store_dwordx4", hs.sub(0, 4), vHALO, rWS, 0, 0, flags="sc1", tag="st1")])
            put(c.kv_end + 4, [buf_store("buffer_store_dwordx4", hs.sub(4, 4), vHALO, rWS, 0, 1024, flags="sc1", tag="st1")])
            self.bar_extra[12] = ["kv"]
        assert c.kv_end + 4 < min(176, c.g_flag1)
        put(c.g_flag1, self.flag(L_HALO, "st1"))
        Q = ACC2.sub(0, 16); O = ACC2.sub(16, 16)
        Sg = [SG.sub(0, 4), SG.sub(4, 4), SG.sub(8, 4)]
        P = [T.sub(0, 2), T.sub(2, 2), T.sub(4, 2)]
        tm, tz, big = SG[12], SG[13], SG[14]
        spread([valu("v_cvt_pk_bf16_f32", Q[i], ACC2[2 * i], ACC2[2 * i + 1]) for i in range(16)] + [valu("v_mov_b32", big, f32(-1e30))], 195, 215)
        k = c.g_halo
        assert k > bar_gap[self.halo_period + 1]
        put(k, [wait(vm="halo")])
        cs = 0.25 * LOG2E
        for cb in range(2):
            spread([ds_read("ds_read_b128", KA.sub(8 * g + 4 * dh, 4), vSCR, (cb * 4 + dh) * 16 + (2 - g) * 4 * RP) for g in range(3) for dh in range(2)], k, k + 4)
            k += 5
            for dq in range(4):
                put(k + dq // 2, [mfma(4, Sg[g], KA.sub(8 * g + 2 * dq, 2), Q.sub(8 * cb + 2 * dq, 2), Sg[g] if dq else 0) for g in range(3)], last=True)
            k += 2
            vr = [ds_read("ds_read_b64_tr_b16", KA.sub(8 * g + 2 * m, 2), vVTR, (8 + cb * 4) * 16 + m * 8 + (2 - g) * 4 * RP, tag="vr") for g in range(3) for m in range(4)]
            s = [Sg[0][i] for i in range(4)] + [Sg[1][i] for i in range(4)]
            o = vr[:4]
            o += [valu("v_cndmask_b32", Sg[2][r], Sg[2][r], big, sM2) for r in (1, 2, 3)]
            o += [valu("v_cndmask_b32", Sg[1][r], Sg[1][r], big, sM1) for r in range(4)]
            o += [valu("v_cndmask_b32", Sg[0][r], Sg[2][r], Sg[0][r], (None, sJ1, sJ2, sJ3)[r]) for r in (1, 2, 3)]
            o += [valu("v_max3_f32", tm, s[0], s[1], s[2]), valu("v_max3_f32", tz, s[3], s[4], s[5]), valu("v_max3_f32", tm, tm, s[6], s[7]), valu("v_max_f32", tm, tm, tz),
                  valu("v_mul_f32", tm, f32(-cs), tm)]
            o += vr[4:8]
            o += [valu("v_fma_f32", s[i], s[i], sCS, tm) for i in range(8)]
            o += [valu("v_exp_f32", s[i], s[i]) for i in range(8)]
            u = [Sg[2][i] for i in range(4)]
            o += [valu("v_add_f32", u[i], s[2 * i], s[2 * i + 1]) for i in range(4)]
            o += [valu("v_add_f32", u[0], u[0], u[1]), valu("v_add_f32", u[2], u[2], u[3]), valu("v_add_f32", u[0], u[0], u[2]), valu("v_rcp_f32", tz, u[0])]
            o += vr[8:]
            o += [valu("v_mul_f32", s[i], s[i], tz) for i in range(8)]
            o += [valu("v_cvt_pk_bf16_f32", u[0], s[0], s[1]), valu("v_cvt_pk_bf16_f32", u[1], s[2], s[3]),
                  valu("v_cvt_pk_bf16_f32", P[1][0], s[4], s[5]), valu("v_cvt_pk_bf16_f32", P[1][1], s[6], s[7]),
                  valu("v_and_b32", P[0][0], u[0], vA01), valu("v_and_b32", P[0][1], u[1], vA23),
                  valu("v_bfi_b32", P[2][0], vA01, 0, u[0]), valu("v_bfi_b32", P[2][1], vA23, 0, u[1])]
            spread(o, k, k + c.att_w)
            k += c.att_w
            for g in range(3):
                put(k + g // 2, [mfma(4, O.sub(4 * m, 4), KA.sub(8 * g + 2 * m, 2), P[g], O.sub(4 * m, 4) if g else 0) for m in range(4)], last=True)
            k += 2
            o = []
            for dh in range(2):
                o += [valu("v_cvt_pk_bf16_f32", O[4 * dh + i], O[8 * dh + 2 * i], O[8 * dh + 2 * i + 1]) for i in range(4)]
                o += [buf_store("buffer_store_dwordx4", O.sub(4 * dh, 4), vHST, rWS, sHu[1], cb * 2048 + dh * 1024, flags=c.hflags, tag="st2")]
            spread(o, k + 1, k + 7)
        assert k <= bar_gap[19], k
        self.att_end = k
        if not c.splf and c.f2_epi < 0: put(min(k + c.f2_lag, 317), self.flag(L_O, "st2"))

    GORD = ([("d", 0, 1, t) for t in range(4)] + [("d", 12, 1, 4 + t) for t in range(2)] + [("o", 0, 1, t) for t in range(4)]
            + [("d", 4, 2, t) for t in range(4)] + [("d", 5, 2, t) for t in range(4)])
    def w2_setup(self):
        return [salu("s_mul_i32", sHd, sW, 28 * 1024), salu("s_lshl_b32", sHo, sW, 13), salu("s_add_u32", sHo, sHo, 112 * 1024),
                salu("s_lshl_b32", sWd, sHd, 1), salu("s_lshl_b32", sWo, sHo, 1)]
    def h_load(self):
        gi = self.h_n; self.h_n += 1
        kind, g0, st, t = self.GORD[gi]
        o = []
        base = sHd if kind == "d" else sHo
        d = ((g0 & ~1) - self.hpos[kind]) * 2048
        self.hpos[kind] = g0 & ~1
        if d: o += [salu("s_add_u32" if d > 0 else "s_sub_u32", base, base, abs(d))]
        o += [salu("s_add_u32" if st == 1 else "s_lshl1_add_u32", sT[0], (sU + sUh)[t], base)]
        dst = self.hreg[gi] = self.pool.pop(0)
        for s in range(2):
            for tb in range(2):
                o += [buf_load("buffer_load_dwordx4", dst.sub(8 * s + 4 * tb, 4), vW[0] if self.cfg.dbg & 2 else vH[tb], rWS, 0 if self.cfg.dbg & 2 else sT[0], s * 1024 + (g0 & 1) * 2048, flags="sc1", tag=f"h{gi}")]
        return o
    def w2_addr(self):
        gi = self.w2_nd; self.w2_nd += 1
        kind, g, st, t = self.GORD[gi]
        base = sWd if kind == "d" else sWo
        d = (g - self.w2pos[kind]) * 4096
        self.w2pos[kind] = g
        o = [salu("s_add_u32" if d > 0 else "s_sub_u32", base, base, abs(d))] if d else []
        return gi, o + [salu(f"s_lshl{st}_add_u32", sWS, (sU + sUh)[t], base)]
    def w2_load(self):
        gi, o = self.w2_addr()
        dst = self.wreg[gi] = self.pool.pop(0)
        return o + [buf_load("buffer_load_dwordx4", dst.sub(4 * i, 4), vW[i & 1], rWS, 0 if self.cfg.dbg & 4 else sWS, i * 1024, flags="sc1", tag=f"g{gi}") for i in range(4)]
    def w2_dma(self, slot):
        gi, o = self.w2_addr()
        assert slot not in self.w2slot.values()
        self.w2slot[gi] = slot
        return [set_m0(sWQ, slot * SLOT, f"g{gi}")] + o + [buf_dma(vW[i & 1], rWS, sWS, i * 1024, flags="sc1", tag=f"g{gi}") for i in range(4)]
    def w2_read(self):
        gi = min(self.w2slot)
        base = self.w2slot.pop(gi) * SLOT
        dst = self.wreg[gi] = self.pool.pop(0)
        o, imm = self.window(self.win2, 0, vWB, base, 4096)
        for i in o: i.tag = f"r{gi}"
        return [wait(vm=f"g{gi}")] + o + [ds_read("ds_read_b128", dst.sub(4 * i, 4), vWB, imm + i * 1024, tag=f"r{gi}") for i in range(4)]
    def phase2(self):
        c, add = self.cfg, self.add
        accF = [ACC2.sub(0, 16), A(80, 16), A(96, 16), A(112, 16)]
        accS = [ACC2.sub(16, 16)]
        PR = [None, ACC1.sub(0, 16), ACC1.sub(16, 16), ACC1.sub(32, 16)]
        xf = ACC1.sub(48, 16)
        red = [vSCR, vVTR, vTR0, vTR1, vDMA2, vHST]
        pool, hreg, wreg, h_load = self.pool, self.hreg, self.wreg, self.h_load
        pool += [A(128, 16), A(144, 16), A(160, 16)] + [A(16 * i, 16) for i in range(self.xf_n, 5)]
        light = []
        heavy = []
        pend = lambda q, tag: any(i.tag == tag for i in q)
        e = ([] if c.nspl else self.ffn_epi(ACC1.sub(0, 16), ACC1.sub(16, 16), 2, 0, "st3", pk=True)) + self.ffn_epi(ACC1.sub(32, 16), ACC1.sub(48, 16), 2, 2048, "st4", pk=True)
        assert 9 not in self.w2slot.values()
        assert all(x < min(18, 20 - c.nspl) for x in range(20) if 6 <= slab_slot(x) <= 8)
        seq = []
        for gi in range(18):
            bl = (1, 2, 3) if gi >= 18 - c.defer else (0, 1, 2, 3)
            seq += [(gi, s, b) for b in bl for s in range(2)] if gi == 17 else [(gi, s, b) for s in range(2) for b in bl]
        seq += [(gi, s, 0) for gi in range(18 - c.defer, 18) for s in range(2)]
        last = {gi: max(m for m, x in enumerate(seq) if x[0] == gi) for gi in range(18)}
        first = {gi: min(m for m, x in enumerate(seq) if x[0] == gi) for gi in range(18)}
        lastb = {b: max(m for m, x in enumerate(seq) if x[2] == b) for b in range(4)}
        g6 = 10 if c.m_pb == -1 else 6
        st = {"q": [], "gate": g6 if c.pa2_epi < 0 else 4, "x": False, "m": -1, "sw": False}
        def refill():
            okw = self.w2_nd < 18 and len(pool) > (1 if self.w2_nd <= self.h_n else c.keep)
            okh = self.h_n < st["gate"] and len(pool) > 1
            if okh and not (okw and self.w2_nd <= self.h_n + c.wlead): st["q"] += h_load()
            elif okw: st["q"] += self.w2_load()
            elif not st["x"] and st["m"] >= 0 and not pend(light, "ra"):
                st["x"] = True
                st["q"] += [set_m0(sWQ, 9 * SLOT, "xs"), salu("s_mov_b32", sT[1], 16384 - 1024),
                            buf_dma(red[4], rX, 0, 0, tag="xs"), buf_dma(red[4], rX, sT[1], 1024, tag="xs")]
        def pump():
            if not st["q"]: refill()
            while st["q"]:
                x = st["q"].pop(0); add(x)
                if x.kind in ("dma", "vml"): return True
            return False
        step = max(1, len(e) * 3 // 4 // max(1, c.epi_mem))
        k = 0
        for n, i in enumerate(e):
            if self.B and not c.splf and n == c.f2_epi: add(self.flag(L_O, "st2"))
            if n == c.pa2_epi: add(self.poll_check(*self.pa2)); st["gate"] = g6
            if (c.splf or c.m_pe > 0) and c.m_f3 < 0 and n == c.f3_at: add(self.flag(L_L0, "st3"))
            if n % step == 0 and k < c.epi_mem: pump(); k += 1
            add(i)
        add(self.stamp(129))
        started = set()
        ra = [salu("s_add_u32", sT[2], sWQ, 6 * SLOT), valu("v_lshl_add_u32", red[0], vLane, 4, sT[2])] + [valu("v_xor_b32", red[b], b * 4096, red[0]) for b in (1, 2, 3)]
        ra += [salu("s_and_b32", sT[2], sP2x, 64), salu("s_mul_i32", sT[3], sT[2], 511), salu("s_add_u32", sT[3], sT[3], sP2x),
               valu("v_lshrrev_b32", red[4], 3, vLane), valu("v_and_b32", red[5], 7, vLane), valu("v_lshlrev_b32", red[5], 4, red[5]),
               valu("v_lshl_add_u32", red[4], red[4], 11, red[5]), valu("v_add_u32", red[4], sT[3], red[4]),
               salu("s_lshr_b32", sT[3], sW, 1), salu("s_lshl_b32", sT[3], sT[3], 13), salu("s_add_u32", sT[3], sT[3], sT[2]), salu("s_add_u32", sT[3], sT[3], 9 * SLOT),
               valu("v_and_b32", red[5], 16, vLane), valu("v_lshlrev_b32", red[5], 1, red[5]), valu("v_and_or_b32", red[5], vLane, 15, red[5]), valu("v_lshlrev_b32", red[5], 7, red[5]),
               valu("v_and_or_b32", red[5], vLane, 32, red[5]), valu("v_add_u32", red[5], sT[3], red[5])]
        for i in ra: i.tag = "ra"
        light += ra
        used = set()
        for m, (gi, s, b) in enumerate(seq):
            st["m"] = m
            kind = self.GORD[gi][0]
            if gi in self.w2slot or pend(light, f"r{gi}"):
                add(light); light.clear()
                while gi in self.w2slot: add(self.w2_read())
            while gi >= self.w2_nd or pend(st["q"], f"g{gi}"): assert pump(), (m, gi)
            while gi >= self.h_n or pend(st["q"], f"h{gi}"): assert pump(), (m, gi)
            a = (accF if kind == "d" else accS)[b]
            add(mfma(32, a, wreg[gi].sub(8 * s + 4 * (b & 1), 4), hreg[gi].sub(8 * s + 4 * (b >> 1), 4), a if (kind, b) in started else 0))
            started.add((kind, b))
            if m == last[gi]:
                pool += [hreg[gi], wreg[gi]]
                if gi in (3, 4, 5): accS.append(pool.pop())
                if gi in c.sp: add(self.stamp(128))
            busy = False
            if m == c.m_f3: add(self.flag(L_L0, "st3")); busy = True
            if m == c.m_f4: add(self.flag(L_END, "st4"), self.stamp()); busy = True
            lb, lc = (L_L0 if c.splf else L_O), (L_L0 if c.m_pe > 0 else L_END)
            for mm, ln in ((c.m_pb, lb), (c.m_pc, lc), (c.m_pe, L_END)):
                if m == mm - c.m_pd: add(self.poll_issue(vPOLL, rWS, ln)); busy = True
            if m == c.m_pb - 1: add(valu("v_xor_b32", vTHR, 1, vTHR))
            if m == c.m_pe: add(self.poll_check(vPOLL, rWS, 1, L_END)); st["gate"] = 18
            if m == c.m_pb: add(self.poll_check(vPOLL, rWS, 1 if c.splf else vTHR, lb)); st["gate"] = 14 if c.splf else 10
            if m == c.m_pc: add(self.poll_check(vPOLL, rWS, 1, lc), self.stamp()); st["gate"] = 14 if c.m_pe > 0 else 18; self.pre += (self.w2_nd, self.h_n)
            used.add((gi, s, b >> 1))
            ahead = 4 * self.h_n - sum(1 for i in st["q"] if i.kind == "vml") - len(used)
            if ((m % c.vstep < c.vnum if m < c.m_v1 else m % 2 == 0) or ahead < c.ahead) and not busy: busy = pump()
            if not light and self.w2slot and pool and m >= first[min(self.w2slot)] - c.rlead: light += self.w2_read()
            if m == last[9] + 2:
                add(light); light.clear()
                while any(6 <= s_ <= 8 for s_ in self.w2slot.values()): add(self.w2_read())
                st["sw"] = True
                heavy += [wait(lg=[f"r{g}" for g in range(18)])]
                heavy += [ds_write("ds_write_b128", red[0], accS[b2].sub(4 * q, 4), (b2 - 1) * SLOT + q * 1024, tag="sw") for b2 in (1, 2, 3) for q in range(4)]
            if m == c.m_sb:
                while not st["x"] or pend(st["q"], "xs"):
                    g18, nd = st["gate"], self.w2_nd; st["gate"] = 0; self.w2_nd = 18; assert pump(); st["gate"], self.w2_nd = g18, nd
                add(heavy); heavy = []
                add(wait(vm="xs", lg="sw"), barrier()); busy = True
                light += [ds_read("ds_read_b128", xf.sub(8 * i + 4, 4), red[5], 16 * i) for i in range(2)]
                light += [ds_read("ds_read_b128", PR[b2].sub(4 * q, 4), red[b2], (b2 - 1) * SLOT + q * 1024) for b2 in (1, 2, 3) for q in range(4)]
                for b2 in range(4):
                    i = valu("v_subrev_u32", red[b2], 6 * SLOT, red[b2]); i.tag = "ra"; light.append(i)
                for h in range(2):
                    for i in range(4):
                        src = xf[8 * h + 4 + i]
                        pr = [valu("v_lshlrev_b32", xf[8 * h + 2 * i], 16, src), valu("v_and_b32", xf[8 * h + 2 * i + 1], "0xffff0000", src)]
                        light += pr
                light += [valu("v_add_f32", accS[0][i], accS[0][i], PR[1][i]) for i in range(16)] + [valu("v_add_f32", PR[2][i], PR[2][i], PR[3][i]) for i in range(16)]
                light += [valu("v_add_f32", accS[0][i], accS[0][i], PR[2][i]) for i in range(16)]
            for b2 in (1, 2, 3):
                if m == lastb[b2] + 2:
                    while pend(light, "ra"): add(light.pop(0))
                    heavy += [ds_write("ds_write_b128", red[0], accF[b2].sub(4 * q, 4), (b2 - 1) * SLOT + q * 1024) for q in range(4)]
            budget = 11 if busy else 24
            if heavy and not busy:
                while heavy:
                    x = heavy.pop(0); add(x)
                    if x.kind == "dsw": break
                budget = 0
            while light and cyc(light[0]) <= budget:
                budget -= cyc(light[0]); add(light.pop(0))
        assert self.h_n == 18 and self.w2_nd == 18 and not self.w2slot and not st["q"] and st["x"]
        add(self.stamp())
        add(heavy, light)
        add(wait(lg="all"), barrier())
        for q in range(4):
            for b in (1, 2, 3): add(ds_read("ds_read_b128", PR[b].sub(4 * q, 4), red[b], (b - 1) * SLOT + q * 1024))
        Fp, Sp, t = accF[0], accS[0], PR[1]
        for hq in range(2):
            r2 = range(8 * hq, 8 * hq + 8, 2); r1 = range(8 * hq, 8 * hq + 8)
            add([valu("v_pk_add_f32", Fp.sub(i, 2), Fp.sub(i, 2), PR[1].sub(i, 2)) for i in r2])
            add([valu("v_pk_add_f32", PR[2].sub(i, 2), PR[2].sub(i, 2), PR[3].sub(i, 2)) for i in r2])
            add([valu("v_pk_add_f32", Fp.sub(i, 2), Fp.sub(i, 2), PR[2].sub(i, 2)) for i in r2])
            add([valu("v_pk_mul_f32", t.sub(i, 2), Fp.sub(i, 2), T.sub(0, 2)) for i in r2])
            add([valu("v_exp_f32", t[i], t[i]) for i in r1])
            add([valu("v_pk_mul_f32", Sp.sub(i, 2), Sp.sub(i, 2), Fp.sub(i, 2)) for i in r2])
            add([valu("v_pk_add_f32", t.sub(i, 2), t.sub(i, 2), T.sub(2, 2)) for i in r2])
            add([valu("v_rcp_f32", t[i], t[i]) for i in r1])
            add([valu("v_pk_fma_f32", xf.sub(i, 2), Sp.sub(i, 2), t.sub(i, 2), xf.sub(i, 2)) for i in r2])
            add([valu("v_cvt_pk_bf16_f32", t[8 * hq + i], xf[8 * hq + 2 * i], xf[8 * hq + 2 * i + 1]) for i in range(4)])
            add(buf_store("buffer_store_dwordx4", t.sub(8 * hq, 4), vXO, rOUT, 0, 16 * hq, flags=c.outflags))

    def finish(self):
        add = self.add
        if self.cfg.stamps:
            add(raw(f"{self.cfg.clock} s[14:15]", "smem"))
            add(wait(vm="all"))
            add(raw(f"{self.cfg.clock} s[16:17]\n    s_waitcnt lgkmcnt(0)", "smem"))
            add(valu("v_mov_b32", V(96), 0))
            for i in range(self.nst): add(raw(f"v_writelane_b32 v96, s{STAMPS[i]}, {1+i}", "valu", wr=["v96"]))
            add(raw(f"v_writelane_b32 v96, s{ST0}, 0", "valu", wr=["v96"]), raw(f"v_writelane_b32 v96, s14, {1+self.nst}", "valu", wr=["v96"]),
                raw(f"v_writelane_b32 v96, s16, {2+self.nst}", "valu", wr=["v96"]))
            add(salu("s_lshl_b32", sT[1], sWG, 2), salu("s_add_u32", sT[1], sT[1], sW), salu("s_lshl_b32", sT[1], sT[1], 6), salu("s_add_u32", sT[1], sT[1], STAMP_OFF),
                valu("v_lshl_add_u32", V(97), vLane, 2, sT[1]), salu("s_mov_b64", "exec", "0xffff"), buf_store("buffer_store_dword", V(96), V(97), rWS))
        add(raw("s_endpgm", "end"))

    def program(self):
        NS[0] = self.cfg.NS
        assert self.cfg.NS <= (7 if self.B else 9)
        self.w2slot, self.slot_used, self.w2pos = {}, {}, {"d": 0, "o": 0}
        self.w2_nd = self.w2_nr = 0
        self.win2 = [0, 0]
        self.xf_n = 0
        self.h_n, self.hreg, self.wreg, self.hpos = 0, {}, {}, {"d": 0, "o": 0}
        self.ramp(); self.phase1()
        self.pre = (self.w2_nd, len(self.w2slot), self.h_n)
        if not self.cfg.p1only: self.phase2()
        self.finish()
        return self.e.text() + self.slow

HEAD = open("recurrent_scan__sliding_local_dilated__swiglu_ffn__prompt.s.ref").read().split("; Override launch")[0]

def build(cfg):
    s = HEAD + "; @launch grid=(256,1,1) block=(256,1,1) lds=163840\n"
    s += f'.amdgcn_target "amdgcn-amd-amdhsa--gfx950"\n.text\n.globl {KNAME}\n.p2align 8\n.type {KNAME},@function\n{KNAME}:\n'
    s += f"""    s_cmp_ge_u32 s2, 256
    s_cbranch_scc0 L_go
    s_endpgm
L_go:
"""
    if cfg.stamps: s += f"    {cfg.clock} s[{ST0}:{ST0+1}]\n"
    s += f"""    s_load_dwordx2 s[24:25], s[0:1], 0
    s_load_dwordx16 s[4:19], s[0:1], 0
    s_load_dwordx4 s[20:23], s[0:1], 64
    v_lshrrev_b32 v1, 6, v0
    s_getpc_b64 s[28:29]
    v_readfirstlane_b32 {sW}, v1
    s_bfe_u32 s26, s2, 0x30003
    s_lshl_b32 s26, s26, 13
    v_lshrrev_b32 v2, 2, v0
    v_lshl_add_u32 v2, v2, 7, s26
    v_min_u32 v2, L_end-L_go-256, v2
    global_load_dword v3, v2, s[28:29]
    v_and_b32 {vLane}, 63, v0
    v_lshrrev_b32 v96, 3, {vLane}
    v_and_b32 v97, 7, v0
    s_lshl_b32 {sWQ}, {sW}, 12
    s_cmp_ge_u32 s2, 128
    s_cbranch_scc1 L_typeC
"""
    info = {}
    for typ in ("B", "C"):
        g = Gen(typ, cfg)
        g.e.vm.append(("pf", {"v3"}))
        s += f"L_type{typ}:\n" + g.program()
        info[typ] = (g.e.slots, g.e.nops, dict(g.e.count), [sum(max(32, 20 + x) for x in g.load[i:i + 32]) for i in range(0, 320, 32)], g.pre, g.nst + 3)
    s += "L_end:\n"
    s += f""".section .rodata,"a"
.p2align 6
.amdhsa_kernel {KNAME}
  .amdhsa_next_free_vgpr 512
  .amdhsa_next_free_sgpr 102
  .amdhsa_accum_offset 256
  .amdhsa_group_segment_fixed_size 0
  .amdhsa_kernarg_size 80
  .amdhsa_user_sgpr_count 2
  .amdhsa_user_sgpr_kernarg_segment_ptr 1
  .amdhsa_system_sgpr_workgroup_id_x 1
.end_amdhsa_kernel
"""
    return s, info

if __name__ == "__main__":
    cfg = Cfg()
    out = sys.argv[1]
    for a in sys.argv[2:]:
        k, v = a.split("=")
        assert hasattr(cfg, k) or hasattr(cfg, k[:-2]), k
        if k in ("outflags", "hflags", "pflags"): v = v.replace("_", " ")
        elif k in ("sg", "sp", "xr", "xr_B", "xr_C"): v = [int(x) for x in v.split(",")]
        elif k not in ("clock", "planB", "planC"): v = int(v)
        setattr(cfg, k, v)
    s, info = build(cfg)
    open(out, "w").write(s)
    for k, v in info.items(): print(k, v)
```

```python
import sys, struct
sys.path.insert(0, "tools")
from emit import *
from asmlib import KNAME

FLAG_OFF, XN_OFF, HALO_OFF, WS_USED = 0x910000, 0x938000, 0xB38000, 0xF00000
WT_OFF, P6_OFF = 0xC01000, 0xE50000
L_HALO, L_P1, L_HALF, L_O, L_L0, L_END = [128 * i for i in range(6)]
FLAGA_OFF = 0x930000
STAMP_OFF = 0xB80000
OOB = 0x40000000
SLOT = 16384
HSTR = 145 * 1024
RP = 272
SCR = 7 * SLOT
SPARE = SCR + 137 * RP
LOG2E = 1.4426950408889634
def f32(x): return "0x%08x" % struct.unpack("<I", struct.pack("<f", x))[0]

class Cfg:
    stamps = 0
    clock = "s_memrealtime"
    sg = ()
    sp = ()
    p1only = 0
    LA = 6
    NB = 10
    spin = 1000000
    cbx = 0
    rot = 0
    sleep = 0
    dpos = 3
    w_c0 = 3
    p0 = 1
    rlate = 0
    m16 = 0
    wstep = 2
    sconst = 1
    gwait = 0
    halo3 = 1
    c_delay = 0
    b_lean = 0
    xr = ()
    splf = 0
    bar2 = 0
    map2 = 0
    one_pa = 0
    q_early = 1
    patom = 0
    f2_lag = 24
    rsel = 1
    tx = 1
    b_rest = None
    tlin = 0
    wo_late = -1
    sig_early = 0
    nodbg = 0
    f2_epi = -1
    pa2_epi = -1
    dbg = 0
    nspl = 0
    e0_end = 312
    f3_at = 30
    setup_early = 0
    w_0 = 0
    w_a = 1
    w_b = 2
    w_c = 4
    nx0 = 8
    xrate = 8
    planB = "4:w,5:w,6:l,7:l,8:l,9:l,10:l,11:P.l,12:l.H,13:l,14:l,15:l.l,16:l.d6,17:l.d0,18:h.h,19:h.h.l"
    planC = "5:w,6:l,7:l,8:l,9:l,10:l,11:l,12:l,13:l,14:l,15:l.l,16:l.l,17:l.d8,18:h.h,19:h.h.d7"
    ts_pos = 0
    f2_bar = 2
    pw_lead = 14
    pw_per = 6
    NS = 7
    xfree = 1
    kv_end = 140
    kv_mode = 3
    kw_end = 214
    p6_per = 4
    c_rest = 4
    c_tile = -1
    g_flag1 = 160
    g_halo = 212
    att_w = 24
    g_f1c = 210
    g_pa = 262
    h2_end = 240
    g_f2c = 264
    g_pa2 = 304
    epi_mem = 8
    m_f4 = 24
    m_pe = -99
    pa_per = 18
    m_f3 = -1
    m_pb = 24
    m_pc = 68
    m_pd = 12
    m_sb = 106
    defer = 4
    vstep = 1
    vnum = 1
    m_v1 = 0
    wlead = 1
    rlead = 12
    keep = 4
    ahead = 12
    outflags = ""
    hflags = "sc1"
    pflags = "sc1"
    wflags = ""
    snake = 0

sWG = S(2)
pX, pQKV, pWO, pG, pU, pD, pOUT, pDBG, pWS = S(4, 2), S(6, 2), S(8, 2), S(12, 2), S(14, 2), S(16, 2), S(18, 2), S(20, 2), S(22, 2)
rX, rQKV, rGU, rD, rWO, rOUT, rWS, rDBG = S(24, 4), S(28, 4), S(32, 4), S(36, 4), S(40, 4), S(44, 4), S(48, 4), S(52, 4)
sW, sRB, sGQ, sJ, sTB2, sCB2, sWQ = S(56), S(57), S(58), S(59), S(60), S(61), S(62)
sT = [S(3), S(63), S(64), S(65)]
sM1, sM2 = S(66, 2), S(68, 2)
sHM0, sXS = S(70), S(71)
sJ1, sJ2, sJ3 = S(72, 2), S(74, 2), S(76, 2)
sTHR, sCNT = S(78), S(79)
sU = [S(60), S(61), S(58), S(59)]
sUh = [S(0), S(1)]
sHu = [S(4), S(5), S(6)]
sCS, sC1, sHd, sHo = S(7), S(8), S(9), S(10)
sWd, sWo, sWS, sW0 = S(40), S(41), S(42), S(43)
sOA = [0, S(11), S(12), S(13)]
sOB = [0, S(14), S(15), S(16)]
sNL, sH3 = S(17), S(18)
sP2h, sP2f, sP2x, sHS = S(20), S(21), S(22), S(23)
STAMPS = list(range(82, 102, 2))
ST0 = 80

ACC1, ACC2 = V(0, 64), V(64, 32)
VBUF = [V(96 + 16 * i, 16) for i in range(8)]
KA, SG = V(176, 24), V(200, 16)
T = V(224, 8)
(vF2, vA23, vA01, vP2, vHRB, vWB, vDMA2, vDMA1, vW1, vFV, vPV, vW0, vPOLL, vHALO, vPOLLH, vHLD,
 vFLG, vVTR, vSCR, vHST, vDMA0, vTR1, vTR0, vLane) = [V(232 + i) for i in range(24)]
vW = [vW0, vW1]
vP6 = vA01
vHLD2, vFH = V(222), V(223)
vXN = V(216)
vTCH = [V(217), V(218), V(219), V(220), V(221)]
vH = [vHRB, vHALO]
vXO, vTHR = vDMA1, vDMA0
X = A(0, 128)
WF = A(128, 40)
aDUM = A(168)
ABUF = [A(176 + 16 * i, 16) for i in range(5)]
NS = [5]
def slab_slot(n): return n % NS[0]

def cyc(i):
    k = i.kind
    if k in ("wait", "waitr", "waitcnt", "mfma"): return 0
    if k == "trans": return 8
    if k in ("dma", "vml"): return 14
    if k == "vms": return 30 if i.op.endswith("x4") else 20
    if k == "dsw": return 26
    if k == "dsr": return 11 if i.op.endswith("b128") else 4
    if k == "bar": return 14
    if k == "branch": return 8
    return 4

class Gen:
    def __init__(self, typ, cfg):
        self.typ, self.cfg = typ, cfg
        self.B = typ == "B"
        import copy
        self.cfg = cfg = copy.copy(cfg)
        for k, v in list(vars(cfg).items()) + list(vars(Cfg).items()):
            if k.endswith('_' + typ): setattr(cfg, k[:-2], getattr(cfg, k))
        self.e = Emitter()
        self.nst = 0
        self.nlab = 0
        self.slow = ""
        self.mid = []
    def add(self, *ins):
        for i in ins: self.e.add(i)
    def stamp(self, mode=1):
        if not (self.cfg.stamps & mode): return []
        r = S(STAMPS[self.nst], 2); self.nst += 1
        return [raw(f"{self.cfg.clock} {r}", "smem")]
    def touch(self, va, srd, flags=""):
        i = buf_load("buffer_load_dword", aDUM, va, srd, flags=flags)
        i.wr = set()
        return [i]
    def poll_text(self, vaddr, srd, off):
        n = {str(vPOLL): (8, 1), str(vPOLLH): (1, 2), str(vP2): (48, 4), str(vP6): (32, 4), "v105": (2, 8), "v106": (8, 16)}[str(vaddr)]
        if not self.cfg.patom & n[1]: return None
        return (f"v_mov_b32 {vPV}, 15\n    s_bfm_b64 exec, {n[0]}, 0\n    v_mov_b32 {vPV}, 0\n"
                f"    buffer_atomic_add {vPV}, {vaddr}, {srd}, 0 offen offset:{off} sc0 sc1\n    s_mov_b64 exec, -1")
    def poll_issue(self, vaddr, srd, off=0):
        t = self.poll_text(vaddr, srd, off)
        if t:
            i = buf_load("buffer_load_dword", vPV, vaddr, srd, 0, off); i.text = t
            return [i]
        return [buf_load("buffer_load_dword", vPV, vaddr, srd, 0, off, flags=self.cfg.pflags)]
    def poll_check(self, vaddr, srd, thr, off=0):
        self.nlab += 1
        l = f"L_{self.typ}_p{self.nlab}"
        sl = f"    s_sleep {self.cfg.sleep}\n" if self.cfg.sleep else ""
        if self.cfg.stamps & 512:
            sl += f"    s_add_u32 s{STAMPS[self.nlab - 1]}, s{STAMPS[self.nlab - 1]}, 1\n"; self.nst = 8
        self.slow += (f"{l}_slow:\n    s_mov_b32 {sCNT}, 0\n{l}_spin:\n"
                f"{sl}    {self.poll_issue(vaddr, srd, off)[0].text}\n    s_add_u32 {sCNT}, {sCNT}, 1\n    s_waitcnt vmcnt(0)\n"
                f"    v_cmp_gt_u32 vcc, {thr}, {vPV}\n    s_cmp_ge_u32 {sCNT}, {self.cfg.spin}\n    s_cbranch_scc1 {l}_ok\n"
                f"    s_cbranch_vccnz {l}_spin\n    s_branch {l}_ok\n")
        return [valu("v_cmp_gt_u32", "vcc", thr, vPV), raw(f"s_cbranch_vccnz {l}_slow\n{l}_ok:", "branch")]
    def flag(self, stage, tag):
        return [wait(vm=tag), buf_store("buffer_store_dword", vFV, vFLG, rWS, 0, stage, flags="sc1")]

    def ramp(self):
        c, add, B = self.cfg, self.add, self.B
        t0, t1, t2, t3 = V(96), V(97), V(98), V(99)
        vXL, vXS, vRS, vST, vF0, vP0, vDB, vTLB, vSG, vXR, vTL, vTS = [V(100 + i) for i in range(12)]
        vR2, vTB0, vTB1, vPL, vPS = [V(162 + i) for i in range(5)]
        tl, p6 = V(168, 16), V(184, 4)
        xr, lo, z, part = V(112, 16), V(128, 16), V(144, 4), V(148, 8)
        sm, sq, one = V(156), V(157), V(158)
        rb = V(160, 2)
        srd = lambda r, p, n: [salu("s_mov_b32", r[0], p[0]), salu("s_mov_b32", r[1], p[1]), salu("s_mov_b32", r[2], n), salu("s_mov_b32", r[3], "0x20000")]
        gu = [salu("s_cmp_lt_u32", None, sW, 2), salu("s_cselect_b32", rGU[0], pG[0], pU[0]), salu("s_cselect_b32", rGU[1], pG[1], pU[1])]
        sizes = ((rX, pX, 2048 * 1024), (rWS, pWS, WS_USED), (rDBG, pDBG, 256), (rQKV, pQKV, 512 * 3072), (rOUT, pOUT, 2048 * 1024))
        XL = 8 * SLOT
        self.nslab = 0
        if c.stamps & 1024:
            add(raw(f"s_getreg_b32 s{STAMPS[0]}, hwreg(HW_REG_XCC_ID)\n    s_getreg_b32 s{STAMPS[1]}, hwreg(HW_REG_HW_ID)", "salu")); self.nst = 2
        if c.stamps & 512: add([salu("s_mov_b32", S(r), 0) for r in STAMPS])
        add(self.stamp(256))
        TL = (7 if B else 9) * SLOT
        roles = [salu("s_lshr_b32", sT[0], sWG, 3), salu("s_and_b32", sT[1], sWG, 7), salu("s_and_b32", sRB, sWG, 1), salu("s_lshl_b32", sRB, sRB, 3),
                 salu("s_and_b32", sT[2], sT[0], 7), salu("s_add_u32", sRB, sRB, sT[2]), salu("s_lshr_b32", sGQ, sT[1], 1), salu("s_lshr_b32", sJ, sT[0], 3),
                 salu("s_lshl_b32", sTB2, sT[1], 2), salu("s_and_b32", sT[2], sT[0], 3), salu("s_add_u32", sTB2, sTB2, sT[2]), salu("s_lshr_b32", sCB2, sT[0], 2)]
        if c.map2 == 1:
            roles = roles[:8] + [salu("s_and_b32", sT[2], sT[0], 7), salu("s_lshl3_add_u32", sTB2, sGQ, sT[2]), salu("s_and_b32", sT[2], sWG, 1), salu("s_lshl2_add_u32", sCB2, sT[2], sJ)]
        if c.map2 == 2:
            roles = roles[:8] + [salu("s_lshr_b32", sT[2], sT[0], 2), salu("s_lshl3_add_u32", sTB2, sGQ, sT[2]), salu("s_and_b32", sT[2], sWG, 1), salu("s_and_b32", sCB2, sT[0], 3),
                                 salu("s_lshl2_add_u32", sCB2, sT[2], sCB2)]
        if c.map2 == 3:
            roles = roles[:8] + [salu("s_lshl2_add_u32", sTB2, sT[1], sJ), salu("s_and_b32", sCB2, sT[0], 7)]
        if c.cbx: roles += [salu("s_xor_b32", sCB2, sCB2, c.cbx)]
        def tile_setup():
            if B:
                o = [salu("s_lshl2_add_u32", sT[1], sRB, sW), salu("s_lshl_b32", sT[2], sT[1], 13), salu("s_lshl1_add_u32", sT[3], sGQ, sJ)] + srd(rD, pWO, 512 * 1024)
            else:
                o = [salu("s_lshr_b32", sT[1], sW, 1), salu("s_lshl1_add_u32", sT[1], sT[0], sT[1]), salu("s_lshl_b32", sT[2], sT[1], 15),
                     salu("s_xor_b32", sCNT, sGQ, c.tx), salu("s_and_b32", sT[3], sW, 1), salu("s_lshl1_add_u32", sT[3], sCNT, sT[3])] + srd(rD, pD, 1792 * 1024)
            o += [salu("s_lshl_b32", sCNT, sT[3], 7), salu("s_add_u32", sT[2], sT[2], sCNT),
                  valu("v_lshrrev_b32", t2, 2, vLane), valu("v_and_b32", t2, 4, t2), valu("v_xor_b32", t2, t2, t1), valu("v_lshlrev_b32", t2, 4, t2),
                  valu("v_lshl_add_u32", t2, t0, 10, t2), valu("v_add_u32", vTL, sT[2], t2)]
            o += [salu("s_mul_i32", sT[2], sT[3], 72 * 4096), salu("s_lshl_b32", sT[1], sT[1], 10 if B else 12), salu("s_add_u32", sT[2], sT[2], sT[1]),
                  salu("s_add_u32", sT[2], sT[2], WT_OFF + (56 * 4096 if B else 0)),
                  ]
            if B: o += [salu("s_lshl4_add_u32", sT[1], sT[3], sRB)]
            else: o += [salu("s_lshl_b32", sT[1], sGQ, 5), salu("s_add_u32", sT[1], sT[1], sT[0])]
            o += [salu("s_and_b32", sT[3], sT[1], 7), salu("s_lshr_b32", sT[1], sT[1], 3), salu("s_lshl_b32", sT[1], sT[1], 7), salu("s_lshl2_add_u32", sT[1], sT[3], sT[1]),
                  salu("s_add_u32", sT[1], sT[1], FLAGA_OFF + (80 if B else 64) * 128)]
            if not B: o += [salu("s_cmp_lt_u32", None, sRB, 14), salu("s_cselect_b32", sT[2], sT[2], OOB)]
            o += [salu("s_cmp_eq_u32", None, sW, 0), salu("s_cselect_b32", sT[1], sT[1], OOB),
                  valu("v_lshl_add_u32", vTS, vLane, 4, sT[2]), valu("v_mov_b32", vF2, OOB), raw(f"v_writelane_b32 {vF2}, {sT[1]}, 0", "valu", rd=[vF2], wr=[vF2])]
            return o
        def tile_store():
            o = [valu("v_and_b32", vTB0, "0x3ff", vTR0), valu("v_and_b32", vTB1, 32, vLane), valu("v_lshl_add_u32", vTB0, vTB1, 6, vTB0)]
            if B:
                o += [salu("s_and_b32", sT[1], sW, 1), salu("s_lshl_b32", sT[1], sT[1], 6), valu("v_xor_b32", vTB0, sT[1], vTB0),
                      salu("s_lshr_b32", sT[1], sW, 1), salu("s_lshl_b32", sT[1], sT[1], 10), salu("s_add_u32", sT[1], sT[1], TL), valu("v_add_u32", vTB0, sT[1], vTB0)]
                return o, [ds_read("ds_read_b64_tr_b16", tl.sub(2 * u, 2), vTB0, u * 512) for u in range(2)], [buf_store("buffer_store_dwordx4", tl.sub(0, 4), vTS, rWS, flags="sc1", tag="ts")]
            o += [salu("s_add_u32", sT[1], sWQ, TL), valu("v_add_u32", vTB0, sT[1], vTB0), valu("v_xor_b32", vTB1, 64, vTB0), wait(vm="tl")]
            for s_ in range(2):
                for cb in range(2):
                    for u in range(2): o += [ds_read("ds_read_b64_tr_b16", tl.sub(8 * s_ + 4 * cb + 2 * u, 2), (vTB0, vTB1)[cb], s_ * 1024 + u * 512)]
            return o, [buf_store("buffer_store_dword", vFV, vF2, rWS, flags="sc1")], [buf_store("buffer_store_dwordx4", tl.sub(4 * i, 4), vTS, rWS, 0, 1024 * i, flags="sc1", tag="ts") for i in range(4)]
        if B:
            if c.p0 == 1:
                add(salu("s_and_b32", sT[2], sWG, 63), salu("s_lshl_b32", sT[2], sT[2], 15), salu("s_lshr_b32", sT[1], sWG, 6), salu("s_lshl2_add_u32", sT[1], sT[1], sW),
                    salu("s_lshl_b32", sT[1], sT[1], 8), salu("s_add_u32", sT[1], sT[1], sT[2]),
                    valu("v_xor_b32", t2, t0, t1), valu("v_lshlrev_b32", t2, 4, t2), valu("v_lshl_add_u32", vXL, t0, 11, t2),
                    salu("s_add_u32", sXS, sT[1], 16384 - 1024), srd(*sizes[0])[2:], set_m0(sWQ, XL, "x"))
                add(self.stamp(256), raw("s_waitcnt lgkmcnt(0)", "waitcnt"), self.stamp(256))
                add(buf_dma(vXL, rX, sT[1], 0, tag="x"), buf_dma(vXL, rX, sXS, 1024, tag="x"), set_m0(sWQ, XL + 2048 - 128, "x"), salu("s_mov_b32", rWS[0], pWS[0]),
                    buf_dma(vXL, rX, sT[1], 128, tag="x"), buf_dma(vXL, rX, sXS, 1024 + 128, tag="x"))
            else:
                add(salu("s_and_b32", sT[2], sWG, 63), salu("s_lshl2_add_u32", sT[2], sT[2], sW), salu("s_lshr_b32", sT[1], sWG, 6), salu("s_lshl3_add_u32", sT[1], sT[2], sT[1]),
                    salu("s_lshl_b32", sT[1], sT[1], 10), valu("v_lshl_add_u32", vXL, vLane, 4, sT[1]), salu("s_mul_i32", sCNT, sW, 4352),
                    salu("s_movk_i32", sT[1], 960), salu("s_movk_i32", sT[2], 1920), salu("s_movk_i32", sT[3], 2880), srd(*sizes[0])[2:], set_m0(sCNT, XL, "x"))
                add(self.stamp(256), raw("s_waitcnt lgkmcnt(0)", "waitcnt"), self.stamp(256))
                add([buf_dma(vXL, rX, sT[i] if i else 0, 1088 * i, tag="x") for i in range(4)], salu("s_mov_b32", rWS[0], pWS[0]))
                add(valu("v_and_b32", vST, 3, vLane), valu("v_mul_u32_u24", t2, 1088, vST), valu("v_lshrrev_b32", vXL, 2, vLane), valu("v_lshl_add_u32", t2, vXL, 4, t2),
                    salu("s_add_u32", sCNT, sCNT, XL), valu("v_add_u32", vXR, sCNT, t2))
            add(self.stamp(256))
            add(srd(*sizes[1])[1:])
            if c.rsel: add(salu("s_lshr_b32", sT[1], sWG, 3), salu("s_and_b32", sT[2], sWG, 1), salu("s_lshl1_add_u32", sT[1], sT[1], sT[2]), salu("s_and_b32", sT[3], sWG, "0xe6"))
            else: add(salu("s_mov_b32", sT[1], sWG), salu("s_lshr_b32", sT[3], sWG, 3))
            add(salu("s_lshl_b32", sT[2], sT[1], 11), salu("s_add_u32", sT[2], sT[2], FLAGA_OFF), salu("s_lshl_b32", sT[1], sT[1], 2),
                salu("s_or_b32", sT[3], sT[3], sW), salu("s_cselect_b32", sT[2], OOB, sT[2]), salu("s_cselect_b32", sT[1], OOB, sT[1]),
                salu("s_lshl_b32", sT[3], sWG, 10), salu("s_add_u32", sT[3], sT[3], FLAG_OFF), salu("s_cmp_eq_u32", None, sW, 1),
                [salu("s_cselect_b32", sT[3], sT[3], OOB), valu("v_lshl_add_u32", vR2, vLane, 4, sT[3]), salu("s_mov_b32", sT[3], 7)] if c.rlate else
                [salu("s_cselect_b32", sT[2], sT[3], sT[2]), salu("s_cselect_b32", sT[3], 6, 7)],
                valu("v_lshrrev_b32", t2, 2, vLane), valu("v_and_b32", t3, 3, vLane), valu("v_lshlrev_b32", t3, 4, t3), valu("v_lshl_add_u32", t2, t2, sT[3], t3),
                valu("v_add_u32", vRS, sT[2], t2), valu("v_mov_b32", vSG, sT[1]), [valu("v_mov_b32", z[i], 0) for i in range(4)])
            add(buf_store("buffer_store_dwordx4", z, vRS, rWS, flags="sc1", tag="reset"))
            add(roles)
            for q in sizes[2:]: add(srd(*q))
            add(gu, srd(rGU, pG, 512 * 3584)[2:], tile_setup())
            if c.wo_late == -1: add(salu("s_lshr_b32", sT[1], sWQ, 2), set_m0(sT[1], TL, "tl"), buf_dma(vTL, rD, tag="tl"))
        else:
            add(roles)
            add(salu("s_lshl_b32", sT[0], sRB, 1), salu("s_add_u32", sT[0], sT[0], sJ), salu("s_sub_u32", sT[0], sT[0], 2),
                salu("s_lshl2_add_u32", sT[1], sT[0], sW), salu("s_mul_i32", sT[1], sT[1], 4 * 3072), salu("s_lshl_b32", sT[2], sGQ, 8), salu("s_add_u32", sT[1], sT[1], sT[2]),
                valu("v_and_b32", t2, 3, t0), valu("v_mul_u32_u24", t2, 3072, t2), valu("v_and_b32", t3, 1, t1), valu("v_lshl_add_u32", t2, t3, 7, t2),
                valu("v_add_u32", vTCH[3], sT[1], t2), valu("v_bfe_u32", t2, t1, 1, 1), valu("v_add_u32", t2, 1, t2), valu("v_lshl_add_u32", vTCH[1], t2, 10, vTCH[3]),
                salu("s_and_b32", sT[2], sW, 1), salu("s_lshl1_add_u32", sT[1], sT[0], sT[2]), salu("s_mul_i32", sT[1], sT[1], 8 * 3584),
                salu("s_mul_i32", sT[2], sGQ, 7 * 128), salu("s_add_u32", sT[1], sT[1], sT[2]),
                valu("v_mul_u32_u24", t2, 3584, t0), valu("v_add_u32", t2, sT[1], t2), valu("v_lshl_add_u32", vTCH[0], t3, 7, t2))
            if c.tlin:
                add(salu("s_sub_u32", sT[2], sWG, 128), salu("s_lshl2_add_u32", sT[3], sT[2], sW), salu("s_mul_i32", sCNT, sT[3], 3072),
                    valu("v_min_u32", vTCH[1], 23, vLane), valu("v_lshl_add_u32", vTCH[1], vTCH[1], 7, sCNT),
                    salu("s_mul_i32", sCNT, sT[3], 3584), valu("v_min_u32", vTCH[4], 27, vLane), valu("v_lshl_add_u32", vTCH[4], vTCH[4], 7, sCNT),
                    salu("s_and_b32", sT[3], sW, 1), salu("s_lshl1_add_u32", sT[3], sT[2], sT[3]), salu("s_mul_i32", sT[3], sT[3], 7168),
                    valu("v_min_u32", vTCH[0], 55, vLane), valu("v_lshl_add_u32", vTCH[0], vTCH[0], 7, sT[3]))
            add(srd(*sizes[3])[2:], srd(rGU, pG, 512 * 3584)[2:])
            add(self.stamp(256), raw("s_waitcnt lgkmcnt(0)", "waitcnt"), self.stamp(256))
            if c.c_delay:
                add(salu("s_mov_b32", sT[3], sT[1]), [self.dma_setup(ch) for ch in range(3)], salu("s_mov_b32", sT[1], sT[3]))
            if c.tlin == 2: add(srd(rD, pD, 1792 * 1024), self.touch(vTCH[4], rD))
            add(srd(*sizes[3])[:2], self.touch(vTCH[1], rQKV), gu, self.touch(vTCH[0], rGU), self.stamp(256))
            add(valu("v_and_b32", t3, 3, t1), valu("v_add_u32", t3, 2, t3), valu("v_lshl_add_u32", vTCH[2], t3, 7, t2),
                valu("v_bfe_u32", t2, vLane, 2, 3), valu("v_mul_u32_u24", t2, 3584, t2), valu("v_and_b32", t3, 3, vLane), valu("v_lshl_add_u32", t2, t3, 4, t2),
                valu("v_lshrrev_b32", t3, 5, vLane), valu("v_lshl_add_u32", t2, t3, 6, t2), salu("s_add_u32", sT[1], sT[1], 768), valu("v_add_u32", vPL, sT[1], t2),
                buf_load("buffer_load_dwordx4", p6, vPL, rGU),
                salu("s_lshr_b32", sT[1], sT[0], 3), salu("s_lshl_b32", sT[1], sT[1], 14), salu("s_and_b32", sT[2], sT[0], 7), salu("s_lshl_b32", sT[2], sT[2], 10),
                salu("s_add_u32", sT[1], sT[1], sT[2]), salu("s_and_b32", sT[2], sW, 1), salu("s_lshl_b32", sT[2], sT[2], 9), salu("s_add_u32", sT[1], sT[1], sT[2]),
                salu("s_lshr_b32", sT[2], sW, 1), salu("s_lshl_b32", sT[2], sT[2], 13), salu("s_add_u32", sT[1], sT[1], sT[2]),
                salu("s_lshl_b32", sT[2], sGQ, 17), salu("s_add_u32", sT[1], sT[1], sT[2]), salu("s_add_u32", sT[1], sT[1], P6_OFF),
                valu("v_and_b32", t2, 31, vLane), valu("v_lshlrev_b32", t2, 4, t2), valu("v_lshl_add_u32", t2, t3, 16, t2), valu("v_add_u32", vPS, sT[1], t2),
                )
            add(tile_setup())
            tdma = [set_m0(sWQ, TL, "tl"), salu("s_mov_b32", sTHR, 7168)]
            for i in range(4):
                tdma += [buf_dma(vTL, rD, sTHR if i else 0, 1024 * i, tag="tl")]
                if 0 < i < 3: tdma += [salu("s_add_u32", sTHR, sTHR, 7168)]
            self.rest = [] if (c.tlin or c.b_rest is not None) else self.touch(vTCH[3], rQKV) + self.touch(vTCH[2], rGU)
            self.tdma = tdma
            if c.c_tile == -1: add(tdma)
            if c.q_early and self.rest: add(self.rest.pop(0))
            if c.c_rest == -1: add(self.rest)
            add(srd(*sizes[0])[2:])
            for q in sizes[1:3] + sizes[4:]: add(srd(*q))
        add(valu("v_mov_b32", vFV, 1))
        sa, sb = (8 * 3072, 8 * 3584) if B else (8 * 3584, 16 * 3584)
        for i in (1, 2, 3):
            add(salu("s_mov_b32", sOA[i], i * (sa - 1024)), salu("s_mov_b32", sOB[i], i * (sb - 1024)))
        if B or not c.c_delay: add(self.dma_setup(0))
        if B:
            for _ in range(c.w_0): add(self.dma_slab())
            add(salu("s_lshr_b32", sT[0], sWG, 1), salu("s_and_b32", sT[3], sWG, 1),
                salu("s_lshl_b32", sT[1], sT[0], 15), salu("s_lshl_b32", sT[2], sW, 13 if c.p0 == 1 else 6), salu("s_add_u32", sT[1], sT[1], sT[2]), salu("s_lshl_b32", sT[2], sT[3], 8),
                salu("s_add_u32", sT[1], sT[1], sT[2]), salu("s_add_u32", sT[1], sT[1], XN_OFF))
            if c.p0 == 1:
                add(valu("v_lshrrev_b32", t2, 4, vLane), valu("v_xor_b32", t3, t2, t1), valu("v_lshlrev_b32", t3, 4, t3), valu("v_and_b32", vST, 15, vLane),
                    valu("v_lshl_add_u32", t3, vST, 7, t3), salu("s_add_u32", sT[2], sWQ, XL), valu("v_add_u32", vXR, sT[2], t3), valu("v_xor_b32", vXL, 64, vXR),
                    valu("v_lshlrev_b32", t3, 4, vST), valu("v_lshl_add_u32", t3, t2, 9, t3), valu("v_add_u32", vXS, sT[1], t3),
                    valu("v_lshlrev_b32", vST, 5, vST), valu("v_add_u32", vST, SPARE, vST),
                    salu("s_lshl_b32", sT[2], sW, 2), valu("v_lshrrev_b32", t3, 5, vLane), valu("v_lshl_add_u32", t3, t3, 4, sT[2]), valu("v_add_u32", vRS, t3, vST))
            else:
                add(valu("v_lshlrev_b32", t3, 4, vST), valu("v_lshl_add_u32", t3, vXL, 9, t3), valu("v_add_u32", vXS, sT[1], t3))
            add(
                salu("s_lshl_b32", sT[1], sT[0], 7), salu("s_lshl_b32", sT[2], sT[3], 2), salu("s_add_u32", sT[1], sT[1], sT[2]), salu("s_add_u32", sT[1], sT[1], FLAGA_OFF),
                salu("s_cmp_eq_u32", None, sW, 0), salu("s_cselect_b32", sT[1], sT[1], OOB),
                valu("v_mov_b32", t2, OOB), valu("v_mov_b32", t3, sT[1]), valu("v_cmp_eq_u32", "vcc", 0, vLane), valu("v_cndmask_b32", vF0, t2, t3, "vcc"),
                valu("v_mov_b32", one, "0x3f803f80"), valu("v_mov_b32", sm, 0), valu("v_mov_b32", sq, 0), salu("s_mov_b32", sXS, 4096))
        add(salu("s_lshl_b32", sT[1], sRB, 2), salu("s_add_u32", sT[1], sT[1], sW), salu("s_lshl_b32", sT[2], sT[1], 7), salu("s_add_u32", sT[2], sT[2], FLAGA_OFF),
            valu("v_and_b32", vPOLL, 1, vLane), valu("v_lshlrev_b32", vPOLL, 2, vPOLL), valu("v_add_u32", vP0, sT[2], vPOLL),
            salu("s_lshl_b32", sT[1], sT[1], 15), salu("s_add_u32", sT[1], sT[1], XN_OFF), valu("v_lshl_add_u32", vXN, vLane, 4, sT[1]),
            salu("s_cmp_eq_u32", None, sW, 0), salu("s_cselect_b32", sT[1], 0, OOB), salu("s_cselect_b32", sT[3], 0 if c.nodbg else 1, 0),
            valu("v_lshl_add_u32", vDB, t1, 2, sT[1]), valu("v_mov_b32", vTLB, sT[3]))
        if not B and not c.c_delay: add(self.dma_setup(1), self.dma_setup(2))
        if B and not c.b_lean: add(self.dma_setup(1), self.dma_setup(2))
        add(self.w2_setup())
        if c.setup_early or not B: self.misc_setup()
        add(self.stamp(65 + 256))
        if B:
            add(wait(vm="x"))
            if c.p0 == 1: add([ds_read("ds_read_b128", xr.sub(4 * i, 4), vXL if i & 1 else vXR, 2048 * (i >> 1)) for i in range(4)])
            else: add([ds_read("ds_read_b128", xr.sub(4 * i, 4), vXR, 256 * i) for i in range(4)])
            if c.sig_early: add(wait(vm="reset"), buf_store("buffer_store_dword", vFV, vSG, rDBG, flags="sc1"))
            add(self.stamp(64 + 256))
            for r in range(16): add(valu("v_dot2c_f32_bf16", sm, xr[r], one, rmw=True), valu("v_dot2c_f32_bf16", sq, xr[r], xr[r], rmw=True))
            add([valu("v_lshlrev_b32", lo[i], 16, xr[i]) for i in range(3)])
            add(valu("v_permlane32_swap_b32", sm, sq, rmw=True, wr2=sq), valu("v_add_f32", sm, sm, sq), valu("v_mov_b32", sq, sm))
            add([valu("v_lshlrev_b32", lo[i], 16, xr[i]) for i in (3, 4)])
            add(valu("v_permlane16_swap_b32", sm, sq, rmw=True, wr2=sq), valu("v_add_f32", sm, sm, sq))
            sig = [] if c.sig_early else [wait(vm="reset"), buf_store("buffer_store_dword", vFV, vSG, rDBG, flags="sc1")]
            shl = lambda a, b: [valu("v_lshlrev_b32", lo[i], 16, xr[i]) for i in range(a, b)]
            if c.p0 == 1:
                add(ds_write("ds_write_b32", vRS, sm, tag="st"), sig, shl(5, 16))
                add(wait(lg="st"), self.stamp(256), barrier(), self.stamp(256))
                add([ds_read("ds_read_b128", part.sub(4 * i, 4), vST, 16 * i) for i in range(2)])
                add([valu("v_and_b32", xr[i], "0xffff0000", xr[i]) for i in range(16)])
                add(valu("v_pk_add_f32", part.sub(0, 2), part.sub(0, 2), part.sub(2, 2)), valu("v_pk_add_f32", part.sub(4, 2), part.sub(4, 2), part.sub(6, 2)),
                    valu("v_add_f32", sm, part[0], part[1]), valu("v_add_f32", sq, part[4], part[5]))
            else:
                add(shl(5, 7), valu("v_add_f32_dpp", sm, sm, sm, extra="row_ror:8 row_mask:0xf bank_mask:0xf"),
                    shl(7, 9), valu("v_add_f32_dpp", sm, sm, sm, extra="row_ror:4 row_mask:0xf bank_mask:0xf"), valu("v_mov_b32", sq, sm),
                    shl(9, 11), valu("v_permlane32_swap_b32", sm, sq, rmw=True, wr2=sq), sig, shl(11, 16), self.stamp(256), self.stamp(256))
                add([valu("v_and_b32", xr[i], "0xffff0000", xr[i]) for i in range(16)])
            add(
                valu("v_mul_f32", sm, f32(1 / 512), sm), valu("v_mul_f32", sq, f32(1 / 512), sq),
                valu("v_fma_f32", sq, f"-{sm}", sm, sq), valu("v_max_f32", sq, 0, sq),
                valu("v_cvt_pk_bf16_f32", sq, sq, sm),
                valu("v_and_b32", sm, "0xffff0000", sq), valu("v_lshlrev_b32", sq, 16, sq),
                valu("v_add_f32", sq, f32(1e-5), sq), valu("v_cvt_pk_bf16_f32", sq, sq, sq), valu("v_lshlrev_b32", sq, 16, sq),
                valu("v_sqrt_f32", sq, sq), valu("v_cvt_pk_bf16_f32", sq, sq, sq), valu("v_lshlrev_b32", sq, 16, sq),
                valu("v_rcp_f32", rb[1], sq), valu("v_mul_f32", rb[0], f"-{sm}", rb[1]))
            for h in range(4):
                for r in (lo, xr):
                    add([valu("v_pk_fma_f32", r.sub(i, 2), r.sub(i, 2), rb, rb, extra="op_sel:[0,1,0] op_sel_hi:[1,1,0]") for i in (4 * h, 4 * h + 2)])
                add([valu("v_cvt_pk_bf16_f32", xr[i], lo[i], xr[i]) for i in range(4 * h, 4 * h + 4)])
                if c.p0 == 1: add(buf_store("buffer_store_dwordx4", xr.sub(4 * h, 4), vXS, rWS, sXS if h >> 1 else 0, 2048 * (h & 1), flags="sc1"))
                else: add(salu("s_movk_i32", sXS, 8192 * h), buf_store("buffer_store_dwordx4", xr.sub(4 * h, 4), vXS, rWS, sXS, flags="sc1"))
            if c.rlate: add(buf_store("buffer_store_dwordx4", z, vR2, rWS, flags="sc1"))
            if c.dpos == 0: add(self.poll_issue(vDB, rDBG))
            add(self.stamp(64))
            if c.dpos != 2:
                for _ in range(c.w_a): add(self.dma_slab())
            if c.b_rest is not None:
                add(salu("s_lshl1_add_u32", sT[0], sRB, sJ), salu("s_lshl2_add_u32", sT[1], sT[0], sW), salu("s_mul_i32", sT[1], sT[1], 4 * 3072), salu("s_lshl_b32", sT[2], sGQ, 8),
                    salu("s_add_u32", sT[1], sT[1], sT[2]), valu("v_and_b32", t2, 3, t0), valu("v_mul_u32_u24", t2, 3072, t2), valu("v_and_b32", t3, 1, t1),
                    valu("v_lshl_add_u32", t2, t3, 7, t2), valu("v_add_u32", vTCH[3], sT[1], t2),
                    salu("s_and_b32", sT[2], sW, 1), salu("s_lshl1_add_u32", sT[1], sT[0], sT[2]), salu("s_mul_i32", sT[1], sT[1], 8 * 3584),
                    salu("s_mul_i32", sT[2], sGQ, 7 * 128), salu("s_add_u32", sT[1], sT[1], sT[2]), salu("s_add_u32", sT[1], sT[1], 256),
                    valu("v_mul_u32_u24", t2, 3584, t0), valu("v_add_u32", t2, sT[1], t2), valu("v_and_b32", t3, 3, t1), valu("v_lshl_add_u32", vTCH[2], t3, 7, t2))
                self.rest = self.touch(vTCH[3], rQKV) + self.touch(vTCH[2], rGU)
            if c.b_lean: add(self.dma_setup(1), self.dma_setup(2))
            self.mid = self.poll_issue(vDB, rDBG) if c.dpos == 3 else []
            if not c.setup_early: self.misc_setup()
            if c.dpos in (1, 2): add(self.poll_issue(vDB, rDBG))
            if c.dpos == 2:
                for _ in range(c.w_a): add(self.dma_slab())
            pre, rd, self.ts = tile_store()
            add(pre)
            add(self.poll_check(vDB, rDBG, vTLB))
            add(self.stamp(64))
            add(barrier(), self.stamp(64), buf_store("buffer_store_dword", vFV, vF0, rWS, flags="sc1"))
            wo = [salu("s_lshr_b32", sT[1], sWQ, 2), set_m0(sT[1], TL, "tl"), buf_dma(vTL, rD, tag="tl")]
            if c.wo_late == 0: add(wo)
            for _ in range(c.w_b): add(self.dma_slab())
        else:
            pre, rd, self.ts = tile_store()
            for _ in range(c.w_c0): add(self.dma_slab())
            if c.c_tile == -1: add(pre)
            else:
                assert c.ts_pos > c.c_tile and c.ts_pos >= 0
                add(pre[:6]); self.ts = pre[6:] + self.ts
            if c.w_c0: add(self.stamp(64 + 256), self.stamp(256), self.stamp(64 + 256))
            else: add(self.stamp(64 + 256), self.dma_slab(), self.stamp(256), wait(vm="w0"), self.stamp(64 + 256))
            add(buf_store("buffer_store_dwordx4", p6, vPS, rWS, flags="sc1"))
            if c.ts_pos < 0: add(self.ts); self.ts = []
            add(self.poll_issue(vDB, rDBG))
            while self.nslab < c.w_c: add(self.dma_slab())
            if c.c_tile == -2: add(tdma)
            if c.c_rest == -2: add(self.rest)
            add(self.poll_check(vDB, rDBG, vTLB), self.stamp(64), barrier(), self.stamp(64))
        add(self.poll_issue(vP0, rWS), wait_regs(vPV), self.stamp(64), self.poll_check(vP0, rWS, 1))
        add(self.stamp(65 + 256))
        self.nx = 0
        for _ in range(c.nx0 // 2): add(self.x_load())
        add(wait(vm=["w0", "tl"] if B else "w0"), barrier(), rd)
        F = self.frag_list()
        for k in range(c.LA):
            add(self.frag_reads(k, F[k]))
            if k % 2 and self.nx < c.nx0: add(self.x_load())
        while self.nx < c.nx0: add(self.x_load())
    def x_load(self):
        j = self.nx; self.nx += 1
        o = []
        if j % 4 == 0: o += [salu("s_mov_b32", sXS, j * 1024)]
        return o + [buf_load("buffer_load_dwordx4", X.sub(4 * j, 4), vXN, rWS, 0 if self.cfg.dbg & 8 else sXS, (j % 4) * 1024, flags="sc1")]

    def misc_setup(self):
        add = self.add
        t0, t1, t2, t3 = T[0], T[1], T[2], T[3]
        add(valu("v_and_b32", t0, 3, vLane), valu("v_bfe_u32", t1, vLane, 2, 2), valu("v_bfe_u32", t2, vLane, 4, 1), valu("v_lshrrev_b32", t3, 5, vLane),
            valu("v_lshl_add_u32", vTR0, t3, 3, t1), valu("v_lshlrev_b32", vTR0, 7, vTR0),
            valu("v_lshrrev_b32", t1, 1, t1), valu("v_lshl_add_u32", vTR0, t1, 6, vTR0),
            valu("v_and_b32", t1, 1, t0), valu("v_lshl_add_u32", vTR0, t1, 5, vTR0),
            valu("v_lshrrev_b32", t0, 1, t0), valu("v_lshl_add_u32", t0, t2, 1, t0), valu("v_lshl_add_u32", vTR0, t0, 3, vTR0),
            valu("v_xor_b32", vTR1, 64, vTR0))
        self.win = [0, 0, 0]
        for ch in range(3):
            if not (self.B and ch == 0): add(self.set_hu(ch))
        if self.B: add(self.att_setup())
        else: add(valu("v_bfe_u32", t0, vTR0, 7, 4), valu("v_and_b32", t1, 63, vTR0), valu("v_lshl_add_u32", vVTR, t0, 6, t1))
        add(self.mid)
        add(salu("s_lshl_b32", sT[1], sRB, 2), salu("s_add_u32", sT[1], sT[1], sW), salu("s_mul_i32", sT[2], sT[1], HSTR),
            valu("v_lshl_add_u32", vHST, vLane, 4, sT[2]))
        if self.cfg.dbg & 1: add(valu("v_mov_b32", vHST, OOB))
        add(salu("s_lshr_b32", sT[1], sT[1], 1), salu("s_lshl_b32", sT[1], sT[1], 2), salu("s_add_u32", sT[1], sT[1], sGQ), salu("s_lshl_b32", sT[1], sT[1], 10),
            salu("s_and_b32", sT[2], sW, 1), salu("s_lshl_b32", sT[3], sJ, 1), salu("s_add_u32", sT[2], sT[2], sT[3]), salu("s_lshl_b32", sT[2], sT[2], 2),
            salu("s_add_u32", sT[1], sT[1], sT[2]), salu("s_add_u32", sT[1], sT[1], FLAG_OFF),
            valu("v_mov_b32", t0, OOB), valu("v_mov_b32", t1, sT[1]), valu("v_cmp_eq_u32", "vcc", 0, vLane), valu("v_cndmask_b32", vFLG, t0, t1, "vcc"))
        if self.B: add(valu("v_add_u32", vFH, sH3, vFLG))
        add(salu("s_lshl_b32", sT[1], sTB2, 1), salu("s_lshr_b32", sT[2], sW, 1), salu("s_add_u32", sT[1], sT[1], sT[2]), salu("s_mul_i32", sP2h, sT[1], HSTR),
            salu("s_xor_b32", sT[2], sT[1], 1), salu("s_mul_i32", sHS, sT[2], HSTR),
            salu("s_lshl_b32", sT[1], sT[1], 5),
            salu("s_and_b32", sT[2], sT[1], 1023), salu("s_lshl_b32", sT[2], sT[2], 11), salu("s_lshr_b32", sT[1], sT[1], 10), salu("s_lshl_b32", sT[1], sT[1], 10),
            salu("s_add_u32", sT[1], sT[1], sT[2]), salu("s_lshl_b32", sT[2], sCB2, 7), salu("s_add_u32", sT[1], sT[1], sT[2]),
            salu("s_and_b32", sT[2], sW, 1), salu("s_lshl_b32", sT[2], sT[2], 6), salu("s_add_u32", sP2x, sT[1], sT[2]),
            salu("s_lshl_b32", sT[1], sTB2, 2), salu("s_add_u32", sT[1], sT[1], sW), salu("s_lshl_b32", sT[1], sT[1], 10), salu("s_add_u32", sP2f, sT[1], FLAG_OFF))
        add(salu("s_mul_i32", sT[1], sCB2, 72 * 4096), salu("s_add_u32", sT[1], sT[1], WT_OFF), salu("s_lshl_b32", sT[2], sT[2], 4),
            salu("s_add_u32", sT[3], sT[1], sT[2]), valu("v_lshl_add_u32", vW[0], vLane, 4, sT[3]),
            salu("s_sub_u32", sT[3], sT[1], sT[2]), valu("v_lshl_add_u32", vW[1], vLane, 4, sT[3]), valu("v_lshl_add_u32", vWB, vLane, 4, sWQ),
            salu("s_lshl_b32", sT[1], sCB2, 8), salu("s_add_u32", sT[1], sT[1], FLAGA_OFF + 96 * 128), salu("s_lshl_b32", sT[2], sGQ, 9), salu("s_add_u32", sT[2], sT[2], FLAGA_OFF + 64 * 128),
            salu("s_lshr_b32", sT[3], sCB2, 1), salu("s_xor_b32", sT[3], sT[3], self.cfg.tx), salu("s_lshl_b32", sT[3], sT[3], 9), salu("s_add_u32", sT[3], sT[3], FLAGA_OFF + 80 * 128),
            salu("s_cmp_eq_u32", None, sW, 0), salu("s_cselect_b32", sT[1], sT[1], OOB), salu("s_cselect_b32", sT[2], sT[2], OOB), salu("s_cselect_b32", sT[3], sT[3], OOB),
            salu("s_cselect_b32", sW0, 1, 0),
            valu("v_and_b32", t0, 24, vLane), valu("v_lshlrev_b32", t0, 2, t0), valu("v_and_or_b32", t0, vLane, 7, t0), valu("v_and_b32", t1, 63, t0),
            valu("v_lshl_add_u32", t1, t1, 2, sT[1]), valu("v_lshl_add_u32", vP2, t0, 2, sT[3]),
            valu("v_cmp_lt_u32", "vcc", 31, vLane), valu("v_cndmask_b32", vP2, vP2, t1, "vcc"))
        if not self.B: add(valu("v_lshl_add_u32", vP6, t0, 2, sT[2]))
        add(salu("s_xor_b32", sU[0], sTB2, sCB2), salu("s_and_b32", sU[0], sU[0], 3 if self.cfg.rot else 0), salu("s_lshl_b32", sU[0], sU[0], 11),
            [salu("s_xor_b32", sU[t], sU[0], t << 11) for t in (1, 2, 3)], [salu("s_and_b32", sUh[t], sU[t], 1 << 11) for t in (0, 1)])

    def chunk_of(self, n): return 0 if n < 8 else (1 if n < 12 else 2)
    def dma_setup(self, ch):
        t0, t1 = T[0], T[1]
        o = []
        B = self.B
        half = (not B) and ch == 1
        stride = 3072 if (B and ch < 2) else 3584
        if half:
            return [salu("s_lshl_b32", sT[1], sGQ, 1), salu("s_add_u32", sT[1], sT[1], sJ), salu("s_lshl_b32", sT[1], sT[1], 16), salu("s_add_u32", sT[1], sT[1], sWQ),
                    salu("s_add_u32", sT[1], sT[1], P6_OFF - 2 * 65536), valu("v_lshl_add_u32", vDMA1, vLane, 4, sT[1])]
        else:
            o += [valu("v_lshrrev_b32", t0, 2, vLane), valu("v_and_b32", t0, 4, t0), valu("v_and_b32", t1, 7, vLane), valu("v_xor_b32", t1, t0, t1),
                  valu("v_lshrrev_b32", t0, 3, vLane)]
        o += [valu("v_mul_u32_u24", t0, stride, t0), valu("v_lshl_add_u32", t0, t1, 4, t0)]
        a, b = sT[1], sT[2]
        if B and ch == 0:
            o += [salu("s_lshl_b32", a, sGQ, 1), salu("s_add_u32", a, a, sJ), salu("s_lshl_b32", a, a, 7), salu("s_lshr_b32", b, sW, 1),
                  salu("s_add_u32", b, b, 1), salu("s_lshl_b32", b, b, 10), salu("s_add_u32", a, a, b), salu("s_and_b32", b, sW, 1),
                  salu("s_mul_i32", b, b, 32 * stride), salu("s_add_u32", a, a, b)]
        elif B and ch == 1:
            o += [salu("s_lshl_b32", a, sGQ, 1), salu("s_add_u32", a, a, sJ), salu("s_lshl_b32", a, a, 7), salu("s_mul_i32", b, sW, 32 * stride),
                  salu("s_add_u32", a, a, b)]
        else:
            if half: o += [salu("s_lshl_b32", b, sJ, 6), salu("s_add_u32", b, b, 6 * 128 - 128)]
            else: o += [salu("s_lshl_b32", b, sJ, 7), salu("s_sub_u32" if ch == 0 else "s_add_u32", b, b, 256)]
            o += [salu("s_mul_i32", a, sGQ, 7 * 128), salu("s_add_u32", a, a, b), salu("s_and_b32", b, sW, 1),
                  salu("s_mul_i32", b, b, (64 if half else 32) * stride), salu("s_add_u32", a, a, b)]
        o += [valu("v_add_u32", (vDMA0, vDMA1, vDMA2)[ch], a, t0)]
        return o
    def dma_slab(self):
        n = self.nslab; self.nslab += 1
        ch = self.chunk_of(n)
        B = self.B
        vd = (vDMA0, vDMA1, vDMA2)[ch]
        srd = rQKV if (B and ch < 2) else rGU
        so = (sOA if ch < 2 else sOB) if B else (sOB if ch == 1 else sOA)
        stride = 3072 if (B and ch < 2) else 3584
        o = [set_m0(sWQ, slab_slot(n) * SLOT, f"w{n}")]
        if ch == 1 and not B:
            if n > 8: o += [valu("v_add_u32", vd, 16384, vd)]
            return o + [buf_dma(vd, rWS, 0, i * 1024, flags="sc1", tag=f"w{n}") for i in range(4)]
        if n not in (0, 8, 12) and not self.cfg.dbg & 16: o += [valu("v_add_u32", vd, (128 if ch == 1 else 64) * stride, vd)]
        o += [buf_dma(vd, srd, so[i], i * 1024, flags="sc1" if self.cfg.dbg & 16 else self.cfg.wflags, tag=f"w{n}") for i in range(4)]
        return o
    def frag_list(self):
        L = []
        for n in range(20):
            ch = self.chunk_of(n)
            base = slab_slot(n) * SLOT
            if ch != 1:
                n0 = 0 if ch == 0 else 12
                for jj in range(4):
                    for blk in range(4):
                        L.append((ACC1.sub(16 * blk, 16), 4 * (n - n0) + jj, n, base + (blk & 1) * 8192 + jj * 2048, blk >> 1, 512))
            else:
                for jj in range(8):
                    for blk in range(2):
                        if self.B: L.append((ACC2.sub(16 * blk, 16), 8 * (n - 8) + jj, n, base + jj * 2048, blk, 512))
                        else: L.append((ACC2.sub(16 * blk, 16), 8 * (n - 8) + jj, n, base + blk * 8192 + jj * 1024, 2, 256))
        k0 = 320 - 16 * self.cfg.nspl
        L[k0:] = [f for f in L[k0:] if f[4] == 0] + [f for f in L[k0:] if f[4] == 1]
        return L
    def window(self, wins, which, reg, off, span):
        o = []
        if not (wins[which] <= off and off + span <= wins[which] + 65536):
            w = off // SLOT * SLOT
            d = w - wins[which]
            o += [valu("v_add_u32" if d > 0 else "v_subrev_u32", reg, abs(d), reg)]
            wins[which] = w
        return o, off - wins[which]
    def frag_reads(self, k, f):
        acc, step, n, off, which, ustep = f
        b = (vTR0, vTR1, vVTR)[which]
        o, imm = self.window(self.win, which, b, off, 1024)
        dst = WF.sub(4 * (k % self.cfg.NB), 4)
        o += [ds_read("ds_read_b64_tr_b16", dst.sub(0, 2), b, imm, tag=f"f{k}"), ds_read("ds_read_b64_tr_b16", dst.sub(2, 2), b, imm + ustep, tag=f"f{k}")]
        return o
    def ffn_epi(self, G, U, ch, kst, tag, pk=False):
        o = []
        for b in range(4):
            t = [T[4 + i] for i in range(4)]
            g = [G[4 * b + i] for i in range(4)]; u = [U[4 * b + i] for i in range(4)]
            if pk:
                t2 = [T.sub(4, 2), T.sub(6, 2)]; g2 = [G.sub(4 * b, 2), G.sub(4 * b + 2, 2)]; u2 = [U.sub(4 * b, 2), U.sub(4 * b + 2, 2)]
                o += [valu("v_pk_mul_f32", t2[i], g2[i], T.sub(0, 2)) for i in range(2)]
                o += [valu("v_exp_f32", t[i], t[i]) for i in range(4)]
                o += [valu("v_pk_mul_f32", u2[i], g2[i], u2[i]) for i in range(2)]
                o += [valu("v_pk_add_f32", t2[i], t2[i], T.sub(2, 2)) for i in range(2)]
                o += [valu("v_rcp_f32", t[i], t[i]) for i in range(4)]
                o += [valu("v_pk_mul_f32", u2[i], u2[i], t2[i]) for i in range(2)]
            else:
                o += [valu("v_mul_f32", t[i], sNL if self.cfg.sconst else f32(-LOG2E), g[i]) for i in range(4)]
                for i in range(4): o += [valu("v_exp_f32", t[i], t[i]), valu("v_mul_f32", u[i], g[i], u[i])]
                o += [valu("v_add_f32", t[i], "1.0", t[i]) for i in range(4)]
                o += [valu("v_rcp_f32", t[i], t[i]) for i in range(4)]
                o += [valu("v_mul_f32", u[i], u[i], t[i]) for i in range(4)]
            o += [valu("v_cvt_pk_bf16_f32", G[2 * b + i], u[2 * i], u[2 * i + 1]) for i in range(2)]
            if b & 1: o += [buf_store("buffer_store_dwordx4", G.sub(2 * (b - 1), 4), vHST, rWS, sHu[ch], kst + (b >> 1) * 1024, flags=self.cfg.hflags, tag=tag)]
        return o
    def set_hu(self, ch):
        a = sT[1]
        if self.B and ch == 1:
            return [salu("s_lshl_b32", a, sGQ, 1), salu("s_add_u32", a, a, sJ), salu("s_lshl_b32", a, a, 12), salu("s_add_u32", sHu[ch], a, 112 * 1024)]
        o = [salu("s_mul_i32", sHu[ch], sGQ, 28 * 1024)]
        if ch == 1: o += [salu("s_lshl_b32", a, sJ, 11), salu("s_add_u32", a, a, 6 * 4096 - 4096)]
        else: o += [salu("s_lshl_b32", a, sJ, 12), salu("s_sub_u32" if ch == 0 else "s_add_u32", a, a, 8192)]
        return o + [salu("s_add_u32", sHu[ch], sHu[ch], a)]

    def phase1(self):
        c, add, B = self.cfg, self.add, self.B
        F = self.frag_list()
        NM = len(F)
        gaps = [[] for _ in range(NM)]
        tail = [[] for _ in range(NM)]
        load = [0] * NM
        def put(k, ins, last=False):
            (tail if last else gaps)[k] += ins
            load[k] += sum(cyc(i) for i in ins)
        def spread(ins, k0, k1):
            tot = sum(cyc(i) for i in ins)
            lo, hi = 0.0, 1000.0
            for _ in range(40):
                mid = (lo + hi) / 2
                if sum(max(0, mid - load[k]) for k in range(k0, k1)) >= tot: hi = mid
                else: lo = mid
            cap, acc = [], 0.0
            for k in range(k0, k1):
                acc += max(0, hi - load[k]); cap.append(acc)
            k, used = 0, 0.0
            for i in ins:
                while k < len(cap) - 1 and used + cyc(i) / 2 > cap[k] and i.kind != "branch": k += 1
                put(k0 + k, [i]); used += cyc(i)
        bar_gap = {n: 16 * n - c.LA - 1 for n in range(1, 20)}
        bar_gap[0], bar_gap[20] = -1, NM
        self.bar_extra = {n: [] for n in range(1, 21)}
        need = {n: max(f[2] for f in F[:min(NM, bar_gap[n + 1] + c.LA + 1)]) for n in range(20)}
        skip = lambda n: c.bar2 and c.bar2 <= n < 19 and (n - c.bar2) % 2 == 1
        for n in range(18, 0, -1):
            if skip(n + 1): need[n] = need[n + 1]
        for n in (c.pw_per, c.p6_per, c.f2_bar): assert not skip(n)
        lastx = lambda i: max(k for k, f in enumerate(F) if f[1] // 4 == i)
        plan = dict((int(p.split(":")[0]), p.split(":")[1].split(".")) for p in (c.planB if B else c.planC).split(",") if p)
        self.pool = list(ABUF) + VBUF[:5] + ([] if B else VBUF[5:7])
        put(bar_gap[c.pw_per] - 1 - c.pw_lead, self.poll_issue(vP2, rWS))
        put(bar_gap[c.pw_per] - 1, self.poll_check(vP2, rWS, sW0))
        if not B:
            assert bar_gap[c.p6_per] <= bar_gap[c.pw_per] - 1 - c.pw_lead
            put(bar_gap[c.p6_per] - 1 - c.pw_lead, self.poll_issue(vP6, rWS))
            put(bar_gap[c.p6_per] - 1, self.poll_check(vP6, rWS, sW0))
        put(bar_gap[c.f2_bar] + 1, [buf_store("buffer_store_dword", vFV, vF2, rWS, 0, 2048, flags="sc1")])
        for n in range(20):
            k = bar_gap[n]
            if n and not skip(n): load[k] += 14
            if n == 19 and B: self.pool += VBUF[5:]
            if n == 9 and not B: self.pool += VBUF[7:]
            ops = list(plan.get(n, []))
            ins = []
            while ops and ops[0] in ("r", "H"):
                ins += self.plan_op(ops.pop(0), n)
            w = []
            nw = 0
            while self.nslab < 20 and self.nslab <= n - (1 if skip(n) else 0) + c.NS - 2 and (B or self.nslab < 8 or n >= c.p6_per) and (self.nslab <= need[min(19, n + 2)] or nw + ops.count("w") < 1 or "w" in ops):
                if nw and "w" in ops: ops.remove("w")
                w += self.dma_slab(); nw += 1
            ops = [x for x in ops if x != "w"]
            assert self.nslab > need[min(19, n + 2)], n
            if n == max(c.ts_pos, 0): ins += self.ts
            while c.xfree and self.xf_n < 5 and lastx(self.xf_n) <= k: self.pool += [A(16 * self.xf_n, 16)]; self.xf_n += 1
            nxl = min(32 - self.nx, c.xr[n] if n < len(c.xr) else (c.xrate if n else max(1, c.xrate // 2)))
            for i in w:
                if i.kind == "dma" and nxl: ins += self.x_load(); nxl -= 1
                ins.append(i)
            for _ in range(nxl): ins += self.x_load()
            assert self.nx >= min(32, (bar_gap[n + 1] + 16) // 4 + 1), n
            if n == c.c_tile and not B: ins += self.tdma
            if n == (c.b_rest if B else c.c_rest): ins += self.rest
            for op in ops: ins += self.plan_op(op, n)
            if ins: spread(ins, k + 1, bar_gap[n + 1])
        if not B:
            ins = self.ffn_epi(ACC1.sub(0, 16), ACC1.sub(16, 16), 0, 0, "st1") + self.ffn_epi(ACC1.sub(32, 16), ACC1.sub(48, 16), 0, 2048, "st1")
            spread(ins, 129, 191)
            if not c.one_pa: put(c.g_f1c, self.flag(L_P1, "st1"))
            spread(self.ffn_epi(ACC2.sub(0, 16), ACC2.sub(16, 16), 1, 0, "st2"), 194, c.h2_end)
            put(c.g_f2c, self.flag(L_HALF, "st2"))
        else:
            self.attention(put, spread, bar_gap, load)
        if c.nspl:
            k0 = max(320 - 8 * c.nspl + 2, self.att_end + 7 if B else 0)
            spread(self.ffn_epi(ACC1.sub(0, 16), ACC1.sub(16, 16), 2, 0, "st3"), k0, c.e0_end)
        o = [valu("v_lshl_add_u32", vH[0], vLane, 4, sP2h), valu("v_lshl_add_u32", vH[1], vLane, 4, sHS),
             valu("v_and_b32", vPOLL, 7, vLane), valu("v_lshrrev_b32", vTHR, 2, vPOLL), valu("v_lshl_add_u32", vPOLL, vPOLL, 2, sP2f),
             valu("v_and_b32", vXO, 31, vLane), valu("v_lshlrev_b32", vXO, 11, vXO), valu("v_and_or_b32", vXO, vLane, 32, vXO), valu("v_add_u32", vXO, sP2x, vXO)]
        spread(o, *((176, 192) if B else (200, c.g_pa)))
        la = L_HALF if c.one_pa else L_P1
        put(c.g_pa, self.poll_issue(vPOLL, rWS, la))
        assert c.g_pa < bar_gap[c.pa_per] - 1
        put(bar_gap[c.pa_per] - 1, self.poll_check(vPOLL, rWS, vTHR, la))
        self.pa2 = (vPOLL, rWS, vTHR, L_HALF)
        if c.m_pb == -1:
            put(c.g_pa2 - 2, [valu("v_lshlrev_b32", vP2, 7, vTHR), valu("v_sub_u32", vP2, vPOLL, vP2)])
            self.pa2 = (vP2, rWS, 1, L_O)
        if not c.one_pa: put(c.g_pa2, self.poll_issue(self.pa2[0], rWS, self.pa2[3]))
        if c.pa2_epi < 0 and not c.one_pa: put(319, self.poll_check(*self.pa2))
        spread([valu("v_mov_b32", T[0], f32(-LOG2E)), valu("v_mov_b32", T[1], f32(-LOG2E)), valu("v_mov_b32", T[2], "1.0"), valu("v_mov_b32", T[3], "1.0")], 312, 320)
        inv_bar = {v: n for n, v in bar_gap.items() if 1 <= n <= 19}
        for k in range(NM):
            acc, step, n, off, which, us = F[k]
            if k % c.wstep == 0: add(wait(lg=[f"f{i}" for i in range(k, k + c.wstep)]))
            if c.m16 & 1:
                a0, a1 = acc.sub(8 * (step & 1), 4), acc.sub(8 * (step & 1) + 4, 4)
                fill = (self.frag_reads(k + c.LA, F[k + c.LA]) if k + c.LA < NM else []) + gaps[k]
                tot, u, n1 = sum(cyc(i) for i in fill), 0, 0
                while n1 < len(fill) and (u + cyc(fill[n1]) / 2 <= tot / 2 or fill[n1].kind == "branch"): u += cyc(fill[n1]); n1 += 1
                add(mfma(16, a0, WF.sub(4 * (k % c.NB), 4), X.sub(4 * (step & ~1), 4), 0 if step < 2 else a0), fill[:n1])
                add(mfma(16, a1, WF.sub(4 * (k % c.NB), 4), X.sub(4 * (step | 1), 4), 0 if step < 2 else a1), fill[n1:], tail[k])
            else:
                add(mfma(32, acc, WF.sub(4 * (k % c.NB), 4), X.sub(4 * step, 4), 0 if step == 0 else acc))
                if k == 0: add(self.stamp(67))
                if k + c.LA < NM: add(self.frag_reads(k + c.LA, F[k + c.LA]))
                add(gaps[k]); add(tail[k])
            if k in inv_bar:
                n = inv_bar[k]
                assert not (skip(n) and self.bar_extra[n])
                if n == 19 or need[n] > need[n - 1]: add(wait(vm=[f"w{need[n]}"] + (["ts"] if n == c.f2_bar else []), lg=self.bar_extra[n] or None), barrier())
            if k in (127, 191): add(self.stamp())
            if k in (31, 63): add(self.stamp(64))
            if k % 32 == 31 and 31 < k < 319: add(self.stamp(2))
            if k in c.sg: add(self.stamp(32))
        add(self.stamp(131))
        self.load = load
    def plan_op(self, op, n):
        if op == "l":
            assert n >= self.cfg.pw_per
            return self.w2_load()
        if op == "h":
            assert n >= self.cfg.pa_per and self.h_n < 4
            return self.h_load()
        if op == "P": return self.poll_issue(vPOLLH, rWS)
        if op == "H":
            self.halo_period = n
            i = salu("s_mov_b32", "m0", sHM0); i.tag = "halo"
            return self.poll_check(vPOLLH, rWS, sTHR) + [i] + [buf_dma((vHLD, vHLD2)[q], rWS, 0, 1024 * q, flags="sc1", tag="halo") for q in range(2)]
        slot = int(op[1:])
        if slot < self.cfg.NS: assert n >= 2 + max(x for x in range(20) if slab_slot(x) == slot)
        if self.B and slot >= 7: assert n >= 19
        assert n >= self.cfg.pw_per
        return self.w2_dma(slot)

    def att_setup(self):
        t0, t1 = T[0], T[1]
        o = [valu("v_and_b32", t0, 31, vLane), valu("v_mul_u32_u24", t0, RP, t0), valu("v_and_or_b32", t1, vLane, 32, 0), valu("v_add_u32", t0, t0, t1),
             salu("s_mul_i32", sT[0], sW, 32 * RP), salu("s_add_u32", sT[0], sT[0], SCR), valu("v_add_u32", vSCR, sT[0], t0),
             valu("v_and_b32", t0, 3, vLane), valu("v_bfe_u32", vVTR, vLane, 2, 2), valu("v_lshl_add_u32", t0, t0, 2, vVTR), valu("v_and_or_b32", t0, vLane, 16, t0),
             valu("v_mul_u32_u24", t0, RP, t0), valu("v_add3_u32", vVTR, sT[0], t0, t1),
             salu("s_mov_b32", sT[0], SCR + 128 * RP + 128), valu("v_lshl_add_u32", vHRB, vLane, 4, sT[0])]
        o += [salu("s_lshl_b32", sT[1], sRB, 3), salu("s_lshl_b32", sT[2], sGQ, 1), salu("s_add_u32", sT[1], sT[1], sT[2]), salu("s_add_u32", sT[1], sT[1], sJ),
              salu("s_lshl_b32", sC1, sT[1], 11), salu("s_add_u32", sC1, sC1, HALO_OFF),
              salu("s_cmp_eq_u32", None, sW, 3), salu("s_cselect_b32", sT[1], sC1, OOB), salu("s_cselect_b32", sH3, 0, OOB), valu("v_lshl_add_u32", vHALO, vLane, 4, sT[1]),
              salu("s_and_b32", sT[1], sRB, 7), salu("s_or_b32", sT[2], sT[1], sW), salu("s_cselect_b32", sM1[0], 0, "0xf"), salu("s_cselect_b32", sM2[0], 0, "0xff"),
              salu("s_mov_b32", sM1[1], sM1[0]), salu("s_mov_b32", sM2[1], sM2[0]), salu("s_mov_b32", sHM0, SPARE),
              salu("s_cmp_eq_u32", None, sW, 0), salu("s_cselect_b32", sHM0, SCR + 128, sHM0), salu("s_cselect_b32", sT[1], sT[1], 0),
              salu("s_cmp_lg_u32", None, sT[1], 0), salu("s_cselect_b32", sTHR, 1, 0),
              salu("s_sub_u32", sT[2], sC1, 8 * 2048), salu("s_cmp_lg_u32", None, sTHR, 0), salu("s_cselect_b32", sT[2], sT[2], OOB),
              valu("v_lshl_add_u32", vHLD, vLane, 4, sT[2]), valu("v_mov_b32", vHLD2, vHLD)]
        if self.cfg.kv_mode == 4:
            for q, dst in enumerate((vHLD, vHLD2)):
                o += [valu("v_add_u32", t0, 8 + 64 * q, vLane), valu("v_mul_u32_u24", t1, 241, t0), valu("v_lshrrev_b32", t1, 12, t1), valu("v_mul_u32_u24", dst, 17, t1),
                      valu("v_sub_u32", t0, t0, dst), valu("v_min_u32", t0, 15, t0), valu("v_lshlrev_b32", t1, 4, t1), valu("v_lshl_add_u32", t0, t0, 7, t1),
                      valu("v_add_u32", dst, sT[2], t0)]
                if q: o += [valu("v_subrev_u32", dst, 1024, dst)]
            o += [salu("s_sub_u32", sT[1], sC1, 24 * 16), salu("s_cmp_eq_u32", None, sW, 3), salu("s_cselect_b32", sT[1], sT[1], OOB),
                  valu("v_and_b32", t0, 31, vLane), valu("v_lshrrev_b32", t1, 5, vLane), valu("v_lshlrev_b32", t1, 8, t1), valu("v_lshl_add_u32", t1, t0, 4, t1),
                  valu("v_add_u32", t1, sT[1], t1), valu("v_cmp_lt_u32", "vcc", 23, t0), valu("v_mov_b32", t0, OOB), valu("v_cndmask_b32", vHALO, t0, t1, "vcc")]
        o += [
              salu("s_lshl_b32", sT[1], sRB, 3), salu("s_add_u32", sT[1], sT[1], sGQ), salu("s_lshl_b32", sT[1], sT[1], 10), salu("s_lshl_b32", sT[2], sJ, 3),
              salu("s_add_u32", sT[1], sT[1], sT[2]), salu("s_add_u32", sT[1], sT[1], FLAG_OFF - 4096 + 4), salu("s_cmp_lg_u32", None, sTHR, 0),
              salu("s_cselect_b32", sT[1], sT[1], OOB), valu("v_mov_b32", vPOLLH, sT[1]), salu("s_mov_b32", sCS, f32(0.25 * LOG2E))]
        o += [valu("v_and_b32", t0, 3, vLane), valu("v_mov_b32", t1, "0xffff"),
              valu("v_cmp_le_u32", sJ1, 1, t0), valu("v_cmp_le_u32", sJ2, 2, t0), valu("v_cmp_le_u32", sJ3, 3, t0),
              valu("v_cndmask_b32", vA01, t1, -1, sJ1), valu("v_cndmask_b32", vA23, 0, t1, sJ2), valu("v_cndmask_b32", vA23, vA23, -1, sJ3)]
        return o
    def attention(self, put, spread, bar_gap, load):
        c = self.cfg
        units = []
        if c.kv_mode == 4:
            PK = V(176, 32)
            o, wr = [], []
            for blk in range(4):
                a = ACC1.sub(16 * blk, 16)
                for dh in range(2):
                    d = PK.sub(8 * blk + 4 * dh, 4); pl = (blk & 1) * 8 + (blk >> 1) * 4 + dh
                    o += [valu("v_cvt_pk_bf16_f32", d[i], a[8 * dh + 2 * i], a[8 * dh + 2 * i + 1]) for i in range(4)]
                    o += [buf_store("buffer_store_dwordx4", d, vHALO, rWS, 0, pl * 128, flags="sc1", tag="st1")]
                    wr += [ds_write("ds_write_b128", vSCR, d, pl * 16 + 8 * RP, tag="kv")]
            spread(o, 129, c.kv_end)
            for n, x in enumerate(wr):
                k1 = c.kv_end + (c.kw_end - c.kv_end) * n // 8
                while load[k1] > 0: k1 += 1
                put(k1, [x], last=True)
            nb = min(n for n in range(1, 20) if bar_gap[n] > k1)
            assert bar_gap[nb] < c.g_halo
            self.bar_extra[nb] = ["kv"]
        for blk in range(4):
            a = ACC1.sub(16 * blk, 16)
            kv, cb = blk & 1, blk >> 1
            for dh in range(2):
                cv = [valu("v_cvt_pk_bf16_f32", a[4 * dh + i], a[8 * dh + 2 * i], a[8 * dh + 2 * i + 1]) for i in range(4)]
                off = (kv * 8 + cb * 4 + dh) * 16 + 8 * RP
                if c.kv_mode == 2:
                    for q in range(2): units.append((cv[2 * q:2 * q + 2], ds_write("ds_write_b64", vSCR, a.sub(4 * dh + 2 * q, 2), off + 8 * q, tag="kv")))
                else: units.append((cv, ds_write("ds_write_b128", vSCR, a.sub(4 * dh, 4), off, tag="kv")))
        hs = ACC1.sub(8, 8)
        rd = [ds_read("ds_read_b128", hs.sub(4 * i, 4), vHRB, 1024 * i) for i in range(2)]
        if c.kv_mode == 4: pass
        elif c.kv_mode == 0:
            spread([i for u in units for i in u[0] + [u[1]]] + rd, 129, c.kv_end)
        elif c.kv_mode == 3:
            spread([i for u in units for i in u[0]], 129, c.kv_end - 3)
            put(c.kv_end - 3, [u[1] for u in units]); put(c.kv_end - 1, rd)
        else:
            k0 = 129
            for n, (cv, wr) in enumerate(units):
                k1 = 129 + (c.kv_end - 2 - 129) * (n + 1) // len(units) - 1
                while load[k1] > 0 and k1 > k0 + 1: k1 -= 1
                spread(cv, k0, k1); put(k1, [wr], last=True); load[k1] += 100
                k0 = k1 + 1
            spread(rd, max(k0, c.kv_end - 2), c.kv_end)
        if c.kv_mode != 4:
            put(c.kv_end + 2, [buf_store("buffer_store_dwordx4", hs.sub(0, 4), vHALO, rWS, 0, 0, flags="sc1", tag="st1")])
            put(c.kv_end + 4, [buf_store("buffer_store_dwordx4", hs.sub(4, 4), vHALO, rWS, 0, 1024, flags="sc1", tag="st1")])
            self.bar_extra[12] = ["kv"]
        assert c.kv_end + 4 < min(176, c.g_flag1)
        fl = self.flag(L_HALO, "st1")
        if c.halo3: fl[-1] = buf_store("buffer_store_dword", vFV, vFH, rWS, 0, L_HALO, flags="sc1")
        put(c.g_flag1, fl)
        Q = ACC2.sub(0, 16); O = ACC2.sub(16, 16)
        Sg = [SG.sub(0, 4), SG.sub(4, 4), SG.sub(8, 4)]
        P = [T.sub(0, 2), T.sub(2, 2), T.sub(4, 2)]
        tm, tz, big = SG[12], SG[13], SG[14]
        spread([valu("v_cvt_pk_bf16_f32", Q[i], ACC2[2 * i], ACC2[2 * i + 1]) for i in range(16)] + [valu("v_mov_b32", big, f32(-1e30))], 195, 215)
        k = c.g_halo
        assert k > bar_gap[self.halo_period + 1]
        put(k, [wait(vm="halo")])
        cs = 0.25 * LOG2E
        for cb in range(2):
            spread([ds_read("ds_read_b128", KA.sub(8 * g + 4 * dh, 4), vSCR, (cb * 4 + dh) * 16 + (2 - g) * 4 * RP) for g in range(3) for dh in range(2)], k, k + 4)
            k += 5
            for dq in range(4):
                put(k + dq // 2, [mfma(4, Sg[g], KA.sub(8 * g + 2 * dq, 2), Q.sub(8 * cb + 2 * dq, 2), Sg[g] if dq else 0) for g in range(3)], last=True)
            k += 2
            vr = [ds_read("ds_read_b64_tr_b16", KA.sub(8 * g + 2 * m, 2), vVTR, (8 + cb * 4) * 16 + m * 8 + (2 - g) * 4 * RP, tag="vr") for g in range(3) for m in range(4)]
            s = [Sg[0][i] for i in range(4)] + [Sg[1][i] for i in range(4)]
            o = vr[:4]
            o += [valu("v_cndmask_b32", Sg[2][r], Sg[2][r], big, sM2) for r in (1, 2, 3)]
            o += [valu("v_cndmask_b32", Sg[1][r], Sg[1][r], big, sM1) for r in range(4)]
            o += [valu("v_cndmask_b32", Sg[0][r], Sg[2][r], Sg[0][r], (None, sJ1, sJ2, sJ3)[r]) for r in (1, 2, 3)]
            o += [valu("v_max3_f32", tm, s[0], s[1], s[2]), valu("v_max3_f32", tz, s[3], s[4], s[5]), valu("v_max3_f32", tm, tm, s[6], s[7]), valu("v_max_f32", tm, tm, tz),
                  valu("v_mul_f32", tm, f32(-cs), tm)]
            o += vr[4:8]
            o += [valu("v_fma_f32", s[i], s[i], sCS, tm) for i in range(8)]
            o += [valu("v_exp_f32", s[i], s[i]) for i in range(8)]
            u = [Sg[2][i] for i in range(4)]
            o += [valu("v_add_f32", u[i], s[2 * i], s[2 * i + 1]) for i in range(4)]
            o += [valu("v_add_f32", u[0], u[0], u[1]), valu("v_add_f32", u[2], u[2], u[3]), valu("v_add_f32", u[0], u[0], u[2]), valu("v_rcp_f32", tz, u[0])]
            o += vr[8:]
            o += [valu("v_mul_f32", s[i], s[i], tz) for i in range(8)]
            o += [valu("v_cvt_pk_bf16_f32", u[0], s[0], s[1]), valu("v_cvt_pk_bf16_f32", u[1], s[2], s[3]),
                  valu("v_cvt_pk_bf16_f32", P[1][0], s[4], s[5]), valu("v_cvt_pk_bf16_f32", P[1][1], s[6], s[7]),
                  valu("v_and_b32", P[0][0], u[0], vA01), valu("v_and_b32", P[0][1], u[1], vA23),
                  valu("v_bfi_b32", P[2][0], vA01, 0, u[0]), valu("v_bfi_b32", P[2][1], vA23, 0, u[1])]
            spread(o, k, k + c.att_w)
            k += c.att_w
            for g in range(3):
                put(k + g // 2, [mfma(4, O.sub(4 * m, 4), KA.sub(8 * g + 2 * m, 2), P[g], O.sub(4 * m, 4) if g else 0) for m in range(4)], last=True)
            k += 2
            o = []
            for dh in range(2):
                o += [valu("v_cvt_pk_bf16_f32", O[4 * dh + i], O[8 * dh + 2 * i], O[8 * dh + 2 * i + 1]) for i in range(4)]
                o += [buf_store("buffer_store_dwordx4", O.sub(4 * dh, 4), vHST, rWS, sHu[1], cb * 2048 + dh * 1024, flags=c.hflags, tag="st2")]
            spread(o, k + 1, k + 7)
        assert k <= bar_gap[19], k
        self.att_end = k
        if not c.splf and c.f2_epi < 0: put(min(k + c.f2_lag, 317), self.flag(L_O, "st2"))

    GORD = ([("d", 0, 1, t) for t in range(4)] + [("d", 12, 1, 4 + t) for t in range(2)] + [("o", 0, 1, t) for t in range(4)]
            + [("d", 4, 2, t) for t in range(4)] + [("d", 5, 2, t) for t in range(4)])
    def w2_setup(self):
        return [salu("s_mov_b32", sNL, f32(-LOG2E)), salu("s_mul_i32", sHd, sW, 28 * 1024), salu("s_lshl_b32", sHo, sW, 13), salu("s_add_u32", sHo, sHo, 112 * 1024),
                salu("s_lshl_b32", sWd, sHd, 1), salu("s_lshl_b32", sWo, sHo, 1)]
    def h_load(self):
        gi = self.h_n; self.h_n += 1
        kind, g0, st, t = self.GORD[gi]
        o = []
        base = sHd if kind == "d" else sHo
        d = ((g0 & ~1) - self.hpos[kind]) * 2048
        self.hpos[kind] = g0 & ~1
        if d: o += [salu("s_add_u32" if d > 0 else "s_sub_u32", base, base, abs(d))]
        o += [salu("s_add_u32" if st == 1 else "s_lshl1_add_u32", sT[0], (sU + sUh)[t], base)]
        dst = self.hreg[gi] = self.pool.pop(0)
        for s in range(2):
            for tb in range(2):
                o += [buf_load("buffer_load_dwordx4", dst.sub(8 * s + 4 * tb, 4), vW[0] if self.cfg.dbg & 2 else vH[tb], rWS, 0 if self.cfg.dbg & 2 else sT[0], s * 1024 + (g0 & 1) * 2048, flags="sc1", tag=f"h{gi}")]
        return o
    def w2_addr(self):
        gi = self.w2_nd; self.w2_nd += 1
        kind, g, st, t = self.GORD[gi]
        base = sWd if kind == "d" else sWo
        d = (g - self.w2pos[kind]) * 4096
        self.w2pos[kind] = g
        o = [salu("s_add_u32" if d > 0 else "s_sub_u32", base, base, abs(d))] if d else []
        return gi, o + [salu(f"s_lshl{st}_add_u32", sWS, (sU + sUh)[t], base)]
    def w2_load(self):
        gi, o = self.w2_addr()
        dst = self.wreg[gi] = self.pool.pop(0)
        return o + [buf_load("buffer_load_dwordx4", dst.sub(4 * i, 4), vW[i & 1], rWS, 0 if self.cfg.dbg & 4 else sWS, i * 1024, flags="sc1", tag=f"g{gi}") for i in range(4)]
    def w2_dma(self, slot):
        gi, o = self.w2_addr()
        assert slot not in self.w2slot.values()
        self.w2slot[gi] = slot
        return [set_m0(sWQ, slot * SLOT, f"g{gi}")] + o + [buf_dma(vW[i & 1], rWS, sWS, i * 1024, flags="sc1", tag=f"g{gi}") for i in range(4)]
    def w2_read(self):
        gi = min(self.w2slot)
        base = self.w2slot.pop(gi) * SLOT
        dst = self.wreg[gi] = self.pool.pop(0)
        o, imm = self.window(self.win2, 0, vWB, base, 4096)
        for i in o: i.tag = f"r{gi}"
        return [wait(vm=f"g{gi}")] + o + [ds_read("ds_read_b128", dst.sub(4 * i, 4), vWB, imm + i * 1024, tag=f"r{gi}") for i in range(4)]
    def phase2(self):
        c, add = self.cfg, self.add
        accF = [ACC2.sub(0, 16), A(80, 16), A(96, 16), A(112, 16)]
        accS = [ACC2.sub(16, 16)]
        PR = [None, ACC1.sub(0, 16), ACC1.sub(16, 16), ACC1.sub(32, 16)]
        xf = ACC1.sub(48, 16)
        red = [vSCR, vVTR, vTR0, vTR1, vDMA2, vHST]
        pool, hreg, wreg, h_load = self.pool, self.hreg, self.wreg, self.h_load
        pool += [A(128, 16), A(144, 16), A(160, 16)] + [A(16 * i, 16) for i in range(self.xf_n, 5)]
        light = []
        heavy = []
        pend = lambda q, tag: any(i.tag == tag for i in q)
        e = ([] if c.nspl else self.ffn_epi(ACC1.sub(0, 16), ACC1.sub(16, 16), 2, 0, "st3", pk=True)) + self.ffn_epi(ACC1.sub(32, 16), ACC1.sub(48, 16), 2, 2048, "st4", pk=True)
        assert 9 not in self.w2slot.values()
        assert all(x < min(18, 20 - c.nspl) for x in range(20) if 6 <= slab_slot(x) <= 8)
        seq = []
        for gi in range(18):
            bl = (1, 2, 3) if gi >= 18 - c.defer else (0, 1, 2, 3)
            if c.snake and gi < 17: bl = (1, 3, 2) if len(bl) == 3 else (0, 1, 3, 2)
            seq += [(gi, s, b) for b in bl for s in range(2)] if gi == 17 else [(gi, s, b) for s in range(2) for b in bl]
        seq += [(gi, s, 0) for gi in range(18 - c.defer, 18) for s in range(2)]
        last = {gi: max(m for m, x in enumerate(seq) if x[0] == gi) for gi in range(18)}
        first = {gi: min(m for m, x in enumerate(seq) if x[0] == gi) for gi in range(18)}
        lastb = {b: max(m for m, x in enumerate(seq) if x[2] == b) for b in range(4)}
        g6 = 10 if c.m_pb == -1 else 6
        st = {"q": [], "gate": g6 if c.pa2_epi < 0 else 4, "x": False, "m": -1, "sw": False}
        def refill():
            okw = self.w2_nd < 18 and len(pool) > (1 if self.w2_nd <= self.h_n else c.keep)
            okh = self.h_n < st["gate"] and len(pool) > 1
            if okh and not (okw and self.w2_nd <= self.h_n + c.wlead): st["q"] += h_load()
            elif okw: st["q"] += self.w2_load()
            elif not st["x"] and st["m"] >= 0 and not pend(light, "ra"):
                st["x"] = True
                st["q"] += [set_m0(sWQ, 9 * SLOT, "xs"), salu("s_mov_b32", sT[1], 16384 - 1024),
                            buf_dma(red[4], rX, 0, 0, tag="xs"), buf_dma(red[4], rX, sT[1], 1024, tag="xs")]
        def pump():
            if not st["q"]: refill()
            while st["q"]:
                x = st["q"].pop(0); add(x)
                if x.kind in ("dma", "vml"): return True
            return False
        step = max(1, len(e) * 3 // 4 // max(1, c.epi_mem))
        k = 0
        for n, i in enumerate(e):
            if self.B and not c.splf and n == c.f2_epi: add(self.flag(L_O, "st2"))
            if n == c.pa2_epi: add(self.poll_check(*self.pa2)); st["gate"] = g6
            if (c.splf or c.m_pe > 0) and c.m_f3 < 0 and n == c.f3_at: add(self.flag(L_L0, "st3"))
            if n % step == 0 and k < c.epi_mem: pump(); k += 1
            add(i)
        add(self.stamp(129))
        started = set()
        ra = [salu("s_add_u32", sT[2], sWQ, 6 * SLOT), valu("v_lshl_add_u32", red[0], vLane, 4, sT[2])] + [valu("v_xor_b32", red[b], b * 4096, red[0]) for b in (1, 2, 3)]
        ra += [salu("s_and_b32", sT[2], sP2x, 64), salu("s_mul_i32", sT[3], sT[2], 511), salu("s_add_u32", sT[3], sT[3], sP2x),
               valu("v_lshrrev_b32", red[4], 3, vLane), valu("v_and_b32", red[5], 7, vLane), valu("v_lshlrev_b32", red[5], 4, red[5]),
               valu("v_lshl_add_u32", red[4], red[4], 11, red[5]), valu("v_add_u32", red[4], sT[3], red[4]),
               salu("s_lshr_b32", sT[3], sW, 1), salu("s_lshl_b32", sT[3], sT[3], 13), salu("s_add_u32", sT[3], sT[3], sT[2]), salu("s_add_u32", sT[3], sT[3], 9 * SLOT),
               valu("v_and_b32", red[5], 16, vLane), valu("v_lshlrev_b32", red[5], 1, red[5]), valu("v_and_or_b32", red[5], vLane, 15, red[5]), valu("v_lshlrev_b32", red[5], 7, red[5]),
               valu("v_and_or_b32", red[5], vLane, 32, red[5]), valu("v_add_u32", red[5], sT[3], red[5])]
        for i in ra: i.tag = "ra"
        light += ra
        used = set()
        for m, (gi, s, b) in enumerate(seq):
            st["m"] = m
            kind = self.GORD[gi][0]
            if gi in self.w2slot or pend(light, f"r{gi}"):
                add(light); light.clear()
                while gi in self.w2slot: add(self.w2_read())
            while gi >= self.w2_nd or pend(st["q"], f"g{gi}"): assert pump(), (m, gi)
            while gi >= self.h_n or pend(st["q"], f"h{gi}"): assert pump(), (m, gi)
            a = (accF if kind == "d" else accS)[b]
            if c.gwait == 1: add(wait_regs(hreg[gi].sub(8 * s, 8), wreg[gi].sub(8 * s, 8)))
            if c.gwait == 2: add(wait_regs(hreg[gi], wreg[gi]))
            if c.m16 & 2:
                for q in range(2):
                    aq = a.sub(8 * s + 4 * q, 4)
                    add(mfma(16, aq, wreg[gi].sub(8 * q + 4 * (b & 1), 4), hreg[gi].sub(8 * s + 4 * (b >> 1), 4), aq if (kind, b, s) in started else 0))
                started.add((kind, b, s))
            else: add(mfma(32, a, wreg[gi].sub(8 * s + 4 * (b & 1), 4), hreg[gi].sub(8 * s + 4 * (b >> 1), 4), a if (kind, b) in started else 0))
            started.add((kind, b))
            if m == last[gi]:
                pool += [hreg[gi], wreg[gi]]
                if gi in (3, 4, 5): accS.append(pool.pop())
                if gi in c.sp: add(self.stamp(128))
            busy = False
            if m == c.m_f3: add(self.flag(L_L0, "st3")); busy = True
            if m == c.m_f4: add(self.flag(L_END, "st4"), self.stamp()); busy = True
            lb, lc = (L_L0 if c.splf else L_O), (L_L0 if c.m_pe > 0 else L_END)
            for mm, ln in ((c.m_pb, lb), (c.m_pc, lc), (c.m_pe, L_END)):
                if m == mm - c.m_pd: add(self.poll_issue(vPOLL, rWS, ln)); busy = True
            if m == c.m_pb - 1: add(valu("v_xor_b32", vTHR, 1, vTHR))
            if m == c.m_pe: add(self.poll_check(vPOLL, rWS, 1, L_END)); st["gate"] = 18
            if m == c.m_pb: add(self.poll_check(vPOLL, rWS, 1 if c.splf else vTHR, lb)); st["gate"] = 14 if c.splf else 10
            if m == c.m_pc: add(self.poll_check(vPOLL, rWS, 1, lc), self.stamp()); st["gate"] = 14 if c.m_pe > 0 else 18; self.pre += (self.w2_nd, self.h_n)
            used.add((gi, s, b >> 1))
            ahead = 4 * self.h_n - sum(1 for i in st["q"] if i.kind == "vml") - len(used)
            if ((m % c.vstep < c.vnum if m < c.m_v1 else m % 2 == 0) or ahead < c.ahead) and not busy: busy = pump()
            if not light and self.w2slot and pool and m >= first[min(self.w2slot)] - c.rlead: light += self.w2_read()
            if m == last[9] + 2:
                add(light); light.clear()
                while any(6 <= s_ <= 8 for s_ in self.w2slot.values()): add(self.w2_read())
                st["sw"] = True
                heavy += [wait(lg=[f"r{g}" for g in range(18)])]
                heavy += [ds_write("ds_write_b128", red[0], accS[b2].sub(4 * q, 4), (b2 - 1) * SLOT + q * 1024, tag="sw") for b2 in (1, 2, 3) for q in range(4)]
            if m == c.m_sb:
                while not st["x"] or pend(st["q"], "xs"):
                    g18, nd = st["gate"], self.w2_nd; st["gate"] = 0; self.w2_nd = 18; assert pump(); st["gate"], self.w2_nd = g18, nd
                add(heavy); heavy = []
                add(wait(vm="xs", lg="sw"), barrier()); busy = True
                light += [ds_read("ds_read_b128", xf.sub(8 * i + 4, 4), red[5], 16 * i) for i in range(2)]
                light += [ds_read("ds_read_b128", PR[b2].sub(4 * q, 4), red[b2], (b2 - 1) * SLOT + q * 1024) for b2 in (1, 2, 3) for q in range(4)]
                for b2 in range(4):
                    i = valu("v_subrev_u32", red[b2], 6 * SLOT, red[b2]); i.tag = "ra"; light.append(i)
                for h in range(2):
                    for i in range(4):
                        src = xf[8 * h + 4 + i]
                        pr = [valu("v_lshlrev_b32", xf[8 * h + 2 * i], 16, src), valu("v_and_b32", xf[8 * h + 2 * i + 1], "0xffff0000", src)]
                        light += pr
                light += [valu("v_add_f32", accS[0][i], accS[0][i], PR[1][i]) for i in range(16)] + [valu("v_add_f32", PR[2][i], PR[2][i], PR[3][i]) for i in range(16)]
                light += [valu("v_add_f32", accS[0][i], accS[0][i], PR[2][i]) for i in range(16)]
            for b2 in (1, 2, 3):
                if m == lastb[b2] + 2:
                    while pend(light, "ra"): add(light.pop(0))
                    heavy += [ds_write("ds_write_b128", red[0], accF[b2].sub(4 * q, 4), (b2 - 1) * SLOT + q * 1024) for q in range(4)]
            budget = 11 if busy else 24
            if heavy and not busy:
                while heavy:
                    x = heavy.pop(0); add(x)
                    if x.kind == "dsw": break
                budget = 0
            while light and cyc(light[0]) <= budget:
                budget -= cyc(light[0]); add(light.pop(0))
        assert self.h_n == 18 and self.w2_nd == 18 and not self.w2slot and not st["q"] and st["x"]
        add(self.stamp())
        add(heavy, light)
        add(wait(lg="all"), barrier())
        for q in range(4):
            for b in (1, 2, 3): add(ds_read("ds_read_b128", PR[b].sub(4 * q, 4), red[b], (b - 1) * SLOT + q * 1024))
        Fp, Sp, t = accF[0], accS[0], PR[1]
        for hq in range(2):
            r2 = range(8 * hq, 8 * hq + 8, 2); r1 = range(8 * hq, 8 * hq + 8)
            add([valu("v_pk_add_f32", Fp.sub(i, 2), Fp.sub(i, 2), PR[1].sub(i, 2)) for i in r2])
            add([valu("v_pk_add_f32", PR[2].sub(i, 2), PR[2].sub(i, 2), PR[3].sub(i, 2)) for i in r2])
            add([valu("v_pk_add_f32", Fp.sub(i, 2), Fp.sub(i, 2), PR[2].sub(i, 2)) for i in r2])
            add([valu("v_pk_mul_f32", t.sub(i, 2), Fp.sub(i, 2), T.sub(0, 2)) for i in r2])
            add([valu("v_exp_f32", t[i], t[i]) for i in r1])
            add([valu("v_pk_mul_f32", Sp.sub(i, 2), Sp.sub(i, 2), Fp.sub(i, 2)) for i in r2])
            add([valu("v_pk_add_f32", t.sub(i, 2), t.sub(i, 2), T.sub(2, 2)) for i in r2])
            add([valu("v_rcp_f32", t[i], t[i]) for i in r1])
            add([valu("v_pk_fma_f32", xf.sub(i, 2), Sp.sub(i, 2), t.sub(i, 2), xf.sub(i, 2)) for i in r2])
            add([valu("v_cvt_pk_bf16_f32", t[8 * hq + i], xf[8 * hq + 2 * i], xf[8 * hq + 2 * i + 1]) for i in range(4)])
            add(buf_store("buffer_store_dwordx4", t.sub(8 * hq, 4), vXO, rOUT, 0, 16 * hq, flags=c.outflags))

    def finish(self):
        add = self.add
        if self.cfg.stamps:
            add(raw(f"{self.cfg.clock} s[14:15]", "smem"))
            add(wait(vm="all"))
            add(raw(f"{self.cfg.clock} s[16:17]\n    s_waitcnt lgkmcnt(0)", "smem"))
            add(valu("v_mov_b32", V(96), 0))
            for i in range(self.nst): add(raw(f"v_writelane_b32 v96, s{STAMPS[i]}, {1+i}", "valu", wr=["v96"]))
            add(raw(f"v_writelane_b32 v96, s{ST0}, 0", "valu", wr=["v96"]), raw(f"v_writelane_b32 v96, s14, {1+self.nst}", "valu", wr=["v96"]),
                raw(f"v_writelane_b32 v96, s16, {2+self.nst}", "valu", wr=["v96"]))
            add(salu("s_lshl_b32", sT[1], sWG, 2), salu("s_add_u32", sT[1], sT[1], sW), salu("s_lshl_b32", sT[1], sT[1], 6), salu("s_add_u32", sT[1], sT[1], STAMP_OFF),
                valu("v_lshl_add_u32", V(97), vLane, 2, sT[1]), salu("s_mov_b64", "exec", "0xffff"), buf_store("buffer_store_dword", V(96), V(97), rWS))
        add(raw("s_endpgm", "end"))

    def program(self):
        NS[0] = self.cfg.NS
        assert self.cfg.NS <= (7 if self.B else 9)
        self.w2slot, self.slot_used, self.w2pos = {}, {}, {"d": 0, "o": 0}
        self.w2_nd = self.w2_nr = 0
        self.win2 = [0, 0]
        self.xf_n = 0
        self.h_n, self.hreg, self.wreg, self.hpos = 0, {}, {}, {"d": 0, "o": 0}
        self.ramp(); self.phase1()
        self.pre = (self.w2_nd, len(self.w2slot), self.h_n)
        if not self.cfg.p1only: self.phase2()
        self.finish()
        return self.e.text() + self.slow

HEAD = open("recurrent_scan__sliding_local_dilated__swiglu_ffn__prompt.s.ref").read().split("; Override launch")[0]

def build(cfg):
    s = HEAD + "; @launch grid=(256,1,1) block=(256,1,1) lds=163840\n"
    s += f'.amdgcn_target "amdgcn-amd-amdhsa--gfx950"\n.text\n.globl {KNAME}\n.p2align 8\n.type {KNAME},@function\n{KNAME}:\n'
    s += f"""    s_cmp_ge_u32 s2, 256
    s_cbranch_scc0 L_go
    s_endpgm
L_go:
"""
    if cfg.stamps: s += f"    {cfg.clock} s[{ST0}:{ST0+1}]\n"
    s += f"""    s_load_dwordx2 s[24:25], s[0:1], 0
    s_load_dwordx16 s[4:19], s[0:1], 0
    s_load_dwordx4 s[20:23], s[0:1], 64
    v_lshrrev_b32 v1, 6, v0
    s_getpc_b64 s[28:29]
    v_readfirstlane_b32 {sW}, v1
    s_bfe_u32 s26, s2, 0x30003
    s_lshl_b32 s26, s26, 13
    v_lshrrev_b32 v2, 2, v0
    v_lshl_add_u32 v2, v2, 7, s26
    v_min_u32 v2, L_end-L_go-256, v2
    global_load_dword v3, v2, s[28:29]
    v_and_b32 {vLane}, 63, v0
    v_lshrrev_b32 v96, 3, {vLane}
    v_and_b32 v97, 7, v0
    s_lshl_b32 {sWQ}, {sW}, 12
    s_cmp_ge_u32 s2, 128
    s_cbranch_scc1 L_typeC
"""
    info = {}
    for typ in ("B", "C"):
        g = Gen(typ, cfg)
        g.e.vm.append(("pf", {"v3"}))
        s += f"L_type{typ}:\n" + g.program()
        info[typ] = (g.e.slots, g.e.nops, dict(g.e.count), [sum(max(32, 20 + x) for x in g.load[i:i + 32]) for i in range(0, 320, 32)], g.pre, g.nst + 3)
    s += "L_end:\n"
    s += f""".section .rodata,"a"
.p2align 6
.amdhsa_kernel {KNAME}
  .amdhsa_next_free_vgpr 512
  .amdhsa_next_free_sgpr 102
  .amdhsa_accum_offset 256
  .amdhsa_group_segment_fixed_size 0
  .amdhsa_kernarg_size 80
  .amdhsa_user_sgpr_count 2
  .amdhsa_user_sgpr_kernarg_segment_ptr 1
  .amdhsa_system_sgpr_workgroup_id_x 1
.end_amdhsa_kernel
"""
    return s, info

if __name__ == "__main__":
    cfg = Cfg()
    out = sys.argv[1]
    for a in sys.argv[2:]:
        k, v = a.split("=")
        assert hasattr(cfg, k) or hasattr(cfg, k[:-2]), k
        if k in ("outflags", "hflags", "pflags", "wflags"): v = v.replace("_", " ")
        elif k in ("sg", "sp", "xr", "xr_B", "xr_C"): v = [int(x) for x in v.split(",")]
        elif k not in ("clock", "planB", "planC"): v = int(v)
        setattr(cfg, k, v)
    s, info = build(cfg)
    open(out, "w").write(s)
    for k, v in info.items(): print(k, v)
```

```python
import sys, struct
sys.path.insert(0, "tools")
from emit import *
from asmlib import KNAME

FLAG_OFF, XN_OFF, HALO_OFF, WS_USED = 0x910000, 0x938000, 0xB38000, 0xF00000
WT_OFF, P6_OFF = 0xC01000, 0xE50000
L_HALO, L_P1, L_HALF, L_O, L_L0, L_END = [128 * i for i in range(6)]
FLAGA_OFF = 0x930000
STAMP_OFF = 0xB80000
OOB = 0x40000000
SLOT = 16384
HSTR = 145 * 1024
RP = 272
SCR = 7 * SLOT
SPARE = SCR + 137 * RP
LOG2E = 1.4426950408889634
def f32(x): return "0x%08x" % struct.unpack("<I", struct.pack("<f", x))[0]

class Cfg:
    stamps = 0
    clock = "s_memrealtime"
    sg = ()
    sp = ()
    p1only = 0
    LA = 8
    NB = 10
    spin = 1000000
    cbx = 0
    rot = 0
    sleep = 0
    chain = 1
    dpos = 3
    w_c0 = 3
    p0 = 1
    rlate = 0
    m16 = 0
    wstep = 4
    sconst = 1
    gwait = 0
    halo3 = 1
    c_delay = 0
    b_lean = 0
    xr = ()
    splf = 0
    bar2 = 0
    map2 = 0
    one_pa = 0
    q_early = 1
    patom = 0
    f2_lag = 24
    rsel = 1
    tx = 1
    b_rest = None
    tlin = 0
    wo_late = -1
    sig_early = 0
    nodbg = 0
    f2_epi = -1
    pa2_epi = -1
    dbg = 0
    nspl = 0
    e0_end = 312
    f3_at = 30
    setup_early = 0
    w_0 = 0
    w_a = 1
    w_b = 2
    w_c = 4
    nx0 = 10
    xrate = 4
    planB = "4:w,5:w,6:l,7:l,8:l,9:l,10:l,11:P.l,12:l.H,13:l,14:l,15:l.l,16:l.d6,17:l.d0,18:h.h,19:h.h.l"
    planC = "6:l,7:l,8:l,9:l.w,10:l,11:l,12:l,13:l,14:l,15:l.l,16:l.l,17:l.d8,18:h.h,19:h.h.d7"
    ts_pos = -1
    f2_bar = 2
    pw_lead = 14
    pw_per = 6
    NS = 7
    xfree = 1
    kv_end = 143
    kv_mode = 3
    kw_end = 214
    p6_per = 4
    c_rest = 4
    c_tile = -1
    g_flag1 = 163
    g_halo = 212
    att_w = 24
    g_f1c = 210
    g_pa = 262
    h2_end = 240
    g_f2c = 264
    g_pa2 = 304
    epi_mem = 8
    m_f4 = 24
    m_pe = -99
    pa_per = 18
    m_f3 = -1
    m_pb = 24
    m_pc = 68
    m_pd = 12
    m_sb = 106
    defer = 4
    vstep = 1
    vnum = 1
    m_v1 = 0
    wlead = 1
    rlead = 12
    keep = 4
    ahead = 12
    outflags = ""
    hflags = "sc1"
    pflags = "sc1"
    wflags = ""
    snake = 0

sWG = S(2)
pX, pQKV, pWO, pG, pU, pD, pOUT, pDBG, pWS = S(4, 2), S(6, 2), S(8, 2), S(12, 2), S(14, 2), S(16, 2), S(18, 2), S(20, 2), S(22, 2)
rX, rQKV, rGU, rD, rWO, rOUT, rWS, rDBG = S(24, 4), S(28, 4), S(32, 4), S(36, 4), S(40, 4), S(44, 4), S(48, 4), S(52, 4)
sW, sRB, sGQ, sJ, sTB2, sCB2, sWQ = S(56), S(57), S(58), S(59), S(60), S(61), S(62)
sT = [S(3), S(63), S(64), S(65)]
sM1, sM2 = S(66, 2), S(68, 2)
sHM0, sXS = S(70), S(71)
sJ1, sJ2, sJ3 = S(72, 2), S(74, 2), S(76, 2)
sTHR, sCNT = S(78), S(79)
sU = [S(60), S(61), S(58), S(59)]
sUh = [S(0), S(1)]
sHu = [S(4), S(5), S(6)]
sCS, sC1, sHd, sHo = S(7), S(8), S(9), S(10)
sWd, sWo, sWS, sW0 = S(40), S(41), S(42), S(43)
sOA = [0, S(11), S(12), S(13)]
sOB = [0, S(14), S(15), S(16)]
sNL, sH3 = S(17), S(18)
sP2h, sP2f, sP2x, sHS = S(20), S(21), S(22), S(23)
STAMPS = list(range(82, 102, 2))
ST0 = 80

ACC1, ACC2 = V(0, 64), V(64, 32)
VBUF = [V(96 + 16 * i, 16) for i in range(8)]
KA, SG = V(176, 24), V(200, 16)
T = V(224, 8)
(vF2, vA23, vA01, vP2, vHRB, vWB, vDMA2, vDMA1, vW1, vFV, vPV, vW0, vPOLL, vHALO, vPOLLH, vHLD,
 vFLG, vVTR, vSCR, vHST, vDMA0, vTR1, vTR0, vLane) = [V(232 + i) for i in range(24)]
vW = [vW0, vW1]
vP6 = vA01
vHLD2, vFH = V(222), V(223)
vXN = V(216)
vTCH = [V(217), V(218), V(219), V(220), V(221)]
vH = [vHRB, vHALO]
vXO, vTHR = vDMA1, vDMA0
X = A(0, 128)
WF = A(128, 40)
aDUM = A(168)
ABUF = [A(176 + 16 * i, 16) for i in range(5)]
NS = [5]
def slab_slot(n): return n % NS[0]

def cyc(i):
    k = i.kind
    if k in ("wait", "waitr", "waitcnt", "mfma"): return 0
    if k == "trans": return 8
    if k in ("dma", "vml"): return 14
    if k == "vms": return 30 if i.op.endswith("x4") else 20
    if k == "dsw": return 26
    if k == "dsr": return 11 if i.op.endswith("b128") else 4
    if k == "bar": return 14
    if k == "branch": return 8
    return 4

class Gen:
    def __init__(self, typ, cfg):
        self.typ, self.cfg = typ, cfg
        self.B = typ == "B"
        import copy
        self.cfg = cfg = copy.copy(cfg)
        for k, v in list(vars(cfg).items()) + list(vars(Cfg).items()):
            if k.endswith('_' + typ): setattr(cfg, k[:-2], getattr(cfg, k))
        self.e = Emitter()
        self.nst = 0
        self.nlab = 0
        self.slow = ""
        self.mid = []
        self.TR = [vTR0, vTR1, T[6], T[7]] if self.B else [vTR0, vTR1, vA23, vPOLLH, vVTR, vHLD]
    def add(self, *ins):
        for i in ins: self.e.add(i)
    def stamp(self, mode=1):
        if not (self.cfg.stamps & mode): return []
        r = S(STAMPS[self.nst], 2); self.nst += 1
        return [raw(f"{self.cfg.clock} {r}", "smem")]
    def touch(self, va, srd, flags=""):
        i = buf_load("buffer_load_dword", aDUM, va, srd, flags=flags)
        i.wr = set()
        return [i]
    def poll_text(self, vaddr, srd, off):
        n = {str(vPOLL): (8, 1), str(vPOLLH): (1, 2), str(vP2): (48, 4), str(vP6): (32, 4), "v105": (2, 8), "v106": (8, 16)}[str(vaddr)]
        if not self.cfg.patom & n[1]: return None
        return (f"v_mov_b32 {vPV}, 15\n    s_bfm_b64 exec, {n[0]}, 0\n    v_mov_b32 {vPV}, 0\n"
                f"    buffer_atomic_add {vPV}, {vaddr}, {srd}, 0 offen offset:{off} sc0 sc1\n    s_mov_b64 exec, -1")
    def poll_issue(self, vaddr, srd, off=0):
        t = self.poll_text(vaddr, srd, off)
        if t:
            i = buf_load("buffer_load_dword", vPV, vaddr, srd, 0, off); i.text = t
            return [i]
        return [buf_load("buffer_load_dword", vPV, vaddr, srd, 0, off, flags=self.cfg.pflags)]
    def poll_check(self, vaddr, srd, thr, off=0):
        self.nlab += 1
        l = f"L_{self.typ}_p{self.nlab}"
        sl = f"    s_sleep {self.cfg.sleep}\n" if self.cfg.sleep else ""
        if self.cfg.stamps & 512:
            sl += f"    s_add_u32 s{STAMPS[self.nlab - 1]}, s{STAMPS[self.nlab - 1]}, 1\n"; self.nst = 8
        self.slow += (f"{l}_slow:\n    s_mov_b32 {sCNT}, 0\n{l}_spin:\n"
                f"{sl}    {self.poll_issue(vaddr, srd, off)[0].text}\n    s_add_u32 {sCNT}, {sCNT}, 1\n    s_waitcnt vmcnt(0)\n"
                f"    v_cmp_gt_u32 vcc, {thr}, {vPV}\n    s_cmp_ge_u32 {sCNT}, {self.cfg.spin}\n    s_cbranch_scc1 {l}_ok\n"
                f"    s_cbranch_vccnz {l}_spin\n    s_branch {l}_ok\n")
        return [valu("v_cmp_gt_u32", "vcc", thr, vPV), raw(f"s_cbranch_vccnz {l}_slow\n{l}_ok:", "branch")]
    def flag(self, stage, tag):
        return [wait(vm=tag), buf_store("buffer_store_dword", vFV, vFLG, rWS, 0, stage, flags="sc1")]

    def ramp(self):
        c, add, B = self.cfg, self.add, self.B
        t0, t1, t2, t3 = V(96), V(97), V(98), V(99)
        vXL, vXS, vRS, vST, vF0, vP0, vDB, vTLB, vSG, vXR, vTL, vTS = [V(100 + i) for i in range(12)]
        vR2, vTB0, vTB1, vPL, vPS = [V(162 + i) for i in range(5)]
        tl, p6 = V(168, 16), V(184, 4)
        xr, lo, z, part = V(112, 16), V(128, 16), V(144, 4), V(148, 8)
        sm, sq, one = V(156), V(157), V(158)
        rb = V(160, 2)
        srd = lambda r, p, n: [salu("s_mov_b32", r[0], p[0]), salu("s_mov_b32", r[1], p[1]), salu("s_mov_b32", r[2], n), salu("s_mov_b32", r[3], "0x20000")]
        gu = [salu("s_cmp_lt_u32", None, sW, 2), salu("s_cselect_b32", rGU[0], pG[0], pU[0]), salu("s_cselect_b32", rGU[1], pG[1], pU[1])]
        sizes = ((rX, pX, 2048 * 1024), (rWS, pWS, WS_USED), (rDBG, pDBG, 256), (rQKV, pQKV, 512 * 3072), (rOUT, pOUT, 2048 * 1024))
        XL = 8 * SLOT
        self.nslab = 0
        if c.stamps & 1024:
            add(raw(f"s_getreg_b32 s{STAMPS[0]}, hwreg(HW_REG_XCC_ID)\n    s_getreg_b32 s{STAMPS[1]}, hwreg(HW_REG_HW_ID)", "salu")); self.nst = 2
        if c.stamps & 512: add([salu("s_mov_b32", S(r), 0) for r in STAMPS])
        add(self.stamp(256))
        TL = (7 if B else 9) * SLOT
        roles = [salu("s_lshr_b32", sT[0], sWG, 3), salu("s_and_b32", sT[1], sWG, 7), salu("s_and_b32", sRB, sWG, 1), salu("s_lshl_b32", sRB, sRB, 3),
                 salu("s_and_b32", sT[2], sT[0], 7), salu("s_add_u32", sRB, sRB, sT[2]), salu("s_lshr_b32", sGQ, sT[1], 1), salu("s_lshr_b32", sJ, sT[0], 3),
                 salu("s_lshl_b32", sTB2, sT[1], 2), salu("s_and_b32", sT[2], sT[0], 3), salu("s_add_u32", sTB2, sTB2, sT[2]), salu("s_lshr_b32", sCB2, sT[0], 2)]
        if c.map2 == 1:
            roles = roles[:8] + [salu("s_and_b32", sT[2], sT[0], 7), salu("s_lshl3_add_u32", sTB2, sGQ, sT[2]), salu("s_and_b32", sT[2], sWG, 1), salu("s_lshl2_add_u32", sCB2, sT[2], sJ)]
        if c.map2 == 2:
            roles = roles[:8] + [salu("s_lshr_b32", sT[2], sT[0], 2), salu("s_lshl3_add_u32", sTB2, sGQ, sT[2]), salu("s_and_b32", sT[2], sWG, 1), salu("s_and_b32", sCB2, sT[0], 3),
                                 salu("s_lshl2_add_u32", sCB2, sT[2], sCB2)]
        if c.map2 == 3:
            roles = roles[:8] + [salu("s_lshl2_add_u32", sTB2, sT[1], sJ), salu("s_and_b32", sCB2, sT[0], 7)]
        if c.cbx: roles += [salu("s_xor_b32", sCB2, sCB2, c.cbx)]
        def tile_setup():
            if B:
                o = [salu("s_lshl2_add_u32", sT[1], sRB, sW), salu("s_lshl_b32", sT[2], sT[1], 13), salu("s_lshl1_add_u32", sT[3], sGQ, sJ)] + srd(rD, pWO, 512 * 1024)
            else:
                o = [salu("s_lshr_b32", sT[1], sW, 1), salu("s_lshl1_add_u32", sT[1], sT[0], sT[1]), salu("s_lshl_b32", sT[2], sT[1], 15),
                     salu("s_xor_b32", sCNT, sGQ, c.tx), salu("s_and_b32", sT[3], sW, 1), salu("s_lshl1_add_u32", sT[3], sCNT, sT[3])] + srd(rD, pD, 1792 * 1024)
            o += [salu("s_lshl_b32", sCNT, sT[3], 7), salu("s_add_u32", sT[2], sT[2], sCNT),
                  valu("v_lshrrev_b32", t2, 2, vLane), valu("v_and_b32", t2, 4, t2), valu("v_xor_b32", t2, t2, t1), valu("v_lshlrev_b32", t2, 4, t2),
                  valu("v_lshl_add_u32", t2, t0, 10, t2), valu("v_add_u32", vTL, sT[2], t2)]
            o += [salu("s_mul_i32", sT[2], sT[3], 72 * 4096), salu("s_lshl_b32", sT[1], sT[1], 10 if B else 12), salu("s_add_u32", sT[2], sT[2], sT[1]),
                  salu("s_add_u32", sT[2], sT[2], WT_OFF + (56 * 4096 if B else 0)),
                  ]
            if B: o += [salu("s_lshl4_add_u32", sT[1], sT[3], sRB)]
            else: o += [salu("s_lshl_b32", sT[1], sGQ, 5), salu("s_add_u32", sT[1], sT[1], sT[0])]
            o += [salu("s_and_b32", sT[3], sT[1], 7), salu("s_lshr_b32", sT[1], sT[1], 3), salu("s_lshl_b32", sT[1], sT[1], 7), salu("s_lshl2_add_u32", sT[1], sT[3], sT[1]),
                  salu("s_add_u32", sT[1], sT[1], FLAGA_OFF + (80 if B else 64) * 128)]
            if not B: o += [salu("s_cmp_lt_u32", None, sRB, 14), salu("s_cselect_b32", sT[2], sT[2], OOB)]
            o += [salu("s_cmp_eq_u32", None, sW, 0), salu("s_cselect_b32", sT[1], sT[1], OOB),
                  valu("v_lshl_add_u32", vTS, vLane, 4, sT[2]), valu("v_mov_b32", vF2, OOB), raw(f"v_writelane_b32 {vF2}, {sT[1]}, 0", "valu", rd=[vF2], wr=[vF2])]
            return o
        def tile_store():
            o = [valu("v_bfe_u32", t2, vLane, 2, 2), valu("v_lshrrev_b32", t3, 5, vLane), valu("v_lshl_add_u32", vTB0, t3, 4 if B else 2, t2), valu("v_lshlrev_b32", vTB0, 7, vTB0),
                 valu("v_lshrrev_b32", t2, 1, t2), valu("v_lshl_add_u32", vTB0, t2, 6, vTB0), valu("v_and_b32", t2, 1, vLane), valu("v_lshl_add_u32", vTB0, t2, 5, vTB0),
                 valu("v_and_or_b32", vTB0, vLane, 16, vTB0), valu("v_and_b32", t2, 2, vLane), valu("v_lshl_add_u32", vTB0, t2, 2, vTB0)]
            if B:
                o += [salu("s_and_b32", sT[1], sW, 1), salu("s_lshl_b32", sT[1], sT[1], 6), valu("v_xor_b32", vTB0, sT[1], vTB0),
                      salu("s_lshr_b32", sT[1], sW, 1), salu("s_lshl_b32", sT[1], sT[1], 10), salu("s_add_u32", sT[1], sT[1], TL), valu("v_add_u32", vTB0, sT[1], vTB0)]
                return o, [ds_read("ds_read_b64_tr_b16", tl.sub(2 * u, 2), vTB0, u * 512) for u in range(2)], [buf_store("buffer_store_dwordx4", tl.sub(0, 4), vTS, rWS, flags="sc1", tag="ts")]
            o += [salu("s_add_u32", sT[1], sWQ, TL), valu("v_add_u32", vTB0, sT[1], vTB0), valu("v_xor_b32", vTB1, 64, vTB0), wait(vm="tl")]
            for s_ in range(2):
                for cb in range(2):
                    for u in range(2): o += [ds_read("ds_read_b64_tr_b16", tl.sub(8 * s_ + 4 * cb + 2 * u, 2), (vTB0, vTB1)[cb], s_ * 2048 + u * 1024)]
            return o, [buf_store("buffer_store_dword", vFV, vF2, rWS, flags="sc1")], [buf_store("buffer_store_dwordx4", tl.sub(4 * i, 4), vTS, rWS, 0, 1024 * i, flags="sc1", tag="ts") for i in range(4)]
        if B:
            if c.p0 == 1:
                add(salu("s_and_b32", sT[2], sWG, 63), salu("s_lshl_b32", sT[2], sT[2], 15), salu("s_lshr_b32", sT[1], sWG, 6), salu("s_lshl2_add_u32", sT[1], sT[1], sW),
                    salu("s_lshl_b32", sT[1], sT[1], 8), salu("s_add_u32", sT[1], sT[1], sT[2]),
                    valu("v_xor_b32", t2, t0, t1), valu("v_lshlrev_b32", t2, 4, t2), valu("v_lshl_add_u32", vXL, t0, 11, t2),
                    salu("s_add_u32", sXS, sT[1], 16384 - 1024), srd(*sizes[0])[2:], set_m0(sWQ, XL, "x"))
                add(self.stamp(256), raw("s_waitcnt lgkmcnt(0)", "waitcnt"), self.stamp(256))
                add(buf_dma(vXL, rX, sT[1], 0, tag="x"), buf_dma(vXL, rX, sXS, 1024, tag="x"), set_m0(sWQ, XL + 2048 - 128, "x"), salu("s_mov_b32", rWS[0], pWS[0]),
                    buf_dma(vXL, rX, sT[1], 128, tag="x"), buf_dma(vXL, rX, sXS, 1024 + 128, tag="x"))
            else:
                add(salu("s_and_b32", sT[2], sWG, 63), salu("s_lshl2_add_u32", sT[2], sT[2], sW), salu("s_lshr_b32", sT[1], sWG, 6), salu("s_lshl3_add_u32", sT[1], sT[2], sT[1]),
                    salu("s_lshl_b32", sT[1], sT[1], 10), valu("v_lshl_add_u32", vXL, vLane, 4, sT[1]), salu("s_mul_i32", sCNT, sW, 4352),
                    salu("s_movk_i32", sT[1], 960), salu("s_movk_i32", sT[2], 1920), salu("s_movk_i32", sT[3], 2880), srd(*sizes[0])[2:], set_m0(sCNT, XL, "x"))
                add(self.stamp(256), raw("s_waitcnt lgkmcnt(0)", "waitcnt"), self.stamp(256))
                add([buf_dma(vXL, rX, sT[i] if i else 0, 1088 * i, tag="x") for i in range(4)], salu("s_mov_b32", rWS[0], pWS[0]))
                add(valu("v_and_b32", vST, 3, vLane), valu("v_mul_u32_u24", t2, 1088, vST), valu("v_lshrrev_b32", vXL, 2, vLane), valu("v_lshl_add_u32", t2, vXL, 4, t2),
                    salu("s_add_u32", sCNT, sCNT, XL), valu("v_add_u32", vXR, sCNT, t2))
            add(self.stamp(256))
            add(srd(*sizes[1])[1:])
            if c.rsel: add(salu("s_lshr_b32", sT[1], sWG, 3), salu("s_and_b32", sT[2], sWG, 1), salu("s_lshl1_add_u32", sT[1], sT[1], sT[2]), salu("s_and_b32", sT[3], sWG, "0xe6"))
            else: add(salu("s_mov_b32", sT[1], sWG), salu("s_lshr_b32", sT[3], sWG, 3))
            add(salu("s_lshl_b32", sT[2], sT[1], 11), salu("s_add_u32", sT[2], sT[2], FLAGA_OFF), salu("s_lshl_b32", sT[1], sT[1], 2),
                salu("s_or_b32", sT[3], sT[3], sW), salu("s_cselect_b32", sT[2], OOB, sT[2]), salu("s_cselect_b32", sT[1], OOB, sT[1]),
                salu("s_lshl_b32", sT[3], sWG, 10), salu("s_add_u32", sT[3], sT[3], FLAG_OFF), salu("s_cmp_eq_u32", None, sW, 1),
                [salu("s_cselect_b32", sT[3], sT[3], OOB), valu("v_lshl_add_u32", vR2, vLane, 4, sT[3]), salu("s_mov_b32", sT[3], 7)] if c.rlate else
                [salu("s_cselect_b32", sT[2], sT[3], sT[2]), salu("s_cselect_b32", sT[3], 6, 7)],
                valu("v_lshrrev_b32", t2, 2, vLane), valu("v_and_b32", t3, 3, vLane), valu("v_lshlrev_b32", t3, 4, t3), valu("v_lshl_add_u32", t2, t2, sT[3], t3),
                valu("v_add_u32", vRS, sT[2], t2), valu("v_mov_b32", vSG, sT[1]), [valu("v_mov_b32", z[i], 0) for i in range(4)])
            add(buf_store("buffer_store_dwordx4", z, vRS, rWS, flags="sc1", tag="reset"))
            add(roles)
            for q in sizes[2:]: add(srd(*q))
            add(gu, srd(rGU, pG, 512 * 3584)[2:], tile_setup())
            if c.wo_late == -1: add(salu("s_lshr_b32", sT[1], sWQ, 2), set_m0(sT[1], TL, "tl"), buf_dma(vTL, rD, tag="tl"))
        else:
            add(roles)
            add(salu("s_lshl_b32", sT[0], sRB, 1), salu("s_add_u32", sT[0], sT[0], sJ), salu("s_sub_u32", sT[0], sT[0], 2),
                salu("s_lshl2_add_u32", sT[1], sT[0], sW), salu("s_mul_i32", sT[1], sT[1], 4 * 3072), salu("s_lshl_b32", sT[2], sGQ, 8), salu("s_add_u32", sT[1], sT[1], sT[2]),
                valu("v_and_b32", t2, 3, t0), valu("v_mul_u32_u24", t2, 3072, t2), valu("v_and_b32", t3, 1, t1), valu("v_lshl_add_u32", t2, t3, 7, t2),
                valu("v_add_u32", vTCH[3], sT[1], t2), valu("v_bfe_u32", t2, t1, 1, 1), valu("v_add_u32", t2, 1, t2), valu("v_lshl_add_u32", vTCH[1], t2, 10, vTCH[3]),
                salu("s_and_b32", sT[2], sW, 1), salu("s_lshl1_add_u32", sT[1], sT[0], sT[2]), salu("s_mul_i32", sT[1], sT[1], 8 * 3584),
                salu("s_mul_i32", sT[2], sGQ, 7 * 128), salu("s_add_u32", sT[1], sT[1], sT[2]),
                valu("v_mul_u32_u24", t2, 3584, t0), valu("v_add_u32", t2, sT[1], t2), valu("v_lshl_add_u32", vTCH[0], t3, 7, t2))
            if c.tlin:
                add(salu("s_sub_u32", sT[2], sWG, 128), salu("s_lshl2_add_u32", sT[3], sT[2], sW), salu("s_mul_i32", sCNT, sT[3], 3072),
                    valu("v_min_u32", vTCH[1], 23, vLane), valu("v_lshl_add_u32", vTCH[1], vTCH[1], 7, sCNT),
                    salu("s_mul_i32", sCNT, sT[3], 3584), valu("v_min_u32", vTCH[4], 27, vLane), valu("v_lshl_add_u32", vTCH[4], vTCH[4], 7, sCNT),
                    salu("s_and_b32", sT[3], sW, 1), salu("s_lshl1_add_u32", sT[3], sT[2], sT[3]), salu("s_mul_i32", sT[3], sT[3], 7168),
                    valu("v_min_u32", vTCH[0], 55, vLane), valu("v_lshl_add_u32", vTCH[0], vTCH[0], 7, sT[3]))
            add(srd(*sizes[3])[2:], srd(rGU, pG, 512 * 3584)[2:])
            add(self.stamp(256), raw("s_waitcnt lgkmcnt(0)", "waitcnt"), self.stamp(256))
            if c.c_delay:
                add(salu("s_mov_b32", sT[3], sT[1]), [self.dma_setup(ch) for ch in range(3)], salu("s_mov_b32", sT[1], sT[3]))
            if c.tlin == 2: add(srd(rD, pD, 1792 * 1024), self.touch(vTCH[4], rD))
            add(srd(*sizes[3])[:2], self.touch(vTCH[1], rQKV), gu, self.touch(vTCH[0], rGU), self.stamp(256))
            add(valu("v_and_b32", t3, 3, t1), valu("v_add_u32", t3, 2, t3), valu("v_lshl_add_u32", vTCH[2], t3, 7, t2),
                valu("v_bfe_u32", t2, vLane, 2, 3), valu("v_mul_u32_u24", t2, 3584, t2), valu("v_bfe_u32", t3, vLane, 4, 1), valu("v_xor_b32", t3, t3, vLane), valu("v_and_b32", t3, 3, t3),
                valu("v_lshl_add_u32", t2, t3, 4, t2),
                valu("v_lshrrev_b32", t3, 5, vLane), valu("v_lshl_add_u32", t2, t3, 6, t2), salu("s_add_u32", sT[1], sT[1], 768), valu("v_add_u32", vPL, sT[1], t2),
                buf_load("buffer_load_dwordx4", p6, vPL, rGU),
                salu("s_lshr_b32", sT[1], sT[0], 3), salu("s_lshl_b32", sT[1], sT[1], 14), salu("s_and_b32", sT[2], sT[0], 7), salu("s_lshl_b32", sT[2], sT[2], 10),
                salu("s_add_u32", sT[1], sT[1], sT[2]), salu("s_and_b32", sT[2], sW, 1), salu("s_lshl_b32", sT[2], sT[2], 9), salu("s_add_u32", sT[1], sT[1], sT[2]),
                salu("s_lshr_b32", sT[2], sW, 1), salu("s_lshl_b32", sT[2], sT[2], 13), salu("s_add_u32", sT[1], sT[1], sT[2]),
                salu("s_lshl_b32", sT[2], sGQ, 17), salu("s_add_u32", sT[1], sT[1], sT[2]), salu("s_add_u32", sT[1], sT[1], P6_OFF),
                valu("v_and_b32", t2, 31, vLane), valu("v_lshlrev_b32", t2, 4, t2), valu("v_lshl_add_u32", t2, t3, 16, t2), valu("v_add_u32", vPS, sT[1], t2),
                )
            add(tile_setup())
            tdma = [set_m0(sWQ, TL, "tl"), salu("s_mov_b32", sTHR, 7168)]
            for i in range(4):
                tdma += [buf_dma(vTL, rD, sTHR if i else 0, 1024 * i, tag="tl")]
                if 0 < i < 3: tdma += [salu("s_add_u32", sTHR, sTHR, 7168)]
            self.rest = [] if (c.tlin or c.b_rest is not None) else self.touch(vTCH[3], rQKV) + self.touch(vTCH[2], rGU)
            self.tdma = tdma
            if c.c_tile == -1: add(tdma)
            if c.q_early and self.rest: add(self.rest.pop(0))
            if c.c_rest == -1: add(self.rest)
            add(srd(*sizes[0])[2:])
            for q in sizes[1:3] + sizes[4:]: add(srd(*q))
        add(valu("v_mov_b32", vFV, 1))
        sa, sb = (8 * 3072, 8 * 3584) if B else (8 * 3584, 16 * 3584)
        for i in (1, 2, 3):
            add(salu("s_mov_b32", sOA[i], i * (sa - 1024)), salu("s_mov_b32", sOB[i], i * (sb - 1024)))
        if B or not c.c_delay: add(self.dma_setup(0))
        if B:
            for _ in range(c.w_0): add(self.dma_slab())
            add(salu("s_lshr_b32", sT[0], sWG, 1), salu("s_and_b32", sT[3], sWG, 1),
                salu("s_lshl_b32", sT[1], sT[0], 15), salu("s_lshl_b32", sT[2], sW, 13), salu("s_add_u32", sT[1], sT[1], sT[2]), salu("s_lshl_b32", sT[2], sT[3], 10),
                salu("s_add_u32", sT[1], sT[1], sT[2]), salu("s_add_u32", sT[1], sT[1], XN_OFF))
            if c.p0 == 1:
                add(valu("v_lshrrev_b32", t2, 4, vLane), valu("v_and_b32", t3, 2, t2), valu("v_xor_b32", t3, t3, t1), valu("v_lshlrev_b32", t3, 4, t3), valu("v_and_b32", vST, 15, vLane),
                    valu("v_lshl_add_u32", t3, vST, 7, t3), valu("v_and_b32", t2, 1, t2), valu("v_lshl_add_u32", t3, t2, 3, t3),
                    salu("s_add_u32", sT[2], sWQ, XL), valu("v_add_u32", vXR, sT[2], t3), valu("v_xor_b32", vXL, 64, vXR), valu("v_xor_b32", vPL, 16, vXR), valu("v_xor_b32", vPS, 16, vXL),
                    valu("v_lshl_add_u32", vXS, vLane, 4, sT[1]),
                    valu("v_lshlrev_b32", vST, 5, vST), valu("v_add_u32", vST, SPARE, vST),
                    salu("s_lshl_b32", sT[2], sW, 2), valu("v_lshrrev_b32", t3, 5, vLane), valu("v_lshl_add_u32", t3, t3, 4, sT[2]), valu("v_add_u32", vRS, t3, vST))
            else:
                add(valu("v_lshlrev_b32", t3, 4, vST), valu("v_lshl_add_u32", t3, vXL, 9, t3), valu("v_add_u32", vXS, sT[1], t3))
            add(
                salu("s_lshl_b32", sT[1], sT[0], 7), salu("s_lshl_b32", sT[2], sT[3], 2), salu("s_add_u32", sT[1], sT[1], sT[2]), salu("s_add_u32", sT[1], sT[1], FLAGA_OFF),
                salu("s_cmp_eq_u32", None, sW, 0), salu("s_cselect_b32", sT[1], sT[1], OOB),
                valu("v_mov_b32", t2, OOB), valu("v_mov_b32", t3, sT[1]), valu("v_cmp_eq_u32", "vcc", 0, vLane), valu("v_cndmask_b32", vF0, t2, t3, "vcc"),
                valu("v_mov_b32", one, "0x3f803f80"), valu("v_mov_b32", sm, 0), valu("v_mov_b32", sq, 0), salu("s_mov_b32", sXS, 4096))
        add(salu("s_lshl_b32", sT[1], sRB, 2), salu("s_add_u32", sT[1], sT[1], sW), salu("s_lshl_b32", sT[2], sT[1], 7), salu("s_add_u32", sT[2], sT[2], FLAGA_OFF),
            valu("v_and_b32", vPOLL, 1, vLane), valu("v_lshlrev_b32", vPOLL, 2, vPOLL), valu("v_add_u32", vP0, sT[2], vPOLL),
            salu("s_lshl_b32", sT[1], sT[1], 15), salu("s_add_u32", sT[1], sT[1], XN_OFF), valu("v_lshl_add_u32", vXN, vLane, 4, sT[1]),
            salu("s_cmp_eq_u32", None, sW, 0), salu("s_cselect_b32", sT[1], 0, OOB), salu("s_cselect_b32", sT[3], 0 if c.nodbg else 1, 0),
            valu("v_lshl_add_u32", vDB, t1, 2, sT[1]), valu("v_mov_b32", vTLB, sT[3]))
        if not B and not c.c_delay: add(self.dma_setup(1), self.dma_setup(2))
        if B and not c.b_lean: add(self.dma_setup(1), self.dma_setup(2))
        add(self.w2_setup())
        if c.setup_early or not B: self.misc_setup()
        add(self.stamp(65 + 256))
        if B:
            add(wait(vm="x"))
            if c.p0 == 1: add([ds_read("ds_read_b64", xr.sub(4 * i + 2 * u, 2), ((vXR, vPL), (vXL, vPS))[i & 1][u], 2048 * (i >> 1)) for i in range(4) for u in range(2)])
            else: add([ds_read("ds_read_b128", xr.sub(4 * i, 4), vXR, 256 * i) for i in range(4)])
            if c.sig_early: add(wait(vm="reset"), buf_store("buffer_store_dword", vFV, vSG, rDBG, flags="sc1"))
            add(self.stamp(64 + 256))
            for r in range(16): add(valu("v_dot2c_f32_bf16", sm, xr[r], one, rmw=True), valu("v_dot2c_f32_bf16", sq, xr[r], xr[r], rmw=True))
            add([valu("v_lshlrev_b32", lo[i], 16, xr[i]) for i in range(3)])
            add(valu("v_permlane32_swap_b32", sm, sq, rmw=True, wr2=sq), valu("v_add_f32", sm, sm, sq), valu("v_mov_b32", sq, sm))
            add([valu("v_lshlrev_b32", lo[i], 16, xr[i]) for i in (3, 4)])
            add(valu("v_permlane16_swap_b32", sm, sq, rmw=True, wr2=sq), valu("v_add_f32", sm, sm, sq))
            sig = [] if c.sig_early else [wait(vm="reset"), buf_store("buffer_store_dword", vFV, vSG, rDBG, flags="sc1")]
            shl = lambda a, b: [valu("v_lshlrev_b32", lo[i], 16, xr[i]) for i in range(a, b)]
            if c.p0 == 1:
                add(ds_write("ds_write_b32", vRS, sm, tag="st"), sig, shl(5, 16))
                add(wait(lg="st"), self.stamp(256), barrier(), self.stamp(256))
                add([ds_read("ds_read_b128", part.sub(4 * i, 4), vST, 16 * i) for i in range(2)])
                add([valu("v_and_b32", xr[i], "0xffff0000", xr[i]) for i in range(16)])
                add(valu("v_pk_add_f32", part.sub(0, 2), part.sub(0, 2), part.sub(2, 2)), valu("v_pk_add_f32", part.sub(4, 2), part.sub(4, 2), part.sub(6, 2)),
                    valu("v_add_f32", sm, part[0], part[1]), valu("v_add_f32", sq, part[4], part[5]))
            else:
                add(shl(5, 7), valu("v_add_f32_dpp", sm, sm, sm, extra="row_ror:8 row_mask:0xf bank_mask:0xf"),
                    shl(7, 9), valu("v_add_f32_dpp", sm, sm, sm, extra="row_ror:4 row_mask:0xf bank_mask:0xf"), valu("v_mov_b32", sq, sm),
                    shl(9, 11), valu("v_permlane32_swap_b32", sm, sq, rmw=True, wr2=sq), sig, shl(11, 16), self.stamp(256), self.stamp(256))
                add([valu("v_and_b32", xr[i], "0xffff0000", xr[i]) for i in range(16)])
            add(
                valu("v_mul_f32", sm, f32(1 / 512), sm), valu("v_mul_f32", sq, f32(1 / 512), sq),
                valu("v_fma_f32", sq, f"-{sm}", sm, sq), valu("v_max_f32", sq, 0, sq),
                valu("v_cvt_pk_bf16_f32", sq, sq, sm),
                valu("v_and_b32", sm, "0xffff0000", sq), valu("v_lshlrev_b32", sq, 16, sq),
                valu("v_add_f32", sq, f32(1e-5), sq), valu("v_cvt_pk_bf16_f32", sq, sq, sq), valu("v_lshlrev_b32", sq, 16, sq),
                valu("v_sqrt_f32", sq, sq), valu("v_cvt_pk_bf16_f32", sq, sq, sq), valu("v_lshlrev_b32", sq, 16, sq),
                valu("v_rcp_f32", rb[1], sq), valu("v_mul_f32", rb[0], f"-{sm}", rb[1]))
            for h in range(4):
                for r in (lo, xr):
                    add([valu("v_pk_fma_f32", r.sub(i, 2), r.sub(i, 2), rb, rb, extra="op_sel:[0,1,0] op_sel_hi:[1,1,0]") for i in (4 * h, 4 * h + 2)])
                add([valu("v_cvt_pk_bf16_f32", xr[i], lo[i], xr[i]) for i in range(4 * h, 4 * h + 4)])
                if c.p0 == 1: add(buf_store("buffer_store_dwordx4", xr.sub(4 * h, 4), vXS, rWS, sXS if h >> 1 else 0, 2048 * (h & 1), flags="sc1"))
                else: add(salu("s_movk_i32", sXS, 8192 * h), buf_store("buffer_store_dwordx4", xr.sub(4 * h, 4), vXS, rWS, sXS, flags="sc1"))
            if c.rlate: add(buf_store("buffer_store_dwordx4", z, vR2, rWS, flags="sc1"))
            if c.dpos == 0: add(self.poll_issue(vDB, rDBG))
            add(self.stamp(64))
            if c.dpos != 2:
                for _ in range(c.w_a): add(self.dma_slab())
            if c.b_rest is not None:
                add(salu("s_lshl1_add_u32", sT[0], sRB, sJ), salu("s_lshl2_add_u32", sT[1], sT[0], sW), salu("s_mul_i32", sT[1], sT[1], 4 * 3072), salu("s_lshl_b32", sT[2], sGQ, 8),
                    salu("s_add_u32", sT[1], sT[1], sT[2]), valu("v_and_b32", t2, 3, t0), valu("v_mul_u32_u24", t2, 3072, t2), valu("v_and_b32", t3, 1, t1),
                    valu("v_lshl_add_u32", t2, t3, 7, t2), valu("v_add_u32", vTCH[3], sT[1], t2),
                    salu("s_and_b32", sT[2], sW, 1), salu("s_lshl1_add_u32", sT[1], sT[0], sT[2]), salu("s_mul_i32", sT[1], sT[1], 8 * 3584),
                    salu("s_mul_i32", sT[2], sGQ, 7 * 128), salu("s_add_u32", sT[1], sT[1], sT[2]), salu("s_add_u32", sT[1], sT[1], 256),
                    valu("v_mul_u32_u24", t2, 3584, t0), valu("v_add_u32", t2, sT[1], t2), valu("v_and_b32", t3, 3, t1), valu("v_lshl_add_u32", vTCH[2], t3, 7, t2))
                self.rest = self.touch(vTCH[3], rQKV) + self.touch(vTCH[2], rGU)
            if c.b_lean: add(self.dma_setup(1), self.dma_setup(2))
            self.mid = self.poll_issue(vDB, rDBG) if c.dpos == 3 else []
            if not c.setup_early: self.misc_setup()
            if c.dpos in (1, 2): add(self.poll_issue(vDB, rDBG))
            if c.dpos == 2:
                for _ in range(c.w_a): add(self.dma_slab())
            pre, rd, self.ts = tile_store()
            add(pre)
            add(self.poll_check(vDB, rDBG, vTLB))
            add(self.stamp(64))
            add(barrier(), self.stamp(64), buf_store("buffer_store_dword", vFV, vF0, rWS, flags="sc1"))
            wo = [salu("s_lshr_b32", sT[1], sWQ, 2), set_m0(sT[1], TL, "tl"), buf_dma(vTL, rD, tag="tl")]
            if c.wo_late == 0: add(wo)
            for _ in range(c.w_b): add(self.dma_slab())
        else:
            pre, rd, self.ts = tile_store()
            for _ in range(c.w_c0): add(self.dma_slab())
            if c.c_tile == -1: add(pre)
            else:
                assert c.ts_pos > c.c_tile and c.ts_pos >= 0
                add(pre[:14]); self.ts = pre[14:] + self.ts
            if c.w_c0: add(self.stamp(64 + 256), self.stamp(256), self.stamp(64 + 256))
            else: add(self.stamp(64 + 256), self.dma_slab(), self.stamp(256), wait(vm="w0"), self.stamp(64 + 256))
            add(buf_store("buffer_store_dwordx4", p6, vPS, rWS, flags="sc1"))
            if c.ts_pos < 0: add(self.ts); self.ts = []
            add(self.poll_issue(vDB, rDBG))
            while self.nslab < c.w_c: add(self.dma_slab())
            if c.c_tile == -2: add(tdma)
            if c.c_rest == -2: add(self.rest)
            add(self.poll_check(vDB, rDBG, vTLB), self.stamp(64), barrier(), self.stamp(64))
        add(self.poll_issue(vP0, rWS), wait_regs(vPV), self.stamp(64), self.poll_check(vP0, rWS, 1))
        add(self.stamp(65 + 256))
        self.nx = 0
        for _ in range(c.nx0 // 2): add(self.x_load())
        add(wait(vm=["w0", "tl"] if B else "w0"), barrier(), rd)
        F = self.frag_list()
        for k in range(c.LA):
            add(self.frag_reads(k, F[k]))
            if k % 2 and self.nx < c.nx0: add(self.x_load())
        while self.nx < c.nx0: add(self.x_load())
    def x_load(self):
        j = self.nx; self.nx += 1
        o = []
        if j % 4 == 0: o += [salu("s_mov_b32", sXS, j * 1024)]
        return o + [buf_load("buffer_load_dwordx4", X.sub(4 * j, 4), vXN, rWS, 0 if self.cfg.dbg & 8 else sXS, (j % 4) * 1024, flags="sc1")]

    def misc_setup(self):
        add = self.add
        t0, t1, t2, t3 = T[0], T[1], T[2], T[3]
        TR = self.TR
        add(valu("v_bfe_u32", t0, vLane, 2, 3), valu("v_and_b32", t1, 32, vLane), valu("v_lshrrev_b32", t1, 1, t1), valu("v_add_u32", t1, t1, t0),
            valu("v_and_b32", t2, 1, vLane), valu("v_lshlrev_b32", t2, 3, t2), valu("v_and_b32", t3, 2, vLane),
            valu("v_lshl_add_u32", TR[0], t1, 7, t2), valu("v_lshl_add_u32", TR[0], t3, 5, TR[0]), valu("v_lshrrev_b32", t0, 1, t0), valu("v_lshl_add_u32", TR[0], t0, 4, TR[0]),
            [valu("v_xor_b32", TR[i], 16 * i, TR[0]) for i in (1, 2, 3)])
        if not self.B:
            add(valu("v_lshl_add_u32", TR[4], t1, 6, t2), valu("v_lshl_add_u32", TR[4], t3, 4, TR[4]), valu("v_and_or_b32", TR[4], vLane, 16, TR[4]), valu("v_xor_b32", TR[5], 16, TR[4]))
        self.win = [0] * 6
        for ch in range(3):
            if not (self.B and ch == 0): add(self.set_hu(ch))
        if self.B: add(self.att_setup())
        add(self.mid)
        add(salu("s_lshl_b32", sT[1], sRB, 2), salu("s_add_u32", sT[1], sT[1], sW), salu("s_mul_i32", sT[2], sT[1], HSTR),
            valu("v_and_b32", t0, 16, vLane), valu("v_lshlrev_b32", t0, 1, t0), valu("v_and_or_b32", t0, vLane, 15, t0), valu("v_lshl_add_u32", t0, t0, 4, sT[2]),
            valu("v_and_b32", t1, 32, vLane), valu("v_lshl_add_u32", vHST, t1, 6, t0))
        if not self.B: add(valu("v_lshl_add_u32", vSCR, t1, 5, t0))
        if self.cfg.dbg & 1: add(valu("v_mov_b32", vHST, OOB))
        add(salu("s_lshr_b32", sT[1], sT[1], 1), salu("s_lshl_b32", sT[1], sT[1], 2), salu("s_add_u32", sT[1], sT[1], sGQ), salu("s_lshl_b32", sT[1], sT[1], 10),
            salu("s_and_b32", sT[2], sW, 1), salu("s_lshl_b32", sT[3], sJ, 1), salu("s_add_u32", sT[2], sT[2], sT[3]), salu("s_lshl_b32", sT[2], sT[2], 2),
            salu("s_add_u32", sT[1], sT[1], sT[2]), salu("s_add_u32", sT[1], sT[1], FLAG_OFF),
            valu("v_mov_b32", t0, OOB), valu("v_mov_b32", t1, sT[1]), valu("v_cmp_eq_u32", "vcc", 0, vLane), valu("v_cndmask_b32", vFLG, t0, t1, "vcc"))
        if self.B: add(valu("v_add_u32", vFH, sH3, vFLG))
        add(salu("s_lshl_b32", sT[1], sTB2, 1), salu("s_lshr_b32", sT[2], sW, 1), salu("s_add_u32", sT[1], sT[1], sT[2]), salu("s_mul_i32", sP2h, sT[1], HSTR),
            salu("s_xor_b32", sT[2], sT[1], 1), salu("s_mul_i32", sHS, sT[2], HSTR),
            salu("s_lshl_b32", sT[1], sT[1], 5),
            salu("s_and_b32", sT[2], sT[1], 1023), salu("s_lshl_b32", sT[2], sT[2], 11), salu("s_lshr_b32", sT[1], sT[1], 10), salu("s_lshl_b32", sT[1], sT[1], 10),
            salu("s_add_u32", sT[1], sT[1], sT[2]), salu("s_lshl_b32", sT[2], sCB2, 7), salu("s_add_u32", sT[1], sT[1], sT[2]),
            salu("s_and_b32", sT[2], sW, 1), salu("s_lshl_b32", sT[2], sT[2], 6), salu("s_add_u32", sP2x, sT[1], sT[2]),
            salu("s_lshl_b32", sT[1], sTB2, 2), salu("s_add_u32", sT[1], sT[1], sW), salu("s_lshl_b32", sT[1], sT[1], 10), salu("s_add_u32", sP2f, sT[1], FLAG_OFF))
        add(salu("s_mul_i32", sT[1], sCB2, 72 * 4096), salu("s_add_u32", sT[1], sT[1], WT_OFF), salu("s_lshl_b32", sT[2], sT[2], 4),
            salu("s_add_u32", sT[3], sT[1], sT[2]), valu("v_lshl_add_u32", vW[0], vLane, 4, sT[3]),
            salu("s_sub_u32", sT[3], sT[1], sT[2]), valu("v_lshl_add_u32", vW[1], vLane, 4, sT[3]), valu("v_lshl_add_u32", vWB, vLane, 4, sWQ),
            salu("s_lshl_b32", sT[1], sCB2, 8), salu("s_add_u32", sT[1], sT[1], FLAGA_OFF + 96 * 128), salu("s_lshl_b32", sT[2], sGQ, 9), salu("s_add_u32", sT[2], sT[2], FLAGA_OFF + 64 * 128),
            salu("s_lshr_b32", sT[3], sCB2, 1), salu("s_xor_b32", sT[3], sT[3], self.cfg.tx), salu("s_lshl_b32", sT[3], sT[3], 9), salu("s_add_u32", sT[3], sT[3], FLAGA_OFF + 80 * 128),
            salu("s_cmp_eq_u32", None, sW, 0), salu("s_cselect_b32", sT[1], sT[1], OOB), salu("s_cselect_b32", sT[2], sT[2], OOB), salu("s_cselect_b32", sT[3], sT[3], OOB),
            salu("s_cselect_b32", sW0, 1, 0),
            valu("v_and_b32", t0, 24, vLane), valu("v_lshlrev_b32", t0, 2, t0), valu("v_and_or_b32", t0, vLane, 7, t0), valu("v_and_b32", t1, 63, t0),
            valu("v_lshl_add_u32", t1, t1, 2, sT[1]), valu("v_lshl_add_u32", vP2, t0, 2, sT[3]),
            valu("v_cmp_lt_u32", "vcc", 31, vLane), valu("v_cndmask_b32", vP2, vP2, t1, "vcc"))
        if not self.B: add(valu("v_lshl_add_u32", vP6, t0, 2, sT[2]))
        add(salu("s_xor_b32", sU[0], sTB2, sCB2), salu("s_and_b32", sU[0], sU[0], 3 if self.cfg.rot else 0), salu("s_lshl_b32", sU[0], sU[0], 11),
            [salu("s_xor_b32", sU[t], sU[0], t << 11) for t in (1, 2, 3)], [salu("s_and_b32", sUh[t], sU[t], 1 << 11) for t in (0, 1)])

    def chunk_of(self, n): return 0 if n < 8 else (1 if n < 12 else 2)
    def dma_setup(self, ch):
        t0, t1 = T[0], T[1]
        o = []
        B = self.B
        half = (not B) and ch == 1
        stride = 3072 if (B and ch < 2) else 3584
        if half:
            return [salu("s_lshl_b32", sT[1], sGQ, 1), salu("s_add_u32", sT[1], sT[1], sJ), salu("s_lshl_b32", sT[1], sT[1], 16), salu("s_add_u32", sT[1], sT[1], sWQ),
                    salu("s_add_u32", sT[1], sT[1], P6_OFF - 2 * 65536), valu("v_lshl_add_u32", vDMA1, vLane, 4, sT[1])]
        else:
            o += [valu("v_lshrrev_b32", t0, 4, vLane), valu("v_and_b32", t1, 7, vLane), valu("v_xor_b32", t1, t0, t1), valu("v_lshrrev_b32", t0, 3, vLane)]
        o += [valu("v_mul_u32_u24", t0, stride, t0), valu("v_lshl_add_u32", t0, t1, 4, t0)]
        a, b = sT[1], sT[2]
        if B and ch == 0:
            o += [salu("s_lshl_b32", a, sGQ, 1), salu("s_add_u32", a, a, sJ), salu("s_lshl_b32", a, a, 7), salu("s_lshr_b32", b, sW, 1),
                  salu("s_add_u32", b, b, 1), salu("s_lshl_b32", b, b, 10), salu("s_add_u32", a, a, b), salu("s_and_b32", b, sW, 1),
                  salu("s_mul_i32", b, b, 32 * stride), salu("s_add_u32", a, a, b)]
        elif B and ch == 1:
            o += [salu("s_lshl_b32", a, sGQ, 1), salu("s_add_u32", a, a, sJ), salu("s_lshl_b32", a, a, 7), salu("s_mul_i32", b, sW, 32 * stride),
                  salu("s_add_u32", a, a, b)]
        else:
            if half: o += [salu("s_lshl_b32", b, sJ, 6), salu("s_add_u32", b, b, 6 * 128 - 128)]
            else: o += [salu("s_lshl_b32", b, sJ, 7), salu("s_sub_u32" if ch == 0 else "s_add_u32", b, b, 256)]
            o += [salu("s_mul_i32", a, sGQ, 7 * 128), salu("s_add_u32", a, a, b), salu("s_and_b32", b, sW, 1),
                  salu("s_mul_i32", b, b, (64 if half else 32) * stride), salu("s_add_u32", a, a, b)]
        o += [valu("v_add_u32", (vDMA0, vDMA1, vDMA2)[ch], a, t0)]
        return o
    def dma_slab(self):
        n = self.nslab; self.nslab += 1
        ch = self.chunk_of(n)
        B = self.B
        vd = (vDMA0, vDMA1, vDMA2)[ch]
        srd = rQKV if (B and ch < 2) else rGU
        so = (sOA if ch < 2 else sOB) if B else (sOB if ch == 1 else sOA)
        stride = 3072 if (B and ch < 2) else 3584
        o = [set_m0(sWQ, slab_slot(n) * SLOT, f"w{n}")]
        if ch == 1 and not B:
            if n > 8: o += [valu("v_add_u32", vd, 16384, vd)]
            return o + [buf_dma(vd, rWS, 0, i * 1024, flags="sc1", tag=f"w{n}") for i in range(4)]
        if n not in (0, 8, 12) and not self.cfg.dbg & 16: o += [valu("v_add_u32", vd, (128 if ch == 1 else 64) * stride, vd)]
        o += [buf_dma(vd, srd, so[i], i * 1024, flags="sc1" if self.cfg.dbg & 16 else self.cfg.wflags, tag=f"w{n}") for i in range(4)]
        return o
    def frag_list(self):
        L = []
        for n in range(20):
            ch = self.chunk_of(n)
            base = slab_slot(n) * SLOT
            if ch != 1:
                n0 = 0 if ch == 0 else 12
                for jj in range(2):
                    for cc in range(4):
                        for im in range(2):
                            L.append(([ACC1.sub(16 * im + 32 * th + 4 * cc, 4) for th in range(2)], 4 * (n - n0) + 2 * jj, n, base + im * 8192 + jj * 4096, cc, 1024))
            else:
                for jj in range(4):
                    for cc in range(4):
                        if self.B: L.append(([ACC2.sub(16 * th + 4 * cc, 4) for th in range(2)], 8 * (n - 8) + 2 * jj, n, base + jj * 4096, cc, 1024))
                        else: L.append(([ACC2.sub(16 * (cc & 1) + 8 * th + 4 * (cc >> 1), 4) for th in range(2)], 8 * (n - 8) + 2 * jj, n, base + (cc & 1) * 8192 + jj * 2048, 4 + (cc >> 1), 512))
        assert not self.cfg.nspl
        if self.cfg.chain:
            M = []
            for n in range(20):
                f = L[16 * n:16 * n + 16]
                h = 4 if self.chunk_of(n) == 1 else 8
                for a in range(0, 16, 2 * h):
                    for i in range(h): M += [f[a + i], f[a + h + i]]
            L = M
        return L
    def window(self, wins, which, reg, off, span):
        o = []
        if not (wins[which] <= off and off + span <= wins[which] + 65536):
            w = off // SLOT * SLOT
            d = w - wins[which]
            o += [valu("v_add_u32" if d > 0 else "v_subrev_u32", reg, abs(d), reg)]
            wins[which] = w
        return o, off - wins[which]
    def frag_reads(self, k, f):
        acc, step, n, off, which, ustep = f
        b = self.TR[which]
        o, imm = self.window(self.win, which, b, off, 2048)
        dst = WF.sub(4 * (k % self.cfg.NB), 4)
        o += [ds_read("ds_read_b64_tr_b16", dst.sub(0, 2), b, imm, tag=f"f{k}"), ds_read("ds_read_b64_tr_b16", dst.sub(2, 2), b, imm + ustep, tag=f"f{k}")]
        return o
    def ffn_epi(self, G, U, ch, kst, tag, pk=False):
        o = []
        for b in range(4):
            t = [T[4 + i] for i in range(4)]
            g = [G[4 * b + i] for i in range(4)]; u = [U[4 * b + i] for i in range(4)]
            if pk:
                t2 = [T.sub(4, 2), T.sub(6, 2)]; g2 = [G.sub(4 * b, 2), G.sub(4 * b + 2, 2)]; u2 = [U.sub(4 * b, 2), U.sub(4 * b + 2, 2)]
                o += [valu("v_pk_mul_f32", t2[i], g2[i], T.sub(0, 2)) for i in range(2)]
                o += [valu("v_exp_f32", t[i], t[i]) for i in range(4)]
                o += [valu("v_pk_mul_f32", u2[i], g2[i], u2[i]) for i in range(2)]
                o += [valu("v_pk_add_f32", t2[i], t2[i], T.sub(2, 2)) for i in range(2)]
                o += [valu("v_rcp_f32", t[i], t[i]) for i in range(4)]
                o += [valu("v_pk_mul_f32", u2[i], u2[i], t2[i]) for i in range(2)]
            else:
                o += [valu("v_mul_f32", t[i], sNL if self.cfg.sconst else f32(-LOG2E), g[i]) for i in range(4)]
                for i in range(4): o += [valu("v_exp_f32", t[i], t[i]), valu("v_mul_f32", u[i], g[i], u[i])]
                o += [valu("v_add_f32", t[i], "1.0", t[i]) for i in range(4)]
                o += [valu("v_rcp_f32", t[i], t[i]) for i in range(4)]
                o += [valu("v_mul_f32", u[i], u[i], t[i]) for i in range(4)]
            o += [valu("v_cvt_pk_bf16_f32", G[2 * b + i], u[2 * i], u[2 * i + 1]) for i in range(2)]
            if b & 1: o += [buf_store("buffer_store_dwordx4", G.sub(2 * (b - 1), 4), vSCR if ch == 1 else vHST, rWS, sHu[ch], kst + (b >> 1) * (256 if ch == 1 else 1024), flags=self.cfg.hflags, tag=tag)]
        return o
    def set_hu(self, ch):
        a = sT[1]
        if self.B and ch == 1:
            return [salu("s_lshl_b32", a, sGQ, 1), salu("s_add_u32", a, a, sJ), salu("s_lshl_b32", a, a, 12), salu("s_add_u32", sHu[ch], a, 112 * 1024)]
        o = [salu("s_mul_i32", sHu[ch], sGQ, 28 * 1024)]
        if ch == 1: o += [salu("s_lshl_b32", a, sJ, 11), salu("s_add_u32", a, a, 6 * 4096 - 4096)]
        else: o += [salu("s_lshl_b32", a, sJ, 12), salu("s_sub_u32" if ch == 0 else "s_add_u32", a, a, 8192)]
        return o + [salu("s_add_u32", sHu[ch], sHu[ch], a)]

    def phase1(self):
        c, add, B = self.cfg, self.add, self.B
        F = self.frag_list()
        NM = len(F)
        assert not c.chain or (c.wstep % 2 == 0 and c.NB >= c.LA + 2)
        gaps = [[] for _ in range(NM)]
        tail = [[] for _ in range(NM)]
        load = [0] * NM
        def put(k, ins, last=False):
            (tail if last else gaps)[k] += ins
            load[k] += sum(cyc(i) for i in ins)
        def spread(ins, k0, k1):
            tot = sum(cyc(i) for i in ins)
            lo, hi = 0.0, 1000.0
            for _ in range(40):
                mid = (lo + hi) / 2
                if sum(max(0, mid - load[k]) for k in range(k0, k1)) >= tot: hi = mid
                else: lo = mid
            cap, acc = [], 0.0
            for k in range(k0, k1):
                acc += max(0, hi - load[k]); cap.append(acc)
            k, used = 0, 0.0
            for i in ins:
                while k < len(cap) - 1 and used + cyc(i) / 2 > cap[k] and i.kind != "branch": k += 1
                put(k0 + k, [i]); used += cyc(i)
        bar_gap = {n: 16 * n - c.LA - 1 for n in range(1, 20)}
        bar_gap[0], bar_gap[20] = -1, NM
        self.bar_extra = {n: [] for n in range(1, 21)}
        need = {n: max(f[2] for f in F[:min(NM, bar_gap[n + 1] + c.LA + 1)]) for n in range(20)}
        skip = lambda n: c.bar2 and c.bar2 <= n < 19 and (n - c.bar2) % 2 == 1
        for n in range(18, 0, -1):
            if skip(n + 1): need[n] = need[n + 1]
        for n in (c.pw_per, c.p6_per, c.f2_bar): assert not skip(n)
        lastx = lambda i: max(k for k, f in enumerate(F) if f[1] // 4 == i)
        plan = dict((int(p.split(":")[0]), p.split(":")[1].split(".")) for p in (c.planB if B else c.planC).split(",") if p)
        self.pool = list(ABUF) + VBUF[:5] + ([] if B else VBUF[5:7])
        put(bar_gap[c.pw_per] - 1 - c.pw_lead, self.poll_issue(vP2, rWS))
        put(bar_gap[c.pw_per] - 1, self.poll_check(vP2, rWS, sW0))
        if not B:
            assert bar_gap[c.p6_per] <= bar_gap[c.pw_per] - 1 - c.pw_lead
            put(bar_gap[c.p6_per] - 1 - c.pw_lead, self.poll_issue(vP6, rWS))
            put(bar_gap[c.p6_per] - 1, self.poll_check(vP6, rWS, sW0))
        put(bar_gap[c.f2_bar] + 1, [buf_store("buffer_store_dword", vFV, vF2, rWS, 0, 2048, flags="sc1")])
        for n in range(20):
            k = bar_gap[n]
            if n and not skip(n): load[k] += 14
            if n == 19 and B: self.pool += VBUF[5:]
            if n == 9 and not B: self.pool += VBUF[7:]
            ops = list(plan.get(n, []))
            ins = []
            while ops and ops[0] in ("r", "H"):
                ins += self.plan_op(ops.pop(0), n)
            w = []
            nw = 0
            while self.nslab < 20 and self.nslab <= n - (1 if skip(n) else 0) + c.NS - 2 and (B or self.nslab < 8 or n >= c.p6_per) and (self.nslab <= need[min(19, n + 2)] or nw + ops.count("w") < 1 or "w" in ops):
                if nw and "w" in ops: ops.remove("w")
                w += self.dma_slab(); nw += 1
            ops = [x for x in ops if x != "w"]
            assert self.nslab > need[min(19, n + 2)], n
            if n == max(c.ts_pos, 0): ins += self.ts
            while c.xfree and self.xf_n < 5 and lastx(self.xf_n) <= k: self.pool += [A(16 * self.xf_n, 16)]; self.xf_n += 1
            nxl = min(32 - self.nx, c.xr[n] if n < len(c.xr) else (c.xrate if n else max(1, c.xrate // 2)))
            for i in w:
                if i.kind == "dma" and nxl: ins += self.x_load(); nxl -= 1
                ins.append(i)
            for _ in range(nxl): ins += self.x_load()
            assert self.nx >= min(32, (bar_gap[n + 1] + 16) // 4 + (3 if c.chain else 1)), n
            if n == c.c_tile and not B: ins += self.tdma
            if n == (c.b_rest if B else c.c_rest): ins += self.rest
            for op in ops: ins += self.plan_op(op, n)
            if ins: spread(ins, k + 1, bar_gap[n + 1])
        if not B:
            ins = self.ffn_epi(ACC1.sub(0, 16), ACC1.sub(16, 16), 0, 0, "st1") + self.ffn_epi(ACC1.sub(32, 16), ACC1.sub(48, 16), 0, 256, "st1")
            spread(ins, 129, 191)
            if not c.one_pa: put(c.g_f1c, self.flag(L_P1, "st1"))
            spread(self.ffn_epi(ACC2.sub(0, 16), ACC2.sub(16, 16), 1, 0, "st2"), 194, c.h2_end)
            put(c.g_f2c, self.flag(L_HALF, "st2"))
        else:
            self.attention(put, spread, bar_gap, load)
        if c.nspl:
            k0 = max(320 - 8 * c.nspl + 2, self.att_end + 7 if B else 0)
            spread(self.ffn_epi(ACC1.sub(0, 16), ACC1.sub(16, 16), 2, 0, "st3"), k0, c.e0_end)
        o = [valu("v_lshl_add_u32", vH[0], vLane, 4, sP2h), valu("v_lshl_add_u32", vH[1], vLane, 4, sHS),
             valu("v_and_b32", vPOLL, 7, vLane), valu("v_lshrrev_b32", vTHR, 2, vPOLL), valu("v_lshl_add_u32", vPOLL, vPOLL, 2, sP2f),
             valu("v_and_b32", vXO, 31, vLane), valu("v_lshlrev_b32", vXO, 11, vXO), valu("v_and_or_b32", vXO, vLane, 32, vXO), valu("v_add_u32", vXO, sP2x, vXO)]
        spread(o, *((176, 192) if B else (200, c.g_pa)))
        la = L_HALF if c.one_pa else L_P1
        put(c.g_pa, self.poll_issue(vPOLL, rWS, la))
        assert c.g_pa < bar_gap[c.pa_per] - 1
        put(bar_gap[c.pa_per] - 1, self.poll_check(vPOLL, rWS, vTHR, la))
        self.pa2 = (vPOLL, rWS, vTHR, L_HALF)
        if c.m_pb == -1:
            put(c.g_pa2 - 2, [valu("v_lshlrev_b32", vP2, 7, vTHR), valu("v_sub_u32", vP2, vPOLL, vP2)])
            self.pa2 = (vP2, rWS, 1, L_O)
        if not c.one_pa: put(c.g_pa2, self.poll_issue(self.pa2[0], rWS, self.pa2[3]))
        if c.pa2_epi < 0 and not c.one_pa: put(319, self.poll_check(*self.pa2))
        spread([valu("v_mov_b32", T[0], f32(-LOG2E)), valu("v_mov_b32", T[1], f32(-LOG2E)), valu("v_mov_b32", T[2], "1.0"), valu("v_mov_b32", T[3], "1.0")], 312, 320)
        inv_bar = {v: n for n, v in bar_gap.items() if 1 <= n <= 19}
        for k in range(NM):
            acc, step, n, off, which, us = F[k]
            if k % c.wstep == 0: add(wait(lg=[f"f{i}" for i in range(k, k + c.wstep)]))
            rd = self.frag_reads(k + c.LA, F[k + c.LA]) if k + c.LA < NM else []
            fill = gaps[k]
            tot, u, n1 = sum(cyc(i) for i in fill), 0, 0
            while n1 < len(fill) and (u + cyc(fill[n1]) / 2 <= tot / 2 or fill[n1].kind == "branch"): u += cyc(fill[n1]); n1 += 1
            if 2 * u > tot + 4: r1 = 0 if len(rd) <= 2 else len(rd) - 1
            elif 2 * u < tot - 4: r1 = len(rd)
            else: r1 = max(0, len(rd) - 1)
            if c.chain:
                th = k & 1
                first = F[k & ~1][1] == 0
                mm = [mfma(16, acc[th], WF.sub(4 * (kk % c.NB), 4), X.sub(4 * (F[kk][1] + th), 4), 0 if (first and kk == k) else acc[th]) for kk in (k, k ^ 1)]
            else: mm = [mfma(16, acc[th], WF.sub(4 * (k % c.NB), 4), X.sub(4 * (step + th), 4), 0 if step == 0 else acc[th]) for th in range(2)]
            add(mm[0])
            if k == 0: add(self.stamp(67))
            add(rd[:r1], fill[:n1])
            add(mm[1], rd[r1:], fill[n1:], tail[k])
            if k in inv_bar:
                n = inv_bar[k]
                assert not (skip(n) and self.bar_extra[n])
                if n == 19 or need[n] > need[n - 1]: add(wait(vm=[f"w{need[n]}"] + (["ts"] if n == c.f2_bar else []), lg=self.bar_extra[n] or None), barrier())
            if k in (127, 191): add(self.stamp())
            if k in (31, 63): add(self.stamp(64))
            if k % 32 == 31 and 31 < k < 319: add(self.stamp(2))
            if k in c.sg: add(self.stamp(32))
        add(self.stamp(131))
        self.load = load
    def plan_op(self, op, n):
        if op == "l":
            assert n >= self.cfg.pw_per
            return self.w2_load()
        if op == "h":
            assert n >= self.cfg.pa_per and self.h_n < 4
            return self.h_load()
        if op == "P": return self.poll_issue(vPOLLH, rWS)
        if op == "H":
            self.halo_period = n
            i = salu("s_mov_b32", "m0", sHM0); i.tag = "halo"
            return self.poll_check(vPOLLH, rWS, sTHR) + [i] + [buf_dma((vHLD, vHLD2)[q], rWS, 0, 1024 * q, flags="sc1", tag="halo") for q in range(2)]
        slot = int(op[1:])
        if slot < self.cfg.NS: assert n >= 2 + max(x for x in range(20) if slab_slot(x) == slot)
        if self.B and slot >= 7: assert n >= 19
        assert n >= self.cfg.pw_per
        return self.w2_dma(slot)

    def att_setup(self):
        t0, t1 = T[0], T[1]
        o = [valu("v_and_b32", t0, 15, vLane), valu("v_mul_u32_u24", t0, RP, t0), valu("v_and_b32", t1, 48, vLane), valu("v_lshlrev_b32", t1, 1, t1),
             salu("s_mul_i32", sT[0], sW, 32 * RP), salu("s_add_u32", sT[0], sT[0], SCR), valu("v_add3_u32", vSCR, sT[0], t0, t1),
             valu("v_and_b32", t0, 3, vLane), valu("v_bfe_u32", vVTR, vLane, 2, 2), valu("v_lshl_add_u32", t0, t0, 2, vVTR),
             valu("v_mul_u32_u24", t0, RP, t0), valu("v_add3_u32", vVTR, sT[0], t0, t1),
             salu("s_mov_b32", sT[0], SCR + 128 * RP + 128), valu("v_lshl_add_u32", vHRB, vLane, 4, sT[0])]
        o += [salu("s_lshl_b32", sT[1], sRB, 3), salu("s_lshl_b32", sT[2], sGQ, 1), salu("s_add_u32", sT[1], sT[1], sT[2]), salu("s_add_u32", sT[1], sT[1], sJ),
              salu("s_lshl_b32", sC1, sT[1], 11), salu("s_add_u32", sC1, sC1, HALO_OFF),
              salu("s_cmp_eq_u32", None, sW, 3), salu("s_cselect_b32", sT[1], sC1, OOB), salu("s_cselect_b32", sH3, 0, OOB), valu("v_lshl_add_u32", vHALO, vLane, 4, sT[1]),
              salu("s_and_b32", sT[1], sRB, 7), salu("s_or_b32", sT[2], sT[1], sW), salu("s_cselect_b32", sM1[0], 0, "0xf000f"), salu("s_cselect_b32", sM2[0], 0, "0xff00ff"),
              salu("s_mov_b32", sM1[1], sM1[0]), salu("s_mov_b32", sM2[1], sM2[0]), salu("s_mov_b32", sHM0, SPARE),
              salu("s_cmp_eq_u32", None, sW, 0), salu("s_cselect_b32", sHM0, SCR + 128, sHM0), salu("s_cselect_b32", sT[1], sT[1], 0),
              salu("s_cmp_lg_u32", None, sT[1], 0), salu("s_cselect_b32", sTHR, 1, 0),
              salu("s_sub_u32", sT[2], sC1, 8 * 2048), salu("s_cmp_lg_u32", None, sTHR, 0), salu("s_cselect_b32", sT[2], sT[2], OOB),
              valu("v_lshl_add_u32", vHLD, vLane, 4, sT[2]), valu("v_mov_b32", vHLD2, vHLD)]
        if self.cfg.kv_mode == 4:
            for q, dst in enumerate((vHLD, vHLD2)):
                o += [valu("v_add_u32", t0, 8 + 64 * q, vLane), valu("v_mul_u32_u24", t1, 241, t0), valu("v_lshrrev_b32", t1, 12, t1), valu("v_mul_u32_u24", dst, 17, t1),
                      valu("v_sub_u32", t0, t0, dst), valu("v_min_u32", t0, 15, t0), valu("v_lshlrev_b32", t1, 4, t1), valu("v_lshl_add_u32", t0, t0, 7, t1),
                      valu("v_add_u32", dst, sT[2], t0)]
                if q: o += [valu("v_subrev_u32", dst, 1024, dst)]
            o += [salu("s_sub_u32", sT[1], sC1, 24 * 16), salu("s_cmp_eq_u32", None, sW, 3), salu("s_cselect_b32", sT[1], sT[1], OOB),
                  valu("v_and_b32", t0, 31, vLane), valu("v_lshrrev_b32", t1, 5, vLane), valu("v_lshlrev_b32", t1, 8, t1), valu("v_lshl_add_u32", t1, t0, 4, t1),
                  valu("v_add_u32", t1, sT[1], t1), valu("v_cmp_lt_u32", "vcc", 23, t0), valu("v_mov_b32", t0, OOB), valu("v_cndmask_b32", vHALO, t0, t1, "vcc")]
        o += [
              salu("s_lshl_b32", sT[1], sRB, 3), salu("s_add_u32", sT[1], sT[1], sGQ), salu("s_lshl_b32", sT[1], sT[1], 10), salu("s_lshl_b32", sT[2], sJ, 3),
              salu("s_add_u32", sT[1], sT[1], sT[2]), salu("s_add_u32", sT[1], sT[1], FLAG_OFF - 4096 + 4), salu("s_cmp_lg_u32", None, sTHR, 0),
              salu("s_cselect_b32", sT[1], sT[1], OOB), valu("v_mov_b32", vPOLLH, sT[1]), salu("s_mov_b32", sCS, f32(0.25 * LOG2E))]
        o += [valu("v_and_b32", t0, 3, vLane), valu("v_mov_b32", t1, "0xffff"),
              valu("v_cmp_le_u32", sJ1, 1, t0), valu("v_cmp_le_u32", sJ2, 2, t0), valu("v_cmp_le_u32", sJ3, 3, t0),
              valu("v_cndmask_b32", vA01, t1, -1, sJ1), valu("v_cndmask_b32", vA23, 0, t1, sJ2), valu("v_cndmask_b32", vA23, vA23, -1, sJ3)]
        return o
    def attention(self, put, spread, bar_gap, load):
        c = self.cfg
        def pack(dst, a):
            o = [valu("v_cvt_pk_bf16_f32", dst[i], a[2 * i], a[2 * i + 1]) for i in range(8)]
            return o + [valu("v_permlane16_swap_b32", dst[i], dst[4 + i], rmw=True, wr2=dst[4 + i]) for i in range(4)]
        cv, wr = [], []
        for blk in range(4):
            a = ACC1.sub(16 * blk, 16)
            cv += pack(a, a)
            wr += [ds_write("ds_write_b128", vSCR, a.sub(4 * dh, 4), (blk & 1) * 128 + dh * 16 + (8 + 16 * (blk >> 1)) * RP, tag="kv") for dh in range(2)]
        hs = ACC1.sub(8, 8)
        assert c.kv_mode == 3
        spread(cv, 129, c.kv_end - 3)
        put(c.kv_end - 3, wr); put(c.kv_end - 1, [ds_read("ds_read_b128", hs.sub(4 * i, 4), vHRB, 1024 * i) for i in range(2)])
        if c.kv_mode != 4:
            put(c.kv_end + 2, [buf_store("buffer_store_dwordx4", hs.sub(0, 4), vHALO, rWS, 0, 0, flags="sc1", tag="st1")])
            put(c.kv_end + 4, [buf_store("buffer_store_dwordx4", hs.sub(4, 4), vHALO, rWS, 0, 1024, flags="sc1", tag="st1")])
            self.bar_extra[12] = ["kv"]
        assert c.kv_end + 4 < min(176, c.g_flag1)
        fl = self.flag(L_HALO, "st1")
        if c.halo3: fl[-1] = buf_store("buffer_store_dword", vFV, vFH, rWS, 0, L_HALO, flags="sc1")
        put(c.g_flag1, fl)
        Q = ACC2.sub(0, 16); O = ACC2.sub(16, 16)
        Sg = [SG.sub(0, 4), SG.sub(4, 4), SG.sub(8, 4)]
        P = [T.sub(0, 2), T.sub(2, 2), T.sub(4, 2)]
        tm, tz, big = SG[12], SG[13], SG[14]
        spread(pack(Q.sub(0, 8), ACC2.sub(0, 16)) + pack(Q.sub(8, 8), ACC2.sub(16, 16)) + [valu("v_mov_b32", big, f32(-1e30))], 195, 215)
        k = c.g_halo
        assert k > bar_gap[self.halo_period + 1]
        put(k, [wait(vm="halo")])
        cs = 0.25 * LOG2E
        for cb in range(2):
            spread([ds_read("ds_read_b128", KA.sub(8 * g + 4 * dh, 4), vSCR, dh * 16 + (16 * cb + (2 - g) * 4) * RP) for g in range(3) for dh in range(2)], k, k + 4)
            k += 5
            for dq in range(4):
                put(k + dq // 2, [mfma(4, Sg[g], KA.sub(8 * g + 2 * dq, 2), Q.sub(8 * cb + 2 * dq, 2), Sg[g] if dq else 0) for g in range(3)], last=True)
            k += 2
            vr = [ds_read("ds_read_b64_tr_b16", KA.sub(8 * g + 2 * m, 2), vVTR, 128 + (0, 2, 1, 3)[m] * 8 + (16 * cb + (2 - g) * 4) * RP, tag="vr") for g in range(3) for m in range(4)]
            s = [Sg[0][i] for i in range(4)] + [Sg[1][i] for i in range(4)]
            o = vr[:4]
            if cb == 0:
                o += [valu("v_cndmask_b32", Sg[2][r], Sg[2][r], big, sM2) for r in (1, 2, 3)]
                o += [valu("v_cndmask_b32", Sg[1][r], Sg[1][r], big, sM1) for r in range(4)]
            o += [valu("v_cndmask_b32", Sg[0][r], Sg[2][r], Sg[0][r], (None, sJ1, sJ2, sJ3)[r]) for r in (1, 2, 3)]
            o += [valu("v_max3_f32", tm, s[0], s[1], s[2]), valu("v_max3_f32", tz, s[3], s[4], s[5]), valu("v_max3_f32", tm, tm, s[6], s[7]), valu("v_max_f32", tm, tm, tz),
                  valu("v_mul_f32", tm, f32(-cs), tm)]
            o += vr[4:8]
            o += [valu("v_fma_f32", s[i], s[i], sCS, tm) for i in range(8)]
            o += [valu("v_exp_f32", s[i], s[i]) for i in range(8)]
            u = [Sg[2][i] for i in range(4)]
            o += [valu("v_add_f32", u[i], s[2 * i], s[2 * i + 1]) for i in range(4)]
            o += [valu("v_add_f32", u[0], u[0], u[1]), valu("v_add_f32", u[2], u[2], u[3]), valu("v_add_f32", u[0], u[0], u[2]), valu("v_rcp_f32", tz, u[0])]
            o += vr[8:]
            o += [valu("v_mul_f32", s[i], s[i], tz) for i in range(8)]
            o += [valu("v_cvt_pk_bf16_f32", u[0], s[0], s[1]), valu("v_cvt_pk_bf16_f32", u[1], s[2], s[3]),
                  valu("v_cvt_pk_bf16_f32", P[1][0], s[4], s[5]), valu("v_cvt_pk_bf16_f32", P[1][1], s[6], s[7]),
                  valu("v_and_b32", P[0][0], u[0], vA01), valu("v_and_b32", P[0][1], u[1], vA23),
                  valu("v_bfi_b32", P[2][0], vA01, 0, u[0]), valu("v_bfi_b32", P[2][1], vA23, 0, u[1])]
            spread(o, k, k + c.att_w)
            k += c.att_w
            for g in range(3):
                put(k + g // 2, [mfma(4, O.sub(4 * m, 4), KA.sub(8 * g + 2 * m, 2), P[g], O.sub(4 * m, 4) if g else 0) for m in range(4)], last=True)
            k += 2
            o = []
            for dh in range(2):
                o += [valu("v_cvt_pk_bf16_f32", O[4 * dh + i], O[8 * dh + 2 * i], O[8 * dh + 2 * i + 1]) for i in range(4)]
                o += [buf_store("buffer_store_dwordx4", O.sub(4 * dh, 4), vHST, rWS, sHu[1], cb * 256 + dh * 1024, flags=c.hflags, tag="st2")]
            spread(o, k + 1, k + 7)
        assert k <= bar_gap[19], k
        self.att_end = k
        if not c.splf and c.f2_epi < 0: put(min(k + c.f2_lag, 317), self.flag(L_O, "st2"))

    GORD = ([("d", 0, 1, t) for t in range(4)] + [("d", 12, 1, 4 + t) for t in range(2)] + [("o", 0, 1, t) for t in range(4)]
            + [("d", 4, 2, t) for t in range(4)] + [("d", 5, 2, t) for t in range(4)])
    def w2_setup(self):
        return [salu("s_mov_b32", sNL, f32(-LOG2E)), salu("s_mul_i32", sHd, sW, 28 * 1024), salu("s_lshl_b32", sHo, sW, 13), salu("s_add_u32", sHo, sHo, 112 * 1024),
                salu("s_lshl_b32", sWd, sHd, 1), salu("s_lshl_b32", sWo, sHo, 1)]
    def h_load(self):
        gi = self.h_n; self.h_n += 1
        kind, g0, st, t = self.GORD[gi]
        o = []
        base = sHd if kind == "d" else sHo
        d = ((g0 & ~1) - self.hpos[kind]) * 2048
        self.hpos[kind] = g0 & ~1
        if d: o += [salu("s_add_u32" if d > 0 else "s_sub_u32", base, base, abs(d))]
        o += [salu("s_add_u32" if st == 1 else "s_lshl1_add_u32", sT[0], (sU + sUh)[t], base)]
        dst = self.hreg[gi] = self.pool.pop(0)
        for s in range(2):
            for tb in range(2):
                o += [buf_load("buffer_load_dwordx4", dst.sub(8 * s + 4 * tb, 4), vW[0] if self.cfg.dbg & 2 else vH[tb], rWS, 0 if self.cfg.dbg & 2 else sT[0], s * 1024 + (g0 & 1) * 2048, flags="sc1", tag=f"h{gi}")]
        return o
    def w2_addr(self):
        gi = self.w2_nd; self.w2_nd += 1
        kind, g, st, t = self.GORD[gi]
        base = sWd if kind == "d" else sWo
        d = (g - self.w2pos[kind]) * 4096
        self.w2pos[kind] = g
        o = [salu("s_add_u32" if d > 0 else "s_sub_u32", base, base, abs(d))] if d else []
        return gi, o + [salu(f"s_lshl{st}_add_u32", sWS, (sU + sUh)[t], base)]
    def w2_load(self):
        gi, o = self.w2_addr()
        dst = self.wreg[gi] = self.pool.pop(0)
        return o + [buf_load("buffer_load_dwordx4", dst.sub(4 * i, 4), vW[i & 1], rWS, 0 if self.cfg.dbg & 4 else sWS, i * 1024, flags="sc1", tag=f"g{gi}") for i in range(4)]
    def w2_dma(self, slot):
        gi, o = self.w2_addr()
        assert slot not in self.w2slot.values()
        self.w2slot[gi] = slot
        return [set_m0(sWQ, slot * SLOT, f"g{gi}")] + o + [buf_dma(vW[i & 1], rWS, sWS, i * 1024, flags="sc1", tag=f"g{gi}") for i in range(4)]
    def w2_read(self):
        gi = min(self.w2slot)
        base = self.w2slot.pop(gi) * SLOT
        dst = self.wreg[gi] = self.pool.pop(0)
        o, imm = self.window(self.win2, 0, vWB, base, 4096)
        for i in o: i.tag = f"r{gi}"
        return [wait(vm=f"g{gi}")] + o + [ds_read("ds_read_b128", dst.sub(4 * i, 4), vWB, imm + i * 1024, tag=f"r{gi}") for i in range(4)]
    def phase2(self):
        c, add = self.cfg, self.add
        accF = [ACC2.sub(0, 16), A(80, 16), A(96, 16), A(112, 16)]
        accS = [ACC2.sub(16, 16)]
        PR = [None, ACC1.sub(0, 16), ACC1.sub(16, 16), ACC1.sub(32, 16)]
        xf = ACC1.sub(48, 16)
        red = [vSCR, vVTR, vTR0, vTR1, vDMA2, vHST]
        pool, hreg, wreg, h_load = self.pool, self.hreg, self.wreg, self.h_load
        pool += [A(128, 16), A(144, 16), A(160, 16)] + [A(16 * i, 16) for i in range(self.xf_n, 5)]
        light = []
        heavy = []
        pend = lambda q, tag: any(i.tag == tag for i in q)
        e = ([] if c.nspl else self.ffn_epi(ACC1.sub(0, 16), ACC1.sub(16, 16), 2, 0, "st3", pk=True)) + self.ffn_epi(ACC1.sub(32, 16), ACC1.sub(48, 16), 2, 256, "st4", pk=True)
        assert 9 not in self.w2slot.values()
        assert all(x < min(18, 20 - c.nspl) for x in range(20) if 6 <= slab_slot(x) <= 8)
        seq = []
        for gi in range(18):
            bl = (1, 2, 3) if gi >= 18 - c.defer else (0, 1, 2, 3)
            if c.snake and gi < 17: bl = (1, 3, 2) if len(bl) == 3 else (0, 1, 3, 2)
            seq += [(gi, s, b) for b in bl for s in range(2)] if gi == 17 else [(gi, s, b) for s in range(2) for b in bl]
        seq += [(gi, s, 0) for gi in range(18 - c.defer, 18) for s in range(2)]
        last = {gi: max(m for m, x in enumerate(seq) if x[0] == gi) for gi in range(18)}
        first = {gi: min(m for m, x in enumerate(seq) if x[0] == gi) for gi in range(18)}
        lastb = {b: max(m for m, x in enumerate(seq) if x[2] == b) for b in range(4)}
        g6 = 10 if c.m_pb == -1 else 6
        st = {"q": [], "gate": g6 if c.pa2_epi < 0 else 4, "x": False, "m": -1, "sw": False}
        def refill():
            okw = self.w2_nd < 18 and len(pool) > (1 if self.w2_nd <= self.h_n else c.keep)
            okh = self.h_n < st["gate"] and len(pool) > 1
            if okh and not (okw and self.w2_nd <= self.h_n + c.wlead): st["q"] += h_load()
            elif okw: st["q"] += self.w2_load()
            elif not st["x"] and st["m"] >= 0 and not pend(light, "ra"):
                st["x"] = True
                st["q"] += [set_m0(sWQ, 9 * SLOT, "xs"), salu("s_mov_b32", sT[1], 16384 - 1024),
                            buf_dma(red[4], rX, 0, 0, tag="xs"), buf_dma(red[4], rX, sT[1], 1024, tag="xs")]
        def pump():
            if not st["q"]: refill()
            while st["q"]:
                x = st["q"].pop(0); add(x)
                if x.kind in ("dma", "vml"): return True
            return False
        step = max(1, len(e) * 3 // 4 // max(1, c.epi_mem))
        k = 0
        for n, i in enumerate(e):
            if self.B and not c.splf and n == c.f2_epi: add(self.flag(L_O, "st2"))
            if n == c.pa2_epi: add(self.poll_check(*self.pa2)); st["gate"] = g6
            if (c.splf or c.m_pe > 0) and c.m_f3 < 0 and n == c.f3_at: add(self.flag(L_L0, "st3"))
            if n % step == 0 and k < c.epi_mem: pump(); k += 1
            add(i)
        add(self.stamp(129))
        started = set()
        ra = [salu("s_add_u32", sT[2], sWQ, 6 * SLOT), valu("v_lshl_add_u32", red[0], vLane, 4, sT[2])] + [valu("v_xor_b32", red[b], b * 4096, red[0]) for b in (1, 2, 3)]
        ra += [salu("s_and_b32", sT[2], sP2x, 64), salu("s_mul_i32", sT[3], sT[2], 511), salu("s_add_u32", sT[3], sT[3], sP2x),
               valu("v_lshrrev_b32", red[4], 3, vLane), valu("v_and_b32", red[5], 7, vLane), valu("v_lshlrev_b32", red[5], 4, red[5]),
               valu("v_lshl_add_u32", red[4], red[4], 11, red[5]), valu("v_add_u32", red[4], sT[3], red[4]),
               salu("s_lshr_b32", sT[3], sW, 1), salu("s_lshl_b32", sT[3], sT[3], 13), salu("s_add_u32", sT[3], sT[3], sT[2]), salu("s_add_u32", sT[3], sT[3], 9 * SLOT),
               valu("v_and_b32", red[5], 16, vLane), valu("v_lshlrev_b32", red[5], 1, red[5]), valu("v_and_or_b32", red[5], vLane, 15, red[5]), valu("v_lshlrev_b32", red[5], 7, red[5]),
               valu("v_and_or_b32", red[5], vLane, 32, red[5]), valu("v_add_u32", red[5], sT[3], red[5])]
        for i in ra: i.tag = "ra"
        light += ra
        used = set()
        for m, (gi, s, b) in enumerate(seq):
            st["m"] = m
            kind = self.GORD[gi][0]
            if gi in self.w2slot or pend(light, f"r{gi}"):
                add(light); light.clear()
                while gi in self.w2slot: add(self.w2_read())
            while gi >= self.w2_nd or pend(st["q"], f"g{gi}"): assert pump(), (m, gi)
            while gi >= self.h_n or pend(st["q"], f"h{gi}"): assert pump(), (m, gi)
            a = (accF if kind == "d" else accS)[b]
            if c.gwait == 1: add(wait_regs(hreg[gi].sub(8 * s, 8), wreg[gi].sub(8 * s, 8)))
            if c.gwait == 2: add(wait_regs(hreg[gi], wreg[gi]))
            if c.m16 & 2:
                for q in range(2):
                    aq = a.sub(8 * s + 4 * q, 4)
                    if q and light and cyc(light[0]) <= 4 and light[0].kind == "valu":
                        add(light.pop(0))
                        if light and cyc(light[0]) <= 4 and light[0].kind == "valu": add(light.pop(0))
                    add(mfma(16, aq, wreg[gi].sub(8 * q + 4 * (b & 1), 4), hreg[gi].sub(8 * s + 4 * (b >> 1), 4), aq if (kind, b, s) in started else 0))
                started.add((kind, b, s))
            else: add(mfma(32, a, wreg[gi].sub(8 * s + 4 * (b & 1), 4), hreg[gi].sub(8 * s + 4 * (b >> 1), 4), a if (kind, b) in started else 0))
            started.add((kind, b))
            if m == last[gi]:
                pool += [hreg[gi], wreg[gi]]
                if gi in (3, 4, 5): accS.append(pool.pop())
                if gi in c.sp: add(self.stamp(128))
            busy = False
            if m == c.m_f3: add(self.flag(L_L0, "st3")); busy = True
            if m == c.m_f4: add(self.flag(L_END, "st4"), self.stamp()); busy = True
            lb, lc = (L_L0 if c.splf else L_O), (L_L0 if c.m_pe > 0 else L_END)
            for mm, ln in ((c.m_pb, lb), (c.m_pc, lc), (c.m_pe, L_END)):
                if m == mm - c.m_pd: add(self.poll_issue(vPOLL, rWS, ln)); busy = True
            if m == c.m_pb - 1: add(valu("v_xor_b32", vTHR, 1, vTHR))
            if m == c.m_pe: add(self.poll_check(vPOLL, rWS, 1, L_END)); st["gate"] = 18
            if m == c.m_pb: add(self.poll_check(vPOLL, rWS, 1 if c.splf else vTHR, lb)); st["gate"] = 14 if c.splf else 10
            if m == c.m_pc: add(self.poll_check(vPOLL, rWS, 1, lc), self.stamp()); st["gate"] = 14 if c.m_pe > 0 else 18; self.pre += (self.w2_nd, self.h_n)
            used.add((gi, s, b >> 1))
            ahead = 4 * self.h_n - sum(1 for i in st["q"] if i.kind == "vml") - len(used)
            if ((m % c.vstep < c.vnum if m < c.m_v1 else m % 2 == 0) or ahead < c.ahead) and not busy: busy = pump()
            if not light and self.w2slot and pool and m >= first[min(self.w2slot)] - c.rlead: light += self.w2_read()
            if m == last[9] + 2:
                add(light); light.clear()
                while any(6 <= s_ <= 8 for s_ in self.w2slot.values()): add(self.w2_read())
                st["sw"] = True
                heavy += [wait(lg=[f"r{g}" for g in range(18)])]
                heavy += [ds_write("ds_write_b128", red[0], accS[b2].sub(4 * q, 4), (b2 - 1) * SLOT + q * 1024, tag="sw") for b2 in (1, 2, 3) for q in range(4)]
            if m == c.m_sb:
                while not st["x"] or pend(st["q"], "xs"):
                    g18, nd = st["gate"], self.w2_nd; st["gate"] = 0; self.w2_nd = 18; assert pump(); st["gate"], self.w2_nd = g18, nd
                add(heavy); heavy = []
                add(wait(vm="xs", lg="sw"), barrier()); busy = True
                light += [ds_read("ds_read_b128", xf.sub(8 * i + 4, 4), red[5], 16 * i) for i in range(2)]
                light += [ds_read("ds_read_b128", PR[b2].sub(4 * q, 4), red[b2], (b2 - 1) * SLOT + q * 1024) for b2 in (1, 2, 3) for q in range(4)]
                for b2 in range(4):
                    i = valu("v_subrev_u32", red[b2], 6 * SLOT, red[b2]); i.tag = "ra"; light.append(i)
                for h in range(2):
                    for i in range(4):
                        src = xf[8 * h + 4 + i]
                        pr = [valu("v_lshlrev_b32", xf[8 * h + 2 * i], 16, src), valu("v_and_b32", xf[8 * h + 2 * i + 1], "0xffff0000", src)]
                        light += pr
                light += [valu("v_add_f32", accS[0][i], accS[0][i], PR[1][i]) for i in range(16)] + [valu("v_add_f32", PR[2][i], PR[2][i], PR[3][i]) for i in range(16)]
                light += [valu("v_add_f32", accS[0][i], accS[0][i], PR[2][i]) for i in range(16)]
            for b2 in (1, 2, 3):
                if m == lastb[b2] + 2:
                    while pend(light, "ra"): add(light.pop(0))
                    heavy += [ds_write("ds_write_b128", red[0], accF[b2].sub(4 * q, 4), (b2 - 1) * SLOT + q * 1024) for q in range(4)]
            budget = 11 if busy else 24
            if heavy and not busy:
                while heavy:
                    x = heavy.pop(0); add(x)
                    if x.kind == "dsw": break
                budget = 0
            while light and cyc(light[0]) <= budget:
                budget -= cyc(light[0]); add(light.pop(0))
        assert self.h_n == 18 and self.w2_nd == 18 and not self.w2slot and not st["q"] and st["x"]
        add(self.stamp())
        add(heavy, light)
        add(wait(lg="all"), barrier())
        for q in range(4):
            for b in (1, 2, 3): add(ds_read("ds_read_b128", PR[b].sub(4 * q, 4), red[b], (b - 1) * SLOT + q * 1024))
        Fp, Sp, t = accF[0], accS[0], PR[1]
        for hq in range(2):
            r2 = range(8 * hq, 8 * hq + 8, 2); r1 = range(8 * hq, 8 * hq + 8)
            add([valu("v_pk_add_f32", Fp.sub(i, 2), Fp.sub(i, 2), PR[1].sub(i, 2)) for i in r2])
            add([valu("v_pk_add_f32", PR[2].sub(i, 2), PR[2].sub(i, 2), PR[3].sub(i, 2)) for i in r2])
            add([valu("v_pk_add_f32", Fp.sub(i, 2), Fp.sub(i, 2), PR[2].sub(i, 2)) for i in r2])
            add([valu("v_pk_mul_f32", t.sub(i, 2), Fp.sub(i, 2), T.sub(0, 2)) for i in r2])
            add([valu("v_exp_f32", t[i], t[i]) for i in r1])
            add([valu("v_pk_mul_f32", Sp.sub(i, 2), Sp.sub(i, 2), Fp.sub(i, 2)) for i in r2])
            add([valu("v_pk_add_f32", t.sub(i, 2), t.sub(i, 2), T.sub(2, 2)) for i in r2])
            add([valu("v_rcp_f32", t[i], t[i]) for i in r1])
            add([valu("v_pk_fma_f32", xf.sub(i, 2), Sp.sub(i, 2), t.sub(i, 2), xf.sub(i, 2)) for i in r2])
            add([valu("v_cvt_pk_bf16_f32", t[8 * hq + i], xf[8 * hq + 2 * i], xf[8 * hq + 2 * i + 1]) for i in range(4)])
            add(buf_store("buffer_store_dwordx4", t.sub(8 * hq, 4), vXO, rOUT, 0, 16 * hq, flags=c.outflags))

    def finish(self):
        add = self.add
        if self.cfg.stamps:
            add(raw(f"{self.cfg.clock} s[14:15]", "smem"))
            add(wait(vm="all"))
            add(raw(f"{self.cfg.clock} s[16:17]\n    s_waitcnt lgkmcnt(0)", "smem"))
            add(valu("v_mov_b32", V(96), 0))
            for i in range(self.nst): add(raw(f"v_writelane_b32 v96, s{STAMPS[i]}, {1+i}", "valu", wr=["v96"]))
            add(raw(f"v_writelane_b32 v96, s{ST0}, 0", "valu", wr=["v96"]), raw(f"v_writelane_b32 v96, s14, {1+self.nst}", "valu", wr=["v96"]),
                raw(f"v_writelane_b32 v96, s16, {2+self.nst}", "valu", wr=["v96"]))
            add(salu("s_lshl_b32", sT[1], sWG, 2), salu("s_add_u32", sT[1], sT[1], sW), salu("s_lshl_b32", sT[1], sT[1], 6), salu("s_add_u32", sT[1], sT[1], STAMP_OFF),
                valu("v_lshl_add_u32", V(97), vLane, 2, sT[1]), salu("s_mov_b64", "exec", "0xffff"), buf_store("buffer_store_dword", V(96), V(97), rWS))
        add(raw("s_endpgm", "end"))

    def program(self):
        NS[0] = self.cfg.NS
        assert self.cfg.NS <= (7 if self.B else 9)
        self.w2slot, self.slot_used, self.w2pos = {}, {}, {"d": 0, "o": 0}
        self.w2_nd = self.w2_nr = 0
        self.win2 = [0, 0]
        self.xf_n = 0
        self.h_n, self.hreg, self.wreg, self.hpos = 0, {}, {}, {"d": 0, "o": 0}
        self.ramp(); self.phase1()
        self.pre = (self.w2_nd, len(self.w2slot), self.h_n)
        if not self.cfg.p1only: self.phase2()
        self.finish()
        return self.e.text() + self.slow

HEAD = open("recurrent_scan__sliding_local_dilated__swiglu_ffn__prompt.s.ref").read().split("; Override launch")[0]

def build(cfg):
    s = HEAD + "; @launch grid=(256,1,1) block=(256,1,1) lds=163840\n"
    s += f'.amdgcn_target "amdgcn-amd-amdhsa--gfx950"\n.text\n.globl {KNAME}\n.p2align 8\n.type {KNAME},@function\n{KNAME}:\n'
    s += f"""    s_cmp_ge_u32 s2, 256
    s_cbranch_scc0 L_go
    s_endpgm
L_go:
"""
    if cfg.stamps: s += f"    {cfg.clock} s[{ST0}:{ST0+1}]\n"
    s += f"""    s_load_dwordx2 s[24:25], s[0:1], 0
    s_load_dwordx16 s[4:19], s[0:1], 0
    s_load_dwordx4 s[20:23], s[0:1], 64
    v_lshrrev_b32 v1, 6, v0
    s_getpc_b64 s[28:29]
    v_readfirstlane_b32 {sW}, v1
    s_bfe_u32 s26, s2, 0x30003
    s_lshl_b32 s26, s26, 13
    v_lshrrev_b32 v2, 2, v0
    v_lshl_add_u32 v2, v2, 7, s26
    v_min_u32 v2, L_end-L_go-256, v2
    global_load_dword v3, v2, s[28:29]
    v_and_b32 {vLane}, 63, v0
    v_lshrrev_b32 v96, 3, {vLane}
    v_and_b32 v97, 7, v0
    s_lshl_b32 {sWQ}, {sW}, 12
    s_cmp_ge_u32 s2, 128
    s_cbranch_scc1 L_typeC
"""
    info = {}
    for typ in ("B", "C"):
        g = Gen(typ, cfg)
        g.e.vm.append(("pf", {"v3"}))
        s += f"L_type{typ}:\n" + g.program()
        info[typ] = (g.e.slots, g.e.nops, dict(g.e.count), [sum(max(32, 24 + x) for x in g.load[i:i + 32]) for i in range(0, 320, 32)], g.pre, g.nst + 3)
    s += "L_end:\n"
    s += f""".section .rodata,"a"
.p2align 6
.amdhsa_kernel {KNAME}
  .amdhsa_next_free_vgpr 512
  .amdhsa_next_free_sgpr 102
  .amdhsa_accum_offset 256
  .amdhsa_group_segment_fixed_size 0
  .amdhsa_kernarg_size 80
  .amdhsa_user_sgpr_count 2
  .amdhsa_user_sgpr_kernarg_segment_ptr 1
  .amdhsa_system_sgpr_workgroup_id_x 1
.end_amdhsa_kernel
"""
    return s, info

if __name__ == "__main__":
    cfg = Cfg()
    out = sys.argv[1]
    for a in sys.argv[2:]:
        k, v = a.split("=")
        assert hasattr(cfg, k) or hasattr(cfg, k[:-2]), k
        if k in ("outflags", "hflags", "pflags", "wflags"): v = v.replace("_", " ")
        elif k in ("sg", "sp", "xr", "xr_B", "xr_C"): v = [int(x) for x in v.split(",")]
        elif k not in ("clock", "planB", "planC"): v = int(v)
        setattr(cfg, k, v)
    s, info = build(cfg)
    open(out, "w").write(s)
    for k, v in info.items(): print(k, v)
```

```python
import sys, struct
sys.path.insert(0, "tools")
from emit import *
from asmlib import KNAME

FLAG_OFF, XN_OFF, HALO_OFF, WS_USED = 0x910000, 0x938000, 0xB38000, 0xF00000
WT_OFF, P6_OFF = 0xC01000, 0xE50000
L_HALO, L_P1, L_HALF, L_O, L_L0, L_END = [128 * i for i in range(6)]
FLAGA_OFF = 0x930000
STAMP_OFF = 0xB80000
OOB = 0x40000000
SLOT = 16384
HSTR = 145 * 1024
RP = 272
SCR = 7 * SLOT
SPARE = SCR + 137 * RP
LOG2E = 1.4426950408889634
def f32(x): return "0x%08x" % struct.unpack("<I", struct.pack("<f", x))[0]

class Cfg:
    stamps = 0
    clock = "s_memrealtime"
    sg = ()
    sp = ()
    p1only = 0
    LA = 8
    NB = 10
    spin = 1000000
    cbx = 0
    rot = 0
    sleep = 0
    otr = 1
    chain = 1
    dpos = 3
    w_c0 = 3
    p0 = 1
    rlate = 0
    m16 = 0
    wstep = 4
    sconst = 1
    gwait = 0
    halo3 = 1
    c_delay = 0
    b_lean = 0
    xr = ()
    splf = 0
    bar2 = 0
    map2 = 0
    one_pa = 0
    q_early = 1
    patom = 0
    f2_lag = 24
    rsel = 1
    tx = 1
    b_rest = None
    tlin = 0
    wo_late = -1
    sig_early = 0
    nodbg = 0
    f2_epi = -1
    pa2_epi = -1
    dbg = 0
    nspl = 0
    e0_end = 312
    f3_at = 30
    setup_early = 0
    w_0 = 0
    w_a = 1
    w_b = 2
    w_c = 4
    nx0 = 8
    xrate = 6
    planB = "4:w,5:w,6:l,7:l,8:l,9:l,10:l,11:P.l,12:l.H,13:l,14:l,15:l.l,16:l.d6,17:l.d0,18:h.h,19:h.h.l"
    planC = "6:l,7:l,8:l,9:l.w,10:l,11:l,12:l,13:l,14:l,15:l.l,16:l.l,17:l.d8,18:h.h,19:h.h.d7"
    ts_pos = -1
    f2_bar = 2
    pw_lead = 14
    pw_per = 6
    NS = 7
    xfree = 1
    kv_end = 143
    kv_mode = 3
    kw_end = 214
    p6_per = 4
    c_rest = 4
    c_tile = -1
    g_flag1 = 163
    g_halo = 212
    att_w = 24
    g_f1c = 210
    g_pa = 262
    h2_end = 240
    g_f2c = 264
    g_pa2 = 304
    epi_mem = 8
    m_f4 = 24
    m_pe = -99
    pa_per = 18
    m_f3 = -1
    m_pb = 24
    m_pc = 68
    m_pd = 12
    m_sb = 106
    defer = 4
    vstep = 1
    vnum = 1
    m_v1 = 0
    wlead = 1
    rlead = 12
    keep = 4
    ahead = 12
    outflags = "sc1"
    hflags = "sc1"
    pflags = "sc1"
    wflags = ""
    snake = 0

sWG = S(2)
pX, pQKV, pWO, pG, pU, pD, pOUT, pDBG, pWS = S(4, 2), S(6, 2), S(8, 2), S(12, 2), S(14, 2), S(16, 2), S(18, 2), S(20, 2), S(22, 2)
rX, rQKV, rGU, rD, rWO, rOUT, rWS, rDBG = S(24, 4), S(28, 4), S(32, 4), S(36, 4), S(40, 4), S(44, 4), S(48, 4), S(52, 4)
sW, sRB, sGQ, sJ, sTB2, sCB2, sWQ = S(56), S(57), S(58), S(59), S(60), S(61), S(62)
sT = [S(3), S(63), S(64), S(65)]
sM1, sM2 = S(66, 2), S(68, 2)
sHM0, sXS = S(70), S(71)
sJ1, sJ2, sJ3 = S(72, 2), S(74, 2), S(76, 2)
sTHR, sCNT = S(78), S(79)
sU = [S(60), S(61), S(58), S(59)]
sUh = [S(0), S(1)]
sHu = [S(4), S(5), S(6)]
sCS, sC1, sHd, sHo = S(7), S(8), S(9), S(10)
sWd, sWo, sWS, sW0 = S(40), S(41), S(42), S(43)
sOA = [0, S(11), S(12), S(13)]
sOB = [0, S(14), S(15), S(16)]
sNL, sH3 = S(17), S(18)
sP2h, sP2f, sP2x, sHS = S(20), S(21), S(22), S(23)
STAMPS = list(range(82, 102, 2))
ST0 = 80

ACC1, ACC2 = V(0, 64), V(64, 32)
VBUF = [V(96 + 16 * i, 16) for i in range(8)]
KA, SG = V(176, 24), V(200, 16)
T = V(224, 8)
(vF2, vA23, vA01, vP2, vHRB, vWB, vDMA2, vDMA1, vW1, vFV, vPV, vW0, vPOLL, vHALO, vPOLLH, vHLD,
 vFLG, vVTR, vSCR, vHST, vDMA0, vTR1, vTR0, vLane) = [V(232 + i) for i in range(24)]
vW = [vW0, vW1]
vP6 = vA01
vHLD2, vFH = V(222), V(223)
vXN = V(216)
vTCH = [V(217), V(218), V(219), V(220), V(221)]
vH = [vHRB, vHALO]
vXO, vTHR = vDMA1, vDMA0
X = A(0, 128)
WF = A(128, 40)
aDUM = A(168)
ABUF = [A(176 + 16 * i, 16) for i in range(5)]
NS = [5]
def slab_slot(n): return n % NS[0]

def cyc(i):
    k = i.kind
    if k in ("wait", "waitr", "waitcnt", "mfma"): return 0
    if k == "trans": return 8
    if k in ("dma", "vml"): return 14
    if k == "vms": return 30 if i.op.endswith("x4") else 20
    if k == "dsw": return 26
    if k == "dsr": return 11 if i.op.endswith("b128") else 4
    if k == "bar": return 14
    if k == "branch": return 8
    return 4

class Gen:
    def __init__(self, typ, cfg):
        self.typ, self.cfg = typ, cfg
        self.B = typ == "B"
        import copy
        self.cfg = cfg = copy.copy(cfg)
        for k, v in list(vars(cfg).items()) + list(vars(Cfg).items()):
            if k.endswith('_' + typ): setattr(cfg, k[:-2], getattr(cfg, k))
        self.e = Emitter()
        self.nst = 0
        self.nlab = 0
        self.slow = ""
        self.mid = []
        self.TR = [vTR0, vTR1, T[6], T[7]] if self.B else [vTR0, vTR1, vA23, vPOLLH, vVTR, vHLD]
    def add(self, *ins):
        for i in ins: self.e.add(i)
    def stamp(self, mode=1):
        if not (self.cfg.stamps & mode): return []
        r = S(STAMPS[self.nst], 2); self.nst += 1
        return [raw(f"{self.cfg.clock} {r}", "smem")]
    def touch(self, va, srd, flags=""):
        i = buf_load("buffer_load_dword", aDUM, va, srd, flags=flags)
        i.wr = set()
        return [i]
    def poll_text(self, vaddr, srd, off):
        n = {str(vPOLL): (8, 1), str(vPOLLH): (1, 2), str(vP2): (48, 4), str(vP6): (32, 4), "v105": (2, 8), "v106": (8, 16)}[str(vaddr)]
        if not self.cfg.patom & n[1]: return None
        return (f"v_mov_b32 {vPV}, 15\n    s_bfm_b64 exec, {n[0]}, 0\n    v_mov_b32 {vPV}, 0\n"
                f"    buffer_atomic_add {vPV}, {vaddr}, {srd}, 0 offen offset:{off} sc0 sc1\n    s_mov_b64 exec, -1")
    def poll_issue(self, vaddr, srd, off=0):
        t = self.poll_text(vaddr, srd, off)
        if t:
            i = buf_load("buffer_load_dword", vPV, vaddr, srd, 0, off); i.text = t
            return [i]
        return [buf_load("buffer_load_dword", vPV, vaddr, srd, 0, off, flags=self.cfg.pflags)]
    def poll_check(self, vaddr, srd, thr, off=0):
        self.nlab += 1
        l = f"L_{self.typ}_p{self.nlab}"
        sl = f"    s_sleep {self.cfg.sleep}\n" if self.cfg.sleep else ""
        if self.cfg.stamps & 512:
            sl += f"    s_add_u32 s{STAMPS[self.nlab - 1]}, s{STAMPS[self.nlab - 1]}, 1\n"; self.nst = 8
        self.slow += (f"{l}_slow:\n    s_mov_b32 {sCNT}, 0\n{l}_spin:\n"
                f"{sl}    {self.poll_issue(vaddr, srd, off)[0].text}\n    s_add_u32 {sCNT}, {sCNT}, 1\n    s_waitcnt vmcnt(0)\n"
                f"    v_cmp_gt_u32 vcc, {thr}, {vPV}\n    s_cmp_ge_u32 {sCNT}, {self.cfg.spin}\n    s_cbranch_scc1 {l}_ok\n"
                f"    s_cbranch_vccnz {l}_spin\n    s_branch {l}_ok\n")
        return [valu("v_cmp_gt_u32", "vcc", thr, vPV), raw(f"s_cbranch_vccnz {l}_slow\n{l}_ok:", "branch")]
    def flag(self, stage, tag):
        return [wait(vm=tag), buf_store("buffer_store_dword", vFV, vFLG, rWS, 0, stage, flags="sc1")]

    def ramp(self):
        c, add, B = self.cfg, self.add, self.B
        t0, t1, t2, t3 = V(96), V(97), V(98), V(99)
        vXL, vXS, vRS, vST, vF0, vP0, vDB, vTLB, vSG, vXR, vTL, vTS = [V(100 + i) for i in range(12)]
        vR2, vTB0, vTB1, vPL, vPS = [V(162 + i) for i in range(5)]
        tl, p6 = V(168, 16), V(184, 4)
        xr, lo, z, part = V(112, 16), V(128, 16), V(144, 4), V(148, 8)
        sm, sq, one = V(156), V(157), V(158)
        rb = V(160, 2)
        srd = lambda r, p, n: [salu("s_mov_b32", r[0], p[0]), salu("s_mov_b32", r[1], p[1]), salu("s_mov_b32", r[2], n), salu("s_mov_b32", r[3], "0x20000")]
        gu = [salu("s_cmp_lt_u32", None, sW, 2), salu("s_cselect_b32", rGU[0], pG[0], pU[0]), salu("s_cselect_b32", rGU[1], pG[1], pU[1])]
        sizes = ((rX, pX, 2048 * 1024), (rWS, pWS, WS_USED), (rDBG, pDBG, 256), (rQKV, pQKV, 512 * 3072), (rOUT, pOUT, 2048 * 1024))
        XL = 8 * SLOT
        self.nslab = 0
        if c.stamps & 1024:
            add(raw(f"s_getreg_b32 s{STAMPS[0]}, hwreg(HW_REG_XCC_ID)\n    s_getreg_b32 s{STAMPS[1]}, hwreg(HW_REG_HW_ID)", "salu")); self.nst = 2
        if c.stamps & 512: add([salu("s_mov_b32", S(r), 0) for r in STAMPS])
        add(self.stamp(256))
        TL = (7 if B else 9) * SLOT
        roles = [salu("s_lshr_b32", sT[0], sWG, 3), salu("s_and_b32", sT[1], sWG, 7), salu("s_and_b32", sRB, sWG, 1), salu("s_lshl_b32", sRB, sRB, 3),
                 salu("s_and_b32", sT[2], sT[0], 7), salu("s_add_u32", sRB, sRB, sT[2]), salu("s_lshr_b32", sGQ, sT[1], 1), salu("s_lshr_b32", sJ, sT[0], 3),
                 salu("s_lshl_b32", sTB2, sT[1], 2), salu("s_and_b32", sT[2], sT[0], 3), salu("s_add_u32", sTB2, sTB2, sT[2]), salu("s_lshr_b32", sCB2, sT[0], 2)]
        if c.map2 == 1:
            roles = roles[:8] + [salu("s_and_b32", sT[2], sT[0], 7), salu("s_lshl3_add_u32", sTB2, sGQ, sT[2]), salu("s_and_b32", sT[2], sWG, 1), salu("s_lshl2_add_u32", sCB2, sT[2], sJ)]
        if c.map2 == 2:
            roles = roles[:8] + [salu("s_lshr_b32", sT[2], sT[0], 2), salu("s_lshl3_add_u32", sTB2, sGQ, sT[2]), salu("s_and_b32", sT[2], sWG, 1), salu("s_and_b32", sCB2, sT[0], 3),
                                 salu("s_lshl2_add_u32", sCB2, sT[2], sCB2)]
        if c.map2 == 3:
            roles = roles[:8] + [salu("s_lshl2_add_u32", sTB2, sT[1], sJ), salu("s_and_b32", sCB2, sT[0], 7)]
        if c.cbx: roles += [salu("s_xor_b32", sCB2, sCB2, c.cbx)]
        def tile_setup():
            if B:
                o = [salu("s_lshl2_add_u32", sT[1], sRB, sW), salu("s_lshl_b32", sT[2], sT[1], 13), salu("s_lshl1_add_u32", sT[3], sGQ, sJ)] + srd(rD, pWO, 512 * 1024)
            else:
                o = [salu("s_lshr_b32", sT[1], sW, 1), salu("s_lshl1_add_u32", sT[1], sT[0], sT[1]), salu("s_lshl_b32", sT[2], sT[1], 15),
                     salu("s_xor_b32", sCNT, sGQ, c.tx), salu("s_and_b32", sT[3], sW, 1), salu("s_lshl1_add_u32", sT[3], sCNT, sT[3])] + srd(rD, pD, 1792 * 1024)
            o += [salu("s_lshl_b32", sCNT, sT[3], 7), salu("s_add_u32", sT[2], sT[2], sCNT),
                  valu("v_lshrrev_b32", t2, 2, vLane), valu("v_and_b32", t2, 4, t2), valu("v_xor_b32", t2, t2, t1), valu("v_lshlrev_b32", t2, 4, t2),
                  valu("v_lshl_add_u32", t2, t0, 10, t2), valu("v_add_u32", vTL, sT[2], t2)]
            o += [salu("s_mul_i32", sT[2], sT[3], 72 * 4096), salu("s_lshl_b32", sT[1], sT[1], 10 if B else 12), salu("s_add_u32", sT[2], sT[2], sT[1]),
                  salu("s_add_u32", sT[2], sT[2], WT_OFF + (56 * 4096 if B else 0)),
                  ]
            if B: o += [salu("s_lshl4_add_u32", sT[1], sT[3], sRB)]
            else: o += [salu("s_lshl_b32", sT[1], sGQ, 5), salu("s_add_u32", sT[1], sT[1], sT[0])]
            o += [salu("s_and_b32", sT[3], sT[1], 7), salu("s_lshr_b32", sT[1], sT[1], 3), salu("s_lshl_b32", sT[1], sT[1], 7), salu("s_lshl2_add_u32", sT[1], sT[3], sT[1]),
                  salu("s_add_u32", sT[1], sT[1], FLAGA_OFF + (80 if B else 64) * 128)]
            if not B: o += [salu("s_cmp_lt_u32", None, sRB, 14), salu("s_cselect_b32", sT[2], sT[2], OOB)]
            o += [salu("s_cmp_eq_u32", None, sW, 0), salu("s_cselect_b32", sT[1], sT[1], OOB),
                  valu("v_lshl_add_u32", vTS, vLane, 4, sT[2]), valu("v_mov_b32", vF2, OOB), raw(f"v_writelane_b32 {vF2}, {sT[1]}, 0", "valu", rd=[vF2], wr=[vF2])]
            return o
        def tile_store():
            o = [valu("v_bfe_u32", t2, vLane, 2, 2), valu("v_lshrrev_b32", t3, 5, vLane), valu("v_lshl_add_u32", vTB0, t3, 4 if B else 2, t2), valu("v_lshlrev_b32", vTB0, 7, vTB0),
                 valu("v_lshrrev_b32", t2, 1, t2), valu("v_lshl_add_u32", vTB0, t2, 6, vTB0), valu("v_and_b32", t2, 1, vLane), valu("v_lshl_add_u32", vTB0, t2, 5, vTB0),
                 valu("v_and_or_b32", vTB0, vLane, 16, vTB0), valu("v_and_b32", t2, 2, vLane), valu("v_lshl_add_u32", vTB0, t2, 2, vTB0)]
            if B:
                o += [salu("s_and_b32", sT[1], sW, 1), salu("s_lshl_b32", sT[1], sT[1], 6), valu("v_xor_b32", vTB0, sT[1], vTB0),
                      salu("s_lshr_b32", sT[1], sW, 1), salu("s_lshl_b32", sT[1], sT[1], 10), salu("s_add_u32", sT[1], sT[1], TL), valu("v_add_u32", vTB0, sT[1], vTB0)]
                return o, [ds_read("ds_read_b64_tr_b16", tl.sub(2 * u, 2), vTB0, u * 512) for u in range(2)], [buf_store("buffer_store_dwordx4", tl.sub(0, 4), vTS, rWS, flags="sc1", tag="ts")]
            o += [salu("s_add_u32", sT[1], sWQ, TL), valu("v_add_u32", vTB0, sT[1], vTB0), valu("v_xor_b32", vTB1, 64, vTB0), wait(vm="tl")]
            for s_ in range(2):
                for cb in range(2):
                    for u in range(2): o += [ds_read("ds_read_b64_tr_b16", tl.sub(8 * s_ + 4 * cb + 2 * u, 2), (vTB0, vTB1)[cb], s_ * 2048 + u * 1024)]
            return o, [buf_store("buffer_store_dword", vFV, vF2, rWS, flags="sc1")], [buf_store("buffer_store_dwordx4", tl.sub(4 * i, 4), vTS, rWS, 0, 1024 * i, flags="sc1", tag="ts") for i in range(4)]
        if B:
            if c.p0 == 1:
                add(salu("s_and_b32", sT[2], sWG, 63), salu("s_lshl_b32", sT[2], sT[2], 15), salu("s_lshr_b32", sT[1], sWG, 6), salu("s_lshl2_add_u32", sT[1], sT[1], sW),
                    salu("s_lshl_b32", sT[1], sT[1], 8), salu("s_add_u32", sT[1], sT[1], sT[2]),
                    valu("v_xor_b32", t2, t0, t1), valu("v_lshlrev_b32", t2, 4, t2), valu("v_lshl_add_u32", vXL, t0, 11, t2),
                    salu("s_add_u32", sXS, sT[1], 16384 - 1024), srd(*sizes[0])[2:], set_m0(sWQ, XL, "x"))
                add(self.stamp(256), raw("s_waitcnt lgkmcnt(0)", "waitcnt"), self.stamp(256))
                add(buf_dma(vXL, rX, sT[1], 0, tag="x"), buf_dma(vXL, rX, sXS, 1024, tag="x"), set_m0(sWQ, XL + 2048 - 128, "x"), salu("s_mov_b32", rWS[0], pWS[0]),
                    buf_dma(vXL, rX, sT[1], 128, tag="x"), buf_dma(vXL, rX, sXS, 1024 + 128, tag="x"))
            else:
                add(salu("s_and_b32", sT[2], sWG, 63), salu("s_lshl2_add_u32", sT[2], sT[2], sW), salu("s_lshr_b32", sT[1], sWG, 6), salu("s_lshl3_add_u32", sT[1], sT[2], sT[1]),
                    salu("s_lshl_b32", sT[1], sT[1], 10), valu("v_lshl_add_u32", vXL, vLane, 4, sT[1]), salu("s_mul_i32", sCNT, sW, 4352),
                    salu("s_movk_i32", sT[1], 960), salu("s_movk_i32", sT[2], 1920), salu("s_movk_i32", sT[3], 2880), srd(*sizes[0])[2:], set_m0(sCNT, XL, "x"))
                add(self.stamp(256), raw("s_waitcnt lgkmcnt(0)", "waitcnt"), self.stamp(256))
                add([buf_dma(vXL, rX, sT[i] if i else 0, 1088 * i, tag="x") for i in range(4)], salu("s_mov_b32", rWS[0], pWS[0]))
                add(valu("v_and_b32", vST, 3, vLane), valu("v_mul_u32_u24", t2, 1088, vST), valu("v_lshrrev_b32", vXL, 2, vLane), valu("v_lshl_add_u32", t2, vXL, 4, t2),
                    salu("s_add_u32", sCNT, sCNT, XL), valu("v_add_u32", vXR, sCNT, t2))
            add(self.stamp(256))
            add(srd(*sizes[1])[1:])
            if c.rsel: add(salu("s_lshr_b32", sT[1], sWG, 3), salu("s_and_b32", sT[2], sWG, 1), salu("s_lshl1_add_u32", sT[1], sT[1], sT[2]), salu("s_and_b32", sT[3], sWG, "0xe6"))
            else: add(salu("s_mov_b32", sT[1], sWG), salu("s_lshr_b32", sT[3], sWG, 3))
            add(salu("s_lshl_b32", sT[2], sT[1], 11), salu("s_add_u32", sT[2], sT[2], FLAGA_OFF), salu("s_lshl_b32", sT[1], sT[1], 2),
                salu("s_or_b32", sT[3], sT[3], sW), salu("s_cselect_b32", sT[2], OOB, sT[2]), salu("s_cselect_b32", sT[1], OOB, sT[1]),
                salu("s_lshl_b32", sT[3], sWG, 10), salu("s_add_u32", sT[3], sT[3], FLAG_OFF), salu("s_cmp_eq_u32", None, sW, 1),
                [salu("s_cselect_b32", sT[3], sT[3], OOB), valu("v_lshl_add_u32", vR2, vLane, 4, sT[3]), salu("s_mov_b32", sT[3], 7)] if c.rlate else
                [salu("s_cselect_b32", sT[2], sT[3], sT[2]), salu("s_cselect_b32", sT[3], 6, 7)],
                valu("v_lshrrev_b32", t2, 2, vLane), valu("v_and_b32", t3, 3, vLane), valu("v_lshlrev_b32", t3, 4, t3), valu("v_lshl_add_u32", t2, t2, sT[3], t3),
                valu("v_add_u32", vRS, sT[2], t2), valu("v_mov_b32", vSG, sT[1]), [valu("v_mov_b32", z[i], 0) for i in range(4)])
            add(buf_store("buffer_store_dwordx4", z, vRS, rWS, flags="sc1", tag="reset"))
            add(roles)
            for q in sizes[2:]: add(srd(*q))
            add(gu, srd(rGU, pG, 512 * 3584)[2:], tile_setup())
            if c.wo_late == -1: add(salu("s_lshr_b32", sT[1], sWQ, 2), set_m0(sT[1], TL, "tl"), buf_dma(vTL, rD, tag="tl"))
        else:
            add(roles)
            add(salu("s_lshl_b32", sT[0], sRB, 1), salu("s_add_u32", sT[0], sT[0], sJ), salu("s_sub_u32", sT[0], sT[0], 2),
                salu("s_lshl2_add_u32", sT[1], sT[0], sW), salu("s_mul_i32", sT[1], sT[1], 4 * 3072), salu("s_lshl_b32", sT[2], sGQ, 8), salu("s_add_u32", sT[1], sT[1], sT[2]),
                valu("v_and_b32", t2, 3, t0), valu("v_mul_u32_u24", t2, 3072, t2), valu("v_and_b32", t3, 1, t1), valu("v_lshl_add_u32", t2, t3, 7, t2),
                valu("v_add_u32", vTCH[3], sT[1], t2), valu("v_bfe_u32", t2, t1, 1, 1), valu("v_add_u32", t2, 1, t2), valu("v_lshl_add_u32", vTCH[1], t2, 10, vTCH[3]),
                salu("s_and_b32", sT[2], sW, 1), salu("s_lshl1_add_u32", sT[1], sT[0], sT[2]), salu("s_mul_i32", sT[1], sT[1], 8 * 3584),
                salu("s_mul_i32", sT[2], sGQ, 7 * 128), salu("s_add_u32", sT[1], sT[1], sT[2]),
                valu("v_mul_u32_u24", t2, 3584, t0), valu("v_add_u32", t2, sT[1], t2), valu("v_lshl_add_u32", vTCH[0], t3, 7, t2))
            if c.tlin:
                add(salu("s_sub_u32", sT[2], sWG, 128), salu("s_lshl2_add_u32", sT[3], sT[2], sW), salu("s_mul_i32", sCNT, sT[3], 3072),
                    valu("v_min_u32", vTCH[1], 23, vLane), valu("v_lshl_add_u32", vTCH[1], vTCH[1], 7, sCNT),
                    salu("s_mul_i32", sCNT, sT[3], 3584), valu("v_min_u32", vTCH[4], 27, vLane), valu("v_lshl_add_u32", vTCH[4], vTCH[4], 7, sCNT),
                    salu("s_and_b32", sT[3], sW, 1), salu("s_lshl1_add_u32", sT[3], sT[2], sT[3]), salu("s_mul_i32", sT[3], sT[3], 7168),
                    valu("v_min_u32", vTCH[0], 55, vLane), valu("v_lshl_add_u32", vTCH[0], vTCH[0], 7, sT[3]))
            add(srd(*sizes[3])[2:], srd(rGU, pG, 512 * 3584)[2:])
            add(self.stamp(256), raw("s_waitcnt lgkmcnt(0)", "waitcnt"), self.stamp(256))
            if c.c_delay:
                add(salu("s_mov_b32", sT[3], sT[1]), [self.dma_setup(ch) for ch in range(3)], salu("s_mov_b32", sT[1], sT[3]))
            if c.tlin == 2: add(srd(rD, pD, 1792 * 1024), self.touch(vTCH[4], rD))
            add(srd(*sizes[3])[:2], self.touch(vTCH[1], rQKV), gu, self.touch(vTCH[0], rGU), self.stamp(256))
            add(valu("v_and_b32", t3, 3, t1), valu("v_add_u32", t3, 2, t3), valu("v_lshl_add_u32", vTCH[2], t3, 7, t2),
                valu("v_bfe_u32", t2, vLane, 2, 3), valu("v_mul_u32_u24", t2, 3584, t2), valu("v_bfe_u32", t3, vLane, 4, 1), valu("v_xor_b32", t3, t3, vLane), valu("v_and_b32", t3, 3, t3),
                valu("v_lshl_add_u32", t2, t3, 4, t2),
                valu("v_lshrrev_b32", t3, 5, vLane), valu("v_lshl_add_u32", t2, t3, 6, t2), salu("s_add_u32", sT[1], sT[1], 768), valu("v_add_u32", vPL, sT[1], t2),
                buf_load("buffer_load_dwordx4", p6, vPL, rGU),
                salu("s_lshr_b32", sT[1], sT[0], 3), salu("s_lshl_b32", sT[1], sT[1], 14), salu("s_and_b32", sT[2], sT[0], 7), salu("s_lshl_b32", sT[2], sT[2], 10),
                salu("s_add_u32", sT[1], sT[1], sT[2]), salu("s_and_b32", sT[2], sW, 1), salu("s_lshl_b32", sT[2], sT[2], 9), salu("s_add_u32", sT[1], sT[1], sT[2]),
                salu("s_lshr_b32", sT[2], sW, 1), salu("s_lshl_b32", sT[2], sT[2], 13), salu("s_add_u32", sT[1], sT[1], sT[2]),
                salu("s_lshl_b32", sT[2], sGQ, 17), salu("s_add_u32", sT[1], sT[1], sT[2]), salu("s_add_u32", sT[1], sT[1], P6_OFF),
                valu("v_and_b32", t2, 31, vLane), valu("v_lshlrev_b32", t2, 4, t2), valu("v_lshl_add_u32", t2, t3, 16, t2), valu("v_add_u32", vPS, sT[1], t2),
                )
            add(tile_setup())
            tdma = [set_m0(sWQ, TL, "tl"), salu("s_mov_b32", sTHR, 7168)]
            for i in range(4):
                tdma += [buf_dma(vTL, rD, sTHR if i else 0, 1024 * i, tag="tl")]
                if 0 < i < 3: tdma += [salu("s_add_u32", sTHR, sTHR, 7168)]
            self.rest = [] if (c.tlin or c.b_rest is not None) else self.touch(vTCH[3], rQKV) + self.touch(vTCH[2], rGU)
            self.tdma = tdma
            if c.c_tile == -1: add(tdma)
            if c.q_early and self.rest: add(self.rest.pop(0))
            if c.c_rest == -1: add(self.rest)
            add(srd(*sizes[0])[2:])
            for q in sizes[1:3] + sizes[4:]: add(srd(*q))
        add(valu("v_mov_b32", vFV, 1))
        sa, sb = (8 * 3072, 8 * 3584) if B else (8 * 3584, 16 * 3584)
        for i in (1, 2, 3):
            add(salu("s_mov_b32", sOA[i], i * (sa - 1024)), salu("s_mov_b32", sOB[i], i * (sb - 1024)))
        if B or not c.c_delay: add(self.dma_setup(0))
        if B:
            for _ in range(c.w_0): add(self.dma_slab())
            add(salu("s_lshr_b32", sT[0], sWG, 1), salu("s_and_b32", sT[3], sWG, 1),
                salu("s_lshl_b32", sT[1], sT[0], 15), salu("s_lshl_b32", sT[2], sW, 13), salu("s_add_u32", sT[1], sT[1], sT[2]), salu("s_lshl_b32", sT[2], sT[3], 10),
                salu("s_add_u32", sT[1], sT[1], sT[2]), salu("s_add_u32", sT[1], sT[1], XN_OFF))
            if c.p0 == 1:
                add(valu("v_lshrrev_b32", t2, 4, vLane), valu("v_and_b32", t3, 2, t2), valu("v_xor_b32", t3, t3, t1), valu("v_lshlrev_b32", t3, 4, t3), valu("v_and_b32", vST, 15, vLane),
                    valu("v_lshl_add_u32", t3, vST, 7, t3), valu("v_and_b32", t2, 1, t2), valu("v_lshl_add_u32", t3, t2, 3, t3),
                    salu("s_add_u32", sT[2], sWQ, XL), valu("v_add_u32", vXR, sT[2], t3), valu("v_xor_b32", vXL, 64, vXR), valu("v_xor_b32", vPL, 16, vXR), valu("v_xor_b32", vPS, 16, vXL),
                    valu("v_lshl_add_u32", vXS, vLane, 4, sT[1]),
                    valu("v_lshlrev_b32", vST, 5, vST), valu("v_add_u32", vST, SPARE, vST),
                    salu("s_lshl_b32", sT[2], sW, 2), valu("v_lshrrev_b32", t3, 5, vLane), valu("v_lshl_add_u32", t3, t3, 4, sT[2]), valu("v_add_u32", vRS, t3, vST))
            else:
                add(valu("v_lshlrev_b32", t3, 4, vST), valu("v_lshl_add_u32", t3, vXL, 9, t3), valu("v_add_u32", vXS, sT[1], t3))
            add(
                salu("s_lshl_b32", sT[1], sT[0], 7), salu("s_lshl_b32", sT[2], sT[3], 2), salu("s_add_u32", sT[1], sT[1], sT[2]), salu("s_add_u32", sT[1], sT[1], FLAGA_OFF),
                salu("s_cmp_eq_u32", None, sW, 0), salu("s_cselect_b32", sT[1], sT[1], OOB),
                valu("v_mov_b32", t2, OOB), valu("v_mov_b32", t3, sT[1]), valu("v_cmp_eq_u32", "vcc", 0, vLane), valu("v_cndmask_b32", vF0, t2, t3, "vcc"),
                valu("v_mov_b32", one, "0x3f803f80"), valu("v_mov_b32", sm, 0), valu("v_mov_b32", sq, 0), salu("s_mov_b32", sXS, 4096))
        add(salu("s_lshl_b32", sT[1], sRB, 2), salu("s_add_u32", sT[1], sT[1], sW), salu("s_lshl_b32", sT[2], sT[1], 7), salu("s_add_u32", sT[2], sT[2], FLAGA_OFF),
            valu("v_and_b32", vPOLL, 1, vLane), valu("v_lshlrev_b32", vPOLL, 2, vPOLL), valu("v_add_u32", vP0, sT[2], vPOLL),
            salu("s_lshl_b32", sT[1], sT[1], 15), salu("s_add_u32", sT[1], sT[1], XN_OFF), valu("v_lshl_add_u32", vXN, vLane, 4, sT[1]),
            salu("s_cmp_eq_u32", None, sW, 0), salu("s_cselect_b32", sT[1], 0, OOB), salu("s_cselect_b32", sT[3], 0 if c.nodbg else 1, 0),
            valu("v_lshl_add_u32", vDB, t1, 2, sT[1]), valu("v_mov_b32", vTLB, sT[3]))
        if not B and not c.c_delay: add(self.dma_setup(1), self.dma_setup(2))
        if B and not c.b_lean: add(self.dma_setup(1), self.dma_setup(2))
        add(self.w2_setup())
        if c.setup_early or not B: self.misc_setup()
        add(self.stamp(65 + 256))
        if B:
            add(wait(vm="x"))
            if c.p0 == 1: add([ds_read("ds_read_b64", xr.sub(4 * i + 2 * u, 2), ((vXR, vPL), (vXL, vPS))[i & 1][u], 2048 * (i >> 1)) for i in range(4) for u in range(2)])
            else: add([ds_read("ds_read_b128", xr.sub(4 * i, 4), vXR, 256 * i) for i in range(4)])
            if c.sig_early: add(wait(vm="reset"), buf_store("buffer_store_dword", vFV, vSG, rDBG, flags="sc1"))
            add(self.stamp(64 + 256))
            for r in range(16): add(valu("v_dot2c_f32_bf16", sm, xr[r], one, rmw=True), valu("v_dot2c_f32_bf16", sq, xr[r], xr[r], rmw=True))
            add([valu("v_lshlrev_b32", lo[i], 16, xr[i]) for i in range(3)])
            add(valu("v_permlane32_swap_b32", sm, sq, rmw=True, wr2=sq), valu("v_add_f32", sm, sm, sq), valu("v_mov_b32", sq, sm))
            add([valu("v_lshlrev_b32", lo[i], 16, xr[i]) for i in (3, 4)])
            add(valu("v_permlane16_swap_b32", sm, sq, rmw=True, wr2=sq), valu("v_add_f32", sm, sm, sq))
            sig = [] if c.sig_early else [wait(vm="reset"), buf_store("buffer_store_dword", vFV, vSG, rDBG, flags="sc1")]
            shl = lambda a, b: [valu("v_lshlrev_b32", lo[i], 16, xr[i]) for i in range(a, b)]
            if c.p0 == 1:
                add(ds_write("ds_write_b32", vRS, sm, tag="st"), sig, shl(5, 16))
                add(wait(lg="st"), self.stamp(256), barrier(), self.stamp(256))
                add([ds_read("ds_read_b128", part.sub(4 * i, 4), vST, 16 * i) for i in range(2)])
                add([valu("v_and_b32", xr[i], "0xffff0000", xr[i]) for i in range(16)])
                add(valu("v_pk_add_f32", part.sub(0, 2), part.sub(0, 2), part.sub(2, 2)), valu("v_pk_add_f32", part.sub(4, 2), part.sub(4, 2), part.sub(6, 2)),
                    valu("v_add_f32", sm, part[0], part[1]), valu("v_add_f32", sq, part[4], part[5]))
            else:
                add(shl(5, 7), valu("v_add_f32_dpp", sm, sm, sm, extra="row_ror:8 row_mask:0xf bank_mask:0xf"),
                    shl(7, 9), valu("v_add_f32_dpp", sm, sm, sm, extra="row_ror:4 row_mask:0xf bank_mask:0xf"), valu("v_mov_b32", sq, sm),
                    shl(9, 11), valu("v_permlane32_swap_b32", sm, sq, rmw=True, wr2=sq), sig, shl(11, 16), self.stamp(256), self.stamp(256))
                add([valu("v_and_b32", xr[i], "0xffff0000", xr[i]) for i in range(16)])
            add(
                valu("v_mul_f32", sm, f32(1 / 512), sm), valu("v_mul_f32", sq, f32(1 / 512), sq),
                valu("v_fma_f32", sq, f"-{sm}", sm, sq), valu("v_max_f32", sq, 0, sq),
                valu("v_cvt_pk_bf16_f32", sq, sq, sm),
                valu("v_and_b32", sm, "0xffff0000", sq), valu("v_lshlrev_b32", sq, 16, sq),
                valu("v_add_f32", sq, f32(1e-5), sq), valu("v_cvt_pk_bf16_f32", sq, sq, sq), valu("v_lshlrev_b32", sq, 16, sq),
                valu("v_sqrt_f32", sq, sq), valu("v_cvt_pk_bf16_f32", sq, sq, sq), valu("v_lshlrev_b32", sq, 16, sq),
                valu("v_rcp_f32", rb[1], sq), valu("v_mul_f32", rb[0], f"-{sm}", rb[1]))
            for h in range(4):
                for r in (lo, xr):
                    add([valu("v_pk_fma_f32", r.sub(i, 2), r.sub(i, 2), rb, rb, extra="op_sel:[0,1,0] op_sel_hi:[1,1,0]") for i in (4 * h, 4 * h + 2)])
                add([valu("v_cvt_pk_bf16_f32", xr[i], lo[i], xr[i]) for i in range(4 * h, 4 * h + 4)])
                if c.p0 == 1: add(buf_store("buffer_store_dwordx4", xr.sub(4 * h, 4), vXS, rWS, sXS if h >> 1 else 0, 2048 * (h & 1), flags="sc1"))
                else: add(salu("s_movk_i32", sXS, 8192 * h), buf_store("buffer_store_dwordx4", xr.sub(4 * h, 4), vXS, rWS, sXS, flags="sc1"))
            if c.rlate: add(buf_store("buffer_store_dwordx4", z, vR2, rWS, flags="sc1"))
            if c.dpos == 0: add(self.poll_issue(vDB, rDBG))
            add(self.stamp(64))
            if c.dpos != 2:
                for _ in range(c.w_a): add(self.dma_slab())
            if c.b_rest is not None:
                add(salu("s_lshl1_add_u32", sT[0], sRB, sJ), salu("s_lshl2_add_u32", sT[1], sT[0], sW), salu("s_mul_i32", sT[1], sT[1], 4 * 3072), salu("s_lshl_b32", sT[2], sGQ, 8),
                    salu("s_add_u32", sT[1], sT[1], sT[2]), valu("v_and_b32", t2, 3, t0), valu("v_mul_u32_u24", t2, 3072, t2), valu("v_and_b32", t3, 1, t1),
                    valu("v_lshl_add_u32", t2, t3, 7, t2), valu("v_add_u32", vTCH[3], sT[1], t2),
                    salu("s_and_b32", sT[2], sW, 1), salu("s_lshl1_add_u32", sT[1], sT[0], sT[2]), salu("s_mul_i32", sT[1], sT[1], 8 * 3584),
                    salu("s_mul_i32", sT[2], sGQ, 7 * 128), salu("s_add_u32", sT[1], sT[1], sT[2]), salu("s_add_u32", sT[1], sT[1], 256),
                    valu("v_mul_u32_u24", t2, 3584, t0), valu("v_add_u32", t2, sT[1], t2), valu("v_and_b32", t3, 3, t1), valu("v_lshl_add_u32", vTCH[2], t3, 7, t2))
                self.rest = self.touch(vTCH[3], rQKV) + self.touch(vTCH[2], rGU)
            if c.b_lean: add(self.dma_setup(1), self.dma_setup(2))
            self.mid = self.poll_issue(vDB, rDBG) if c.dpos == 3 else []
            if not c.setup_early: self.misc_setup()
            if c.dpos in (1, 2): add(self.poll_issue(vDB, rDBG))
            if c.dpos == 2:
                for _ in range(c.w_a): add(self.dma_slab())
            pre, rd, self.ts = tile_store()
            add(pre)
            add(self.poll_check(vDB, rDBG, vTLB))
            add(self.stamp(64))
            add(barrier(), self.stamp(64), buf_store("buffer_store_dword", vFV, vF0, rWS, flags="sc1"))
            wo = [salu("s_lshr_b32", sT[1], sWQ, 2), set_m0(sT[1], TL, "tl"), buf_dma(vTL, rD, tag="tl")]
            if c.wo_late == 0: add(wo)
            for _ in range(c.w_b): add(self.dma_slab())
        else:
            pre, rd, self.ts = tile_store()
            for _ in range(c.w_c0): add(self.dma_slab())
            if c.c_tile == -1: add(pre)
            else:
                assert c.ts_pos > c.c_tile and c.ts_pos >= 0
                add(pre[:14]); self.ts = pre[14:] + self.ts
            if c.w_c0: add(self.stamp(64 + 256), self.stamp(256), self.stamp(64 + 256))
            else: add(self.stamp(64 + 256), self.dma_slab(), self.stamp(256), wait(vm="w0"), self.stamp(64 + 256))
            add(buf_store("buffer_store_dwordx4", p6, vPS, rWS, flags="sc1"))
            if c.ts_pos < 0: add(self.ts); self.ts = []
            add(self.poll_issue(vDB, rDBG))
            while self.nslab < c.w_c: add(self.dma_slab())
            if c.c_tile == -2: add(tdma)
            if c.c_rest == -2: add(self.rest)
            add(self.poll_check(vDB, rDBG, vTLB), self.stamp(64), barrier(), self.stamp(64))
        add(self.poll_issue(vP0, rWS), wait_regs(vPV), self.stamp(64), self.poll_check(vP0, rWS, 1))
        add(self.stamp(65 + 256))
        self.nx = 0
        for _ in range(c.nx0 // 2): add(self.x_load())
        add(wait(vm=["w0", "tl"] if B else "w0"), barrier(), rd)
        F = self.frag_list()
        for k in range(c.LA):
            add(self.frag_reads(k, F[k]))
            if k % 2 and self.nx < c.nx0: add(self.x_load())
        while self.nx < c.nx0: add(self.x_load())
    def x_load(self):
        j = self.nx; self.nx += 1
        o = []
        if j % 4 == 0: o += [salu("s_mov_b32", sXS, j * 1024)]
        return o + [buf_load("buffer_load_dwordx4", X.sub(4 * j, 4), vXN, rWS, 0 if self.cfg.dbg & 8 else sXS, (j % 4) * 1024, flags="sc1")]

    def misc_setup(self):
        add = self.add
        t0, t1, t2, t3 = T[0], T[1], T[2], T[3]
        TR = self.TR
        add(valu("v_bfe_u32", t0, vLane, 2, 3), valu("v_and_b32", t1, 32, vLane), valu("v_lshrrev_b32", t1, 1, t1), valu("v_add_u32", t1, t1, t0),
            valu("v_and_b32", t2, 1, vLane), valu("v_lshlrev_b32", t2, 3, t2), valu("v_and_b32", t3, 2, vLane),
            valu("v_lshl_add_u32", TR[0], t1, 7, t2), valu("v_lshl_add_u32", TR[0], t3, 5, TR[0]), valu("v_lshrrev_b32", t0, 1, t0), valu("v_lshl_add_u32", TR[0], t0, 4, TR[0]),
            [valu("v_xor_b32", TR[i], 16 * i, TR[0]) for i in (1, 2, 3)])
        if not self.B:
            add(valu("v_lshl_add_u32", TR[4], t1, 6, t2), valu("v_lshl_add_u32", TR[4], t3, 4, TR[4]), valu("v_and_or_b32", TR[4], vLane, 16, TR[4]), valu("v_xor_b32", TR[5], 16, TR[4]))
        self.win = [0] * 6
        for ch in range(3):
            if not (self.B and ch == 0): add(self.set_hu(ch))
        if self.B: add(self.att_setup())
        add(self.mid)
        add(salu("s_lshl_b32", sT[1], sRB, 2), salu("s_add_u32", sT[1], sT[1], sW), salu("s_mul_i32", sT[2], sT[1], HSTR),
            valu("v_and_b32", t0, 16, vLane), valu("v_lshlrev_b32", t0, 1, t0), valu("v_and_or_b32", t0, vLane, 15, t0), valu("v_lshl_add_u32", t0, t0, 4, sT[2]),
            valu("v_and_b32", t1, 32, vLane), valu("v_lshl_add_u32", vHST, t1, 6, t0))
        if not self.B: add(valu("v_lshl_add_u32", vSCR, t1, 5, t0))
        if self.cfg.dbg & 1: add(valu("v_mov_b32", vHST, OOB))
        add(salu("s_lshr_b32", sT[1], sT[1], 1), salu("s_lshl_b32", sT[1], sT[1], 2), salu("s_add_u32", sT[1], sT[1], sGQ), salu("s_lshl_b32", sT[1], sT[1], 10),
            salu("s_and_b32", sT[2], sW, 1), salu("s_lshl_b32", sT[3], sJ, 1), salu("s_add_u32", sT[2], sT[2], sT[3]), salu("s_lshl_b32", sT[2], sT[2], 2),
            salu("s_add_u32", sT[1], sT[1], sT[2]), salu("s_add_u32", sT[1], sT[1], FLAG_OFF),
            valu("v_mov_b32", t0, OOB), valu("v_mov_b32", t1, sT[1]), valu("v_cmp_eq_u32", "vcc", 0, vLane), valu("v_cndmask_b32", vFLG, t0, t1, "vcc"))
        if self.B: add(valu("v_add_u32", vFH, sH3, vFLG))
        add(salu("s_lshl_b32", sT[1], sTB2, 1), salu("s_lshr_b32", sT[2], sW, 1), salu("s_add_u32", sT[1], sT[1], sT[2]), salu("s_mul_i32", sP2h, sT[1], HSTR),
            salu("s_xor_b32", sT[2], sT[1], 1), salu("s_mul_i32", sHS, sT[2], HSTR),
            salu("s_lshl_b32", sT[1], sT[1], 5),
            salu("s_and_b32", sT[2], sT[1], 1023), salu("s_lshl_b32", sT[2], sT[2], 11), salu("s_lshr_b32", sT[1], sT[1], 10), salu("s_lshl_b32", sT[1], sT[1], 10),
            salu("s_add_u32", sT[1], sT[1], sT[2]), salu("s_lshl_b32", sT[2], sCB2, 7), salu("s_add_u32", sT[1], sT[1], sT[2]),
            salu("s_and_b32", sT[2], sW, 1), salu("s_lshl_b32", sT[2], sT[2], 6), salu("s_add_u32", sP2x, sT[1], sT[2]),
            salu("s_lshl_b32", sT[1], sTB2, 2), salu("s_add_u32", sT[1], sT[1], sW), salu("s_lshl_b32", sT[1], sT[1], 10), salu("s_add_u32", sP2f, sT[1], FLAG_OFF))
        add(salu("s_mul_i32", sT[1], sCB2, 72 * 4096), salu("s_add_u32", sT[1], sT[1], WT_OFF), salu("s_lshl_b32", sT[2], sT[2], 4),
            salu("s_add_u32", sT[3], sT[1], sT[2]), valu("v_lshl_add_u32", vW[0], vLane, 4, sT[3]),
            salu("s_sub_u32", sT[3], sT[1], sT[2]), valu("v_lshl_add_u32", vW[1], vLane, 4, sT[3]), valu("v_lshl_add_u32", vWB, vLane, 4, sWQ),
            salu("s_lshl_b32", sT[1], sCB2, 8), salu("s_add_u32", sT[1], sT[1], FLAGA_OFF + 96 * 128), salu("s_lshl_b32", sT[2], sGQ, 9), salu("s_add_u32", sT[2], sT[2], FLAGA_OFF + 64 * 128),
            salu("s_lshr_b32", sT[3], sCB2, 1), salu("s_xor_b32", sT[3], sT[3], self.cfg.tx), salu("s_lshl_b32", sT[3], sT[3], 9), salu("s_add_u32", sT[3], sT[3], FLAGA_OFF + 80 * 128),
            salu("s_cmp_eq_u32", None, sW, 0), salu("s_cselect_b32", sT[1], sT[1], OOB), salu("s_cselect_b32", sT[2], sT[2], OOB), salu("s_cselect_b32", sT[3], sT[3], OOB),
            salu("s_cselect_b32", sW0, 1, 0),
            valu("v_and_b32", t0, 24, vLane), valu("v_lshlrev_b32", t0, 2, t0), valu("v_and_or_b32", t0, vLane, 7, t0), valu("v_and_b32", t1, 63, t0),
            valu("v_lshl_add_u32", t1, t1, 2, sT[1]), valu("v_lshl_add_u32", vP2, t0, 2, sT[3]),
            valu("v_cmp_lt_u32", "vcc", 31, vLane), valu("v_cndmask_b32", vP2, vP2, t1, "vcc"))
        if not self.B: add(valu("v_lshl_add_u32", vP6, t0, 2, sT[2]))
        add(salu("s_xor_b32", sU[0], sTB2, sCB2), salu("s_and_b32", sU[0], sU[0], 3 if self.cfg.rot else 0), salu("s_lshl_b32", sU[0], sU[0], 11),
            [salu("s_xor_b32", sU[t], sU[0], t << 11) for t in (1, 2, 3)], [salu("s_and_b32", sUh[t], sU[t], 1 << 11) for t in (0, 1)])

    def chunk_of(self, n): return 0 if n < 8 else (1 if n < 12 else 2)
    def dma_setup(self, ch):
        t0, t1 = T[0], T[1]
        o = []
        B = self.B
        half = (not B) and ch == 1
        stride = 3072 if (B and ch < 2) else 3584
        if half:
            return [salu("s_lshl_b32", sT[1], sGQ, 1), salu("s_add_u32", sT[1], sT[1], sJ), salu("s_lshl_b32", sT[1], sT[1], 16), salu("s_add_u32", sT[1], sT[1], sWQ),
                    salu("s_add_u32", sT[1], sT[1], P6_OFF - 2 * 65536), valu("v_lshl_add_u32", vDMA1, vLane, 4, sT[1])]
        else:
            o += [valu("v_lshrrev_b32", t0, 4, vLane), valu("v_and_b32", t1, 7, vLane), valu("v_xor_b32", t1, t0, t1), valu("v_lshrrev_b32", t0, 3, vLane)]
        o += [valu("v_mul_u32_u24", t0, stride, t0), valu("v_lshl_add_u32", t0, t1, 4, t0)]
        a, b = sT[1], sT[2]
        if B and ch == 0:
            o += [salu("s_lshl_b32", a, sGQ, 1), salu("s_add_u32", a, a, sJ), salu("s_lshl_b32", a, a, 7), salu("s_lshr_b32", b, sW, 1),
                  salu("s_add_u32", b, b, 1), salu("s_lshl_b32", b, b, 10), salu("s_add_u32", a, a, b), salu("s_and_b32", b, sW, 1),
                  salu("s_mul_i32", b, b, 32 * stride), salu("s_add_u32", a, a, b)]
        elif B and ch == 1:
            o += [salu("s_lshl_b32", a, sGQ, 1), salu("s_add_u32", a, a, sJ), salu("s_lshl_b32", a, a, 7), salu("s_mul_i32", b, sW, 32 * stride),
                  salu("s_add_u32", a, a, b)]
        else:
            if half: o += [salu("s_lshl_b32", b, sJ, 6), salu("s_add_u32", b, b, 6 * 128 - 128)]
            else: o += [salu("s_lshl_b32", b, sJ, 7), salu("s_sub_u32" if ch == 0 else "s_add_u32", b, b, 256)]
            o += [salu("s_mul_i32", a, sGQ, 7 * 128), salu("s_add_u32", a, a, b), salu("s_and_b32", b, sW, 1),
                  salu("s_mul_i32", b, b, (64 if half else 32) * stride), salu("s_add_u32", a, a, b)]
        o += [valu("v_add_u32", (vDMA0, vDMA1, vDMA2)[ch], a, t0)]
        return o
    def dma_slab(self):
        n = self.nslab; self.nslab += 1
        ch = self.chunk_of(n)
        B = self.B
        vd = (vDMA0, vDMA1, vDMA2)[ch]
        srd = rQKV if (B and ch < 2) else rGU
        so = (sOA if ch < 2 else sOB) if B else (sOB if ch == 1 else sOA)
        stride = 3072 if (B and ch < 2) else 3584
        o = [set_m0(sWQ, slab_slot(n) * SLOT, f"w{n}")]
        if ch == 1 and not B:
            if n > 8: o += [valu("v_add_u32", vd, 16384, vd)]
            return o + [buf_dma(vd, rWS, 0, i * 1024, flags="sc1", tag=f"w{n}") for i in range(4)]
        if n not in (0, 8, 12) and not self.cfg.dbg & 16: o += [valu("v_add_u32", vd, (128 if ch == 1 else 64) * stride, vd)]
        o += [buf_dma(vd, srd, so[i], i * 1024, flags="sc1" if self.cfg.dbg & 16 else self.cfg.wflags, tag=f"w{n}") for i in range(4)]
        return o
    def frag_list(self):
        L = []
        for n in range(20):
            ch = self.chunk_of(n)
            base = slab_slot(n) * SLOT
            if ch != 1:
                n0 = 0 if ch == 0 else 12
                for jj in range(2):
                    for cc in range(4):
                        for im in range(2):
                            L.append(([ACC1.sub(16 * im + 32 * th + 4 * cc, 4) for th in range(2)], 4 * (n - n0) + 2 * jj, n, base + im * 8192 + jj * 4096, cc, 1024))
            else:
                for jj in range(4):
                    for cc in range(4):
                        if self.B: L.append(([ACC2.sub(16 * th + 4 * cc, 4) for th in range(2)], 8 * (n - 8) + 2 * jj, n, base + jj * 4096, cc, 1024))
                        else: L.append(([ACC2.sub(16 * (cc & 1) + 8 * th + 4 * (cc >> 1), 4) for th in range(2)], 8 * (n - 8) + 2 * jj, n, base + (cc & 1) * 8192 + jj * 2048, 4 + (cc >> 1), 512))
        assert not self.cfg.nspl
        if self.cfg.chain:
            M = []
            for n in range(20):
                f = L[16 * n:16 * n + 16]
                h = 4 if self.chunk_of(n) == 1 else 8
                for a in range(0, 16, 2 * h):
                    for i in range(h): M += [f[a + i], f[a + h + i]]
            L = M
        return L
    def window(self, wins, which, reg, off, span):
        o = []
        if not (wins[which] <= off and off + span <= wins[which] + 65536):
            w = off // SLOT * SLOT
            d = w - wins[which]
            o += [valu("v_add_u32" if d > 0 else "v_subrev_u32", reg, abs(d), reg)]
            wins[which] = w
        return o, off - wins[which]
    def frag_reads(self, k, f):
        acc, step, n, off, which, ustep = f
        b = self.TR[which]
        o, imm = self.window(self.win, which, b, off, 2048)
        dst = WF.sub(4 * (k % self.cfg.NB), 4)
        o += [ds_read("ds_read_b64_tr_b16", dst.sub(0, 2), b, imm, tag=f"f{k}"), ds_read("ds_read_b64_tr_b16", dst.sub(2, 2), b, imm + ustep, tag=f"f{k}")]
        return o
    def ffn_epi(self, G, U, ch, kst, tag, pk=False):
        o = []
        for b in range(4):
            t = [T[4 + i] for i in range(4)]
            g = [G[4 * b + i] for i in range(4)]; u = [U[4 * b + i] for i in range(4)]
            if pk:
                t2 = [T.sub(4, 2), T.sub(6, 2)]; g2 = [G.sub(4 * b, 2), G.sub(4 * b + 2, 2)]; u2 = [U.sub(4 * b, 2), U.sub(4 * b + 2, 2)]
                o += [valu("v_pk_mul_f32", t2[i], g2[i], T.sub(0, 2)) for i in range(2)]
                o += [valu("v_exp_f32", t[i], t[i]) for i in range(4)]
                o += [valu("v_pk_mul_f32", u2[i], g2[i], u2[i]) for i in range(2)]
                o += [valu("v_pk_add_f32", t2[i], t2[i], T.sub(2, 2)) for i in range(2)]
                o += [valu("v_rcp_f32", t[i], t[i]) for i in range(4)]
                o += [valu("v_pk_mul_f32", u2[i], u2[i], t2[i]) for i in range(2)]
            else:
                o += [valu("v_mul_f32", t[i], sNL if self.cfg.sconst else f32(-LOG2E), g[i]) for i in range(4)]
                for i in range(4): o += [valu("v_exp_f32", t[i], t[i]), valu("v_mul_f32", u[i], g[i], u[i])]
                o += [valu("v_add_f32", t[i], "1.0", t[i]) for i in range(4)]
                o += [valu("v_rcp_f32", t[i], t[i]) for i in range(4)]
                o += [valu("v_mul_f32", u[i], u[i], t[i]) for i in range(4)]
            o += [valu("v_cvt_pk_bf16_f32", G[2 * b + i], u[2 * i], u[2 * i + 1]) for i in range(2)]
            if b & 1: o += [buf_store("buffer_store_dwordx4", G.sub(2 * (b - 1), 4), vSCR if ch == 1 else vHST, rWS, sHu[ch], kst + (b >> 1) * (256 if ch == 1 else 1024), flags=self.cfg.hflags, tag=tag)]
        return o
    def set_hu(self, ch):
        a = sT[1]
        if self.B and ch == 1:
            return [salu("s_lshl_b32", a, sGQ, 1), salu("s_add_u32", a, a, sJ), salu("s_lshl_b32", a, a, 12), salu("s_add_u32", sHu[ch], a, 112 * 1024)]
        o = [salu("s_mul_i32", sHu[ch], sGQ, 28 * 1024)]
        if ch == 1: o += [salu("s_lshl_b32", a, sJ, 11), salu("s_add_u32", a, a, 6 * 4096 - 4096)]
        else: o += [salu("s_lshl_b32", a, sJ, 12), salu("s_sub_u32" if ch == 0 else "s_add_u32", a, a, 8192)]
        return o + [salu("s_add_u32", sHu[ch], sHu[ch], a)]

    def phase1(self):
        c, add, B = self.cfg, self.add, self.B
        F = self.frag_list()
        NM = len(F)
        assert not c.chain or (c.wstep % 2 == 0 and c.NB >= c.LA + 2)
        gaps = [[] for _ in range(NM)]
        tail = [[] for _ in range(NM)]
        load = [0] * NM
        def put(k, ins, last=False):
            (tail if last else gaps)[k] += ins
            load[k] += sum(cyc(i) for i in ins)
        def spread(ins, k0, k1):
            tot = sum(cyc(i) for i in ins)
            lo, hi = 0.0, 1000.0
            for _ in range(40):
                mid = (lo + hi) / 2
                if sum(max(0, mid - load[k]) for k in range(k0, k1)) >= tot: hi = mid
                else: lo = mid
            cap, acc = [], 0.0
            for k in range(k0, k1):
                acc += max(0, hi - load[k]); cap.append(acc)
            k, used = 0, 0.0
            for i in ins:
                while k < len(cap) - 1 and used + cyc(i) / 2 > cap[k] and i.kind != "branch": k += 1
                put(k0 + k, [i]); used += cyc(i)
        bar_gap = {n: 16 * n - c.LA - 1 for n in range(1, 20)}
        bar_gap[0], bar_gap[20] = -1, NM
        self.bar_extra = {n: [] for n in range(1, 21)}
        need = {n: max(f[2] for f in F[:min(NM, bar_gap[n + 1] + c.LA + 1)]) for n in range(20)}
        skip = lambda n: c.bar2 and c.bar2 <= n < 19 and (n - c.bar2) % 2 == 1
        for n in range(18, 0, -1):
            if skip(n + 1): need[n] = need[n + 1]
        for n in (c.pw_per, c.p6_per, c.f2_bar): assert not skip(n)
        lastx = lambda i: max(k for k, f in enumerate(F) if f[1] // 4 == i)
        plan = dict((int(p.split(":")[0]), p.split(":")[1].split(".")) for p in (c.planB if B else c.planC).split(",") if p)
        self.pool = list(ABUF) + VBUF[:5] + ([] if B else VBUF[5:7])
        put(bar_gap[c.pw_per] - 1 - c.pw_lead, self.poll_issue(vP2, rWS))
        put(bar_gap[c.pw_per] - 1, self.poll_check(vP2, rWS, sW0))
        if not B:
            assert bar_gap[c.p6_per] <= bar_gap[c.pw_per] - 1 - c.pw_lead
            put(bar_gap[c.p6_per] - 1 - c.pw_lead, self.poll_issue(vP6, rWS))
            put(bar_gap[c.p6_per] - 1, self.poll_check(vP6, rWS, sW0))
        put(bar_gap[c.f2_bar] + 1, [buf_store("buffer_store_dword", vFV, vF2, rWS, 0, 2048, flags="sc1")])
        for n in range(20):
            k = bar_gap[n]
            if n and not skip(n): load[k] += 14
            if n == 19 and B: self.pool += VBUF[5:]
            if n == 9 and not B: self.pool += VBUF[7:]
            ops = list(plan.get(n, []))
            ins = []
            while ops and ops[0] in ("r", "H"):
                ins += self.plan_op(ops.pop(0), n)
            w = []
            nw = 0
            while self.nslab < 20 and self.nslab <= n - (1 if skip(n) else 0) + c.NS - 2 and (B or self.nslab < 8 or n >= c.p6_per) and (self.nslab <= need[min(19, n + 2)] or nw + ops.count("w") < 1 or "w" in ops):
                if nw and "w" in ops: ops.remove("w")
                w += self.dma_slab(); nw += 1
            ops = [x for x in ops if x != "w"]
            assert self.nslab > need[min(19, n + 2)], n
            if n == max(c.ts_pos, 0): ins += self.ts
            while c.xfree and self.xf_n < 5 and lastx(self.xf_n) <= k: self.pool += [A(16 * self.xf_n, 16)]; self.xf_n += 1
            nxl = min(32 - self.nx, c.xr[n] if n < len(c.xr) else (c.xrate if n else max(1, c.xrate // 2)))
            for i in w:
                if i.kind == "dma" and nxl: ins += self.x_load(); nxl -= 1
                ins.append(i)
            for _ in range(nxl): ins += self.x_load()
            assert self.nx >= min(32, (bar_gap[n + 1] + 16) // 4 + (3 if c.chain else 1)), n
            if n == c.c_tile and not B: ins += self.tdma
            if n == (c.b_rest if B else c.c_rest): ins += self.rest
            for op in ops: ins += self.plan_op(op, n)
            if ins: spread(ins, k + 1, bar_gap[n + 1])
        if not B:
            ins = self.ffn_epi(ACC1.sub(0, 16), ACC1.sub(16, 16), 0, 0, "st1") + self.ffn_epi(ACC1.sub(32, 16), ACC1.sub(48, 16), 0, 256, "st1")
            spread(ins, 129, 191)
            if not c.one_pa: put(c.g_f1c, self.flag(L_P1, "st1"))
            spread(self.ffn_epi(ACC2.sub(0, 16), ACC2.sub(16, 16), 1, 0, "st2"), 194, c.h2_end)
            put(c.g_f2c, self.flag(L_HALF, "st2"))
        else:
            self.attention(put, spread, bar_gap, load)
        if c.nspl:
            k0 = max(320 - 8 * c.nspl + 2, self.att_end + 7 if B else 0)
            spread(self.ffn_epi(ACC1.sub(0, 16), ACC1.sub(16, 16), 2, 0, "st3"), k0, c.e0_end)
        o = [valu("v_lshl_add_u32", vH[0], vLane, 4, sP2h), valu("v_lshl_add_u32", vH[1], vLane, 4, sHS),
             valu("v_and_b32", vPOLL, 7, vLane), valu("v_lshrrev_b32", vTHR, 2, vPOLL), valu("v_lshl_add_u32", vPOLL, vPOLL, 2, sP2f),
             ]
        if not c.otr: o += [valu("v_and_b32", vXO, 31, vLane), valu("v_lshlrev_b32", vXO, 11, vXO), valu("v_and_or_b32", vXO, vLane, 32, vXO), valu("v_add_u32", vXO, sP2x, vXO)]
        spread(o, *((176, 192) if B else (200, c.g_pa)))
        la = L_HALF if c.one_pa else L_P1
        put(c.g_pa, self.poll_issue(vPOLL, rWS, la))
        assert c.g_pa < bar_gap[c.pa_per] - 1
        put(bar_gap[c.pa_per] - 1, self.poll_check(vPOLL, rWS, vTHR, la))
        self.pa2 = (vPOLL, rWS, vTHR, L_HALF)
        if c.m_pb == -1:
            put(c.g_pa2 - 2, [valu("v_lshlrev_b32", vP2, 7, vTHR), valu("v_sub_u32", vP2, vPOLL, vP2)])
            self.pa2 = (vP2, rWS, 1, L_O)
        if not c.one_pa: put(c.g_pa2, self.poll_issue(self.pa2[0], rWS, self.pa2[3]))
        if c.pa2_epi < 0 and not c.one_pa: put(319, self.poll_check(*self.pa2))
        spread([valu("v_mov_b32", T[0], f32(-LOG2E)), valu("v_mov_b32", T[1], f32(-LOG2E)), valu("v_mov_b32", T[2], "1.0"), valu("v_mov_b32", T[3], "1.0")], 312, 320)
        inv_bar = {v: n for n, v in bar_gap.items() if 1 <= n <= 19}
        for k in range(NM):
            acc, step, n, off, which, us = F[k]
            if k % c.wstep == 0: add(wait(lg=[f"f{i}" for i in range(k, k + c.wstep)]))
            rd = self.frag_reads(k + c.LA, F[k + c.LA]) if k + c.LA < NM else []
            fill = gaps[k]
            tot, u, n1 = sum(cyc(i) for i in fill), 0, 0
            while n1 < len(fill) and (u + cyc(fill[n1]) / 2 <= tot / 2 or fill[n1].kind == "branch"): u += cyc(fill[n1]); n1 += 1
            if 2 * u > tot + 4: r1 = 0 if len(rd) <= 2 else len(rd) - 1
            elif 2 * u < tot - 4: r1 = len(rd)
            else: r1 = max(0, len(rd) - 1)
            if c.chain:
                th = k & 1
                first = F[k & ~1][1] == 0
                mm = [mfma(16, acc[th], WF.sub(4 * (kk % c.NB), 4), X.sub(4 * (F[kk][1] + th), 4), 0 if (first and kk == k) else acc[th]) for kk in (k, k ^ 1)]
            else: mm = [mfma(16, acc[th], WF.sub(4 * (k % c.NB), 4), X.sub(4 * (step + th), 4), 0 if step == 0 else acc[th]) for th in range(2)]
            add(mm[0])
            if k == 0: add(self.stamp(67))
            add(rd[:r1], fill[:n1])
            add(mm[1], rd[r1:], fill[n1:], tail[k])
            if k in inv_bar:
                n = inv_bar[k]
                assert not (skip(n) and self.bar_extra[n])
                if n == 19 or need[n] > need[n - 1]: add(wait(vm=[f"w{need[n]}"] + (["ts"] if n == c.f2_bar else []), lg=self.bar_extra[n] or None), barrier())
            if k in (127, 191): add(self.stamp())
            if k in (31, 63): add(self.stamp(64))
            if k % 32 == 31 and 31 < k < 319: add(self.stamp(2))
            if k in c.sg: add(self.stamp(32))
        add(self.stamp(131))
        self.load = load
    def plan_op(self, op, n):
        if op == "l":
            assert n >= self.cfg.pw_per
            return self.w2_load()
        if op == "h":
            assert n >= self.cfg.pa_per and self.h_n < 4
            return self.h_load()
        if op == "P": return self.poll_issue(vPOLLH, rWS)
        if op == "H":
            self.halo_period = n
            i = salu("s_mov_b32", "m0", sHM0); i.tag = "halo"
            return self.poll_check(vPOLLH, rWS, sTHR) + [i] + [buf_dma((vHLD, vHLD2)[q], rWS, 0, 1024 * q, flags="sc1", tag="halo") for q in range(2)]
        slot = int(op[1:])
        if slot < self.cfg.NS: assert n >= 2 + max(x for x in range(20) if slab_slot(x) == slot)
        if self.B and slot >= 7: assert n >= 19
        assert n >= self.cfg.pw_per
        return self.w2_dma(slot)

    def att_setup(self):
        t0, t1 = T[0], T[1]
        o = [valu("v_and_b32", t0, 15, vLane), valu("v_mul_u32_u24", t0, RP, t0), valu("v_and_b32", t1, 48, vLane), valu("v_lshlrev_b32", t1, 1, t1),
             salu("s_mul_i32", sT[0], sW, 32 * RP), salu("s_add_u32", sT[0], sT[0], SCR), valu("v_add3_u32", vSCR, sT[0], t0, t1),
             valu("v_and_b32", t0, 3, vLane), valu("v_bfe_u32", vVTR, vLane, 2, 2), valu("v_lshl_add_u32", t0, t0, 2, vVTR),
             valu("v_mul_u32_u24", t0, RP, t0), valu("v_add3_u32", vVTR, sT[0], t0, t1),
             salu("s_mov_b32", sT[0], SCR + 128 * RP + 128), valu("v_lshl_add_u32", vHRB, vLane, 4, sT[0])]
        o += [salu("s_lshl_b32", sT[1], sRB, 3), salu("s_lshl_b32", sT[2], sGQ, 1), salu("s_add_u32", sT[1], sT[1], sT[2]), salu("s_add_u32", sT[1], sT[1], sJ),
              salu("s_lshl_b32", sC1, sT[1], 11), salu("s_add_u32", sC1, sC1, HALO_OFF),
              salu("s_cmp_eq_u32", None, sW, 3), salu("s_cselect_b32", sT[1], sC1, OOB), salu("s_cselect_b32", sH3, 0, OOB), valu("v_lshl_add_u32", vHALO, vLane, 4, sT[1]),
              salu("s_and_b32", sT[1], sRB, 7), salu("s_or_b32", sT[2], sT[1], sW), salu("s_cselect_b32", sM1[0], 0, "0xf000f"), salu("s_cselect_b32", sM2[0], 0, "0xff00ff"),
              salu("s_mov_b32", sM1[1], sM1[0]), salu("s_mov_b32", sM2[1], sM2[0]), salu("s_mov_b32", sHM0, SPARE),
              salu("s_cmp_eq_u32", None, sW, 0), salu("s_cselect_b32", sHM0, SCR + 128, sHM0), salu("s_cselect_b32", sT[1], sT[1], 0),
              salu("s_cmp_lg_u32", None, sT[1], 0), salu("s_cselect_b32", sTHR, 1, 0),
              salu("s_sub_u32", sT[2], sC1, 8 * 2048), salu("s_cmp_lg_u32", None, sTHR, 0), salu("s_cselect_b32", sT[2], sT[2], OOB),
              valu("v_lshl_add_u32", vHLD, vLane, 4, sT[2]), valu("v_mov_b32", vHLD2, vHLD)]
        if self.cfg.kv_mode == 4:
            for q, dst in enumerate((vHLD, vHLD2)):
                o += [valu("v_add_u32", t0, 8 + 64 * q, vLane), valu("v_mul_u32_u24", t1, 241, t0), valu("v_lshrrev_b32", t1, 12, t1), valu("v_mul_u32_u24", dst, 17, t1),
                      valu("v_sub_u32", t0, t0, dst), valu("v_min_u32", t0, 15, t0), valu("v_lshlrev_b32", t1, 4, t1), valu("v_lshl_add_u32", t0, t0, 7, t1),
                      valu("v_add_u32", dst, sT[2], t0)]
                if q: o += [valu("v_subrev_u32", dst, 1024, dst)]
            o += [salu("s_sub_u32", sT[1], sC1, 24 * 16), salu("s_cmp_eq_u32", None, sW, 3), salu("s_cselect_b32", sT[1], sT[1], OOB),
                  valu("v_and_b32", t0, 31, vLane), valu("v_lshrrev_b32", t1, 5, vLane), valu("v_lshlrev_b32", t1, 8, t1), valu("v_lshl_add_u32", t1, t0, 4, t1),
                  valu("v_add_u32", t1, sT[1], t1), valu("v_cmp_lt_u32", "vcc", 23, t0), valu("v_mov_b32", t0, OOB), valu("v_cndmask_b32", vHALO, t0, t1, "vcc")]
        o += [
              salu("s_lshl_b32", sT[1], sRB, 3), salu("s_add_u32", sT[1], sT[1], sGQ), salu("s_lshl_b32", sT[1], sT[1], 10), salu("s_lshl_b32", sT[2], sJ, 3),
              salu("s_add_u32", sT[1], sT[1], sT[2]), salu("s_add_u32", sT[1], sT[1], FLAG_OFF - 4096 + 4), salu("s_cmp_lg_u32", None, sTHR, 0),
              salu("s_cselect_b32", sT[1], sT[1], OOB), valu("v_mov_b32", vPOLLH, sT[1]), salu("s_mov_b32", sCS, f32(0.25 * LOG2E))]
        o += [valu("v_and_b32", t0, 3, vLane), valu("v_mov_b32", t1, "0xffff"),
              valu("v_cmp_le_u32", sJ1, 1, t0), valu("v_cmp_le_u32", sJ2, 2, t0), valu("v_cmp_le_u32", sJ3, 3, t0),
              valu("v_cndmask_b32", vA01, t1, -1, sJ1), valu("v_cndmask_b32", vA23, 0, t1, sJ2), valu("v_cndmask_b32", vA23, vA23, -1, sJ3)]
        return o
    def attention(self, put, spread, bar_gap, load):
        c = self.cfg
        def pack(dst, a):
            o = [valu("v_cvt_pk_bf16_f32", dst[i], a[2 * i], a[2 * i + 1]) for i in range(8)]
            return o + [valu("v_permlane16_swap_b32", dst[i], dst[4 + i], rmw=True, wr2=dst[4 + i]) for i in range(4)]
        cv, wr = [], []
        for blk in range(4):
            a = ACC1.sub(16 * blk, 16)
            cv += pack(a, a)
            wr += [ds_write("ds_write_b128", vSCR, a.sub(4 * dh, 4), (blk & 1) * 128 + dh * 16 + (8 + 16 * (blk >> 1)) * RP, tag="kv") for dh in range(2)]
        hs = ACC1.sub(8, 8)
        assert c.kv_mode == 3
        spread(cv, 129, c.kv_end - 3)
        put(c.kv_end - 3, wr); put(c.kv_end - 1, [ds_read("ds_read_b128", hs.sub(4 * i, 4), vHRB, 1024 * i) for i in range(2)])
        if c.kv_mode != 4:
            put(c.kv_end + 2, [buf_store("buffer_store_dwordx4", hs.sub(0, 4), vHALO, rWS, 0, 0, flags="sc1", tag="st1")])
            put(c.kv_end + 4, [buf_store("buffer_store_dwordx4", hs.sub(4, 4), vHALO, rWS, 0, 1024, flags="sc1", tag="st1")])
            self.bar_extra[12] = ["kv"]
        assert c.kv_end + 4 < min(176, c.g_flag1)
        fl = self.flag(L_HALO, "st1")
        if c.halo3: fl[-1] = buf_store("buffer_store_dword", vFV, vFH, rWS, 0, L_HALO, flags="sc1")
        put(c.g_flag1, fl)
        Q = ACC2.sub(0, 16); O = ACC2.sub(16, 16)
        Sg = [SG.sub(0, 4), SG.sub(4, 4), SG.sub(8, 4)]
        P = [T.sub(0, 2), T.sub(2, 2), T.sub(4, 2)]
        tm, tz, big = SG[12], SG[13], SG[14]
        spread(pack(Q.sub(0, 8), ACC2.sub(0, 16)) + pack(Q.sub(8, 8), ACC2.sub(16, 16)) + [valu("v_mov_b32", big, f32(-1e30))], 195, 215)
        k = c.g_halo
        assert k > bar_gap[self.halo_period + 1]
        put(k, [wait(vm="halo")])
        cs = 0.25 * LOG2E
        for cb in range(2):
            spread([ds_read("ds_read_b128", KA.sub(8 * g + 4 * dh, 4), vSCR, dh * 16 + (16 * cb + (2 - g) * 4) * RP) for g in range(3) for dh in range(2)], k, k + 4)
            k += 5
            for dq in range(4):
                put(k + dq // 2, [mfma(4, Sg[g], KA.sub(8 * g + 2 * dq, 2), Q.sub(8 * cb + 2 * dq, 2), Sg[g] if dq else 0) for g in range(3)], last=True)
            k += 2
            vr = [ds_read("ds_read_b64_tr_b16", KA.sub(8 * g + 2 * m, 2), vVTR, 128 + (0, 2, 1, 3)[m] * 8 + (16 * cb + (2 - g) * 4) * RP, tag="vr") for g in range(3) for m in range(4)]
            s = [Sg[0][i] for i in range(4)] + [Sg[1][i] for i in range(4)]
            o = vr[:4]
            if cb == 0:
                o += [valu("v_cndmask_b32", Sg[2][r], Sg[2][r], big, sM2) for r in (1, 2, 3)]
                o += [valu("v_cndmask_b32", Sg[1][r], Sg[1][r], big, sM1) for r in range(4)]
            o += [valu("v_cndmask_b32", Sg[0][r], Sg[2][r], Sg[0][r], (None, sJ1, sJ2, sJ3)[r]) for r in (1, 2, 3)]
            o += [valu("v_max3_f32", tm, s[0], s[1], s[2]), valu("v_max3_f32", tz, s[3], s[4], s[5]), valu("v_max3_f32", tm, tm, s[6], s[7]), valu("v_max_f32", tm, tm, tz),
                  valu("v_mul_f32", tm, f32(-cs), tm)]
            o += vr[4:8]
            o += [valu("v_fma_f32", s[i], s[i], sCS, tm) for i in range(8)]
            o += [valu("v_exp_f32", s[i], s[i]) for i in range(8)]
            u = [Sg[2][i] for i in range(4)]
            o += [valu("v_add_f32", u[i], s[2 * i], s[2 * i + 1]) for i in range(4)]
            o += [valu("v_add_f32", u[0], u[0], u[1]), valu("v_add_f32", u[2], u[2], u[3]), valu("v_add_f32", u[0], u[0], u[2]), valu("v_rcp_f32", tz, u[0])]
            o += vr[8:]
            o += [valu("v_mul_f32", s[i], s[i], tz) for i in range(8)]
            o += [valu("v_cvt_pk_bf16_f32", u[0], s[0], s[1]), valu("v_cvt_pk_bf16_f32", u[1], s[2], s[3]),
                  valu("v_cvt_pk_bf16_f32", P[1][0], s[4], s[5]), valu("v_cvt_pk_bf16_f32", P[1][1], s[6], s[7]),
                  valu("v_and_b32", P[0][0], u[0], vA01), valu("v_and_b32", P[0][1], u[1], vA23),
                  valu("v_bfi_b32", P[2][0], vA01, 0, u[0]), valu("v_bfi_b32", P[2][1], vA23, 0, u[1])]
            spread(o, k, k + c.att_w)
            k += c.att_w
            for g in range(3):
                put(k + g // 2, [mfma(4, O.sub(4 * m, 4), KA.sub(8 * g + 2 * m, 2), P[g], O.sub(4 * m, 4) if g else 0) for m in range(4)], last=True)
            k += 2
            o = []
            for dh in range(2):
                o += [valu("v_cvt_pk_bf16_f32", O[4 * dh + i], O[8 * dh + 2 * i], O[8 * dh + 2 * i + 1]) for i in range(4)]
                o += [buf_store("buffer_store_dwordx4", O.sub(4 * dh, 4), vHST, rWS, sHu[1], cb * 256 + dh * 1024, flags=c.hflags, tag="st2")]
            spread(o, k + 1, k + 7)
        assert k <= bar_gap[19], k
        self.att_end = k
        if not c.splf and c.f2_epi < 0: put(min(k + c.f2_lag, 317), self.flag(L_O, "st2"))

    GORD = ([("d", 0, 1, t) for t in range(4)] + [("d", 12, 1, 4 + t) for t in range(2)] + [("o", 0, 1, t) for t in range(4)]
            + [("d", 4, 2, t) for t in range(4)] + [("d", 5, 2, t) for t in range(4)])
    def w2_setup(self):
        return [salu("s_mov_b32", sNL, f32(-LOG2E)), salu("s_mul_i32", sHd, sW, 28 * 1024), salu("s_lshl_b32", sHo, sW, 13), salu("s_add_u32", sHo, sHo, 112 * 1024),
                salu("s_lshl_b32", sWd, sHd, 1), salu("s_lshl_b32", sWo, sHo, 1)]
    def h_load(self):
        gi = self.h_n; self.h_n += 1
        kind, g0, st, t = self.GORD[gi]
        o = []
        base = sHd if kind == "d" else sHo
        d = ((g0 & ~1) - self.hpos[kind]) * 2048
        self.hpos[kind] = g0 & ~1
        if d: o += [salu("s_add_u32" if d > 0 else "s_sub_u32", base, base, abs(d))]
        o += [salu("s_add_u32" if st == 1 else "s_lshl1_add_u32", sT[0], (sU + sUh)[t], base)]
        dst = self.hreg[gi] = self.pool.pop(0)
        for s in range(2):
            for tb in range(2):
                o += [buf_load("buffer_load_dwordx4", dst.sub(8 * s + 4 * tb, 4), vW[0] if self.cfg.dbg & 2 else vH[tb], rWS, 0 if self.cfg.dbg & 2 else sT[0], s * 1024 + (g0 & 1) * 2048, flags="sc1", tag=f"h{gi}")]
        return o
    def w2_addr(self):
        gi = self.w2_nd; self.w2_nd += 1
        kind, g, st, t = self.GORD[gi]
        base = sWd if kind == "d" else sWo
        d = (g - self.w2pos[kind]) * 4096
        self.w2pos[kind] = g
        o = [salu("s_add_u32" if d > 0 else "s_sub_u32", base, base, abs(d))] if d else []
        return gi, o + [salu(f"s_lshl{st}_add_u32", sWS, (sU + sUh)[t], base)]
    def w2_load(self):
        gi, o = self.w2_addr()
        dst = self.wreg[gi] = self.pool.pop(0)
        return o + [buf_load("buffer_load_dwordx4", dst.sub(4 * i, 4), vW[i & 1], rWS, 0 if self.cfg.dbg & 4 else sWS, i * 1024, flags="sc1", tag=f"g{gi}") for i in range(4)]
    def w2_dma(self, slot):
        gi, o = self.w2_addr()
        assert slot not in self.w2slot.values()
        self.w2slot[gi] = slot
        return [set_m0(sWQ, slot * SLOT, f"g{gi}")] + o + [buf_dma(vW[i & 1], rWS, sWS, i * 1024, flags="sc1", tag=f"g{gi}") for i in range(4)]
    def w2_read(self):
        gi = min(self.w2slot)
        base = self.w2slot.pop(gi) * SLOT
        dst = self.wreg[gi] = self.pool.pop(0)
        o, imm = self.window(self.win2, 0, vWB, base, 4096)
        for i in o: i.tag = f"r{gi}"
        return [wait(vm=f"g{gi}")] + o + [ds_read("ds_read_b128", dst.sub(4 * i, 4), vWB, imm + i * 1024, tag=f"r{gi}") for i in range(4)]
    def phase2(self):
        c, add = self.cfg, self.add
        accF = [ACC2.sub(0, 16), A(80, 16), A(96, 16), A(112, 16)]
        accS = [ACC2.sub(16, 16)]
        PR = [None, ACC1.sub(0, 16), ACC1.sub(16, 16), ACC1.sub(32, 16)]
        xf = ACC1.sub(48, 16)
        red = [vSCR, vVTR, vTR0, vTR1, vDMA2, vHST]
        pool, hreg, wreg, h_load = self.pool, self.hreg, self.wreg, self.h_load
        pool += [A(128, 16), A(144, 16), A(160, 16)] + [A(16 * i, 16) for i in range(self.xf_n, 5)]
        light = []
        heavy = []
        pend = lambda q, tag: any(i.tag == tag for i in q)
        e = ([] if c.nspl else self.ffn_epi(ACC1.sub(0, 16), ACC1.sub(16, 16), 2, 0, "st3", pk=True)) + self.ffn_epi(ACC1.sub(32, 16), ACC1.sub(48, 16), 2, 256, "st4", pk=True)
        assert 9 not in self.w2slot.values()
        assert all(x < min(18, 20 - c.nspl) for x in range(20) if 6 <= slab_slot(x) <= 8)
        seq = []
        for gi in range(18):
            bl = (1, 2, 3) if gi >= 18 - c.defer else (0, 1, 2, 3)
            if c.snake and gi < 17: bl = (1, 3, 2) if len(bl) == 3 else (0, 1, 3, 2)
            seq += [(gi, s, b) for b in bl for s in range(2)] if gi == 17 else [(gi, s, b) for s in range(2) for b in bl]
        seq += [(gi, s, 0) for gi in range(18 - c.defer, 18) for s in range(2)]
        last = {gi: max(m for m, x in enumerate(seq) if x[0] == gi) for gi in range(18)}
        first = {gi: min(m for m, x in enumerate(seq) if x[0] == gi) for gi in range(18)}
        lastb = {b: max(m for m, x in enumerate(seq) if x[2] == b) for b in range(4)}
        g6 = 10 if c.m_pb == -1 else 6
        st = {"q": [], "gate": g6 if c.pa2_epi < 0 else 4, "x": False, "m": -1, "sw": False}
        def refill():
            okw = self.w2_nd < 18 and len(pool) > (1 if self.w2_nd <= self.h_n else c.keep)
            okh = self.h_n < st["gate"] and len(pool) > 1
            if okh and not (okw and self.w2_nd <= self.h_n + c.wlead): st["q"] += h_load()
            elif okw: st["q"] += self.w2_load()
            elif not st["x"] and st["m"] >= 0 and not pend(light, "ra"):
                st["x"] = True
                st["q"] += [set_m0(sWQ, 9 * SLOT, "xs"), salu("s_mov_b32", sT[1], 16384 - 1024),
                            buf_dma(red[4], rX, 0, 0, tag="xs"), buf_dma(red[4], rX, sT[1], 1024, tag="xs")]
        def pump():
            if not st["q"]: refill()
            while st["q"]:
                x = st["q"].pop(0); add(x)
                if x.kind in ("dma", "vml"): return True
            return False
        step = max(1, len(e) * 3 // 4 // max(1, c.epi_mem))
        k = 0
        for n, i in enumerate(e):
            if self.B and not c.splf and n == c.f2_epi: add(self.flag(L_O, "st2"))
            if n == c.pa2_epi: add(self.poll_check(*self.pa2)); st["gate"] = g6
            if (c.splf or c.m_pe > 0) and c.m_f3 < 0 and n == c.f3_at: add(self.flag(L_L0, "st3"))
            if n % step == 0 and k < c.epi_mem: pump(); k += 1
            add(i)
        add(self.stamp(129))
        started = set()
        ra = [salu("s_add_u32", sT[2], sWQ, 6 * SLOT), valu("v_lshl_add_u32", red[0], vLane, 4, sT[2])] + [valu("v_xor_b32", red[b], b * 4096, red[0]) for b in (1, 2, 3)]
        ra += [salu("s_and_b32", sT[2], sP2x, 64), salu("s_mul_i32", sT[3], sT[2], 511), salu("s_add_u32", sT[3], sT[3], sP2x),
               valu("v_lshrrev_b32", red[4], 3, vLane), valu("v_and_b32", red[5], 7, vLane), valu("v_lshlrev_b32", red[5], 4, red[5]),
               valu("v_lshl_add_u32", red[4], red[4], 11, red[5]), valu("v_add_u32", red[4], sT[3], red[4]),
               salu("s_lshr_b32", sT[3], sW, 1), salu("s_lshl_b32", sT[3], sT[3], 13), salu("s_add_u32", sT[3], sT[3], sT[2]), salu("s_add_u32", sT[3], sT[3], 9 * SLOT),
               valu("v_and_b32", red[5], 16, vLane), valu("v_lshlrev_b32", red[5], 1, red[5]), valu("v_and_or_b32", red[5], vLane, 15, red[5]), valu("v_lshlrev_b32", red[5], 7, red[5]),
               valu("v_and_or_b32", red[5], vLane, 32, red[5]), valu("v_add_u32", red[5], sT[3], red[5])]
        vOW, vOR = [vA01, vA23], vPOLLH
        if c.otr:
            ra += [valu("v_and_b32", vOR, 7, vLane), valu("v_lshlrev_b32", vOR, 4, vOR), valu("v_xor_b32", vOW[0], vOR, red[5]), valu("v_xor_b32", vOW[1], 16, vOW[0]),
                   valu("v_lshrrev_b32", vOR, 3, vLane), valu("v_xor_b32", vOR, vOR, vLane), salu("s_add_u32", sT[3], sWQ, 9 * SLOT), valu("v_lshl_add_u32", vOR, vOR, 4, sT[3])]
        for i in ra: i.tag = "ra"
        light += ra
        used = set()
        for m, (gi, s, b) in enumerate(seq):
            st["m"] = m
            kind = self.GORD[gi][0]
            if gi in self.w2slot or pend(light, f"r{gi}"):
                add(light); light.clear()
                while gi in self.w2slot: add(self.w2_read())
            while gi >= self.w2_nd or pend(st["q"], f"g{gi}"): assert pump(), (m, gi)
            while gi >= self.h_n or pend(st["q"], f"h{gi}"): assert pump(), (m, gi)
            a = (accF if kind == "d" else accS)[b]
            if c.gwait == 1: add(wait_regs(hreg[gi].sub(8 * s, 8), wreg[gi].sub(8 * s, 8)))
            if c.gwait == 2: add(wait_regs(hreg[gi], wreg[gi]))
            if c.m16 & 2:
                for q in range(2):
                    aq = a.sub(8 * s + 4 * q, 4)
                    if q and light and cyc(light[0]) <= 4 and light[0].kind == "valu":
                        add(light.pop(0))
                        if light and cyc(light[0]) <= 4 and light[0].kind == "valu": add(light.pop(0))
                    add(mfma(16, aq, wreg[gi].sub(8 * q + 4 * (b & 1), 4), hreg[gi].sub(8 * s + 4 * (b >> 1), 4), aq if (kind, b, s) in started else 0))
                started.add((kind, b, s))
            else: add(mfma(32, a, wreg[gi].sub(8 * s + 4 * (b & 1), 4), hreg[gi].sub(8 * s + 4 * (b >> 1), 4), a if (kind, b) in started else 0))
            started.add((kind, b))
            if m == last[gi]:
                pool += [hreg[gi], wreg[gi]]
                if gi in (3, 4, 5): accS.append(pool.pop())
                if gi in c.sp: add(self.stamp(128))
            busy = False
            if m == c.m_f3: add(self.flag(L_L0, "st3")); busy = True
            if m == c.m_f4: add(self.flag(L_END, "st4"), self.stamp()); busy = True
            lb, lc = (L_L0 if c.splf else L_O), (L_L0 if c.m_pe > 0 else L_END)
            for mm, ln in ((c.m_pb, lb), (c.m_pc, lc), (c.m_pe, L_END)):
                if m == mm - c.m_pd: add(self.poll_issue(vPOLL, rWS, ln)); busy = True
            if m == c.m_pb - 1: add(valu("v_xor_b32", vTHR, 1, vTHR))
            if m == c.m_pe: add(self.poll_check(vPOLL, rWS, 1, L_END)); st["gate"] = 18
            if m == c.m_pb: add(self.poll_check(vPOLL, rWS, 1 if c.splf else vTHR, lb)); st["gate"] = 14 if c.splf else 10
            if m == c.m_pc: add(self.poll_check(vPOLL, rWS, 1, lc), self.stamp()); st["gate"] = 14 if c.m_pe > 0 else 18; self.pre += (self.w2_nd, self.h_n)
            used.add((gi, s, b >> 1))
            ahead = 4 * self.h_n - sum(1 for i in st["q"] if i.kind == "vml") - len(used)
            if ((m % c.vstep < c.vnum if m < c.m_v1 else m % 2 == 0) or ahead < c.ahead) and not busy: busy = pump()
            if not light and self.w2slot and pool and m >= first[min(self.w2slot)] - c.rlead: light += self.w2_read()
            if m == last[9] + 2:
                add(light); light.clear()
                while any(6 <= s_ <= 8 for s_ in self.w2slot.values()): add(self.w2_read())
                st["sw"] = True
                heavy += [wait(lg=[f"r{g}" for g in range(18)])]
                heavy += [ds_write("ds_write_b128", red[0], accS[b2].sub(4 * q, 4), (b2 - 1) * SLOT + q * 1024, tag="sw") for b2 in (1, 2, 3) for q in range(4)]
            if m == c.m_sb:
                while not st["x"] or pend(st["q"], "xs"):
                    g18, nd = st["gate"], self.w2_nd; st["gate"] = 0; self.w2_nd = 18; assert pump(); st["gate"], self.w2_nd = g18, nd
                add(heavy); heavy = []
                add(wait(vm="xs", lg="sw"), barrier()); busy = True
                light += [ds_read("ds_read_b128", xf.sub(8 * i + 4, 4), red[5], 16 * i) for i in range(2)]
                light += [ds_read("ds_read_b128", PR[b2].sub(4 * q, 4), red[b2], (b2 - 1) * SLOT + q * 1024) for b2 in (1, 2, 3) for q in range(4)]
                for b2 in range(4):
                    i = valu("v_subrev_u32", red[b2], 6 * SLOT, red[b2]); i.tag = "ra"; light.append(i)
                for h in range(2):
                    for i in range(4):
                        src = xf[8 * h + 4 + i]
                        pr = [valu("v_lshlrev_b32", xf[8 * h + 2 * i], 16, src), valu("v_and_b32", xf[8 * h + 2 * i + 1], "0xffff0000", src)]
                        light += pr
                light += [valu("v_add_f32", accS[0][i], accS[0][i], PR[1][i]) for i in range(16)] + [valu("v_add_f32", PR[2][i], PR[2][i], PR[3][i]) for i in range(16)]
                light += [valu("v_add_f32", accS[0][i], accS[0][i], PR[2][i]) for i in range(16)]
            for b2 in (1, 2, 3):
                if m == lastb[b2] + 2:
                    while pend(light, "ra"): add(light.pop(0))
                    heavy += [ds_write("ds_write_b128", red[0], accF[b2].sub(4 * q, 4), (b2 - 1) * SLOT + q * 1024) for q in range(4)]
            budget = 11 if busy else 24
            if heavy and not busy:
                while heavy:
                    x = heavy.pop(0); add(x)
                    if x.kind == "dsw": break
                budget = 0
            while light and cyc(light[0]) <= budget:
                budget -= cyc(light[0]); add(light.pop(0))
        assert self.h_n == 18 and self.w2_nd == 18 and not self.w2slot and not st["q"] and st["x"]
        add(self.stamp())
        add(heavy, light)
        add(wait(lg="all"), barrier())
        for q in range(4):
            for b in (1, 2, 3): add(ds_read("ds_read_b128", PR[b].sub(4 * q, 4), red[b], (b - 1) * SLOT + q * 1024))
        Fp, Sp, t = accF[0], accS[0], PR[1]
        if c.dbg & 32: add(valu("v_mov_b32", vXO, OOB))
        if c.dbg & 64: add(salu("s_lshl2_add_u32", sT[1], sWG, sW), salu("s_lshl_b32", sT[1], sT[1], 11), valu("v_lshl_add_u32", vXO, vLane, 4, sT[1]))
        for hq in range(2):
            r2 = range(8 * hq, 8 * hq + 8, 2); r1 = range(8 * hq, 8 * hq + 8)
            add([valu("v_pk_add_f32", Fp.sub(i, 2), Fp.sub(i, 2), PR[1].sub(i, 2)) for i in r2])
            add([valu("v_pk_add_f32", PR[2].sub(i, 2), PR[2].sub(i, 2), PR[3].sub(i, 2)) for i in r2])
            add([valu("v_pk_add_f32", Fp.sub(i, 2), Fp.sub(i, 2), PR[2].sub(i, 2)) for i in r2])
            add([valu("v_pk_mul_f32", t.sub(i, 2), Fp.sub(i, 2), T.sub(0, 2)) for i in r2])
            add([valu("v_exp_f32", t[i], t[i]) for i in r1])
            add([valu("v_pk_mul_f32", Sp.sub(i, 2), Sp.sub(i, 2), Fp.sub(i, 2)) for i in r2])
            add([valu("v_pk_add_f32", t.sub(i, 2), t.sub(i, 2), T.sub(2, 2)) for i in r2])
            add([valu("v_rcp_f32", t[i], t[i]) for i in r1])
            add([valu("v_pk_fma_f32", xf.sub(i, 2), Sp.sub(i, 2), t.sub(i, 2), xf.sub(i, 2)) for i in r2])
            add([valu("v_cvt_pk_bf16_f32", t[8 * hq + i], xf[8 * hq + 2 * i], xf[8 * hq + 2 * i + 1]) for i in range(4)])
            if c.otr: add(ds_write("ds_write_b128", vOW[hq], t.sub(8 * hq, 4)))
            else: add(buf_store("buffer_store_dwordx4", t.sub(8 * hq, 4), vXO, rOUT, 0, (1024 if c.dbg & 64 else 16) * hq, flags=c.outflags))
        if c.otr:
            add(salu("s_movk_i32", sT[1], 16384), wait(lg="all"), barrier(), [ds_read("ds_read_b128", xf.sub(4 * i, 4), vOR, 1024 * i) for i in range(2)])
            add([buf_store("buffer_store_dwordx4", xf.sub(4 * i, 4), red[4], rOUT, sT[1] if i else 0, flags=c.outflags) for i in range(2)])

    def finish(self):
        add = self.add
        if self.cfg.stamps:
            add(raw(f"{self.cfg.clock} s[14:15]", "smem"))
            add(wait(vm="all"))
            add(raw(f"{self.cfg.clock} s[16:17]\n    s_waitcnt lgkmcnt(0)", "smem"))
            add(valu("v_mov_b32", V(96), 0))
            for i in range(self.nst): add(raw(f"v_writelane_b32 v96, s{STAMPS[i]}, {1+i}", "valu", wr=["v96"]))
            add(raw(f"v_writelane_b32 v96, s{ST0}, 0", "valu", wr=["v96"]), raw(f"v_writelane_b32 v96, s14, {1+self.nst}", "valu", wr=["v96"]),
                raw(f"v_writelane_b32 v96, s16, {2+self.nst}", "valu", wr=["v96"]))
            add(salu("s_lshl_b32", sT[1], sWG, 2), salu("s_add_u32", sT[1], sT[1], sW), salu("s_lshl_b32", sT[1], sT[1], 6), salu("s_add_u32", sT[1], sT[1], STAMP_OFF),
                valu("v_lshl_add_u32", V(97), vLane, 2, sT[1]), salu("s_mov_b64", "exec", "0xffff"), buf_store("buffer_store_dword", V(96), V(97), rWS))
        add(raw("s_endpgm", "end"))

    def program(self):
        NS[0] = self.cfg.NS
        assert self.cfg.NS <= (7 if self.B else 9)
        self.w2slot, self.slot_used, self.w2pos = {}, {}, {"d": 0, "o": 0}
        self.w2_nd = self.w2_nr = 0
        self.win2 = [0, 0]
        self.xf_n = 0
        self.h_n, self.hreg, self.wreg, self.hpos = 0, {}, {}, {"d": 0, "o": 0}
        self.e.comment('phase 0'); self.ramp(); self.e.comment('phase 1'); self.phase1(); self.e.comment('phase 2')
        self.pre = (self.w2_nd, len(self.w2slot), self.h_n)
        if not self.cfg.p1only: self.phase2()
        self.finish()
        return self.e.text() + self.slow

HEAD = open("recurrent_scan__sliding_local_dilated__swiglu_ffn__prompt.s.ref").read().split("; Override launch")[0]

DOC = """; One persistent launch, one workgroup (4 waves, 512 registers each) per CU; tokens are kept in parity-split order.
;  phase 1: 128 tokens x 320 weight columns per workgroup, weights streamed through an LDS ring (LDS-DMA + transposing reads),
;           B: k,v | q | gate,up with the dilated window attention done on 4x4x4 MFMAs; C: 2.5 gate/up pairs; h and o go to d_ws.
;  phase 2: 64 x 64 output tile per workgroup, K split over the waves, reduced through LDS; out = x + s * silu(ffn).
; Hand-offs: write-through (sc1) stores, counted wait, flag word; flag lines are cleared inside the launch (announced through d_debug).
"""
def build(cfg):
    s = HEAD + "; @launch grid=(256,1,1) block=(256,1,1) lds=163840\n"
    s += DOC
    s += f'.amdgcn_target "amdgcn-amd-amdhsa--gfx950"\n.text\n.globl {KNAME}\n.p2align 8\n.type {KNAME},@function\n{KNAME}:\n'
    s += f"""    s_cmp_ge_u32 s2, 256
    s_cbranch_scc0 L_go
    s_endpgm
L_go:
"""
    if cfg.stamps: s += f"    {cfg.clock} s[{ST0}:{ST0+1}]\n"
    s += f"""    s_load_dwordx2 s[24:25], s[0:1], 0
    s_load_dwordx16 s[4:19], s[0:1], 0
    s_load_dwordx4 s[20:23], s[0:1], 64
    v_lshrrev_b32 v1, 6, v0
    s_getpc_b64 s[28:29]
    v_readfirstlane_b32 {sW}, v1
    s_bfe_u32 s26, s2, 0x30003
    s_lshl_b32 s26, s26, 13
    v_lshrrev_b32 v2, 2, v0
    v_lshl_add_u32 v2, v2, 7, s26
    v_min_u32 v2, L_end-L_go-256, v2
    global_load_dword v3, v2, s[28:29]
    v_and_b32 {vLane}, 63, v0
    v_lshrrev_b32 v96, 3, {vLane}
    v_and_b32 v97, 7, v0
    s_lshl_b32 {sWQ}, {sW}, 12
    s_cmp_ge_u32 s2, 128
    s_cbranch_scc1 L_typeC
"""
    info = {}
    for typ in ("B", "C"):
        g = Gen(typ, cfg)
        g.e.vm.append(("pf", {"v3"}))
        s += f"L_type{typ}:\n" + g.program()
        info[typ] = (g.e.slots, g.e.nops, dict(g.e.count), [sum(max(32, 24 + x) for x in g.load[i:i + 32]) for i in range(0, 320, 32)], g.pre, g.nst + 3)
    s += "L_end:\n"
    s += f""".section .rodata,"a"
.p2align 6
.amdhsa_kernel {KNAME}
  .amdhsa_next_free_vgpr 512
  .amdhsa_next_free_sgpr 102
  .amdhsa_accum_offset 256
  .amdhsa_group_segment_fixed_size 0
  .amdhsa_kernarg_size 80
  .amdhsa_user_sgpr_count 2
  .amdhsa_user_sgpr_kernarg_segment_ptr 1
  .amdhsa_system_sgpr_workgroup_id_x 1
.end_amdhsa_kernel
"""
    return s, info

if __name__ == "__main__":
    cfg = Cfg()
    out = sys.argv[1]
    for a in sys.argv[2:]:
        k, v = a.split("=")
        assert hasattr(cfg, k) or hasattr(cfg, k[:-2]), k
        if k in ("outflags", "hflags", "pflags", "wflags"): v = v.replace("_", " ")
        elif k in ("sg", "sp", "xr", "xr_B", "xr_C"): v = [int(x) for x in v.split(",")]
        elif k not in ("clock", "planB", "planC"): v = int(v)
        setattr(cfg, k, v)
    s, info = build(cfg)
    open(out, "w").write(s)
    for k, v in info.items(): print(k, v)
```

```python
import sys, struct
sys.path.insert(0, "tools")
from emit import *
from asmlib import KNAME

FLAG_OFF, XN_OFF, HALO_OFF, WS_USED = 0x910000, 0x938000, 0xB38000, 0xF00000
WT_OFF, P6_OFF = 0xC01000, 0xE50000
L_HALO, L_P1, L_HALF, L_O, L_L0, L_END = [128 * i for i in range(6)]
FLAGA_OFF = 0x930000
STAMP_OFF = 0xB80000
OOB = 0x40000000
SLOT = 16384
HSTR = 145 * 1024
RP = 272
SCR = 7 * SLOT
SPARE = SCR + 137 * RP
LOG2E = 1.4426950408889634
def f32(x): return "0x%08x" % struct.unpack("<I", struct.pack("<f", x))[0]

class Cfg:
    stamps = 0
    clock = "s_memrealtime"
    sg = ()
    sp = ()
    p1only = 0
    LA = 8
    NB = 10
    spin = 1000000
    cbx = 0
    rot = 0
    sleep = 0
    th1 = 1
    otr = 1
    chain = 1
    dpos = 3
    w_c0 = 3
    p0 = 1
    rlate = 0
    m16 = 0
    wstep = 4
    sconst = 1
    gwait = 0
    halo3 = 1
    c_delay = 1
    b_lean = 0
    xr = ()
    splf = 0
    bar2 = 8
    map2 = 0
    one_pa = 0
    q_early = 1
    patom = 0
    f2_lag = 24
    rsel = 1
    tx = 1
    b_rest = None
    tlin = 0
    wo_late = -1
    sig_early = 0
    nodbg = 0
    f2_epi = -1
    pa2_epi = -1
    dbg = 0
    nspl = 0
    e0_end = 312
    f3_at = 30
    setup_early = 0
    w_0 = 0
    w_a = 1
    w_b = 3
    w_c = 4
    nx0 = 8
    xrate = 5
    planB = "6:l,7:l,8:l,9:l,10:l,11:P.l,12:l.H,13:l,14:l,15:l.l,16:l.d6,17:l.d0,18:h.h,19:h.h.l"
    planC = "6:l,7:l,8:l,9:l.w,10:l,11:l,12:l,13:l,14:l,15:l.l,16:l.l,17:l.d8,18:h.h,19:h.h.d7"
    ts_pos = -1
    f2_bar = 2
    pw_lead = 14
    pw_per = 6
    NS = 7
    xfree = 1
    kv_end = 141
    kv_mode = 5
    kw_end = 214
    p6_per = 4
    c_rest = 5
    c_tile = -1
    g_flag1 = 163
    g_halo = 200
    att_w = 24
    g_f1c = 210
    g_pa = 262
    h2_end = 240
    g_f2c = 264
    g_pa2 = 304
    epi_mem = 8
    m_f4 = 24
    m_pe = -99
    pa_per = 18
    m_f3 = -1
    m_pb = 24
    m_pc = 68
    m_pd = 12
    m_sb = 106
    defer = 4
    vstep = 1
    vnum = 1
    m_v1 = 0
    wlead = 1
    rlead = 12
    keep = 4
    ahead = 12
    outflags = "sc1"
    hflags = "sc1"
    pflags = "sc1"
    wflags = ""
    snake = 0

sWG = S(2)
pX, pQKV, pWO, pG, pU, pD, pOUT, pDBG, pWS = S(4, 2), S(6, 2), S(8, 2), S(12, 2), S(14, 2), S(16, 2), S(18, 2), S(20, 2), S(22, 2)
rX, rQKV, rGU, rD, rWO, rOUT, rWS, rDBG = S(24, 4), S(28, 4), S(32, 4), S(36, 4), S(40, 4), S(44, 4), S(48, 4), S(52, 4)
sW, sRB, sGQ, sJ, sTB2, sCB2, sWQ = S(56), S(57), S(58), S(59), S(60), S(61), S(62)
sT = [S(3), S(63), S(64), S(65)]
sM1, sM2 = S(66, 2), S(68, 2)
sHM0, sXS = S(70), S(71)
sJ1, sJ2, sJ3 = S(72, 2), S(74, 2), S(76, 2)
sTHR, sCNT = S(78), S(79)
sU = [S(60), S(61), S(58), S(59)]
sUh = [S(0), S(1)]
sHu = [S(4), S(5), S(6)]
sCS, sC1, sHd, sHo = S(7), S(8), S(9), S(10)
sWd, sWo, sWS, sW0 = S(40), S(41), S(42), S(43)
sOA = [0, S(11), S(12), S(13)]
sOB = [0, S(14), S(15), S(16)]
sNL, sH3 = S(17), S(18)
sP2h, sP2f, sP2x, sHS = S(20), S(21), S(22), S(23)
STAMPS = list(range(82, 102, 2))
ST0 = 80

ACC1, ACC2 = V(0, 64), V(64, 32)
VBUF = [V(96 + 16 * i, 16) for i in range(8)]
KA, SG = V(176, 24), V(200, 16)
T = V(224, 8)
(vF2, vA23, vA01, vP2, vHRB, vWB, vDMA2, vDMA1, vW1, vFV, vPV, vW0, vPOLL, vHALO, vPOLLH, vHLD,
 vFLG, vVTR, vSCR, vHST, vDMA0, vTR1, vTR0, vLane) = [V(232 + i) for i in range(24)]
vW = [vW0, vW1]
vP6 = vA01
vHLD2, vFH = V(222), V(223)
vXN = V(216)
vTCH = [V(217), V(218), V(219), V(220), V(221)]
vH = [vHRB, vHALO]
vXO, vTHR = vDMA1, vDMA0
X = A(0, 128)
WF = A(128, 40)
aDUM = A(168)
ABUF = [A(176 + 16 * i, 16) for i in range(5)]
NS = [5]
def slab_slot(n): return n % NS[0]

def cyc(i):
    k = i.kind
    if k in ("wait", "waitr", "waitcnt", "mfma"): return 0
    if k == "trans": return 8
    if k in ("dma", "vml"): return 14
    if k == "vms": return 30 if i.op.endswith("x4") else 20
    if k == "dsw": return 26
    if k == "dsr": return 11 if i.op.endswith("b128") else 4
    if k == "bar": return 14
    if k == "branch": return 8
    return 4

class Gen:
    def __init__(self, typ, cfg):
        self.typ, self.cfg = typ, cfg
        self.B = typ == "B"
        import copy
        self.cfg = cfg = copy.copy(cfg)
        for k, v in list(vars(cfg).items()) + list(vars(Cfg).items()):
            if k.endswith('_' + typ): setattr(cfg, k[:-2], getattr(cfg, k))
        self.e = Emitter()
        self.nst = 0
        self.nlab = 0
        self.slow = ""
        self.mid = []
        self.TR = [vTR0, vTR1, T[6], T[7]] if self.B else [vTR0, vTR1, vA23, vPOLLH, vVTR, vHLD]
    def add(self, *ins):
        for i in ins: self.e.add(i)
    def stamp(self, mode=1):
        if not (self.cfg.stamps & mode): return []
        r = S(STAMPS[self.nst], 2); self.nst += 1
        return [raw(f"{self.cfg.clock} {r}", "smem")]
    def touch(self, va, srd, flags=""):
        i = buf_load("buffer_load_dword", aDUM, va, srd, flags=flags)
        i.wr = set()
        return [i]
    def poll_text(self, vaddr, srd, off):
        n = {str(vPOLL): (8, 1), str(vPOLLH): (1, 2), str(vP2): (48, 4), str(vP6): (32, 4), "v105": (2, 8), "v106": (8, 16)}[str(vaddr)]
        if not self.cfg.patom & n[1]: return None
        return (f"v_mov_b32 {vPV}, 15\n    s_bfm_b64 exec, {n[0]}, 0\n    v_mov_b32 {vPV}, 0\n"
                f"    buffer_atomic_add {vPV}, {vaddr}, {srd}, 0 offen offset:{off} sc0 sc1\n    s_mov_b64 exec, -1")
    def poll_issue(self, vaddr, srd, off=0):
        t = self.poll_text(vaddr, srd, off)
        if t:
            i = buf_load("buffer_load_dword", vPV, vaddr, srd, 0, off); i.text = t
            return [i]
        return [buf_load("buffer_load_dword", vPV, vaddr, srd, 0, off, flags=self.cfg.pflags)]
    def poll_check(self, vaddr, srd, thr, off=0):
        self.nlab += 1
        l = f"L_{self.typ}_p{self.nlab}"
        sl = f"    s_sleep {self.cfg.sleep}\n" if self.cfg.sleep else ""
        if self.cfg.stamps & 512:
            sl += f"    s_add_u32 s{STAMPS[self.nlab - 1]}, s{STAMPS[self.nlab - 1]}, 1\n"; self.nst = 8
        self.slow += (f"{l}_slow:\n    s_mov_b32 {sCNT}, 0\n{l}_spin:\n"
                f"{sl}    {self.poll_issue(vaddr, srd, off)[0].text}\n    s_add_u32 {sCNT}, {sCNT}, 1\n    s_waitcnt vmcnt(0)\n"
                f"    v_cmp_gt_u32 vcc, {thr}, {vPV}\n    s_cmp_ge_u32 {sCNT}, {self.cfg.spin}\n    s_cbranch_scc1 {l}_ok\n"
                f"    s_cbranch_vccnz {l}_spin\n    s_branch {l}_ok\n")
        return [valu("v_cmp_gt_u32", "vcc", thr, vPV), raw(f"s_cbranch_vccnz {l}_slow\n{l}_ok:", "branch")]
    def flag(self, stage, tag):
        return [wait(vm=tag), buf_store("buffer_store_dword", vFV, vFLG, rWS, 0, stage, flags="sc1")]

    def ramp(self):
        c, add, B = self.cfg, self.add, self.B
        t0, t1, t2, t3 = V(96), V(97), V(98), V(99)
        vXL, vXS, vRS, vST, vF0, vP0, vDB, vTLB, vSG, vXR, vTL, vTS = [V(100 + i) for i in range(12)]
        vR2, vTB0, vTB1, vPL, vPS = [V(162 + i) for i in range(5)]
        tl, p6 = V(168, 16), V(184, 4)
        xr, lo, z, part = V(112, 16), V(128, 16), V(144, 4), V(148, 8)
        sm, sq, one = V(156), V(157), V(158)
        rb = V(160, 2)
        srd = lambda r, p, n: [salu("s_mov_b32", r[0], p[0]), salu("s_mov_b32", r[1], p[1]), salu("s_mov_b32", r[2], n), salu("s_mov_b32", r[3], "0x20000")]
        gu = [salu("s_cmp_lt_u32", None, sW, 2), salu("s_cselect_b32", rGU[0], pG[0], pU[0]), salu("s_cselect_b32", rGU[1], pG[1], pU[1])]
        sizes = ((rX, pX, 2048 * 1024), (rWS, pWS, WS_USED), (rDBG, pDBG, 256), (rQKV, pQKV, 512 * 3072), (rOUT, pOUT, 2048 * 1024))
        XL = 8 * SLOT
        self.nslab = 0
        if c.stamps & 1024:
            add(raw(f"s_getreg_b32 s{STAMPS[0]}, hwreg(HW_REG_XCC_ID)\n    s_getreg_b32 s{STAMPS[1]}, hwreg(HW_REG_HW_ID)", "salu")); self.nst = 2
        if c.stamps & 512: add([salu("s_mov_b32", S(r), 0) for r in STAMPS])
        add(self.stamp(256))
        TL = (7 if B else 9) * SLOT
        roles = [salu("s_lshr_b32", sT[0], sWG, 3), salu("s_and_b32", sT[1], sWG, 7), salu("s_and_b32", sRB, sWG, 1), salu("s_lshl_b32", sRB, sRB, 3),
                 salu("s_and_b32", sT[2], sT[0], 7), salu("s_add_u32", sRB, sRB, sT[2]), salu("s_lshr_b32", sGQ, sT[1], 1), salu("s_lshr_b32", sJ, sT[0], 3),
                 salu("s_lshl_b32", sTB2, sT[1], 2), salu("s_and_b32", sT[2], sT[0], 3), salu("s_add_u32", sTB2, sTB2, sT[2]), salu("s_lshr_b32", sCB2, sT[0], 2)]
        if c.map2 == 1:
            roles = roles[:8] + [salu("s_and_b32", sT[2], sT[0], 7), salu("s_lshl3_add_u32", sTB2, sGQ, sT[2]), salu("s_and_b32", sT[2], sWG, 1), salu("s_lshl2_add_u32", sCB2, sT[2], sJ)]
        if c.map2 == 2:
            roles = roles[:8] + [salu("s_lshr_b32", sT[2], sT[0], 2), salu("s_lshl3_add_u32", sTB2, sGQ, sT[2]), salu("s_and_b32", sT[2], sWG, 1), salu("s_and_b32", sCB2, sT[0], 3),
                                 salu("s_lshl2_add_u32", sCB2, sT[2], sCB2)]
        if c.map2 == 3:
            roles = roles[:8] + [salu("s_lshl2_add_u32", sTB2, sT[1], sJ), salu("s_and_b32", sCB2, sT[0], 7)]
        if c.cbx: roles += [salu("s_xor_b32", sCB2, sCB2, c.cbx)]
        def tile_setup():
            if B:
                o = [salu("s_lshl2_add_u32", sT[1], sRB, sW), salu("s_lshl_b32", sT[2], sT[1], 13), salu("s_lshl1_add_u32", sT[3], sGQ, sJ)] + srd(rD, pWO, 512 * 1024)
            else:
                o = [salu("s_lshr_b32", sT[1], sW, 1), salu("s_lshl1_add_u32", sT[1], sT[0], sT[1]), salu("s_lshl_b32", sT[2], sT[1], 15),
                     salu("s_xor_b32", sCNT, sGQ, c.tx), salu("s_and_b32", sT[3], sW, 1), salu("s_lshl1_add_u32", sT[3], sCNT, sT[3])] + srd(rD, pD, 1792 * 1024)
            o += [salu("s_lshl_b32", sCNT, sT[3], 7), salu("s_add_u32", sT[2], sT[2], sCNT),
                  valu("v_lshrrev_b32", t2, 2, vLane), valu("v_and_b32", t2, 4, t2), valu("v_xor_b32", t2, t2, t1), valu("v_lshlrev_b32", t2, 4, t2),
                  valu("v_lshl_add_u32", t2, t0, 10, t2), valu("v_add_u32", vTL, sT[2], t2)]
            o += [salu("s_mul_i32", sT[2], sT[3], 72 * 4096), salu("s_lshl_b32", sT[1], sT[1], 10 if B else 12), salu("s_add_u32", sT[2], sT[2], sT[1]),
                  salu("s_add_u32", sT[2], sT[2], WT_OFF + (56 * 4096 if B else 0)),
                  ]
            if B: o += [salu("s_lshl4_add_u32", sT[1], sT[3], sRB)]
            else: o += [salu("s_lshl_b32", sT[1], sGQ, 5), salu("s_add_u32", sT[1], sT[1], sT[0])]
            o += [salu("s_and_b32", sT[3], sT[1], 7), salu("s_lshr_b32", sT[1], sT[1], 3), salu("s_lshl_b32", sT[1], sT[1], 7), salu("s_lshl2_add_u32", sT[1], sT[3], sT[1]),
                  salu("s_add_u32", sT[1], sT[1], FLAGA_OFF + (80 if B else 64) * 128)]
            if not B: o += [salu("s_cmp_lt_u32", None, sRB, 14), salu("s_cselect_b32", sT[2], sT[2], OOB)]
            o += [salu("s_cmp_eq_u32", None, sW, 0), salu("s_cselect_b32", sT[1], sT[1], OOB),
                  valu("v_lshl_add_u32", vTS, vLane, 4, sT[2]), valu("v_mov_b32", vF2, OOB), raw(f"v_writelane_b32 {vF2}, {sT[1]}, 0", "valu", rd=[vF2], wr=[vF2])]
            return o
        def tile_store():
            o = [valu("v_bfe_u32", t2, vLane, 2, 2), valu("v_lshrrev_b32", t3, 5, vLane), valu("v_lshl_add_u32", vTB0, t3, 4 if B else 2, t2), valu("v_lshlrev_b32", vTB0, 7, vTB0),
                 valu("v_lshrrev_b32", t2, 1, t2), valu("v_lshl_add_u32", vTB0, t2, 6, vTB0), valu("v_and_b32", t2, 1, vLane), valu("v_lshl_add_u32", vTB0, t2, 5, vTB0),
                 valu("v_and_or_b32", vTB0, vLane, 16, vTB0), valu("v_and_b32", t2, 2, vLane), valu("v_lshl_add_u32", vTB0, t2, 2, vTB0)]
            if B:
                o += [salu("s_and_b32", sT[1], sW, 1), salu("s_lshl_b32", sT[1], sT[1], 6), valu("v_xor_b32", vTB0, sT[1], vTB0),
                      salu("s_lshr_b32", sT[1], sW, 1), salu("s_lshl_b32", sT[1], sT[1], 10), salu("s_add_u32", sT[1], sT[1], TL), valu("v_add_u32", vTB0, sT[1], vTB0)]
                return o, [ds_read("ds_read_b64_tr_b16", tl.sub(2 * u, 2), vTB0, u * 512) for u in range(2)], [buf_store("buffer_store_dwordx4", tl.sub(0, 4), vTS, rWS, flags="sc1", tag="ts")]
            o += [salu("s_add_u32", sT[1], sWQ, TL), valu("v_add_u32", vTB0, sT[1], vTB0), valu("v_xor_b32", vTB1, 64, vTB0), wait(vm="tl")]
            for s_ in range(2):
                for cb in range(2):
                    for u in range(2): o += [ds_read("ds_read_b64_tr_b16", tl.sub(8 * s_ + 4 * cb + 2 * u, 2), (vTB0, vTB1)[cb], s_ * 2048 + u * 1024)]
            return o, [buf_store("buffer_store_dword", vFV, vF2, rWS, flags="sc1")], [buf_store("buffer_store_dwordx4", tl.sub(4 * i, 4), vTS, rWS, 0, 1024 * i, flags="sc1", tag="ts") for i in range(4)]
        if B:
            if c.p0 == 1:
                add(salu("s_and_b32", sT[2], sWG, 63), salu("s_lshl_b32", sT[2], sT[2], 15), salu("s_lshr_b32", sT[1], sWG, 6), salu("s_lshl2_add_u32", sT[1], sT[1], sW),
                    salu("s_lshl_b32", sT[1], sT[1], 8), salu("s_add_u32", sT[1], sT[1], sT[2]),
                    valu("v_xor_b32", t2, t0, t1), valu("v_lshlrev_b32", t2, 4, t2), valu("v_lshl_add_u32", vXL, t0, 11, t2),
                    salu("s_add_u32", sXS, sT[1], 16384 - 1024), srd(*sizes[0])[2:], set_m0(sWQ, XL, "x"))
                add(self.stamp(256), raw("s_waitcnt lgkmcnt(0)", "waitcnt"), self.stamp(256))
                add(buf_dma(vXL, rX, sT[1], 0, tag="x"), buf_dma(vXL, rX, sXS, 1024, tag="x"), set_m0(sWQ, XL + 2048 - 128, "x"), salu("s_mov_b32", rWS[0], pWS[0]),
                    buf_dma(vXL, rX, sT[1], 128, tag="x"), buf_dma(vXL, rX, sXS, 1024 + 128, tag="x"))
            else:
                add(salu("s_and_b32", sT[2], sWG, 63), salu("s_lshl2_add_u32", sT[2], sT[2], sW), salu("s_lshr_b32", sT[1], sWG, 6), salu("s_lshl3_add_u32", sT[1], sT[2], sT[1]),
                    salu("s_lshl_b32", sT[1], sT[1], 10), valu("v_lshl_add_u32", vXL, vLane, 4, sT[1]), salu("s_mul_i32", sCNT, sW, 4352),
                    salu("s_movk_i32", sT[1], 960), salu("s_movk_i32", sT[2], 1920), salu("s_movk_i32", sT[3], 2880), srd(*sizes[0])[2:], set_m0(sCNT, XL, "x"))
                add(self.stamp(256), raw("s_waitcnt lgkmcnt(0)", "waitcnt"), self.stamp(256))
                add([buf_dma(vXL, rX, sT[i] if i else 0, 1088 * i, tag="x") for i in range(4)], salu("s_mov_b32", rWS[0], pWS[0]))
                add(valu("v_and_b32", vST, 3, vLane), valu("v_mul_u32_u24", t2, 1088, vST), valu("v_lshrrev_b32", vXL, 2, vLane), valu("v_lshl_add_u32", t2, vXL, 4, t2),
                    salu("s_add_u32", sCNT, sCNT, XL), valu("v_add_u32", vXR, sCNT, t2))
            add(self.stamp(256))
            add(srd(*sizes[1])[1:])
            if c.rsel: add(salu("s_lshr_b32", sT[1], sWG, 3), salu("s_and_b32", sT[2], sWG, 1), salu("s_lshl1_add_u32", sT[1], sT[1], sT[2]), salu("s_and_b32", sT[3], sWG, "0xe6"))
            else: add(salu("s_mov_b32", sT[1], sWG), salu("s_lshr_b32", sT[3], sWG, 3))
            add(salu("s_lshl_b32", sT[2], sT[1], 11), salu("s_add_u32", sT[2], sT[2], FLAGA_OFF), salu("s_lshl_b32", sT[1], sT[1], 2),
                salu("s_or_b32", sT[3], sT[3], sW), salu("s_cselect_b32", sT[2], OOB, sT[2]), salu("s_cselect_b32", sT[1], OOB, sT[1]),
                salu("s_lshl_b32", sT[3], sWG, 10), salu("s_add_u32", sT[3], sT[3], FLAG_OFF), salu("s_cmp_eq_u32", None, sW, 1),
                [salu("s_cselect_b32", sT[3], sT[3], OOB), valu("v_lshl_add_u32", vR2, vLane, 4, sT[3]), salu("s_mov_b32", sT[3], 7)] if c.rlate else
                [salu("s_cselect_b32", sT[2], sT[3], sT[2]), salu("s_cselect_b32", sT[3], 6, 7)],
                valu("v_lshrrev_b32", t2, 2, vLane), valu("v_and_b32", t3, 3, vLane), valu("v_lshlrev_b32", t3, 4, t3), valu("v_lshl_add_u32", t2, t2, sT[3], t3),
                valu("v_add_u32", vRS, sT[2], t2), valu("v_mov_b32", vSG, sT[1]), [valu("v_mov_b32", z[i], 0) for i in range(4)])
            add(buf_store("buffer_store_dwordx4", z, vRS, rWS, flags="sc1", tag="reset"))
            add(roles)
            for q in sizes[2:]: add(srd(*q))
            add(gu, srd(rGU, pG, 512 * 3584)[2:], tile_setup())
            if c.wo_late == -1: add(salu("s_lshr_b32", sT[1], sWQ, 2), set_m0(sT[1], TL, "tl"), buf_dma(vTL, rD, tag="tl"))
        else:
            add(roles)
            add(salu("s_lshl_b32", sT[0], sRB, 1), salu("s_add_u32", sT[0], sT[0], sJ), salu("s_sub_u32", sT[0], sT[0], 2),
                salu("s_lshl2_add_u32", sT[1], sT[0], sW), salu("s_mul_i32", sT[1], sT[1], 4 * 3072), salu("s_lshl_b32", sT[2], sGQ, 8), salu("s_add_u32", sT[1], sT[1], sT[2]),
                valu("v_and_b32", t2, 3, t0), valu("v_mul_u32_u24", t2, 3072, t2), valu("v_and_b32", t3, 1, t1), valu("v_lshl_add_u32", t2, t3, 7, t2),
                valu("v_add_u32", vTCH[3], sT[1], t2), valu("v_bfe_u32", t2, t1, 1, 1), valu("v_add_u32", t2, 1, t2), valu("v_lshl_add_u32", vTCH[1], t2, 10, vTCH[3]),
                salu("s_and_b32", sT[2], sW, 1), salu("s_lshl1_add_u32", sT[1], sT[0], sT[2]), salu("s_mul_i32", sT[1], sT[1], 8 * 3584),
                salu("s_mul_i32", sT[2], sGQ, 7 * 128), salu("s_add_u32", sT[1], sT[1], sT[2]),
                valu("v_mul_u32_u24", t2, 3584, t0), valu("v_add_u32", t2, sT[1], t2), valu("v_lshl_add_u32", vTCH[0], t3, 7, t2))
            if c.tlin:
                add(salu("s_sub_u32", sT[2], sWG, 128), salu("s_lshl2_add_u32", sT[3], sT[2], sW), salu("s_mul_i32", sCNT, sT[3], 3072),
                    valu("v_min_u32", vTCH[1], 23, vLane), valu("v_lshl_add_u32", vTCH[1], vTCH[1], 7, sCNT),
                    salu("s_mul_i32", sCNT, sT[3], 3584), valu("v_min_u32", vTCH[4], 27, vLane), valu("v_lshl_add_u32", vTCH[4], vTCH[4], 7, sCNT),
                    salu("s_and_b32", sT[3], sW, 1), salu("s_lshl1_add_u32", sT[3], sT[2], sT[3]), salu("s_mul_i32", sT[3], sT[3], 7168),
                    valu("v_min_u32", vTCH[0], 55, vLane), valu("v_lshl_add_u32", vTCH[0], vTCH[0], 7, sT[3]))
            add(srd(*sizes[3])[2:], srd(rGU, pG, 512 * 3584)[2:])
            add(self.stamp(256), raw("s_waitcnt lgkmcnt(0)", "waitcnt"), self.stamp(256))
            if c.c_delay:
                add(salu("s_mov_b32", sT[3], sT[1]), [self.dma_setup(ch) for ch in range(3)], salu("s_mov_b32", sT[1], sT[3]))
            if c.tlin == 2: add(srd(rD, pD, 1792 * 1024), self.touch(vTCH[4], rD))
            add(srd(*sizes[3])[:2], self.touch(vTCH[1], rQKV), gu, self.touch(vTCH[0], rGU), self.stamp(256))
            add(valu("v_and_b32", t3, 3, t1), valu("v_add_u32", t3, 2, t3), valu("v_lshl_add_u32", vTCH[2], t3, 7, t2),
                valu("v_bfe_u32", t2, vLane, 2, 3), valu("v_mul_u32_u24", t2, 3584, t2), valu("v_bfe_u32", t3, vLane, 4, 1), valu("v_xor_b32", t3, t3, vLane), valu("v_and_b32", t3, 3, t3),
                valu("v_lshl_add_u32", t2, t3, 4, t2),
                valu("v_lshrrev_b32", t3, 5, vLane), valu("v_lshl_add_u32", t2, t3, 6, t2), salu("s_add_u32", sT[1], sT[1], 768), valu("v_add_u32", vPL, sT[1], t2),
                buf_load("buffer_load_dwordx4", p6, vPL, rGU),
                salu("s_lshr_b32", sT[1], sT[0], 3), salu("s_lshl_b32", sT[1], sT[1], 14), salu("s_and_b32", sT[2], sT[0], 7), salu("s_lshl_b32", sT[2], sT[2], 10),
                salu("s_add_u32", sT[1], sT[1], sT[2]), salu("s_and_b32", sT[2], sW, 1), salu("s_lshl_b32", sT[2], sT[2], 9), salu("s_add_u32", sT[1], sT[1], sT[2]),
                salu("s_lshr_b32", sT[2], sW, 1), salu("s_lshl_b32", sT[2], sT[2], 13), salu("s_add_u32", sT[1], sT[1], sT[2]),
                salu("s_lshl_b32", sT[2], sGQ, 17), salu("s_add_u32", sT[1], sT[1], sT[2]), salu("s_add_u32", sT[1], sT[1], P6_OFF),
                valu("v_and_b32", t2, 31, vLane), valu("v_lshlrev_b32", t2, 4, t2), valu("v_lshl_add_u32", t2, t3, 16, t2), valu("v_add_u32", vPS, sT[1], t2),
                )
            add(tile_setup())
            tdma = [set_m0(sWQ, TL, "tl"), salu("s_mov_b32", sTHR, 7168)]
            for i in range(4):
                tdma += [buf_dma(vTL, rD, sTHR if i else 0, 1024 * i, tag="tl")]
                if 0 < i < 3: tdma += [salu("s_add_u32", sTHR, sTHR, 7168)]
            self.rest = [] if (c.tlin or c.b_rest is not None) else self.touch(vTCH[3], rQKV) + self.touch(vTCH[2], rGU)
            self.tdma = tdma
            if c.c_tile == -1: add(tdma)
            if c.q_early and self.rest: add(self.rest.pop(0))
            if c.c_rest == -1: add(self.rest)
            add(srd(*sizes[0])[2:])
            for q in sizes[1:3] + sizes[4:]: add(srd(*q))
        add(valu("v_mov_b32", vFV, 1))
        sa, sb = (8 * 3072, 8 * 3584) if B else (8 * 3584, 16 * 3584)
        for i in (1, 2, 3):
            add(salu("s_mov_b32", sOA[i], i * (sa - 1024)), salu("s_mov_b32", sOB[i], i * (sb - 1024)))
        if B or not c.c_delay: add(self.dma_setup(0))
        if B:
            for _ in range(c.w_0): add(self.dma_slab())
            add(salu("s_lshr_b32", sT[0], sWG, 1), salu("s_and_b32", sT[3], sWG, 1),
                salu("s_lshl_b32", sT[1], sT[0], 15), salu("s_lshl_b32", sT[2], sW, 13), salu("s_add_u32", sT[1], sT[1], sT[2]), salu("s_lshl_b32", sT[2], sT[3], 10),
                salu("s_add_u32", sT[1], sT[1], sT[2]), salu("s_add_u32", sT[1], sT[1], XN_OFF))
            if c.p0 == 1:
                add(valu("v_lshrrev_b32", t2, 4, vLane), valu("v_and_b32", t3, 2, t2), valu("v_xor_b32", t3, t3, t1), valu("v_lshlrev_b32", t3, 4, t3), valu("v_and_b32", vST, 15, vLane),
                    valu("v_lshl_add_u32", t3, vST, 7, t3), valu("v_and_b32", t2, 1, t2), valu("v_lshl_add_u32", t3, t2, 3, t3),
                    salu("s_add_u32", sT[2], sWQ, XL), valu("v_add_u32", vXR, sT[2], t3), valu("v_xor_b32", vXL, 64, vXR), valu("v_xor_b32", vPL, 16, vXR), valu("v_xor_b32", vPS, 16, vXL),
                    valu("v_lshl_add_u32", vXS, vLane, 4, sT[1]),
                    valu("v_lshlrev_b32", vST, 5, vST), valu("v_add_u32", vST, SPARE, vST),
                    salu("s_lshl_b32", sT[2], sW, 2), valu("v_lshrrev_b32", t3, 5, vLane), valu("v_lshl_add_u32", t3, t3, 4, sT[2]), valu("v_add_u32", vRS, t3, vST))
            else:
                add(valu("v_lshlrev_b32", t3, 4, vST), valu("v_lshl_add_u32", t3, vXL, 9, t3), valu("v_add_u32", vXS, sT[1], t3))
            add(
                salu("s_lshl_b32", sT[1], sT[0], 7), salu("s_lshl_b32", sT[2], sT[3], 2), salu("s_add_u32", sT[1], sT[1], sT[2]), salu("s_add_u32", sT[1], sT[1], FLAGA_OFF),
                salu("s_cmp_eq_u32", None, sW, 0), salu("s_cselect_b32", sT[1], sT[1], OOB),
                valu("v_mov_b32", t2, OOB), valu("v_mov_b32", t3, sT[1]), valu("v_cmp_eq_u32", "vcc", 0, vLane), valu("v_cndmask_b32", vF0, t2, t3, "vcc"),
                valu("v_mov_b32", one, "0x3f803f80"), valu("v_mov_b32", sm, 0), valu("v_mov_b32", sq, 0), salu("s_mov_b32", sXS, 4096))
        add(salu("s_lshl_b32", sT[1], sRB, 2), salu("s_add_u32", sT[1], sT[1], sW), salu("s_lshl_b32", sT[2], sT[1], 7), salu("s_add_u32", sT[2], sT[2], FLAGA_OFF),
            valu("v_and_b32", vPOLL, 1, vLane), valu("v_lshlrev_b32", vPOLL, 2, vPOLL), valu("v_add_u32", vP0, sT[2], vPOLL),
            salu("s_lshl_b32", sT[1], sT[1], 15), salu("s_add_u32", sT[1], sT[1], XN_OFF), valu("v_lshl_add_u32", vXN, vLane, 4, sT[1]),
            salu("s_cmp_eq_u32", None, sW, 0), salu("s_cselect_b32", sT[1], 0, OOB), salu("s_cselect_b32", sT[3], 0 if c.nodbg else 1, 0),
            valu("v_lshl_add_u32", vDB, t1, 2, sT[1]), valu("v_mov_b32", vTLB, sT[3]))
        if not B and not c.c_delay: add(self.dma_setup(1), self.dma_setup(2))
        if B and not c.b_lean: add(self.dma_setup(1), self.dma_setup(2))
        add(self.w2_setup())
        if c.setup_early or not B: self.misc_setup()
        add(self.stamp(65 + 256))
        if B:
            add(wait(vm="x"))
            if c.p0 == 1: add([ds_read("ds_read_b64", xr.sub(4 * i + 2 * u, 2), ((vXR, vPL), (vXL, vPS))[i & 1][u], 2048 * (i >> 1)) for i in range(4) for u in range(2)])
            else: add([ds_read("ds_read_b128", xr.sub(4 * i, 4), vXR, 256 * i) for i in range(4)])
            if c.sig_early: add(wait(vm="reset"), buf_store("buffer_store_dword", vFV, vSG, rDBG, flags="sc1"))
            add(self.stamp(64 + 256))
            for r in range(16): add(valu("v_dot2c_f32_bf16", sm, xr[r], one, rmw=True), valu("v_dot2c_f32_bf16", sq, xr[r], xr[r], rmw=True))
            add([valu("v_lshlrev_b32", lo[i], 16, xr[i]) for i in range(3)])
            add(valu("v_permlane32_swap_b32", sm, sq, rmw=True, wr2=sq), valu("v_add_f32", sm, sm, sq), valu("v_mov_b32", sq, sm))
            add([valu("v_lshlrev_b32", lo[i], 16, xr[i]) for i in (3, 4)])
            add(valu("v_permlane16_swap_b32", sm, sq, rmw=True, wr2=sq), valu("v_add_f32", sm, sm, sq))
            sig = [] if c.sig_early else [wait(vm="reset"), buf_store("buffer_store_dword", vFV, vSG, rDBG, flags="sc1")]
            shl = lambda a, b: [valu("v_lshlrev_b32", lo[i], 16, xr[i]) for i in range(a, b)]
            if c.p0 == 1:
                add(ds_write("ds_write_b32", vRS, sm, tag="st"), sig, shl(5, 16))
                add(wait(lg="st"), self.stamp(256), barrier(), self.stamp(256))
                add([ds_read("ds_read_b128", part.sub(4 * i, 4), vST, 16 * i) for i in range(2)])
                add([valu("v_and_b32", xr[i], "0xffff0000", xr[i]) for i in range(16)])
                add(valu("v_pk_add_f32", part.sub(0, 2), part.sub(0, 2), part.sub(2, 2)), valu("v_pk_add_f32", part.sub(4, 2), part.sub(4, 2), part.sub(6, 2)),
                    valu("v_add_f32", sm, part[0], part[1]), valu("v_add_f32", sq, part[4], part[5]))
            else:
                add(shl(5, 7), valu("v_add_f32_dpp", sm, sm, sm, extra="row_ror:8 row_mask:0xf bank_mask:0xf"),
                    shl(7, 9), valu("v_add_f32_dpp", sm, sm, sm, extra="row_ror:4 row_mask:0xf bank_mask:0xf"), valu("v_mov_b32", sq, sm),
                    shl(9, 11), valu("v_permlane32_swap_b32", sm, sq, rmw=True, wr2=sq), sig, shl(11, 16), self.stamp(256), self.stamp(256))
                add([valu("v_and_b32", xr[i], "0xffff0000", xr[i]) for i in range(16)])
            add(
                valu("v_mul_f32", sm, f32(1 / 512), sm), valu("v_mul_f32", sq, f32(1 / 512), sq),
                valu("v_fma_f32", sq, f"-{sm}", sm, sq), valu("v_max_f32", sq, 0, sq),
                valu("v_cvt_pk_bf16_f32", sq, sq, sm),
                valu("v_and_b32", sm, "0xffff0000", sq), valu("v_lshlrev_b32", sq, 16, sq),
                valu("v_add_f32", sq, f32(1e-5), sq), valu("v_cvt_pk_bf16_f32", sq, sq, sq), valu("v_lshlrev_b32", sq, 16, sq),
                valu("v_sqrt_f32", sq, sq), valu("v_cvt_pk_bf16_f32", sq, sq, sq), valu("v_lshlrev_b32", sq, 16, sq),
                valu("v_rcp_f32", rb[1], sq), valu("v_mul_f32", rb[0], f"-{sm}", rb[1]))
            for h in range(4):
                for r in (lo, xr):
                    add([valu("v_pk_fma_f32", r.sub(i, 2), r.sub(i, 2), rb, rb, extra="op_sel:[0,1,0] op_sel_hi:[1,1,0]") for i in (4 * h, 4 * h + 2)])
                add([valu("v_cvt_pk_bf16_f32", xr[i], lo[i], xr[i]) for i in range(4 * h, 4 * h + 4)])
                if c.p0 == 1: add(buf_store("buffer_store_dwordx4", xr.sub(4 * h, 4), vXS, rWS, sXS if h >> 1 else 0, 2048 * (h & 1), flags="sc1"))
                else: add(salu("s_movk_i32", sXS, 8192 * h), buf_store("buffer_store_dwordx4", xr.sub(4 * h, 4), vXS, rWS, sXS, flags="sc1"))
            if c.rlate: add(buf_store("buffer_store_dwordx4", z, vR2, rWS, flags="sc1"))
            if c.dpos == 0: add(self.poll_issue(vDB, rDBG))
            add(self.stamp(64))
            if c.dpos != 2:
                for _ in range(c.w_a): add(self.dma_slab())
            if c.b_rest is not None:
                add(salu("s_lshl1_add_u32", sT[0], sRB, sJ), salu("s_lshl2_add_u32", sT[1], sT[0], sW), salu("s_mul_i32", sT[1], sT[1], 4 * 3072), salu("s_lshl_b32", sT[2], sGQ, 8),
                    salu("s_add_u32", sT[1], sT[1], sT[2]), valu("v_and_b32", t2, 3, t0), valu("v_mul_u32_u24", t2, 3072, t2), valu("v_and_b32", t3, 1, t1),
                    valu("v_lshl_add_u32", t2, t3, 7, t2), valu("v_add_u32", vTCH[3], sT[1], t2),
                    salu("s_and_b32", sT[2], sW, 1), salu("s_lshl1_add_u32", sT[1], sT[0], sT[2]), salu("s_mul_i32", sT[1], sT[1], 8 * 3584),
                    salu("s_mul_i32", sT[2], sGQ, 7 * 128), salu("s_add_u32", sT[1], sT[1], sT[2]), salu("s_add_u32", sT[1], sT[1], 256),
                    valu("v_mul_u32_u24", t2, 3584, t0), valu("v_add_u32", t2, sT[1], t2), valu("v_and_b32", t3, 3, t1), valu("v_lshl_add_u32", vTCH[2], t3, 7, t2))
                self.rest = self.touch(vTCH[3], rQKV) + self.touch(vTCH[2], rGU)
            if c.b_lean: add(self.dma_setup(1), self.dma_setup(2))
            self.mid = self.poll_issue(vDB, rDBG) if c.dpos == 3 else []
            if not c.setup_early: self.misc_setup()
            if c.dpos in (1, 2): add(self.poll_issue(vDB, rDBG))
            if c.dpos == 2:
                for _ in range(c.w_a): add(self.dma_slab())
            pre, rd, self.ts = tile_store()
            add(pre)
            add(self.poll_check(vDB, rDBG, vTLB))
            add(self.stamp(64))
            add(barrier(), self.stamp(64), buf_store("buffer_store_dword", vFV, vF0, rWS, flags="sc1"))
            wo = [salu("s_lshr_b32", sT[1], sWQ, 2), set_m0(sT[1], TL, "tl"), buf_dma(vTL, rD, tag="tl")]
            if c.wo_late == 0: add(wo)
            for _ in range(c.w_b): add(self.dma_slab())
        else:
            pre, rd, self.ts = tile_store()
            for _ in range(c.w_c0): add(self.dma_slab())
            if c.c_tile == -1: add(pre)
            else:
                assert c.ts_pos > c.c_tile and c.ts_pos >= 0
                add(pre[:14]); self.ts = pre[14:] + self.ts
            if c.w_c0: add(self.stamp(64 + 256), self.stamp(256), self.stamp(64 + 256))
            else: add(self.stamp(64 + 256), self.dma_slab(), self.stamp(256), wait(vm="w0"), self.stamp(64 + 256))
            add(buf_store("buffer_store_dwordx4", p6, vPS, rWS, flags="sc1"))
            if c.ts_pos < 0: add(self.ts); self.ts = []
            add(self.poll_issue(vDB, rDBG))
            while self.nslab < c.w_c: add(self.dma_slab())
            if c.c_tile == -2: add(tdma)
            if c.c_rest == -2: add(self.rest)
            add(self.poll_check(vDB, rDBG, vTLB), self.stamp(64), barrier(), self.stamp(64))
        add(self.poll_issue(vP0, rWS), wait_regs(vPV), self.stamp(64), self.poll_check(vP0, rWS, 1))
        add(self.stamp(65 + 256))
        self.nx = 0
        for _ in range(c.nx0 // 2): add(self.x_load())
        add(wait(vm=["w0", "tl"] if B else "w0"), barrier(), rd)
        F = self.frag_list()
        for k in range(c.LA):
            add(self.frag_reads(k, F[k]))
            if k % 2 and self.nx < c.nx0: add(self.x_load())
        while self.nx < c.nx0: add(self.x_load())
    def x_load(self):
        j = self.nx; self.nx += 1
        o = []
        if j % 4 == 0: o += [salu("s_mov_b32", sXS, j * 1024)]
        return o + [buf_load("buffer_load_dwordx4", X.sub(4 * j, 4), vXN, rWS, 0 if self.cfg.dbg & 8 else sXS, (j % 4) * 1024, flags="sc1")]

    def misc_setup(self):
        add = self.add
        t0, t1, t2, t3 = T[0], T[1], T[2], T[3]
        TR = self.TR
        add(valu("v_bfe_u32", t0, vLane, 2, 3), valu("v_and_b32", t1, 32, vLane), valu("v_lshrrev_b32", t1, 1, t1), valu("v_add_u32", t1, t1, t0),
            valu("v_and_b32", t2, 1, vLane), valu("v_lshlrev_b32", t2, 3, t2), valu("v_and_b32", t3, 2, vLane),
            valu("v_lshl_add_u32", TR[0], t1, 7, t2), valu("v_lshl_add_u32", TR[0], t3, 5, TR[0]), valu("v_lshrrev_b32", t0, 1, t0), valu("v_lshl_add_u32", TR[0], t0, 4, TR[0]),
            [valu("v_xor_b32", TR[i], 16 * i, TR[0]) for i in (1, 2, 3)])
        if not self.B:
            add(valu("v_lshl_add_u32", TR[4], t1, 6, t2), valu("v_lshl_add_u32", TR[4], t3, 4, TR[4]), valu("v_and_or_b32", TR[4], vLane, 16, TR[4]), valu("v_xor_b32", TR[5], 16, TR[4]))
        self.win = [0] * 6
        for ch in range(3):
            if not (self.B and ch == 0): add(self.set_hu(ch))
        if self.B: add(self.att_setup())
        add(self.mid)
        add(salu("s_lshl_b32", sT[1], sRB, 2), salu("s_add_u32", sT[1], sT[1], sW), salu("s_mul_i32", sT[2], sT[1], HSTR),
            valu("v_and_b32", t0, 16, vLane), valu("v_lshlrev_b32", t0, 1, t0), valu("v_and_or_b32", t0, vLane, 15, t0), valu("v_lshl_add_u32", t0, t0, 4, sT[2]),
            valu("v_and_b32", t1, 32, vLane), valu("v_lshl_add_u32", vHST, t1, 6, t0))
        if not self.B: add(valu("v_lshl_add_u32", vSCR, t1, 5, t0))
        if self.cfg.dbg & 1: add(valu("v_mov_b32", vHST, OOB))
        add(salu("s_lshr_b32", sT[1], sT[1], 1), salu("s_lshl_b32", sT[1], sT[1], 2), salu("s_add_u32", sT[1], sT[1], sGQ), salu("s_lshl_b32", sT[1], sT[1], 10),
            salu("s_and_b32", sT[2], sW, 1), salu("s_lshl_b32", sT[3], sJ, 1), salu("s_add_u32", sT[2], sT[2], sT[3]), salu("s_lshl_b32", sT[2], sT[2], 2),
            salu("s_add_u32", sT[1], sT[1], sT[2]), salu("s_add_u32", sT[1], sT[1], FLAG_OFF),
            valu("v_mov_b32", t0, OOB), valu("v_mov_b32", t1, sT[1]), valu("v_cmp_eq_u32", "vcc", 0, vLane), valu("v_cndmask_b32", vFLG, t0, t1, "vcc"))
        if self.B: add(valu("v_add_u32", vFH, sH3, vFLG))
        add(salu("s_lshl_b32", sT[1], sTB2, 1), salu("s_lshr_b32", sT[2], sW, 1), salu("s_add_u32", sT[1], sT[1], sT[2]), salu("s_mul_i32", sP2h, sT[1], HSTR),
            salu("s_xor_b32", sT[2], sT[1], 1), salu("s_mul_i32", sHS, sT[2], HSTR),
            salu("s_lshl_b32", sT[1], sT[1], 5),
            salu("s_and_b32", sT[2], sT[1], 1023), salu("s_lshl_b32", sT[2], sT[2], 11), salu("s_lshr_b32", sT[1], sT[1], 10), salu("s_lshl_b32", sT[1], sT[1], 10),
            salu("s_add_u32", sT[1], sT[1], sT[2]), salu("s_lshl_b32", sT[2], sCB2, 7), salu("s_add_u32", sT[1], sT[1], sT[2]),
            salu("s_and_b32", sT[2], sW, 1), salu("s_lshl_b32", sT[2], sT[2], 6), salu("s_add_u32", sP2x, sT[1], sT[2]),
            salu("s_lshl_b32", sT[1], sTB2, 2), salu("s_add_u32", sT[1], sT[1], sW), salu("s_lshl_b32", sT[1], sT[1], 10), salu("s_add_u32", sP2f, sT[1], FLAG_OFF))
        add(salu("s_mul_i32", sT[1], sCB2, 72 * 4096), salu("s_add_u32", sT[1], sT[1], WT_OFF), salu("s_lshl_b32", sT[2], sT[2], 4),
            salu("s_add_u32", sT[3], sT[1], sT[2]), valu("v_lshl_add_u32", vW[0], vLane, 4, sT[3]),
            salu("s_sub_u32", sT[3], sT[1], sT[2]), valu("v_lshl_add_u32", vW[1], vLane, 4, sT[3]), valu("v_lshl_add_u32", vWB, vLane, 4, sWQ),
            salu("s_lshl_b32", sT[1], sCB2, 8), salu("s_add_u32", sT[1], sT[1], FLAGA_OFF + 96 * 128), salu("s_lshl_b32", sT[2], sGQ, 9), salu("s_add_u32", sT[2], sT[2], FLAGA_OFF + 64 * 128),
            salu("s_lshr_b32", sT[3], sCB2, 1), salu("s_xor_b32", sT[3], sT[3], self.cfg.tx), salu("s_lshl_b32", sT[3], sT[3], 9), salu("s_add_u32", sT[3], sT[3], FLAGA_OFF + 80 * 128),
            salu("s_cmp_eq_u32", None, sW, 0), salu("s_cselect_b32", sT[1], sT[1], OOB), salu("s_cselect_b32", sT[2], sT[2], OOB), salu("s_cselect_b32", sT[3], sT[3], OOB),
            salu("s_cselect_b32", sW0, 1, 0),
            valu("v_and_b32", t0, 24, vLane), valu("v_lshlrev_b32", t0, 2, t0), valu("v_and_or_b32", t0, vLane, 7, t0), valu("v_and_b32", t1, 63, t0),
            valu("v_lshl_add_u32", t1, t1, 2, sT[1]), valu("v_lshl_add_u32", vP2, t0, 2, sT[3]),
            valu("v_cmp_lt_u32", "vcc", 31, vLane), valu("v_cndmask_b32", vP2, vP2, t1, "vcc"))
        if not self.B: add(valu("v_lshl_add_u32", vP6, t0, 2, sT[2]))
        add(salu("s_xor_b32", sU[0], sTB2, sCB2), salu("s_and_b32", sU[0], sU[0], self.cfg.rot), salu("s_lshl_b32", sU[0], sU[0], 11),
            [salu("s_xor_b32", sU[t], sU[0], t << 11) for t in (1, 2, 3)], [salu("s_and_b32", sUh[t], sU[t], 1 << 11) for t in (0, 1)])

    def chunk_of(self, n): return 0 if n < 8 else (1 if n < 12 else 2)
    def dma_setup(self, ch):
        t0, t1 = T[0], T[1]
        o = []
        B = self.B
        half = (not B) and ch == 1
        stride = 3072 if (B and ch < 2) else 3584
        if half:
            return [salu("s_lshl_b32", sT[1], sGQ, 1), salu("s_add_u32", sT[1], sT[1], sJ), salu("s_lshl_b32", sT[1], sT[1], 16), salu("s_add_u32", sT[1], sT[1], sWQ),
                    salu("s_add_u32", sT[1], sT[1], P6_OFF - 2 * 65536), valu("v_lshl_add_u32", vDMA1, vLane, 4, sT[1])]
        else:
            o += [valu("v_lshrrev_b32", t0, 4, vLane), valu("v_and_b32", t1, 7, vLane), valu("v_xor_b32", t1, t0, t1), valu("v_lshrrev_b32", t0, 3, vLane)]
        o += [valu("v_mul_u32_u24", t0, stride, t0), valu("v_lshl_add_u32", t0, t1, 4, t0)]
        a, b = sT[1], sT[2]
        if B and ch == 0:
            o += [salu("s_lshl_b32", a, sGQ, 1), salu("s_add_u32", a, a, sJ), salu("s_lshl_b32", a, a, 7), salu("s_lshr_b32", b, sW, 1),
                  salu("s_add_u32", b, b, 1), salu("s_lshl_b32", b, b, 10), salu("s_add_u32", a, a, b), salu("s_and_b32", b, sW, 1),
                  salu("s_mul_i32", b, b, 32 * stride), salu("s_add_u32", a, a, b)]
        elif B and ch == 1:
            o += [salu("s_lshl_b32", a, sGQ, 1), salu("s_add_u32", a, a, sJ), salu("s_lshl_b32", a, a, 7), salu("s_mul_i32", b, sW, 32 * stride),
                  salu("s_add_u32", a, a, b)]
        else:
            if half: o += [salu("s_lshl_b32", b, sJ, 6), salu("s_add_u32", b, b, 6 * 128 - 128)]
            else: o += [salu("s_lshl_b32", b, sJ, 7), salu("s_sub_u32" if ch == 0 else "s_add_u32", b, b, 256)]
            o += [salu("s_mul_i32", a, sGQ, 7 * 128), salu("s_add_u32", a, a, b), salu("s_and_b32", b, sW, 1),
                  salu("s_mul_i32", b, b, (64 if half else 32) * stride), salu("s_add_u32", a, a, b)]
        o += [valu("v_add_u32", (vDMA0, vDMA1, vDMA2)[ch], a, t0)]
        return o
    def dma_slab(self):
        n = self.nslab; self.nslab += 1
        ch = self.chunk_of(n)
        B = self.B
        vd = (vDMA0, vDMA1, vDMA2)[ch]
        srd = rQKV if (B and ch < 2) else rGU
        so = (sOA if ch < 2 else sOB) if B else (sOB if ch == 1 else sOA)
        stride = 3072 if (B and ch < 2) else 3584
        o = [set_m0(sWQ, slab_slot(n) * SLOT, f"w{n}")]
        if ch == 1 and not B:
            if n > 8: o += [valu("v_add_u32", vd, 16384, vd)]
            return o + [buf_dma(vd, rWS, 0, i * 1024, flags="sc1", tag=f"w{n}") for i in range(4)]
        if n not in (0, 8, 12) and not self.cfg.dbg & 16: o += [valu("v_add_u32", vd, (128 if ch == 1 else 64) * stride, vd)]
        o += [buf_dma(vd, srd, so[i], i * 1024, flags="sc1" if self.cfg.dbg & 16 else self.cfg.wflags, tag=f"w{n}") for i in range(2 if (self.cfg.dbg & 512 and n >= 7) else 4)]
        return o
    def frag_list(self):
        L = []
        for n in range(20):
            ch = self.chunk_of(n)
            base = slab_slot(n) * SLOT
            if ch != 1:
                n0 = 0 if ch == 0 else 12
                for jj in range(2):
                    for cc in range(4):
                        for im in range(2):
                            L.append(([ACC1.sub(16 * im + 32 * th + 4 * cc, 4) for th in range(2)], 4 * (n - n0) + 2 * jj, n, base + im * 8192 + jj * 4096, cc, 1024))
            else:
                for jj in range(4):
                    for cc in range(4):
                        if self.B: L.append(([ACC2.sub(16 * th + 4 * cc, 4) for th in range(2)], 8 * (n - 8) + 2 * jj, n, base + jj * 4096, cc, 1024))
                        else: L.append(([ACC2.sub(16 * (cc & 1) + 8 * th + 4 * (cc >> 1), 4) for th in range(2)], 8 * (n - 8) + 2 * jj, n, base + (cc & 1) * 8192 + jj * 2048, 4 + (cc >> 1), 512))
        assert not self.cfg.nspl
        if self.cfg.chain:
            M = []
            for n in range(20):
                f = L[16 * n:16 * n + 16]
                h = 4 if self.chunk_of(n) == 1 else 8
                for a in range(0, 16, 2 * h):
                    for i in range(h): M += [f[a + i], f[a + h + i]]
            L = M
        return L
    def window(self, wins, which, reg, off, span):
        o = []
        if not (wins[which] <= off and off + span <= wins[which] + 65536):
            w = off // SLOT * SLOT
            d = w - wins[which]
            o += [valu("v_add_u32" if d > 0 else "v_subrev_u32", reg, abs(d), reg)]
            wins[which] = w
        return o, off - wins[which]
    def frag_reads(self, k, f):
        acc, step, n, off, which, ustep = f
        b = self.TR[which]
        o, imm = self.window(self.win, which, b, off, 2048)
        dst = WF.sub(4 * (k % self.cfg.NB), 4)
        o += [ds_read("ds_read_b64_tr_b16", dst.sub(0, 2), b, imm, tag=f"f{k}"), ds_read("ds_read_b64_tr_b16", dst.sub(2, 2), b, imm + ustep, tag=f"f{k}")]
        return o
    def ffn_epi(self, G, U, ch, kst, tag, pk=False):
        o = []
        for b in range(4):
            t = [T[4 + i] for i in range(4)]
            g = [G[4 * b + i] for i in range(4)]; u = [U[4 * b + i] for i in range(4)]
            if pk:
                t2 = [T.sub(4, 2), T.sub(6, 2)]; g2 = [G.sub(4 * b, 2), G.sub(4 * b + 2, 2)]; u2 = [U.sub(4 * b, 2), U.sub(4 * b + 2, 2)]
                o += [valu("v_pk_mul_f32", t2[i], g2[i], T.sub(0, 2)) for i in range(2)]
                o += [valu("v_exp_f32", t[i], t[i]) for i in range(4)]
                o += [valu("v_pk_mul_f32", u2[i], g2[i], u2[i]) for i in range(2)]
                o += [valu("v_pk_add_f32", t2[i], t2[i], T.sub(2, 2)) for i in range(2)]
                o += [valu("v_rcp_f32", t[i], t[i]) for i in range(4)]
                o += [valu("v_pk_mul_f32", u2[i], u2[i], t2[i]) for i in range(2)]
            else:
                o += [valu("v_mul_f32", t[i], sNL if self.cfg.sconst else f32(-LOG2E), g[i]) for i in range(4)]
                for i in range(4): o += [valu("v_exp_f32", t[i], t[i]), valu("v_mul_f32", u[i], g[i], u[i])]
                o += [valu("v_add_f32", t[i], "1.0", t[i]) for i in range(4)]
                o += [valu("v_rcp_f32", t[i], t[i]) for i in range(4)]
                o += [valu("v_mul_f32", u[i], u[i], t[i]) for i in range(4)]
            o += [valu("v_cvt_pk_bf16_f32", G[2 * b + i], u[2 * i], u[2 * i + 1]) for i in range(2)]
            if b & 1: o += [buf_store("buffer_store_dwordx4", G.sub(2 * (b - 1), 4), vSCR if ch == 1 else vHST, rWS, sHu[ch], kst + (b >> 1) * (256 if ch == 1 else 1024), flags=self.cfg.hflags, tag=tag)]
        return o
    def set_hu(self, ch):
        a = sT[1]
        if self.B and ch == 1:
            return [salu("s_lshl_b32", a, sGQ, 1), salu("s_add_u32", a, a, sJ), salu("s_lshl_b32", a, a, 12), salu("s_add_u32", sHu[ch], a, 112 * 1024)]
        o = [salu("s_mul_i32", sHu[ch], sGQ, 28 * 1024)]
        if ch == 1: o += [salu("s_lshl_b32", a, sJ, 11), salu("s_add_u32", a, a, 6 * 4096 - 4096)]
        else: o += [salu("s_lshl_b32", a, sJ, 12), salu("s_sub_u32" if ch == 0 else "s_add_u32", a, a, 8192)]
        return o + [salu("s_add_u32", sHu[ch], sHu[ch], a)]

    def phase1(self):
        c, add, B = self.cfg, self.add, self.B
        F = self.frag_list()
        NM = len(F)
        assert not c.chain or (c.wstep % 2 == 0 and c.NB >= c.LA + 2)
        gaps = [[] for _ in range(NM)]
        tail = [[] for _ in range(NM)]
        load = [0] * NM
        def put(k, ins, last=False):
            (tail if last else gaps)[k] += ins
            load[k] += sum(cyc(i) for i in ins)
        def spread(ins, k0, k1):
            tot = sum(cyc(i) for i in ins)
            lo, hi = 0.0, 1000.0
            for _ in range(40):
                mid = (lo + hi) / 2
                if sum(max(0, mid - load[k]) for k in range(k0, k1)) >= tot: hi = mid
                else: lo = mid
            cap, acc = [], 0.0
            for k in range(k0, k1):
                acc += max(0, hi - load[k]); cap.append(acc)
            k, used = 0, 0.0
            for i in ins:
                while k < len(cap) - 1 and used + cyc(i) / 2 > cap[k] and i.kind != "branch": k += 1
                put(k0 + k, [i]); used += cyc(i)
        bar_gap = {n: 16 * n - c.LA - 1 for n in range(1, 20)}
        bar_gap[0], bar_gap[20] = -1, NM
        self.bar_extra = {n: [] for n in range(1, 21)}
        need = {n: max(f[2] for f in F[:min(NM, bar_gap[n + 1] + c.LA + 1)]) for n in range(20)}
        skip = lambda n: c.bar2 and c.bar2 <= n < 19 and (n - c.bar2) % 2 == 1
        self.skip = skip
        for n in range(18, 0, -1):
            if skip(n + 1): need[n] = need[n + 1]
        for n in (c.pw_per, c.p6_per, c.f2_bar): assert not skip(n)
        lastx = lambda i: max(k for k, f in enumerate(F) if f[1] // 4 == i)
        plan = dict((int(p.split(":")[0]), p.split(":")[1].split(".")) for p in (c.planB if B else c.planC).split(",") if p)
        self.pool = list(ABUF) + VBUF[:5] + ([] if B else VBUF[5:7])
        put(bar_gap[c.pw_per] - 1 - c.pw_lead, self.poll_issue(vP2, rWS))
        put(bar_gap[c.pw_per] - 1, self.poll_check(vP2, rWS, sW0))
        if not B:
            assert bar_gap[c.p6_per] <= bar_gap[c.pw_per] - 1 - c.pw_lead
            put(bar_gap[c.p6_per] - 1 - c.pw_lead, self.poll_issue(vP6, rWS))
            put(bar_gap[c.p6_per] - 1, self.poll_check(vP6, rWS, sW0))
        put(bar_gap[c.f2_bar] + 1, [buf_store("buffer_store_dword", vFV, vF2, rWS, 0, 2048, flags="sc1")])
        for n in range(20):
            k = bar_gap[n]
            if n and not skip(n): load[k] += 14
            if B and n and bar_gap[n - 1] < c.g_halo + 2 * (9 + c.att_w) <= k: self.pool += VBUF[5:]
            if n == 9 and not B: self.pool += VBUF[7:]
            ops = list(plan.get(n, []))
            ins = []
            while ops and ops[0] in ("r", "H"):
                ins += self.plan_op(ops.pop(0), n)
            w = []
            nw = 0
            while self.nslab < 20 and self.nslab <= n - (1 if skip(n) else 0) + c.NS - 2 and (B or self.nslab < 8 or n >= c.p6_per) and (self.nslab <= need[min(19, n + 2)] or nw + ops.count("w") < 1 or "w" in ops):
                if nw and "w" in ops: ops.remove("w")
                w += self.dma_slab(); nw += 1
            ops = [x for x in ops if x != "w"]
            assert self.nslab > need[min(19, n + 2)], n
            if n == max(c.ts_pos, 0): ins += self.ts
            while c.xfree and self.xf_n < 5 and lastx(self.xf_n) <= k: self.pool += [A(16 * self.xf_n, 16)]; self.xf_n += 1
            nxl = min(32 - self.nx, c.xr[n] if n < len(c.xr) else (c.xrate if n else max(1, c.xrate // 2)))
            for i in w:
                if i.kind == "dma" and nxl: ins += self.x_load(); nxl -= 1
                ins.append(i)
            for _ in range(nxl): ins += self.x_load()
            assert self.nx >= min(32, (bar_gap[n + 1] + 16) // 4 + (3 if c.chain else 1)), n
            if n == c.c_tile and not B: ins += self.tdma
            if n == (c.b_rest if B else c.c_rest): ins += self.rest
            for op in ops: ins += self.plan_op(op, n)
            if ins: spread(ins, k + 1, bar_gap[n + 1])
        if not B:
            ins = self.ffn_epi(ACC1.sub(0, 16), ACC1.sub(16, 16), 0, 0, "st1") + self.ffn_epi(ACC1.sub(32, 16), ACC1.sub(48, 16), 0, 256, "st1")
            spread(ins, 129, 191)
            if not c.one_pa: put(c.g_f1c, self.flag(L_P1, "st1"))
            spread(self.ffn_epi(ACC2.sub(0, 16), ACC2.sub(16, 16), 1, 0, "st2"), 194, c.h2_end)
            put(c.g_f2c, self.flag(L_HALF, "st2"))
        else:
            self.attention(put, spread, bar_gap, load)
        if c.nspl:
            k0 = max(320 - 8 * c.nspl + 2, self.att_end + 7 if B else 0)
            spread(self.ffn_epi(ACC1.sub(0, 16), ACC1.sub(16, 16), 2, 0, "st3"), k0, c.e0_end)
        o = [valu("v_lshl_add_u32", vH[0], vLane, 4, sP2h), valu("v_lshl_add_u32", vH[1], vLane, 4, sHS),
             valu("v_and_b32", vPOLL, 7, vLane), valu("v_lshrrev_b32", vTHR, 2, vPOLL), valu("v_lshl_add_u32", vPOLL, vPOLL, 2, sP2f),
             ]
        if not c.otr: o += [valu("v_and_b32", vXO, 31, vLane), valu("v_lshlrev_b32", vXO, 11, vXO), valu("v_and_or_b32", vXO, vLane, 32, vXO), valu("v_add_u32", vXO, sP2x, vXO)]
        spread(o, *((176, 192) if B else (200, c.g_pa)))
        la = L_HALF if c.one_pa else L_P1
        put(c.g_pa, self.poll_issue(vPOLL, rWS, la))
        assert c.g_pa < bar_gap[c.pa_per] - 1
        put(bar_gap[c.pa_per] - 1, self.poll_check(vPOLL, rWS, vTHR, la))
        self.pa2 = (vPOLL, rWS, vTHR, L_HALF)
        if c.m_pb == -1:
            put(c.g_pa2 - 2, [valu("v_lshlrev_b32", vP2, 7, vTHR), valu("v_sub_u32", vP2, vPOLL, vP2)])
            self.pa2 = (vP2, rWS, 1, L_O)
        if not c.one_pa: put(c.g_pa2, self.poll_issue(self.pa2[0], rWS, self.pa2[3]))
        if c.pa2_epi < 0 and not c.one_pa: put(319, self.poll_check(*self.pa2))
        spread([valu("v_mov_b32", T[0], f32(-LOG2E)), valu("v_mov_b32", T[1], f32(-LOG2E)), valu("v_mov_b32", T[2], "1.0"), valu("v_mov_b32", T[3], "1.0")], 312, 320)
        inv_bar = {v: n for n, v in bar_gap.items() if 1 <= n <= 19}
        for k in range(NM):
            acc, step, n, off, which, us = F[k]
            if k % c.wstep == 0: add(wait(lg=[f"f{i}" for i in range(k, k + c.wstep)]))
            rd = self.frag_reads(k + c.LA, F[k + c.LA]) if k + c.LA < NM else []
            fill = gaps[k]
            tot, u, n1 = sum(cyc(i) for i in fill), 0, 0
            while n1 < len(fill) and (u + cyc(fill[n1]) / 2 <= tot / 2 or fill[n1].kind == "branch"): u += cyc(fill[n1]); n1 += 1
            if 2 * u > tot + 4: r1 = 0 if len(rd) <= 2 else len(rd) - 1
            elif 2 * u < tot - 4: r1 = len(rd)
            else: r1 = max(0, len(rd) - 1)
            if c.chain:
                th = k & 1
                first = F[k & ~1][1] == 0
                mm = [mfma(16, acc[th], WF.sub(4 * (kk % c.NB), 4), X.sub(4 * (F[kk][1] + th), 4), 0 if (first and kk == k) else acc[th]) for kk in (k, k ^ 1)]
            else: mm = [mfma(16, acc[th], WF.sub(4 * (k % c.NB), 4), X.sub(4 * (step + th), 4), 0 if step == 0 else acc[th]) for th in range(2)]
            add(mm[0])
            if k == 0: add(self.stamp(67))
            add(rd[:r1], fill[:n1])
            add(mm[1], rd[r1:], fill[n1:], tail[k])
            if k in inv_bar:
                n = inv_bar[k]
                assert not (skip(n) and self.bar_extra[n])
                if n == 19 or need[n] > need[n - 1]: add(wait(vm=[f"w{need[n]}"] + (["ts"] if n == c.f2_bar else []), lg=self.bar_extra[n] or None), barrier())
            if k in (127, 191): add(self.stamp())
            if k in (31, 63): add(self.stamp(64))
            if k % 32 == 31 and 31 < k < 319: add(self.stamp(2))
            if k in c.sg: add(self.stamp(32))
        add(self.stamp(131))
        self.load = load
    def plan_op(self, op, n):
        if op == "l":
            assert n >= self.cfg.pw_per
            return self.w2_load()
        if op == "h":
            assert n >= self.cfg.pa_per and self.h_n < 4
            return self.h_load()
        if op == "P": return self.poll_issue(vPOLLH, rWS)
        if op == "H":
            self.halo_period = n
            i = salu("s_mov_b32", "m0", sHM0); i.tag = "halo"
            return self.poll_check(vPOLLH, rWS, sTHR) + [i] + [buf_dma((vHLD, vHLD2)[q], rWS, 0, 1024 * q, flags="sc1", tag="halo") for q in range(2)]
        slot = int(op[1:])
        if slot < self.cfg.NS: assert n - (1 if self.skip(n) else 0) >= 2 + max(x for x in range(20) if slab_slot(x) == slot)
        if self.B and slot >= 7: assert n >= 19
        assert n >= self.cfg.pw_per
        return self.w2_dma(slot)

    def att_setup(self):
        t0, t1 = T[0], T[1]
        o = [valu("v_and_b32", t0, 15, vLane), valu("v_mul_u32_u24", t0, RP, t0), valu("v_and_b32", t1, 48, vLane), valu("v_lshlrev_b32", t1, 1, t1),
             salu("s_mul_i32", sT[0], sW, 32 * RP), salu("s_add_u32", sT[0], sT[0], SCR), valu("v_add3_u32", vSCR, sT[0], t0, t1),
             valu("v_and_b32", t0, 3, vLane), valu("v_bfe_u32", vVTR, vLane, 2, 2), valu("v_lshl_add_u32", t0, t0, 2, vVTR),
             valu("v_mul_u32_u24", t0, RP, t0), valu("v_add3_u32", vVTR, sT[0], t0, t1),
             salu("s_mov_b32", sT[0], SCR + 128 * RP + 128), valu("v_lshl_add_u32", vHRB, vLane, 4, sT[0])]
        o += [salu("s_lshl_b32", sT[1], sRB, 3), salu("s_lshl_b32", sT[2], sGQ, 1), salu("s_add_u32", sT[1], sT[1], sT[2]), salu("s_add_u32", sT[1], sT[1], sJ),
              salu("s_lshl_b32", sC1, sT[1], 11), salu("s_add_u32", sC1, sC1, HALO_OFF),
              salu("s_cmp_eq_u32", None, sW, 3), salu("s_cselect_b32", sT[1], sC1, OOB), salu("s_cselect_b32", sH3, 0, OOB), valu("v_lshl_add_u32", vHALO, vLane, 4, sT[1]),
              salu("s_and_b32", sT[1], sRB, 7), salu("s_or_b32", sT[2], sT[1], sW), salu("s_cselect_b32", sM1[0], 0, "0xf000f"), salu("s_cselect_b32", sM2[0], 0, "0xff00ff"),
              salu("s_mov_b32", sM1[1], sM1[0]), salu("s_mov_b32", sM2[1], sM2[0]), salu("s_mov_b32", sHM0, SPARE),
              salu("s_cmp_eq_u32", None, sW, 0), salu("s_cselect_b32", sHM0, SCR + 128, sHM0), salu("s_cselect_b32", sT[1], sT[1], 0),
              salu("s_cmp_lg_u32", None, sT[1], 0), salu("s_cselect_b32", sTHR, 1, 0),
              salu("s_sub_u32", sT[2], sC1, 8 * 2048), salu("s_cmp_lg_u32", None, sTHR, 0), salu("s_cselect_b32", sT[2], sT[2], OOB),
              valu("v_lshl_add_u32", vHLD, vLane, 4, sT[2]), valu("v_mov_b32", vHLD2, vHLD)]
        if self.cfg.kv_mode == 4:
            for q, dst in enumerate((vHLD, vHLD2)):
                o += [valu("v_add_u32", t0, 8 + 64 * q, vLane), valu("v_mul_u32_u24", t1, 241, t0), valu("v_lshrrev_b32", t1, 12, t1), valu("v_mul_u32_u24", dst, 17, t1),
                      valu("v_sub_u32", t0, t0, dst), valu("v_min_u32", t0, 15, t0), valu("v_lshlrev_b32", t1, 4, t1), valu("v_lshl_add_u32", t0, t0, 7, t1),
                      valu("v_add_u32", dst, sT[2], t0)]
                if q: o += [valu("v_subrev_u32", dst, 1024, dst)]
            o += [salu("s_sub_u32", sT[1], sC1, 24 * 16), salu("s_cmp_eq_u32", None, sW, 3), salu("s_cselect_b32", sT[1], sT[1], OOB),
                  valu("v_and_b32", t0, 31, vLane), valu("v_lshrrev_b32", t1, 5, vLane), valu("v_lshlrev_b32", t1, 8, t1), valu("v_lshl_add_u32", t1, t0, 4, t1),
                  valu("v_add_u32", t1, sT[1], t1), valu("v_cmp_lt_u32", "vcc", 23, t0), valu("v_mov_b32", t0, OOB), valu("v_cndmask_b32", vHALO, t0, t1, "vcc")]
        o += [
              salu("s_lshl_b32", sT[1], sRB, 3), salu("s_add_u32", sT[1], sT[1], sGQ), salu("s_lshl_b32", sT[1], sT[1], 10), salu("s_lshl_b32", sT[2], sJ, 3),
              salu("s_add_u32", sT[1], sT[1], sT[2]), salu("s_add_u32", sT[1], sT[1], FLAG_OFF - 4096 + 4), salu("s_cmp_lg_u32", None, sTHR, 0),
              salu("s_cselect_b32", sT[1], sT[1], OOB), valu("v_mov_b32", vPOLLH, sT[1]), salu("s_mov_b32", sCS, f32(0.25 * LOG2E))]
        o += [valu("v_and_b32", t0, 3, vLane), valu("v_mov_b32", t1, "0xffff"),
              valu("v_cmp_le_u32", sJ1, 1, t0), valu("v_cmp_le_u32", sJ2, 2, t0), valu("v_cmp_le_u32", sJ3, 3, t0),
              valu("v_cndmask_b32", vA01, t1, -1, sJ1), valu("v_cndmask_b32", vA23, 0, t1, sJ2), valu("v_cndmask_b32", vA23, vA23, -1, sJ3)]
        return o
    def attention(self, put, spread, bar_gap, load):
        c = self.cfg
        def pack(dst, a):
            o = [valu("v_cvt_pk_bf16_f32", dst[i], a[2 * i], a[2 * i + 1]) for i in range(8)]
            return o + [valu("v_permlane16_swap_b32", dst[i], dst[4 + i], rmw=True, wr2=dst[4 + i]) for i in range(4)]
        cv, wr = [], []
        for blk in range(4):
            a = ACC1.sub(16 * blk, 16)
            cv += pack(a, a)
            wr += [ds_write("ds_write_b128", vSCR, a.sub(4 * dh, 4), (blk & 1) * 128 + dh * 16 + (8 + 16 * (blk >> 1)) * RP, tag="kv") for dh in range(2)]
        hs = ACC1.sub(40, 8)
        assert c.kv_mode in (3, 5, 6)
        if c.kv_mode == 3:
            spread(cv, 129, c.kv_end - 3)
            put(c.kv_end - 3, wr)
        else:
            if c.kv_mode == 5:
                spread(cv[24:], 130, c.kv_end - 3)
                put(c.kv_end - 3, wr[4:])
            else: spread(cv[24:36] + wr[4:6] + cv[36:] + wr[6:], 130, c.kv_end - 2)
            spread(cv[:24], c.kv_end + 5, c.kv_end + 15)
            for n, x in enumerate(wr[:4]):
                k1 = c.kv_end + 15 + (180 - c.kv_end - 15) * n // 4
                while load[k1] > 0 and k1 < 181: k1 += 1
                put(k1, [x], last=True)
        put(c.kv_end - 1, [ds_read("ds_read_b128", hs.sub(4 * i, 4), vHRB, 1024 * i) for i in range(2)])
        if c.kv_mode != 4:
            put(c.kv_end + 2, [buf_store("buffer_store_dwordx4", hs.sub(0, 4), vHALO, rWS, 0, 0, flags="sc1", tag="st1")])
            put(c.kv_end + 4, [buf_store("buffer_store_dwordx4", hs.sub(4, 4), vHALO, rWS, 0, 1024, flags="sc1", tag="st1")])
            self.bar_extra[12] = ["kv"]
        assert c.kv_end + 4 < min(176, c.g_flag1)
        fl = self.flag(L_HALO, "st1")
        if c.halo3: fl[-1] = buf_store("buffer_store_dword", vFV, vFH, rWS, 0, L_HALO, flags="sc1")
        put(c.g_flag1, fl)
        Q = ACC2.sub(0, 16); O = ACC2.sub(16, 16)
        Sg = [SG.sub(0, 4), SG.sub(4, 4), SG.sub(8, 4)]
        P = [T.sub(0, 2), T.sub(2, 2), T.sub(4, 2)]
        tm, tz, big = SG[12], SG[13], SG[14]
        spread(pack(Q.sub(0, 8), ACC2.sub(0, 16)) + pack(Q.sub(8, 8), ACC2.sub(16, 16)) + [valu("v_mov_b32", big, f32(-1e30))], 194, min(215, c.g_halo + 4))
        k = c.g_halo
        cs = 0.25 * LOG2E
        for cb in ((1, 0) if c.th1 else (0, 1)):
            if cb == 0:
                assert k > bar_gap[self.halo_period + 1]
                put(k, [wait(vm="halo")])
            spread([ds_read("ds_read_b128", KA.sub(8 * g + 4 * dh, 4), vSCR, dh * 16 + (16 * cb + (2 - g) * 4) * RP) for g in range(3) for dh in range(2)], k, k + 4)
            k += 5
            for dq in range(4):
                put(k + dq // 2, [mfma(4, Sg[g], KA.sub(8 * g + 2 * dq, 2), Q.sub(8 * cb + 2 * dq, 2), Sg[g] if dq else 0) for g in range(3)], last=True)
            k += 2
            vr = [ds_read("ds_read_b64_tr_b16", KA.sub(8 * g + 2 * m, 2), vVTR, 128 + (0, 2, 1, 3)[m] * 8 + (16 * cb + (2 - g) * 4) * RP, tag="vr") for g in range(3) for m in range(4)]
            s = [Sg[0][i] for i in range(4)] + [Sg[1][i] for i in range(4)]
            o = vr[:4]
            if cb == 0:
                o += [valu("v_cndmask_b32", Sg[2][r], Sg[2][r], big, sM2) for r in (1, 2, 3)]
                o += [valu("v_cndmask_b32", Sg[1][r], Sg[1][r], big, sM1) for r in range(4)]
            o += [valu("v_cndmask_b32", Sg[0][r], Sg[2][r], Sg[0][r], (None, sJ1, sJ2, sJ3)[r]) for r in (1, 2, 3)]
            o += [valu("v_max3_f32", tm, s[0], s[1], s[2]), valu("v_max3_f32", tz, s[3], s[4], s[5]), valu("v_max3_f32", tm, tm, s[6], s[7]), valu("v_max_f32", tm, tm, tz),
                  valu("v_mul_f32", tm, f32(-cs), tm)]
            o += vr[4:8]
            o += [valu("v_fma_f32", s[i], s[i], sCS, tm) for i in range(8)]
            o += [valu("v_exp_f32", s[i], s[i]) for i in range(8)]
            u = [Sg[2][i] for i in range(4)]
            o += [valu("v_add_f32", u[i], s[2 * i], s[2 * i + 1]) for i in range(4)]
            o += [valu("v_add_f32", u[0], u[0], u[1]), valu("v_add_f32", u[2], u[2], u[3]), valu("v_add_f32", u[0], u[0], u[2]), valu("v_rcp_f32", tz, u[0])]
            o += vr[8:]
            o += [valu("v_mul_f32", s[i], s[i], tz) for i in range(8)]
            o += [valu("v_cvt_pk_bf16_f32", u[0], s[0], s[1]), valu("v_cvt_pk_bf16_f32", u[1], s[2], s[3]),
                  valu("v_cvt_pk_bf16_f32", P[1][0], s[4], s[5]), valu("v_cvt_pk_bf16_f32", P[1][1], s[6], s[7]),
                  valu("v_and_b32", P[0][0], u[0], vA01), valu("v_and_b32", P[0][1], u[1], vA23),
                  valu("v_bfi_b32", P[2][0], vA01, 0, u[0]), valu("v_bfi_b32", P[2][1], vA23, 0, u[1])]
            spread(o, k, k + c.att_w)
            k += c.att_w
            for g in range(3):
                put(k + g // 2, [mfma(4, O.sub(4 * m, 4), KA.sub(8 * g + 2 * m, 2), P[g], O.sub(4 * m, 4) if g else 0) for m in range(4)], last=True)
            k += 2
            o = []
            for dh in range(2):
                o += [valu("v_cvt_pk_bf16_f32", O[4 * dh + i], O[8 * dh + 2 * i], O[8 * dh + 2 * i + 1]) for i in range(4)]
                o += [buf_store("buffer_store_dwordx4", O.sub(4 * dh, 4), vHST, rWS, sHu[1], cb * 256 + dh * 1024, flags=c.hflags, tag="st2")]
            spread(o, k + 1, k + 7)
        assert k <= bar_gap[19], k
        assert k == c.g_halo + 2 * (9 + c.att_w)
        self.att_end = k
        if not c.splf and c.f2_epi < 0: put(min(k + c.f2_lag, 317), self.flag(L_O, "st2"))

    GORD = ([("d", 0, 1, t) for t in range(4)] + [("d", 12, 1, 4 + t) for t in range(2)] + [("o", 0, 1, t) for t in range(4)]
            + [("d", 8, 1, t) for t in range(4)] + [("d", 4, 1, t) for t in range(4)])
    def w2_setup(self):
        return [salu("s_mov_b32", sNL, f32(-LOG2E)), salu("s_mul_i32", sHd, sW, 28 * 1024), salu("s_lshl_b32", sHo, sW, 13), salu("s_add_u32", sHo, sHo, 112 * 1024),
                salu("s_lshl_b32", sWd, sHd, 1), salu("s_lshl_b32", sWo, sHo, 1)]
    def h_load(self):
        gi = self.h_n; self.h_n += 1
        kind, g0, st, t = self.GORD[gi]
        o = []
        base = sHd if kind == "d" else sHo
        d = ((g0 & ~1) - self.hpos[kind]) * 2048
        self.hpos[kind] = g0 & ~1
        if d: o += [salu("s_add_u32" if d > 0 else "s_sub_u32", base, base, abs(d))]
        o += [salu("s_add_u32" if st == 1 else "s_lshl1_add_u32", sT[0], (sU + sUh)[t], base)]
        dst = self.hreg[gi] = self.pool.pop(0)
        for s in range(1 if self.cfg.dbg & 256 else 2):
            for tb in range(2):
                o += [buf_load("buffer_load_dwordx4", dst.sub(8 * s + 4 * tb, 4), vW[0] if self.cfg.dbg & 2 else vH[tb], rWS, 0 if self.cfg.dbg & 2 else sT[0], s * 1024 + (g0 & 1) * 2048, flags="sc1", tag=f"h{gi}")]
        return o
    def w2_addr(self):
        gi = self.w2_nd; self.w2_nd += 1
        kind, g, st, t = self.GORD[gi]
        base = sWd if kind == "d" else sWo
        d = (g - self.w2pos[kind]) * 4096
        self.w2pos[kind] = g
        o = [salu("s_add_u32" if d > 0 else "s_sub_u32", base, base, abs(d))] if d else []
        return gi, o + [salu(f"s_lshl{st}_add_u32", sWS, (sU + sUh)[t], base)]
    def w2_load(self):
        gi, o = self.w2_addr()
        dst = self.wreg[gi] = self.pool.pop(0)
        return o + [buf_load("buffer_load_dwordx4", dst.sub(4 * i, 4), vW[i & 1], rWS, 0 if self.cfg.dbg & 4 else sWS, i * 1024, flags="sc1", tag=f"g{gi}") for i in range(2 if self.cfg.dbg & 128 else 4)]
    def w2_dma(self, slot):
        gi, o = self.w2_addr()
        assert slot not in self.w2slot.values()
        self.w2slot[gi] = slot
        return [set_m0(sWQ, slot * SLOT, f"g{gi}")] + o + [buf_dma(vW[i & 1], rWS, sWS, i * 1024, flags="sc1", tag=f"g{gi}") for i in range(4)]
    def w2_read(self):
        gi = min(self.w2slot)
        base = self.w2slot.pop(gi) * SLOT
        dst = self.wreg[gi] = self.pool.pop(0)
        o, imm = self.window(self.win2, 0, vWB, base, 4096)
        for i in o: i.tag = f"r{gi}"
        return [wait(vm=f"g{gi}")] + o + [ds_read("ds_read_b128", dst.sub(4 * i, 4), vWB, imm + i * 1024, tag=f"r{gi}") for i in range(4)]
    def phase2(self):
        c, add = self.cfg, self.add
        accF = [ACC2.sub(0, 16), A(80, 16), A(96, 16), A(112, 16)]
        accS = [ACC2.sub(16, 16)]
        PR = [None, ACC1.sub(0, 16), ACC1.sub(16, 16), ACC1.sub(32, 16)]
        xf = ACC1.sub(48, 16)
        red = [vSCR, vVTR, vTR0, vTR1, vDMA2, vHST]
        pool, hreg, wreg, h_load = self.pool, self.hreg, self.wreg, self.h_load
        pool += [A(128, 16), A(144, 16), A(160, 16)] + [A(16 * i, 16) for i in range(self.xf_n, 5)]
        light = []
        heavy = []
        pend = lambda q, tag: any(i.tag == tag for i in q)
        e = ([] if c.nspl else self.ffn_epi(ACC1.sub(0, 16), ACC1.sub(16, 16), 2, 0, "st3", pk=True)) + self.ffn_epi(ACC1.sub(32, 16), ACC1.sub(48, 16), 2, 256, "st4", pk=True)
        assert 9 not in self.w2slot.values()
        assert all(x < min(18, 20 - c.nspl) for x in range(20) if 6 <= slab_slot(x) <= 8)
        seq = []
        for gi in range(18):
            bl = (1, 2, 3) if gi >= 18 - c.defer else (0, 1, 2, 3)
            if c.snake and gi < 17: bl = (1, 3, 2) if len(bl) == 3 else (0, 1, 3, 2)
            seq += [(gi, s, b) for b in bl for s in range(2)] if gi == 17 else [(gi, s, b) for s in range(2) for b in bl]
        seq += [(gi, s, 0) for gi in range(18 - c.defer, 18) for s in range(2)]
        last = {gi: max(m for m, x in enumerate(seq) if x[0] == gi) for gi in range(18)}
        first = {gi: min(m for m, x in enumerate(seq) if x[0] == gi) for gi in range(18)}
        lastb = {b: max(m for m, x in enumerate(seq) if x[2] == b) for b in range(4)}
        g6 = 10 if c.m_pb == -1 else 6
        st = {"q": [], "gate": g6 if c.pa2_epi < 0 else 4, "x": False, "m": -1, "sw": False}
        def refill():
            okw = self.w2_nd < 18 and len(pool) > (1 if self.w2_nd <= self.h_n else c.keep)
            okh = self.h_n < st["gate"] and len(pool) > 1
            if okh and not (okw and self.w2_nd <= self.h_n + c.wlead): st["q"] += h_load()
            elif okw: st["q"] += self.w2_load()
            elif not st["x"] and st["m"] >= 0 and not pend(light, "ra"):
                st["x"] = True
                st["q"] += [set_m0(sWQ, 9 * SLOT, "xs"), salu("s_mov_b32", sT[1], 16384 - 1024),
                            buf_dma(red[4], rX, 0, 0, tag="xs"), buf_dma(red[4], rX, sT[1], 1024, tag="xs")]
        def pump():
            if not st["q"]: refill()
            while st["q"]:
                x = st["q"].pop(0); add(x)
                if x.kind in ("dma", "vml"): return True
            return False
        step = max(1, len(e) * 3 // 4 // max(1, c.epi_mem))
        k = 0
        for n, i in enumerate(e):
            if self.B and not c.splf and n == c.f2_epi: add(self.flag(L_O, "st2"))
            if n == c.pa2_epi: add(self.poll_check(*self.pa2)); st["gate"] = g6
            if n % step == 0 and k < c.epi_mem: pump(); k += 1
            add(i)
        add(self.stamp(129))
        started = set()
        ra = [salu("s_add_u32", sT[2], sWQ, 6 * SLOT), valu("v_lshl_add_u32", red[0], vLane, 4, sT[2])] + [valu("v_xor_b32", red[b], b * 4096, red[0]) for b in (1, 2, 3)]
        ra += [salu("s_and_b32", sT[2], sP2x, 64), salu("s_mul_i32", sT[3], sT[2], 511), salu("s_add_u32", sT[3], sT[3], sP2x),
               valu("v_lshrrev_b32", red[4], 3, vLane), valu("v_and_b32", red[5], 7, vLane), valu("v_lshlrev_b32", red[5], 4, red[5]),
               valu("v_lshl_add_u32", red[4], red[4], 11, red[5]), valu("v_add_u32", red[4], sT[3], red[4]),
               salu("s_lshr_b32", sT[3], sW, 1), salu("s_lshl_b32", sT[3], sT[3], 13), salu("s_add_u32", sT[3], sT[3], sT[2]), salu("s_add_u32", sT[3], sT[3], 9 * SLOT),
               valu("v_and_b32", red[5], 16, vLane), valu("v_lshlrev_b32", red[5], 1, red[5]), valu("v_and_or_b32", red[5], vLane, 15, red[5]), valu("v_lshlrev_b32", red[5], 7, red[5]),
               valu("v_and_or_b32", red[5], vLane, 32, red[5]), valu("v_add_u32", red[5], sT[3], red[5])]
        vOW, vOR = [vA01, vA23], vPOLLH
        if c.otr:
            ra += [valu("v_and_b32", vOR, 7, vLane), valu("v_lshlrev_b32", vOR, 4, vOR), valu("v_xor_b32", vOW[0], vOR, red[5]), valu("v_xor_b32", vOW[1], 16, vOW[0]),
                   valu("v_lshrrev_b32", vOR, 3, vLane), valu("v_xor_b32", vOR, vOR, vLane), salu("s_add_u32", sT[3], sWQ, 9 * SLOT), valu("v_lshl_add_u32", vOR, vOR, 4, sT[3])]
        for i in ra: i.tag = "ra"
        light += ra
        used = set()
        for m, (gi, s, b) in enumerate(seq):
            st["m"] = m
            kind = self.GORD[gi][0]
            if gi in self.w2slot or pend(light, f"r{gi}"):
                add(light); light.clear()
                while gi in self.w2slot: add(self.w2_read())
            while gi >= self.w2_nd or pend(st["q"], f"g{gi}"): assert pump(), (m, gi)
            while gi >= self.h_n or pend(st["q"], f"h{gi}"): assert pump(), (m, gi)
            a = (accF if kind == "d" else accS)[b]
            if c.gwait == 1: add(wait_regs(hreg[gi].sub(8 * s, 8), wreg[gi].sub(8 * s, 8)))
            if c.gwait == 2: add(wait_regs(hreg[gi], wreg[gi]))
            if c.m16 & 2:
                for q in range(2):
                    aq = a.sub(8 * s + 4 * q, 4)
                    if q and light and cyc(light[0]) <= 4 and light[0].kind == "valu":
                        add(light.pop(0))
                        if light and cyc(light[0]) <= 4 and light[0].kind == "valu": add(light.pop(0))
                    add(mfma(16, aq, wreg[gi].sub(8 * q + 4 * (b & 1), 4), hreg[gi].sub(8 * s + 4 * (b >> 1), 4), aq if (kind, b, s) in started else 0))
                started.add((kind, b, s))
            else: add(mfma(32, a, wreg[gi].sub(8 * s + 4 * (b & 1), 4), hreg[gi].sub(8 * s + 4 * (b >> 1), 4), a if (kind, b) in started else 0))
            started.add((kind, b))
            if m == last[gi]:
                pool += [hreg[gi], wreg[gi]]
                if gi in (3, 4, 5): accS.append(pool.pop())
                if gi in c.sp: add(self.stamp(128))
            busy = False
            if m == c.m_f4: add(self.flag(L_L0 if (c.m_pe > 0 and not self.B) else L_END, "st4"), self.stamp()); busy = True
            lb, lc = (L_L0 if c.splf else L_O), (L_L0 if c.m_pe > 0 else L_END)
            for mm, ln in ((c.m_pb, lb), (c.m_pc, lc), (c.m_pe, L_END)):
                if m == mm - c.m_pd: add(self.poll_issue(vPOLL, rWS, ln)); busy = True
            if m in (c.m_pb - 1, c.m_pe - 1) or (m == c.m_pc - 1 and c.m_pb > 0 and c.m_pe > 0): add(valu("v_xor_b32", vTHR, 1, vTHR))
            if m == c.m_pe: add(self.poll_check(vPOLL, rWS, vTHR, L_END)); st["gate"] = 18
            if m == c.m_pb: add(self.poll_check(vPOLL, rWS, vTHR, lb)); st["gate"] = 10
            if m == c.m_pc: add(self.poll_check(vPOLL, rWS, vTHR if c.m_pe > 0 else 1, lc), self.stamp()); st["gate"] = 14 if c.m_pe > 0 else 18; self.pre += (self.w2_nd, self.h_n)
            used.add((gi, s, b >> 1))
            ahead = 4 * self.h_n - sum(1 for i in st["q"] if i.kind == "vml") - len(used)
            if ((m % c.vstep < c.vnum if m < c.m_v1 else m % 2 == 0) or ahead < c.ahead) and not busy: busy = pump()
            if not light and self.w2slot and pool and m >= first[min(self.w2slot)] - c.rlead: light += self.w2_read()
            if m == last[9] + 2:
                add(light); light.clear()
                while any(6 <= s_ <= 8 for s_ in self.w2slot.values()): add(self.w2_read())
                st["sw"] = True
                heavy += [wait(lg=[f"r{g}" for g in range(18)])]
                heavy += [ds_write("ds_write_b128", red[0], accS[b2].sub(4 * q, 4), (b2 - 1) * SLOT + q * 1024, tag="sw") for b2 in (1, 2, 3) for q in range(4)]
            if m == c.m_sb:
                while not st["x"] or pend(st["q"], "xs"):
                    g18, nd = st["gate"], self.w2_nd; st["gate"] = 0; self.w2_nd = 18; assert pump(); st["gate"], self.w2_nd = g18, nd
                add(heavy); heavy = []
                add(wait(vm="xs", lg="sw"), barrier()); busy = True
                light += [ds_read("ds_read_b128", xf.sub(8 * i + 4, 4), red[5], 16 * i) for i in range(2)]
                light += [ds_read("ds_read_b128", PR[b2].sub(4 * q, 4), red[b2], (b2 - 1) * SLOT + q * 1024) for b2 in (1, 2, 3) for q in range(4)]
                for b2 in range(4):
                    i = valu("v_subrev_u32", red[b2], 6 * SLOT, red[b2]); i.tag = "ra"; light.append(i)
                for h in range(2):
                    for i in range(4):
                        src = xf[8 * h + 4 + i]
                        pr = [valu("v_lshlrev_b32", xf[8 * h + 2 * i], 16, src), valu("v_and_b32", xf[8 * h + 2 * i + 1], "0xffff0000", src)]
                        light += pr
                light += [valu("v_add_f32", accS[0][i], accS[0][i], PR[1][i]) for i in range(16)] + [valu("v_add_f32", PR[2][i], PR[2][i], PR[3][i]) for i in range(16)]
                light += [valu("v_add_f32", accS[0][i], accS[0][i], PR[2][i]) for i in range(16)]
            for b2 in (1, 2, 3):
                if m == lastb[b2] + 2:
                    while pend(light, "ra"): add(light.pop(0))
                    heavy += [ds_write("ds_write_b128", red[0], accF[b2].sub(4 * q, 4), (b2 - 1) * SLOT + q * 1024) for q in range(4)]
            budget = 11 if busy else 24
            if heavy and not busy:
                while heavy:
                    x = heavy.pop(0); add(x)
                    if x.kind == "dsw": break
                budget = 0
            while light and cyc(light[0]) <= budget:
                budget -= cyc(light[0]); add(light.pop(0))
        assert self.h_n == 18 and self.w2_nd == 18 and not self.w2slot and not st["q"] and st["x"]
        add(self.stamp())
        add(heavy, light)
        add(wait(lg="all"), barrier())
        for q in range(4):
            for b in (1, 2, 3): add(ds_read("ds_read_b128", PR[b].sub(4 * q, 4), red[b], (b - 1) * SLOT + q * 1024))
        Fp, Sp, t = accF[0], accS[0], PR[1]
        if c.dbg & 32: add(valu("v_mov_b32", vXO, OOB))
        if c.dbg & 64: add(salu("s_lshl2_add_u32", sT[1], sWG, sW), salu("s_lshl_b32", sT[1], sT[1], 11), valu("v_lshl_add_u32", vXO, vLane, 4, sT[1]))
        for hq in range(2):
            r2 = range(8 * hq, 8 * hq + 8, 2); r1 = range(8 * hq, 8 * hq + 8)
            add([valu("v_pk_add_f32", Fp.sub(i, 2), Fp.sub(i, 2), PR[1].sub(i, 2)) for i in r2])
            add([valu("v_pk_add_f32", PR[2].sub(i, 2), PR[2].sub(i, 2), PR[3].sub(i, 2)) for i in r2])
            add([valu("v_pk_add_f32", Fp.sub(i, 2), Fp.sub(i, 2), PR[2].sub(i, 2)) for i in r2])
            add([valu("v_pk_mul_f32", t.sub(i, 2), Fp.sub(i, 2), T.sub(0, 2)) for i in r2])
            add([valu("v_exp_f32", t[i], t[i]) for i in r1])
            add([valu("v_pk_mul_f32", Sp.sub(i, 2), Sp.sub(i, 2), Fp.sub(i, 2)) for i in r2])
            add([valu("v_pk_add_f32", t.sub(i, 2), t.sub(i, 2), T.sub(2, 2)) for i in r2])
            add([valu("v_rcp_f32", t[i], t[i]) for i in r1])
            add([valu("v_pk_fma_f32", xf.sub(i, 2), Sp.sub(i, 2), t.sub(i, 2), xf.sub(i, 2)) for i in r2])
            add([valu("v_cvt_pk_bf16_f32", t[8 * hq + i], xf[8 * hq + 2 * i], xf[8 * hq + 2 * i + 1]) for i in range(4)])
            if c.otr: add(ds_write("ds_write_b128", vOW[hq], t.sub(8 * hq, 4)))
            else: add(buf_store("buffer_store_dwordx4", t.sub(8 * hq, 4), vXO, rOUT, 0, (1024 if c.dbg & 64 else 16) * hq, flags=c.outflags))
        if c.otr:
            add(salu("s_movk_i32", sT[1], 16384), wait(lg="all"), barrier(), [ds_read("ds_read_b128", xf.sub(4 * i, 4), vOR, 1024 * i) for i in range(2)])
            add([buf_store("buffer_store_dwordx4", xf.sub(4 * i, 4), red[4], rOUT, sT[1] if i else 0, flags=c.outflags) for i in range(2)])

    def finish(self):
        add = self.add
        if self.cfg.stamps:
            add(raw(f"{self.cfg.clock} s[14:15]", "smem"))
            add(wait(vm="all"))
            add(raw(f"{self.cfg.clock} s[16:17]\n    s_waitcnt lgkmcnt(0)", "smem"))
            add(valu("v_mov_b32", V(96), 0))
            for i in range(self.nst): add(raw(f"v_writelane_b32 v96, s{STAMPS[i]}, {1+i}", "valu", wr=["v96"]))
            add(raw(f"v_writelane_b32 v96, s{ST0}, 0", "valu", wr=["v96"]), raw(f"v_writelane_b32 v96, s14, {1+self.nst}", "valu", wr=["v96"]),
                raw(f"v_writelane_b32 v96, s16, {2+self.nst}", "valu", wr=["v96"]))
            add(salu("s_lshl_b32", sT[1], sWG, 2), salu("s_add_u32", sT[1], sT[1], sW), salu("s_lshl_b32", sT[1], sT[1], 6), salu("s_add_u32", sT[1], sT[1], STAMP_OFF),
                valu("v_lshl_add_u32", V(97), vLane, 2, sT[1]), salu("s_mov_b64", "exec", "0xffff"), buf_store("buffer_store_dword", V(96), V(97), rWS))
        add(raw("s_endpgm", "end"))

    def program(self):
        NS[0] = self.cfg.NS
        assert self.cfg.NS <= (7 if self.B else 9)
        self.w2slot, self.slot_used, self.w2pos = {}, {}, {"d": 0, "o": 0}
        self.w2_nd = self.w2_nr = 0
        self.win2 = [0, 0]
        self.xf_n = 0
        self.h_n, self.hreg, self.wreg, self.hpos = 0, {}, {}, {"d": 0, "o": 0}
        self.e.comment('phase 0'); self.ramp(); self.e.comment('phase 1'); self.phase1(); self.e.comment('phase 2')
        self.pre = (self.w2_nd, len(self.w2slot), self.h_n)
        if not self.cfg.p1only: self.phase2()
        self.finish()
        return self.e.text() + self.slow

HEAD = open("recurrent_scan__sliding_local_dilated__swiglu_ffn__prompt.s.ref").read().split("; Override launch")[0]

DOC = """; One persistent launch, one workgroup (4 waves, 512 registers each) per CU; tokens are kept in parity-split order.
;  phase 1: 128 tokens x 320 weight columns per workgroup, weights streamed through an LDS ring (LDS-DMA + transposing reads),
;           B: k,v | q | gate,up with the dilated window attention done on 4x4x4 MFMAs; C: 2.5 gate/up pairs; h and o go to d_ws.
;  phase 2: 64 x 64 output tile per workgroup, K split over the waves, reduced through LDS; out = x + s * silu(ffn).
; Hand-offs: write-through (sc1) stores, counted wait, flag word; flag lines are cleared inside the launch (announced through d_debug).
"""
def build(cfg):
    s = HEAD + "; @launch grid=(256,1,1) block=(256,1,1) lds=163840\n"
    s += DOC
    s += f'.amdgcn_target "amdgcn-amd-amdhsa--gfx950"\n.text\n.globl {KNAME}\n.p2align 8\n.type {KNAME},@function\n{KNAME}:\n'
    s += f"""    s_cmp_ge_u32 s2, 256
    s_cbranch_scc0 L_go
    s_endpgm
L_go:
"""
    if cfg.stamps: s += f"    {cfg.clock} s[{ST0}:{ST0+1}]\n"
    s += f"""    s_load_dwordx2 s[24:25], s[0:1], 0
    s_load_dwordx16 s[4:19], s[0:1], 0
    s_load_dwordx4 s[20:23], s[0:1], 64
    v_lshrrev_b32 v1, 6, v0
    s_getpc_b64 s[28:29]
    v_readfirstlane_b32 {sW}, v1
    s_bfe_u32 s26, s2, 0x30003
    s_lshl_b32 s26, s26, 13
    v_lshrrev_b32 v2, 2, v0
    v_lshl_add_u32 v2, v2, 7, s26
    v_min_u32 v2, L_end-L_go-256, v2
    global_load_dword v3, v2, s[28:29]
    v_and_b32 {vLane}, 63, v0
    v_lshrrev_b32 v96, 3, {vLane}
    v_and_b32 v97, 7, v0
    s_lshl_b32 {sWQ}, {sW}, 12
    s_cmp_ge_u32 s2, 128
    s_cbranch_scc1 L_typeC
"""
    info = {}
    for typ in ("B", "C"):
        g = Gen(typ, cfg)
        g.e.vm.append(("pf", {"v3"}))
        s += f"L_type{typ}:\n" + g.program()
        info[typ] = (g.e.slots, g.e.nops, dict(g.e.count), [sum(max(32, 24 + x) for x in g.load[i:i + 32]) for i in range(0, 320, 32)], g.pre, g.nst + 3)
    s += "L_end:\n"
    s += f""".section .rodata,"a"
.p2align 6
.amdhsa_kernel {KNAME}
  .amdhsa_next_free_vgpr 512
  .amdhsa_next_free_sgpr 102
  .amdhsa_accum_offset 256
  .amdhsa_group_segment_fixed_size 0
  .amdhsa_kernarg_size 80
  .amdhsa_user_sgpr_count 2
  .amdhsa_user_sgpr_kernarg_segment_ptr 1
  .amdhsa_system_sgpr_workgroup_id_x 1
.end_amdhsa_kernel
"""
    return s, info

if __name__ == "__main__":
    cfg = Cfg()
    out = sys.argv[1]
    for a in sys.argv[2:]:
        k, v = a.split("=")
        assert hasattr(cfg, k) or hasattr(cfg, k[:-2]), k
        if k in ("outflags", "hflags", "pflags", "wflags"): v = v.replace("_", " ")
        elif k in ("sg", "sp", "xr", "xr_B", "xr_C"): v = [int(x) for x in v.split(",")]
        elif k not in ("clock", "planB", "planC"): v = int(v)
        setattr(cfg, k, v)
    s, info = build(cfg)
    open(out, "w").write(s)
    for k, v in info.items(): print(k, v)
```

```python
import sys, struct
sys.path.insert(0, "tools")
from emit import *
from asmlib import KNAME

FLAG_OFF, XN_OFF, HALO_OFF, WS_USED = 0x910000, 0x938000, 0xB38000, 0xF00000
WT_OFF, P6_OFF = 0xC01000, 0xE50000
L_HALO, L_P1, L_HALF, L_O, L_L0, L_END = [128 * i for i in range(6)]
FLAGA_OFF = 0x930000
STAMP_OFF = 0xB80000
OOB = 0x40000000
SLOT = 16384
HSTR = 145 * 1024
RP = 272
SCR = 7 * SLOT
SPARE = SCR + 137 * RP
LOG2E = 1.4426950408889634
def f32(x): return "0x%08x" % struct.unpack("<I", struct.pack("<f", x))[0]

class Cfg:
    stamps = 0
    clock = "s_memrealtime"
    sg = ()
    sp = ()
    p1only = 0
    LA = 8
    NB = 10
    spin = 1000000
    cbx = 0
    rot = 0
    sleep = 0
    bq = 1
    th1 = 1
    otr = 1
    chain = 1
    dpos = 1
    w_c0 = 3
    p0 = 1
    rlate = 0
    m16 = 0
    wstep = 4
    sconst = 1
    gwait = 0
    halo3 = 1
    c_delay = 1
    b_lean = 0
    xr = (2, 4, 6, 8, 4)
    splf = 0
    bar2 = 8
    map2 = 0
    one_pa = 0
    q_early = 1
    patom = 0
    f2_lag = 24
    rsel = 1
    tx = 1
    b_rest = None
    tlin = 0
    wo_late = -1
    sig_early = 0
    nodbg = 0
    f2_epi = -1
    pa2_epi = -1
    dbg = 0
    nspl = 0
    e0_end = 312
    f3_at = 30
    setup_early = 0
    w_0 = 0
    w_a = 0
    w_b = 3
    w_c = 4
    nx0 = 8
    xrate = 5
    planB = "6:l,7:l,8:l,9:l,10:l,11:P.l,12:l.H,13:l,14:l,15:l.l,16:l.d6,17:l.d0,18:h.h,19:h.h.l"
    planC = "6:l,7:l,8:l,9:l.w,10:l,11:l,12:l,13:l,14:l,15:l.l,16:l.l,17:l.d8,18:h.h,19:h.h.d7"
    ts_pos = -1
    f2_bar = 2
    pw_lead = 14
    pw_per = 6
    NS = 7
    xfree = 1
    kv_end = 141
    kv_mode = 5
    kw_end = 214
    p6_per = 4
    c_rest = 5
    c_tile = -1
    g_flag1 = 163
    g_halo = 200
    att_w = 24
    g_f1c = 210
    g_pa = 262
    h2_end = 240
    g_f2c = 264
    g_pa2 = 304
    epi_mem = 8
    m_f4 = 24
    m_pe = -99
    pa_per = 18
    m_f3 = -1
    m_pb = 24
    m_pc = 68
    m_pd = 12
    m_sb = 106
    defer = 4
    vstep = 1
    vnum = 1
    m_v1 = 0
    wlead = 1
    rlead = 12
    keep = 4
    ahead = 12
    outflags = "sc1"
    hflags = "sc1"
    pflags = "sc1"
    wflags = ""
    snake = 0

sWG = S(2)
pX, pQKV, pWO, pG, pU, pD, pOUT, pDBG, pWS = S(4, 2), S(6, 2), S(8, 2), S(12, 2), S(14, 2), S(16, 2), S(18, 2), S(20, 2), S(22, 2)
rX, rQKV, rGU, rD, rWO, rOUT, rWS, rDBG = S(24, 4), S(28, 4), S(32, 4), S(36, 4), S(40, 4), S(44, 4), S(48, 4), S(52, 4)
sW, sRB, sGQ, sJ, sTB2, sCB2, sWQ = S(56), S(57), S(58), S(59), S(60), S(61), S(62)
sT = [S(3), S(63), S(64), S(65)]
sM1, sM2 = S(66, 2), S(68, 2)
sHM0, sXS = S(70), S(71)
sJ1, sJ2, sJ3 = S(72, 2), S(74, 2), S(76, 2)
sTHR, sCNT = S(78), S(79)
sU = [S(60), S(61), S(58), S(59)]
sUh = [S(0), S(1)]
sHu = [S(4), S(5), S(6)]
sCS, sC1, sHd, sHo = S(7), S(8), S(9), S(10)
sWd, sWo, sWS, sW0 = S(40), S(41), S(42), S(43)
sOA = [0, S(11), S(12), S(13)]
sOB = [0, S(14), S(15), S(16)]
sNL, sH3 = S(17), S(18)
sP2h, sP2f, sP2x, sHS = S(20), S(21), S(22), S(23)
STAMPS = list(range(82, 102, 2))
ST0 = 80

ACC1, ACC2 = V(0, 64), V(64, 32)
VBUF = [V(96 + 16 * i, 16) for i in range(8)]
KA, SG = V(176, 24), V(200, 16)
T = V(224, 8)
(vF2, vA23, vA01, vP2, vHRB, vWB, vDMA2, vDMA1, vW1, vFV, vPV, vW0, vPOLL, vHALO, vPOLLH, vHLD,
 vFLG, vVTR, vSCR, vHST, vDMA0, vTR1, vTR0, vLane) = [V(232 + i) for i in range(24)]
vW = [vW0, vW1]
vP6 = vA01
vHLD2, vFH = V(222), V(223)
vXN = V(216)
vTCH = [V(217), V(218), V(219), V(220), V(221)]
vH = [vHRB, vHALO]
vXO, vTHR = vDMA1, vDMA0
X = A(0, 128)
WF = A(128, 40)
aDUM = A(168)
ABUF = [A(176 + 16 * i, 16) for i in range(5)]
NS = [5]
def slab_slot(n): return n % NS[0]

def cyc(i):
    k = i.kind
    if k in ("wait", "waitr", "waitcnt", "mfma"): return 0
    if k == "trans": return 8
    if k in ("dma", "vml"): return 14
    if k == "vms": return 30 if i.op.endswith("x4") else 20
    if k == "dsw": return 26
    if k == "dsr": return 11 if i.op.endswith("b128") else 4
    if k == "bar": return 14
    if k == "branch": return 8
    return 4

class Gen:
    def __init__(self, typ, cfg):
        self.typ, self.cfg = typ, cfg
        self.B = typ == "B"
        import copy
        self.cfg = cfg = copy.copy(cfg)
        for k, v in list(vars(cfg).items()) + list(vars(Cfg).items()):
            if k.endswith('_' + typ): setattr(cfg, k[:-2], getattr(cfg, k))
        self.e = Emitter()
        self.nst = 0
        self.nlab = 0
        self.slow = ""
        self.mid = []
        self.TR = [vTR0, vTR1, T[6], T[7]] if self.B else [vTR0, vTR1, vA23, vPOLLH, vVTR, vHLD]
    def add(self, *ins):
        for i in ins: self.e.add(i)
    def stamp(self, mode=1):
        if not (self.cfg.stamps & mode): return []
        r = S(STAMPS[self.nst], 2); self.nst += 1
        return [raw(f"{self.cfg.clock} {r}", "smem")]
    def touch(self, va, srd, flags=""):
        i = buf_load("buffer_load_dword", aDUM, va, srd, flags=flags)
        i.wr = set()
        return [i]
    def poll_text(self, vaddr, srd, off):
        n = {str(vPOLL): (8, 1), str(vPOLLH): (1, 2), str(vP2): (48, 4), str(vP6): (32, 4), "v105": (2, 8), "v106": (8, 16)}[str(vaddr)]
        if not self.cfg.patom & n[1]: return None
        return (f"v_mov_b32 {vPV}, 15\n    s_bfm_b64 exec, {n[0]}, 0\n    v_mov_b32 {vPV}, 0\n"
                f"    buffer_atomic_add {vPV}, {vaddr}, {srd}, 0 offen offset:{off} sc0 sc1\n    s_mov_b64 exec, -1")
    def poll_issue(self, vaddr, srd, off=0):
        t = self.poll_text(vaddr, srd, off)
        if t:
            i = buf_load("buffer_load_dword", vPV, vaddr, srd, 0, off); i.text = t
            return [i]
        return [buf_load("buffer_load_dword", vPV, vaddr, srd, 0, off, flags=self.cfg.pflags)]
    def poll_check(self, vaddr, srd, thr, off=0):
        self.nlab += 1
        l = f"L_{self.typ}_p{self.nlab}"
        sl = f"    s_sleep {self.cfg.sleep}\n" if self.cfg.sleep else ""
        if self.cfg.stamps & 512:
            sl += f"    s_add_u32 s{STAMPS[self.nlab - 1]}, s{STAMPS[self.nlab - 1]}, 1\n"; self.nst = 8
        self.slow += (f"{l}_slow:\n    s_mov_b32 {sCNT}, 0\n{l}_spin:\n"
                f"{sl}    {self.poll_issue(vaddr, srd, off)[0].text}\n    s_add_u32 {sCNT}, {sCNT}, 1\n    s_waitcnt vmcnt(0)\n"
                f"    v_cmp_gt_u32 vcc, {thr}, {vPV}\n    s_cmp_ge_u32 {sCNT}, {self.cfg.spin}\n    s_cbranch_scc1 {l}_ok\n"
                f"    s_cbranch_vccnz {l}_spin\n    s_branch {l}_ok\n")
        return [valu("v_cmp_gt_u32", "vcc", thr, vPV), raw(f"s_cbranch_vccnz {l}_slow\n{l}_ok:", "branch")]
    def flag(self, stage, tag):
        return [wait(vm=tag), buf_store("buffer_store_dword", vFV, vFLG, rWS, 0, stage, flags="sc1")]

    def ramp(self):
        c, add, B = self.cfg, self.add, self.B
        t0, t1, t2, t3 = V(96), V(97), V(98), V(99)
        vXL, vXS, vRS, vST, vF0, vP0, vDB, vTLB, vSG, vXR, vTL, vTS = [V(100 + i) for i in range(12)]
        vR2, vTB0, vTB1, vPL, vPS = [V(162 + i) for i in range(5)]
        tl, p6 = V(168, 16), V(184, 4)
        xr, lo, z, part = V(112, 16), V(128, 16), V(144, 4), V(148, 8)
        sm, sq, one = V(156), V(157), V(158)
        rb = V(160, 2)
        srd = lambda r, p, n: [salu("s_mov_b32", r[0], p[0]), salu("s_mov_b32", r[1], p[1]), salu("s_mov_b32", r[2], n), salu("s_mov_b32", r[3], "0x20000")]
        gu = [salu("s_cmp_lt_u32", None, sW, 2), salu("s_cselect_b32", rGU[0], pG[0], pU[0]), salu("s_cselect_b32", rGU[1], pG[1], pU[1])]
        sizes = ((rX, pX, 2048 * 1024), (rWS, pWS, WS_USED), (rDBG, pDBG, 256), (rQKV, pQKV, 512 * 3072), (rOUT, pOUT, 2048 * 1024))
        XL = 8 * SLOT
        self.nslab = 0
        if c.stamps & 1024:
            add(raw(f"s_getreg_b32 s{STAMPS[0]}, hwreg(HW_REG_XCC_ID)\n    s_getreg_b32 s{STAMPS[1]}, hwreg(HW_REG_HW_ID)", "salu")); self.nst = 2
        if c.stamps & 512: add([salu("s_mov_b32", S(r), 0) for r in STAMPS])
        add(self.stamp(256))
        TL = (7 if B else 9) * SLOT
        roles = [salu("s_lshr_b32", sT[0], sWG, 3), salu("s_and_b32", sT[1], sWG, 7), salu("s_and_b32", sRB, sWG, 1), salu("s_lshl_b32", sRB, sRB, 3),
                 salu("s_and_b32", sT[2], sT[0], 7), salu("s_add_u32", sRB, sRB, sT[2]), salu("s_lshr_b32", sGQ, sT[1], 1), salu("s_lshr_b32", sJ, sT[0], 3),
                 salu("s_lshl_b32", sTB2, sT[1], 2), salu("s_and_b32", sT[2], sT[0], 3), salu("s_add_u32", sTB2, sTB2, sT[2]), salu("s_lshr_b32", sCB2, sT[0], 2)]
        if c.map2 == 1:
            roles = roles[:8] + [salu("s_and_b32", sT[2], sT[0], 7), salu("s_lshl3_add_u32", sTB2, sGQ, sT[2]), salu("s_and_b32", sT[2], sWG, 1), salu("s_lshl2_add_u32", sCB2, sT[2], sJ)]
        if c.map2 == 2:
            roles = roles[:8] + [salu("s_lshr_b32", sT[2], sT[0], 2), salu("s_lshl3_add_u32", sTB2, sGQ, sT[2]), salu("s_and_b32", sT[2], sWG, 1), salu("s_and_b32", sCB2, sT[0], 3),
                                 salu("s_lshl2_add_u32", sCB2, sT[2], sCB2)]
        if c.map2 == 3:
            roles = roles[:8] + [salu("s_lshl2_add_u32", sTB2, sT[1], sJ), salu("s_and_b32", sCB2, sT[0], 7)]
        if c.cbx: roles += [salu("s_xor_b32", sCB2, sCB2, c.cbx)]
        def tile_setup():
            if B:
                o = [salu("s_lshl2_add_u32", sT[1], sRB, sW), salu("s_lshl_b32", sT[2], sT[1], 13), salu("s_lshl1_add_u32", sT[3], sGQ, sJ)] + srd(rD, pWO, 512 * 1024)
            else:
                o = [salu("s_lshr_b32", sT[1], sW, 1), salu("s_lshl1_add_u32", sT[1], sT[0], sT[1]), salu("s_lshl_b32", sT[2], sT[1], 15),
                     salu("s_xor_b32", sCNT, sGQ, c.tx), salu("s_and_b32", sT[3], sW, 1), salu("s_lshl1_add_u32", sT[3], sCNT, sT[3])] + srd(rD, pD, 1792 * 1024)
            o += [salu("s_lshl_b32", sCNT, sT[3], 7), salu("s_add_u32", sT[2], sT[2], sCNT),
                  valu("v_lshrrev_b32", t2, 2, vLane), valu("v_and_b32", t2, 4, t2), valu("v_xor_b32", t2, t2, t1), valu("v_lshlrev_b32", t2, 4, t2),
                  valu("v_lshl_add_u32", t2, t0, 10, t2), valu("v_add_u32", vTL, sT[2], t2)]
            o += [salu("s_mul_i32", sT[2], sT[3], 72 * 4096), salu("s_lshl_b32", sT[1], sT[1], 10 if B else 12), salu("s_add_u32", sT[2], sT[2], sT[1]),
                  salu("s_add_u32", sT[2], sT[2], WT_OFF + (56 * 4096 if B else 0)),
                  ]
            if B: o += [salu("s_lshl4_add_u32", sT[1], sT[3], sRB)]
            else: o += [salu("s_lshl_b32", sT[1], sGQ, 5), salu("s_add_u32", sT[1], sT[1], sT[0])]
            o += [salu("s_and_b32", sT[3], sT[1], 7), salu("s_lshr_b32", sT[1], sT[1], 3), salu("s_lshl_b32", sT[1], sT[1], 7), salu("s_lshl2_add_u32", sT[1], sT[3], sT[1]),
                  salu("s_add_u32", sT[1], sT[1], FLAGA_OFF + (80 if B else 64) * 128)]
            if not B: o += [salu("s_cmp_lt_u32", None, sRB, 14), salu("s_cselect_b32", sT[2], sT[2], OOB)]
            o += [salu("s_cmp_eq_u32", None, sW, 0), salu("s_cselect_b32", sT[1], sT[1], OOB),
                  valu("v_lshl_add_u32", vTS, vLane, 4, sT[2]), valu("v_mov_b32", vF2, OOB), raw(f"v_writelane_b32 {vF2}, {sT[1]}, 0", "valu", rd=[vF2], wr=[vF2])]
            return o
        def tile_store():
            o = [valu("v_bfe_u32", t2, vLane, 2, 2), valu("v_lshrrev_b32", t3, 5, vLane), valu("v_lshl_add_u32", vTB0, t3, 4 if B else 2, t2), valu("v_lshlrev_b32", vTB0, 7, vTB0),
                 valu("v_lshrrev_b32", t2, 1, t2), valu("v_lshl_add_u32", vTB0, t2, 6, vTB0), valu("v_and_b32", t2, 1, vLane), valu("v_lshl_add_u32", vTB0, t2, 5, vTB0),
                 valu("v_and_or_b32", vTB0, vLane, 16, vTB0), valu("v_and_b32", t2, 2, vLane), valu("v_lshl_add_u32", vTB0, t2, 2, vTB0)]
            if B:
                o += [salu("s_and_b32", sT[1], sW, 1), salu("s_lshl_b32", sT[1], sT[1], 6), valu("v_xor_b32", vTB0, sT[1], vTB0),
                      salu("s_lshr_b32", sT[1], sW, 1), salu("s_lshl_b32", sT[1], sT[1], 10), salu("s_add_u32", sT[1], sT[1], TL), valu("v_add_u32", vTB0, sT[1], vTB0)]
                return o, [ds_read("ds_read_b64_tr_b16", tl.sub(2 * u, 2), vTB0, u * 512) for u in range(2)], [buf_store("buffer_store_dwordx4", tl.sub(0, 4), vTS, rWS, flags="sc1", tag="ts")]
            o += [salu("s_add_u32", sT[1], sWQ, TL), valu("v_add_u32", vTB0, sT[1], vTB0), valu("v_xor_b32", vTB1, 64, vTB0), wait(vm="tl")]
            for s_ in range(2):
                for cb in range(2):
                    for u in range(2): o += [ds_read("ds_read_b64_tr_b16", tl.sub(8 * s_ + 4 * cb + 2 * u, 2), (vTB0, vTB1)[cb], s_ * 2048 + u * 1024)]
            return o, [buf_store("buffer_store_dword", vFV, vF2, rWS, flags="sc1")], [buf_store("buffer_store_dwordx4", tl.sub(4 * i, 4), vTS, rWS, 0, 1024 * i, flags="sc1", tag="ts") for i in range(2 if c.dbg & 2048 else 4)]
        if B:
            if c.p0 == 1:
                add(salu("s_and_b32", sT[2], sWG, 63), salu("s_lshl_b32", sT[2], sT[2], 15), salu("s_lshr_b32", sT[1], sWG, 6), salu("s_lshl2_add_u32", sT[1], sT[1], sW),
                    salu("s_lshl_b32", sT[1], sT[1], 8), salu("s_add_u32", sT[1], sT[1], sT[2]),
                    valu("v_xor_b32", t2, t0, t1), valu("v_lshlrev_b32", t2, 4, t2), valu("v_lshl_add_u32", vXL, t0, 11, t2),
                    salu("s_add_u32", sXS, sT[1], 16384 - 1024), srd(*sizes[0])[2:], set_m0(sWQ, XL, "x"))
                add(self.stamp(256), raw("s_waitcnt lgkmcnt(0)", "waitcnt"), self.stamp(256))
                add(buf_dma(vXL, rX, sT[1], 0, tag="x"), buf_dma(vXL, rX, sXS, 1024, tag="x"), set_m0(sWQ, XL + 2048 - 128, "x"), salu("s_mov_b32", rWS[0], pWS[0]),
                    buf_dma(vXL, rX, sT[1], 128, tag="x"), buf_dma(vXL, rX, sXS, 1024 + 128, tag="x"))
            else:
                add(salu("s_and_b32", sT[2], sWG, 63), salu("s_lshl2_add_u32", sT[2], sT[2], sW), salu("s_lshr_b32", sT[1], sWG, 6), salu("s_lshl3_add_u32", sT[1], sT[2], sT[1]),
                    salu("s_lshl_b32", sT[1], sT[1], 10), valu("v_lshl_add_u32", vXL, vLane, 4, sT[1]), salu("s_mul_i32", sCNT, sW, 4352),
                    salu("s_movk_i32", sT[1], 960), salu("s_movk_i32", sT[2], 1920), salu("s_movk_i32", sT[3], 2880), srd(*sizes[0])[2:], set_m0(sCNT, XL, "x"))
                add(self.stamp(256), raw("s_waitcnt lgkmcnt(0)", "waitcnt"), self.stamp(256))
                add([buf_dma(vXL, rX, sT[i] if i else 0, 1088 * i, tag="x") for i in range(4)], salu("s_mov_b32", rWS[0], pWS[0]))
                add(valu("v_and_b32", vST, 3, vLane), valu("v_mul_u32_u24", t2, 1088, vST), valu("v_lshrrev_b32", vXL, 2, vLane), valu("v_lshl_add_u32", t2, vXL, 4, t2),
                    salu("s_add_u32", sCNT, sCNT, XL), valu("v_add_u32", vXR, sCNT, t2))
            add(self.stamp(256))
            add(srd(*sizes[1])[1:])
            if c.rsel: add(salu("s_lshr_b32", sT[1], sWG, 3), salu("s_and_b32", sT[2], sWG, 1), salu("s_lshl1_add_u32", sT[1], sT[1], sT[2]), salu("s_and_b32", sT[3], sWG, "0xe6"))
            else: add(salu("s_mov_b32", sT[1], sWG), salu("s_lshr_b32", sT[3], sWG, 3))
            add(salu("s_lshl_b32", sT[2], sT[1], 11), salu("s_add_u32", sT[2], sT[2], FLAGA_OFF), salu("s_lshl_b32", sT[1], sT[1], 2),
                salu("s_or_b32", sT[3], sT[3], sW), salu("s_cselect_b32", sT[2], OOB, sT[2]), salu("s_cselect_b32", sT[1], OOB, sT[1]),
                salu("s_lshl_b32", sT[3], sWG, 10), salu("s_add_u32", sT[3], sT[3], FLAG_OFF), salu("s_cmp_eq_u32", None, sW, 1),
                [salu("s_cselect_b32", sT[3], sT[3], OOB), valu("v_lshl_add_u32", vR2, vLane, 4, sT[3]), salu("s_mov_b32", sT[3], 7)] if c.rlate else
                [salu("s_cselect_b32", sT[2], sT[3], sT[2]), salu("s_cselect_b32", sT[3], 6, 7)],
                valu("v_lshrrev_b32", t2, 2, vLane), valu("v_and_b32", t3, 3, vLane), valu("v_lshlrev_b32", t3, 4, t3), valu("v_lshl_add_u32", t2, t2, sT[3], t3),
                valu("v_add_u32", vRS, sT[2], t2), valu("v_mov_b32", vSG, sT[1]), [valu("v_mov_b32", z[i], 0) for i in range(4)])
            add(buf_store("buffer_store_dwordx4", z, vRS, rWS, flags="sc1", tag="reset"))
            add(roles)
            for q in sizes[2:]: add(srd(*q))
            if c.bq:
                add(salu("s_lshl1_add_u32", sT[0], sRB, sJ), salu("s_lshl2_add_u32", sT[1], sT[0], sW), salu("s_mul_i32", sT[1], sT[1], 4 * 3072), salu("s_lshl_b32", sT[2], sGQ, 8),
                    salu("s_add_u32", sT[1], sT[1], sT[2]),
                    valu("v_min_u32", t2, 5, t1), valu("v_and_b32", t3, 1, t2), valu("v_lshrrev_b32", t2, 1, t2), valu("v_lshl_add_u32", t2, t2, 3, t3),
                    valu("v_and_b32", t3, 3, t0), valu("v_mul_u32_u24", t3, 3072, t3), valu("v_lshl_add_u32", t2, t2, 7, t3), valu("v_add_u32", t2, sT[1], t2), self.touch(t2, rQKV))
            add(gu, srd(rGU, pG, 512 * 3584)[2:], tile_setup())
            if c.wo_late == -1: add(salu("s_lshr_b32", sT[1], sWQ, 2), set_m0(sT[1], TL, "tl"), buf_dma(vTL, rD, tag="tl"))
        else:
            add(roles)
            add(salu("s_lshl_b32", sT[0], sRB, 1), salu("s_add_u32", sT[0], sT[0], sJ), salu("s_sub_u32", sT[0], sT[0], 2),
                valu("v_and_b32", t3, 1, t1), [] if c.bq else [
                salu("s_lshl2_add_u32", sT[1], sT[0], sW), salu("s_mul_i32", sT[1], sT[1], 4 * 3072), salu("s_lshl_b32", sT[2], sGQ, 8), salu("s_add_u32", sT[1], sT[1], sT[2]),
                valu("v_and_b32", t2, 3, t0), valu("v_mul_u32_u24", t2, 3072, t2), valu("v_lshl_add_u32", t2, t3, 7, t2),
                valu("v_add_u32", vTCH[3], sT[1], t2), valu("v_bfe_u32", t2, t1, 1, 1), valu("v_add_u32", t2, 1, t2), valu("v_lshl_add_u32", vTCH[1], t2, 10, vTCH[3])],
                salu("s_and_b32", sT[2], sW, 1), salu("s_lshl1_add_u32", sT[1], sT[0], sT[2]), salu("s_mul_i32", sT[1], sT[1], 8 * 3584),
                salu("s_mul_i32", sT[2], sGQ, 7 * 128), salu("s_add_u32", sT[1], sT[1], sT[2]),
                valu("v_mul_u32_u24", t2, 3584, t0), valu("v_add_u32", t2, sT[1], t2), valu("v_lshl_add_u32", vTCH[0], t3, 7, t2))
            if c.tlin:
                add(salu("s_sub_u32", sT[2], sWG, 128), salu("s_lshl2_add_u32", sT[3], sT[2], sW), salu("s_mul_i32", sCNT, sT[3], 3072),
                    valu("v_min_u32", vTCH[1], 23, vLane), valu("v_lshl_add_u32", vTCH[1], vTCH[1], 7, sCNT),
                    salu("s_mul_i32", sCNT, sT[3], 3584), valu("v_min_u32", vTCH[4], 27, vLane), valu("v_lshl_add_u32", vTCH[4], vTCH[4], 7, sCNT),
                    salu("s_and_b32", sT[3], sW, 1), salu("s_lshl1_add_u32", sT[3], sT[2], sT[3]), salu("s_mul_i32", sT[3], sT[3], 7168),
                    valu("v_min_u32", vTCH[0], 55, vLane), valu("v_lshl_add_u32", vTCH[0], vTCH[0], 7, sT[3]))
            add([] if c.bq else srd(*sizes[3])[2:], srd(rGU, pG, 512 * 3584)[2:])
            add(self.stamp(256), raw("s_waitcnt lgkmcnt(0)", "waitcnt"), self.stamp(256))
            if c.c_delay:
                add(salu("s_mov_b32", sT[3], sT[1]), [self.dma_setup(ch) for ch in range(3)], salu("s_mov_b32", sT[1], sT[3]))
            if c.tlin == 2: add(srd(rD, pD, 1792 * 1024), self.touch(vTCH[4], rD))
            add([] if c.bq else srd(*sizes[3])[:2] + self.touch(vTCH[1], rQKV), gu, self.touch(vTCH[0], rGU), self.stamp(256))
            add(valu("v_and_b32", t3, 3, t1), valu("v_add_u32", t3, 2, t3), valu("v_lshl_add_u32", vTCH[2], t3, 7, t2),
                valu("v_bfe_u32", t2, vLane, 2, 3), valu("v_mul_u32_u24", t2, 3584, t2), valu("v_bfe_u32", t3, vLane, 4, 1), valu("v_xor_b32", t3, t3, vLane), valu("v_and_b32", t3, 3, t3),
                valu("v_lshl_add_u32", t2, t3, 4, t2),
                valu("v_lshrrev_b32", t3, 5, vLane), valu("v_lshl_add_u32", t2, t3, 6, t2), salu("s_add_u32", sT[1], sT[1], 768), valu("v_add_u32", vPL, sT[1], t2),
                buf_load("buffer_load_dwordx4", p6, vPL, rGU),
                salu("s_lshr_b32", sT[1], sT[0], 3), salu("s_lshl_b32", sT[1], sT[1], 14), salu("s_and_b32", sT[2], sT[0], 7), salu("s_lshl_b32", sT[2], sT[2], 10),
                salu("s_add_u32", sT[1], sT[1], sT[2]), salu("s_and_b32", sT[2], sW, 1), salu("s_lshl_b32", sT[2], sT[2], 9), salu("s_add_u32", sT[1], sT[1], sT[2]),
                salu("s_lshr_b32", sT[2], sW, 1), salu("s_lshl_b32", sT[2], sT[2], 13), salu("s_add_u32", sT[1], sT[1], sT[2]),
                salu("s_lshl_b32", sT[2], sGQ, 17), salu("s_add_u32", sT[1], sT[1], sT[2]), salu("s_add_u32", sT[1], sT[1], P6_OFF),
                valu("v_and_b32", t2, 31, vLane), valu("v_lshlrev_b32", t2, 4, t2), valu("v_lshl_add_u32", t2, t3, 16, t2), valu("v_add_u32", vPS, sT[1], t2),
                )
            add(tile_setup())
            tdma = [set_m0(sWQ, TL, "tl"), salu("s_mov_b32", sTHR, 7168)]
            for i in range(2 if c.dbg & 2048 else 4):
                tdma += [buf_dma(vTL, rD, sTHR if i else 0, 1024 * i, tag="tl")]
                if 0 < i < 3: tdma += [salu("s_add_u32", sTHR, sTHR, 7168)]
            self.rest = [] if (c.tlin or c.b_rest is not None) else self.touch(vTCH[3], rQKV) + self.touch(vTCH[2], rGU)
            self.tdma = tdma
            if c.c_tile == -1: add(tdma)
            if c.bq: self.rest.pop(0)
            elif c.q_early and self.rest: add(self.rest.pop(0))
            if c.c_rest == -1: add(self.rest)
            add(srd(*sizes[0])[2:])
            for q in sizes[1:3] + sizes[4:]: add(srd(*q))
        add(valu("v_mov_b32", vFV, 1))
        sa, sb = (8 * 3072, 8 * 3584) if B else (8 * 3584, 16 * 3584)
        for i in (1, 2, 3):
            add(salu("s_mov_b32", sOA[i], i * (sa - 1024)), [salu("s_mov_b32", sOB[i], i * (sb - 1024))] if B else [])
        if B or not c.c_delay: add(self.dma_setup(0))
        if B:
            for _ in range(c.w_0): add(self.dma_slab())
            add(salu("s_lshr_b32", sT[0], sWG, 1), salu("s_and_b32", sT[3], sWG, 1),
                salu("s_lshl_b32", sT[1], sT[0], 15), salu("s_lshl_b32", sT[2], sW, 13), salu("s_add_u32", sT[1], sT[1], sT[2]), salu("s_lshl_b32", sT[2], sT[3], 10),
                salu("s_add_u32", sT[1], sT[1], sT[2]), salu("s_add_u32", sT[1], sT[1], XN_OFF))
            if c.p0 == 1:
                add(valu("v_lshrrev_b32", t2, 4, vLane), valu("v_and_b32", t3, 2, t2), valu("v_xor_b32", t3, t3, t1), valu("v_lshlrev_b32", t3, 4, t3), valu("v_and_b32", vST, 15, vLane),
                    valu("v_lshl_add_u32", t3, vST, 7, t3), valu("v_and_b32", t2, 1, t2), valu("v_lshl_add_u32", t3, t2, 3, t3),
                    salu("s_add_u32", sT[2], sWQ, XL), valu("v_add_u32", vXR, sT[2], t3), valu("v_xor_b32", vXL, 64, vXR), valu("v_xor_b32", vPL, 16, vXR), valu("v_xor_b32", vPS, 16, vXL),
                    valu("v_lshl_add_u32", vXS, vLane, 4, sT[1]),
                    valu("v_lshlrev_b32", vST, 5, vST), valu("v_add_u32", vST, SPARE, vST),
                    salu("s_lshl_b32", sT[2], sW, 2), valu("v_lshrrev_b32", t3, 5, vLane), valu("v_lshl_add_u32", t3, t3, 4, sT[2]), valu("v_add_u32", vRS, t3, vST))
            else:
                add(valu("v_lshlrev_b32", t3, 4, vST), valu("v_lshl_add_u32", t3, vXL, 9, t3), valu("v_add_u32", vXS, sT[1], t3))
            add(
                salu("s_lshl_b32", sT[1], sT[0], 7), salu("s_lshl_b32", sT[2], sT[3], 2), salu("s_add_u32", sT[1], sT[1], sT[2]), salu("s_add_u32", sT[1], sT[1], FLAGA_OFF),
                salu("s_cmp_eq_u32", None, sW, 0), salu("s_cselect_b32", sT[1], sT[1], OOB),
                valu("v_mov_b32", t2, OOB), valu("v_mov_b32", t3, sT[1]), valu("v_cmp_eq_u32", "vcc", 0, vLane), valu("v_cndmask_b32", vF0, t2, t3, "vcc"),
                valu("v_mov_b32", one, "0x3f803f80"), valu("v_mov_b32", sm, 0), valu("v_mov_b32", sq, 0), salu("s_mov_b32", sXS, 4096))
        add(salu("s_lshl_b32", sT[1], sRB, 2), salu("s_add_u32", sT[1], sT[1], sW), salu("s_lshl_b32", sT[2], sT[1], 7), salu("s_add_u32", sT[2], sT[2], FLAGA_OFF),
            valu("v_and_b32", vPOLL, 1, vLane), valu("v_lshlrev_b32", vPOLL, 2, vPOLL), valu("v_add_u32", vP0, sT[2], vPOLL),
            salu("s_lshl_b32", sT[1], sT[1], 15), salu("s_add_u32", sT[1], sT[1], XN_OFF), valu("v_lshl_add_u32", vXN, vLane, 4, sT[1]),
            salu("s_cmp_eq_u32", None, sW, 0), salu("s_cselect_b32", sT[1], 0, OOB), salu("s_cselect_b32", sT[3], 0 if c.nodbg else 1, 0),
            valu("v_lshl_add_u32", vDB, t1, 2, sT[1]), valu("v_mov_b32", vTLB, sT[3]))
        if not B and not c.c_delay: add(self.dma_setup(1), self.dma_setup(2))
        if B and not c.b_lean: add(self.dma_setup(1), self.dma_setup(2))
        add(self.w2_setup())
        if c.setup_early or not B: self.misc_setup()
        add(self.stamp(65 + 256))
        if B:
            add(wait(vm="x"))
            if c.p0 == 1: add([ds_read("ds_read_b64", xr.sub(4 * i + 2 * u, 2), ((vXR, vPL), (vXL, vPS))[i & 1][u], 2048 * (i >> 1)) for i in range(4) for u in range(2)])
            else: add([ds_read("ds_read_b128", xr.sub(4 * i, 4), vXR, 256 * i) for i in range(4)])
            if c.sig_early: add(wait(vm="reset"), buf_store("buffer_store_dword", vFV, vSG, rDBG, flags="sc1"))
            add(self.stamp(64 + 256))
            for r in range(16): add(valu("v_dot2c_f32_bf16", sm, xr[r], one, rmw=True), valu("v_dot2c_f32_bf16", sq, xr[r], xr[r], rmw=True))
            add([valu("v_lshlrev_b32", lo[i], 16, xr[i]) for i in range(3)])
            add(valu("v_permlane32_swap_b32", sm, sq, rmw=True, wr2=sq), valu("v_add_f32", sm, sm, sq), valu("v_mov_b32", sq, sm))
            add([valu("v_lshlrev_b32", lo[i], 16, xr[i]) for i in (3, 4)])
            add(valu("v_permlane16_swap_b32", sm, sq, rmw=True, wr2=sq), valu("v_add_f32", sm, sm, sq))
            sig = [] if c.sig_early else [wait(vm="reset"), buf_store("buffer_store_dword", vFV, vSG, rDBG, flags="sc1")]
            shl = lambda a, b: [valu("v_lshlrev_b32", lo[i], 16, xr[i]) for i in range(a, b)]
            if c.p0 == 1:
                add(ds_write("ds_write_b32", vRS, sm, tag="st"), sig, shl(5, 16))
                add(wait(lg="st"), self.stamp(256), barrier(), self.stamp(256))
                add([ds_read("ds_read_b128", part.sub(4 * i, 4), vST, 16 * i) for i in range(2)])
                add([valu("v_and_b32", xr[i], "0xffff0000", xr[i]) for i in range(16)])
                add(valu("v_pk_add_f32", part.sub(0, 2), part.sub(0, 2), part.sub(2, 2)), valu("v_pk_add_f32", part.sub(4, 2), part.sub(4, 2), part.sub(6, 2)),
                    valu("v_add_f32", sm, part[0], part[1]), valu("v_add_f32", sq, part[4], part[5]))
            else:
                add(shl(5, 7), valu("v_add_f32_dpp", sm, sm, sm, extra="row_ror:8 row_mask:0xf bank_mask:0xf"),
                    shl(7, 9), valu("v_add_f32_dpp", sm, sm, sm, extra="row_ror:4 row_mask:0xf bank_mask:0xf"), valu("v_mov_b32", sq, sm),
                    shl(9, 11), valu("v_permlane32_swap_b32", sm, sq, rmw=True, wr2=sq), sig, shl(11, 16), self.stamp(256), self.stamp(256))
                add([valu("v_and_b32", xr[i], "0xffff0000", xr[i]) for i in range(16)])
            add(
                valu("v_mul_f32", sm, f32(1 / 512), sm), valu("v_mul_f32", sq, f32(1 / 512), sq),
                valu("v_fma_f32", sq, f"-{sm}", sm, sq), valu("v_max_f32", sq, 0, sq),
                valu("v_cvt_pk_bf16_f32", sq, sq, sm),
                valu("v_and_b32", sm, "0xffff0000", sq), valu("v_lshlrev_b32", sq, 16, sq),
                valu("v_add_f32", sq, f32(1e-5), sq), valu("v_cvt_pk_bf16_f32", sq, sq, sq), valu("v_lshlrev_b32", sq, 16, sq),
                valu("v_sqrt_f32", sq, sq), valu("v_cvt_pk_bf16_f32", sq, sq, sq), valu("v_lshlrev_b32", sq, 16, sq),
                valu("v_rcp_f32", rb[1], sq), valu("v_mul_f32", rb[0], f"-{sm}", rb[1]))
            for h in range(2 if c.dbg & 1024 else 4):
                for r in (lo, xr):
                    add([valu("v_pk_fma_f32", r.sub(i, 2), r.sub(i, 2), rb, rb, extra="op_sel:[0,1,0] op_sel_hi:[1,1,0]") for i in (4 * h, 4 * h + 2)])
                add([valu("v_cvt_pk_bf16_f32", xr[i], lo[i], xr[i]) for i in range(4 * h, 4 * h + 4)])
                if c.p0 == 1: add(buf_store("buffer_store_dwordx4", xr.sub(4 * h, 4), vXS, rWS, sXS if h >> 1 else 0, 2048 * (h & 1), flags="sc1", tag=f"xs{h}"))
                else: add(salu("s_movk_i32", sXS, 8192 * h), buf_store("buffer_store_dwordx4", xr.sub(4 * h, 4), vXS, rWS, sXS, flags="sc1"))
            if c.rlate: add(buf_store("buffer_store_dwordx4", z, vR2, rWS, flags="sc1"))
            if c.dpos == 0: add(self.poll_issue(vDB, rDBG))
            add(self.stamp(64 + 4096))
            if c.dpos != 2:
                for _ in range(c.w_a): add(self.dma_slab())
            if c.b_rest is not None:
                add(salu("s_lshl1_add_u32", sT[0], sRB, sJ), salu("s_lshl2_add_u32", sT[1], sT[0], sW), salu("s_mul_i32", sT[1], sT[1], 4 * 3072), salu("s_lshl_b32", sT[2], sGQ, 8),
                    salu("s_add_u32", sT[1], sT[1], sT[2]), valu("v_and_b32", t2, 3, t0), valu("v_mul_u32_u24", t2, 3072, t2), valu("v_and_b32", t3, 1, t1),
                    valu("v_lshl_add_u32", t2, t3, 7, t2), valu("v_add_u32", vTCH[3], sT[1], t2),
                    salu("s_and_b32", sT[2], sW, 1), salu("s_lshl1_add_u32", sT[1], sT[0], sT[2]), salu("s_mul_i32", sT[1], sT[1], 8 * 3584),
                    salu("s_mul_i32", sT[2], sGQ, 7 * 128), salu("s_add_u32", sT[1], sT[1], sT[2]), salu("s_add_u32", sT[1], sT[1], 256),
                    valu("v_mul_u32_u24", t2, 3584, t0), valu("v_add_u32", t2, sT[1], t2), valu("v_and_b32", t3, 3, t1), valu("v_lshl_add_u32", vTCH[2], t3, 7, t2))
                self.rest = self.touch(vTCH[3], rQKV) + self.touch(vTCH[2], rGU)
            if c.b_lean: add(self.dma_setup(1), self.dma_setup(2))
            self.mid = self.poll_issue(vDB, rDBG) if c.dpos == 3 else []
            if not c.setup_early: self.misc_setup()
            if c.dpos in (1, 2): add(self.poll_issue(vDB, rDBG))
            if c.dpos == 2:
                for _ in range(c.w_a): add(self.dma_slab())
            pre, rd, self.ts = tile_store()
            add(pre)
            if c.stamps & 4096: add(self.stamp(4096), wait(vm="xs0"), self.stamp(4096), wait(vm="xs3"), self.stamp(4096), wait(vm="w0"), self.stamp(4096))
            add(self.poll_check(vDB, rDBG, vTLB))
            add(self.stamp(64 + 4096))
            add(barrier(), self.stamp(64), buf_store("buffer_store_dword", vFV, vF0, rWS, flags="sc1", tag="f0"))
            wo = [salu("s_lshr_b32", sT[1], sWQ, 2), set_m0(sT[1], TL, "tl"), buf_dma(vTL, rD, tag="tl")]
            if c.wo_late == 0: add(wo)
            for _ in range(c.w_b): add(self.dma_slab())
        else:
            pre, rd, self.ts = tile_store()
            for _ in range(c.w_c0): add(self.dma_slab())
            if c.c_tile == -1: add(pre)
            else:
                assert c.ts_pos > c.c_tile and c.ts_pos >= 0
                add(pre[:14]); self.ts = pre[14:] + self.ts
            if c.w_c0: add(self.stamp(64 + 256), self.stamp(256), self.stamp(64 + 256))
            else: add(self.stamp(64 + 256), self.dma_slab(), self.stamp(256), wait(vm="w0"), self.stamp(64 + 256))
            add(buf_store("buffer_store_dwordx4", p6, vPS, rWS, flags="sc1"))
            if c.ts_pos < 0: add(self.ts); self.ts = []
            add(self.poll_issue(vDB, rDBG))
            while self.nslab < c.w_c: add(self.dma_slab())
            if c.c_tile == -2: add(tdma)
            if c.c_rest == -2: add(self.rest)
            add(self.poll_check(vDB, rDBG, vTLB), self.stamp(64), barrier(), self.stamp(64))
        add(self.poll_issue(vP0, rWS))
        if c.stamps & 4096:
            add(self.stamp(4096), wait(vm="f0"), self.stamp(4096), wait(vm=f"w{self.nslab-1}"), self.stamp(4096), wait_regs(vPV), self.stamp(4096))
            self.nst = 10
        add(wait_regs(vPV), self.stamp(64), self.poll_check(vP0, rWS, 1))
        add(self.stamp(65 + 256))
        self.nx = 0
        for _ in range(c.nx0 // 2): add(self.x_load())
        add(wait(vm=["w0", "tl"] if B else "w0"), barrier(), rd)
        F = self.frag_list()
        for k in range(c.LA):
            add(self.frag_reads(k, F[k]))
            if k % 2 and self.nx < c.nx0: add(self.x_load())
        while self.nx < c.nx0: add(self.x_load())
    def x_load(self):
        j = self.nx; self.nx += 1
        o = []
        if j % 4 == 0: o += [salu("s_mov_b32", sXS, j * 1024)]
        return o + [buf_load("buffer_load_dwordx4", X.sub(4 * j, 4), vXN, rWS, 0 if self.cfg.dbg & 8 else sXS, (j % 4) * 1024, flags="sc1")]

    def misc_setup(self):
        add = self.add
        t0, t1, t2, t3 = T[0], T[1], T[2], T[3]
        TR = self.TR
        add(valu("v_bfe_u32", t0, vLane, 2, 3), valu("v_and_b32", t1, 32, vLane), valu("v_lshrrev_b32", t1, 1, t1), valu("v_add_u32", t1, t1, t0),
            valu("v_and_b32", t2, 1, vLane), valu("v_lshlrev_b32", t2, 3, t2), valu("v_and_b32", t3, 2, vLane),
            valu("v_lshl_add_u32", TR[0], t1, 7, t2), valu("v_lshl_add_u32", TR[0], t3, 5, TR[0]), valu("v_lshrrev_b32", t0, 1, t0), valu("v_lshl_add_u32", TR[0], t0, 4, TR[0]),
            [valu("v_xor_b32", TR[i], 16 * i, TR[0]) for i in (1, 2, 3)])
        if not self.B:
            add(valu("v_lshl_add_u32", TR[4], t1, 6, t2), valu("v_lshl_add_u32", TR[4], t3, 4, TR[4]), valu("v_and_or_b32", TR[4], vLane, 16, TR[4]), valu("v_xor_b32", TR[5], 16, TR[4]))
        self.win = [0] * 6
        for ch in range(3):
            if not (self.B and ch == 0): add(self.set_hu(ch))
        if self.B: add(self.att_setup())
        add(self.mid)
        add(salu("s_lshl_b32", sT[1], sRB, 2), salu("s_add_u32", sT[1], sT[1], sW), salu("s_mul_i32", sT[2], sT[1], HSTR),
            valu("v_and_b32", t0, 16, vLane), valu("v_lshlrev_b32", t0, 1, t0), valu("v_and_or_b32", t0, vLane, 15, t0), valu("v_lshl_add_u32", t0, t0, 4, sT[2]),
            valu("v_and_b32", t1, 32, vLane), valu("v_lshl_add_u32", vHST, t1, 6, t0))
        if not self.B: add(valu("v_lshl_add_u32", vSCR, t1, 5, t0))
        if self.cfg.dbg & 1: add(valu("v_mov_b32", vHST, OOB))
        add(salu("s_lshr_b32", sT[1], sT[1], 1), salu("s_lshl_b32", sT[1], sT[1], 2), salu("s_add_u32", sT[1], sT[1], sGQ), salu("s_lshl_b32", sT[1], sT[1], 10),
            salu("s_and_b32", sT[2], sW, 1), salu("s_lshl_b32", sT[3], sJ, 1), salu("s_add_u32", sT[2], sT[2], sT[3]), salu("s_lshl_b32", sT[2], sT[2], 2),
            salu("s_add_u32", sT[1], sT[1], sT[2]), salu("s_add_u32", sT[1], sT[1], FLAG_OFF),
            valu("v_mov_b32", t0, OOB), valu("v_mov_b32", t1, sT[1]), valu("v_cmp_eq_u32", "vcc", 0, vLane), valu("v_cndmask_b32", vFLG, t0, t1, "vcc"))
        if self.B: add(valu("v_add_u32", vFH, sH3, vFLG))
        add(salu("s_lshl_b32", sT[1], sTB2, 1), salu("s_lshr_b32", sT[2], sW, 1), salu("s_add_u32", sT[1], sT[1], sT[2]), salu("s_mul_i32", sP2h, sT[1], HSTR),
            salu("s_xor_b32", sT[2], sT[1], 1), salu("s_mul_i32", sHS, sT[2], HSTR),
            salu("s_lshl_b32", sT[1], sT[1], 5),
            salu("s_and_b32", sT[2], sT[1], 1023), salu("s_lshl_b32", sT[2], sT[2], 11), salu("s_lshr_b32", sT[1], sT[1], 10), salu("s_lshl_b32", sT[1], sT[1], 10),
            salu("s_add_u32", sT[1], sT[1], sT[2]), salu("s_lshl_b32", sT[2], sCB2, 7), salu("s_add_u32", sT[1], sT[1], sT[2]),
            salu("s_and_b32", sT[2], sW, 1), salu("s_lshl_b32", sT[2], sT[2], 6), salu("s_add_u32", sP2x, sT[1], sT[2]),
            salu("s_lshl_b32", sT[1], sTB2, 2), salu("s_add_u32", sT[1], sT[1], sW), salu("s_lshl_b32", sT[1], sT[1], 10), salu("s_add_u32", sP2f, sT[1], FLAG_OFF))
        add(salu("s_mul_i32", sT[1], sCB2, 72 * 4096), salu("s_add_u32", sT[1], sT[1], WT_OFF), salu("s_lshl_b32", sT[2], sT[2], 4),
            salu("s_add_u32", sT[3], sT[1], sT[2]), valu("v_lshl_add_u32", vW[0], vLane, 4, sT[3]),
            salu("s_sub_u32", sT[3], sT[1], sT[2]), valu("v_lshl_add_u32", vW[1], vLane, 4, sT[3]), valu("v_lshl_add_u32", vWB, vLane, 4, sWQ),
            salu("s_lshl_b32", sT[1], sCB2, 8), salu("s_add_u32", sT[1], sT[1], FLAGA_OFF + 96 * 128), salu("s_lshl_b32", sT[2], sGQ, 9), salu("s_add_u32", sT[2], sT[2], FLAGA_OFF + 64 * 128),
            salu("s_lshr_b32", sT[3], sCB2, 1), salu("s_xor_b32", sT[3], sT[3], self.cfg.tx), salu("s_lshl_b32", sT[3], sT[3], 9), salu("s_add_u32", sT[3], sT[3], FLAGA_OFF + 80 * 128),
            salu("s_cmp_eq_u32", None, sW, 0), salu("s_cselect_b32", sT[1], sT[1], OOB), salu("s_cselect_b32", sT[2], sT[2], OOB), salu("s_cselect_b32", sT[3], sT[3], OOB),
            salu("s_cselect_b32", sW0, 1, 0),
            valu("v_and_b32", t0, 24, vLane), valu("v_lshlrev_b32", t0, 2, t0), valu("v_and_or_b32", t0, vLane, 7, t0), valu("v_and_b32", t1, 63, t0),
            valu("v_lshl_add_u32", t1, t1, 2, sT[1]), valu("v_lshl_add_u32", vP2, t0, 2, sT[3]),
            valu("v_cmp_lt_u32", "vcc", 31, vLane), valu("v_cndmask_b32", vP2, vP2, t1, "vcc"))
        if not self.B: add(valu("v_lshl_add_u32", vP6, t0, 2, sT[2]))

    def chunk_of(self, n): return 0 if n < 8 else (1 if n < 12 else 2)
    def dma_setup(self, ch):
        t0, t1 = T[0], T[1]
        o = []
        B = self.B
        half = (not B) and ch == 1
        stride = 3072 if (B and ch < 2) else 3584
        if half:
            return [salu("s_lshl_b32", sT[1], sGQ, 1), salu("s_add_u32", sT[1], sT[1], sJ), salu("s_lshl_b32", sT[1], sT[1], 16), salu("s_add_u32", sT[1], sT[1], sWQ),
                    salu("s_add_u32", sT[1], sT[1], P6_OFF - 2 * 65536), valu("v_lshl_add_u32", vDMA1, vLane, 4, sT[1])]
        else:
            o += [valu("v_lshrrev_b32", t0, 4, vLane), valu("v_and_b32", t1, 7, vLane), valu("v_xor_b32", t1, t0, t1), valu("v_lshrrev_b32", t0, 3, vLane)]
        o += [valu("v_mul_u32_u24", t0, stride, t0), valu("v_lshl_add_u32", t0, t1, 4, t0)]
        a, b = sT[1], sT[2]
        if B and ch == 0:
            o += [salu("s_lshl_b32", a, sGQ, 1), salu("s_add_u32", a, a, sJ), salu("s_lshl_b32", a, a, 7), salu("s_lshr_b32", b, sW, 1),
                  salu("s_add_u32", b, b, 1), salu("s_lshl_b32", b, b, 10), salu("s_add_u32", a, a, b), salu("s_and_b32", b, sW, 1),
                  salu("s_mul_i32", b, b, 32 * stride), salu("s_add_u32", a, a, b)]
        elif B and ch == 1:
            o += [salu("s_lshl_b32", a, sGQ, 1), salu("s_add_u32", a, a, sJ), salu("s_lshl_b32", a, a, 7), salu("s_mul_i32", b, sW, 32 * stride),
                  salu("s_add_u32", a, a, b)]
        else:
            if half: o += [salu("s_lshl_b32", b, sJ, 6), salu("s_add_u32", b, b, 6 * 128 - 128)]
            else: o += [salu("s_lshl_b32", b, sJ, 7), salu("s_sub_u32" if ch == 0 else "s_add_u32", b, b, 256)]
            o += [salu("s_mul_i32", a, sGQ, 7 * 128), salu("s_add_u32", a, a, b), salu("s_and_b32", b, sW, 1),
                  salu("s_mul_i32", b, b, (64 if half else 32) * stride), salu("s_add_u32", a, a, b)]
        o += [valu("v_add_u32", (vDMA0, vDMA1, vDMA2)[ch], a, t0)]
        return o
    def dma_slab(self):
        n = self.nslab; self.nslab += 1
        ch = self.chunk_of(n)
        B = self.B
        vd = (vDMA0, vDMA1, vDMA2)[ch]
        srd = rQKV if (B and ch < 2) else rGU
        so = (sOA if ch < 2 else sOB) if B else (sOB if ch == 1 else sOA)
        stride = 3072 if (B and ch < 2) else 3584
        o = [set_m0(sWQ, slab_slot(n) * SLOT, f"w{n}")]
        if ch == 1 and not B:
            if n > 8: o += [valu("v_add_u32", vd, 16384, vd)]
            return o + [buf_dma(vd, rWS, 0, i * 1024, flags="sc1", tag=f"w{n}") for i in range(4)]
        if n not in (0, 8, 12) and not self.cfg.dbg & 16: o += [valu("v_add_u32", vd, (128 if ch == 1 else 64) * stride, vd)]
        o += [buf_dma(vd, srd, so[i], i * 1024, flags="sc1" if self.cfg.dbg & 16 else self.cfg.wflags, tag=f"w{n}") for i in range(2 if (self.cfg.dbg & 512 and n >= 7) else 4)]
        return o
    def frag_list(self):
        L = []
        for n in range(20):
            ch = self.chunk_of(n)
            base = slab_slot(n) * SLOT
            if ch != 1:
                n0 = 0 if ch == 0 else 12
                for jj in range(2):
                    for cc in range(4):
                        for im in range(2):
                            L.append(([ACC1.sub(16 * im + 32 * th + 4 * cc, 4) for th in range(2)], 4 * (n - n0) + 2 * jj, n, base + im * 8192 + jj * 4096, cc, 1024))
            else:
                for jj in range(4):
                    for cc in range(4):
                        if self.B: L.append(([ACC2.sub(16 * th + 4 * cc, 4) for th in range(2)], 8 * (n - 8) + 2 * jj, n, base + jj * 4096, cc, 1024))
                        else: L.append(([ACC2.sub(16 * (cc & 1) + 8 * th + 4 * (cc >> 1), 4) for th in range(2)], 8 * (n - 8) + 2 * jj, n, base + (cc & 1) * 8192 + jj * 2048, 4 + (cc >> 1), 512))
        assert not self.cfg.nspl
        if self.cfg.chain:
            M = []
            for n in range(20):
                f = L[16 * n:16 * n + 16]
                h = 4 if self.chunk_of(n) == 1 else 8
                for a in range(0, 16, 2 * h):
                    for i in range(h): M += [f[a + i], f[a + h + i]]
            L = M
        return L
    def window(self, wins, which, reg, off, span):
        o = []
        if not (wins[which] <= off and off + span <= wins[which] + 65536):
            w = off // SLOT * SLOT
            d = w - wins[which]
            o += [valu("v_add_u32" if d > 0 else "v_subrev_u32", reg, abs(d), reg)]
            wins[which] = w
        return o, off - wins[which]
    def frag_reads(self, k, f):
        acc, step, n, off, which, ustep = f
        b = self.TR[which]
        o, imm = self.window(self.win, which, b, off, 2048)
        dst = WF.sub(4 * (k % self.cfg.NB), 4)
        o += [ds_read("ds_read_b64_tr_b16", dst.sub(0, 2), b, imm, tag=f"f{k}"), ds_read("ds_read_b64_tr_b16", dst.sub(2, 2), b, imm + ustep, tag=f"f{k}")]
        return o
    def ffn_epi(self, G, U, ch, kst, tag, pk=False):
        o = []
        for b in range(4):
            t = [T[4 + i] for i in range(4)]
            g = [G[4 * b + i] for i in range(4)]; u = [U[4 * b + i] for i in range(4)]
            if pk:
                t2 = [T.sub(4, 2), T.sub(6, 2)]; g2 = [G.sub(4 * b, 2), G.sub(4 * b + 2, 2)]; u2 = [U.sub(4 * b, 2), U.sub(4 * b + 2, 2)]
                o += [valu("v_pk_mul_f32", t2[i], g2[i], T.sub(0, 2)) for i in range(2)]
                o += [valu("v_exp_f32", t[i], t[i]) for i in range(4)]
                o += [valu("v_pk_mul_f32", u2[i], g2[i], u2[i]) for i in range(2)]
                o += [valu("v_pk_add_f32", t2[i], t2[i], T.sub(2, 2)) for i in range(2)]
                o += [valu("v_rcp_f32", t[i], t[i]) for i in range(4)]
                o += [valu("v_pk_mul_f32", u2[i], u2[i], t2[i]) for i in range(2)]
            else:
                o += [valu("v_mul_f32", t[i], sNL if self.cfg.sconst else f32(-LOG2E), g[i]) for i in range(4)]
                for i in range(4): o += [valu("v_exp_f32", t[i], t[i]), valu("v_mul_f32", u[i], g[i], u[i])]
                o += [valu("v_add_f32", t[i], "1.0", t[i]) for i in range(4)]
                o += [valu("v_rcp_f32", t[i], t[i]) for i in range(4)]
                o += [valu("v_mul_f32", u[i], u[i], t[i]) for i in range(4)]
            o += [valu("v_cvt_pk_bf16_f32", G[2 * b + i], u[2 * i], u[2 * i + 1]) for i in range(2)]
            if b & 1: o += [buf_store("buffer_store_dwordx4", G.sub(2 * (b - 1), 4), vSCR if ch == 1 else vHST, rWS, sHu[ch], kst + (b >> 1) * (256 if ch == 1 else 1024), flags=self.cfg.hflags, tag=tag)]
        return o
    def set_hu(self, ch):
        a = sT[1]
        if self.B and ch == 1:
            return [salu("s_lshl_b32", a, sGQ, 1), salu("s_add_u32", a, a, sJ), salu("s_lshl_b32", a, a, 12), salu("s_add_u32", sHu[ch], a, 112 * 1024)]
        o = [salu("s_mul_i32", sHu[ch], sGQ, 28 * 1024)]
        if ch == 1: o += [salu("s_lshl_b32", a, sJ, 11), salu("s_add_u32", a, a, 6 * 4096 - 4096)]
        else: o += [salu("s_lshl_b32", a, sJ, 12), salu("s_sub_u32" if ch == 0 else "s_add_u32", a, a, 8192)]
        return o + [salu("s_add_u32", sHu[ch], sHu[ch], a)]

    def phase1(self):
        c, add, B = self.cfg, self.add, self.B
        F = self.frag_list()
        NM = len(F)
        assert not c.chain or (c.wstep % 2 == 0 and c.NB >= c.LA + 2)
        gaps = [[] for _ in range(NM)]
        tail = [[] for _ in range(NM)]
        load = [0] * NM
        def put(k, ins, last=False):
            (tail if last else gaps)[k] += ins
            load[k] += sum(cyc(i) for i in ins)
        def spread(ins, k0, k1):
            tot = sum(cyc(i) for i in ins)
            lo, hi = 0.0, 1000.0
            for _ in range(40):
                mid = (lo + hi) / 2
                if sum(max(0, mid - load[k]) for k in range(k0, k1)) >= tot: hi = mid
                else: lo = mid
            cap, acc = [], 0.0
            for k in range(k0, k1):
                acc += max(0, hi - load[k]); cap.append(acc)
            k, used = 0, 0.0
            for i in ins:
                while k < len(cap) - 1 and used + cyc(i) / 2 > cap[k] and i.kind != "branch": k += 1
                put(k0 + k, [i]); used += cyc(i)
        bar_gap = {n: 16 * n - c.LA - 1 for n in range(1, 20)}
        bar_gap[0], bar_gap[20] = -1, NM
        self.bar_extra = {n: [] for n in range(1, 21)}
        need = {n: max(f[2] for f in F[:min(NM, bar_gap[n + 1] + c.LA + 1)]) for n in range(20)}
        skip = lambda n: c.bar2 and c.bar2 <= n < 19 and (n - c.bar2) % 2 == 1
        self.skip = skip
        for n in range(18, 0, -1):
            if skip(n + 1): need[n] = need[n + 1]
        for n in (c.pw_per, c.p6_per, c.f2_bar): assert not skip(n)
        lastx = lambda i: max(k for k, f in enumerate(F) if f[1] // 4 == i)
        plan = dict((int(p.split(":")[0]), p.split(":")[1].split(".")) for p in (c.planB if B else c.planC).split(",") if p)
        self.pool = list(ABUF) + VBUF[:5] + ([] if B else VBUF[5:7])
        put(bar_gap[c.pw_per] - 1 - c.pw_lead, self.poll_issue(vP2, rWS))
        put(bar_gap[c.pw_per] - 1, self.poll_check(vP2, rWS, sW0))
        if not B:
            assert bar_gap[c.p6_per] <= bar_gap[c.pw_per] - 1 - c.pw_lead
            put(bar_gap[c.p6_per] - 1 - c.pw_lead, self.poll_issue(vP6, rWS))
            put(bar_gap[c.p6_per] - 1, self.poll_check(vP6, rWS, sW0))
        put(bar_gap[c.f2_bar] + 1, [buf_store("buffer_store_dword", vFV, vF2, rWS, 0, 2048, flags="sc1")])
        for n in range(20):
            k = bar_gap[n]
            if n and not skip(n): load[k] += 14
            if B and n and bar_gap[n - 1] < c.g_halo + 2 * (9 + c.att_w) <= k: self.pool += VBUF[5:]
            if n == 9 and not B: self.pool += VBUF[7:]
            ops = list(plan.get(n, []))
            ins = []
            while ops and ops[0] in ("r", "H"):
                ins += self.plan_op(ops.pop(0), n)
            w = []
            nw = 0
            while self.nslab < 20 and self.nslab <= n - (1 if skip(n) else 0) + c.NS - 2 and (B or self.nslab < 8 or n >= c.p6_per) and (self.nslab <= need[min(19, n + 2)] or nw + ops.count("w") < 1 or "w" in ops):
                if nw and "w" in ops: ops.remove("w")
                w += self.dma_slab(); nw += 1
            ops = [x for x in ops if x != "w"]
            assert self.nslab > need[min(19, n + 2)], n
            if n == max(c.ts_pos, 0): ins += self.ts
            while c.xfree and self.xf_n < 5 and lastx(self.xf_n) <= k: self.pool += [A(16 * self.xf_n, 16)]; self.xf_n += 1
            nxl = min(32 - self.nx, c.xr[n] if n < len(c.xr) else (c.xrate if n else max(1, c.xrate // 2)))
            for i in w:
                if i.kind == "dma" and nxl: ins += self.x_load(); nxl -= 1
                ins.append(i)
            for _ in range(nxl): ins += self.x_load()
            assert self.nx >= min(32, (bar_gap[n + 1] + 16) // 4 + (3 if c.chain else 1)), n
            if n == c.c_tile and not B: ins += self.tdma
            if n == (c.b_rest if B else c.c_rest): ins += self.rest
            for op in ops: ins += self.plan_op(op, n)
            if ins: spread(ins, k + 1, bar_gap[n + 1])
        if not B:
            ins = self.ffn_epi(ACC1.sub(0, 16), ACC1.sub(16, 16), 0, 0, "st1") + self.ffn_epi(ACC1.sub(32, 16), ACC1.sub(48, 16), 0, 256, "st1")
            spread(ins, 129, 191)
            if not c.one_pa: put(c.g_f1c, self.flag(L_P1, "st1"))
            spread(self.ffn_epi(ACC2.sub(0, 16), ACC2.sub(16, 16), 1, 0, "st2"), 194, c.h2_end)
            put(c.g_f2c, self.flag(L_HALF, "st2"))
        else:
            self.attention(put, spread, bar_gap, load)
        if c.nspl:
            k0 = max(320 - 8 * c.nspl + 2, self.att_end + 7 if B else 0)
            spread(self.ffn_epi(ACC1.sub(0, 16), ACC1.sub(16, 16), 2, 0, "st3"), k0, c.e0_end)
        o = [valu("v_lshl_add_u32", vH[0], vLane, 4, sP2h), valu("v_lshl_add_u32", vH[1], vLane, 4, sHS),
             valu("v_and_b32", vPOLL, 7, vLane), valu("v_lshrrev_b32", vTHR, 2, vPOLL), valu("v_lshl_add_u32", vPOLL, vPOLL, 2, sP2f),
             ]
        if not c.otr: o += [valu("v_and_b32", vXO, 31, vLane), valu("v_lshlrev_b32", vXO, 11, vXO), valu("v_and_or_b32", vXO, vLane, 32, vXO), valu("v_add_u32", vXO, sP2x, vXO)]
        spread(o, *((176, 192) if B else (200, c.g_pa)))
        la = L_HALF if c.one_pa else L_P1
        put(c.g_pa, self.poll_issue(vPOLL, rWS, la))
        assert c.g_pa < bar_gap[c.pa_per] - 1
        put(bar_gap[c.pa_per] - 1, self.poll_check(vPOLL, rWS, vTHR, la))
        self.pa2 = (vPOLL, rWS, vTHR, L_HALF)
        if c.m_pb == -1:
            put(c.g_pa2 - 2, [valu("v_lshlrev_b32", vP2, 7, vTHR), valu("v_sub_u32", vP2, vPOLL, vP2)])
            self.pa2 = (vP2, rWS, 1, L_O)
        if not c.one_pa: put(c.g_pa2, self.poll_issue(self.pa2[0], rWS, self.pa2[3]))
        if c.pa2_epi < 0 and not c.one_pa: put(319, self.poll_check(*self.pa2))
        spread([valu("v_mov_b32", T[0], f32(-LOG2E)), valu("v_mov_b32", T[1], f32(-LOG2E)), valu("v_mov_b32", T[2], "1.0"), valu("v_mov_b32", T[3], "1.0")], 312, 320)
        inv_bar = {v: n for n, v in bar_gap.items() if 1 <= n <= 19}
        for k in range(NM):
            acc, step, n, off, which, us = F[k]
            if k % c.wstep == 0: add(wait(lg=[f"f{i}" for i in range(k, k + c.wstep)]))
            rd = self.frag_reads(k + c.LA, F[k + c.LA]) if k + c.LA < NM else []
            fill = gaps[k]
            tot, u, n1 = sum(cyc(i) for i in fill), 0, 0
            while n1 < len(fill) and (u + cyc(fill[n1]) / 2 <= tot / 2 or fill[n1].kind == "branch"): u += cyc(fill[n1]); n1 += 1
            if 2 * u > tot + 4: r1 = 0 if len(rd) <= 2 else len(rd) - 1
            elif 2 * u < tot - 4: r1 = len(rd)
            else: r1 = max(0, len(rd) - 1)
            if c.chain:
                th = k & 1
                first = F[k & ~1][1] == 0
                mm = [mfma(16, acc[th], WF.sub(4 * (kk % c.NB), 4), X.sub(4 * (F[kk][1] + th), 4), 0 if (first and kk == k) else acc[th]) for kk in (k, k ^ 1)]
            else: mm = [mfma(16, acc[th], WF.sub(4 * (k % c.NB), 4), X.sub(4 * (step + th), 4), 0 if step == 0 else acc[th]) for th in range(2)]
            add(mm[0])
            if k == 0: add(self.stamp(67))
            add(rd[:r1], fill[:n1])
            add(mm[1], rd[r1:], fill[n1:], tail[k])
            if k in inv_bar:
                n = inv_bar[k]
                assert not (skip(n) and self.bar_extra[n])
                if n == 19 or need[n] > need[n - 1]: add(wait(vm=[f"w{need[n]}"] + (["ts"] if n == c.f2_bar else []), lg=self.bar_extra[n] or None), barrier())
            if k in (127, 191): add(self.stamp())
            if k in (31, 63): add(self.stamp(64))
            if k % 32 == 31 and 31 < k < 319: add(self.stamp(2))
            if k in c.sg: add(self.stamp(32))
        add(self.stamp(131))
        self.load = load
    def plan_op(self, op, n):
        if op == "l":
            assert n >= self.cfg.pw_per
            return self.w2_load()
        if op == "h":
            assert n >= self.cfg.pa_per and self.h_n < 4
            return self.h_load()
        if op == "P": return self.poll_issue(vPOLLH, rWS)
        if op == "H":
            self.halo_period = n
            i = salu("s_mov_b32", "m0", sHM0); i.tag = "halo"
            return self.poll_check(vPOLLH, rWS, sTHR) + [i] + [buf_dma(vHLD, rWS, 0, 1024 * q, flags="sc1", tag="halo") for q in range(2)]
        slot = int(op[1:])
        if slot < self.cfg.NS: assert n - (1 if self.skip(n) else 0) >= 2 + max(x for x in range(20) if slab_slot(x) == slot)
        if self.B and slot >= 7: assert n >= 19
        assert n >= self.cfg.pw_per
        return self.w2_dma(slot)

    def att_setup(self):
        t0, t1 = T[0], T[1]
        o = [valu("v_and_b32", t0, 15, vLane), valu("v_mul_u32_u24", t0, RP, t0), valu("v_and_b32", t1, 48, vLane), valu("v_lshlrev_b32", t1, 1, t1),
             salu("s_mul_i32", sT[0], sW, 32 * RP), salu("s_add_u32", sT[0], sT[0], SCR), valu("v_add3_u32", vSCR, sT[0], t0, t1),
             valu("v_and_b32", t0, 3, vLane), valu("v_bfe_u32", vVTR, vLane, 2, 2), valu("v_lshl_add_u32", t0, t0, 2, vVTR),
             valu("v_mul_u32_u24", t0, RP, t0), valu("v_add3_u32", vVTR, sT[0], t0, t1),
             salu("s_mov_b32", sT[0], SCR + 128 * RP + 128), valu("v_lshl_add_u32", vHRB, vLane, 4, sT[0])]
        o += [salu("s_lshl_b32", sT[1], sRB, 3), salu("s_lshl_b32", sT[2], sGQ, 1), salu("s_add_u32", sT[1], sT[1], sT[2]), salu("s_add_u32", sT[1], sT[1], sJ),
              salu("s_lshl_b32", sC1, sT[1], 11), salu("s_add_u32", sC1, sC1, HALO_OFF),
              salu("s_cmp_eq_u32", None, sW, 3), salu("s_cselect_b32", sT[1], sC1, OOB), salu("s_cselect_b32", sH3, 0, OOB), valu("v_lshl_add_u32", vHALO, vLane, 4, sT[1]),
              salu("s_and_b32", sT[1], sRB, 7), salu("s_or_b32", sT[2], sT[1], sW), salu("s_cselect_b32", sM1[0], 0, "0xf000f"), salu("s_cselect_b32", sM2[0], 0, "0xff00ff"),
              salu("s_mov_b32", sM1[1], sM1[0]), salu("s_mov_b32", sM2[1], sM2[0]), salu("s_mov_b32", sHM0, SPARE),
              salu("s_cmp_eq_u32", None, sW, 0), salu("s_cselect_b32", sHM0, SCR + 128, sHM0), salu("s_cselect_b32", sT[1], sT[1], 0),
              salu("s_cmp_lg_u32", None, sT[1], 0), salu("s_cselect_b32", sTHR, 1, 0),
              salu("s_sub_u32", sT[2], sC1, 8 * 2048), salu("s_cmp_lg_u32", None, sTHR, 0), salu("s_cselect_b32", sT[2], sT[2], OOB),
              valu("v_lshl_add_u32", vHLD, vLane, 4, sT[2])]
        if self.cfg.kv_mode == 4:
            for q, dst in enumerate((vHLD, vHLD2)):
                o += [valu("v_add_u32", t0, 8 + 64 * q, vLane), valu("v_mul_u32_u24", t1, 241, t0), valu("v_lshrrev_b32", t1, 12, t1), valu("v_mul_u32_u24", dst, 17, t1),
                      valu("v_sub_u32", t0, t0, dst), valu("v_min_u32", t0, 15, t0), valu("v_lshlrev_b32", t1, 4, t1), valu("v_lshl_add_u32", t0, t0, 7, t1),
                      valu("v_add_u32", dst, sT[2], t0)]
                if q: o += [valu("v_subrev_u32", dst, 1024, dst)]
            o += [salu("s_sub_u32", sT[1], sC1, 24 * 16), salu("s_cmp_eq_u32", None, sW, 3), salu("s_cselect_b32", sT[1], sT[1], OOB),
                  valu("v_and_b32", t0, 31, vLane), valu("v_lshrrev_b32", t1, 5, vLane), valu("v_lshlrev_b32", t1, 8, t1), valu("v_lshl_add_u32", t1, t0, 4, t1),
                  valu("v_add_u32", t1, sT[1], t1), valu("v_cmp_lt_u32", "vcc", 23, t0), valu("v_mov_b32", t0, OOB), valu("v_cndmask_b32", vHALO, t0, t1, "vcc")]
        o += [
              salu("s_lshl_b32", sT[1], sRB, 3), salu("s_add_u32", sT[1], sT[1], sGQ), salu("s_lshl_b32", sT[1], sT[1], 10), salu("s_lshl_b32", sT[2], sJ, 3),
              salu("s_add_u32", sT[1], sT[1], sT[2]), salu("s_add_u32", sT[1], sT[1], FLAG_OFF - 4096 + 4), salu("s_cmp_lg_u32", None, sTHR, 0),
              salu("s_cselect_b32", sT[1], sT[1], OOB), valu("v_mov_b32", vPOLLH, sT[1]), salu("s_mov_b32", sCS, f32(0.25 * LOG2E))]
        o += [valu("v_and_b32", t0, 3, vLane), valu("v_mov_b32", t1, "0xffff"),
              valu("v_cmp_le_u32", sJ1, 1, t0), valu("v_cmp_le_u32", sJ2, 2, t0), valu("v_cmp_le_u32", sJ3, 3, t0),
              valu("v_cndmask_b32", vA01, t1, -1, sJ1), valu("v_cndmask_b32", vA23, 0, t1, sJ2), valu("v_cndmask_b32", vA23, vA23, -1, sJ3)]
        return o
    def attention(self, put, spread, bar_gap, load):
        c = self.cfg
        def pack(dst, a):
            o = [valu("v_cvt_pk_bf16_f32", dst[i], a[2 * i], a[2 * i + 1]) for i in range(8)]
            return o + [valu("v_permlane16_swap_b32", dst[i], dst[4 + i], rmw=True, wr2=dst[4 + i]) for i in range(4)]
        cv, wr = [], []
        for blk in range(4):
            a = ACC1.sub(16 * blk, 16)
            cv += pack(a, a)
            wr += [ds_write("ds_write_b128", vSCR, a.sub(4 * dh, 4), (blk & 1) * 128 + dh * 16 + (8 + 16 * (blk >> 1)) * RP, tag="kv") for dh in range(2)]
        hs = ACC1.sub(40, 8)
        assert c.kv_mode in (3, 5, 6)
        if c.kv_mode == 3:
            spread(cv, 129, c.kv_end - 3)
            put(c.kv_end - 3, wr)
        else:
            if c.kv_mode == 5:
                spread(cv[24:], 130, c.kv_end - 3)
                put(c.kv_end - 3, wr[4:])
            else: spread(cv[24:36] + wr[4:6] + cv[36:] + wr[6:], 130, c.kv_end - 2)
            spread(cv[:24], c.kv_end + 5, c.kv_end + 15)
            for n, x in enumerate(wr[:4]):
                k1 = c.kv_end + 15 + (180 - c.kv_end - 15) * n // 4
                while load[k1] > 0 and k1 < 181: k1 += 1
                put(k1, [x], last=True)
        put(c.kv_end - 1, [ds_read("ds_read_b128", hs.sub(4 * i, 4), vHRB, 1024 * i) for i in range(2)])
        if c.kv_mode != 4:
            put(c.kv_end + 2, [buf_store("buffer_store_dwordx4", hs.sub(0, 4), vHALO, rWS, 0, 0, flags="sc1", tag="st1")])
            put(c.kv_end + 4, [buf_store("buffer_store_dwordx4", hs.sub(4, 4), vHALO, rWS, 0, 1024, flags="sc1", tag="st1")])
            self.bar_extra[12] = ["kv"]
        assert c.kv_end + 4 < min(176, c.g_flag1)
        fl = self.flag(L_HALO, "st1")
        if c.halo3: fl[-1] = buf_store("buffer_store_dword", vFV, vFH, rWS, 0, L_HALO, flags="sc1")
        put(c.g_flag1, fl)
        Q = ACC2.sub(0, 16); O = ACC2.sub(16, 16)
        Sg = [SG.sub(0, 4), SG.sub(4, 4), SG.sub(8, 4)]
        P = [T.sub(0, 2), T.sub(2, 2), T.sub(4, 2)]
        tm, tz, big = SG[12], SG[13], SG[14]
        spread(pack(Q.sub(0, 8), ACC2.sub(0, 16)) + pack(Q.sub(8, 8), ACC2.sub(16, 16)) + [valu("v_mov_b32", big, f32(-1e30))], 194, min(215, c.g_halo + 4))
        k = c.g_halo
        cs = 0.25 * LOG2E
        for cb in ((1, 0) if c.th1 else (0, 1)):
            if cb == 0:
                assert k > bar_gap[self.halo_period + 1]
                put(k, [wait(vm="halo")])
            spread([ds_read("ds_read_b128", KA.sub(8 * g + 4 * dh, 4), vSCR, dh * 16 + (16 * cb + (2 - g) * 4) * RP) for g in range(3) for dh in range(2)], k, k + 4)
            k += 5
            for dq in range(4):
                put(k + dq // 2, [mfma(4, Sg[g], KA.sub(8 * g + 2 * dq, 2), Q.sub(8 * cb + 2 * dq, 2), Sg[g] if dq else 0) for g in range(3)], last=True)
            k += 2
            vr = [ds_read("ds_read_b64_tr_b16", KA.sub(8 * g + 2 * m, 2), vVTR, 128 + (0, 2, 1, 3)[m] * 8 + (16 * cb + (2 - g) * 4) * RP, tag="vr") for g in range(3) for m in range(4)]
            s = [Sg[0][i] for i in range(4)] + [Sg[1][i] for i in range(4)]
            o = vr[:4]
            if cb == 0:
                o += [valu("v_cndmask_b32", Sg[2][r], Sg[2][r], big, sM2) for r in (1, 2, 3)]
                o += [valu("v_cndmask_b32", Sg[1][r], Sg[1][r], big, sM1) for r in range(4)]
            o += [valu("v_cndmask_b32", Sg[0][r], Sg[2][r], Sg[0][r], (None, sJ1, sJ2, sJ3)[r]) for r in (1, 2, 3)]
            o += [valu("v_max3_f32", tm, s[0], s[1], s[2]), valu("v_max3_f32", tz, s[3], s[4], s[5]), valu("v_max3_f32", tm, tm, s[6], s[7]), valu("v_max_f32", tm, tm, tz),
                  valu("v_mul_f32", tm, f32(-cs), tm)]
            o += vr[4:8]
            o += [valu("v_fma_f32", s[i], s[i], sCS, tm) for i in range(8)]
            o += [valu("v_exp_f32", s[i], s[i]) for i in range(8)]
            u = [Sg[2][i] for i in range(4)]
            o += [valu("v_add_f32", u[i], s[2 * i], s[2 * i + 1]) for i in range(4)]
            o += [valu("v_add_f32", u[0], u[0], u[1]), valu("v_add_f32", u[2], u[2], u[3]), valu("v_add_f32", u[0], u[0], u[2]), valu("v_rcp_f32", tz, u[0])]
            o += vr[8:]
            o += [valu("v_mul_f32", s[i], s[i], tz) for i in range(8)]
            o += [valu("v_cvt_pk_bf16_f32", u[0], s[0], s[1]), valu("v_cvt_pk_bf16_f32", u[1], s[2], s[3]),
                  valu("v_cvt_pk_bf16_f32", P[1][0], s[4], s[5]), valu("v_cvt_pk_bf16_f32", P[1][1], s[6], s[7]),
                  valu("v_and_b32", P[0][0], u[0], vA01), valu("v_and_b32", P[0][1], u[1], vA23),
                  valu("v_bfi_b32", P[2][0], vA01, 0, u[0]), valu("v_bfi_b32", P[2][1], vA23, 0, u[1])]
            spread(o, k, k + c.att_w)
            k += c.att_w
            for g in range(3):
                put(k + g // 2, [mfma(4, O.sub(4 * m, 4), KA.sub(8 * g + 2 * m, 2), P[g], O.sub(4 * m, 4) if g else 0) for m in range(4)], last=True)
            k += 2
            o = []
            for dh in range(2):
                o += [valu("v_cvt_pk_bf16_f32", O[4 * dh + i], O[8 * dh + 2 * i], O[8 * dh + 2 * i + 1]) for i in range(4)]
                o += [buf_store("buffer_store_dwordx4", O.sub(4 * dh, 4), vHST, rWS, sHu[1], cb * 256 + dh * 1024, flags=c.hflags, tag="st2")]
            spread(o, k + 1, k + 7)
        assert k <= bar_gap[19], k
        assert k == c.g_halo + 2 * (9 + c.att_w)
        self.att_end = k
        if not c.splf and c.f2_epi < 0: put(min(k + c.f2_lag, 317), self.flag(L_O, "st2"))

    GORD = ([("d", 0, 1, t) for t in range(4)] + [("d", 12, 1, 4 + t) for t in range(2)] + [("o", 0, 1, t) for t in range(4)]
            + [("d", 8, 1, t) for t in range(4)] + [("d", 4, 1, t) for t in range(4)])
    def w2_setup(self):
        return [salu("s_mov_b32", sNL, f32(-LOG2E)), salu("s_mul_i32", sHd, sW, 28 * 1024), salu("s_lshl_b32", sHo, sW, 13), salu("s_add_u32", sHo, sHo, 112 * 1024),
                salu("s_lshl_b32", sWd, sHd, 1), salu("s_lshl_b32", sWo, sHo, 1)]
    def h_load(self):
        gi = self.h_n; self.h_n += 1
        kind, g0, st, t = self.GORD[gi]
        o = [salu("s_add_u32", sT[0], sHd if kind == "d" else sHo, (g0 + (t & 3)) * 2048)]
        dst = self.hreg[gi] = self.pool.pop(0)
        for s in range(1 if self.cfg.dbg & 256 else 2):
            for tb in range(2):
                o += [buf_load("buffer_load_dwordx4", dst.sub(8 * s + 4 * tb, 4), vW[0] if self.cfg.dbg & 2 else vH[tb], rWS, 0 if self.cfg.dbg & 2 else sT[0], s * 1024, flags="sc1", tag=f"h{gi}")]
        return o
    def w2_addr(self):
        gi = self.w2_nd; self.w2_nd += 1
        kind, g, st, t = self.GORD[gi]
        return gi, [salu("s_add_u32", sWS, sWd if kind == "d" else sWo, (g + (t & 3)) * 4096)]
    def w2_load(self):
        gi, o = self.w2_addr()
        dst = self.wreg[gi] = self.pool.pop(0)
        return o + [buf_load("buffer_load_dwordx4", dst.sub(4 * i, 4), vW[i & 1], rWS, 0 if self.cfg.dbg & 4 else sWS, i * 1024, flags="sc1", tag=f"g{gi}") for i in range(2 if self.cfg.dbg & 128 else 4)]
    def w2_dma(self, slot):
        gi, o = self.w2_addr()
        assert slot not in self.w2slot.values()
        self.w2slot[gi] = slot
        return [set_m0(sWQ, slot * SLOT, f"g{gi}")] + o + [buf_dma(vW[i & 1], rWS, sWS, i * 1024, flags="sc1", tag=f"g{gi}") for i in range(4)]
    def w2_read(self):
        gi = min(self.w2slot)
        base = self.w2slot.pop(gi) * SLOT
        dst = self.wreg[gi] = self.pool.pop(0)
        o, imm = self.window(self.win2, 0, vWB, base, 4096)
        for i in o: i.tag = f"r{gi}"
        return [wait(vm=f"g{gi}")] + o + [ds_read("ds_read_b128", dst.sub(4 * i, 4), vWB, imm + i * 1024, tag=f"r{gi}") for i in range(4)]
    def phase2(self):
        c, add = self.cfg, self.add
        accF = [ACC2.sub(0, 16), A(80, 16), A(96, 16), A(112, 16)]
        accS = [ACC2.sub(16, 16)]
        PR = [None, ACC1.sub(0, 16), ACC1.sub(16, 16), ACC1.sub(32, 16)]
        xf = ACC1.sub(48, 16)
        red = [vSCR, vVTR, vTR0, vTR1, vDMA2, vHST]
        pool, hreg, wreg, h_load = self.pool, self.hreg, self.wreg, self.h_load
        pool += [A(128, 16), A(144, 16), A(160, 16)] + [A(16 * i, 16) for i in range(self.xf_n, 5)]
        light = []
        heavy = []
        pend = lambda q, tag: any(i.tag == tag for i in q)
        e = ([] if c.nspl else self.ffn_epi(ACC1.sub(0, 16), ACC1.sub(16, 16), 2, 0, "st3", pk=True)) + self.ffn_epi(ACC1.sub(32, 16), ACC1.sub(48, 16), 2, 256, "st4", pk=True)
        assert 9 not in self.w2slot.values()
        assert all(x < min(18, 20 - c.nspl) for x in range(20) if 6 <= slab_slot(x) <= 8)
        seq = []
        for gi in range(18):
            bl = (1, 2, 3) if gi >= 18 - c.defer else (0, 1, 2, 3)
            if c.snake and gi < 17: bl = (1, 3, 2) if len(bl) == 3 else (0, 1, 3, 2)
            seq += [(gi, s, b) for b in bl for s in range(2)] if gi == 17 else [(gi, s, b) for s in range(2) for b in bl]
        seq += [(gi, s, 0) for gi in range(18 - c.defer, 18) for s in range(2)]
        last = {gi: max(m for m, x in enumerate(seq) if x[0] == gi) for gi in range(18)}
        first = {gi: min(m for m, x in enumerate(seq) if x[0] == gi) for gi in range(18)}
        lastb = {b: max(m for m, x in enumerate(seq) if x[2] == b) for b in range(4)}
        g6 = 10 if c.m_pb == -1 else 6
        st = {"q": [], "gate": g6 if c.pa2_epi < 0 else 4, "x": False, "m": -1, "sw": False}
        def refill():
            okw = self.w2_nd < 18 and len(pool) > (1 if self.w2_nd <= self.h_n else c.keep)
            okh = self.h_n < st["gate"] and len(pool) > 1
            if okh and not (okw and self.w2_nd <= self.h_n + c.wlead): st["q"] += h_load()
            elif okw: st["q"] += self.w2_load()
            elif not st["x"] and st["m"] >= 0 and not pend(light, "ra"):
                st["x"] = True
                st["q"] += [set_m0(sWQ, 9 * SLOT, "xs"), salu("s_mov_b32", sT[1], 16384 - 1024),
                            buf_dma(red[4], rX, 0, 0, tag="xs"), buf_dma(red[4], rX, sT[1], 1024, tag="xs")]
        def pump():
            if not st["q"]: refill()
            while st["q"]:
                x = st["q"].pop(0); add(x)
                if x.kind in ("dma", "vml"): return True
            return False
        step = max(1, len(e) * 3 // 4 // max(1, c.epi_mem))
        k = 0
        for n, i in enumerate(e):
            if self.B and not c.splf and n == c.f2_epi: add(self.flag(L_O, "st2"))
            if n == c.pa2_epi: add(self.poll_check(*self.pa2)); st["gate"] = g6
            if n % step == 0 and k < c.epi_mem: pump(); k += 1
            add(i)
        add(self.stamp(129))
        started = set()
        ra = [salu("s_add_u32", sT[2], sWQ, 6 * SLOT), valu("v_lshl_add_u32", red[0], vLane, 4, sT[2])] + [valu("v_xor_b32", red[b], b * 4096, red[0]) for b in (1, 2, 3)]
        ra += [salu("s_and_b32", sT[2], sP2x, 64), salu("s_mul_i32", sT[3], sT[2], 511), salu("s_add_u32", sT[3], sT[3], sP2x),
               valu("v_lshrrev_b32", red[4], 3, vLane), valu("v_and_b32", red[5], 7, vLane), valu("v_lshlrev_b32", red[5], 4, red[5]),
               valu("v_lshl_add_u32", red[4], red[4], 11, red[5]), valu("v_add_u32", red[4], sT[3], red[4]),
               salu("s_lshr_b32", sT[3], sW, 1), salu("s_lshl_b32", sT[3], sT[3], 13), salu("s_add_u32", sT[3], sT[3], sT[2]), salu("s_add_u32", sT[3], sT[3], 9 * SLOT),
               valu("v_and_b32", red[5], 16, vLane), valu("v_lshlrev_b32", red[5], 1, red[5]), valu("v_and_or_b32", red[5], vLane, 15, red[5]), valu("v_lshlrev_b32", red[5], 7, red[5]),
               valu("v_and_or_b32", red[5], vLane, 32, red[5]), valu("v_add_u32", red[5], sT[3], red[5])]
        vOW, vOR = [vA01, vA23], vPOLLH
        if c.otr:
            ra += [valu("v_and_b32", vOR, 7, vLane), valu("v_lshlrev_b32", vOR, 4, vOR), valu("v_xor_b32", vOW[0], vOR, red[5]), valu("v_xor_b32", vOW[1], 16, vOW[0]),
                   valu("v_lshrrev_b32", vOR, 3, vLane), valu("v_xor_b32", vOR, vOR, vLane), salu("s_add_u32", sT[3], sWQ, 9 * SLOT), valu("v_lshl_add_u32", vOR, vOR, 4, sT[3])]
        for i in ra: i.tag = "ra"
        light += ra
        used = set()
        for m, (gi, s, b) in enumerate(seq):
            st["m"] = m
            kind = self.GORD[gi][0]
            if gi in self.w2slot or pend(light, f"r{gi}"):
                add(light); light.clear()
                while gi in self.w2slot: add(self.w2_read())
            while gi >= self.w2_nd or pend(st["q"], f"g{gi}"): assert pump(), (m, gi)
            while gi >= self.h_n or pend(st["q"], f"h{gi}"): assert pump(), (m, gi)
            a = (accF if kind == "d" else accS)[b]
            if c.gwait == 1: add(wait_regs(hreg[gi].sub(8 * s, 8), wreg[gi].sub(8 * s, 8)))
            if c.gwait == 2: add(wait_regs(hreg[gi], wreg[gi]))
            if c.m16 & 2:
                for q in range(2):
                    aq = a.sub(8 * s + 4 * q, 4)
                    if q and light and cyc(light[0]) <= 4 and light[0].kind == "valu":
                        add(light.pop(0))
                        if light and cyc(light[0]) <= 4 and light[0].kind == "valu": add(light.pop(0))
                    add(mfma(16, aq, wreg[gi].sub(8 * q + 4 * (b & 1), 4), hreg[gi].sub(8 * s + 4 * (b >> 1), 4), aq if (kind, b, s) in started else 0))
                started.add((kind, b, s))
            else: add(mfma(32, a, wreg[gi].sub(8 * s + 4 * (b & 1), 4), hreg[gi].sub(8 * s + 4 * (b >> 1), 4), a if (kind, b) in started else 0))
            started.add((kind, b))
            if m == last[gi]:
                pool += [hreg[gi], wreg[gi]]
                if gi in (3, 4, 5): accS.append(pool.pop())
                if gi in c.sp: add(self.stamp(128))
            busy = False
            if m == c.m_f4: add(self.flag(L_L0 if (c.m_pe > 0 and not self.B) else L_END, "st4"), self.stamp()); busy = True
            lb, lc = (L_L0 if c.splf else L_O), (L_L0 if c.m_pe > 0 else L_END)
            for mm, ln in ((c.m_pb, lb), (c.m_pc, lc), (c.m_pe, L_END)):
                if m == mm - c.m_pd: add(self.poll_issue(vPOLL, rWS, ln)); busy = True
            if m in (c.m_pb - 1, c.m_pe - 1) or (m == c.m_pc - 1 and c.m_pb > 0 and c.m_pe > 0): add(valu("v_xor_b32", vTHR, 1, vTHR))
            if m == c.m_pe: add(self.poll_check(vPOLL, rWS, vTHR, L_END)); st["gate"] = 18
            if m == c.m_pb: add(self.poll_check(vPOLL, rWS, vTHR, lb)); st["gate"] = 10
            if m == c.m_pc: add(self.poll_check(vPOLL, rWS, vTHR if c.m_pe > 0 else 1, lc), self.stamp()); st["gate"] = 14 if c.m_pe > 0 else 18; self.pre += (self.w2_nd, self.h_n)
            used.add((gi, s, b >> 1))
            ahead = 4 * self.h_n - sum(1 for i in st["q"] if i.kind == "vml") - len(used)
            if ((m % c.vstep < c.vnum if m < c.m_v1 else m % 2 == 0) or ahead < c.ahead) and not busy: busy = pump()
            if not light and self.w2slot and pool and m >= first[min(self.w2slot)] - c.rlead: light += self.w2_read()
            if m == last[9] + 2:
                add(light); light.clear()
                while any(6 <= s_ <= 8 for s_ in self.w2slot.values()): add(self.w2_read())
                st["sw"] = True
                heavy += [wait(lg=[f"r{g}" for g in range(18)])]
                heavy += [ds_write("ds_write_b128", red[0], accS[b2].sub(4 * q, 4), (b2 - 1) * SLOT + q * 1024, tag="sw") for b2 in (1, 2, 3) for q in range(4)]
            if m == c.m_sb:
                while not st["x"] or pend(st["q"], "xs"):
                    g18, nd = st["gate"], self.w2_nd; st["gate"] = 0; self.w2_nd = 18; assert pump(); st["gate"], self.w2_nd = g18, nd
                add(heavy); heavy = []
                add(wait(vm="xs", lg="sw"), barrier()); busy = True
                light += [ds_read("ds_read_b128", xf.sub(8 * i + 4, 4), red[5], 16 * i) for i in range(2)]
                light += [ds_read("ds_read_b128", PR[b2].sub(4 * q, 4), red[b2], (b2 - 1) * SLOT + q * 1024) for b2 in (1, 2, 3) for q in range(4)]
                for b2 in range(4):
                    i = valu("v_subrev_u32", red[b2], 6 * SLOT, red[b2]); i.tag = "ra"; light.append(i)
                for h in range(2):
                    for i in range(4):
                        src = xf[8 * h + 4 + i]
                        pr = [valu("v_lshlrev_b32", xf[8 * h + 2 * i], 16, src), valu("v_and_b32", xf[8 * h + 2 * i + 1], "0xffff0000", src)]
                        light += pr
                light += [valu("v_add_f32", accS[0][i], accS[0][i], PR[1][i]) for i in range(16)] + [valu("v_add_f32", PR[2][i], PR[2][i], PR[3][i]) for i in range(16)]
                light += [valu("v_add_f32", accS[0][i], accS[0][i], PR[2][i]) for i in range(16)]
            for b2 in (1, 2, 3):
                if m == lastb[b2] + 2:
                    while pend(light, "ra"): add(light.pop(0))
                    heavy += [ds_write("ds_write_b128", red[0], accF[b2].sub(4 * q, 4), (b2 - 1) * SLOT + q * 1024) for q in range(4)]
            budget = 11 if busy else 24
            if heavy and not busy:
                while heavy:
                    x = heavy.pop(0); add(x)
                    if x.kind == "dsw": break
                budget = 0
            while light and cyc(light[0]) <= budget:
                budget -= cyc(light[0]); add(light.pop(0))
        assert self.h_n == 18 and self.w2_nd == 18 and not self.w2slot and not st["q"] and st["x"]
        add(self.stamp())
        add(heavy, light)
        add(wait(lg="all"), barrier())
        for q in range(4):
            for b in (1, 2, 3): add(ds_read("ds_read_b128", PR[b].sub(4 * q, 4), red[b], (b - 1) * SLOT + q * 1024))
        Fp, Sp, t = accF[0], accS[0], PR[1]
        if c.dbg & 32: add(valu("v_mov_b32", vXO, OOB))
        if c.dbg & 64: add(salu("s_lshl2_add_u32", sT[1], sWG, sW), salu("s_lshl_b32", sT[1], sT[1], 11), valu("v_lshl_add_u32", vXO, vLane, 4, sT[1]))
        for hq in range(2):
            r2 = range(8 * hq, 8 * hq + 8, 2); r1 = range(8 * hq, 8 * hq + 8)
            add([valu("v_pk_add_f32", Fp.sub(i, 2), Fp.sub(i, 2), PR[1].sub(i, 2)) for i in r2])
            add([valu("v_pk_add_f32", PR[2].sub(i, 2), PR[2].sub(i, 2), PR[3].sub(i, 2)) for i in r2])
            add([valu("v_pk_add_f32", Fp.sub(i, 2), Fp.sub(i, 2), PR[2].sub(i, 2)) for i in r2])
            add([valu("v_pk_mul_f32", t.sub(i, 2), Fp.sub(i, 2), T.sub(0, 2)) for i in r2])
            add([valu("v_exp_f32", t[i], t[i]) for i in r1])
            add([valu("v_pk_mul_f32", Sp.sub(i, 2), Sp.sub(i, 2), Fp.sub(i, 2)) for i in r2])
            add([valu("v_pk_add_f32", t.sub(i, 2), t.sub(i, 2), T.sub(2, 2)) for i in r2])
            add([valu("v_rcp_f32", t[i], t[i]) for i in r1])
            add([valu("v_pk_fma_f32", xf.sub(i, 2), Sp.sub(i, 2), t.sub(i, 2), xf.sub(i, 2)) for i in r2])
            add([valu("v_cvt_pk_bf16_f32", t[8 * hq + i], xf[8 * hq + 2 * i], xf[8 * hq + 2 * i + 1]) for i in range(4)])
            if c.otr: add(ds_write("ds_write_b128", vOW[hq], t.sub(8 * hq, 4)))
            else: add(buf_store("buffer_store_dwordx4", t.sub(8 * hq, 4), vXO, rOUT, 0, (1024 if c.dbg & 64 else 16) * hq, flags=c.outflags))
        if c.otr:
            add(salu("s_movk_i32", sT[1], 16384), wait(lg="all"), barrier(), [ds_read("ds_read_b128", xf.sub(4 * i, 4), vOR, 1024 * i) for i in range(2)])
            add([buf_store("buffer_store_dwordx4", xf.sub(4 * i, 4), red[4], rOUT, sT[1] if i else 0, flags=c.outflags) for i in range(2)])

    def finish(self):
        add = self.add
        if self.cfg.stamps:
            add(raw(f"{self.cfg.clock} s[14:15]", "smem"))
            add(wait(vm="all"))
            add(raw(f"{self.cfg.clock} s[16:17]\n    s_waitcnt lgkmcnt(0)", "smem"))
            add(valu("v_mov_b32", V(96), 0))
            for i in range(self.nst): add(raw(f"v_writelane_b32 v96, s{STAMPS[i]}, {1+i}", "valu", wr=["v96"]))
            add(raw(f"v_writelane_b32 v96, s{ST0}, 0", "valu", wr=["v96"]), raw(f"v_writelane_b32 v96, s14, {1+self.nst}", "valu", wr=["v96"]),
                raw(f"v_writelane_b32 v96, s16, {2+self.nst}", "valu", wr=["v96"]))
            add(salu("s_lshl_b32", sT[1], sWG, 2), salu("s_add_u32", sT[1], sT[1], sW), salu("s_lshl_b32", sT[1], sT[1], 6), salu("s_add_u32", sT[1], sT[1], STAMP_OFF),
                valu("v_lshl_add_u32", V(97), vLane, 2, sT[1]), salu("s_mov_b64", "exec", "0xffff"), buf_store("buffer_store_dword", V(96), V(97), rWS))
        add(raw("s_endpgm", "end"))

    def program(self):
        NS[0] = self.cfg.NS
        assert self.cfg.NS <= (7 if self.B else 9)
        self.w2slot, self.slot_used, self.w2pos = {}, {}, {"d": 0, "o": 0}
        self.w2_nd = self.w2_nr = 0
        self.win2 = [0, 0]
        self.xf_n = 0
        self.h_n, self.hreg, self.wreg, self.hpos = 0, {}, {}, {"d": 0, "o": 0}
        self.e.comment('phase 0'); self.ramp(); self.e.comment('phase 1'); self.phase1(); self.e.comment('phase 2')
        self.pre = (self.w2_nd, len(self.w2slot), self.h_n)
        if not self.cfg.p1only: self.phase2()
        self.finish()
        return self.e.text() + self.slow

HEAD = open("recurrent_scan__sliding_local_dilated__swiglu_ffn__prompt.s.ref").read().split("; Override launch")[0]

DOC = """; One persistent launch, one workgroup (4 waves, 512 registers each) per CU; tokens are kept in parity-split order.
;  phase 1: 128 tokens x 320 weight columns per workgroup, weights streamed through an LDS ring (LDS-DMA + transposing reads),
;           B: k,v | q | gate,up with the dilated window attention done on 4x4x4 MFMAs; C: 2.5 gate/up pairs; h and o go to d_ws.
;  phase 2: 64 x 64 output tile per workgroup, K split over the waves, reduced through LDS; out = x + s * silu(ffn).
; Hand-offs: write-through (sc1) stores, counted wait, flag word; flag lines are cleared inside the launch (announced through d_debug).
"""
def build(cfg):
    s = HEAD + "; @launch grid=(256,1,1) block=(256,1,1) lds=163840\n"
    s += DOC
    s += f'.amdgcn_target "amdgcn-amd-amdhsa--gfx950"\n.text\n.globl {KNAME}\n.p2align 8\n.type {KNAME},@function\n{KNAME}:\n'
    s += f"""    s_cmp_ge_u32 s2, 256
    s_cbranch_scc0 L_go
    s_endpgm
L_go:
"""
    if cfg.stamps: s += f"    {cfg.clock} s[{ST0}:{ST0+1}]\n"
    s += f"""    s_load_dwordx2 s[24:25], s[0:1], 0
    s_load_dwordx16 s[4:19], s[0:1], 0
    s_load_dwordx4 s[20:23], s[0:1], 64
    v_lshrrev_b32 v1, 6, v0
    s_getpc_b64 s[28:29]
    v_readfirstlane_b32 {sW}, v1
    s_bfe_u32 s26, s2, 0x30003
    s_lshl_b32 s26, s26, 13
    v_lshrrev_b32 v2, 2, v0
    v_lshl_add_u32 v2, v2, 7, s26
    v_min_u32 v2, L_end-L_go-256, v2
    global_load_dword v3, v2, s[28:29]
    v_and_b32 {vLane}, 63, v0
    v_lshrrev_b32 v96, 3, {vLane}
    v_and_b32 v97, 7, v0
    s_lshl_b32 {sWQ}, {sW}, 12
    s_cmp_ge_u32 s2, 128
    s_cbranch_scc1 L_typeC
"""
    info = {}
    for typ in ("B", "C"):
        g = Gen(typ, cfg)
        g.e.vm.append(("pf", {"v3"}))
        s += f"L_type{typ}:\n" + g.program()
        info[typ] = (g.e.slots, g.e.nops, dict(g.e.count), [sum(max(32, 24 + x) for x in g.load[i:i + 32]) for i in range(0, 320, 32)], g.pre, g.nst + 3)
    s += "L_end:\n"
    s += f""".section .rodata,"a"
.p2align 6
.amdhsa_kernel {KNAME}
  .amdhsa_next_free_vgpr 512
  .amdhsa_next_free_sgpr 102
  .amdhsa_accum_offset 256
  .amdhsa_group_segment_fixed_size 0
  .amdhsa_kernarg_size 80
  .amdhsa_user_sgpr_count 2
  .amdhsa_user_sgpr_kernarg_segment_ptr 1
  .amdhsa_system_sgpr_workgroup_id_x 1
.end_amdhsa_kernel
"""
    return s, info

if __name__ == "__main__":
    cfg = Cfg()
    out = sys.argv[1]
    for a in sys.argv[2:]:
        k, v = a.split("=")
        assert hasattr(cfg, k) or hasattr(cfg, k[:-2]), k
        if k in ("outflags", "hflags", "pflags", "wflags"): v = v.replace("_", " ")
        elif k in ("sg", "sp", "xr", "xr_B", "xr_C"): v = [int(x) for x in v.split(",")]
        elif k not in ("clock", "planB", "planC"): v = int(v)
        setattr(cfg, k, v)
    s, info = build(cfg)
    open(out, "w").write(s)
    for k, v in info.items(): print(k, v)
```

```python
import sys, struct
sys.path.insert(0, "tools")
from emit import *
from asmlib import KNAME

FLAG_OFF, XN_OFF, HALO_OFF, WS_USED = 0x910000, 0x938000, 0xB38000, 0xF00000
WT_OFF, P6_OFF = 0xC01000, 0xE50000
L_HALO, L_P1, L_HALF, L_O, L_L0, L_END = [128 * i for i in range(6)]
FLAGA_OFF = 0x930000
STAMP_OFF = 0xB80000
OOB = 0x40000000
SLOT = 16384
HSTR = 145 * 1024
RP = 272
SCR = 7 * SLOT
SPARE = SCR + 137 * RP
LOG2E = 1.4426950408889634
def f32(x): return "0x%08x" % struct.unpack("<I", struct.pack("<f", x))[0]

class Cfg:
    stamps = 0
    clock = "s_memrealtime"
    sg = ()
    sp = ()
    p1only = 0
    LA = 8
    NB = 10
    spin = 1000000
    cbx = 0
    rot = 0
    sleep = 0
    ofirst = 0
    fbar = 0
    hstep = 2
    tbs = 6
    eov = 0
    ebud = 28
    nogate = 0
    jitter = 0
    bq = 1
    th1 = 1
    otr = 1
    chain = 1
    dpos = 1
    w_c0 = 3
    p0 = 1
    rlate = 0
    m16 = 0
    wstep = 4
    sconst = 1
    gwait = 0
    halo3 = 1
    c_delay = 1
    b_lean = 0
    xr = (2, 4, 6, 8, 4)
    splf = 0
    bar2 = 8
    map2 = 0
    one_pa = 0
    q_early = 1
    patom = 0
    f2_lag = 24
    rsel = 1
    tx = 1
    b_rest = None
    tlin = 0
    wo_late = -1
    sig_early = 0
    nodbg = 0
    f2_epi = -1
    pa2_epi = -1
    dbg = 0
    nspl = 0
    e0_end = 312
    f3_at = 30
    setup_early = 0
    w_0 = 0
    w_a = 0
    w_b = 3
    w_c = 4
    nx0 = 8
    xrate = 5
    planB = "6:l,7:l,8:l,9:l,10:l,11:P.l,12:l.H,13:l,14:l,15:l.l,16:l.d6,17:l.d0,18:h.h,19:h.h.l"
    planC = "6:l,7:l,8:l,9:l.w,10:l,11:l,12:l,13:l,14:l,15:l.l,16:l.l,17:l.d8,18:h.h,19:h.h.d7"
    ts_pos = -1
    f2_bar = 2
    pw_lead = 14
    pw_per = 6
    NS = 7
    xfree = 1
    kv_end = 141
    kv_mode = 5
    kw_end = 214
    p6_per = 4
    c_rest = 5
    c_tile = -1
    g_flag1 = 163
    g_halo = 200
    att_w = 24
    g_f1c = 210
    g_pa = 262
    h2_end = 240
    g_f2c = 264
    g_pa2 = 304
    epi_mem = 8
    m_f4 = 24
    m_pe = -99
    pa_per = 18
    m_f3 = -1
    m_pb = 24
    m_pc = 68
    m_pd = 12
    m_sb = 106
    defer = 4
    vstep = 1
    vnum = 1
    m_v1 = 0
    wlead = 1
    rlead = 12
    keep = 4
    ahead = 12
    outflags = "sc1"
    hflags = "sc1"
    pflags = "sc1"
    wflags = ""
    snake = 0

sWG = S(2)
pX, pQKV, pWO, pG, pU, pD, pOUT, pDBG, pWS = S(4, 2), S(6, 2), S(8, 2), S(12, 2), S(14, 2), S(16, 2), S(18, 2), S(20, 2), S(22, 2)
rX, rQKV, rGU, rD, rWO, rOUT, rWS, rDBG = S(24, 4), S(28, 4), S(32, 4), S(36, 4), S(40, 4), S(44, 4), S(48, 4), S(52, 4)
sW, sRB, sGQ, sJ, sTB2, sCB2, sWQ = S(56), S(57), S(58), S(59), S(60), S(61), S(62)
sT = [S(3), S(63), S(64), S(65)]
sM1, sM2 = S(66, 2), S(68, 2)
sHM0, sXS = S(70), S(71)
sJ1, sJ2, sJ3 = S(72, 2), S(74, 2), S(76, 2)
sTHR, sCNT = S(78), S(79)
sU = [S(60), S(61), S(58), S(59)]
sUh = [S(0), S(1)]
sHu = [S(4), S(5), S(6)]
sCS, sC1, sHd, sHo = S(7), S(8), S(9), S(10)
sWd, sWo, sWS, sW0 = S(40), S(41), S(42), S(43)
sOA = [0, S(11), S(12), S(13)]
sOB = [0, S(14), S(15), S(16)]
sNL, sH3 = S(17), S(18)
sP2h, sP2f, sP2x, sHS = S(20), S(21), S(22), S(23)
STAMPS = list(range(82, 102, 2))
ST0 = 80

ACC1, ACC2 = V(0, 64), V(64, 32)
VBUF = [V(96 + 16 * i, 16) for i in range(8)]
KA, SG = V(176, 24), V(200, 16)
T = V(224, 8)
(vF2, vA23, vA01, vP2, vHRB, vWB, vDMA2, vDMA1, vW1, vFV, vPV, vW0, vPOLL, vHALO, vPOLLH, vHLD,
 vFLG, vVTR, vSCR, vHST, vDMA0, vTR1, vTR0, vLane) = [V(232 + i) for i in range(24)]
vW = [vW0, vW1]
vP6 = vA01
vHLD2, vFH = V(222), V(223)
vXN = V(216)
vTCH = [V(217), V(218), V(219), V(220), V(221)]
vH = [vHRB, vHALO]
vXO, vTHR = vDMA1, vDMA0
X = A(0, 128)
WF = A(128, 40)
aDUM = A(168)
ABUF = [A(176 + 16 * i, 16) for i in range(5)]
NS = [5]
def slab_slot(n): return n % NS[0]

def cyc(i):
    k = i.kind
    if k in ("wait", "waitr", "waitcnt", "mfma"): return 0
    if k == "trans": return 8
    if k in ("dma", "vml"): return 14
    if k == "vms": return 30 if i.op.endswith("x4") else 20
    if k == "dsw": return 26
    if k == "dsr": return 11 if i.op.endswith("b128") else 4
    if k == "bar": return 14
    if k == "branch": return 8
    return 4

class Gen:
    def __init__(self, typ, cfg):
        self.typ, self.cfg = typ, cfg
        self.B = typ == "B"
        import copy
        self.cfg = cfg = copy.copy(cfg)
        for k, v in list(vars(cfg).items()) + list(vars(Cfg).items()):
            if k.endswith('_' + typ): setattr(cfg, k[:-2], getattr(cfg, k))
        self.e = Emitter()
        self.nst = 0
        self.nlab = 0
        self.slow = ""
        self.mid = []
        import random
        self.rng, self.njit = random.Random(cfg.jitter * 2 + self.B), 0
        self.TR = [vTR0, vTR1, T[6], T[7]] if self.B else [vTR0, vTR1, vA23, vPOLLH, vVTR, vHLD]
    def add(self, *ins):
        for i in ins: self.e.add(i)
    def stamp(self, mode=1):
        if not (self.cfg.stamps & mode): return self.jit(0.6)
        r = S(STAMPS[self.nst], 2); self.nst += 1
        return [raw(f"{self.cfg.clock} {r}", "smem")]
    def jit(self, p=1.0):
        if not self.cfg.jitter or self.rng.random() > p: return []
        self.njit += 1
        l = f"L_{self.typ}_j{self.njit}"
        if self.rng.random() < 0.7: cond = f"s_cmp_eq_u32 {sW}, {self.rng.randrange(4)}"
        else: cond = f"s_bitcmp1_b32 {sWG}, {self.rng.randrange(7)}"
        return [raw(f"{cond}\n    s_cbranch_scc0 {l}\n    s_sleep {self.rng.choice((2, 8, 20, 60))}\n{l}:", "branch")]
    def touch(self, va, srd, flags=""):
        i = buf_load("buffer_load_dword", aDUM, va, srd, flags=flags)
        i.wr = set()
        return [i]
    def poll_text(self, vaddr, srd, off):
        n = {str(vPOLL): (8, 1), str(vPOLLH): (1, 2), str(vP2): (48, 4), str(vP6): (32, 4), "v105": (2, 8), "v106": (8, 16)}[str(vaddr)]
        if not self.cfg.patom & n[1]: return None
        return (f"v_mov_b32 {vPV}, 15\n    s_bfm_b64 exec, {n[0]}, 0\n    v_mov_b32 {vPV}, 0\n"
                f"    buffer_atomic_add {vPV}, {vaddr}, {srd}, 0 offen offset:{off} sc0 sc1\n    s_mov_b64 exec, -1")
    def poll_issue(self, vaddr, srd, off=0):
        t = self.poll_text(vaddr, srd, off)
        if t:
            i = buf_load("buffer_load_dword", vPV, vaddr, srd, 0, off); i.text = t
            return [i]
        return [buf_load("buffer_load_dword", vPV, vaddr, srd, 0, off, flags=self.cfg.pflags)]
    def poll_check(self, vaddr, srd, thr, off=0):
        self.nlab += 1
        l = f"L_{self.typ}_p{self.nlab}"
        sl = f"    s_sleep {self.cfg.sleep}\n" if self.cfg.sleep else ""
        if self.cfg.stamps & 512:
            sl += f"    s_add_u32 s{STAMPS[self.nlab - 1]}, s{STAMPS[self.nlab - 1]}, 1\n"; self.nst = 8
        self.slow += (f"{l}_slow:\n    s_mov_b32 {sCNT}, 0\n{l}_spin:\n"
                f"{sl}    {self.poll_issue(vaddr, srd, off)[0].text}\n    s_add_u32 {sCNT}, {sCNT}, 1\n    s_waitcnt vmcnt(0)\n"
                f"    v_cmp_gt_u32 vcc, {thr}, {vPV}\n    s_cmp_ge_u32 {sCNT}, {self.cfg.spin}\n    s_cbranch_scc1 {l}_ok\n"
                f"    s_cbranch_vccnz {l}_spin\n    s_branch {l}_ok\n")
        return [valu("v_cmp_gt_u32", "vcc", thr, vPV), raw(f"s_cbranch_vccnz {l}_slow\n{l}_ok:", "branch")]
    def flag(self, stage, tag):
        return [wait(vm=tag), buf_store("buffer_store_dword", vFV, vFLG, rWS, 0, stage, flags="sc1")]

    def ramp(self):
        c, add, B = self.cfg, self.add, self.B
        t0, t1, t2, t3 = V(96), V(97), V(98), V(99)
        vXL, vXS, vRS, vST, vF0, vP0, vDB, vTLB, vSG, vXR, vTL, vTS = [V(100 + i) for i in range(12)]
        vR2, vTB0, vTB1, vPL, vPS = [V(162 + i) for i in range(5)]
        tl, p6 = V(168, 16), V(184, 4)
        xr, lo, z, part = V(112, 16), V(128, 16), V(144, 4), V(148, 8)
        sm, sq, one = V(156), V(157), V(158)
        rb = V(160, 2)
        srd = lambda r, p, n: [salu("s_mov_b32", r[0], p[0]), salu("s_mov_b32", r[1], p[1]), salu("s_mov_b32", r[2], n), salu("s_mov_b32", r[3], "0x20000")]
        gu = [salu("s_cmp_lt_u32", None, sW, 2), salu("s_cselect_b32", rGU[0], pG[0], pU[0]), salu("s_cselect_b32", rGU[1], pG[1], pU[1])]
        sizes = ((rX, pX, 2048 * 1024), (rWS, pWS, WS_USED), (rDBG, pDBG, 256), (rQKV, pQKV, 512 * 3072), (rOUT, pOUT, 2048 * 1024))
        XL = 8 * SLOT
        self.nslab = 0
        if c.stamps & 1024:
            add(raw(f"s_getreg_b32 s{STAMPS[0]}, hwreg(HW_REG_XCC_ID)\n    s_getreg_b32 s{STAMPS[1]}, hwreg(HW_REG_HW_ID)", "salu")); self.nst = 2
        if c.stamps & 512: add([salu("s_mov_b32", S(r), 0) for r in STAMPS])
        add(self.stamp(256))
        TL = (7 if B else 9) * SLOT
        roles = [salu("s_lshr_b32", sT[0], sWG, 3), salu("s_and_b32", sT[1], sWG, 7), salu("s_and_b32", sRB, sWG, 1), salu("s_lshl_b32", sRB, sRB, 3),
                 salu("s_and_b32", sT[2], sT[0], 7), salu("s_add_u32", sRB, sRB, sT[2]), salu("s_lshr_b32", sGQ, sT[1], 1), salu("s_lshr_b32", sJ, sT[0], 3),
                 salu("s_lshl_b32", sTB2, sT[1], 2), salu("s_and_b32", sT[2], sT[0], 3), salu("s_add_u32", sTB2, sTB2, sT[2]), salu("s_lshr_b32", sCB2, sT[0], 2)]
        if c.map2 == 1:
            roles = roles[:8] + [salu("s_and_b32", sT[2], sT[0], 7), salu("s_lshl3_add_u32", sTB2, sGQ, sT[2]), salu("s_and_b32", sT[2], sWG, 1), salu("s_lshl2_add_u32", sCB2, sT[2], sJ)]
        if c.map2 == 2:
            roles = roles[:8] + [salu("s_lshr_b32", sT[2], sT[0], 2), salu("s_lshl3_add_u32", sTB2, sGQ, sT[2]), salu("s_and_b32", sT[2], sWG, 1), salu("s_and_b32", sCB2, sT[0], 3),
                                 salu("s_lshl2_add_u32", sCB2, sT[2], sCB2)]
        if c.map2 == 3:
            roles = roles[:8] + [salu("s_lshl2_add_u32", sTB2, sT[1], sJ), salu("s_and_b32", sCB2, sT[0], 7)]
        if c.cbx: roles += [salu("s_xor_b32", sCB2, sCB2, c.cbx)]
        def tile_setup():
            if B:
                o = [salu("s_lshl2_add_u32", sT[1], sRB, sW), salu("s_lshl_b32", sT[2], sT[1], 13), salu("s_lshl1_add_u32", sT[3], sGQ, sJ)] + srd(rD, pWO, 512 * 1024)
            else:
                o = [salu("s_lshr_b32", sT[1], sW, 1), salu("s_lshl1_add_u32", sT[1], sT[0], sT[1]), salu("s_lshl_b32", sT[2], sT[1], 15),
                     salu("s_xor_b32", sCNT, sGQ, c.tx), salu("s_and_b32", sT[3], sW, 1), salu("s_lshl1_add_u32", sT[3], sCNT, sT[3])] + srd(rD, pD, 1792 * 1024)
            o += [salu("s_lshl_b32", sCNT, sT[3], 7), salu("s_add_u32", sT[2], sT[2], sCNT),
                  valu("v_lshrrev_b32", t2, 2, vLane), valu("v_and_b32", t2, 4, t2), valu("v_xor_b32", t2, t2, t1), valu("v_lshlrev_b32", t2, 4, t2),
                  valu("v_lshl_add_u32", t2, t0, 10, t2), valu("v_add_u32", vTL, sT[2], t2)]
            o += [salu("s_mul_i32", sT[2], sT[3], 72 * 4096), salu("s_lshl_b32", sT[1], sT[1], 10 if B else 12), salu("s_add_u32", sT[2], sT[2], sT[1]),
                  salu("s_add_u32", sT[2], sT[2], WT_OFF + (56 * 4096 if B else 0)),
                  ]
            if B: o += [salu("s_lshl4_add_u32", sT[1], sT[3], sRB)]
            else: o += [salu("s_lshl_b32", sT[1], sGQ, 5), salu("s_add_u32", sT[1], sT[1], sT[0])]
            o += [salu("s_and_b32", sT[3], sT[1], 7), salu("s_lshr_b32", sT[1], sT[1], 3), salu("s_lshl_b32", sT[1], sT[1], 7), salu("s_lshl2_add_u32", sT[1], sT[3], sT[1]),
                  salu("s_add_u32", sT[1], sT[1], FLAGA_OFF + (80 if B else 64) * 128)]
            if not B: o += [salu("s_cmp_lt_u32", None, sRB, 14), salu("s_cselect_b32", sT[2], sT[2], OOB)]
            o += [salu("s_cmp_eq_u32", None, sW, 0), salu("s_cselect_b32", sT[1], sT[1], OOB),
                  valu("v_lshl_add_u32", vTS, vLane, 4, sT[2]), valu("v_mov_b32", vF2, OOB), raw(f"v_writelane_b32 {vF2}, {sT[1]}, 0", "valu", rd=[vF2], wr=[vF2])]
            return o
        def tile_store():
            o = [valu("v_bfe_u32", t2, vLane, 2, 2), valu("v_lshrrev_b32", t3, 5, vLane), valu("v_lshl_add_u32", vTB0, t3, 4 if B else 2, t2), valu("v_lshlrev_b32", vTB0, 7, vTB0),
                 valu("v_lshrrev_b32", t2, 1, t2), valu("v_lshl_add_u32", vTB0, t2, 6, vTB0), valu("v_and_b32", t2, 1, vLane), valu("v_lshl_add_u32", vTB0, t2, 5, vTB0),
                 valu("v_and_or_b32", vTB0, vLane, 16, vTB0), valu("v_and_b32", t2, 2, vLane), valu("v_lshl_add_u32", vTB0, t2, 2, vTB0)]
            if B:
                o += [salu("s_and_b32", sT[1], sW, 1), salu("s_lshl_b32", sT[1], sT[1], 6), valu("v_xor_b32", vTB0, sT[1], vTB0),
                      salu("s_lshr_b32", sT[1], sW, 1), salu("s_lshl_b32", sT[1], sT[1], 10), salu("s_add_u32", sT[1], sT[1], TL), valu("v_add_u32", vTB0, sT[1], vTB0)]
                return o, [ds_read("ds_read_b64_tr_b16", tl.sub(2 * u, 2), vTB0, u * 512) for u in range(2)], [buf_store("buffer_store_dwordx4", tl.sub(0, 4), vTS, rWS, flags="sc1", tag="ts")]
            o += [salu("s_add_u32", sT[1], sWQ, TL), valu("v_add_u32", vTB0, sT[1], vTB0), valu("v_xor_b32", vTB1, 64, vTB0), wait(vm="tl")]
            for s_ in range(2):
                for cb in range(2):
                    for u in range(2): o += [ds_read("ds_read_b64_tr_b16", tl.sub(8 * s_ + 4 * cb + 2 * u, 2), (vTB0, vTB1)[cb], s_ * 2048 + u * 1024)]
            return o, [buf_store("buffer_store_dword", vFV, vF2, rWS, flags="sc1")], [buf_store("buffer_store_dwordx4", tl.sub(4 * i, 4), vTS, rWS, 0, 1024 * i, flags="sc1", tag="ts") for i in range(2 if c.dbg & 2048 else 4)]
        if B:
            if c.p0 == 1:
                add(salu("s_and_b32", sT[2], sWG, 63), salu("s_lshl_b32", sT[2], sT[2], 15), salu("s_lshr_b32", sT[1], sWG, 6), salu("s_lshl2_add_u32", sT[1], sT[1], sW),
                    salu("s_lshl_b32", sT[1], sT[1], 8), salu("s_add_u32", sT[1], sT[1], sT[2]),
                    valu("v_xor_b32", t2, t0, t1), valu("v_lshlrev_b32", t2, 4, t2), valu("v_lshl_add_u32", vXL, t0, 11, t2),
                    salu("s_add_u32", sXS, sT[1], 16384 - 1024), srd(*sizes[0])[2:], set_m0(sWQ, XL, "x"))
                add(self.stamp(256), raw("s_waitcnt lgkmcnt(0)", "waitcnt"), self.stamp(256))
                add(buf_dma(vXL, rX, sT[1], 0, tag="x"), buf_dma(vXL, rX, sXS, 1024, tag="x"), set_m0(sWQ, XL + 2048 - 128, "x"), salu("s_mov_b32", rWS[0], pWS[0]),
                    buf_dma(vXL, rX, sT[1], 128, tag="x"), buf_dma(vXL, rX, sXS, 1024 + 128, tag="x"))
            else:
                add(salu("s_and_b32", sT[2], sWG, 63), salu("s_lshl2_add_u32", sT[2], sT[2], sW), salu("s_lshr_b32", sT[1], sWG, 6), salu("s_lshl3_add_u32", sT[1], sT[2], sT[1]),
                    salu("s_lshl_b32", sT[1], sT[1], 10), valu("v_lshl_add_u32", vXL, vLane, 4, sT[1]), salu("s_mul_i32", sCNT, sW, 4352),
                    salu("s_movk_i32", sT[1], 960), salu("s_movk_i32", sT[2], 1920), salu("s_movk_i32", sT[3], 2880), srd(*sizes[0])[2:], set_m0(sCNT, XL, "x"))
                add(self.stamp(256), raw("s_waitcnt lgkmcnt(0)", "waitcnt"), self.stamp(256))
                add([buf_dma(vXL, rX, sT[i] if i else 0, 1088 * i, tag="x") for i in range(4)], salu("s_mov_b32", rWS[0], pWS[0]))
                add(valu("v_and_b32", vST, 3, vLane), valu("v_mul_u32_u24", t2, 1088, vST), valu("v_lshrrev_b32", vXL, 2, vLane), valu("v_lshl_add_u32", t2, vXL, 4, t2),
                    salu("s_add_u32", sCNT, sCNT, XL), valu("v_add_u32", vXR, sCNT, t2))
            add(self.stamp(256))
            add(srd(*sizes[1])[1:])
            if c.rsel: add(salu("s_lshr_b32", sT[1], sWG, 3), salu("s_and_b32", sT[2], sWG, 1), salu("s_lshl1_add_u32", sT[1], sT[1], sT[2]), salu("s_and_b32", sT[3], sWG, "0xe6"))
            else: add(salu("s_mov_b32", sT[1], sWG), salu("s_lshr_b32", sT[3], sWG, 3))
            add(salu("s_lshl_b32", sT[2], sT[1], 11), salu("s_add_u32", sT[2], sT[2], FLAGA_OFF), salu("s_lshl_b32", sT[1], sT[1], 2),
                salu("s_or_b32", sT[3], sT[3], sW), salu("s_cselect_b32", sT[2], OOB, sT[2]), salu("s_cselect_b32", sT[1], OOB, sT[1]),
                salu("s_lshl_b32", sT[3], sWG, 10), salu("s_add_u32", sT[3], sT[3], FLAG_OFF), salu("s_cmp_eq_u32", None, sW, 1),
                [salu("s_cselect_b32", sT[3], sT[3], OOB), valu("v_lshl_add_u32", vR2, vLane, 4, sT[3]), salu("s_mov_b32", sT[3], 7)] if c.rlate else
                [salu("s_cselect_b32", sT[2], sT[3], sT[2]), salu("s_cselect_b32", sT[3], 6, 7)],
                valu("v_lshrrev_b32", t2, 2, vLane), valu("v_and_b32", t3, 3, vLane), valu("v_lshlrev_b32", t3, 4, t3), valu("v_lshl_add_u32", t2, t2, sT[3], t3),
                valu("v_add_u32", vRS, sT[2], t2), valu("v_mov_b32", vSG, sT[1]), [valu("v_mov_b32", z[i], 0) for i in range(4)])
            add(buf_store("buffer_store_dwordx4", z, vRS, rWS, flags="sc1", tag="reset"))
            add(roles)
            for q in sizes[2:]: add(srd(*q))
            if c.bq:
                add(salu("s_lshl1_add_u32", sT[0], sRB, sJ), salu("s_lshl2_add_u32", sT[1], sT[0], sW), salu("s_mul_i32", sT[1], sT[1], 4 * 3072), salu("s_lshl_b32", sT[2], sGQ, 8),
                    salu("s_add_u32", sT[1], sT[1], sT[2]),
                    valu("v_min_u32", t2, 5, t1), valu("v_and_b32", t3, 1, t2), valu("v_lshrrev_b32", t2, 1, t2), valu("v_lshl_add_u32", t2, t2, 3, t3),
                    valu("v_and_b32", t3, 3, t0), valu("v_mul_u32_u24", t3, 3072, t3), valu("v_lshl_add_u32", t2, t2, 7, t3), valu("v_add_u32", t2, sT[1], t2), self.touch(t2, rQKV))
            add(gu, srd(rGU, pG, 512 * 3584)[2:], tile_setup())
            if c.wo_late == -1: add(salu("s_lshr_b32", sT[1], sWQ, 2), set_m0(sT[1], TL, "tl"), buf_dma(vTL, rD, tag="tl"))
        else:
            add(roles)
            add(salu("s_lshl_b32", sT[0], sRB, 1), salu("s_add_u32", sT[0], sT[0], sJ), salu("s_sub_u32", sT[0], sT[0], 2),
                valu("v_and_b32", t3, 1, t1), [] if c.bq else [
                salu("s_lshl2_add_u32", sT[1], sT[0], sW), salu("s_mul_i32", sT[1], sT[1], 4 * 3072), salu("s_lshl_b32", sT[2], sGQ, 8), salu("s_add_u32", sT[1], sT[1], sT[2]),
                valu("v_and_b32", t2, 3, t0), valu("v_mul_u32_u24", t2, 3072, t2), valu("v_lshl_add_u32", t2, t3, 7, t2),
                valu("v_add_u32", vTCH[3], sT[1], t2), valu("v_bfe_u32", t2, t1, 1, 1), valu("v_add_u32", t2, 1, t2), valu("v_lshl_add_u32", vTCH[1], t2, 10, vTCH[3])],
                salu("s_and_b32", sT[2], sW, 1), salu("s_lshl1_add_u32", sT[1], sT[0], sT[2]), salu("s_mul_i32", sT[1], sT[1], 8 * 3584),
                salu("s_mul_i32", sT[2], sGQ, 7 * 128), salu("s_add_u32", sT[1], sT[1], sT[2]),
                valu("v_mul_u32_u24", t2, 3584, t0), valu("v_add_u32", t2, sT[1], t2), valu("v_lshl_add_u32", vTCH[0], t3, 7, t2))
            if c.tlin:
                add(salu("s_sub_u32", sT[2], sWG, 128), salu("s_lshl2_add_u32", sT[3], sT[2], sW), salu("s_mul_i32", sCNT, sT[3], 3072),
                    valu("v_min_u32", vTCH[1], 23, vLane), valu("v_lshl_add_u32", vTCH[1], vTCH[1], 7, sCNT),
                    salu("s_mul_i32", sCNT, sT[3], 3584), valu("v_min_u32", vTCH[4], 27, vLane), valu("v_lshl_add_u32", vTCH[4], vTCH[4], 7, sCNT),
                    salu("s_and_b32", sT[3], sW, 1), salu("s_lshl1_add_u32", sT[3], sT[2], sT[3]), salu("s_mul_i32", sT[3], sT[3], 7168),
                    valu("v_min_u32", vTCH[0], 55, vLane), valu("v_lshl_add_u32", vTCH[0], vTCH[0], 7, sT[3]))
            add([] if c.bq else srd(*sizes[3])[2:], srd(rGU, pG, 512 * 3584)[2:])
            add(self.stamp(256), raw("s_waitcnt lgkmcnt(0)", "waitcnt"), self.stamp(256))
            if c.c_delay:
                add(salu("s_mov_b32", sT[3], sT[1]), [self.dma_setup(ch) for ch in range(3)], salu("s_mov_b32", sT[1], sT[3]))
            if c.tlin == 2: add(srd(rD, pD, 1792 * 1024), self.touch(vTCH[4], rD))
            add([] if c.bq else srd(*sizes[3])[:2] + self.touch(vTCH[1], rQKV), gu, self.touch(vTCH[0], rGU), self.stamp(256))
            add(valu("v_and_b32", t3, 3, t1), valu("v_add_u32", t3, 2, t3), valu("v_lshl_add_u32", vTCH[2], t3, 7, t2),
                valu("v_bfe_u32", t2, vLane, 2, 3), valu("v_mul_u32_u24", t2, 3584, t2), valu("v_bfe_u32", t3, vLane, 4, 1), valu("v_xor_b32", t3, t3, vLane), valu("v_and_b32", t3, 3, t3),
                valu("v_lshl_add_u32", t2, t3, 4, t2),
                valu("v_lshrrev_b32", t3, 5, vLane), valu("v_lshl_add_u32", t2, t3, 6, t2), salu("s_add_u32", sT[1], sT[1], 768), valu("v_add_u32", vPL, sT[1], t2),
                buf_load("buffer_load_dwordx4", p6, vPL, rGU),
                salu("s_lshr_b32", sT[1], sT[0], 3), salu("s_lshl_b32", sT[1], sT[1], 14), salu("s_and_b32", sT[2], sT[0], 7), salu("s_lshl_b32", sT[2], sT[2], 10),
                salu("s_add_u32", sT[1], sT[1], sT[2]), salu("s_and_b32", sT[2], sW, 1), salu("s_lshl_b32", sT[2], sT[2], 9), salu("s_add_u32", sT[1], sT[1], sT[2]),
                salu("s_lshr_b32", sT[2], sW, 1), salu("s_lshl_b32", sT[2], sT[2], 13), salu("s_add_u32", sT[1], sT[1], sT[2]),
                salu("s_lshl_b32", sT[2], sGQ, 17), salu("s_add_u32", sT[1], sT[1], sT[2]), salu("s_add_u32", sT[1], sT[1], P6_OFF),
                valu("v_and_b32", t2, 31, vLane), valu("v_lshlrev_b32", t2, 4, t2), valu("v_lshl_add_u32", t2, t3, 16, t2), valu("v_add_u32", vPS, sT[1], t2),
                )
            add(tile_setup())
            tdma = [set_m0(sWQ, TL, "tl"), salu("s_mov_b32", sTHR, 7168)]
            for i in range(2 if c.dbg & 2048 else 4):
                tdma += [buf_dma(vTL, rD, sTHR if i else 0, 1024 * i, tag="tl")]
                if 0 < i < 3: tdma += [salu("s_add_u32", sTHR, sTHR, 7168)]
            self.rest = [] if (c.tlin or c.b_rest is not None) else self.touch(vTCH[3], rQKV) + self.touch(vTCH[2], rGU)
            self.tdma = tdma
            if c.c_tile == -1: add(tdma)
            if c.bq: self.rest.pop(0)
            elif c.q_early and self.rest: add(self.rest.pop(0))
            if c.c_rest == -1: add(self.rest)
            add(srd(*sizes[0])[2:])
            for q in sizes[1:3] + sizes[4:]: add(srd(*q))
        add(valu("v_mov_b32", vFV, 1))
        sa, sb = (8 * 3072, 8 * 3584) if B else (8 * 3584, 16 * 3584)
        for i in (1, 2, 3):
            add(salu("s_mov_b32", sOA[i], i * (sa - 1024)), [salu("s_mov_b32", sOB[i], i * (sb - 1024))] if B else [])
        if B or not c.c_delay: add(self.dma_setup(0))
        if B:
            for _ in range(c.w_0): add(self.dma_slab())
            add(salu("s_lshr_b32", sT[0], sWG, 1), salu("s_and_b32", sT[3], sWG, 1),
                salu("s_lshl_b32", sT[1], sT[0], 15), salu("s_lshl_b32", sT[2], sW, 13), salu("s_add_u32", sT[1], sT[1], sT[2]), salu("s_lshl_b32", sT[2], sT[3], 10),
                salu("s_add_u32", sT[1], sT[1], sT[2]), salu("s_add_u32", sT[1], sT[1], XN_OFF))
            if c.p0 == 1:
                add(valu("v_lshrrev_b32", t2, 4, vLane), valu("v_and_b32", t3, 2, t2), valu("v_xor_b32", t3, t3, t1), valu("v_lshlrev_b32", t3, 4, t3), valu("v_and_b32", vST, 15, vLane),
                    valu("v_lshl_add_u32", t3, vST, 7, t3), valu("v_and_b32", t2, 1, t2), valu("v_lshl_add_u32", t3, t2, 3, t3),
                    salu("s_add_u32", sT[2], sWQ, XL), valu("v_add_u32", vXR, sT[2], t3), valu("v_xor_b32", vXL, 64, vXR), valu("v_xor_b32", vPL, 16, vXR), valu("v_xor_b32", vPS, 16, vXL),
                    valu("v_lshl_add_u32", vXS, vLane, 4, sT[1]),
                    valu("v_lshlrev_b32", vST, 5, vST), valu("v_add_u32", vST, SPARE, vST),
                    salu("s_lshl_b32", sT[2], sW, 2), valu("v_lshrrev_b32", t3, 5, vLane), valu("v_lshl_add_u32", t3, t3, 4, sT[2]), valu("v_add_u32", vRS, t3, vST))
            else:
                add(valu("v_lshlrev_b32", t3, 4, vST), valu("v_lshl_add_u32", t3, vXL, 9, t3), valu("v_add_u32", vXS, sT[1], t3))
            add(
                salu("s_lshl_b32", sT[1], sT[0], 7), salu("s_lshl_b32", sT[2], sT[3], 2), salu("s_add_u32", sT[1], sT[1], sT[2]), salu("s_add_u32", sT[1], sT[1], FLAGA_OFF),
                salu("s_cmp_eq_u32", None, sW, 0), salu("s_cselect_b32", sT[1], sT[1], OOB),
                valu("v_mov_b32", t2, OOB), valu("v_mov_b32", t3, sT[1]), valu("v_cmp_eq_u32", "vcc", 0, vLane), valu("v_cndmask_b32", vF0, t2, t3, "vcc"),
                valu("v_mov_b32", one, "0x3f803f80"), valu("v_mov_b32", sm, 0), valu("v_mov_b32", sq, 0), salu("s_mov_b32", sXS, 4096))
        add(salu("s_lshl_b32", sT[1], sRB, 2), salu("s_add_u32", sT[1], sT[1], sW), salu("s_lshl_b32", sT[2], sT[1], 7), salu("s_add_u32", sT[2], sT[2], FLAGA_OFF),
            valu("v_and_b32", vPOLL, 1, vLane), valu("v_lshlrev_b32", vPOLL, 2, vPOLL), valu("v_add_u32", vP0, sT[2], vPOLL),
            salu("s_lshl_b32", sT[1], sT[1], 15), salu("s_add_u32", sT[1], sT[1], XN_OFF), valu("v_lshl_add_u32", vXN, vLane, 4, sT[1]),
            salu("s_cmp_eq_u32", None, sW, 0), salu("s_cselect_b32", sT[1], 0, OOB), salu("s_cselect_b32", sT[3], 0 if c.nodbg else 1, 0),
            valu("v_lshl_add_u32", vDB, t1, 2, sT[1]), valu("v_mov_b32", vTLB, sT[3]))
        if not B and not c.c_delay: add(self.dma_setup(1), self.dma_setup(2))
        if B and not c.b_lean: add(self.dma_setup(1), self.dma_setup(2))
        add(self.w2_setup())
        if c.setup_early or not B: self.misc_setup()
        add(self.stamp(65 + 256))
        if B:
            add(wait(vm="x"))
            if c.p0 == 1: add([ds_read("ds_read_b64", xr.sub(4 * i + 2 * u, 2), ((vXR, vPL), (vXL, vPS))[i & 1][u], 2048 * (i >> 1)) for i in range(4) for u in range(2)])
            else: add([ds_read("ds_read_b128", xr.sub(4 * i, 4), vXR, 256 * i) for i in range(4)])
            if c.sig_early: add(wait(vm="reset"), buf_store("buffer_store_dword", vFV, vSG, rDBG, flags="sc1"))
            add(self.stamp(64 + 256))
            for r in range(16): add(valu("v_dot2c_f32_bf16", sm, xr[r], one, rmw=True), valu("v_dot2c_f32_bf16", sq, xr[r], xr[r], rmw=True))
            add([valu("v_lshlrev_b32", lo[i], 16, xr[i]) for i in range(3)])
            add(valu("v_permlane32_swap_b32", sm, sq, rmw=True, wr2=sq), valu("v_add_f32", sm, sm, sq), valu("v_mov_b32", sq, sm))
            add([valu("v_lshlrev_b32", lo[i], 16, xr[i]) for i in (3, 4)])
            add(valu("v_permlane16_swap_b32", sm, sq, rmw=True, wr2=sq), valu("v_add_f32", sm, sm, sq))
            sig = [] if c.sig_early else [wait(vm="reset"), buf_store("buffer_store_dword", vFV, vSG, rDBG, flags="sc1")]
            shl = lambda a, b: [valu("v_lshlrev_b32", lo[i], 16, xr[i]) for i in range(a, b)]
            if c.p0 == 1:
                add(ds_write("ds_write_b32", vRS, sm, tag="st"), sig, shl(5, 16))
                add(wait(lg="st"), self.stamp(256), barrier(), self.stamp(256))
                add([ds_read("ds_read_b128", part.sub(4 * i, 4), vST, 16 * i) for i in range(2)])
                add([valu("v_and_b32", xr[i], "0xffff0000", xr[i]) for i in range(16)])
                add(valu("v_pk_add_f32", part.sub(0, 2), part.sub(0, 2), part.sub(2, 2)), valu("v_pk_add_f32", part.sub(4, 2), part.sub(4, 2), part.sub(6, 2)),
                    valu("v_add_f32", sm, part[0], part[1]), valu("v_add_f32", sq, part[4], part[5]))
            else:
                add(shl(5, 7), valu("v_add_f32_dpp", sm, sm, sm, extra="row_ror:8 row_mask:0xf bank_mask:0xf"),
                    shl(7, 9), valu("v_add_f32_dpp", sm, sm, sm, extra="row_ror:4 row_mask:0xf bank_mask:0xf"), valu("v_mov_b32", sq, sm),
                    shl(9, 11), valu("v_permlane32_swap_b32", sm, sq, rmw=True, wr2=sq), sig, shl(11, 16), self.stamp(256), self.stamp(256))
                add([valu("v_and_b32", xr[i], "0xffff0000", xr[i]) for i in range(16)])
            add(
                valu("v_mul_f32", sm, f32(1 / 512), sm), valu("v_mul_f32", sq, f32(1 / 512), sq),
                valu("v_fma_f32", sq, f"-{sm}", sm, sq), valu("v_max_f32", sq, 0, sq),
                valu("v_cvt_pk_bf16_f32", sq, sq, sm),
                valu("v_and_b32", sm, "0xffff0000", sq), valu("v_lshlrev_b32", sq, 16, sq),
                valu("v_add_f32", sq, f32(1e-5), sq), valu("v_cvt_pk_bf16_f32", sq, sq, sq), valu("v_lshlrev_b32", sq, 16, sq),
                valu("v_sqrt_f32", sq, sq), valu("v_cvt_pk_bf16_f32", sq, sq, sq), valu("v_lshlrev_b32", sq, 16, sq),
                valu("v_rcp_f32", rb[1], sq), valu("v_mul_f32", rb[0], f"-{sm}", rb[1]))
            for h in range(2 if c.dbg & 1024 else 4):
                for r in (lo, xr):
                    add([valu("v_pk_fma_f32", r.sub(i, 2), r.sub(i, 2), rb, rb, extra="op_sel:[0,1,0] op_sel_hi:[1,1,0]") for i in (4 * h, 4 * h + 2)])
                add([valu("v_cvt_pk_bf16_f32", xr[i], lo[i], xr[i]) for i in range(4 * h, 4 * h + 4)])
                if c.p0 == 1: add(buf_store("buffer_store_dwordx4", xr.sub(4 * h, 4), vXS, rWS, sXS if h >> 1 else 0, 2048 * (h & 1), flags="sc1", tag=f"xs{h}"))
                else: add(salu("s_movk_i32", sXS, 8192 * h), buf_store("buffer_store_dwordx4", xr.sub(4 * h, 4), vXS, rWS, sXS, flags="sc1"))
            if c.rlate: add(buf_store("buffer_store_dwordx4", z, vR2, rWS, flags="sc1"))
            if c.dpos == 0: add(self.poll_issue(vDB, rDBG))
            add(self.stamp(64 + 4096))
            if c.dpos != 2:
                for _ in range(c.w_a): add(self.dma_slab())
            if c.b_rest is not None:
                add(salu("s_lshl1_add_u32", sT[0], sRB, sJ), salu("s_lshl2_add_u32", sT[1], sT[0], sW), salu("s_mul_i32", sT[1], sT[1], 4 * 3072), salu("s_lshl_b32", sT[2], sGQ, 8),
                    salu("s_add_u32", sT[1], sT[1], sT[2]), valu("v_and_b32", t2, 3, t0), valu("v_mul_u32_u24", t2, 3072, t2), valu("v_and_b32", t3, 1, t1),
                    valu("v_lshl_add_u32", t2, t3, 7, t2), valu("v_add_u32", vTCH[3], sT[1], t2),
                    salu("s_and_b32", sT[2], sW, 1), salu("s_lshl1_add_u32", sT[1], sT[0], sT[2]), salu("s_mul_i32", sT[1], sT[1], 8 * 3584),
                    salu("s_mul_i32", sT[2], sGQ, 7 * 128), salu("s_add_u32", sT[1], sT[1], sT[2]), salu("s_add_u32", sT[1], sT[1], 256),
                    valu("v_mul_u32_u24", t2, 3584, t0), valu("v_add_u32", t2, sT[1], t2), valu("v_and_b32", t3, 3, t1), valu("v_lshl_add_u32", vTCH[2], t3, 7, t2))
                self.rest = self.touch(vTCH[3], rQKV) + self.touch(vTCH[2], rGU)
            if c.b_lean: add(self.dma_setup(1), self.dma_setup(2))
            self.mid = self.poll_issue(vDB, rDBG) if c.dpos == 3 else []
            if not c.setup_early: self.misc_setup()
            if c.dpos in (1, 2): add(self.poll_issue(vDB, rDBG))
            if c.dpos == 2:
                for _ in range(c.w_a): add(self.dma_slab())
            pre, rd, self.ts = tile_store()
            add(pre)
            if c.stamps & 4096: add(self.stamp(4096), wait(vm="xs0"), self.stamp(4096), wait(vm="xs3"), self.stamp(4096), wait(vm="w0"), self.stamp(4096))
            add(self.poll_check(vDB, rDBG, vTLB))
            add(self.stamp(64 + 4096))
            add(barrier(), self.stamp(64), buf_store("buffer_store_dword", vFV, vF0, rWS, flags="sc1", tag="f0"))
            wo = [salu("s_lshr_b32", sT[1], sWQ, 2), set_m0(sT[1], TL, "tl"), buf_dma(vTL, rD, tag="tl")]
            if c.wo_late == 0: add(wo)
            for _ in range(c.w_b): add(self.dma_slab())
        else:
            pre, rd, self.ts = tile_store()
            for _ in range(c.w_c0): add(self.dma_slab())
            if c.c_tile == -1: add(pre)
            else:
                assert c.ts_pos > c.c_tile and c.ts_pos >= 0
                add(pre[:14]); self.ts = pre[14:] + self.ts
            if c.w_c0: add(self.stamp(64 + 256), self.stamp(256), self.stamp(64 + 256))
            else: add(self.stamp(64 + 256), self.dma_slab(), self.stamp(256), wait(vm="w0"), self.stamp(64 + 256))
            add(buf_store("buffer_store_dwordx4", p6, vPS, rWS, flags="sc1"))
            if c.ts_pos < 0: add(self.ts); self.ts = []
            add(self.poll_issue(vDB, rDBG))
            while self.nslab < c.w_c: add(self.dma_slab())
            if c.c_tile == -2: add(tdma)
            if c.c_rest == -2: add(self.rest)
            add(self.poll_check(vDB, rDBG, vTLB), self.stamp(64), barrier(), self.stamp(64))
        add(self.poll_issue(vP0, rWS))
        if c.stamps & 4096:
            add(self.stamp(4096), wait(vm="f0"), self.stamp(4096), wait(vm=f"w{self.nslab-1}"), self.stamp(4096), wait_regs(vPV), self.stamp(4096))
            self.nst = 10
        add(wait_regs(vPV), self.stamp(64), self.poll_check(vP0, rWS, 1))
        add(self.stamp(65 + 256))
        self.nx = 0
        for _ in range(c.nx0 // 2): add(self.x_load())
        add(wait(vm=["w0", "tl"] if B else "w0"), barrier(), rd)
        F = self.frag_list()
        for k in range(c.LA):
            add(self.frag_reads(k, F[k]))
            if k % 2 and self.nx < c.nx0: add(self.x_load())
        while self.nx < c.nx0: add(self.x_load())
    def x_load(self):
        j = self.nx; self.nx += 1
        o = []
        if j % 4 == 0: o += [salu("s_mov_b32", sXS, j * 1024)]
        return o + [buf_load("buffer_load_dwordx4", X.sub(4 * j, 4), vXN, rWS, 0 if self.cfg.dbg & 8 else sXS, (j % 4) * 1024, flags="sc1")]

    def misc_setup(self):
        add = self.add
        t0, t1, t2, t3 = T[0], T[1], T[2], T[3]
        TR = self.TR
        add(valu("v_bfe_u32", t0, vLane, 2, 3), valu("v_and_b32", t1, 32, vLane), valu("v_lshrrev_b32", t1, 1, t1), valu("v_add_u32", t1, t1, t0),
            valu("v_and_b32", t2, 1, vLane), valu("v_lshlrev_b32", t2, 3, t2), valu("v_and_b32", t3, 2, vLane),
            valu("v_lshl_add_u32", TR[0], t1, 7, t2), valu("v_lshl_add_u32", TR[0], t3, 5, TR[0]), valu("v_lshrrev_b32", t0, 1, t0), valu("v_lshl_add_u32", TR[0], t0, 4, TR[0]),
            [valu("v_xor_b32", TR[i], 16 * i, TR[0]) for i in (1, 2, 3)])
        if not self.B:
            add(valu("v_lshl_add_u32", TR[4], t1, 6, t2), valu("v_lshl_add_u32", TR[4], t3, 4, TR[4]), valu("v_and_or_b32", TR[4], vLane, 16, TR[4]), valu("v_xor_b32", TR[5], 16, TR[4]))
        self.win = [0] * 6
        for ch in range(3):
            if not (self.B and ch == 0): add(self.set_hu(ch))
        if self.B: add(self.att_setup())
        add(self.mid)
        add(salu("s_lshl_b32", sT[1], sRB, 2), salu("s_add_u32", sT[1], sT[1], sW), salu("s_mul_i32", sT[2], sT[1], HSTR),
            valu("v_and_b32", t0, 16, vLane), valu("v_lshlrev_b32", t0, 1, t0), valu("v_and_or_b32", t0, vLane, 15, t0), valu("v_lshl_add_u32", t0, t0, 4, sT[2]),
            valu("v_and_b32", t1, 32, vLane), valu("v_lshl_add_u32", vHST, t1, 6, t0))
        if not self.B: add(valu("v_lshl_add_u32", vSCR, t1, 5, t0))
        if self.cfg.dbg & 1: add(valu("v_mov_b32", vHST, OOB))
        add(salu("s_lshr_b32", sT[1], sT[1], 1), salu("s_lshl_b32", sT[1], sT[1], 2), salu("s_add_u32", sT[1], sT[1], sGQ), salu("s_lshl_b32", sT[1], sT[1], 10),
            salu("s_and_b32", sT[2], sW, 1), salu("s_lshl_b32", sT[3], sJ, 1), salu("s_add_u32", sT[2], sT[2], sT[3]), salu("s_lshl_b32", sT[2], sT[2], 2),
            salu("s_add_u32", sT[1], sT[1], sT[2]), salu("s_add_u32", sT[1], sT[1], FLAG_OFF),
            valu("v_mov_b32", t0, OOB), valu("v_mov_b32", t1, sT[1]), valu("v_cmp_eq_u32", "vcc", 0, vLane), valu("v_cndmask_b32", vFLG, t0, t1, "vcc"))
        if self.B: add(valu("v_add_u32", vFH, sH3, vFLG))
        add(salu("s_lshl_b32", sT[1], sTB2, 1), salu("s_lshr_b32", sT[2], sW, 1), salu("s_add_u32", sT[1], sT[1], sT[2]), salu("s_mul_i32", sP2h, sT[1], HSTR),
            salu("s_xor_b32", sT[2], sT[1], 1), salu("s_mul_i32", sHS, sT[2], HSTR),
            salu("s_lshl_b32", sT[1], sT[1], 5),
            salu("s_and_b32", sT[2], sT[1], 1023), salu("s_lshl_b32", sT[2], sT[2], 11), salu("s_lshr_b32", sT[1], sT[1], 10), salu("s_lshl_b32", sT[1], sT[1], 10),
            salu("s_add_u32", sT[1], sT[1], sT[2]), salu("s_lshl_b32", sT[2], sCB2, 7), salu("s_add_u32", sT[1], sT[1], sT[2]),
            salu("s_and_b32", sT[2], sW, 1), salu("s_lshl_b32", sT[2], sT[2], 6), salu("s_add_u32", sP2x, sT[1], sT[2]),
            salu("s_lshl_b32", sT[1], sTB2, 2), salu("s_add_u32", sT[1], sT[1], sW), salu("s_lshl_b32", sT[1], sT[1], 10), salu("s_add_u32", sP2f, sT[1], FLAG_OFF))
        add(salu("s_mul_i32", sT[1], sCB2, 72 * 4096), salu("s_add_u32", sT[1], sT[1], WT_OFF), salu("s_lshl_b32", sT[2], sT[2], 4),
            salu("s_add_u32", sT[3], sT[1], sT[2]), valu("v_lshl_add_u32", vW[0], vLane, 4, sT[3]),
            salu("s_sub_u32", sT[3], sT[1], sT[2]), valu("v_lshl_add_u32", vW[1], vLane, 4, sT[3]), valu("v_lshl_add_u32", vWB, vLane, 4, sWQ),
            salu("s_lshl_b32", sT[1], sCB2, 8), salu("s_add_u32", sT[1], sT[1], FLAGA_OFF + 96 * 128), salu("s_lshl_b32", sT[2], sGQ, 9), salu("s_add_u32", sT[2], sT[2], FLAGA_OFF + 64 * 128),
            salu("s_lshr_b32", sT[3], sCB2, 1), salu("s_xor_b32", sT[3], sT[3], self.cfg.tx), salu("s_lshl_b32", sT[3], sT[3], 9), salu("s_add_u32", sT[3], sT[3], FLAGA_OFF + 80 * 128),
            salu("s_cmp_eq_u32", None, sW, 0), salu("s_cselect_b32", sT[1], sT[1], OOB), salu("s_cselect_b32", sT[2], sT[2], OOB), salu("s_cselect_b32", sT[3], sT[3], OOB),
            salu("s_cselect_b32", sW0, 1, 0),
            valu("v_and_b32", t0, 24, vLane), valu("v_lshlrev_b32", t0, 2, t0), valu("v_and_or_b32", t0, vLane, 7, t0), valu("v_and_b32", t1, 63, t0),
            valu("v_lshl_add_u32", t1, t1, 2, sT[1]), valu("v_lshl_add_u32", vP2, t0, 2, sT[3]),
            valu("v_cmp_lt_u32", "vcc", 31, vLane), valu("v_cndmask_b32", vP2, vP2, t1, "vcc"))
        if not self.B: add(valu("v_lshl_add_u32", vP6, t0, 2, sT[2]))

    def chunk_of(self, n): return 0 if n < 8 else (1 if n < 12 else 2)
    def dma_setup(self, ch):
        t0, t1 = T[0], T[1]
        o = []
        B = self.B
        half = (not B) and ch == 1
        stride = 3072 if (B and ch < 2) else 3584
        if half:
            return [salu("s_lshl_b32", sT[1], sGQ, 1), salu("s_add_u32", sT[1], sT[1], sJ), salu("s_lshl_b32", sT[1], sT[1], 16), salu("s_add_u32", sT[1], sT[1], sWQ),
                    salu("s_add_u32", sT[1], sT[1], P6_OFF - 2 * 65536), valu("v_lshl_add_u32", vDMA1, vLane, 4, sT[1])]
        else:
            o += [valu("v_lshrrev_b32", t0, 4, vLane), valu("v_and_b32", t1, 7, vLane), valu("v_xor_b32", t1, t0, t1), valu("v_lshrrev_b32", t0, 3, vLane)]
        o += [valu("v_mul_u32_u24", t0, stride, t0), valu("v_lshl_add_u32", t0, t1, 4, t0)]
        a, b = sT[1], sT[2]
        if B and ch == 0:
            o += [salu("s_lshl_b32", a, sGQ, 1), salu("s_add_u32", a, a, sJ), salu("s_lshl_b32", a, a, 7), salu("s_lshr_b32", b, sW, 1),
                  salu("s_add_u32", b, b, 1), salu("s_lshl_b32", b, b, 10), salu("s_add_u32", a, a, b), salu("s_and_b32", b, sW, 1),
                  salu("s_mul_i32", b, b, 32 * stride), salu("s_add_u32", a, a, b)]
        elif B and ch == 1:
            o += [salu("s_lshl_b32", a, sGQ, 1), salu("s_add_u32", a, a, sJ), salu("s_lshl_b32", a, a, 7), salu("s_mul_i32", b, sW, 32 * stride),
                  salu("s_add_u32", a, a, b)]
        else:
            if half: o += [salu("s_lshl_b32", b, sJ, 6), salu("s_add_u32", b, b, 6 * 128 - 128)]
            else: o += [salu("s_lshl_b32", b, sJ, 7), salu("s_sub_u32" if ch == 0 else "s_add_u32", b, b, 256)]
            o += [salu("s_mul_i32", a, sGQ, 7 * 128), salu("s_add_u32", a, a, b), salu("s_and_b32", b, sW, 1),
                  salu("s_mul_i32", b, b, (64 if half else 32) * stride), salu("s_add_u32", a, a, b)]
        o += [valu("v_add_u32", (vDMA0, vDMA1, vDMA2)[ch], a, t0)]
        return o
    def dma_slab(self):
        n = self.nslab; self.nslab += 1
        ch = self.chunk_of(n)
        B = self.B
        vd = (vDMA0, vDMA1, vDMA2)[ch]
        srd = rQKV if (B and ch < 2) else rGU
        so = (sOA if ch < 2 else sOB) if B else (sOB if ch == 1 else sOA)
        stride = 3072 if (B and ch < 2) else 3584
        o = [set_m0(sWQ, slab_slot(n) * SLOT, f"w{n}")]
        if ch == 1 and not B:
            if n > 8: o += [valu("v_add_u32", vd, 16384, vd)]
            return o + [buf_dma(vd, rWS, 0, i * 1024, flags="sc1", tag=f"w{n}") for i in range(4)]
        if n not in (0, 8, 12) and not self.cfg.dbg & 16: o += [valu("v_add_u32", vd, (128 if ch == 1 else 64) * stride, vd)]
        o += [buf_dma(vd, srd, so[i], i * 1024, flags="sc1" if self.cfg.dbg & 16 else self.cfg.wflags, tag=f"w{n}") for i in range(2 if (self.cfg.dbg & 512 and n >= 7) else 4)]
        return o
    def frag_list(self):
        L = []
        for n in range(20):
            ch = self.chunk_of(n)
            base = slab_slot(n) * SLOT
            if ch != 1:
                n0 = 0 if ch == 0 else 12
                for jj in range(2):
                    for cc in range(4):
                        for im in range(2):
                            L.append(([ACC1.sub(16 * im + 32 * th + 4 * cc, 4) for th in range(2)], 4 * (n - n0) + 2 * jj, n, base + im * 8192 + jj * 4096, cc, 1024))
            else:
                for jj in range(4):
                    for cc in range(4):
                        if self.B: L.append(([ACC2.sub(16 * th + 4 * cc, 4) for th in range(2)], 8 * (n - 8) + 2 * jj, n, base + jj * 4096, cc, 1024))
                        else: L.append(([ACC2.sub(16 * (cc & 1) + 8 * th + 4 * (cc >> 1), 4) for th in range(2)], 8 * (n - 8) + 2 * jj, n, base + (cc & 1) * 8192 + jj * 2048, 4 + (cc >> 1), 512))
        assert not self.cfg.nspl
        if self.cfg.chain:
            M = []
            for n in range(20):
                f = L[16 * n:16 * n + 16]
                h = 4 if self.chunk_of(n) == 1 else 8
                for a in range(0, 16, 2 * h):
                    for i in range(h): M += [f[a + i], f[a + h + i]]
            L = M
        return L
    def window(self, wins, which, reg, off, span):
        o = []
        if not (wins[which] <= off and off + span <= wins[which] + 65536):
            w = off // SLOT * SLOT
            d = w - wins[which]
            o += [valu("v_add_u32" if d > 0 else "v_subrev_u32", reg, abs(d), reg)]
            wins[which] = w
        return o, off - wins[which]
    def frag_reads(self, k, f):
        acc, step, n, off, which, ustep = f
        b = self.TR[which]
        o, imm = self.window(self.win, which, b, off, 2048)
        dst = WF.sub(4 * (k % self.cfg.NB), 4)
        o += [ds_read("ds_read_b64_tr_b16", dst.sub(0, 2), b, imm, tag=f"f{k}"), ds_read("ds_read_b64_tr_b16", dst.sub(2, 2), b, imm + ustep, tag=f"f{k}")]
        if self.cfg.dbg & 4096 and k >= 16: o.pop(-1 - (k // self.cfg.NB & 1))
        return o
    def ffn_epi(self, G, U, ch, kst, tag, pk=False):
        o = []
        for b in range(4):
            t = [T[4 + i] for i in range(4)]
            g = [G[4 * b + i] for i in range(4)]; u = [U[4 * b + i] for i in range(4)]
            if pk:
                t2 = [T.sub(4, 2), T.sub(6, 2)]; g2 = [G.sub(4 * b, 2), G.sub(4 * b + 2, 2)]; u2 = [U.sub(4 * b, 2), U.sub(4 * b + 2, 2)]
                o += [valu("v_pk_mul_f32", t2[i], g2[i], T.sub(0, 2)) for i in range(2)]
                o += [valu("v_exp_f32", t[i], t[i]) for i in range(4)]
                o += [valu("v_pk_mul_f32", u2[i], g2[i], u2[i]) for i in range(2)]
                o += [valu("v_pk_add_f32", t2[i], t2[i], T.sub(2, 2)) for i in range(2)]
                o += [valu("v_rcp_f32", t[i], t[i]) for i in range(4)]
                o += [valu("v_pk_mul_f32", u2[i], u2[i], t2[i]) for i in range(2)]
            else:
                o += [valu("v_mul_f32", t[i], sNL if self.cfg.sconst else f32(-LOG2E), g[i]) for i in range(4)]
                for i in range(4): o += [valu("v_exp_f32", t[i], t[i]), valu("v_mul_f32", u[i], g[i], u[i])]
                o += [valu("v_add_f32", t[i], "1.0", t[i]) for i in range(4)]
                o += [valu("v_rcp_f32", t[i], t[i]) for i in range(4)]
                o += [valu("v_mul_f32", u[i], u[i], t[i]) for i in range(4)]
            if self.cfg.dbg & 8192: o = [x for x in o if x.op not in ("v_add_f32", "v_pk_add_f32")]
            o += [valu("v_cvt_pk_bf16_f32", G[2 * b + i], u[2 * i], u[2 * i + 1]) for i in range(2)]
            if b & 1: o += [buf_store("buffer_store_dwordx4", G.sub(2 * (b - 1), 4), vSCR if ch == 1 else vHST, rWS, sHu[ch], kst + (b >> 1) * (256 if ch == 1 else 1024), flags=self.cfg.hflags, tag=tag)]
        return o
    def set_hu(self, ch):
        a = sT[1]
        if self.B and ch == 1:
            return [salu("s_lshl_b32", a, sGQ, 1), salu("s_add_u32", a, a, sJ), salu("s_lshl_b32", a, a, 12), salu("s_add_u32", sHu[ch], a, 112 * 1024)]
        o = [salu("s_mul_i32", sHu[ch], sGQ, 28 * 1024)]
        if ch == 1: o += [salu("s_lshl_b32", a, sJ, 11), salu("s_add_u32", a, a, 6 * 4096 - 4096)]
        else: o += [salu("s_lshl_b32", a, sJ, 12), salu("s_sub_u32" if ch == 0 else "s_add_u32", a, a, 8192)]
        return o + [salu("s_add_u32", sHu[ch], sHu[ch], a)]

    def phase1(self):
        c, add, B = self.cfg, self.add, self.B
        F = self.frag_list()
        NM = len(F)
        assert not c.chain or (c.wstep % 2 == 0 and c.NB >= c.LA + 2)
        gaps = [[] for _ in range(NM)]
        tail = [[] for _ in range(NM)]
        load = [0] * NM
        def put(k, ins, last=False):
            (tail if last else gaps)[k] += ins
            load[k] += sum(cyc(i) for i in ins)
        def spread(ins, k0, k1):
            tot = sum(cyc(i) for i in ins)
            lo, hi = 0.0, 1000.0
            for _ in range(40):
                mid = (lo + hi) / 2
                if sum(max(0, mid - load[k]) for k in range(k0, k1)) >= tot: hi = mid
                else: lo = mid
            cap, acc = [], 0.0
            for k in range(k0, k1):
                acc += max(0, hi - load[k]); cap.append(acc)
            k, used = 0, 0.0
            for i in ins:
                while k < len(cap) - 1 and used + cyc(i) / 2 > cap[k] and i.kind != "branch": k += 1
                put(k0 + k, [i]); used += cyc(i)
        bar_gap = {n: 16 * n - c.LA - 1 for n in range(1, 20)}
        bar_gap[0], bar_gap[20] = -1, NM
        self.bar_extra = {n: [] for n in range(1, 21)}
        need = {n: max(f[2] for f in F[:min(NM, bar_gap[n + 1] + c.LA + 1)]) for n in range(20)}
        skip = lambda n: c.bar2 and c.bar2 <= n < 19 and (n - c.bar2) % 2 == 1
        self.skip = skip
        for n in range(18, 0, -1):
            if skip(n + 1): need[n] = need[n + 1]
        for n in (c.pw_per, c.p6_per, c.f2_bar): assert not skip(n)
        lastx = lambda i: max(k for k, f in enumerate(F) if f[1] // 4 == i)
        plan = dict((int(p.split(":")[0]), p.split(":")[1].split(".")) for p in (c.planB if B else c.planC).split(",") if p)
        self.pool = list(ABUF) + VBUF[:5] + ([] if B else VBUF[5:7])
        put(bar_gap[c.pw_per] - 1 - c.pw_lead, self.poll_issue(vP2, rWS))
        put(bar_gap[c.pw_per] - 1, self.poll_check(vP2, rWS, sW0))
        if not B:
            assert bar_gap[c.p6_per] <= bar_gap[c.pw_per] - 1 - c.pw_lead
            put(bar_gap[c.p6_per] - 1 - c.pw_lead, self.poll_issue(vP6, rWS))
            put(bar_gap[c.p6_per] - 1, self.poll_check(vP6, rWS, sW0))
        put(bar_gap[c.f2_bar] + 1, [buf_store("buffer_store_dword", vFV, vF2, rWS, 0, 2048, flags="sc1")])
        for n in range(20):
            k = bar_gap[n]
            if n and not skip(n): load[k] += 14
            if B and n and bar_gap[n - 1] < c.g_halo + 2 * (9 + c.att_w) <= k: self.pool += VBUF[5:]
            if n == 9 and not B: self.pool += VBUF[7:]
            ops = list(plan.get(n, []))
            ins = []
            while ops and ops[0] in ("r", "H"):
                ins += self.plan_op(ops.pop(0), n)
            w = []
            nw = 0
            while self.nslab < 20 and self.nslab <= n - (1 if skip(n) else 0) + c.NS - 2 and (B or self.nslab < 8 or n >= c.p6_per) and (self.nslab <= need[min(19, n + 2)] or nw + ops.count("w") < 1 or "w" in ops):
                if nw and "w" in ops: ops.remove("w")
                w += self.dma_slab(); nw += 1
            ops = [x for x in ops if x != "w"]
            assert self.nslab > need[min(19, n + 2)], n
            if n == max(c.ts_pos, 0): ins += self.ts
            while c.xfree and self.xf_n < 5 and lastx(self.xf_n) <= k: self.pool += [A(16 * self.xf_n, 16)]; self.xf_n += 1
            nxl = min(32 - self.nx, c.xr[n] if n < len(c.xr) else (c.xrate if n else max(1, c.xrate // 2)))
            for i in w:
                if i.kind == "dma" and nxl: ins += self.x_load(); nxl -= 1
                ins.append(i)
            for _ in range(nxl): ins += self.x_load()
            assert self.nx >= min(32, (bar_gap[n + 1] + 16) // 4 + (3 if c.chain else 1)), n
            if n == c.c_tile and not B: ins += self.tdma
            if n == (c.b_rest if B else c.c_rest): ins += self.rest
            for op in ops: ins += self.plan_op(op, n)
            if ins: spread(ins, k + 1, bar_gap[n + 1])
        if not B:
            ins = self.ffn_epi(ACC1.sub(0, 16), ACC1.sub(16, 16), 0, 0, "st1") + self.ffn_epi(ACC1.sub(32, 16), ACC1.sub(48, 16), 0, 256, "st1")
            spread(ins, 129, 191)
            if not c.one_pa: put(c.g_f1c, self.flag(L_P1, "st1"))
            spread(self.ffn_epi(ACC2.sub(0, 16), ACC2.sub(16, 16), 1, 0, "st2"), 194, c.h2_end)
            put(c.g_f2c, self.flag(L_HALF, "st2"))
        else:
            self.attention(put, spread, bar_gap, load)
        if c.nspl:
            k0 = max(320 - 8 * c.nspl + 2, self.att_end + 7 if B else 0)
            spread(self.ffn_epi(ACC1.sub(0, 16), ACC1.sub(16, 16), 2, 0, "st3"), k0, c.e0_end)
        o = [valu("v_lshl_add_u32", vH[0], vLane, 4, sP2h), valu("v_lshl_add_u32", vH[1], vLane, 4, sHS),
             valu("v_and_b32", vPOLL, 7, vLane), valu("v_lshrrev_b32", vTHR, 2, vPOLL), valu("v_lshl_add_u32", vPOLL, vPOLL, 2, sP2f),
             ]
        if not c.otr: o += [valu("v_and_b32", vXO, 31, vLane), valu("v_lshlrev_b32", vXO, 11, vXO), valu("v_and_or_b32", vXO, vLane, 32, vXO), valu("v_add_u32", vXO, sP2x, vXO)]
        spread(o, *((176, 192) if B else (200, c.g_pa)))
        la = L_HALF if c.one_pa else L_P1
        put(c.g_pa, self.poll_issue(vPOLL, rWS, la))
        assert c.g_pa < bar_gap[c.pa_per] - 1
        put(bar_gap[c.pa_per] - 1, self.poll_check(vPOLL, rWS, vTHR, la))
        self.pa2 = (vPOLL, rWS, vTHR, L_HALF)
        if c.m_pb == -1:
            put(c.g_pa2 - 2, [valu("v_lshlrev_b32", vP2, 7, vTHR), valu("v_sub_u32", vP2, vPOLL, vP2)])
            self.pa2 = (vP2, rWS, 1, L_O)
        if not c.one_pa: put(c.g_pa2, self.poll_issue(self.pa2[0], rWS, self.pa2[3]))
        if c.pa2_epi < 0 and not c.one_pa: put(319, self.poll_check(*self.pa2))
        spread([valu("v_mov_b32", T[0], f32(-LOG2E)), valu("v_mov_b32", T[1], f32(-LOG2E)), valu("v_mov_b32", T[2], "1.0"), valu("v_mov_b32", T[3], "1.0")], 312, 320)
        inv_bar = {v: n for n, v in bar_gap.items() if 1 <= n <= 19}
        for k in range(NM):
            acc, step, n, off, which, us = F[k]
            if k % c.wstep == 0: add(wait(lg=[f"f{i}" for i in range(k, k + c.wstep)]))
            rd = self.frag_reads(k + c.LA, F[k + c.LA]) if k + c.LA < NM else []
            fill = gaps[k]
            tot, u, n1 = sum(cyc(i) for i in fill), 0, 0
            while n1 < len(fill) and (u + cyc(fill[n1]) / 2 <= tot / 2 or fill[n1].kind == "branch"): u += cyc(fill[n1]); n1 += 1
            if 2 * u > tot + 4: r1 = 0 if len(rd) <= 2 else len(rd) - 1
            elif 2 * u < tot - 4: r1 = len(rd)
            else: r1 = max(0, len(rd) - 1)
            if c.chain:
                th = k & 1
                first = F[k & ~1][1] == 0
                mm = [mfma(16, acc[th], WF.sub(4 * (kk % c.NB), 4), X.sub(4 * (F[kk][1] + th), 4), 0 if (first and kk == k) else acc[th]) for kk in (k, k ^ 1)]
            else: mm = [mfma(16, acc[th], WF.sub(4 * (k % c.NB), 4), X.sub(4 * (step + th), 4), 0 if step == 0 else acc[th]) for th in range(2)]
            add(mm[0], self.jit(0.08))
            if k == 0: add(self.stamp(67))
            add(rd[:r1], fill[:n1])
            add(mm[1], rd[r1:], fill[n1:], tail[k])
            if k in inv_bar:
                n = inv_bar[k]
                assert not (skip(n) and self.bar_extra[n])
                if n == 19 or need[n] > need[n - 1]: add(wait(vm=[f"w{need[n]}"] + (["ts"] if n == c.f2_bar else []), lg=self.bar_extra[n] or None), barrier())
            if k in (127, 191): add(self.stamp())
            if k in (31, 63): add(self.stamp(64))
            if k % 32 == 31 and 31 < k < 319: add(self.stamp(2))
            if k in c.sg: add(self.stamp(32))
        add(self.stamp(131))
        self.load = load
    def plan_op(self, op, n):
        if op == "l":
            assert n >= self.cfg.pw_per
            return self.w2_load()
        if op == "h":
            assert n >= self.cfg.pa_per and self.h_n < 4
            return self.h_load()
        if op == "P": return self.poll_issue(vPOLLH, rWS)
        if op == "H":
            self.halo_period = n
            i = salu("s_mov_b32", "m0", sHM0); i.tag = "halo"
            return self.poll_check(vPOLLH, rWS, sTHR) + [i] + [buf_dma(vHLD, rWS, 0, 1024 * q, flags="sc1", tag="halo") for q in range(2)]
        slot = int(op[1:])
        if slot < self.cfg.NS: assert n - (1 if self.skip(n) else 0) >= 2 + max(x for x in range(20) if slab_slot(x) == slot)
        if self.B and slot >= 7: assert n >= 19
        assert n >= self.cfg.pw_per
        return self.w2_dma(slot)

    def att_setup(self):
        t0, t1 = T[0], T[1]
        o = [valu("v_and_b32", t0, 15, vLane), valu("v_mul_u32_u24", t0, RP, t0), valu("v_and_b32", t1, 48, vLane), valu("v_lshlrev_b32", t1, 1, t1),
             salu("s_mul_i32", sT[0], sW, 32 * RP), salu("s_add_u32", sT[0], sT[0], SCR), valu("v_add3_u32", vSCR, sT[0], t0, t1),
             valu("v_and_b32", t0, 3, vLane), valu("v_bfe_u32", vVTR, vLane, 2, 2), valu("v_lshl_add_u32", t0, t0, 2, vVTR),
             valu("v_mul_u32_u24", t0, RP, t0), valu("v_add3_u32", vVTR, sT[0], t0, t1),
             salu("s_mov_b32", sT[0], SCR + 128 * RP + 128), valu("v_lshl_add_u32", vHRB, vLane, 4, sT[0])]
        o += [salu("s_lshl_b32", sT[1], sRB, 3), salu("s_lshl_b32", sT[2], sGQ, 1), salu("s_add_u32", sT[1], sT[1], sT[2]), salu("s_add_u32", sT[1], sT[1], sJ),
              salu("s_lshl_b32", sC1, sT[1], 11), salu("s_add_u32", sC1, sC1, HALO_OFF),
              salu("s_cmp_eq_u32", None, sW, 3), salu("s_cselect_b32", sT[1], sC1, OOB), salu("s_cselect_b32", sH3, 0, OOB), valu("v_lshl_add_u32", vHALO, vLane, 4, sT[1]),
              salu("s_and_b32", sT[1], sRB, 7), salu("s_or_b32", sT[2], sT[1], sW), salu("s_cselect_b32", sM1[0], 0, "0xf000f"), salu("s_cselect_b32", sM2[0], 0, "0xff00ff"),
              salu("s_mov_b32", sM1[1], sM1[0]), salu("s_mov_b32", sM2[1], sM2[0]), salu("s_mov_b32", sHM0, SPARE),
              salu("s_cmp_eq_u32", None, sW, 0), salu("s_cselect_b32", sHM0, SCR + 128, sHM0), salu("s_cselect_b32", sT[1], sT[1], 0),
              salu("s_cmp_lg_u32", None, sT[1], 0), salu("s_cselect_b32", sTHR, 1, 0),
              salu("s_sub_u32", sT[2], sC1, 8 * 2048), salu("s_cmp_lg_u32", None, sTHR, 0), salu("s_cselect_b32", sT[2], sT[2], OOB),
              valu("v_lshl_add_u32", vHLD, vLane, 4, sT[2])]
        if self.cfg.kv_mode == 4:
            for q, dst in enumerate((vHLD, vHLD2)):
                o += [valu("v_add_u32", t0, 8 + 64 * q, vLane), valu("v_mul_u32_u24", t1, 241, t0), valu("v_lshrrev_b32", t1, 12, t1), valu("v_mul_u32_u24", dst, 17, t1),
                      valu("v_sub_u32", t0, t0, dst), valu("v_min_u32", t0, 15, t0), valu("v_lshlrev_b32", t1, 4, t1), valu("v_lshl_add_u32", t0, t0, 7, t1),
                      valu("v_add_u32", dst, sT[2], t0)]
                if q: o += [valu("v_subrev_u32", dst, 1024, dst)]
            o += [salu("s_sub_u32", sT[1], sC1, 24 * 16), salu("s_cmp_eq_u32", None, sW, 3), salu("s_cselect_b32", sT[1], sT[1], OOB),
                  valu("v_and_b32", t0, 31, vLane), valu("v_lshrrev_b32", t1, 5, vLane), valu("v_lshlrev_b32", t1, 8, t1), valu("v_lshl_add_u32", t1, t0, 4, t1),
                  valu("v_add_u32", t1, sT[1], t1), valu("v_cmp_lt_u32", "vcc", 23, t0), valu("v_mov_b32", t0, OOB), valu("v_cndmask_b32", vHALO, t0, t1, "vcc")]
        o += [
              salu("s_lshl_b32", sT[1], sRB, 3), salu("s_add_u32", sT[1], sT[1], sGQ), salu("s_lshl_b32", sT[1], sT[1], 10), salu("s_lshl_b32", sT[2], sJ, 3),
              salu("s_add_u32", sT[1], sT[1], sT[2]), salu("s_add_u32", sT[1], sT[1], FLAG_OFF - 4096 + 4), salu("s_cmp_lg_u32", None, sTHR, 0),
              salu("s_cselect_b32", sT[1], sT[1], OOB), valu("v_mov_b32", vPOLLH, sT[1]), salu("s_mov_b32", sCS, f32(0.25 * LOG2E))]
        o += [valu("v_and_b32", t0, 3, vLane), valu("v_mov_b32", t1, "0xffff"),
              valu("v_cmp_le_u32", sJ1, 1, t0), valu("v_cmp_le_u32", sJ2, 2, t0), valu("v_cmp_le_u32", sJ3, 3, t0),
              valu("v_cndmask_b32", vA01, t1, -1, sJ1), valu("v_cndmask_b32", vA23, 0, t1, sJ2), valu("v_cndmask_b32", vA23, vA23, -1, sJ3)]
        return o
    def attention(self, put, spread, bar_gap, load):
        c = self.cfg
        def pack(dst, a):
            o = [valu("v_cvt_pk_bf16_f32", dst[i], a[2 * i], a[2 * i + 1]) for i in range(8)]
            return o + [valu("v_permlane16_swap_b32", dst[i], dst[4 + i], rmw=True, wr2=dst[4 + i]) for i in range(4)]
        cv, wr = [], []
        for blk in range(4):
            a = ACC1.sub(16 * blk, 16)
            cv += pack(a, a)
            wr += [ds_write("ds_write_b128", vSCR, a.sub(4 * dh, 4), (blk & 1) * 128 + dh * 16 + (8 + 16 * (blk >> 1)) * RP, tag="kv") for dh in range(2)]
        hs = ACC1.sub(40, 8)
        assert c.kv_mode in (3, 5, 6)
        if c.kv_mode == 3:
            spread(cv, 129, c.kv_end - 3)
            put(c.kv_end - 3, wr)
        else:
            if c.kv_mode == 5:
                spread(cv[24:], 130, c.kv_end - 3)
                put(c.kv_end - 3, wr[4:])
            else: spread(cv[24:36] + wr[4:6] + cv[36:] + wr[6:], 130, c.kv_end - 2)
            spread(cv[:24], c.kv_end + 5, c.kv_end + 15)
            for n, x in enumerate(wr[:4]):
                k1 = c.kv_end + 15 + (180 - c.kv_end - 15) * n // 4
                while load[k1] > 0 and k1 < 181: k1 += 1
                put(k1, [x], last=True)
        put(c.kv_end - 1, [ds_read("ds_read_b128", hs.sub(4 * i, 4), vHRB, 1024 * i) for i in range(2)])
        if c.kv_mode != 4:
            put(c.kv_end + 2, [buf_store("buffer_store_dwordx4", hs.sub(0, 4), vHALO, rWS, 0, 0, flags="sc1", tag="st1")])
            put(c.kv_end + 4, [buf_store("buffer_store_dwordx4", hs.sub(4, 4), vHALO, rWS, 0, 1024, flags="sc1", tag="st1")])
            self.bar_extra[12] = ["kv"]
        assert c.kv_end + 4 < min(176, c.g_flag1)
        fl = self.flag(L_HALO, "st1")
        if c.halo3: fl[-1] = buf_store("buffer_store_dword", vFV, vFH, rWS, 0, L_HALO, flags="sc1")
        put(c.g_flag1, fl)
        Q = ACC2.sub(0, 16); O = ACC2.sub(16, 16)
        Sg = [SG.sub(0, 4), SG.sub(4, 4), SG.sub(8, 4)]
        P = [T.sub(0, 2), T.sub(2, 2), T.sub(4, 2)]
        tm, tz, big = SG[12], SG[13], SG[14]
        spread(pack(Q.sub(0, 8), ACC2.sub(0, 16)) + pack(Q.sub(8, 8), ACC2.sub(16, 16)) + [valu("v_mov_b32", big, f32(-1e30))], 194, min(215, c.g_halo + 4))
        k = c.g_halo
        cs = 0.25 * LOG2E
        for cb in ((1, 0) if c.th1 else (0, 1)):
            if cb == 0:
                assert k > bar_gap[self.halo_period + 1]
                put(k, [wait(vm="halo")])
            spread([ds_read("ds_read_b128", KA.sub(8 * g + 4 * dh, 4), vSCR, dh * 16 + (16 * cb + (2 - g) * 4) * RP) for g in range(3) for dh in range(2)], k, k + 4)
            k += 5
            for dq in range(4):
                put(k + dq // 2, [mfma(4, Sg[g], KA.sub(8 * g + 2 * dq, 2), Q.sub(8 * cb + 2 * dq, 2), Sg[g] if dq else 0) for g in range(3)], last=True)
            k += 2
            vr = [ds_read("ds_read_b64_tr_b16", KA.sub(8 * g + 2 * m, 2), vVTR, 128 + (0, 2, 1, 3)[m] * 8 + (16 * cb + (2 - g) * 4) * RP, tag="vr") for g in range(3) for m in range(4)]
            s = [Sg[0][i] for i in range(4)] + [Sg[1][i] for i in range(4)]
            o = vr[:4]
            if cb == 0:
                o += [valu("v_cndmask_b32", Sg[2][r], Sg[2][r], big, sM2) for r in (1, 2, 3)]
                o += [valu("v_cndmask_b32", Sg[1][r], Sg[1][r], big, sM1) for r in range(4)]
            o += [valu("v_cndmask_b32", Sg[0][r], Sg[2][r], Sg[0][r], (None, sJ1, sJ2, sJ3)[r]) for r in (1, 2, 3)]
            o += [valu("v_max3_f32", tm, s[0], s[1], s[2]), valu("v_max3_f32", tz, s[3], s[4], s[5]), valu("v_max3_f32", tm, tm, s[6], s[7]), valu("v_max_f32", tm, tm, tz),
                  valu("v_mul_f32", tm, f32(-cs), tm)]
            o += vr[4:8]
            o += [valu("v_fma_f32", s[i], s[i], sCS, tm) for i in range(8)]
            o += [valu("v_exp_f32", s[i], s[i]) for i in range(8)]
            u = [Sg[2][i] for i in range(4)]
            o += [valu("v_add_f32", u[i], s[2 * i], s[2 * i + 1]) for i in range(4)]
            o += [valu("v_add_f32", u[0], u[0], u[1]), valu("v_add_f32", u[2], u[2], u[3]), valu("v_add_f32", u[0], u[0], u[2]), valu("v_rcp_f32", tz, u[0])]
            o += vr[8:]
            o += [valu("v_mul_f32", s[i], s[i], tz) for i in range(8)]
            o += [valu("v_cvt_pk_bf16_f32", u[0], s[0], s[1]), valu("v_cvt_pk_bf16_f32", u[1], s[2], s[3]),
                  valu("v_cvt_pk_bf16_f32", P[1][0], s[4], s[5]), valu("v_cvt_pk_bf16_f32", P[1][1], s[6], s[7]),
                  valu("v_and_b32", P[0][0], u[0], vA01), valu("v_and_b32", P[0][1], u[1], vA23),
                  valu("v_bfi_b32", P[2][0], vA01, 0, u[0]), valu("v_bfi_b32", P[2][1], vA23, 0, u[1])]
            spread(o, k, k + c.att_w)
            k += c.att_w
            for g in range(3):
                put(k + g // 2, [mfma(4, O.sub(4 * m, 4), KA.sub(8 * g + 2 * m, 2), P[g], O.sub(4 * m, 4) if g else 0) for m in range(4)], last=True)
            k += 2
            o = []
            for dh in range(2):
                o += [valu("v_cvt_pk_bf16_f32", O[4 * dh + i], O[8 * dh + 2 * i], O[8 * dh + 2 * i + 1]) for i in range(4)]
                o += [buf_store("buffer_store_dwordx4", O.sub(4 * dh, 4), vHST, rWS, sHu[1], cb * 256 + dh * 1024, flags=c.hflags, tag="st2")]
            spread(o, k + 1, k + 7)
        assert k <= bar_gap[19], k
        assert k == c.g_halo + 2 * (9 + c.att_w)
        self.att_end = k
        if not c.splf and c.f2_epi < 0: put(min(k + c.f2_lag, 317), self.flag(L_O, "st2"))

    GORD = ([("d", 0, 1, t) for t in range(4)] + [("d", 12, 1, 4 + t) for t in range(2)] + [("o", 0, 1, t) for t in range(4)]
            + [("d", 8, 1, t) for t in range(4)] + [("d", 4, 1, t) for t in range(4)])
    def w2_setup(self):
        return [salu("s_mov_b32", sNL, f32(-LOG2E)), salu("s_mul_i32", sHd, sW, 28 * 1024), salu("s_lshl_b32", sHo, sW, 13), salu("s_add_u32", sHo, sHo, 112 * 1024),
                salu("s_lshl_b32", sWd, sHd, 1), salu("s_lshl_b32", sWo, sHo, 1)]
    def h_load(self):
        gi = self.h_n; self.h_n += 1
        kind, g0, st, t = self.GORD[gi]
        o = [salu("s_add_u32", sT[0], sHd if kind == "d" else sHo, (g0 + (t & 3)) * 2048)]
        dst = self.hreg[gi] = self.pool.pop(0)
        for s in range(1 if self.cfg.dbg & 256 else 2):
            for tb in range(2):
                o += [buf_load("buffer_load_dwordx4", dst.sub(8 * s + 4 * tb, 4), vW[0] if self.cfg.dbg & 2 else vH[tb], rWS, 0 if self.cfg.dbg & 2 else sT[0], s * 1024, flags="sc1", tag=f"h{gi}")]
        return o
    def w2_addr(self):
        gi = self.w2_nd; self.w2_nd += 1
        kind, g, st, t = self.GORD[gi]
        return gi, [salu("s_add_u32", sWS, sWd if kind == "d" else sWo, (g + (t & 3)) * 4096)]
    def w2_load(self):
        gi, o = self.w2_addr()
        dst = self.wreg[gi] = self.pool.pop(0)
        return o + [buf_load("buffer_load_dwordx4", dst.sub(4 * i, 4), vW[i & 1], rWS, 0 if self.cfg.dbg & 4 else sWS, i * 1024, flags="sc1", tag=f"g{gi}") for i in range(2 if self.cfg.dbg & 128 else 4)]
    def w2_dma(self, slot):
        gi, o = self.w2_addr()
        assert slot not in self.w2slot.values()
        self.w2slot[gi] = slot
        return [set_m0(sWQ, slot * SLOT, f"g{gi}")] + o + [buf_dma(vW[i & 1], rWS, sWS, i * 1024, flags="sc1", tag=f"g{gi}") for i in range(4)]
    def w2_read(self):
        gi = min(self.w2slot)
        base = self.w2slot.pop(gi) * SLOT
        dst = self.wreg[gi] = self.pool.pop(0)
        o, imm = self.window(self.win2, 0, vWB, base, 4096)
        for i in o: i.tag = f"r{gi}"
        return [wait(vm=f"g{gi}")] + o + [ds_read("ds_read_b128", dst.sub(4 * i, 4), vWB, imm + i * 1024, tag=f"r{gi}") for i in range(4)]
    def phase2(self):
        c, add = self.cfg, self.add
        accF = [ACC2.sub(0, 16), A(80, 16), A(96, 16), A(112, 16)]
        accS = [ACC2.sub(16, 16)]
        PR = [None, ACC1.sub(0, 16), ACC1.sub(16, 16), ACC1.sub(32, 16)]
        xf = ACC1.sub(48, 16)
        red = [vSCR, vVTR, vTR0, vTR1, vDMA2, vHST]
        pool, hreg, wreg, h_load = self.pool, self.hreg, self.wreg, self.h_load
        pool += [A(128, 16), A(144, 16), A(160, 16)] + [A(16 * i, 16) for i in range(self.xf_n, 5)]
        light = []
        heavy = []
        pend = lambda q, tag: any(i.tag == tag for i in q)
        e = ([] if c.nspl else self.ffn_epi(ACC1.sub(0, 16), ACC1.sub(16, 16), 2, 0, "st3", pk=True)) + self.ffn_epi(ACC1.sub(32, 16), ACC1.sub(48, 16), 2, 256, "st4", pk=True)
        if c.eov:
            e2 = self.ffn_epi(ACC1.sub(0, 16), ACC1.sub(16, 16), 2, 0, "st3") + self.ffn_epi(ACC1.sub(32, 16), ACC1.sub(48, 16), 2, 256, "st4")
            def cut(l, nb):
                k = [i for i, x in enumerate(l) if x.op == "v_cvt_pk_bf16_f32"][2 * nb - 1] + 1 if nb else 0
                return k + 1 if k < len(l) and l[k].kind == "vms" else k
            e, light[:] = e[:cut(e, 8 - c.eov)], e2[cut(e2, 8 - c.eov):]
            for i in light:
                if i.kind != "vms": i.tag = "ra"
        assert 9 not in self.w2slot.values()
        assert all(x < min(18, 20 - c.nspl) for x in range(20) if 6 <= slab_slot(x) <= 8)
        seq = []
        for gi in range(18):
            bl = (1, 2, 3) if gi >= 18 - c.defer else (0, 1, 2, 3)
            if c.snake and gi < 17: bl = (1, 3, 2) if len(bl) == 3 else (0, 1, 3, 2)
            seq += [(gi, s, b) for b in bl for s in range(2)] if gi == 17 else [(gi, s, b) for s in range(2) for b in bl]
        seq += [(gi, s, 0) for gi in range(18 - c.defer, 18) for s in range(2)]
        if c.tbs:
            g1 = 18 - c.tbs
            assert c.defer <= c.tbs
            seq = [(gi, s, b) for gi in range(g1) for s in range(2) for b in range(4)]
            seq += [(gi, s, b) for gi in range(g1, 18) for s in range(2) for b in (2, 3)]
            seq += [(gi, s, b) for gi in range(g1, 18) for s in range(2) for b in ((1,) if gi >= 18 - c.defer else (1, 0))]
            seq += [(gi, s, 0) for gi in range(18 - c.defer, 18) for s in range(2)]
        last = {gi: max(m for m, x in enumerate(seq) if x[0] == gi) for gi in range(18)}
        first = {gi: min(m for m, x in enumerate(seq) if x[0] == gi) for gi in range(18)}
        lastb = {b: max(m for m, x in enumerate(seq) if x[2] == b) for b in range(4)}
        g6 = 10 if c.m_pb == -1 else 6
        st = {"q": [], "gate": g6 if c.pa2_epi < 0 else 4, "x": False, "m": -1, "sw": False}
        def refill():
            okw = self.w2_nd < 18 and len(pool) > (1 if self.w2_nd <= self.h_n else c.keep)
            okh = self.h_n < (max(st["gate"], c.nogate) if st["gate"] else 0) and len(pool) > 1
            if okh and c.tbs and self.h_n == 18 - c.tbs:
                assert self.w2_nd == 18 and st["x"] and len(pool) >= c.tbs + len(self.w2slot), len(pool)
                ls = [h_load() for _ in range(c.tbs)]
                for tb in (1, 0):
                    for l in ls: st["q"] += [l[0], l[1 + tb], l[3 + tb]]
            elif okh and not (okw and self.w2_nd <= self.h_n + c.wlead): st["q"] += h_load()
            elif okw: st["q"] += self.w2_load()
            elif not st["x"] and st["m"] >= 0 and not pend(light, "ra"):
                st["x"] = True
                st["q"] += [set_m0(sWQ, 9 * SLOT, "xs"), salu("s_mov_b32", sT[1], 16384 - 1024),
                            buf_dma(red[4], rX, 0, 0, tag="xs"), buf_dma(red[4], rX, sT[1], 1024, tag="xs")]
        def pump():
            if not st["q"]: refill()
            while st["q"]:
                x = st["q"].pop(0); add(x)
                if x.kind in ("dma", "vml"): return True
            return False
        step = max(1, len(e) * 3 // 4 // max(1, c.epi_mem))
        k = 0
        for n, i in enumerate(e):
            if self.B and not c.splf and n == c.f2_epi: add(self.flag(L_O, "st2"))
            if n == c.pa2_epi: add(self.poll_check(*self.pa2)); st["gate"] = g6
            if n % step == 0 and k < c.epi_mem: pump(); k += 1
            add(i)
        add(self.stamp(129))
        started = set()
        ra = [salu("s_add_u32", sT[2], sWQ, 6 * SLOT), valu("v_lshl_add_u32", red[0], vLane, 4, sT[2])] + [valu("v_xor_b32", red[b], b * 4096, red[0]) for b in (1, 2, 3)]
        ra += [salu("s_and_b32", sT[2], sP2x, 64), salu("s_mul_i32", sT[3], sT[2], 511), salu("s_add_u32", sT[3], sT[3], sP2x),
               valu("v_lshrrev_b32", red[4], 3, vLane), valu("v_and_b32", red[5], 7, vLane), valu("v_lshlrev_b32", red[5], 4, red[5]),
               valu("v_lshl_add_u32", red[4], red[4], 11, red[5]), valu("v_add_u32", red[4], sT[3], red[4]),
               salu("s_lshr_b32", sT[3], sW, 1), salu("s_lshl_b32", sT[3], sT[3], 13), salu("s_add_u32", sT[3], sT[3], sT[2]), salu("s_add_u32", sT[3], sT[3], 9 * SLOT),
               valu("v_and_b32", red[5], 16, vLane), valu("v_lshlrev_b32", red[5], 1, red[5]), valu("v_and_or_b32", red[5], vLane, 15, red[5]), valu("v_lshlrev_b32", red[5], 7, red[5]),
               valu("v_and_or_b32", red[5], vLane, 32, red[5]), valu("v_add_u32", red[5], sT[3], red[5])]
        vOW, vOR = [vA01, vA23], vPOLLH
        if c.otr:
            ra += [valu("v_and_b32", vOR, 7, vLane), valu("v_lshlrev_b32", vOR, 4, vOR), valu("v_xor_b32", vOW[0], vOR, red[5]), valu("v_xor_b32", vOW[1], 16, vOW[0]),
                   valu("v_lshrrev_b32", vOR, 3, vLane), valu("v_xor_b32", vOR, vOR, vLane), salu("s_add_u32", sT[3], sWQ, 9 * SLOT), valu("v_lshl_add_u32", vOR, vOR, 4, sT[3])]
        for i in ra: i.tag = "ra"
        light += ra
        used = set()
        for m, (gi, s, b) in enumerate(seq):
            st["m"] = m
            kind = self.GORD[gi][0]
            if gi in self.w2slot or pend(light, f"r{gi}"):
                add(light); light.clear()
                while gi in self.w2slot: add(self.w2_read())
            while gi >= self.w2_nd or pend(st["q"], f"g{gi}"): assert pump(), (m, gi)
            while gi >= self.h_n or any(i.wr & set(hreg[gi].sub(8 * s + 4 * (b >> 1), 4).regs()) for i in st["q"]) or (not c.tbs and pend(st["q"], f"h{gi}")): assert pump(), (m, gi)
            a = (accF if kind == "d" else accS)[b]
            if c.gwait == 1: add(wait_regs(hreg[gi].sub(8 * s, 8), wreg[gi].sub(8 * s, 8)))
            if c.gwait == 2: add(wait_regs(hreg[gi], wreg[gi]))
            if c.m16 & 2:
                for q in range(2):
                    aq = a.sub(8 * s + 4 * q, 4)
                    if q and light and cyc(light[0]) <= 4 and light[0].kind == "valu":
                        add(light.pop(0))
                        if light and cyc(light[0]) <= 4 and light[0].kind == "valu": add(light.pop(0))
                    add(mfma(16, aq, wreg[gi].sub(8 * q + 4 * (b & 1), 4), hreg[gi].sub(8 * s + 4 * (b >> 1), 4), aq if (kind, b, s) in started else 0))
                started.add((kind, b, s))
            else: add(mfma(32, a, wreg[gi].sub(8 * s + 4 * (b & 1), 4), hreg[gi].sub(8 * s + 4 * (b >> 1), 4), a if (kind, b) in started else 0))
            started.add((kind, b))
            add(self.jit(0.1))
            if m == last[gi]:
                pool += [hreg[gi], wreg[gi]]
                if gi + (2 if c.ofirst else 0) in (3, 4, 5): accS.append(pool.pop())
                if gi in c.sp: add(self.stamp(128))
            busy = False
            if m == c.m_f4: add(self.flag(L_L0 if (c.m_pe > 0 and not self.B) else L_END, "st4"), self.stamp()); busy = True
            lb, lc = (L_L0 if c.splf else L_O), (L_L0 if c.m_pe > 0 else L_END)
            for mm, ln in ((c.m_pb, lb), (c.m_pc, lc), (c.m_pe, L_END)):
                if m == mm - c.m_pd: add(self.poll_issue(vPOLL, rWS, ln)); busy = True
            if m in (c.m_pb - 1, c.m_pe - 1) or (m == c.m_pc - 1 and c.m_pb > 0 and c.m_pe > 0): add(valu("v_xor_b32", vTHR, 1, vTHR))
            if m == c.m_pe: add(self.poll_check(vPOLL, rWS, vTHR, L_END)); st["gate"] = 18
            if m == c.m_pb: add(self.poll_check(vPOLL, rWS, vTHR, lb)); st["gate"] = 10
            if m == c.m_pc: add(self.poll_check(vPOLL, rWS, vTHR if c.m_pe > 0 else 1, lc), self.stamp()); st["gate"] = 14 if c.m_pe > 0 else 18; self.pre += (self.w2_nd, self.h_n)
            used.add((gi, s, b >> 1))
            ahead = 4 * self.h_n - sum(1 for i in st["q"] if i.kind == "vml") - len(used)
            if ((m % c.vstep < c.vnum if m < c.m_v1 else m % 2 == 0) or ahead < c.ahead) and not busy: busy = pump()
            if not light and self.w2slot and pool and m >= first[min(self.w2slot)] - c.rlead: light += self.w2_read()
            if m == last[7 if c.ofirst else 9] + 2:
                add(light); light.clear()
                while any(6 <= s_ <= 8 for s_ in self.w2slot.values()): add(self.w2_read())
                st["sw"] = True
                heavy += [wait(lg=[f"r{g}" for g in range(18)])]
                heavy += [ds_write("ds_write_b128", red[0], accS[b2].sub(4 * q, 4), (b2 - 1) * SLOT + q * 1024, tag="sw") for b2 in (1, 2, 3) for q in range(0 if c.dbg & 16384 else 4)]
            if m == c.m_sb:
                while not st["x"] or pend(st["q"], "xs"):
                    g18, nd = st["gate"], self.w2_nd; st["gate"] = 0; self.w2_nd = 18; assert pump(); st["gate"], self.w2_nd = g18, nd
                add(heavy); heavy = []
                add(wait(vm="xs", lg="sw"), barrier()); busy = True
                light += [ds_read("ds_read_b128", xf.sub(8 * i + 4, 4), red[5], 16 * i) for i in range(2)]
                light += [ds_read("ds_read_b128", PR[b2].sub(4 * q, 4), red[b2], (b2 - 1) * SLOT + q * 1024) for b2 in (1, 2, 3) for q in range(4)]
                for b2 in range(4):
                    i = valu("v_subrev_u32", red[b2], 6 * SLOT, red[b2]); i.tag = "ra"; light.append(i)
                for h in range(2):
                    for i in range(4):
                        src = xf[8 * h + 4 + i]
                        pr = [valu("v_lshlrev_b32", xf[8 * h + 2 * i], 16, src), valu("v_and_b32", xf[8 * h + 2 * i + 1], "0xffff0000", src)]
                        light += pr
                light += [valu("v_add_f32", accS[0][i], accS[0][i], PR[1][i]) for i in range(16)] + [valu("v_add_f32", PR[2][i], PR[2][i], PR[3][i]) for i in range(16)]
                light += [valu("v_add_f32", accS[0][i], accS[0][i], PR[2][i]) for i in range(16)]
            for b2 in (1, 2, 3):
                if m == lastb[b2] + 2:
                    assert m > c.m_sb
                    while pend(light, "ra"): add(light.pop(0))
                    heavy += [ds_write("ds_write_b128", red[0], accF[b2].sub(4 * q, 4), (b2 - 1) * SLOT + q * 1024) for q in range(0 if c.dbg & 32768 else 4)]
            if c.fbar and not st.get("fb") and m > max(lastb[1], lastb[2], lastb[3]) + 2 and not heavy:
                st["fb"] = True
                add(light); light.clear()
                add(wait(lg="all"), barrier(), self.jit())
                light += [ds_read("ds_read_b128", PR[b2].sub(4 * q, 4), red[b2], (b2 - 1) * SLOT + q * 1024) for q in range(4) for b2 in (1, 2, 3)]
                if c.fbar == 2:
                    light += [valu("v_add_f32", PR[2][i], PR[2][i], PR[3][i]) for i in range(16)] + [valu("v_add_f32", PR[2][i], PR[2][i], PR[1][i]) for i in range(16)]
            budget = 11 if busy else 24
            if st.get("fb"): budget = 36
            if any(i.kind == "vms" for i in light):
                assert m < c.m_f4
                budget = c.ebud - (14 if busy else 0)
                if light[0].kind == "vms": add(light.pop(0)); budget = 0
            if heavy and not busy and (m % c.hstep == 0 or m > lastb[1] or m < c.m_sb):
                while heavy:
                    x = heavy.pop(0); add(x)
                    if x.kind == "dsw": break
                budget = 0
            while light and cyc(light[0]) <= budget:
                budget -= cyc(light[0]); add(light.pop(0))
        assert self.h_n == 18 and self.w2_nd == 18 and not self.w2slot and not st["q"] and st["x"]
        add(self.stamp())
        add(heavy, light)
        if not st.get("fb"):
            add(wait(lg="all"), barrier(), self.jit())
            for q in range(4):
                for b in (1, 2, 3): add(ds_read("ds_read_b128", PR[b].sub(4 * q, 4), red[b], (b - 1) * SLOT + q * 1024))
        Fp, Sp, t = accF[0], accS[0], PR[1]
        if c.dbg & 32: add(valu("v_mov_b32", vXO, OOB))
        if c.dbg & 64: add(salu("s_lshl2_add_u32", sT[1], sWG, sW), salu("s_lshl_b32", sT[1], sT[1], 11), valu("v_lshl_add_u32", vXO, vLane, 4, sT[1]))
        for hq in range(2):
            r2 = range(8 * hq, 8 * hq + 8, 2); r1 = range(8 * hq, 8 * hq + 8)
            if not (c.fbar == 2 and st.get("fb")):
                add([valu("v_pk_add_f32", PR[2].sub(i, 2), PR[2].sub(i, 2), PR[3].sub(i, 2)) for i in r2])
                add([valu("v_pk_add_f32", Fp.sub(i, 2), Fp.sub(i, 2), PR[1].sub(i, 2)) for i in r2])
            add([valu("v_pk_add_f32", Fp.sub(i, 2), Fp.sub(i, 2), PR[2].sub(i, 2)) for i in r2])
            add([valu("v_pk_mul_f32", t.sub(i, 2), Fp.sub(i, 2), T.sub(0, 2)) for i in r2])
            add([valu("v_exp_f32", t[i], t[i]) for i in r1])
            add([valu("v_pk_mul_f32", Sp.sub(i, 2), Sp.sub(i, 2), Fp.sub(i, 2)) for i in r2])
            add([valu("v_pk_add_f32", t.sub(i, 2), t.sub(i, 2), T.sub(2, 2)) for i in r2])
            add([valu("v_rcp_f32", t[i], t[i]) for i in r1])
            add([valu("v_pk_fma_f32", xf.sub(i, 2), Sp.sub(i, 2), t.sub(i, 2), xf.sub(i, 2)) for i in r2])
            add([valu("v_cvt_pk_bf16_f32", t[8 * hq + i], xf[8 * hq + 2 * i], xf[8 * hq + 2 * i + 1]) for i in range(4)])
            if c.otr: add(self.jit(), ds_write("ds_write_b128", vOW[hq], t.sub(8 * hq, 4)))
            else: add(buf_store("buffer_store_dwordx4", t.sub(8 * hq, 4), vXO, rOUT, 0, (1024 if c.dbg & 64 else 16) * hq, flags=c.outflags))
        if c.otr:
            add(salu("s_movk_i32", sT[1], 16384), wait(lg="all"), barrier(), [ds_read("ds_read_b128", xf.sub(4 * i, 4), vOR, 1024 * i) for i in range(2)])
            add([buf_store("buffer_store_dwordx4", xf.sub(4 * i, 4), red[4], rOUT, sT[1] if i else 0, flags=c.outflags) for i in range(2)])

    def finish(self):
        add = self.add
        if self.cfg.stamps:
            add(raw(f"{self.cfg.clock} s[14:15]", "smem"))
            add(wait(vm="all"))
            add(raw(f"{self.cfg.clock} s[16:17]\n    s_waitcnt lgkmcnt(0)", "smem"))
            add(valu("v_mov_b32", V(96), 0))
            for i in range(self.nst): add(raw(f"v_writelane_b32 v96, s{STAMPS[i]}, {1+i}", "valu", wr=["v96"]))
            add(raw(f"v_writelane_b32 v96, s{ST0}, 0", "valu", wr=["v96"]), raw(f"v_writelane_b32 v96, s14, {1+self.nst}", "valu", wr=["v96"]),
                raw(f"v_writelane_b32 v96, s16, {2+self.nst}", "valu", wr=["v96"]))
            add(salu("s_lshl_b32", sT[1], sWG, 2), salu("s_add_u32", sT[1], sT[1], sW), salu("s_lshl_b32", sT[1], sT[1], 6), salu("s_add_u32", sT[1], sT[1], STAMP_OFF),
                valu("v_lshl_add_u32", V(97), vLane, 2, sT[1]), salu("s_mov_b64", "exec", "0xffff"), buf_store("buffer_store_dword", V(96), V(97), rWS))
        add(raw("s_endpgm", "end"))

    def program(self):
        NS[0] = self.cfg.NS
        if self.cfg.ofirst:
            assert self.cfg.m_pb == -1
            G = Gen.GORD
            self.GORD = G[:4] + G[6:10] + G[4:6] + G[10:]
        assert self.cfg.NS <= (7 if self.B else 9)
        self.w2slot, self.slot_used, self.w2pos = {}, {}, {"d": 0, "o": 0}
        self.w2_nd = self.w2_nr = 0
        self.win2 = [0, 0]
        self.xf_n = 0
        self.h_n, self.hreg, self.wreg, self.hpos = 0, {}, {}, {"d": 0, "o": 0}
        self.e.comment('phase 0'); self.ramp(); self.e.comment('phase 1'); self.phase1(); self.e.comment('phase 2')
        self.pre = (self.w2_nd, len(self.w2slot), self.h_n)
        if not self.cfg.p1only: self.phase2()
        self.finish()
        return self.e.text() + self.slow

HEAD = open("recurrent_scan__sliding_local_dilated__swiglu_ffn__prompt.s.ref").read().split("; Override launch")[0]

DOC = """; One persistent launch, one workgroup (4 waves, 512 registers each) per CU; tokens are kept in parity-split order.
;  phase 1: 128 tokens x 320 weight columns per workgroup, weights streamed through an LDS ring (LDS-DMA + transposing reads),
;           B: k,v | q | gate,up with the dilated window attention done on 4x4x4 MFMAs; C: 2.5 gate/up pairs; h and o go to d_ws.
;  phase 2: 64 x 64 output tile per workgroup, K split over the waves, reduced through LDS; out = x + s * silu(ffn).
; Hand-offs: write-through (sc1) stores, counted wait, flag word; flag lines are cleared inside the launch (announced through d_debug).
"""
def build(cfg):
    s = HEAD + "; @launch grid=(256,1,1) block=(256,1,1) lds=163840\n"
    s += DOC
    s += f'.amdgcn_target "amdgcn-amd-amdhsa--gfx950"\n.text\n.globl {KNAME}\n.p2align 8\n.type {KNAME},@function\n{KNAME}:\n'
    s += f"""    s_cmp_ge_u32 s2, 256
    s_cbranch_scc0 L_go
    s_endpgm
L_go:
"""
    if cfg.stamps: s += f"    {cfg.clock} s[{ST0}:{ST0+1}]\n"
    s += f"""    s_load_dwordx2 s[24:25], s[0:1], 0
    s_load_dwordx16 s[4:19], s[0:1], 0
    s_load_dwordx4 s[20:23], s[0:1], 64
    v_lshrrev_b32 v1, 6, v0
    s_getpc_b64 s[28:29]
    v_readfirstlane_b32 {sW}, v1
    s_bfe_u32 s26, s2, 0x30003
    s_lshl_b32 s26, s26, 13
    v_lshrrev_b32 v2, 2, v0
    v_lshl_add_u32 v2, v2, 7, s26
    v_min_u32 v2, L_end-L_go-256, v2
    global_load_dword v3, v2, s[28:29]
    v_and_b32 {vLane}, 63, v0
    v_lshrrev_b32 v96, 3, {vLane}
    v_and_b32 v97, 7, v0
    s_lshl_b32 {sWQ}, {sW}, 12
    s_cmp_ge_u32 s2, 128
    s_cbranch_scc1 L_typeC
"""
    info = {}
    for typ in ("B", "C"):
        g = Gen(typ, cfg)
        g.e.vm.append(("pf", {"v3"}))
        s += f"L_type{typ}:\n" + g.program()
        info[typ] = (g.e.slots, g.e.nops, dict(g.e.count), [sum(max(32, 24 + x) for x in g.load[i:i + 32]) for i in range(0, 320, 32)], g.pre, g.nst + 3)
    s += "L_end:\n"
    s += f""".section .rodata,"a"
.p2align 6
.amdhsa_kernel {KNAME}
  .amdhsa_next_free_vgpr 512
  .amdhsa_next_free_sgpr 102
  .amdhsa_accum_offset 256
  .amdhsa_group_segment_fixed_size 0
  .amdhsa_kernarg_size 80
  .amdhsa_user_sgpr_count 2
  .amdhsa_user_sgpr_kernarg_segment_ptr 1
  .amdhsa_system_sgpr_workgroup_id_x 1
.end_amdhsa_kernel
"""
    return s, info

if __name__ == "__main__":
    cfg = Cfg()
    out = sys.argv[1]
    for a in sys.argv[2:]:
        k, v = a.split("=")
        assert hasattr(cfg, k) or hasattr(cfg, k[:-2]), k
        if k in ("outflags", "hflags", "pflags", "wflags"): v = v.replace("_", " ")
        elif k in ("sg", "sp", "xr", "xr_B", "xr_C"): v = [int(x) for x in v.split(",")]
        elif k not in ("clock", "planB", "planC"): v = int(v)
        setattr(cfg, k, v)
    s, info = build(cfg)
    open(out, "w").write(s)
    for k, v in info.items(): print(k, v)
```

```python
import sys, struct
sys.path.insert(0, "tools")
from emit import *
from asmlib import KNAME

FLAG_OFF, XN_OFF, HALO_OFF, WS_USED = 0x910000, 0x938000, 0xB38000, 0xF00000
WT_OFF, P6_OFF = 0xC01000, 0xE50000
L_HALO, L_P1, L_HALF, L_O, L_L0, L_END = [128 * i for i in range(6)]
FLAGA_OFF = 0x930000
STAMP_OFF = 0xB80000
OOB = 0x40000000
SLOT = 16384
HSTR = 145 * 1024
RP = 272
SCR = 7 * SLOT
SPARE = SCR + 137 * RP
LOG2E = 1.4426950408889634
def f32(x): return "0x%08x" % struct.unpack("<I", struct.pack("<f", x))[0]

class Cfg:
    stamps = 0
    clock = "s_memrealtime"
    sg = ()
    sp = ()
    p1only = 0
    LA = 8
    NB = 10
    spin = 1000000
    cbx = 0
    rot = 0
    sleep = 0
    cone = 1
    px = 0
    ofirst = 0
    fbar = 0
    hstep = 2
    tbs = 6
    eov = 0
    ebud = 28
    nogate = 0
    jitter = 0
    bq = 1
    th1 = 1
    otr = 1
    chain = 1
    dpos = 1
    w_c0 = 3
    p0 = 1
    rlate = 0
    m16 = 0
    wstep = 4
    sconst = 1
    gwait = 0
    halo3 = 1
    c_delay = 1
    b_lean = 0
    xr = (2, 4, 6, 8, 4)
    splf = 0
    bar2 = 8
    map2 = 0
    one_pa = 0
    q_early = 1
    patom = 0
    f2_lag = 24
    rsel = 1
    tx = 1
    b_rest = None
    tlin = 0
    wo_late = -1
    sig_early = 0
    nodbg = 0
    f2_epi = -1
    pa2_epi = -1
    dbg = 0
    nspl = 0
    e0_end = 312
    f3_at = 30
    setup_early = 0
    w_0 = 0
    w_a = 0
    w_b = 3
    w_c = 4
    nx0 = 8
    xrate = 5
    planB = "6:l,7:l,8:l,9:l,10:l,11:P.l,12:l.H,13:l,14:l,15:l.l,16:l.d6,17:l.d0,18:h.h,19:h.h.l"
    planC = "6:l,7:l,8:l,9:l.w,10:l,11:l,12:l,13:l,14:l,15:l.l,16:l.l,17:l.d8,18:h.h,19:h.h.d7"
    ts_pos = -1
    f2_bar = 2
    pw_lead = 14
    pw_per = 6
    NS = 7
    xfree = 1
    kv_end = 141
    kv_mode = 5
    kw_end = 214
    p6_per = 4
    c_rest = 5
    c_tile = -1
    g_flag1 = 163
    g_halo = 200
    att_w = 24
    g_f1c = 210
    g_pa = 262
    h2_end = 240
    g_f2c = 264
    g_pa2 = 304
    epi_mem = 8
    m_f4 = 24
    m_pe = -99
    pa_per = 18
    m_f3 = -1
    m_pb = 24
    m_pc = 68
    m_pd = 12
    m_sb = 106
    defer = 4
    vstep = 1
    vnum = 1
    m_v1 = 0
    wlead = 1
    rlead = 12
    keep = 4
    ahead = 12
    outflags = "sc1"
    hflags = "sc1"
    pflags = "sc1"
    wflags = ""
    snake = 0

sWG = S(2)
pX, pQKV, pWO, pG, pU, pD, pOUT, pDBG, pWS = S(4, 2), S(6, 2), S(8, 2), S(12, 2), S(14, 2), S(16, 2), S(18, 2), S(20, 2), S(22, 2)
rX, rQKV, rGU, rD, rWO, rOUT, rWS, rDBG = S(24, 4), S(28, 4), S(32, 4), S(36, 4), S(40, 4), S(44, 4), S(48, 4), S(52, 4)
sW, sRB, sGQ, sJ, sTB2, sCB2, sWQ = S(56), S(57), S(58), S(59), S(60), S(61), S(62)
sT = [S(3), S(63), S(64), S(65)]
sM1, sM2 = S(66, 2), S(68, 2)
sHM0, sXS = S(70), S(71)
sJ1, sJ2, sJ3 = S(72, 2), S(74, 2), S(76, 2)
sTHR, sCNT = S(78), S(79)
sU = [S(60), S(61), S(58), S(59)]
sUh = [S(0), S(1)]
sHu = [S(4), S(5), S(6)]
sCS, sC1, sHd, sHo = S(7), S(8), S(9), S(10)
sWd, sWo, sWS, sW0 = S(40), S(41), S(42), S(43)
sOA = [0, S(11), S(12), S(13)]
sOB = [0, S(14), S(15), S(16)]
sNL, sH3 = S(17), S(18)
sP2h, sP2f, sP2x, sHS = S(20), S(21), S(22), S(23)
STAMPS = list(range(82, 102, 2))
ST0 = 80

ACC1, ACC2 = V(0, 64), V(64, 32)
VBUF = [V(96 + 16 * i, 16) for i in range(8)]
KA, SG = V(176, 24), V(200, 16)
T = V(224, 8)
(vF2, vA23, vA01, vP2, vHRB, vWB, vDMA2, vDMA1, vW1, vFV, vPV, vW0, vPOLL, vHALO, vPOLLH, vHLD,
 vFLG, vVTR, vSCR, vHST, vDMA0, vTR1, vTR0, vLane) = [V(232 + i) for i in range(24)]
vW = [vW0, vW1]
vP6 = vA01
vHLD2, vFH = V(222), V(223)
vXN = V(216)
vTCH = [V(217), V(218), V(219), V(220), V(221)]
vH = [vHRB, vHALO]
vXO, vTHR = vDMA1, vDMA0
X = A(0, 128)
WF = A(128, 40)
aDUM = A(168)
ABUF = [A(176 + 16 * i, 16) for i in range(5)]
NS = [5]
def slab_slot(n): return n % NS[0]

def cyc(i):
    k = i.kind
    if k in ("wait", "waitr", "waitcnt", "mfma"): return 0
    if k == "trans": return 8
    if k in ("dma", "vml"): return 14
    if k == "vms": return 30 if i.op.endswith("x4") else 20
    if k == "dsw": return 26
    if k == "dsr": return 11 if i.op.endswith("b128") else 4
    if k == "bar": return 14
    if k == "branch": return 8
    return 4

class Gen:
    def __init__(self, typ, cfg):
        self.typ, self.cfg = typ, cfg
        self.B = typ == "B"
        import copy
        self.cfg = cfg = copy.copy(cfg)
        for k, v in list(vars(cfg).items()) + list(vars(Cfg).items()):
            if k.endswith('_' + typ): setattr(cfg, k[:-2], getattr(cfg, k))
        self.e = Emitter()
        self.nst = 0
        self.nlab = 0
        self.slow = ""
        self.mid = []
        import random
        self.rng, self.njit = random.Random(cfg.jitter * 2 + self.B), 0
        self.TR = [vTR0, vTR1, T[6], T[7]] if self.B else [vTR0, vTR1, vA23, vPOLLH, vVTR, vHLD]
    def add(self, *ins):
        for i in ins: self.e.add(i)
    def stamp(self, mode=1):
        if not (self.cfg.stamps & mode): return self.jit(0.6)
        r = S(STAMPS[self.nst], 2); self.nst += 1
        return [raw(f"{self.cfg.clock} {r}", "smem")]
    def jit(self, p=1.0):
        if not self.cfg.jitter or self.rng.random() > p: return []
        self.njit += 1
        l = f"L_{self.typ}_j{self.njit}"
        if self.rng.random() < 0.7: cond = f"s_cmp_eq_u32 {sW}, {self.rng.randrange(4)}"
        else: cond = f"s_bitcmp1_b32 {sWG}, {self.rng.randrange(7)}"
        return [raw(f"{cond}\n    s_cbranch_scc0 {l}\n    s_sleep {self.rng.choice((2, 8, 20, 60))}\n{l}:", "branch")]
    def touch(self, va, srd, flags=""):
        i = buf_load("buffer_load_dword", aDUM, va, srd, flags=flags)
        i.wr = set()
        return [i]
    def poll_text(self, vaddr, srd, off):
        n = {str(vPOLL): (8, 1), str(vPOLLH): (1, 2), str(vP2): (48, 4), str(vP6): (32, 4), "v105": (2, 8), "v106": (8, 16)}[str(vaddr)]
        if not self.cfg.patom & n[1]: return None
        return (f"v_mov_b32 {vPV}, 15\n    s_bfm_b64 exec, {n[0]}, 0\n    v_mov_b32 {vPV}, 0\n"
                f"    buffer_atomic_add {vPV}, {vaddr}, {srd}, 0 offen offset:{off} sc0 sc1\n    s_mov_b64 exec, -1")
    def poll_issue(self, vaddr, srd, off=0):
        t = self.poll_text(vaddr, srd, off)
        if t:
            i = buf_load("buffer_load_dword", vPV, vaddr, srd, 0, off); i.text = t
            return [i]
        return [buf_load("buffer_load_dword", vPV, vaddr, srd, 0, off, flags=self.cfg.pflags)]
    def poll_check(self, vaddr, srd, thr, off=0):
        self.nlab += 1
        l = f"L_{self.typ}_p{self.nlab}"
        sl = f"    s_sleep {self.cfg.sleep}\n" if self.cfg.sleep else ""
        if self.cfg.stamps & 512:
            sl += f"    s_add_u32 s{STAMPS[self.nlab - 1]}, s{STAMPS[self.nlab - 1]}, 1\n"; self.nst = 8
        self.slow += (f"{l}_slow:\n    s_mov_b32 {sCNT}, 0\n{l}_spin:\n"
                f"{sl}    {self.poll_issue(vaddr, srd, off)[0].text}\n    s_add_u32 {sCNT}, {sCNT}, 1\n    s_waitcnt vmcnt(0)\n"
                f"    v_cmp_gt_u32 vcc, {thr}, {vPV}\n    s_cmp_ge_u32 {sCNT}, {self.cfg.spin}\n    s_cbranch_scc1 {l}_ok\n"
                f"    s_cbranch_vccnz {l}_spin\n    s_branch {l}_ok\n")
        return [valu("v_cmp_gt_u32", "vcc", thr, vPV), raw(f"s_cbranch_vccnz {l}_slow\n{l}_ok:", "branch")]
    def flag(self, stage, tag):
        return [wait(vm=tag), buf_store("buffer_store_dword", vFV, vFLG, rWS, 0, stage, flags="sc1")]

    def ramp(self):
        c, add, B = self.cfg, self.add, self.B
        t0, t1, t2, t3 = V(96), V(97), V(98), V(99)
        vXL, vXS, vRS, vST, vF0, vP0, vDB, vTLB, vSG, vXR, vTL, vTS = [V(100 + i) for i in range(12)]
        vR2, vTB0, vTB1, vPL, vPS = [V(162 + i) for i in range(5)]
        tl, p6 = V(168, 16), V(184, 4)
        xr, lo, z, part = V(112, 16), V(128, 16), V(144, 4), V(148, 8)
        sm, sq, one = V(156), V(157), V(158)
        rb = V(160, 2)
        srd = lambda r, p, n: [salu("s_mov_b32", r[0], p[0]), salu("s_mov_b32", r[1], p[1]), salu("s_mov_b32", r[2], n), salu("s_mov_b32", r[3], "0x20000")]
        gu = [salu("s_cmp_lt_u32", None, sW, 2), salu("s_cselect_b32", rGU[0], pG[0], pU[0]), salu("s_cselect_b32", rGU[1], pG[1], pU[1])]
        sizes = ((rX, pX, 2048 * 1024), (rWS, pWS, WS_USED), (rDBG, pDBG, 256), (rQKV, pQKV, 512 * 3072), (rOUT, pOUT, 2048 * 1024))
        XL = 8 * SLOT
        self.nslab = 0
        if c.stamps & 1024:
            add(raw(f"s_getreg_b32 s{STAMPS[0]}, hwreg(HW_REG_XCC_ID)\n    s_getreg_b32 s{STAMPS[1]}, hwreg(HW_REG_HW_ID)", "salu")); self.nst = 2
        if c.stamps & 512: add([salu("s_mov_b32", S(r), 0) for r in STAMPS])
        add(self.stamp(256))
        TL = (7 if B else 9) * SLOT
        roles = [salu("s_lshr_b32", sT[0], sWG, 3), salu("s_and_b32", sT[1], sWG, 7), salu("s_and_b32", sRB, sWG, 1), salu("s_lshl_b32", sRB, sRB, 3),
                 salu("s_and_b32", sT[2], sT[0], 7), salu("s_add_u32", sRB, sRB, sT[2]), salu("s_lshr_b32", sGQ, sT[1], 1), salu("s_lshr_b32", sJ, sT[0], 3),
                 salu("s_lshl_b32", sTB2, sT[1], 2), salu("s_and_b32", sT[2], sT[0], 3), salu("s_add_u32", sTB2, sTB2, sT[2]), salu("s_lshr_b32", sCB2, sT[0], 2)]
        if c.map2 == 1:
            roles = roles[:8] + [salu("s_and_b32", sT[2], sT[0], 7), salu("s_lshl3_add_u32", sTB2, sGQ, sT[2]), salu("s_and_b32", sT[2], sWG, 1), salu("s_lshl2_add_u32", sCB2, sT[2], sJ)]
        if c.map2 == 2:
            roles = roles[:8] + [salu("s_lshr_b32", sT[2], sT[0], 2), salu("s_lshl3_add_u32", sTB2, sGQ, sT[2]), salu("s_and_b32", sT[2], sWG, 1), salu("s_and_b32", sCB2, sT[0], 3),
                                 salu("s_lshl2_add_u32", sCB2, sT[2], sCB2)]
        if c.map2 == 3:
            roles = roles[:8] + [salu("s_lshl2_add_u32", sTB2, sT[1], sJ), salu("s_and_b32", sCB2, sT[0], 7)]
        if c.cbx: roles += [salu("s_xor_b32", sCB2, sCB2, c.cbx)]
        def tile_setup():
            if B:
                o = [salu("s_lshl2_add_u32", sT[1], sRB, sW), salu("s_lshl_b32", sT[2], sT[1], 13), salu("s_lshl1_add_u32", sT[3], sGQ, sJ)] + srd(rD, pWO, 512 * 1024)
            else:
                o = [salu("s_lshr_b32", sT[1], sW, 1), salu("s_lshl1_add_u32", sT[1], sT[0], sT[1]), salu("s_lshl_b32", sT[2], sT[1], 15),
                     salu("s_xor_b32", sCNT, sGQ, c.tx), salu("s_and_b32", sT[3], sW, 1), salu("s_lshl1_add_u32", sT[3], sCNT, sT[3])] + srd(rD, pD, 1792 * 1024)
            o += [salu("s_lshl_b32", sCNT, sT[3], 7), salu("s_add_u32", sT[2], sT[2], sCNT),
                  valu("v_lshrrev_b32", t2, 2, vLane), valu("v_and_b32", t2, 4, t2), valu("v_xor_b32", t2, t2, t1), valu("v_lshlrev_b32", t2, 4, t2),
                  valu("v_lshl_add_u32", t2, t0, 10, t2), valu("v_add_u32", vTL, sT[2], t2)]
            o += [salu("s_mul_i32", sT[2], sT[3], 72 * 4096), salu("s_lshl_b32", sT[1], sT[1], 10 if B else 12), salu("s_add_u32", sT[2], sT[2], sT[1]),
                  salu("s_add_u32", sT[2], sT[2], WT_OFF + (56 * 4096 if B else 0)),
                  ]
            if B: o += [salu("s_lshl4_add_u32", sT[1], sT[3], sRB)]
            else: o += [salu("s_lshl_b32", sT[1], sGQ, 5), salu("s_add_u32", sT[1], sT[1], sT[0])]
            o += [salu("s_and_b32", sT[3], sT[1], 7), salu("s_lshr_b32", sT[1], sT[1], 3), salu("s_lshl_b32", sT[1], sT[1], 7), salu("s_lshl2_add_u32", sT[1], sT[3], sT[1]),
                  salu("s_add_u32", sT[1], sT[1], FLAGA_OFF + (80 if B else 64) * 128)]
            if not B: o += [salu("s_cmp_lt_u32", None, sRB, 14), salu("s_cselect_b32", sT[2], sT[2], OOB)]
            o += [salu("s_cmp_eq_u32", None, sW, 0), salu("s_cselect_b32", sT[1], sT[1], OOB),
                  valu("v_lshl_add_u32", vTS, vLane, 4, sT[2]), valu("v_mov_b32", vF2, OOB), raw(f"v_writelane_b32 {vF2}, {sT[1]}, 0", "valu", rd=[vF2], wr=[vF2])]
            return o
        def tile_store():
            o = [valu("v_bfe_u32", t2, vLane, 2, 2), valu("v_lshrrev_b32", t3, 5, vLane), valu("v_lshl_add_u32", vTB0, t3, 4 if B else 2, t2), valu("v_lshlrev_b32", vTB0, 7, vTB0),
                 valu("v_lshrrev_b32", t2, 1, t2), valu("v_lshl_add_u32", vTB0, t2, 6, vTB0), valu("v_and_b32", t2, 1, vLane), valu("v_lshl_add_u32", vTB0, t2, 5, vTB0),
                 valu("v_and_or_b32", vTB0, vLane, 16, vTB0), valu("v_and_b32", t2, 2, vLane), valu("v_lshl_add_u32", vTB0, t2, 2, vTB0)]
            if B:
                o += [salu("s_and_b32", sT[1], sW, 1), salu("s_lshl_b32", sT[1], sT[1], 6), valu("v_xor_b32", vTB0, sT[1], vTB0),
                      salu("s_lshr_b32", sT[1], sW, 1), salu("s_lshl_b32", sT[1], sT[1], 10), salu("s_add_u32", sT[1], sT[1], TL), valu("v_add_u32", vTB0, sT[1], vTB0)]
                return o, [ds_read("ds_read_b64_tr_b16", tl.sub(2 * u, 2), vTB0, u * 512) for u in range(2)], [buf_store("buffer_store_dwordx4", tl.sub(0, 4), vTS, rWS, flags="sc1", tag="ts")]
            o += [salu("s_add_u32", sT[1], sWQ, TL), valu("v_add_u32", vTB0, sT[1], vTB0), valu("v_xor_b32", vTB1, 64, vTB0), wait(vm="tl")]
            for s_ in range(2):
                for cb in range(2):
                    for u in range(2): o += [ds_read("ds_read_b64_tr_b16", tl.sub(8 * s_ + 4 * cb + 2 * u, 2), (vTB0, vTB1)[cb], s_ * 2048 + u * 1024)]
            return o, [buf_store("buffer_store_dword", vFV, vF2, rWS, 0, 2048 if c.cone else 0, flags="sc1")], [buf_store("buffer_store_dwordx4", tl.sub(4 * i, 4), vTS, rWS, 0, 1024 * i, flags="sc1", tag="ts") for i in range(2 if c.dbg & 2048 else 4)]
        if B:
            if c.p0 == 1:
                add(salu("s_and_b32", sT[2], sWG, 63), salu("s_lshl_b32", sT[2], sT[2], 15), salu("s_lshr_b32", sT[1], sWG, 6), salu("s_lshl2_add_u32", sT[1], sT[1], sW),
                    salu("s_lshl_b32", sT[1], sT[1], 8), salu("s_add_u32", sT[1], sT[1], sT[2]),
                    valu("v_xor_b32", t2, t0, t1), valu("v_lshlrev_b32", t2, 4, t2), valu("v_lshl_add_u32", vXL, t0, 11, t2),
                    salu("s_add_u32", sXS, sT[1], 16384 - 1024), srd(*sizes[0])[2:], set_m0(sWQ, XL, "x"))
                add(self.stamp(256), raw("s_waitcnt lgkmcnt(0)", "waitcnt"), self.stamp(256))
                add(buf_dma(vXL, rX, sT[1], 0, tag="x"), buf_dma(vXL, rX, sXS, 1024, tag="x"), set_m0(sWQ, XL + 2048 - 128, "x"), salu("s_mov_b32", rWS[0], pWS[0]),
                    buf_dma(vXL, rX, sT[1], 128, tag="x"), buf_dma(vXL, rX, sXS, 1024 + 128, tag="x"))
            else:
                add(salu("s_and_b32", sT[2], sWG, 63), salu("s_lshl2_add_u32", sT[2], sT[2], sW), salu("s_lshr_b32", sT[1], sWG, 6), salu("s_lshl3_add_u32", sT[1], sT[2], sT[1]),
                    salu("s_lshl_b32", sT[1], sT[1], 10), valu("v_lshl_add_u32", vXL, vLane, 4, sT[1]), salu("s_mul_i32", sCNT, sW, 4352),
                    salu("s_movk_i32", sT[1], 960), salu("s_movk_i32", sT[2], 1920), salu("s_movk_i32", sT[3], 2880), srd(*sizes[0])[2:], set_m0(sCNT, XL, "x"))
                add(self.stamp(256), raw("s_waitcnt lgkmcnt(0)", "waitcnt"), self.stamp(256))
                add([buf_dma(vXL, rX, sT[i] if i else 0, 1088 * i, tag="x") for i in range(4)], salu("s_mov_b32", rWS[0], pWS[0]))
                add(valu("v_and_b32", vST, 3, vLane), valu("v_mul_u32_u24", t2, 1088, vST), valu("v_lshrrev_b32", vXL, 2, vLane), valu("v_lshl_add_u32", t2, vXL, 4, t2),
                    salu("s_add_u32", sCNT, sCNT, XL), valu("v_add_u32", vXR, sCNT, t2))
            add(self.stamp(256))
            add(srd(*sizes[1])[1:])
            if c.rsel: add(salu("s_lshr_b32", sT[1], sWG, 3), salu("s_and_b32", sT[2], sWG, 1), salu("s_lshl1_add_u32", sT[1], sT[1], sT[2]), salu("s_and_b32", sT[3], sWG, "0xe6"))
            else: add(salu("s_mov_b32", sT[1], sWG), salu("s_lshr_b32", sT[3], sWG, 3))
            add(salu("s_lshl_b32", sT[2], sT[1], 11), salu("s_add_u32", sT[2], sT[2], FLAGA_OFF), salu("s_lshl_b32", sT[1], sT[1], 2),
                salu("s_or_b32", sT[3], sT[3], sW), salu("s_cselect_b32", sT[2], OOB, sT[2]), salu("s_cselect_b32", sT[1], OOB, sT[1]),
                salu("s_lshl_b32", sT[3], sWG, 10), salu("s_add_u32", sT[3], sT[3], FLAG_OFF), salu("s_cmp_eq_u32", None, sW, 1),
                [salu("s_cselect_b32", sT[3], sT[3], OOB), valu("v_lshl_add_u32", vR2, vLane, 4, sT[3]), salu("s_mov_b32", sT[3], 7)] if c.rlate else
                [salu("s_cselect_b32", sT[2], sT[3], sT[2]), salu("s_cselect_b32", sT[3], 6, 7)],
                valu("v_lshrrev_b32", t2, 2, vLane), valu("v_and_b32", t3, 3, vLane), valu("v_lshlrev_b32", t3, 4, t3), valu("v_lshl_add_u32", t2, t2, sT[3], t3),
                valu("v_add_u32", vRS, sT[2], t2), valu("v_mov_b32", vSG, sT[1]), [valu("v_mov_b32", z[i], 0) for i in range(4)])
            add(buf_store("buffer_store_dwordx4", z, vRS, rWS, flags="sc1", tag="reset"))
            add(roles)
            for q in sizes[2:]: add(srd(*q))
            if c.bq:
                add(salu("s_lshl1_add_u32", sT[0], sRB, sJ), salu("s_lshl2_add_u32", sT[1], sT[0], sW), salu("s_mul_i32", sT[1], sT[1], 4 * 3072), salu("s_lshl_b32", sT[2], sGQ, 8),
                    salu("s_add_u32", sT[1], sT[1], sT[2]),
                    valu("v_min_u32", t2, 5, t1), valu("v_and_b32", t3, 1, t2), valu("v_lshrrev_b32", t2, 1, t2), valu("v_lshl_add_u32", t2, t2, 3, t3),
                    valu("v_and_b32", t3, 3, t0), valu("v_mul_u32_u24", t3, 3072, t3), valu("v_lshl_add_u32", t2, t2, 7, t3), valu("v_add_u32", t2, sT[1], t2), self.touch(t2, rQKV))
            add(gu, srd(rGU, pG, 512 * 3584)[2:], tile_setup())
            if c.wo_late == -1: add(salu("s_lshr_b32", sT[1], sWQ, 2), set_m0(sT[1], TL, "tl"), buf_dma(vTL, rD, tag="tl"))
        else:
            add(roles)
            add(salu("s_lshl_b32", sT[0], sRB, 1), salu("s_add_u32", sT[0], sT[0], sJ), salu("s_sub_u32", sT[0], sT[0], 2),
                valu("v_and_b32", t3, 1, t1), [] if c.bq else [
                salu("s_lshl2_add_u32", sT[1], sT[0], sW), salu("s_mul_i32", sT[1], sT[1], 4 * 3072), salu("s_lshl_b32", sT[2], sGQ, 8), salu("s_add_u32", sT[1], sT[1], sT[2]),
                valu("v_and_b32", t2, 3, t0), valu("v_mul_u32_u24", t2, 3072, t2), valu("v_lshl_add_u32", t2, t3, 7, t2),
                valu("v_add_u32", vTCH[3], sT[1], t2), valu("v_bfe_u32", t2, t1, 1, 1), valu("v_add_u32", t2, 1, t2), valu("v_lshl_add_u32", vTCH[1], t2, 10, vTCH[3])],
                salu("s_and_b32", sT[2], sW, 1), salu("s_lshl1_add_u32", sT[1], sT[0], sT[2]), salu("s_mul_i32", sT[1], sT[1], 8 * 3584),
                salu("s_mul_i32", sT[2], sGQ, 7 * 128), salu("s_add_u32", sT[1], sT[1], sT[2]),
                valu("v_mul_u32_u24", t2, 3584, t0), valu("v_add_u32", t2, sT[1], t2), valu("v_lshl_add_u32", vTCH[0], t3, 7, t2))
            if c.tlin:
                add(salu("s_sub_u32", sT[2], sWG, 128), salu("s_lshl2_add_u32", sT[3], sT[2], sW), salu("s_mul_i32", sCNT, sT[3], 3072),
                    valu("v_min_u32", vTCH[1], 23, vLane), valu("v_lshl_add_u32", vTCH[1], vTCH[1], 7, sCNT),
                    salu("s_mul_i32", sCNT, sT[3], 3584), valu("v_min_u32", vTCH[4], 27, vLane), valu("v_lshl_add_u32", vTCH[4], vTCH[4], 7, sCNT),
                    salu("s_and_b32", sT[3], sW, 1), salu("s_lshl1_add_u32", sT[3], sT[2], sT[3]), salu("s_mul_i32", sT[3], sT[3], 7168),
                    valu("v_min_u32", vTCH[0], 55, vLane), valu("v_lshl_add_u32", vTCH[0], vTCH[0], 7, sT[3]))
            add([] if c.bq else srd(*sizes[3])[2:], srd(rGU, pG, 512 * 3584)[2:])
            add(self.stamp(256), raw("s_waitcnt lgkmcnt(0)", "waitcnt"), self.stamp(256))
            if c.c_delay:
                add(salu("s_mov_b32", sT[3], sT[1]), [self.dma_setup(ch) for ch in range(3)], salu("s_mov_b32", sT[1], sT[3]))
            if c.tlin == 2: add(srd(rD, pD, 1792 * 1024), self.touch(vTCH[4], rD))
            add([] if c.bq else srd(*sizes[3])[:2] + self.touch(vTCH[1], rQKV), gu, self.touch(vTCH[0], rGU), self.stamp(256))
            add(valu("v_and_b32", t3, 3, t1), valu("v_add_u32", t3, 2, t3), valu("v_lshl_add_u32", vTCH[2], t3, 7, t2),
                valu("v_bfe_u32", t2, vLane, 2, 3), valu("v_mul_u32_u24", t2, 3584, t2), valu("v_bfe_u32", t3, vLane, 4, 1), valu("v_xor_b32", t3, t3, vLane), valu("v_and_b32", t3, 3, t3),
                valu("v_lshl_add_u32", t2, t3, 4, t2),
                valu("v_lshrrev_b32", t3, 5, vLane), valu("v_lshl_add_u32", t2, t3, 6, t2), salu("s_add_u32", sT[1], sT[1], 768), valu("v_add_u32", vPL, sT[1], t2),
                buf_load("buffer_load_dwordx4", p6, vPL, rGU),
                salu("s_lshr_b32", sT[1], sT[0], 3), salu("s_lshl_b32", sT[1], sT[1], 14), salu("s_and_b32", sT[2], sT[0], 7), salu("s_lshl_b32", sT[2], sT[2], 10),
                salu("s_add_u32", sT[1], sT[1], sT[2]), salu("s_and_b32", sT[2], sW, 1), salu("s_lshl_b32", sT[2], sT[2], 9), salu("s_add_u32", sT[1], sT[1], sT[2]),
                salu("s_lshr_b32", sT[2], sW, 1), salu("s_lshl_b32", sT[2], sT[2], 13), salu("s_add_u32", sT[1], sT[1], sT[2]),
                salu("s_lshl_b32", sT[2], sGQ, 17), salu("s_add_u32", sT[1], sT[1], sT[2]), salu("s_add_u32", sT[1], sT[1], P6_OFF),
                valu("v_and_b32", t2, 31, vLane), valu("v_lshlrev_b32", t2, 4, t2), valu("v_lshl_add_u32", t2, t3, 16, t2), valu("v_add_u32", vPS, sT[1], t2),
                )
            add(tile_setup())
            tdma = [set_m0(sWQ, TL, "tl"), salu("s_mov_b32", sTHR, 7168)]
            for i in range(2 if c.dbg & 2048 else 4):
                tdma += [buf_dma(vTL, rD, sTHR if i else 0, 1024 * i, tag="tl")]
                if 0 < i < 3: tdma += [salu("s_add_u32", sTHR, sTHR, 7168)]
            self.rest = [] if (c.tlin or c.b_rest is not None) else self.touch(vTCH[3], rQKV) + self.touch(vTCH[2], rGU)
            self.tdma = tdma
            if c.c_tile == -1: add(tdma)
            if c.bq: self.rest.pop(0)
            elif c.q_early and self.rest: add(self.rest.pop(0))
            if c.c_rest == -1: add(self.rest)
            add(srd(*sizes[0])[2:])
            for q in sizes[1:3] + sizes[4:]: add(srd(*q))
        add(valu("v_mov_b32", vFV, 1))
        sa, sb = (8 * 3072, 8 * 3584) if B else (8 * 3584, 16 * 3584)
        for i in (1, 2, 3):
            add(salu("s_mov_b32", sOA[i], i * (sa - 1024)), [salu("s_mov_b32", sOB[i], i * (sb - 1024))] if B else [])
        if B or not c.c_delay: add(self.dma_setup(0))
        if B:
            for _ in range(c.w_0): add(self.dma_slab())
            add(salu("s_lshr_b32", sT[0], sWG, 1), salu("s_and_b32", sT[3], sWG, 1),
                salu("s_lshl_b32", sT[1], sT[0], 15), salu("s_lshl_b32", sT[2], sW, 13), salu("s_add_u32", sT[1], sT[1], sT[2]), salu("s_lshl_b32", sT[2], sT[3], 10),
                salu("s_add_u32", sT[1], sT[1], sT[2]), salu("s_add_u32", sT[1], sT[1], XN_OFF))
            if c.p0 == 1:
                add(valu("v_lshrrev_b32", t2, 4, vLane), valu("v_and_b32", t3, 2, t2), valu("v_xor_b32", t3, t3, t1), valu("v_lshlrev_b32", t3, 4, t3), valu("v_and_b32", vST, 15, vLane),
                    valu("v_lshl_add_u32", t3, vST, 7, t3), valu("v_and_b32", t2, 1, t2), valu("v_lshl_add_u32", t3, t2, 3, t3),
                    salu("s_add_u32", sT[2], sWQ, XL), valu("v_add_u32", vXR, sT[2], t3), valu("v_xor_b32", vXL, 64, vXR), valu("v_xor_b32", vPL, 16, vXR), valu("v_xor_b32", vPS, 16, vXL),
                    valu("v_lshl_add_u32", vXS, vLane, 4, sT[1]),
                    valu("v_lshlrev_b32", vST, 5, vST), valu("v_add_u32", vST, SPARE, vST),
                    salu("s_lshl_b32", sT[2], sW, 2), valu("v_lshrrev_b32", t3, 5, vLane), valu("v_lshl_add_u32", t3, t3, 4, sT[2]), valu("v_add_u32", vRS, t3, vST))
            else:
                add(valu("v_lshlrev_b32", t3, 4, vST), valu("v_lshl_add_u32", t3, vXL, 9, t3), valu("v_add_u32", vXS, sT[1], t3))
            add(
                salu("s_lshl_b32", sT[1], sT[0], 7), salu("s_lshl_b32", sT[2], sT[3], 2), salu("s_add_u32", sT[1], sT[1], sT[2]), salu("s_add_u32", sT[1], sT[1], FLAGA_OFF),
                salu("s_cmp_eq_u32", None, sW, 0), salu("s_cselect_b32", sT[1], sT[1], OOB),
                valu("v_mov_b32", t2, OOB), valu("v_mov_b32", t3, sT[1]), valu("v_cmp_eq_u32", "vcc", 0, vLane), valu("v_cndmask_b32", vF0, t2, t3, "vcc"),
                valu("v_mov_b32", one, "0x3f803f80"), valu("v_mov_b32", sm, 0), valu("v_mov_b32", sq, 0), salu("s_mov_b32", sXS, 4096))
        add(salu("s_lshl_b32", sT[1], sRB, 2), salu("s_add_u32", sT[1], sT[1], sW), salu("s_lshl_b32", sT[2], sT[1], 7), salu("s_add_u32", sT[2], sT[2], FLAGA_OFF),
            valu("v_and_b32", vPOLL, 1, vLane), valu("v_lshlrev_b32", vPOLL, 2, vPOLL), valu("v_add_u32", vP0, sT[2], vPOLL),
            salu("s_lshl_b32", sT[1], sT[1], 15), salu("s_add_u32", sT[1], sT[1], XN_OFF), valu("v_lshl_add_u32", vXN, vLane, 4, sT[1]),
            salu("s_cmp_eq_u32", None, sW, 0), salu("s_cselect_b32", sT[1], 0, OOB), salu("s_cselect_b32", sT[3], 0 if c.nodbg else 1, 0),
            valu("v_lshl_add_u32", vDB, t1, 2, sT[1]), valu("v_mov_b32", vTLB, sT[3]))
        if not B and not c.c_delay: add(self.dma_setup(1), self.dma_setup(2))
        if B and not c.b_lean: add(self.dma_setup(1), self.dma_setup(2))
        add(self.w2_setup())
        if c.setup_early or not B: self.misc_setup()
        add(self.stamp(65 + 256))
        if B:
            add(wait(vm="x"))
            if c.p0 == 1: add([ds_read("ds_read_b64", xr.sub(4 * i + 2 * u, 2), ((vXR, vPL), (vXL, vPS))[i & 1][u], 2048 * (i >> 1)) for i in range(4) for u in range(2)])
            else: add([ds_read("ds_read_b128", xr.sub(4 * i, 4), vXR, 256 * i) for i in range(4)])
            if c.sig_early: add(wait(vm="reset"), buf_store("buffer_store_dword", vFV, vSG, rDBG, flags="sc1"))
            add(self.stamp(64 + 256))
            for r in range(16): add(valu("v_dot2c_f32_bf16", sm, xr[r], one, rmw=True), valu("v_dot2c_f32_bf16", sq, xr[r], xr[r], rmw=True))
            add([valu("v_lshlrev_b32", lo[i], 16, xr[i]) for i in range(3)])
            add(valu("v_permlane32_swap_b32", sm, sq, rmw=True, wr2=sq), valu("v_add_f32", sm, sm, sq), valu("v_mov_b32", sq, sm))
            add([valu("v_lshlrev_b32", lo[i], 16, xr[i]) for i in (3, 4)])
            add(valu("v_permlane16_swap_b32", sm, sq, rmw=True, wr2=sq), valu("v_add_f32", sm, sm, sq))
            sig = [] if c.sig_early else [wait(vm="reset"), buf_store("buffer_store_dword", vFV, vSG, rDBG, flags="sc1")]
            shl = lambda a, b: [valu("v_lshlrev_b32", lo[i], 16, xr[i]) for i in range(a, b)]
            if c.p0 == 1:
                add(ds_write("ds_write_b32", vRS, sm, tag="st"), sig, shl(5, 16))
                add(wait(lg="st"), self.stamp(256), barrier(), self.stamp(256))
                add([ds_read("ds_read_b128", part.sub(4 * i, 4), vST, 16 * i) for i in range(2)])
                add([valu("v_and_b32", xr[i], "0xffff0000", xr[i]) for i in range(16)])
                add(valu("v_pk_add_f32", part.sub(0, 2), part.sub(0, 2), part.sub(2, 2)), valu("v_pk_add_f32", part.sub(4, 2), part.sub(4, 2), part.sub(6, 2)),
                    valu("v_add_f32", sm, part[0], part[1]), valu("v_add_f32", sq, part[4], part[5]))
            else:
                add(shl(5, 7), valu("v_add_f32_dpp", sm, sm, sm, extra="row_ror:8 row_mask:0xf bank_mask:0xf"),
                    shl(7, 9), valu("v_add_f32_dpp", sm, sm, sm, extra="row_ror:4 row_mask:0xf bank_mask:0xf"), valu("v_mov_b32", sq, sm),
                    shl(9, 11), valu("v_permlane32_swap_b32", sm, sq, rmw=True, wr2=sq), sig, shl(11, 16), self.stamp(256), self.stamp(256))
                add([valu("v_and_b32", xr[i], "0xffff0000", xr[i]) for i in range(16)])
            add(
                valu("v_mul_f32", sm, f32(1 / 512), sm), valu("v_mul_f32", sq, f32(1 / 512), sq),
                valu("v_fma_f32", sq, f"-{sm}", sm, sq), valu("v_max_f32", sq, 0, sq),
                valu("v_cvt_pk_bf16_f32", sq, sq, sm),
                valu("v_and_b32", sm, "0xffff0000", sq), valu("v_lshlrev_b32", sq, 16, sq),
                valu("v_add_f32", sq, f32(1e-5), sq), valu("v_cvt_pk_bf16_f32", sq, sq, sq), valu("v_lshlrev_b32", sq, 16, sq),
                valu("v_sqrt_f32", sq, sq), valu("v_cvt_pk_bf16_f32", sq, sq, sq), valu("v_lshlrev_b32", sq, 16, sq),
                valu("v_rcp_f32", rb[1], sq), valu("v_mul_f32", rb[0], f"-{sm}", rb[1]))
            for h in range(2 if c.dbg & 1024 else 4):
                for r in (lo, xr):
                    add([valu("v_pk_fma_f32", r.sub(i, 2), r.sub(i, 2), rb, rb, extra="op_sel:[0,1,0] op_sel_hi:[1,1,0]") for i in (4 * h, 4 * h + 2)])
                add([valu("v_cvt_pk_bf16_f32", xr[i], lo[i], xr[i]) for i in range(4 * h, 4 * h + 4)])
                if c.p0 == 1: add(buf_store("buffer_store_dwordx4", xr.sub(4 * h, 4), vXS, rWS, sXS if h >> 1 else 0, 2048 * (h & 1), flags="sc1", tag=f"xs{h}"))
                else: add(salu("s_movk_i32", sXS, 8192 * h), buf_store("buffer_store_dwordx4", xr.sub(4 * h, 4), vXS, rWS, sXS, flags="sc1"))
            if c.rlate: add(buf_store("buffer_store_dwordx4", z, vR2, rWS, flags="sc1"))
            if c.dpos == 0: add(self.poll_issue(vDB, rDBG))
            add(self.stamp(64 + 4096))
            if c.dpos != 2:
                for _ in range(c.w_a): add(self.dma_slab())
            if c.b_rest is not None:
                add(salu("s_lshl1_add_u32", sT[0], sRB, sJ), salu("s_lshl2_add_u32", sT[1], sT[0], sW), salu("s_mul_i32", sT[1], sT[1], 4 * 3072), salu("s_lshl_b32", sT[2], sGQ, 8),
                    salu("s_add_u32", sT[1], sT[1], sT[2]), valu("v_and_b32", t2, 3, t0), valu("v_mul_u32_u24", t2, 3072, t2), valu("v_and_b32", t3, 1, t1),
                    valu("v_lshl_add_u32", t2, t3, 7, t2), valu("v_add_u32", vTCH[3], sT[1], t2),
                    salu("s_and_b32", sT[2], sW, 1), salu("s_lshl1_add_u32", sT[1], sT[0], sT[2]), salu("s_mul_i32", sT[1], sT[1], 8 * 3584),
                    salu("s_mul_i32", sT[2], sGQ, 7 * 128), salu("s_add_u32", sT[1], sT[1], sT[2]), salu("s_add_u32", sT[1], sT[1], 256),
                    valu("v_mul_u32_u24", t2, 3584, t0), valu("v_add_u32", t2, sT[1], t2), valu("v_and_b32", t3, 3, t1), valu("v_lshl_add_u32", vTCH[2], t3, 7, t2))
                self.rest = self.touch(vTCH[3], rQKV) + self.touch(vTCH[2], rGU)
            if c.b_lean: add(self.dma_setup(1), self.dma_setup(2))
            self.mid = self.poll_issue(vDB, rDBG) if c.dpos == 3 else []
            if not c.setup_early: self.misc_setup()
            if c.dpos in (1, 2): add(self.poll_issue(vDB, rDBG))
            if c.dpos == 2:
                for _ in range(c.w_a): add(self.dma_slab())
            pre, rd, self.ts = tile_store()
            add(pre)
            if c.stamps & 4096: add(self.stamp(4096), wait(vm="xs0"), self.stamp(4096), wait(vm="xs3"), self.stamp(4096), wait(vm="w0"), self.stamp(4096))
            add(self.poll_check(vDB, rDBG, vTLB))
            add(self.stamp(64 + 4096))
            add(barrier(), self.stamp(64), buf_store("buffer_store_dword", vFV, vF0, rWS, flags="sc1", tag="f0"))
            wo = [salu("s_lshr_b32", sT[1], sWQ, 2), set_m0(sT[1], TL, "tl"), buf_dma(vTL, rD, tag="tl")]
            if c.wo_late == 0: add(wo)
            for _ in range(c.w_b): add(self.dma_slab())
        else:
            pre, rd, self.ts = tile_store()
            for _ in range(c.w_c0): add(self.dma_slab())
            if c.c_tile == -1: add(pre)
            else:
                assert c.ts_pos > c.c_tile and c.ts_pos >= 0
                add(pre[:14]); self.ts = pre[14:] + self.ts
            if c.w_c0: add(self.stamp(64 + 256), self.stamp(256), self.stamp(64 + 256))
            else: add(self.stamp(64 + 256), self.dma_slab(), self.stamp(256), wait(vm="w0"), self.stamp(64 + 256))
            add(buf_store("buffer_store_dwordx4", p6, vPS, rWS, flags="sc1"))
            if c.ts_pos < 0: add(self.ts); self.ts = []
            add(self.poll_issue(vDB, rDBG))
            while self.nslab < c.w_c: add(self.dma_slab())
            if c.c_tile == -2: add(tdma)
            if c.c_rest == -2: add(self.rest)
            add(self.poll_check(vDB, rDBG, vTLB), self.stamp(64), barrier(), self.stamp(64))
        add(self.poll_issue(vP0, rWS))
        if c.stamps & 4096:
            add(self.stamp(4096), wait(vm="f0"), self.stamp(4096), wait(vm=f"w{self.nslab-1}"), self.stamp(4096), wait_regs(vPV), self.stamp(4096))
            self.nst = 10
        add(wait_regs(vPV), self.stamp(64), self.poll_check(vP0, rWS, 1))
        add(self.stamp(65 + 256))
        self.nx = 0
        for _ in range(c.nx0 // 2): add(self.x_load())
        add(wait(vm=["w0", "tl"] if B else "w0"), barrier(), rd)
        F = self.frag_list()
        for k in range(c.LA):
            add(self.frag_reads(k, F[k]))
            if k % 2 and self.nx < c.nx0: add(self.x_load())
        while self.nx < c.nx0: add(self.x_load())
    def x_load(self):
        j = self.nx; self.nx += 1
        o = []
        if j % 4 == 0: o += [salu("s_mov_b32", sXS, j * 1024)]
        return o + [buf_load("buffer_load_dwordx4", X.sub(4 * j, 4), vXN, rWS, 0 if self.cfg.dbg & 8 else sXS, (j % 4) * 1024, flags="sc1")]

    def misc_setup(self):
        add = self.add
        t0, t1, t2, t3 = T[0], T[1], T[2], T[3]
        TR = self.TR
        add(valu("v_bfe_u32", t0, vLane, 2, 3), valu("v_and_b32", t1, 32, vLane), valu("v_lshrrev_b32", t1, 1, t1), valu("v_add_u32", t1, t1, t0),
            valu("v_and_b32", t2, 1, vLane), valu("v_lshlrev_b32", t2, 3, t2), valu("v_and_b32", t3, 2, vLane),
            valu("v_lshl_add_u32", TR[0], t1, 7, t2), valu("v_lshl_add_u32", TR[0], t3, 5, TR[0]), valu("v_lshrrev_b32", t0, 1, t0), valu("v_lshl_add_u32", TR[0], t0, 4, TR[0]),
            [valu("v_xor_b32", TR[i], 16 * i, TR[0]) for i in (1, 2, 3)])
        if not self.B:
            add(valu("v_lshl_add_u32", TR[4], t1, 6, t2), valu("v_lshl_add_u32", TR[4], t3, 4, TR[4]), valu("v_and_or_b32", TR[4], vLane, 16, TR[4]), valu("v_xor_b32", TR[5], 16, TR[4]))
        self.win = [0] * 6
        for ch in range(3):
            if not (self.B and ch == 0): add(self.set_hu(ch))
        if self.B: add(self.att_setup())
        add(self.mid)
        add(salu("s_lshl_b32", sT[1], sRB, 2), salu("s_add_u32", sT[1], sT[1], sW), salu("s_mul_i32", sT[2], sT[1], HSTR),
            valu("v_and_b32", t0, 16, vLane), valu("v_lshlrev_b32", t0, 1, t0), valu("v_and_or_b32", t0, vLane, 15, t0), valu("v_lshl_add_u32", t0, t0, 4, sT[2]),
            valu("v_and_b32", t1, 32, vLane), valu("v_lshl_add_u32", vHST, t1, 6, t0))
        if not self.B: add(valu("v_lshl_add_u32", vSCR, t1, 5, t0))
        if self.cfg.dbg & 1: add(valu("v_mov_b32", vHST, OOB))
        add(salu("s_lshr_b32", sT[1], sT[1], 1), salu("s_lshl_b32", sT[1], sT[1], 2), salu("s_add_u32", sT[1], sT[1], sGQ), salu("s_lshl_b32", sT[1], sT[1], 10),
            salu("s_and_b32", sT[2], sW, 1), salu("s_lshl_b32", sT[3], sJ, 1), salu("s_add_u32", sT[2], sT[2], sT[3]), salu("s_lshl_b32", sT[2], sT[2], 2),
            salu("s_add_u32", sT[1], sT[1], sT[2]), salu("s_add_u32", sT[1], sT[1], FLAG_OFF),
            valu("v_mov_b32", t0, OOB), valu("v_mov_b32", t1, sT[1]), valu("v_cmp_eq_u32", "vcc", 0, vLane), valu("v_cndmask_b32", vFLG, t0, t1, "vcc"))
        if self.B: add(valu("v_add_u32", vFH, sH3, vFLG))
        add(salu("s_lshl_b32", sT[1], sTB2, 1), salu("s_lshr_b32", sT[2], sW, 1), salu("s_add_u32", sT[1], sT[1], sT[2]), salu("s_mul_i32", sP2h, sT[1], HSTR),
            salu("s_xor_b32", sT[2], sT[1], 1), salu("s_mul_i32", sHS, sT[2], HSTR),
            salu("s_lshl_b32", sT[1], sT[1], 5),
            salu("s_and_b32", sT[2], sT[1], 1023), salu("s_lshl_b32", sT[2], sT[2], 11), salu("s_lshr_b32", sT[1], sT[1], 10), salu("s_lshl_b32", sT[1], sT[1], 10),
            salu("s_add_u32", sT[1], sT[1], sT[2]), salu("s_lshl_b32", sT[2], sCB2, 7), salu("s_add_u32", sT[1], sT[1], sT[2]),
            salu("s_and_b32", sT[2], sW, 1), salu("s_lshl_b32", sT[2], sT[2], 6), salu("s_add_u32", sP2x, sT[1], sT[2]),
            salu("s_lshl_b32", sT[1], sTB2, 2), salu("s_add_u32", sT[1], sT[1], sW), salu("s_lshl_b32", sT[1], sT[1], 10), salu("s_add_u32", sP2f, sT[1], FLAG_OFF))
        add(salu("s_mul_i32", sT[1], sCB2, 72 * 4096), salu("s_add_u32", sT[1], sT[1], WT_OFF), salu("s_lshl_b32", sT[2], sT[2], 4),
            salu("s_add_u32", sT[3], sT[1], sT[2]), valu("v_lshl_add_u32", vW[0], vLane, 4, sT[3]),
            salu("s_sub_u32", sT[3], sT[1], sT[2]), valu("v_lshl_add_u32", vW[1], vLane, 4, sT[3]), valu("v_lshl_add_u32", vWB, vLane, 4, sWQ),
            salu("s_lshl_b32", sT[1], sCB2, 8), salu("s_add_u32", sT[1], sT[1], FLAGA_OFF + 96 * 128), salu("s_lshl_b32", sT[2], sGQ, 9), salu("s_add_u32", sT[2], sT[2], FLAGA_OFF + (80 if self.cfg.cone else 64) * 128),
            salu("s_lshr_b32", sT[3], sCB2, 1), salu("s_xor_b32", sT[3], sT[3], self.cfg.tx), salu("s_lshl_b32", sT[3], sT[3], 9), salu("s_add_u32", sT[3], sT[3], FLAGA_OFF + 80 * 128),
            salu("s_cmp_eq_u32", None, sW, 0), salu("s_cselect_b32", sT[1], sT[1], OOB), salu("s_cselect_b32", sT[2], sT[2], OOB), salu("s_cselect_b32", sT[3], sT[3], OOB),
            salu("s_cselect_b32", sW0, 1, 0),
            valu("v_and_b32", t0, 24, vLane), valu("v_lshlrev_b32", t0, 2, t0), valu("v_and_or_b32", t0, vLane, 7, t0), valu("v_and_b32", t1, 63, t0),
            valu("v_lshl_add_u32", t1, t1, 2, sT[1]), valu("v_lshl_add_u32", vP2, t0, 2, sT[3]),
            valu("v_cmp_lt_u32", "vcc", 31, vLane), valu("v_cndmask_b32", vP2, vP2, t1, "vcc"))
        if not self.B: add(valu("v_lshl_add_u32", vP6, t0, 2, sT[2]))

    def chunk_of(self, n): return 0 if n < 8 else (1 if n < 12 else 2)
    def dma_setup(self, ch):
        t0, t1 = T[0], T[1]
        o = []
        B = self.B
        half = (not B) and ch == 1
        stride = 3072 if (B and ch < 2) else 3584
        if half:
            return [salu("s_lshl_b32", sT[1], sGQ, 1), salu("s_add_u32", sT[1], sT[1], sJ), salu("s_lshl_b32", sT[1], sT[1], 16), salu("s_add_u32", sT[1], sT[1], sWQ),
                    salu("s_add_u32", sT[1], sT[1], P6_OFF - 2 * 65536), valu("v_lshl_add_u32", vDMA1, vLane, 4, sT[1])]
        else:
            o += [valu("v_lshrrev_b32", t0, 4, vLane), valu("v_and_b32", t1, 7, vLane), valu("v_xor_b32", t1, t0, t1), valu("v_lshrrev_b32", t0, 3, vLane)]
        o += [valu("v_mul_u32_u24", t0, stride, t0), valu("v_lshl_add_u32", t0, t1, 4, t0)]
        a, b = sT[1], sT[2]
        if B and ch == 0:
            o += [salu("s_lshl_b32", a, sGQ, 1), salu("s_add_u32", a, a, sJ), salu("s_lshl_b32", a, a, 7), salu("s_lshr_b32", b, sW, 1),
                  salu("s_add_u32", b, b, 1), salu("s_lshl_b32", b, b, 10), salu("s_add_u32", a, a, b), salu("s_and_b32", b, sW, 1),
                  salu("s_mul_i32", b, b, 32 * stride), salu("s_add_u32", a, a, b)]
        elif B and ch == 1:
            o += [salu("s_lshl_b32", a, sGQ, 1), salu("s_add_u32", a, a, sJ), salu("s_lshl_b32", a, a, 7), salu("s_mul_i32", b, sW, 32 * stride),
                  salu("s_add_u32", a, a, b)]
        else:
            if half: o += [salu("s_lshl_b32", b, sJ, 6), salu("s_add_u32", b, b, 6 * 128 - 128)]
            else: o += [salu("s_lshl_b32", b, sJ, 7), salu("s_sub_u32" if ch == 0 else "s_add_u32", b, b, 256)]
            o += [salu("s_mul_i32", a, sGQ, 7 * 128), salu("s_add_u32", a, a, b), salu("s_and_b32", b, sW, 1),
                  salu("s_mul_i32", b, b, (64 if half else 32) * stride), salu("s_add_u32", a, a, b)]
        o += [valu("v_add_u32", (vDMA0, vDMA1, vDMA2)[ch], a, t0)]
        return o
    def dma_slab(self):
        n = self.nslab; self.nslab += 1
        ch = self.chunk_of(n)
        B = self.B
        vd = (vDMA0, vDMA1, vDMA2)[ch]
        srd = rQKV if (B and ch < 2) else rGU
        so = (sOA if ch < 2 else sOB) if B else (sOB if ch == 1 else sOA)
        stride = 3072 if (B and ch < 2) else 3584
        o = [set_m0(sWQ, slab_slot(n) * SLOT, f"w{n}")]
        if ch == 1 and not B:
            if n > 8: o += [valu("v_add_u32", vd, 16384, vd)]
            return o + [buf_dma(vd, rWS, 0, i * 1024, flags="sc1", tag=f"w{n}") for i in range(4)]
        if n not in (0, 8, 12) and not self.cfg.dbg & 16: o += [valu("v_add_u32", vd, (128 if ch == 1 else 64) * stride, vd)]
        o += [buf_dma(vd, srd, so[i], i * 1024, flags="sc1" if self.cfg.dbg & 16 else self.cfg.wflags, tag=f"w{n}") for i in range(2 if (self.cfg.dbg & 512 and n >= 7) else 4)]
        return o
    def frag_list(self):
        L = []
        for n in range(20):
            ch = self.chunk_of(n)
            base = slab_slot(n) * SLOT
            if ch != 1:
                n0 = 0 if ch == 0 else 12
                for jj in range(2):
                    for cc in range(4):
                        for im in range(2):
                            L.append(([ACC1.sub(16 * im + 32 * th + 4 * cc, 4) for th in range(2)], 4 * (n - n0) + 2 * jj, n, base + im * 8192 + jj * 4096, cc, 1024))
            else:
                for jj in range(4):
                    for cc in range(4):
                        if self.B: L.append(([ACC2.sub(16 * th + 4 * cc, 4) for th in range(2)], 8 * (n - 8) + 2 * jj, n, base + jj * 4096, cc, 1024))
                        else: L.append(([ACC2.sub(16 * (cc & 1) + 8 * th + 4 * (cc >> 1), 4) for th in range(2)], 8 * (n - 8) + 2 * jj, n, base + (cc & 1) * 8192 + jj * 2048, 4 + (cc >> 1), 512))
        assert not self.cfg.nspl
        if self.cfg.chain:
            M = []
            for n in range(20):
                f = L[16 * n:16 * n + 16]
                h = 4 if self.chunk_of(n) == 1 else 8
                for a in range(0, 16, 2 * h):
                    for i in range(h): M += [f[a + i], f[a + h + i]]
            L = M
        return L
    def window(self, wins, which, reg, off, span):
        o = []
        if not (wins[which] <= off and off + span <= wins[which] + 65536):
            w = off // SLOT * SLOT
            d = w - wins[which]
            o += [valu("v_add_u32" if d > 0 else "v_subrev_u32", reg, abs(d), reg)]
            wins[which] = w
        return o, off - wins[which]
    def frag_reads(self, k, f):
        acc, step, n, off, which, ustep = f
        b = self.TR[which]
        o, imm = self.window(self.win, which, b, off, 2048)
        dst = WF.sub(4 * (k % self.cfg.NB), 4)
        o += [ds_read("ds_read_b64_tr_b16", dst.sub(0, 2), b, imm, tag=f"f{k}"), ds_read("ds_read_b64_tr_b16", dst.sub(2, 2), b, imm + ustep, tag=f"f{k}")]
        if self.cfg.dbg & 4096 and k >= 16: o.pop(-1 - (k // self.cfg.NB & 1))
        return o
    def ffn_epi(self, G, U, ch, kst, tag, pk=False):
        o = []
        for b in range(4):
            t = [T[4 + i] for i in range(4)]
            g = [G[4 * b + i] for i in range(4)]; u = [U[4 * b + i] for i in range(4)]
            if pk:
                t2 = [T.sub(4, 2), T.sub(6, 2)]; g2 = [G.sub(4 * b, 2), G.sub(4 * b + 2, 2)]; u2 = [U.sub(4 * b, 2), U.sub(4 * b + 2, 2)]
                o += [valu("v_pk_mul_f32", t2[i], g2[i], T.sub(0, 2)) for i in range(2)]
                o += [valu("v_exp_f32", t[i], t[i]) for i in range(4)]
                o += [valu("v_pk_mul_f32", u2[i], g2[i], u2[i]) for i in range(2)]
                o += [valu("v_pk_add_f32", t2[i], t2[i], T.sub(2, 2)) for i in range(2)]
                o += [valu("v_rcp_f32", t[i], t[i]) for i in range(4)]
                o += [valu("v_pk_mul_f32", u2[i], u2[i], t2[i]) for i in range(2)]
            else:
                o += [valu("v_mul_f32", t[i], sNL if self.cfg.sconst else f32(-LOG2E), g[i]) for i in range(4)]
                for i in range(4): o += [valu("v_exp_f32", t[i], t[i]), valu("v_mul_f32", u[i], g[i], u[i])]
                o += [valu("v_add_f32", t[i], "1.0", t[i]) for i in range(4)]
                o += [valu("v_rcp_f32", t[i], t[i]) for i in range(4)]
                o += [valu("v_mul_f32", u[i], u[i], t[i]) for i in range(4)]
            if self.cfg.dbg & 8192: o = [x for x in o if x.op not in ("v_add_f32", "v_pk_add_f32")]
            o += [valu("v_cvt_pk_bf16_f32", G[2 * b + i], u[2 * i], u[2 * i + 1]) for i in range(2)]
            if b & 1: o += [buf_store("buffer_store_dwordx4", G.sub(2 * (b - 1), 4), vSCR if ch == 1 else vHST, rWS, sHu[ch], kst + (b >> 1) * (256 if ch == 1 else 1024), flags=self.cfg.hflags, tag=tag)]
        return o
    def set_hu(self, ch):
        a = sT[1]
        if self.B and ch == 1:
            return [salu("s_lshl_b32", a, sGQ, 1), salu("s_add_u32", a, a, sJ), salu("s_lshl_b32", a, a, 12), salu("s_add_u32", sHu[ch], a, 112 * 1024)]
        o = [salu("s_mul_i32", sHu[ch], sGQ, 28 * 1024)]
        if ch == 1: o += [salu("s_lshl_b32", a, sJ, 11), salu("s_add_u32", a, a, 6 * 4096 - 4096)]
        else: o += [salu("s_lshl_b32", a, sJ, 12), salu("s_sub_u32" if ch == 0 else "s_add_u32", a, a, 8192)]
        return o + [salu("s_add_u32", sHu[ch], sHu[ch], a)]

    def phase1(self):
        c, add, B = self.cfg, self.add, self.B
        F = self.frag_list()
        NM = len(F)
        self.slow0 = self.slow
        assert not c.chain or (c.wstep % 2 == 0 and c.NB >= c.LA + 2)
        gaps = [[] for _ in range(NM)]
        tail = [[] for _ in range(NM)]
        load = [0] * NM
        def put(k, ins, last=False):
            if c.px & 2: ins = [x for x in ins if x.kind != "mfma"]
            if c.px & 4: ins = [x for x in ins if x.kind != "dsw"]
            if c.px & 8: ins = [x for x in ins if not (x.kind == "branch" or str(vPV) in x.rd | x.wr)]; self.slow = self.slow0
            if c.px & 64: ins = [x for x in ins if x.kind != "trans"]
            (tail if last else gaps)[k] += ins
            load[k] += sum(cyc(i) for i in ins)
        def spread(ins, k0, k1):
            tot = sum(cyc(i) for i in ins)
            lo, hi = 0.0, 1000.0
            for _ in range(40):
                mid = (lo + hi) / 2
                if sum(max(0, mid - load[k]) for k in range(k0, k1)) >= tot: hi = mid
                else: lo = mid
            cap, acc = [], 0.0
            for k in range(k0, k1):
                acc += max(0, hi - load[k]); cap.append(acc)
            k, used = 0, 0.0
            for i in ins:
                while k < len(cap) - 1 and used + cyc(i) / 2 > cap[k] and i.kind != "branch": k += 1
                put(k0 + k, [i]); used += cyc(i)
        bar_gap = {n: 16 * n - c.LA - 1 for n in range(1, 20)}
        bar_gap[0], bar_gap[20] = -1, NM
        self.bar_extra = {n: [] for n in range(1, 21)}
        need = {n: max(f[2] for f in F[:min(NM, bar_gap[n + 1] + c.LA + 1)]) for n in range(20)}
        skip = lambda n: c.bar2 and c.bar2 <= n < 19 and (n - c.bar2) % 2 == 1
        self.skip = skip
        for n in range(18, 0, -1):
            if skip(n + 1): need[n] = need[n + 1]
        for n in (c.pw_per, c.p6_per, c.f2_bar): assert not skip(n)
        lastx = lambda i: max(k for k, f in enumerate(F) if f[1] // 4 == i)
        plan = dict((int(p.split(":")[0]), p.split(":")[1].split(".")) for p in (c.planB if B else c.planC).split(",") if p)
        self.pool = list(ABUF) + VBUF[:5] + ([] if B else VBUF[5:7])
        put(bar_gap[c.pw_per] - 1 - c.pw_lead, self.poll_issue(vP2, rWS))
        put(bar_gap[c.pw_per] - 1, self.poll_check(vP2, rWS, sW0))
        if not B:
            assert bar_gap[c.p6_per] <= bar_gap[c.pw_per] - 1 - c.pw_lead
            put(bar_gap[c.p6_per] - 1 - c.pw_lead, self.poll_issue(vP6, rWS))
            put(bar_gap[c.p6_per] - 1, self.poll_check(vP6, rWS, sW0))
        assert not c.cone or c.ts_pos < 0
        if B or not c.cone: put(bar_gap[c.f2_bar] + 1, [buf_store("buffer_store_dword", vFV, vF2, rWS, 0, 2048, flags="sc1")])
        for n in range(20):
            k = bar_gap[n]
            if n and not skip(n): load[k] += 14
            if B and n and bar_gap[n - 1] < c.g_halo + 2 * (9 + c.att_w) <= k: self.pool += VBUF[5:]
            if n == 9 and not B: self.pool += VBUF[7:]
            ops = list(plan.get(n, []))
            ins = []
            while ops and ops[0] in ("r", "H"):
                ins += self.plan_op(ops.pop(0), n)
            w = []
            nw = 0
            while self.nslab < 20 and self.nslab <= n - (1 if skip(n) else 0) + c.NS - 2 and (B or self.nslab < 8 or n >= c.p6_per) and (self.nslab <= need[min(19, n + 2)] or nw + ops.count("w") < 1 or "w" in ops):
                if nw and "w" in ops: ops.remove("w")
                w += self.dma_slab(); nw += 1
            ops = [x for x in ops if x != "w"]
            assert self.nslab > need[min(19, n + 2)], n
            if n == max(c.ts_pos, 0): ins += self.ts
            while c.xfree and self.xf_n < 5 and lastx(self.xf_n) <= k: self.pool += [A(16 * self.xf_n, 16)]; self.xf_n += 1
            nxl = min(32 - self.nx, c.xr[n] if n < len(c.xr) else (c.xrate if n else max(1, c.xrate // 2)))
            for i in w:
                if i.kind == "dma" and nxl: ins += self.x_load(); nxl -= 1
                ins.append(i)
            for _ in range(nxl): ins += self.x_load()
            assert self.nx >= min(32, (bar_gap[n + 1] + 16) // 4 + (3 if c.chain else 1)), n
            if n == c.c_tile and not B: ins += self.tdma
            if n == (c.b_rest if B else c.c_rest): ins += self.rest
            for op in ops: ins += self.plan_op(op, n)
            if ins: spread(ins, k + 1, bar_gap[n + 1])
        if not B:
            ins = self.ffn_epi(ACC1.sub(0, 16), ACC1.sub(16, 16), 0, 0, "st1") + self.ffn_epi(ACC1.sub(32, 16), ACC1.sub(48, 16), 0, 256, "st1")
            spread(ins, 129, 191)
            if not c.one_pa: put(c.g_f1c, self.flag(L_P1, "st1"))
            spread(self.ffn_epi(ACC2.sub(0, 16), ACC2.sub(16, 16), 1, 0, "st2"), 194, c.h2_end)
            put(c.g_f2c, self.flag(L_HALF, "st2"))
        else:
            self.attention(put, spread, bar_gap, load)
        if c.nspl:
            k0 = max(320 - 8 * c.nspl + 2, self.att_end + 7 if B else 0)
            spread(self.ffn_epi(ACC1.sub(0, 16), ACC1.sub(16, 16), 2, 0, "st3"), k0, c.e0_end)
        o = [valu("v_lshl_add_u32", vH[0], vLane, 4, sP2h), valu("v_lshl_add_u32", vH[1], vLane, 4, sHS),
             valu("v_and_b32", vPOLL, 7, vLane), valu("v_lshrrev_b32", vTHR, 2, vPOLL), valu("v_lshl_add_u32", vPOLL, vPOLL, 2, sP2f),
             ]
        if not c.otr: o += [valu("v_and_b32", vXO, 31, vLane), valu("v_lshlrev_b32", vXO, 11, vXO), valu("v_and_or_b32", vXO, vLane, 32, vXO), valu("v_add_u32", vXO, sP2x, vXO)]
        spread(o, *((176, 192) if B else (200, c.g_pa)))
        la = L_HALF if c.one_pa else L_P1
        put(c.g_pa, self.poll_issue(vPOLL, rWS, la))
        assert c.g_pa < bar_gap[c.pa_per] - 1
        put(bar_gap[c.pa_per] - 1, self.poll_check(vPOLL, rWS, vTHR, la))
        self.pa2 = (vPOLL, rWS, vTHR, L_HALF)
        if c.m_pb == -1:
            put(c.g_pa2 - 2, [valu("v_lshlrev_b32", vP2, 7, vTHR), valu("v_sub_u32", vP2, vPOLL, vP2)])
            self.pa2 = (vP2, rWS, 1, L_O)
        if not c.one_pa: put(c.g_pa2, self.poll_issue(self.pa2[0], rWS, self.pa2[3]))
        if c.pa2_epi < 0 and not c.one_pa: put(319, self.poll_check(*self.pa2))
        spread([valu("v_mov_b32", T[0], f32(-LOG2E)), valu("v_mov_b32", T[1], f32(-LOG2E)), valu("v_mov_b32", T[2], "1.0"), valu("v_mov_b32", T[3], "1.0")], 312, 320)
        inv_bar = {v: n for n, v in bar_gap.items() if 1 <= n <= 19}
        for k in range(NM):
            acc, step, n, off, which, us = F[k]
            if k % c.wstep == 0: add(wait(lg=[f"f{i}" for i in range(k, k + c.wstep)]))
            rd = self.frag_reads(k + c.LA, F[k + c.LA]) if k + c.LA < NM else []
            fill = gaps[k]
            tot, u, n1 = sum(cyc(i) for i in fill), 0, 0
            while n1 < len(fill) and (u + cyc(fill[n1]) / 2 <= tot / 2 or fill[n1].kind == "branch"): u += cyc(fill[n1]); n1 += 1
            if 2 * u > tot + 4: r1 = 0 if len(rd) <= 2 else len(rd) - 1
            elif 2 * u < tot - 4: r1 = len(rd)
            else: r1 = max(0, len(rd) - 1)
            if c.chain:
                th = k & 1
                first = F[k & ~1][1] == 0
                mm = [mfma(16, acc[th], WF.sub(4 * (kk % c.NB), 4), X.sub(4 * (F[kk][1] + th), 4), 0 if (first and kk == k) else acc[th]) for kk in (k, k ^ 1)]
            else: mm = [mfma(16, acc[th], WF.sub(4 * (k % c.NB), 4), X.sub(4 * (step + th), 4), 0 if step == 0 else acc[th]) for th in range(2)]
            add(mm[0], self.jit(0.08))
            if k == 0: add(self.stamp(67))
            add(rd[:r1], fill[:n1])
            add(mm[1], rd[r1:], fill[n1:], tail[k])
            if k in inv_bar:
                n = inv_bar[k]
                assert not (skip(n) and self.bar_extra[n])
                if n == 19 or need[n] > need[n - 1]: add(wait(vm=[f"w{need[n]}"] + (["ts"] if n == c.f2_bar else []), lg=self.bar_extra[n] or None), barrier())
            if k in (127, 191): add(self.stamp())
            if k in (31, 63): add(self.stamp(64))
            if k % 32 == 31 and 31 < k < 319: add(self.stamp(2))
            if k in c.sg: add(self.stamp(32))
        add(self.stamp(131))
        self.load = load
    def plan_op(self, op, n):
        if op == "l":
            assert n >= self.cfg.pw_per
            return self.w2_load()
        if op == "h":
            assert n >= self.cfg.pa_per and self.h_n < 4
            return self.h_load()
        if op == "P": return self.poll_issue(vPOLLH, rWS)
        if op == "H":
            self.halo_period = n
            i = salu("s_mov_b32", "m0", sHM0); i.tag = "halo"
            return self.poll_check(vPOLLH, rWS, sTHR) + [i] + [buf_dma(vHLD, rWS, 0, 1024 * q, flags="sc1", tag="halo") for q in range(2)]
        slot = int(op[1:])
        if slot < self.cfg.NS: assert n - (1 if self.skip(n) else 0) >= 2 + max(x for x in range(20) if slab_slot(x) == slot)
        if self.B and slot >= 7: assert n >= 19
        assert n >= self.cfg.pw_per
        return self.w2_dma(slot)

    def att_setup(self):
        t0, t1 = T[0], T[1]
        o = [valu("v_and_b32", t0, 15, vLane), valu("v_mul_u32_u24", t0, RP, t0), valu("v_and_b32", t1, 48, vLane), valu("v_lshlrev_b32", t1, 1, t1),
             salu("s_mul_i32", sT[0], sW, 32 * RP), salu("s_add_u32", sT[0], sT[0], SCR), valu("v_add3_u32", vSCR, sT[0], t0, t1),
             valu("v_and_b32", t0, 3, vLane), valu("v_bfe_u32", vVTR, vLane, 2, 2), valu("v_lshl_add_u32", t0, t0, 2, vVTR),
             valu("v_mul_u32_u24", t0, RP, t0), valu("v_add3_u32", vVTR, sT[0], t0, t1),
             salu("s_mov_b32", sT[0], SCR + 128 * RP + 128), valu("v_lshl_add_u32", vHRB, vLane, 4, sT[0])]
        o += [salu("s_lshl_b32", sT[1], sRB, 3), salu("s_lshl_b32", sT[2], sGQ, 1), salu("s_add_u32", sT[1], sT[1], sT[2]), salu("s_add_u32", sT[1], sT[1], sJ),
              salu("s_lshl_b32", sC1, sT[1], 11), salu("s_add_u32", sC1, sC1, HALO_OFF),
              salu("s_cmp_eq_u32", None, sW, 3), salu("s_cselect_b32", sT[1], sC1, OOB), salu("s_cselect_b32", sH3, 0, OOB), valu("v_lshl_add_u32", vHALO, vLane, 4, sT[1]),
              salu("s_and_b32", sT[1], sRB, 7), salu("s_or_b32", sT[2], sT[1], sW), salu("s_cselect_b32", sM1[0], 0, "0xf000f"), salu("s_cselect_b32", sM2[0], 0, "0xff00ff"),
              salu("s_mov_b32", sM1[1], sM1[0]), salu("s_mov_b32", sM2[1], sM2[0]), salu("s_mov_b32", sHM0, SPARE),
              salu("s_cmp_eq_u32", None, sW, 0), salu("s_cselect_b32", sHM0, SCR + 128, sHM0), salu("s_cselect_b32", sT[1], sT[1], 0),
              salu("s_cmp_lg_u32", None, sT[1], 0), salu("s_cselect_b32", sTHR, 1, 0),
              salu("s_sub_u32", sT[2], sC1, 8 * 2048), salu("s_cmp_lg_u32", None, sTHR, 0), salu("s_cselect_b32", sT[2], sT[2], OOB),
              valu("v_lshl_add_u32", vHLD, vLane, 4, sT[2])]
        if self.cfg.kv_mode == 4:
            for q, dst in enumerate((vHLD, vHLD2)):
                o += [valu("v_add_u32", t0, 8 + 64 * q, vLane), valu("v_mul_u32_u24", t1, 241, t0), valu("v_lshrrev_b32", t1, 12, t1), valu("v_mul_u32_u24", dst, 17, t1),
                      valu("v_sub_u32", t0, t0, dst), valu("v_min_u32", t0, 15, t0), valu("v_lshlrev_b32", t1, 4, t1), valu("v_lshl_add_u32", t0, t0, 7, t1),
                      valu("v_add_u32", dst, sT[2], t0)]
                if q: o += [valu("v_subrev_u32", dst, 1024, dst)]
            o += [salu("s_sub_u32", sT[1], sC1, 24 * 16), salu("s_cmp_eq_u32", None, sW, 3), salu("s_cselect_b32", sT[1], sT[1], OOB),
                  valu("v_and_b32", t0, 31, vLane), valu("v_lshrrev_b32", t1, 5, vLane), valu("v_lshlrev_b32", t1, 8, t1), valu("v_lshl_add_u32", t1, t0, 4, t1),
                  valu("v_add_u32", t1, sT[1], t1), valu("v_cmp_lt_u32", "vcc", 23, t0), valu("v_mov_b32", t0, OOB), valu("v_cndmask_b32", vHALO, t0, t1, "vcc")]
        o += [
              salu("s_lshl_b32", sT[1], sRB, 3), salu("s_add_u32", sT[1], sT[1], sGQ), salu("s_lshl_b32", sT[1], sT[1], 10), salu("s_lshl_b32", sT[2], sJ, 3),
              salu("s_add_u32", sT[1], sT[1], sT[2]), salu("s_add_u32", sT[1], sT[1], FLAG_OFF - 4096 + 4), salu("s_cmp_lg_u32", None, sTHR, 0),
              salu("s_cselect_b32", sT[1], sT[1], OOB), valu("v_mov_b32", vPOLLH, sT[1]), salu("s_mov_b32", sCS, f32(0.25 * LOG2E))]
        o += [valu("v_and_b32", t0, 3, vLane), valu("v_mov_b32", t1, "0xffff"),
              valu("v_cmp_le_u32", sJ1, 1, t0), valu("v_cmp_le_u32", sJ2, 2, t0), valu("v_cmp_le_u32", sJ3, 3, t0),
              valu("v_cndmask_b32", vA01, t1, -1, sJ1), valu("v_cndmask_b32", vA23, 0, t1, sJ2), valu("v_cndmask_b32", vA23, vA23, -1, sJ3)]
        return o
    def attention(self, put, spread, bar_gap, load):
        c = self.cfg
        def pack(dst, a):
            o = [valu("v_cvt_pk_bf16_f32", dst[i], a[2 * i], a[2 * i + 1]) for i in range(8)]
            return o + [valu("v_permlane16_swap_b32", dst[i], dst[4 + i], rmw=True, wr2=dst[4 + i]) for i in range(4)]
        cv, wr = [], []
        for blk in range(4):
            a = ACC1.sub(16 * blk, 16)
            cv += pack(a, a)
            wr += [ds_write("ds_write_b128", vSCR, a.sub(4 * dh, 4), (blk & 1) * 128 + dh * 16 + (8 + 16 * (blk >> 1)) * RP, tag="kv") for dh in range(2)]
        hs = ACC1.sub(40, 8)
        assert c.kv_mode in (3, 5, 6)
        if c.kv_mode == 3:
            spread(cv, 129, c.kv_end - 3)
            put(c.kv_end - 3, wr)
        else:
            if c.kv_mode == 5:
                spread(cv[24:], 130, c.kv_end - 3)
                put(c.kv_end - 3, wr[4:])
            else: spread(cv[24:36] + wr[4:6] + cv[36:] + wr[6:], 130, c.kv_end - 2)
            spread(cv[:24], c.kv_end + 5, c.kv_end + 15)
            for n, x in enumerate(wr[:4]):
                k1 = c.kv_end + 15 + (180 - c.kv_end - 15) * n // 4
                while load[k1] > 0 and k1 < 181: k1 += 1
                put(k1, [x], last=True)
        put(c.kv_end - 1, [ds_read("ds_read_b128", hs.sub(4 * i, 4), vHRB, 1024 * i) for i in range(2)])
        if c.kv_mode != 4:
            put(c.kv_end + 2, [buf_store("buffer_store_dwordx4", hs.sub(0, 4), vHALO, rWS, 0, 0, flags="sc1", tag="st1")])
            put(c.kv_end + 4, [buf_store("buffer_store_dwordx4", hs.sub(4, 4), vHALO, rWS, 0, 1024, flags="sc1", tag="st1")])
            self.bar_extra[12] = ["kv"]
        assert c.kv_end + 4 < min(176, c.g_flag1)
        fl = self.flag(L_HALO, "st1")
        if c.halo3: fl[-1] = buf_store("buffer_store_dword", vFV, vFH, rWS, 0, L_HALO, flags="sc1")
        put(c.g_flag1, fl)
        Q = ACC2.sub(0, 16); O = ACC2.sub(16, 16)
        Sg = [SG.sub(0, 4), SG.sub(4, 4), SG.sub(8, 4)]
        P = [T.sub(0, 2), T.sub(2, 2), T.sub(4, 2)]
        tm, tz, big = SG[12], SG[13], SG[14]
        spread(pack(Q.sub(0, 8), ACC2.sub(0, 16)) + pack(Q.sub(8, 8), ACC2.sub(16, 16)) + [valu("v_mov_b32", big, f32(-1e30))], 194, min(215, c.g_halo + 4))
        k = c.g_halo
        cs = 0.25 * LOG2E
        for cb in ((1, 0) if c.th1 else (0, 1)):
            if cb == 0:
                assert k > bar_gap[self.halo_period + 1]
                put(k, [wait(vm="halo")])
            spread([ds_read("ds_read_b128", KA.sub(8 * g + 4 * dh, 4), vSCR, dh * 16 + (16 * cb + (2 - g) * 4) * RP) for g in range(3) for dh in range(2)], k, k + 4)
            k += 5
            for dq in range(4):
                put(k + dq // 2, [mfma(4, Sg[g], KA.sub(8 * g + 2 * dq, 2), Q.sub(8 * cb + 2 * dq, 2), Sg[g] if dq else 0) for g in range(3)], last=True)
            k += 2
            vr = [ds_read("ds_read_b64_tr_b16", KA.sub(8 * g + 2 * m, 2), vVTR, 128 + (0, 2, 1, 3)[m] * 8 + (16 * cb + (2 - g) * 4) * RP, tag="vr") for g in range(3) for m in range(4)]
            s = [Sg[0][i] for i in range(4)] + [Sg[1][i] for i in range(4)]
            o = vr[:4]
            if cb == 0:
                o += [valu("v_cndmask_b32", Sg[2][r], Sg[2][r], big, sM2) for r in (1, 2, 3)]
                o += [valu("v_cndmask_b32", Sg[1][r], Sg[1][r], big, sM1) for r in range(4)]
            o += [valu("v_cndmask_b32", Sg[0][r], Sg[2][r], Sg[0][r], (None, sJ1, sJ2, sJ3)[r]) for r in (1, 2, 3)]
            o += [valu("v_max3_f32", tm, s[0], s[1], s[2]), valu("v_max3_f32", tz, s[3], s[4], s[5]), valu("v_max3_f32", tm, tm, s[6], s[7]), valu("v_max_f32", tm, tm, tz),
                  valu("v_mul_f32", tm, f32(-cs), tm)]
            o += vr[4:8]
            o += [valu("v_fma_f32", s[i], s[i], sCS, tm) for i in range(8)]
            o += [valu("v_exp_f32", s[i], s[i]) for i in range(8)]
            u = [Sg[2][i] for i in range(4)]
            o += [valu("v_add_f32", u[i], s[2 * i], s[2 * i + 1]) for i in range(4)]
            o += [valu("v_add_f32", u[0], u[0], u[1]), valu("v_add_f32", u[2], u[2], u[3]), valu("v_add_f32", u[0], u[0], u[2]), valu("v_rcp_f32", tz, u[0])]
            o += vr[8:]
            o += [valu("v_mul_f32", s[i], s[i], tz) for i in range(8)]
            o += [valu("v_cvt_pk_bf16_f32", u[0], s[0], s[1]), valu("v_cvt_pk_bf16_f32", u[1], s[2], s[3]),
                  valu("v_cvt_pk_bf16_f32", P[1][0], s[4], s[5]), valu("v_cvt_pk_bf16_f32", P[1][1], s[6], s[7]),
                  valu("v_and_b32", P[0][0], u[0], vA01), valu("v_and_b32", P[0][1], u[1], vA23),
                  valu("v_bfi_b32", P[2][0], vA01, 0, u[0]), valu("v_bfi_b32", P[2][1], vA23, 0, u[1])]
            if c.px & 1: o = [x for x in o if x.kind == "dsr"] + o[-8:]
            spread(o, k, k + c.att_w)
            k += c.att_w
            for g in range(3):
                put(k + g // 2, [mfma(4, O.sub(4 * m, 4), KA.sub(8 * g + 2 * m, 2), P[g], O.sub(4 * m, 4) if g else 0) for m in range(4)], last=True)
            k += 2
            o = []
            for dh in range(2):
                o += [valu("v_cvt_pk_bf16_f32", O[4 * dh + i], O[8 * dh + 2 * i], O[8 * dh + 2 * i + 1]) for i in range(4)]
                o += [buf_store("buffer_store_dwordx4", O.sub(4 * dh, 4), vHST, rWS, sHu[1], cb * 256 + dh * 1024, flags=c.hflags, tag="st2")]
            spread(o, k + 1, k + 7)
        assert k <= bar_gap[19], k
        assert k == c.g_halo + 2 * (9 + c.att_w)
        self.att_end = k
        if not c.splf and c.f2_epi < 0: put(min(k + c.f2_lag, 317), self.flag(L_O, "st2"))

    GORD = ([("d", 0, 1, t) for t in range(4)] + [("d", 12, 1, 4 + t) for t in range(2)] + [("o", 0, 1, t) for t in range(4)]
            + [("d", 8, 1, t) for t in range(4)] + [("d", 4, 1, t) for t in range(4)])
    def w2_setup(self):
        return [salu("s_mov_b32", sNL, f32(-LOG2E)), salu("s_mul_i32", sHd, sW, 28 * 1024), salu("s_lshl_b32", sHo, sW, 13), salu("s_add_u32", sHo, sHo, 112 * 1024),
                salu("s_lshl_b32", sWd, sHd, 1), salu("s_lshl_b32", sWo, sHo, 1)]
    def h_load(self):
        gi = self.h_n; self.h_n += 1
        kind, g0, st, t = self.GORD[gi]
        o = [salu("s_add_u32", sT[0], sHd if kind == "d" else sHo, (g0 + (t & 3)) * 2048)]
        dst = self.hreg[gi] = self.pool.pop(0)
        for s in range(1 if self.cfg.dbg & 256 else 2):
            for tb in range(2):
                o += [buf_load("buffer_load_dwordx4", dst.sub(8 * s + 4 * tb, 4), vW[0] if self.cfg.dbg & 2 else vH[tb], rWS, 0 if self.cfg.dbg & 2 else sT[0], s * 1024, flags="sc1", tag=f"h{gi}")]
        return o
    def w2_addr(self):
        gi = self.w2_nd; self.w2_nd += 1
        kind, g, st, t = self.GORD[gi]
        return gi, [salu("s_add_u32", sWS, sWd if kind == "d" else sWo, (g + (t & 3)) * 4096)]
    def w2_load(self):
        gi, o = self.w2_addr()
        dst = self.wreg[gi] = self.pool.pop(0)
        return o + [buf_load("buffer_load_dwordx4", dst.sub(4 * i, 4), vW[i & 1], rWS, 0 if self.cfg.dbg & 4 else sWS, i * 1024, flags="sc1", tag=f"g{gi}") for i in range(2 if self.cfg.dbg & 128 else 4)]
    def w2_dma(self, slot):
        gi, o = self.w2_addr()
        assert slot not in self.w2slot.values()
        self.w2slot[gi] = slot
        return [set_m0(sWQ, slot * SLOT, f"g{gi}")] + o + [buf_dma(vW[i & 1], rWS, sWS, i * 1024, flags="sc1", tag=f"g{gi}") for i in range(4)]
    def w2_read(self):
        gi = min(self.w2slot)
        base = self.w2slot.pop(gi) * SLOT
        dst = self.wreg[gi] = self.pool.pop(0)
        o, imm = self.window(self.win2, 0, vWB, base, 4096)
        for i in o: i.tag = f"r{gi}"
        return [wait(vm=f"g{gi}")] + o + [ds_read("ds_read_b128", dst.sub(4 * i, 4), vWB, imm + i * 1024, tag=f"r{gi}") for i in range(4)]
    def phase2(self):
        c, add = self.cfg, self.add
        accF = [ACC2.sub(0, 16), A(80, 16), A(96, 16), A(112, 16)]
        accS = [ACC2.sub(16, 16)]
        PR = [None, ACC1.sub(0, 16), ACC1.sub(16, 16), ACC1.sub(32, 16)]
        xf = ACC1.sub(48, 16)
        red = [vSCR, vVTR, vTR0, vTR1, vDMA2, vHST]
        pool, hreg, wreg, h_load = self.pool, self.hreg, self.wreg, self.h_load
        pool += [A(128, 16), A(144, 16), A(160, 16)] + [A(16 * i, 16) for i in range(self.xf_n, 5)]
        light = []
        heavy = []
        pend = lambda q, tag: any(i.tag == tag for i in q)
        e = ([] if c.nspl else self.ffn_epi(ACC1.sub(0, 16), ACC1.sub(16, 16), 2, 0, "st3", pk=True)) + self.ffn_epi(ACC1.sub(32, 16), ACC1.sub(48, 16), 2, 256, "st4", pk=True)
        if c.px & 16: e = [x for x in e if x.kind == "vms" or x.op == "v_cvt_pk_bf16_f32"]
        if c.eov:
            e2 = self.ffn_epi(ACC1.sub(0, 16), ACC1.sub(16, 16), 2, 0, "st3") + self.ffn_epi(ACC1.sub(32, 16), ACC1.sub(48, 16), 2, 256, "st4")
            def cut(l, nb):
                k = [i for i, x in enumerate(l) if x.op == "v_cvt_pk_bf16_f32"][2 * nb - 1] + 1 if nb else 0
                return k + 1 if k < len(l) and l[k].kind == "vms" else k
            e, light[:] = e[:cut(e, 8 - c.eov)], e2[cut(e2, 8 - c.eov):]
            for i in light:
                if i.kind != "vms": i.tag = "ra"
        assert 9 not in self.w2slot.values()
        assert all(x < min(18, 20 - c.nspl) for x in range(20) if 6 <= slab_slot(x) <= 8)
        seq = []
        for gi in range(18):
            bl = (1, 2, 3) if gi >= 18 - c.defer else (0, 1, 2, 3)
            if c.snake and gi < 17: bl = (1, 3, 2) if len(bl) == 3 else (0, 1, 3, 2)
            seq += [(gi, s, b) for b in bl for s in range(2)] if gi == 17 else [(gi, s, b) for s in range(2) for b in bl]
        seq += [(gi, s, 0) for gi in range(18 - c.defer, 18) for s in range(2)]
        if c.tbs:
            g1 = 18 - c.tbs
            assert c.defer <= c.tbs
            seq = [(gi, s, b) for gi in range(g1) for s in range(2) for b in range(4)]
            seq += [(gi, s, b) for gi in range(g1, 18) for s in range(2) for b in (2, 3)]
            seq += [(gi, s, b) for gi in range(g1, 18) for s in range(2) for b in ((1,) if gi >= 18 - c.defer else (1, 0))]
            seq += [(gi, s, 0) for gi in range(18 - c.defer, 18) for s in range(2)]
        last = {gi: max(m for m, x in enumerate(seq) if x[0] == gi) for gi in range(18)}
        first = {gi: min(m for m, x in enumerate(seq) if x[0] == gi) for gi in range(18)}
        lastb = {b: max(m for m, x in enumerate(seq) if x[2] == b) for b in range(4)}
        g6 = 10 if c.m_pb == -1 else 6
        st = {"q": [], "gate": g6 if c.pa2_epi < 0 else 4, "x": False, "m": -1, "sw": False}
        def refill():
            okw = self.w2_nd < 18 and len(pool) > (1 if self.w2_nd <= self.h_n else c.keep)
            okh = self.h_n < (max(st["gate"], c.nogate) if st["gate"] else 0) and len(pool) > 1
            if okh and c.tbs and self.h_n == 18 - c.tbs:
                assert self.w2_nd == 18 and st["x"] and len(pool) >= c.tbs + len(self.w2slot), len(pool)
                ls = [h_load() for _ in range(c.tbs)]
                for tb in (1, 0):
                    for l in ls: st["q"] += [l[0], l[1 + tb], l[3 + tb]]
            elif okh and not (okw and self.w2_nd <= self.h_n + c.wlead): st["q"] += h_load()
            elif okw: st["q"] += self.w2_load()
            elif not st["x"] and st["m"] >= 0 and not pend(light, "ra"):
                st["x"] = True
                st["q"] += [set_m0(sWQ, 9 * SLOT, "xs"), salu("s_mov_b32", sT[1], 16384 - 1024),
                            buf_dma(red[4], rX, 0, 0, tag="xs"), buf_dma(red[4], rX, sT[1], 1024, tag="xs")]
        def pump():
            if not st["q"]: refill()
            while st["q"]:
                x = st["q"].pop(0); add(x)
                if x.kind in ("dma", "vml"): return True
            return False
        step = max(1, len(e) * 3 // 4 // max(1, c.epi_mem))
        k = 0
        for n, i in enumerate(e):
            if self.B and not c.splf and n == c.f2_epi: add(self.flag(L_O, "st2"))
            if n == c.pa2_epi: add(self.poll_check(*self.pa2)); st["gate"] = g6
            if n % step == 0 and k < c.epi_mem: pump(); k += 1
            add(i)
        add(self.stamp(129))
        started = set()
        ra = [salu("s_add_u32", sT[2], sWQ, 6 * SLOT), valu("v_lshl_add_u32", red[0], vLane, 4, sT[2])] + [valu("v_xor_b32", red[b], b * 4096, red[0]) for b in (1, 2, 3)]
        ra += [salu("s_and_b32", sT[2], sP2x, 64), salu("s_mul_i32", sT[3], sT[2], 511), salu("s_add_u32", sT[3], sT[3], sP2x),
               valu("v_lshrrev_b32", red[4], 3, vLane), valu("v_and_b32", red[5], 7, vLane), valu("v_lshlrev_b32", red[5], 4, red[5]),
               valu("v_lshl_add_u32", red[4], red[4], 11, red[5]), valu("v_add_u32", red[4], sT[3], red[4]),
               salu("s_lshr_b32", sT[3], sW, 1), salu("s_lshl_b32", sT[3], sT[3], 13), salu("s_add_u32", sT[3], sT[3], sT[2]), salu("s_add_u32", sT[3], sT[3], 9 * SLOT),
               valu("v_and_b32", red[5], 16, vLane), valu("v_lshlrev_b32", red[5], 1, red[5]), valu("v_and_or_b32", red[5], vLane, 15, red[5]), valu("v_lshlrev_b32", red[5], 7, red[5]),
               valu("v_and_or_b32", red[5], vLane, 32, red[5]), valu("v_add_u32", red[5], sT[3], red[5])]
        vOW, vOR = [vA01, vA23], vPOLLH
        if c.otr:
            ra += [valu("v_and_b32", vOR, 7, vLane), valu("v_lshlrev_b32", vOR, 4, vOR), valu("v_xor_b32", vOW[0], vOR, red[5]), valu("v_xor_b32", vOW[1], 16, vOW[0]),
                   valu("v_lshrrev_b32", vOR, 3, vLane), valu("v_xor_b32", vOR, vOR, vLane), salu("s_add_u32", sT[3], sWQ, 9 * SLOT), valu("v_lshl_add_u32", vOR, vOR, 4, sT[3])]
        for i in ra: i.tag = "ra"
        light += ra
        used = set()
        for m, (gi, s, b) in enumerate(seq):
            st["m"] = m
            kind = self.GORD[gi][0]
            if gi in self.w2slot or pend(light, f"r{gi}"):
                add(light); light.clear()
                while gi in self.w2slot: add(self.w2_read())
            while gi >= self.w2_nd or pend(st["q"], f"g{gi}"): assert pump(), (m, gi)
            while gi >= self.h_n or any(i.wr & set(hreg[gi].sub(8 * s + 4 * (b >> 1), 4).regs()) for i in st["q"]) or (not c.tbs and pend(st["q"], f"h{gi}")): assert pump(), (m, gi)
            a = (accF if kind == "d" else accS)[b]
            if c.gwait == 1: add(wait_regs(hreg[gi].sub(8 * s, 8), wreg[gi].sub(8 * s, 8)))
            if c.gwait == 2: add(wait_regs(hreg[gi], wreg[gi]))
            if c.m16 & 2:
                for q in range(2):
                    aq = a.sub(8 * s + 4 * q, 4)
                    if q and light and cyc(light[0]) <= 4 and light[0].kind == "valu":
                        add(light.pop(0))
                        if light and cyc(light[0]) <= 4 and light[0].kind == "valu": add(light.pop(0))
                    add(mfma(16, aq, wreg[gi].sub(8 * q + 4 * (b & 1), 4), hreg[gi].sub(8 * s + 4 * (b >> 1), 4), aq if (kind, b, s) in started else 0))
                started.add((kind, b, s))
            else: add(mfma(32, a, wreg[gi].sub(8 * s + 4 * (b & 1), 4), hreg[gi].sub(8 * s + 4 * (b >> 1), 4), a if (kind, b) in started else 0))
            started.add((kind, b))
            add(self.jit(0.1))
            if m == last[gi]:
                pool += [hreg[gi], wreg[gi]]
                if gi + (2 if c.ofirst else 0) in (3, 4, 5): accS.append(pool.pop())
                if gi in c.sp: add(self.stamp(128))
            busy = False
            if m == c.m_f4: add(self.flag(L_L0 if (c.m_pe > 0 and not self.B) else L_END, "st4"), self.stamp()); busy = True
            lb, lc = (L_L0 if c.splf else L_O), (L_L0 if c.m_pe > 0 else L_END)
            for mm, ln in ((c.m_pb, lb), (c.m_pc, lc), (c.m_pe, L_END)):
                if m == mm - c.m_pd: add(self.poll_issue(vPOLL, rWS, ln)); busy = True
            if m in (c.m_pb - 1, c.m_pe - 1) or (m == c.m_pc - 1 and c.m_pb > 0 and c.m_pe > 0): add(valu("v_xor_b32", vTHR, 1, vTHR))
            if m == c.m_pe: add(self.poll_check(vPOLL, rWS, vTHR, L_END)); st["gate"] = 18
            if m == c.m_pb: add(self.poll_check(vPOLL, rWS, vTHR, lb)); st["gate"] = 10
            if m == c.m_pc: add(self.poll_check(vPOLL, rWS, vTHR if c.m_pe > 0 else 1, lc), self.stamp()); st["gate"] = 14 if c.m_pe > 0 else 18; self.pre += (self.w2_nd, self.h_n)
            used.add((gi, s, b >> 1))
            ahead = 4 * self.h_n - sum(1 for i in st["q"] if i.kind == "vml") - len(used)
            if ((m % c.vstep < c.vnum if m < c.m_v1 else m % 2 == 0) or ahead < c.ahead) and not busy: busy = pump()
            if not light and self.w2slot and pool and m >= first[min(self.w2slot)] - c.rlead: light += self.w2_read()
            if m == last[7 if c.ofirst else 9] + 2:
                add(light); light.clear()
                while any(6 <= s_ <= 8 for s_ in self.w2slot.values()): add(self.w2_read())
                st["sw"] = True
                heavy += [wait(lg=[f"r{g}" for g in range(18)])]
                heavy += [ds_write("ds_write_b128", red[0], accS[b2].sub(4 * q, 4), (b2 - 1) * SLOT + q * 1024, tag="sw") for b2 in (1, 2, 3) for q in range(0 if c.dbg & 16384 else 4)]
            if m == c.m_sb:
                while not st["x"] or pend(st["q"], "xs"):
                    g18, nd = st["gate"], self.w2_nd; st["gate"] = 0; self.w2_nd = 18; assert pump(); st["gate"], self.w2_nd = g18, nd
                add(heavy); heavy = []
                add(wait(vm="xs", lg="sw"), barrier()); busy = True
                light += [ds_read("ds_read_b128", xf.sub(8 * i + 4, 4), red[5], 16 * i) for i in range(2)]
                light += [ds_read("ds_read_b128", PR[b2].sub(4 * q, 4), red[b2], (b2 - 1) * SLOT + q * 1024) for b2 in (1, 2, 3) for q in range(4)]
                for b2 in range(4):
                    i = valu("v_subrev_u32", red[b2], 6 * SLOT, red[b2]); i.tag = "ra"; light.append(i)
                for h in range(2):
                    for i in range(4):
                        src = xf[8 * h + 4 + i]
                        pr = [valu("v_lshlrev_b32", xf[8 * h + 2 * i], 16, src), valu("v_and_b32", xf[8 * h + 2 * i + 1], "0xffff0000", src)]
                        light += pr
                light += [valu("v_add_f32", accS[0][i], accS[0][i], PR[1][i]) for i in range(16)] + [valu("v_add_f32", PR[2][i], PR[2][i], PR[3][i]) for i in range(16)]
                light += [valu("v_add_f32", accS[0][i], accS[0][i], PR[2][i]) for i in range(16)]
            for b2 in (1, 2, 3):
                if m == lastb[b2] + 2:
                    assert m > c.m_sb
                    while pend(light, "ra"): add(light.pop(0))
                    heavy += [ds_write("ds_write_b128", red[0], accF[b2].sub(4 * q, 4), (b2 - 1) * SLOT + q * 1024) for q in range(0 if c.dbg & 32768 else 4)]
            if c.fbar and not st.get("fb") and m > max(lastb[1], lastb[2], lastb[3]) + 2 and not heavy:
                st["fb"] = True
                add(light); light.clear()
                add(wait(lg="all"), barrier(), self.jit())
                light += [ds_read("ds_read_b128", PR[b2].sub(4 * q, 4), red[b2], (b2 - 1) * SLOT + q * 1024) for q in range(4) for b2 in (1, 2, 3)]
                if c.fbar == 2:
                    light += [valu("v_add_f32", PR[2][i], PR[2][i], PR[3][i]) for i in range(16)] + [valu("v_add_f32", PR[2][i], PR[2][i], PR[1][i]) for i in range(16)]
            budget = 11 if busy else 24
            if st.get("fb"): budget = 36
            if any(i.kind == "vms" for i in light):
                assert m < c.m_f4
                budget = c.ebud - (14 if busy else 0)
                if light[0].kind == "vms": add(light.pop(0)); budget = 0
            if heavy and not busy and (m % c.hstep == 0 or m > lastb[1] or m < c.m_sb):
                while heavy:
                    x = heavy.pop(0); add(x)
                    if x.kind == "dsw": break
                budget = 0
            while light and cyc(light[0]) <= budget:
                budget -= cyc(light[0]); add(light.pop(0))
        assert self.h_n == 18 and self.w2_nd == 18 and not self.w2slot and not st["q"] and st["x"]
        add(self.stamp())
        add(heavy, light)
        if not st.get("fb"):
            add(wait(lg="all"), barrier(), self.jit())
            for q in range(4):
                for b in (1, 2, 3): add(ds_read("ds_read_b128", PR[b].sub(4 * q, 4), red[b], (b - 1) * SLOT + q * 1024))
        Fp, Sp, t = accF[0], accS[0], PR[1]
        if c.dbg & 32: add(valu("v_mov_b32", vXO, OOB))
        if c.dbg & 64: add(salu("s_lshl2_add_u32", sT[1], sWG, sW), salu("s_lshl_b32", sT[1], sT[1], 11), valu("v_lshl_add_u32", vXO, vLane, 4, sT[1]))
        for hq in range(2):
            r2 = range(8 * hq, 8 * hq + 8, 2); r1 = range(8 * hq, 8 * hq + 8)
            if not (c.fbar == 2 and st.get("fb")):
                add([valu("v_pk_add_f32", PR[2].sub(i, 2), PR[2].sub(i, 2), PR[3].sub(i, 2)) for i in r2])
                add([valu("v_pk_add_f32", Fp.sub(i, 2), Fp.sub(i, 2), PR[1].sub(i, 2)) for i in r2])
            add([valu("v_pk_add_f32", Fp.sub(i, 2), Fp.sub(i, 2), PR[2].sub(i, 2)) for i in r2])
            add([valu("v_pk_mul_f32", t.sub(i, 2), Fp.sub(i, 2), T.sub(0, 2)) for i in r2])
            if c.px & 32: r1 = []
            add([valu("v_exp_f32", t[i], t[i]) for i in r1])
            add([valu("v_pk_mul_f32", Sp.sub(i, 2), Sp.sub(i, 2), Fp.sub(i, 2)) for i in r2])
            add([valu("v_pk_add_f32", t.sub(i, 2), t.sub(i, 2), T.sub(2, 2)) for i in r2])
            add([valu("v_rcp_f32", t[i], t[i]) for i in r1])
            add([valu("v_pk_fma_f32", xf.sub(i, 2), Sp.sub(i, 2), t.sub(i, 2), xf.sub(i, 2)) for i in r2])
            add([valu("v_cvt_pk_bf16_f32", t[8 * hq + i], xf[8 * hq + 2 * i], xf[8 * hq + 2 * i + 1]) for i in range(4)])
            if c.otr: add(self.jit(), ds_write("ds_write_b128", vOW[hq], t.sub(8 * hq, 4)))
            else: add(buf_store("buffer_store_dwordx4", t.sub(8 * hq, 4), vXO, rOUT, 0, (1024 if c.dbg & 64 else 16) * hq, flags=c.outflags))
        if c.otr:
            add(salu("s_movk_i32", sT[1], 16384), wait(lg="all"), barrier(), [ds_read("ds_read_b128", xf.sub(4 * i, 4), vOR, 1024 * i) for i in range(2)])
            add([buf_store("buffer_store_dwordx4", xf.sub(4 * i, 4), red[4], rOUT, sT[1] if i else 0, flags=c.outflags) for i in range(2)])

    def finish(self):
        add = self.add
        if self.cfg.stamps:
            add(raw(f"{self.cfg.clock} s[14:15]", "smem"))
            add(wait(vm="all"))
            add(raw(f"{self.cfg.clock} s[16:17]\n    s_waitcnt lgkmcnt(0)", "smem"))
            add(valu("v_mov_b32", V(96), 0))
            for i in range(self.nst): add(raw(f"v_writelane_b32 v96, s{STAMPS[i]}, {1+i}", "valu", wr=["v96"]))
            add(raw(f"v_writelane_b32 v96, s{ST0}, 0", "valu", wr=["v96"]), raw(f"v_writelane_b32 v96, s14, {1+self.nst}", "valu", wr=["v96"]),
                raw(f"v_writelane_b32 v96, s16, {2+self.nst}", "valu", wr=["v96"]))
            add(salu("s_lshl_b32", sT[1], sWG, 2), salu("s_add_u32", sT[1], sT[1], sW), salu("s_lshl_b32", sT[1], sT[1], 6), salu("s_add_u32", sT[1], sT[1], STAMP_OFF),
                valu("v_lshl_add_u32", V(97), vLane, 2, sT[1]), salu("s_mov_b64", "exec", "0xffff"), buf_store("buffer_store_dword", V(96), V(97), rWS))
        add(raw("s_endpgm", "end"))

    def program(self):
        NS[0] = self.cfg.NS
        if self.cfg.ofirst:
            assert self.cfg.m_pb == -1
            G = Gen.GORD
            self.GORD = G[:4] + G[6:10] + G[4:6] + G[10:]
        assert self.cfg.NS <= (7 if self.B else 9)
        self.w2slot, self.slot_used, self.w2pos = {}, {}, {"d": 0, "o": 0}
        self.w2_nd = self.w2_nr = 0
        self.win2 = [0, 0]
        self.xf_n = 0
        self.h_n, self.hreg, self.wreg, self.hpos = 0, {}, {}, {"d": 0, "o": 0}
        self.e.comment('phase 0'); self.ramp(); self.e.comment('phase 1'); self.phase1(); self.e.comment('phase 2')
        self.pre = (self.w2_nd, len(self.w2slot), self.h_n)
        if not self.cfg.p1only: self.phase2()
        self.finish()
        return self.e.text() + self.slow

HEAD = open("recurrent_scan__sliding_local_dilated__swiglu_ffn__prompt.s.ref").read().split("; Override launch")[0]

DOC = """; One persistent launch, one workgroup (4 waves, 512 registers each) per CU; tokens are kept in parity-split order.
;  phase 1: 128 tokens x 320 weight columns per workgroup, weights streamed through an LDS ring (LDS-DMA + transposing reads),
;           B: k,v | q | gate,up with the dilated window attention done on 4x4x4 MFMAs; C: 2.5 gate/up pairs; h and o go to d_ws.
;  phase 2: 64 x 64 output tile per workgroup, K split over the waves, reduced through LDS; out = x + s * silu(ffn).
; Hand-offs: write-through (sc1) stores, counted wait, flag word; flag lines are cleared inside the launch (announced through d_debug).
"""
def build(cfg):
    s = HEAD + "; @launch grid=(256,1,1) block=(256,1,1) lds=163840\n"
    s += DOC
    s += f'.amdgcn_target "amdgcn-amd-amdhsa--gfx950"\n.text\n.globl {KNAME}\n.p2align 8\n.type {KNAME},@function\n{KNAME}:\n'
    s += f"""    s_cmp_ge_u32 s2, 256
    s_cbranch_scc0 L_go
    s_endpgm
L_go:
"""
    if cfg.stamps: s += f"    {cfg.clock} s[{ST0}:{ST0+1}]\n"
    s += f"""    s_load_dwordx2 s[24:25], s[0:1], 0
    s_load_dwordx16 s[4:19], s[0:1], 0
    s_load_dwordx4 s[20:23], s[0:1], 64
    v_lshrrev_b32 v1, 6, v0
    s_getpc_b64 s[28:29]
    v_readfirstlane_b32 {sW}, v1
    s_bfe_u32 s26, s2, 0x30003
    s_lshl_b32 s26, s26, 13
    v_lshrrev_b32 v2, 2, v0
    v_lshl_add_u32 v2, v2, 7, s26
    v_min_u32 v2, L_end-L_go-256, v2
    global_load_dword v3, v2, s[28:29]
    v_and_b32 {vLane}, 63, v0
    v_lshrrev_b32 v96, 3, {vLane}
    v_and_b32 v97, 7, v0
    s_lshl_b32 {sWQ}, {sW}, 12
    s_cmp_ge_u32 s2, 128
    s_cbranch_scc1 L_typeC
"""
    info = {}
    for typ in ("B", "C"):
        g = Gen(typ, cfg)
        g.e.vm.append(("pf", {"v3"}))
        s += f"L_type{typ}:\n" + g.program()
        info[typ] = (g.e.slots, g.e.nops, dict(g.e.count), [sum(max(32, 24 + x) for x in g.load[i:i + 32]) for i in range(0, 320, 32)], g.pre, g.nst + 3)
    s += "L_end:\n"
    s += f""".section .rodata,"a"
.p2align 6
.amdhsa_kernel {KNAME}
  .amdhsa_next_free_vgpr 512
  .amdhsa_next_free_sgpr 102
  .amdhsa_accum_offset 256
  .amdhsa_group_segment_fixed_size 0
  .amdhsa_kernarg_size 80
  .amdhsa_user_sgpr_count 2
  .amdhsa_user_sgpr_kernarg_segment_ptr 1
  .amdhsa_system_sgpr_workgroup_id_x 1
.end_amdhsa_kernel
"""
    return s, info

if __name__ == "__main__":
    cfg = Cfg()
    out = sys.argv[1]
    for a in sys.argv[2:]:
        k, v = a.split("=")
        assert hasattr(cfg, k) or hasattr(cfg, k[:-2]), k
        if k in ("outflags", "hflags", "pflags", "wflags"): v = v.replace("_", " ")
        elif k in ("sg", "sp", "xr", "xr_B", "xr_C"): v = [int(x) for x in v.split(",")]
        elif k not in ("clock", "planB", "planC"): v = int(v)
        setattr(cfg, k, v)
    s, info = build(cfg)
    open(out, "w").write(s)
    for k, v in info.items(): print(k, v)
```

```python
import sys, struct
sys.path.insert(0, "tools")
from emit import *
from asmlib import KNAME

FLAG_OFF, XN_OFF, HALO_OFF, WS_USED = 0x910000, 0x938000, 0xB38000, 0xF00000
WT_OFF, P6_OFF = 0xC01000, 0xE50000
L_HALO, L_P1, L_HALF, L_O, L_L0, L_END = [128 * i for i in range(6)]
FLAGA_OFF = 0x930000
STAMP_OFF = 0xB80000
OOB = 0x40000000
SLOT = 16384
HSTR = 145 * 1024
RP = 272
SCR = 7 * SLOT
SPARE = SCR + 137 * RP
LOG2E = 1.4426950408889634
def f32(x): return "0x%08x" % struct.unpack("<I", struct.pack("<f", x))[0]

class Cfg:
    stamps = 0
    clock = "s_memrealtime"
    sg = ()
    sp = ()
    p1only = 0
    LA = 8
    NB = 10
    spin = 1000000
    cbx = 0
    rot = 0
    sleep = 0
    cdbg = 2
    w_p_B = 2
    w_p = 1
    cone = 1
    px = 0
    ofirst = 0
    fbar = 0
    hstep = 2
    tbs = 6
    eov = 0
    ebud = 28
    nogate = 0
    jitter = 0
    bq = 1
    th1 = 1
    otr = 1
    chain = 1
    dpos = 1
    w_c0 = 3
    p0 = 1
    rlate = 0
    m16 = 0
    wstep = 4
    sconst = 1
    gwait = 0
    halo3 = 1
    c_delay = 1
    b_lean = 0
    xr = (2, 4, 6, 8, 4)
    splf = 0
    bar2 = 8
    map2 = 0
    one_pa = 0
    q_early = 1
    patom = 8
    f2_lag = 24
    rsel = 1
    tx = 1
    b_rest = None
    tlin = 0
    wo_late = -1
    sig_early = 0
    nodbg = 0
    f2_epi = -1
    pa2_epi = -1
    dbg = 0
    nspl = 0
    e0_end = 312
    f3_at = 30
    setup_early = 0
    w_0 = 0
    w_a = 0
    w_b = 2
    w_c = 4
    nx0 = 8
    xrate = 5
    planB = "6:l,7:l,8:l,9:l,10:l,11:P.l,12:l.H,13:l,14:l,15:l.l,16:l.d6,17:l.d0,18:h.h,19:h.h.l"
    planC = "6:l,7:l,8:l,9:l.w,10:l,11:l,12:l,13:l,14:l,15:l.l,16:l.l,17:l.d8,18:h.h,19:h.h.d7"
    ts_pos = -1
    f2_bar = 2
    pw_lead = 14
    pw_per = 6
    NS = 7
    xfree = 1
    kv_end = 141
    kv_mode = 5
    kw_end = 214
    p6_per = 4
    c_rest = 5
    c_tile = -1
    g_flag1 = 163
    g_halo = 200
    att_w = 24
    g_f1c = 210
    g_pa = 262
    h2_end = 240
    g_f2c = 264
    g_pa2 = 304
    epi_mem = 8
    m_f4 = 24
    m_pe = -99
    pa_per = 18
    m_f3 = -1
    m_pb = 24
    m_pc = 68
    m_pd = 12
    m_sb = 106
    defer = 4
    vstep = 1
    vnum = 1
    m_v1 = 0
    wlead = 1
    rlead = 12
    keep = 4
    ahead = 12
    outflags = "sc1"
    hflags = "sc1"
    pflags = "sc1"
    wflags = ""
    snake = 0

sWG = S(2)
pX, pQKV, pWO, pG, pU, pD, pOUT, pDBG, pWS = S(4, 2), S(6, 2), S(8, 2), S(12, 2), S(14, 2), S(16, 2), S(18, 2), S(20, 2), S(22, 2)
rX, rQKV, rGU, rD, rWO, rOUT, rWS, rDBG = S(24, 4), S(28, 4), S(32, 4), S(36, 4), S(40, 4), S(44, 4), S(48, 4), S(52, 4)
sW, sRB, sGQ, sJ, sTB2, sCB2, sWQ = S(56), S(57), S(58), S(59), S(60), S(61), S(62)
sT = [S(3), S(63), S(64), S(65)]
sM1, sM2 = S(66, 2), S(68, 2)
sHM0, sXS = S(70), S(71)
sJ1, sJ2, sJ3 = S(72, 2), S(74, 2), S(76, 2)
sTHR, sCNT = S(78), S(79)
sU = [S(60), S(61), S(58), S(59)]
sUh = [S(0), S(1)]
sHu = [S(4), S(5), S(6)]
sCS, sC1, sHd, sHo = S(7), S(8), S(9), S(10)
sWd, sWo, sWS, sW0 = S(40), S(41), S(42), S(43)
sOA = [0, S(11), S(12), S(13)]
sOB = [0, S(14), S(15), S(16)]
sNL, sH3 = S(17), S(18)
sP2h, sP2f, sP2x, sHS = S(20), S(21), S(22), S(23)
STAMPS = list(range(82, 102, 2))
ST0 = 80

ACC1, ACC2 = V(0, 64), V(64, 32)
VBUF = [V(96 + 16 * i, 16) for i in range(8)]
KA, SG = V(176, 24), V(200, 16)
T = V(224, 8)
(vF2, vA23, vA01, vP2, vHRB, vWB, vDMA2, vDMA1, vW1, vFV, vPV, vW0, vPOLL, vHALO, vPOLLH, vHLD,
 vFLG, vVTR, vSCR, vHST, vDMA0, vTR1, vTR0, vLane) = [V(232 + i) for i in range(24)]
vW = [vW0, vW1]
vP6 = vA01
vHLD2, vFH = V(222), V(223)
vXN = V(216)
vTCH = [V(217), V(218), V(219), V(220), V(221)]
vH = [vHRB, vHALO]
vXO, vTHR = vDMA1, vDMA0
X = A(0, 128)
WF = A(128, 40)
aDUM = A(168)
ABUF = [A(176 + 16 * i, 16) for i in range(5)]
NS = [5]
def slab_slot(n): return n % NS[0]

def cyc(i):
    k = i.kind
    if k in ("wait", "waitr", "waitcnt", "mfma"): return 0
    if k == "trans": return 8
    if k in ("dma", "vml"): return 14
    if k == "vms": return 30 if i.op.endswith("x4") else 20
    if k == "dsw": return 26
    if k == "dsr": return 11 if i.op.endswith("b128") else 4
    if k == "bar": return 14
    if k == "branch": return 8
    return 4

class Gen:
    def __init__(self, typ, cfg):
        self.typ, self.cfg = typ, cfg
        self.B = typ == "B"
        import copy
        self.cfg = cfg = copy.copy(cfg)
        for k, v in list(vars(cfg).items()) + list(vars(Cfg).items()):
            if k.endswith('_' + typ): setattr(cfg, k[:-2], getattr(cfg, k))
        self.e = Emitter()
        self.nst = 0
        self.nlab = 0
        self.slow = ""
        self.mid = []
        import random
        self.rng, self.njit = random.Random(cfg.jitter * 2 + self.B), 0
        self.TR = [vTR0, vTR1, T[6], T[7]] if self.B else [vTR0, vTR1, vA23, vPOLLH, vVTR, vHLD]
    def add(self, *ins):
        for i in ins: self.e.add(i)
    def stamp(self, mode=1):
        if not (self.cfg.stamps & mode): return self.jit(0.6)
        r = S(STAMPS[self.nst], 2); self.nst += 1
        return [raw(f"{self.cfg.clock} {r}", "smem")]
    def jit(self, p=1.0):
        if not self.cfg.jitter or self.rng.random() > p: return []
        self.njit += 1
        l = f"L_{self.typ}_j{self.njit}"
        if self.rng.random() < 0.7: cond = f"s_cmp_eq_u32 {sW}, {self.rng.randrange(4)}"
        else: cond = f"s_bitcmp1_b32 {sWG}, {self.rng.randrange(7)}"
        return [raw(f"{cond}\n    s_cbranch_scc0 {l}\n    s_sleep {self.rng.choice((2, 8, 20, 60))}\n{l}:", "branch")]
    def touch(self, va, srd, flags=""):
        i = buf_load("buffer_load_dword", aDUM, va, srd, flags=flags)
        i.wr = set()
        return [i]
    def poll_text(self, vaddr, srd, off):
        n = {str(vPOLL): (8, 1), str(vPOLLH): (1, 2), str(vP2): (48, 4), str(vP6): (32, 4), "v105": (2, 8), "v106": (8, 16)}[str(vaddr)]
        if not self.cfg.patom & n[1]: return None
        return (f"v_mov_b32 {vPV}, 15\n    s_bfm_b64 exec, {n[0]}, 0\n    v_mov_b32 {vPV}, 0\n"
                f"    buffer_atomic_add {vPV}, {vaddr}, {srd}, 0 offen offset:{off} sc0 sc1\n    s_mov_b64 exec, -1")
    def poll_issue(self, vaddr, srd, off=0):
        t = self.poll_text(vaddr, srd, off)
        if t:
            i = buf_load("buffer_load_dword", vPV, vaddr, srd, 0, off); i.text = t
            return [i]
        return [buf_load("buffer_load_dword", vPV, vaddr, srd, 0, off, flags=self.cfg.pflags)]
    def poll_check(self, vaddr, srd, thr, off=0):
        self.nlab += 1
        l = f"L_{self.typ}_p{self.nlab}"
        sl = f"    s_sleep {self.cfg.sleep}\n" if self.cfg.sleep else ""
        if self.cfg.stamps & 512:
            sl += f"    s_add_u32 s{STAMPS[self.nlab - 1]}, s{STAMPS[self.nlab - 1]}, 1\n"; self.nst = 8
        self.slow += (f"{l}_slow:\n    s_mov_b32 {sCNT}, 0\n{l}_spin:\n"
                f"{sl}    {self.poll_issue(vaddr, srd, off)[0].text}\n    s_add_u32 {sCNT}, {sCNT}, 1\n    s_waitcnt vmcnt(0)\n"
                f"    v_cmp_gt_u32 vcc, {thr}, {vPV}\n    s_cmp_ge_u32 {sCNT}, {self.cfg.spin}\n    s_cbranch_scc1 {l}_ok\n"
                f"    s_cbranch_vccnz {l}_spin\n    s_branch {l}_ok\n")
        return [valu("v_cmp_gt_u32", "vcc", thr, vPV), raw(f"s_cbranch_vccnz {l}_slow\n{l}_ok:", "branch")]
    def flag(self, stage, tag):
        return [wait(vm=tag), buf_store("buffer_store_dword", vFV, vFLG, rWS, 0, stage, flags="sc1")]

    def ramp(self):
        c, add, B = self.cfg, self.add, self.B
        t0, t1, t2, t3 = V(96), V(97), V(98), V(99)
        vXL, vXS, vRS, vST, vF0, vP0, vDB, vTLB, vSG, vXR, vTL, vTS = [V(100 + i) for i in range(12)]
        vR2, vTB0, vTB1, vPL, vPS = [V(162 + i) for i in range(5)]
        tl, p6 = V(168, 16), V(184, 4)
        xr, lo, z, part = V(112, 16), V(128, 16), V(144, 4), V(148, 8)
        sm, sq, one = V(156), V(157), V(158)
        rb = V(160, 2)
        srd = lambda r, p, n: [salu("s_mov_b32", r[0], p[0]), salu("s_mov_b32", r[1], p[1]), salu("s_mov_b32", r[2], n), salu("s_mov_b32", r[3], "0x20000")]
        gu = [salu("s_cmp_lt_u32", None, sW, 2), salu("s_cselect_b32", rGU[0], pG[0], pU[0]), salu("s_cselect_b32", rGU[1], pG[1], pU[1])]
        sizes = ((rX, pX, 2048 * 1024), (rWS, pWS, WS_USED), (rDBG, pDBG, 256), (rQKV, pQKV, 512 * 3072), (rOUT, pOUT, 2048 * 1024))
        XL = 8 * SLOT
        self.nslab = 0
        if c.stamps & 1024:
            add(raw(f"s_getreg_b32 s{STAMPS[0]}, hwreg(HW_REG_XCC_ID)\n    s_getreg_b32 s{STAMPS[1]}, hwreg(HW_REG_HW_ID)", "salu")); self.nst = 2
        if c.stamps & 512: add([salu("s_mov_b32", S(r), 0) for r in STAMPS])
        add(self.stamp(256))
        TL = (7 if B else 9) * SLOT
        roles = [salu("s_lshr_b32", sT[0], sWG, 3), salu("s_and_b32", sT[1], sWG, 7), salu("s_and_b32", sRB, sWG, 1), salu("s_lshl_b32", sRB, sRB, 3),
                 salu("s_and_b32", sT[2], sT[0], 7), salu("s_add_u32", sRB, sRB, sT[2]), salu("s_lshr_b32", sGQ, sT[1], 1), salu("s_lshr_b32", sJ, sT[0], 3),
                 salu("s_lshl_b32", sTB2, sT[1], 2), salu("s_and_b32", sT[2], sT[0], 3), salu("s_add_u32", sTB2, sTB2, sT[2]), salu("s_lshr_b32", sCB2, sT[0], 2)]
        if c.map2 == 1:
            roles = roles[:8] + [salu("s_and_b32", sT[2], sT[0], 7), salu("s_lshl3_add_u32", sTB2, sGQ, sT[2]), salu("s_and_b32", sT[2], sWG, 1), salu("s_lshl2_add_u32", sCB2, sT[2], sJ)]
        if c.map2 == 2:
            roles = roles[:8] + [salu("s_lshr_b32", sT[2], sT[0], 2), salu("s_lshl3_add_u32", sTB2, sGQ, sT[2]), salu("s_and_b32", sT[2], sWG, 1), salu("s_and_b32", sCB2, sT[0], 3),
                                 salu("s_lshl2_add_u32", sCB2, sT[2], sCB2)]
        if c.map2 == 3:
            roles = roles[:8] + [salu("s_lshl2_add_u32", sTB2, sT[1], sJ), salu("s_and_b32", sCB2, sT[0], 7)]
        if c.cbx: roles += [salu("s_xor_b32", sCB2, sCB2, c.cbx)]
        def tile_setup():
            if B:
                o = [salu("s_lshl2_add_u32", sT[1], sRB, sW), salu("s_lshl_b32", sT[2], sT[1], 13), salu("s_lshl1_add_u32", sT[3], sGQ, sJ)] + srd(rD, pWO, 512 * 1024)
            else:
                o = [salu("s_lshr_b32", sT[1], sW, 1), salu("s_lshl1_add_u32", sT[1], sT[0], sT[1]), salu("s_lshl_b32", sT[2], sT[1], 15),
                     salu("s_xor_b32", sCNT, sGQ, c.tx), salu("s_and_b32", sT[3], sW, 1), salu("s_lshl1_add_u32", sT[3], sCNT, sT[3])] + srd(rD, pD, 1792 * 1024)
            o += [salu("s_lshl_b32", sCNT, sT[3], 7), salu("s_add_u32", sT[2], sT[2], sCNT),
                  valu("v_lshrrev_b32", t2, 2, vLane), valu("v_and_b32", t2, 4, t2), valu("v_xor_b32", t2, t2, t1), valu("v_lshlrev_b32", t2, 4, t2),
                  valu("v_lshl_add_u32", t2, t0, 10, t2), valu("v_add_u32", vTL, sT[2], t2)]
            o += [salu("s_mul_i32", sT[2], sT[3], 72 * 4096), salu("s_lshl_b32", sT[1], sT[1], 10 if B else 12), salu("s_add_u32", sT[2], sT[2], sT[1]),
                  salu("s_add_u32", sT[2], sT[2], WT_OFF + (56 * 4096 if B else 0)),
                  ]
            if B: o += [salu("s_lshl4_add_u32", sT[1], sT[3], sRB)]
            else: o += [salu("s_lshl_b32", sT[1], sGQ, 5), salu("s_add_u32", sT[1], sT[1], sT[0])]
            o += [salu("s_and_b32", sT[3], sT[1], 7), salu("s_lshr_b32", sT[1], sT[1], 3), salu("s_lshl_b32", sT[1], sT[1], 7), salu("s_lshl2_add_u32", sT[1], sT[3], sT[1]),
                  salu("s_add_u32", sT[1], sT[1], FLAGA_OFF + (80 if B else 64) * 128)]
            if not B: o += [salu("s_cmp_lt_u32", None, sRB, 14), salu("s_cselect_b32", sT[2], sT[2], OOB)]
            o += [salu("s_cmp_eq_u32", None, sW, 0), salu("s_cselect_b32", sT[1], sT[1], OOB),
                  valu("v_lshl_add_u32", vTS, vLane, 4, sT[2]), valu("v_mov_b32", vF2, OOB), raw(f"v_writelane_b32 {vF2}, {sT[1]}, 0", "valu", rd=[vF2], wr=[vF2])]
            return o
        def tile_store():
            o = [valu("v_bfe_u32", t2, vLane, 2, 2), valu("v_lshrrev_b32", t3, 5, vLane), valu("v_lshl_add_u32", vTB0, t3, 4 if B else 2, t2), valu("v_lshlrev_b32", vTB0, 7, vTB0),
                 valu("v_lshrrev_b32", t2, 1, t2), valu("v_lshl_add_u32", vTB0, t2, 6, vTB0), valu("v_and_b32", t2, 1, vLane), valu("v_lshl_add_u32", vTB0, t2, 5, vTB0),
                 valu("v_and_or_b32", vTB0, vLane, 16, vTB0), valu("v_and_b32", t2, 2, vLane), valu("v_lshl_add_u32", vTB0, t2, 2, vTB0)]
            if B:
                o += [salu("s_and_b32", sT[1], sW, 1), salu("s_lshl_b32", sT[1], sT[1], 6), valu("v_xor_b32", vTB0, sT[1], vTB0),
                      salu("s_lshr_b32", sT[1], sW, 1), salu("s_lshl_b32", sT[1], sT[1], 10), salu("s_add_u32", sT[1], sT[1], TL), valu("v_add_u32", vTB0, sT[1], vTB0)]
                return o, [ds_read("ds_read_b64_tr_b16", tl.sub(2 * u, 2), vTB0, u * 512) for u in range(2)], [buf_store("buffer_store_dwordx4", tl.sub(0, 4), vTS, rWS, flags="sc1", tag="ts")]
            o += [salu("s_add_u32", sT[1], sWQ, TL), valu("v_add_u32", vTB0, sT[1], vTB0), valu("v_xor_b32", vTB1, 64, vTB0), wait(vm="tl")]
            for s_ in range(2):
                for cb in range(2):
                    for u in range(2): o += [ds_read("ds_read_b64_tr_b16", tl.sub(8 * s_ + 4 * cb + 2 * u, 2), (vTB0, vTB1)[cb], s_ * 2048 + u * 1024)]
            return o, [buf_store("buffer_store_dword", vFV, vF2, rWS, 0, 2048 if c.cone else 0, flags="sc1")], [buf_store("buffer_store_dwordx4", tl.sub(4 * i, 4), vTS, rWS, 0, 1024 * i, flags="sc1", tag="ts") for i in range(2 if c.dbg & 2048 else 4)]
        if B:
            if c.p0 == 1:
                add(salu("s_and_b32", sT[2], sWG, 63), salu("s_lshl_b32", sT[2], sT[2], 15), salu("s_lshr_b32", sT[1], sWG, 6), salu("s_lshl2_add_u32", sT[1], sT[1], sW),
                    salu("s_lshl_b32", sT[1], sT[1], 8), salu("s_add_u32", sT[1], sT[1], sT[2]),
                    valu("v_xor_b32", t2, t0, t1), valu("v_lshlrev_b32", t2, 4, t2), valu("v_lshl_add_u32", vXL, t0, 11, t2),
                    salu("s_add_u32", sXS, sT[1], 16384 - 1024), srd(*sizes[0])[2:], set_m0(sWQ, XL, "x"))
                add(self.stamp(256), raw("s_waitcnt lgkmcnt(0)", "waitcnt"), self.stamp(256))
                add(buf_dma(vXL, rX, sT[1], 0, tag="x"), buf_dma(vXL, rX, sXS, 1024, tag="x"), set_m0(sWQ, XL + 2048 - 128, "x"), salu("s_mov_b32", rWS[0], pWS[0]),
                    buf_dma(vXL, rX, sT[1], 128, tag="x"), buf_dma(vXL, rX, sXS, 1024 + 128, tag="x"))
            else:
                add(salu("s_and_b32", sT[2], sWG, 63), salu("s_lshl2_add_u32", sT[2], sT[2], sW), salu("s_lshr_b32", sT[1], sWG, 6), salu("s_lshl3_add_u32", sT[1], sT[2], sT[1]),
                    salu("s_lshl_b32", sT[1], sT[1], 10), valu("v_lshl_add_u32", vXL, vLane, 4, sT[1]), salu("s_mul_i32", sCNT, sW, 4352),
                    salu("s_movk_i32", sT[1], 960), salu("s_movk_i32", sT[2], 1920), salu("s_movk_i32", sT[3], 2880), srd(*sizes[0])[2:], set_m0(sCNT, XL, "x"))
                add(self.stamp(256), raw("s_waitcnt lgkmcnt(0)", "waitcnt"), self.stamp(256))
                add([buf_dma(vXL, rX, sT[i] if i else 0, 1088 * i, tag="x") for i in range(4)], salu("s_mov_b32", rWS[0], pWS[0]))
                add(valu("v_and_b32", vST, 3, vLane), valu("v_mul_u32_u24", t2, 1088, vST), valu("v_lshrrev_b32", vXL, 2, vLane), valu("v_lshl_add_u32", t2, vXL, 4, t2),
                    salu("s_add_u32", sCNT, sCNT, XL), valu("v_add_u32", vXR, sCNT, t2))
            add(self.stamp(256))
            add(srd(*sizes[1])[1:])
            if c.rsel: add(salu("s_lshr_b32", sT[1], sWG, 3), salu("s_and_b32", sT[2], sWG, 1), salu("s_lshl1_add_u32", sT[1], sT[1], sT[2]), salu("s_and_b32", sT[3], sWG, "0xe6"))
            else: add(salu("s_mov_b32", sT[1], sWG), salu("s_lshr_b32", sT[3], sWG, 3))
            add(salu("s_lshl_b32", sT[2], sT[1], 11), salu("s_add_u32", sT[2], sT[2], FLAGA_OFF), salu("s_lshl_b32", sT[1], sT[1], 2),
                salu("s_or_b32", sT[3], sT[3], sW), salu("s_cselect_b32", sT[2], OOB, sT[2]), salu("s_cselect_b32", sT[1], OOB, sT[1]),
                salu("s_lshl_b32", sT[3], sWG, 10), salu("s_add_u32", sT[3], sT[3], FLAG_OFF), salu("s_cmp_eq_u32", None, sW, 1),
                [salu("s_cselect_b32", sT[3], sT[3], OOB), valu("v_lshl_add_u32", vR2, vLane, 4, sT[3]), salu("s_mov_b32", sT[3], 7)] if c.rlate else
                [salu("s_cselect_b32", sT[2], sT[3], sT[2]), salu("s_cselect_b32", sT[3], 6, 7)],
                valu("v_lshrrev_b32", t2, 2, vLane), valu("v_and_b32", t3, 3, vLane), valu("v_lshlrev_b32", t3, 4, t3), valu("v_lshl_add_u32", t2, t2, sT[3], t3),
                valu("v_add_u32", vRS, sT[2], t2), valu("v_mov_b32", vSG, sT[1]), [valu("v_mov_b32", z[i], 0) for i in range(4)])
            add(buf_store("buffer_store_dwordx4", z, vRS, rWS, flags="sc1", tag="reset"))
            add(roles)
            for q in sizes[2:]: add(srd(*q))
            if c.bq:
                add(salu("s_lshl1_add_u32", sT[0], sRB, sJ), salu("s_lshl2_add_u32", sT[1], sT[0], sW), salu("s_mul_i32", sT[1], sT[1], 4 * 3072), salu("s_lshl_b32", sT[2], sGQ, 8),
                    salu("s_add_u32", sT[1], sT[1], sT[2]),
                    valu("v_min_u32", t2, 5, t1), valu("v_and_b32", t3, 1, t2), valu("v_lshrrev_b32", t2, 1, t2), valu("v_lshl_add_u32", t2, t2, 3, t3),
                    valu("v_and_b32", t3, 3, t0), valu("v_mul_u32_u24", t3, 3072, t3), valu("v_lshl_add_u32", t2, t2, 7, t3), valu("v_add_u32", t2, sT[1], t2), self.touch(t2, rQKV))
            add(gu, srd(rGU, pG, 512 * 3584)[2:], tile_setup())
            if c.wo_late == -1: add(salu("s_lshr_b32", sT[1], sWQ, 2), set_m0(sT[1], TL, "tl"), buf_dma(vTL, rD, tag="tl"))
        else:
            add(roles)
            add(salu("s_lshl_b32", sT[0], sRB, 1), salu("s_add_u32", sT[0], sT[0], sJ), salu("s_sub_u32", sT[0], sT[0], 2),
                valu("v_and_b32", t3, 1, t1), [] if c.bq else [
                salu("s_lshl2_add_u32", sT[1], sT[0], sW), salu("s_mul_i32", sT[1], sT[1], 4 * 3072), salu("s_lshl_b32", sT[2], sGQ, 8), salu("s_add_u32", sT[1], sT[1], sT[2]),
                valu("v_and_b32", t2, 3, t0), valu("v_mul_u32_u24", t2, 3072, t2), valu("v_lshl_add_u32", t2, t3, 7, t2),
                valu("v_add_u32", vTCH[3], sT[1], t2), valu("v_bfe_u32", t2, t1, 1, 1), valu("v_add_u32", t2, 1, t2), valu("v_lshl_add_u32", vTCH[1], t2, 10, vTCH[3])],
                salu("s_and_b32", sT[2], sW, 1), salu("s_lshl1_add_u32", sT[1], sT[0], sT[2]), salu("s_mul_i32", sT[1], sT[1], 8 * 3584),
                salu("s_mul_i32", sT[2], sGQ, 7 * 128), salu("s_add_u32", sT[1], sT[1], sT[2]),
                valu("v_mul_u32_u24", t2, 3584, t0), valu("v_add_u32", t2, sT[1], t2), valu("v_lshl_add_u32", vTCH[0], t3, 7, t2))
            if c.tlin:
                add(salu("s_sub_u32", sT[2], sWG, 128), salu("s_lshl2_add_u32", sT[3], sT[2], sW), salu("s_mul_i32", sCNT, sT[3], 3072),
                    valu("v_min_u32", vTCH[1], 23, vLane), valu("v_lshl_add_u32", vTCH[1], vTCH[1], 7, sCNT),
                    salu("s_mul_i32", sCNT, sT[3], 3584), valu("v_min_u32", vTCH[4], 27, vLane), valu("v_lshl_add_u32", vTCH[4], vTCH[4], 7, sCNT),
                    salu("s_and_b32", sT[3], sW, 1), salu("s_lshl1_add_u32", sT[3], sT[2], sT[3]), salu("s_mul_i32", sT[3], sT[3], 7168),
                    valu("v_min_u32", vTCH[0], 55, vLane), valu("v_lshl_add_u32", vTCH[0], vTCH[0], 7, sT[3]))
            add([] if c.bq else srd(*sizes[3])[2:], srd(rGU, pG, 512 * 3584)[2:])
            add(self.stamp(256), raw("s_waitcnt lgkmcnt(0)", "waitcnt"), self.stamp(256))
            if c.c_delay:
                add(salu("s_mov_b32", sT[3], sT[1]), [self.dma_setup(ch) for ch in range(3)], salu("s_mov_b32", sT[1], sT[3]))
            if c.tlin == 2: add(srd(rD, pD, 1792 * 1024), self.touch(vTCH[4], rD))
            add([] if c.bq else srd(*sizes[3])[:2] + self.touch(vTCH[1], rQKV), gu, self.touch(vTCH[0], rGU), self.stamp(256))
            add(valu("v_and_b32", t3, 3, t1), valu("v_add_u32", t3, 2, t3), valu("v_lshl_add_u32", vTCH[2], t3, 7, t2),
                valu("v_bfe_u32", t2, vLane, 2, 3), valu("v_mul_u32_u24", t2, 3584, t2), valu("v_bfe_u32", t3, vLane, 4, 1), valu("v_xor_b32", t3, t3, vLane), valu("v_and_b32", t3, 3, t3),
                valu("v_lshl_add_u32", t2, t3, 4, t2),
                valu("v_lshrrev_b32", t3, 5, vLane), valu("v_lshl_add_u32", t2, t3, 6, t2), salu("s_add_u32", sT[1], sT[1], 768), valu("v_add_u32", vPL, sT[1], t2),
                buf_load("buffer_load_dwordx4", p6, vPL, rGU),
                salu("s_lshr_b32", sT[1], sT[0], 3), salu("s_lshl_b32", sT[1], sT[1], 14), salu("s_and_b32", sT[2], sT[0], 7), salu("s_lshl_b32", sT[2], sT[2], 10),
                salu("s_add_u32", sT[1], sT[1], sT[2]), salu("s_and_b32", sT[2], sW, 1), salu("s_lshl_b32", sT[2], sT[2], 9), salu("s_add_u32", sT[1], sT[1], sT[2]),
                salu("s_lshr_b32", sT[2], sW, 1), salu("s_lshl_b32", sT[2], sT[2], 13), salu("s_add_u32", sT[1], sT[1], sT[2]),
                salu("s_lshl_b32", sT[2], sGQ, 17), salu("s_add_u32", sT[1], sT[1], sT[2]), salu("s_add_u32", sT[1], sT[1], P6_OFF),
                valu("v_and_b32", t2, 31, vLane), valu("v_lshlrev_b32", t2, 4, t2), valu("v_lshl_add_u32", t2, t3, 16, t2), valu("v_add_u32", vPS, sT[1], t2),
                )
            add(tile_setup())
            tdma = [set_m0(sWQ, TL, "tl"), salu("s_mov_b32", sTHR, 7168)]
            for i in range(2 if c.dbg & 2048 else 4):
                tdma += [buf_dma(vTL, rD, sTHR if i else 0, 1024 * i, tag="tl")]
                if 0 < i < 3: tdma += [salu("s_add_u32", sTHR, sTHR, 7168)]
            self.rest = [] if (c.tlin or c.b_rest is not None) else self.touch(vTCH[3], rQKV) + self.touch(vTCH[2], rGU)
            self.tdma = tdma
            if c.c_tile == -1: add(tdma)
            if c.bq: self.rest.pop(0)
            elif c.q_early and self.rest: add(self.rest.pop(0))
            if c.c_rest == -1: add(self.rest)
            add(srd(*sizes[0])[2:])
            for q in sizes[1:3] + sizes[4:]: add(srd(*q))
        add(valu("v_mov_b32", vFV, 1))
        sa, sb = (8 * 3072, 8 * 3584) if B else (8 * 3584, 16 * 3584)
        for i in (1, 2, 3):
            add(salu("s_mov_b32", sOA[i], i * (sa - 1024)), [salu("s_mov_b32", sOB[i], i * (sb - 1024))] if B else [])
        if B or not c.c_delay: add(self.dma_setup(0))
        if B:
            for _ in range(c.w_0): add(self.dma_slab())
            add(salu("s_lshr_b32", sT[0], sWG, 1), salu("s_and_b32", sT[3], sWG, 1),
                salu("s_lshl_b32", sT[1], sT[0], 15), salu("s_lshl_b32", sT[2], sW, 13), salu("s_add_u32", sT[1], sT[1], sT[2]), salu("s_lshl_b32", sT[2], sT[3], 10),
                salu("s_add_u32", sT[1], sT[1], sT[2]), salu("s_add_u32", sT[1], sT[1], XN_OFF))
            if c.p0 == 1:
                add(valu("v_lshrrev_b32", t2, 4, vLane), valu("v_and_b32", t3, 2, t2), valu("v_xor_b32", t3, t3, t1), valu("v_lshlrev_b32", t3, 4, t3), valu("v_and_b32", vST, 15, vLane),
                    valu("v_lshl_add_u32", t3, vST, 7, t3), valu("v_and_b32", t2, 1, t2), valu("v_lshl_add_u32", t3, t2, 3, t3),
                    salu("s_add_u32", sT[2], sWQ, XL), valu("v_add_u32", vXR, sT[2], t3), valu("v_xor_b32", vXL, 64, vXR), valu("v_xor_b32", vPL, 16, vXR), valu("v_xor_b32", vPS, 16, vXL),
                    valu("v_lshl_add_u32", vXS, vLane, 4, sT[1]),
                    valu("v_lshlrev_b32", vST, 5, vST), valu("v_add_u32", vST, SPARE, vST),
                    salu("s_lshl_b32", sT[2], sW, 2), valu("v_lshrrev_b32", t3, 5, vLane), valu("v_lshl_add_u32", t3, t3, 4, sT[2]), valu("v_add_u32", vRS, t3, vST))
            else:
                add(valu("v_lshlrev_b32", t3, 4, vST), valu("v_lshl_add_u32", t3, vXL, 9, t3), valu("v_add_u32", vXS, sT[1], t3))
            add(
                salu("s_lshl_b32", sT[1], sT[0], 7), salu("s_lshl_b32", sT[2], sT[3], 2), salu("s_add_u32", sT[1], sT[1], sT[2]), salu("s_add_u32", sT[1], sT[1], FLAGA_OFF),
                salu("s_cmp_eq_u32", None, sW, 0), salu("s_cselect_b32", sT[1], sT[1], OOB),
                valu("v_mov_b32", t2, OOB), valu("v_mov_b32", t3, sT[1]), valu("v_cmp_eq_u32", "vcc", 0, vLane), valu("v_cndmask_b32", vF0, t2, t3, "vcc"),
                valu("v_mov_b32", one, "0x3f803f80"), valu("v_mov_b32", sm, 0), valu("v_mov_b32", sq, 0), salu("s_mov_b32", sXS, 4096))
        add(salu("s_lshl_b32", sT[1], sRB, 2), salu("s_add_u32", sT[1], sT[1], sW), salu("s_lshl_b32", sT[2], sT[1], 7), salu("s_add_u32", sT[2], sT[2], FLAGA_OFF),
            valu("v_and_b32", vPOLL, 1, vLane), valu("v_lshlrev_b32", vPOLL, 2, vPOLL), valu("v_add_u32", vP0, sT[2], vPOLL),
            salu("s_lshl_b32", sT[1], sT[1], 15), salu("s_add_u32", sT[1], sT[1], 0 if c.px & 128 else XN_OFF), valu("v_lshl_add_u32", vXN, vLane, 4, sT[1]),
            salu("s_cmp_eq_u32", None, sW, 0), salu("s_cselect_b32", sT[1], 0, OOB), salu("s_cselect_b32", sT[3], 0 if c.nodbg else 1, 0),
            valu("v_lshl_add_u32", vDB, t1, 2, sT[1]), valu("v_mov_b32", vTLB, sT[3]))
        if not B and not c.c_delay: add(self.dma_setup(1), self.dma_setup(2))
        if B and not c.b_lean: add(self.dma_setup(1), self.dma_setup(2))
        add(self.w2_setup())
        if c.setup_early or not B: self.misc_setup()
        add(self.stamp(65 + 256))
        if B:
            add(wait(vm="x"))
            if c.p0 == 1: add([ds_read("ds_read_b64", xr.sub(4 * i + 2 * u, 2), ((vXR, vPL), (vXL, vPS))[i & 1][u], 2048 * (i >> 1)) for i in range(4) for u in range(2)])
            else: add([ds_read("ds_read_b128", xr.sub(4 * i, 4), vXR, 256 * i) for i in range(4)])
            if c.sig_early: add(wait(vm="reset"), buf_store("buffer_store_dword", vFV, vSG, rDBG, flags="sc1"))
            add(self.stamp(64 + 256))
            for r in range(16): add(valu("v_dot2c_f32_bf16", sm, xr[r], one, rmw=True), valu("v_dot2c_f32_bf16", sq, xr[r], xr[r], rmw=True))
            add([valu("v_lshlrev_b32", lo[i], 16, xr[i]) for i in range(3)])
            add(valu("v_permlane32_swap_b32", sm, sq, rmw=True, wr2=sq), valu("v_add_f32", sm, sm, sq), valu("v_mov_b32", sq, sm))
            add([valu("v_lshlrev_b32", lo[i], 16, xr[i]) for i in (3, 4)])
            add(valu("v_permlane16_swap_b32", sm, sq, rmw=True, wr2=sq), valu("v_add_f32", sm, sm, sq))
            sig = [] if c.sig_early else [wait(vm="reset"), buf_store("buffer_store_dword", vFV, vSG, rDBG, flags="sc1")]
            shl = lambda a, b: [valu("v_lshlrev_b32", lo[i], 16, xr[i]) for i in range(a, b)]
            if c.p0 == 1:
                add(ds_write("ds_write_b32", vRS, sm, tag="st"), sig, shl(5, 16))
                add(wait(lg="st"), self.stamp(256), barrier(), self.stamp(256))
                add([ds_read("ds_read_b128", part.sub(4 * i, 4), vST, 16 * i) for i in range(2)])
                add([valu("v_and_b32", xr[i], "0xffff0000", xr[i]) for i in range(16)])
                add(valu("v_pk_add_f32", part.sub(0, 2), part.sub(0, 2), part.sub(2, 2)), valu("v_pk_add_f32", part.sub(4, 2), part.sub(4, 2), part.sub(6, 2)),
                    valu("v_add_f32", sm, part[0], part[1]), valu("v_add_f32", sq, part[4], part[5]))
            else:
                add(shl(5, 7), valu("v_add_f32_dpp", sm, sm, sm, extra="row_ror:8 row_mask:0xf bank_mask:0xf"),
                    shl(7, 9), valu("v_add_f32_dpp", sm, sm, sm, extra="row_ror:4 row_mask:0xf bank_mask:0xf"), valu("v_mov_b32", sq, sm),
                    shl(9, 11), valu("v_permlane32_swap_b32", sm, sq, rmw=True, wr2=sq), sig, shl(11, 16), self.stamp(256), self.stamp(256))
                add([valu("v_and_b32", xr[i], "0xffff0000", xr[i]) for i in range(16)])
            add(
                valu("v_mul_f32", sm, f32(1 / 512), sm), valu("v_mul_f32", sq, f32(1 / 512), sq),
                valu("v_fma_f32", sq, f"-{sm}", sm, sq), valu("v_max_f32", sq, 0, sq),
                valu("v_cvt_pk_bf16_f32", sq, sq, sm),
                valu("v_and_b32", sm, "0xffff0000", sq), valu("v_lshlrev_b32", sq, 16, sq),
                valu("v_add_f32", sq, f32(1e-5), sq), valu("v_cvt_pk_bf16_f32", sq, sq, sq), valu("v_lshlrev_b32", sq, 16, sq),
                valu("v_sqrt_f32", sq, sq), valu("v_cvt_pk_bf16_f32", sq, sq, sq), valu("v_lshlrev_b32", sq, 16, sq),
                valu("v_rcp_f32", rb[1], sq), valu("v_mul_f32", rb[0], f"-{sm}", rb[1]))
            for h in range(2 if c.dbg & 1024 else 4):
                for r in (lo, xr):
                    add([valu("v_pk_fma_f32", r.sub(i, 2), r.sub(i, 2), rb, rb, extra="op_sel:[0,1,0] op_sel_hi:[1,1,0]") for i in (4 * h, 4 * h + 2)])
                add([valu("v_cvt_pk_bf16_f32", xr[i], lo[i], xr[i]) for i in range(4 * h, 4 * h + 4)])
                if c.p0 == 1: add(buf_store("buffer_store_dwordx4", xr.sub(4 * h, 4), vXS, rWS, sXS if h >> 1 else 0, 2048 * (h & 1), flags="sc1", tag=f"xs{h}"))
                else: add(salu("s_movk_i32", sXS, 8192 * h), buf_store("buffer_store_dwordx4", xr.sub(4 * h, 4), vXS, rWS, sXS, flags="sc1"))
            if c.rlate: add(buf_store("buffer_store_dwordx4", z, vR2, rWS, flags="sc1"))
            if c.dpos == 0: add(self.poll_issue(vDB, rDBG))
            add(self.stamp(64 + 4096))
            if c.dpos != 2:
                for _ in range(c.w_a): add(self.dma_slab())
            if c.b_rest is not None:
                add(salu("s_lshl1_add_u32", sT[0], sRB, sJ), salu("s_lshl2_add_u32", sT[1], sT[0], sW), salu("s_mul_i32", sT[1], sT[1], 4 * 3072), salu("s_lshl_b32", sT[2], sGQ, 8),
                    salu("s_add_u32", sT[1], sT[1], sT[2]), valu("v_and_b32", t2, 3, t0), valu("v_mul_u32_u24", t2, 3072, t2), valu("v_and_b32", t3, 1, t1),
                    valu("v_lshl_add_u32", t2, t3, 7, t2), valu("v_add_u32", vTCH[3], sT[1], t2),
                    salu("s_and_b32", sT[2], sW, 1), salu("s_lshl1_add_u32", sT[1], sT[0], sT[2]), salu("s_mul_i32", sT[1], sT[1], 8 * 3584),
                    salu("s_mul_i32", sT[2], sGQ, 7 * 128), salu("s_add_u32", sT[1], sT[1], sT[2]), salu("s_add_u32", sT[1], sT[1], 256),
                    valu("v_mul_u32_u24", t2, 3584, t0), valu("v_add_u32", t2, sT[1], t2), valu("v_and_b32", t3, 3, t1), valu("v_lshl_add_u32", vTCH[2], t3, 7, t2))
                self.rest = self.touch(vTCH[3], rQKV) + self.touch(vTCH[2], rGU)
            if c.b_lean: add(self.dma_setup(1), self.dma_setup(2))
            self.mid = self.poll_issue(vDB, rDBG) if c.dpos == 3 else []
            if not c.setup_early: self.misc_setup()
            if c.dpos in (1, 2): add(self.poll_issue(vDB, rDBG))
            if c.dpos == 2:
                for _ in range(c.w_a): add(self.dma_slab())
            pre, rd, self.ts = tile_store()
            add(pre)
            if c.stamps & 4096: add(self.stamp(4096), wait(vm="xs0"), self.stamp(4096), wait(vm="xs3"), self.stamp(4096), wait(vm="w0"), self.stamp(4096))
            if not c.px & 256: add(self.poll_check(vDB, rDBG, vTLB))
            add(self.stamp(64 + 4096))
            add(barrier(), self.stamp(64), buf_store("buffer_store_dword", vFV, vF0, rWS, flags="sc1", tag="f0"))
            wo = [salu("s_lshr_b32", sT[1], sWQ, 2), set_m0(sT[1], TL, "tl"), buf_dma(vTL, rD, tag="tl")]
            if c.wo_late == 0: add(wo)
            for _ in range(c.w_b): add(self.dma_slab())
        else:
            pre, rd, self.ts = tile_store()
            for _ in range(c.w_c0): add(self.dma_slab())
            if c.cdbg == 1: add(self.poll_issue(vDB, rDBG))
            if c.c_tile == -1: add(pre)
            else:
                assert c.ts_pos > c.c_tile and c.ts_pos >= 0
                add(pre[:14]); self.ts = pre[14:] + self.ts
            if c.w_c0: add(self.stamp(64 + 256), self.stamp(256), self.stamp(64 + 256))
            else: add(self.stamp(64 + 256), self.dma_slab(), self.stamp(256), wait(vm="w0"), self.stamp(64 + 256))
            if c.cdbg == 2: add(self.poll_issue(vDB, rDBG))
            add(buf_store("buffer_store_dwordx4", p6, vPS, rWS, flags="sc1"))
            if c.ts_pos < 0: add(self.ts); self.ts = []
            if not c.cdbg: add(self.poll_issue(vDB, rDBG))
            while self.nslab < c.w_c: add(self.dma_slab())
            if c.c_tile == -2: add(tdma)
            if c.c_rest == -2: add(self.rest)
            if not c.px & 256: add(self.poll_check(vDB, rDBG, vTLB), self.stamp(64), barrier(), self.stamp(64))
        if not c.px & 128: add(self.poll_issue(vP0, rWS))
        for _ in range(c.w_p): add(self.dma_slab())
        if c.stamps & 4096:
            add(self.stamp(4096), wait(vm="f0"), self.stamp(4096), wait(vm=f"w{self.nslab-1}"), self.stamp(4096), wait_regs(vPV), self.stamp(4096))
            self.nst = 10
        if not c.px & 128: add(wait_regs(vPV), self.stamp(64), self.poll_check(vP0, rWS, 1))
        add(self.stamp(65 + 256))
        self.nx = 0
        for _ in range(c.nx0 // 2): add(self.x_load())
        add(wait(vm=["w0", "tl"] if B else "w0"), barrier(), rd)
        F = self.frag_list()
        for k in range(c.LA):
            add(self.frag_reads(k, F[k]))
            if k % 2 and self.nx < c.nx0: add(self.x_load())
        while self.nx < c.nx0: add(self.x_load())
    def x_load(self):
        j = self.nx; self.nx += 1
        o = []
        if j % 4 == 0: o += [salu("s_mov_b32", sXS, j * 1024)]
        return o + [buf_load("buffer_load_dwordx4", X.sub(4 * j, 4), vXN, rX if self.cfg.px & 128 else rWS, 0 if self.cfg.dbg & 8 else sXS, (j % 4) * 1024, flags="sc1")]

    def misc_setup(self):
        add = self.add
        t0, t1, t2, t3 = T[0], T[1], T[2], T[3]
        TR = self.TR
        add(valu("v_bfe_u32", t0, vLane, 2, 3), valu("v_and_b32", t1, 32, vLane), valu("v_lshrrev_b32", t1, 1, t1), valu("v_add_u32", t1, t1, t0),
            valu("v_and_b32", t2, 1, vLane), valu("v_lshlrev_b32", t2, 3, t2), valu("v_and_b32", t3, 2, vLane),
            valu("v_lshl_add_u32", TR[0], t1, 7, t2), valu("v_lshl_add_u32", TR[0], t3, 5, TR[0]), valu("v_lshrrev_b32", t0, 1, t0), valu("v_lshl_add_u32", TR[0], t0, 4, TR[0]),
            [valu("v_xor_b32", TR[i], 16 * i, TR[0]) for i in (1, 2, 3)])
        if not self.B:
            add(valu("v_lshl_add_u32", TR[4], t1, 6, t2), valu("v_lshl_add_u32", TR[4], t3, 4, TR[4]), valu("v_and_or_b32", TR[4], vLane, 16, TR[4]), valu("v_xor_b32", TR[5], 16, TR[4]))
        self.win = [0] * 6
        for ch in range(3):
            if not (self.B and ch == 0): add(self.set_hu(ch))
        if self.B: add(self.att_setup())
        add(self.mid)
        add(salu("s_lshl_b32", sT[1], sRB, 2), salu("s_add_u32", sT[1], sT[1], sW), salu("s_mul_i32", sT[2], sT[1], HSTR),
            valu("v_and_b32", t0, 16, vLane), valu("v_lshlrev_b32", t0, 1, t0), valu("v_and_or_b32", t0, vLane, 15, t0), valu("v_lshl_add_u32", t0, t0, 4, sT[2]),
            valu("v_and_b32", t1, 32, vLane), valu("v_lshl_add_u32", vHST, t1, 6, t0))
        if not self.B: add(valu("v_lshl_add_u32", vSCR, t1, 5, t0))
        if self.cfg.dbg & 1: add(valu("v_mov_b32", vHST, OOB))
        add(salu("s_lshr_b32", sT[1], sT[1], 1), salu("s_lshl_b32", sT[1], sT[1], 2), salu("s_add_u32", sT[1], sT[1], sGQ), salu("s_lshl_b32", sT[1], sT[1], 10),
            salu("s_and_b32", sT[2], sW, 1), salu("s_lshl_b32", sT[3], sJ, 1), salu("s_add_u32", sT[2], sT[2], sT[3]), salu("s_lshl_b32", sT[2], sT[2], 2),
            salu("s_add_u32", sT[1], sT[1], sT[2]), salu("s_add_u32", sT[1], sT[1], FLAG_OFF),
            valu("v_mov_b32", t0, OOB), valu("v_mov_b32", t1, sT[1]), valu("v_cmp_eq_u32", "vcc", 0, vLane), valu("v_cndmask_b32", vFLG, t0, t1, "vcc"))
        if self.B: add(valu("v_add_u32", vFH, sH3, vFLG))
        add(salu("s_lshl_b32", sT[1], sTB2, 1), salu("s_lshr_b32", sT[2], sW, 1), salu("s_add_u32", sT[1], sT[1], sT[2]), salu("s_mul_i32", sP2h, sT[1], HSTR),
            salu("s_xor_b32", sT[2], sT[1], 1), salu("s_mul_i32", sHS, sT[2], HSTR),
            salu("s_lshl_b32", sT[1], sT[1], 5),
            salu("s_and_b32", sT[2], sT[1], 1023), salu("s_lshl_b32", sT[2], sT[2], 11), salu("s_lshr_b32", sT[1], sT[1], 10), salu("s_lshl_b32", sT[1], sT[1], 10),
            salu("s_add_u32", sT[1], sT[1], sT[2]), salu("s_lshl_b32", sT[2], sCB2, 7), salu("s_add_u32", sT[1], sT[1], sT[2]),
            salu("s_and_b32", sT[2], sW, 1), salu("s_lshl_b32", sT[2], sT[2], 6), salu("s_add_u32", sP2x, sT[1], sT[2]),
            salu("s_lshl_b32", sT[1], sTB2, 2), salu("s_add_u32", sT[1], sT[1], sW), salu("s_lshl_b32", sT[1], sT[1], 10), salu("s_add_u32", sP2f, sT[1], FLAG_OFF))
        add(salu("s_mul_i32", sT[1], sCB2, 72 * 4096), salu("s_add_u32", sT[1], sT[1], WT_OFF), salu("s_lshl_b32", sT[2], sT[2], 4),
            salu("s_add_u32", sT[3], sT[1], sT[2]), valu("v_lshl_add_u32", vW[0], vLane, 4, sT[3]),
            salu("s_sub_u32", sT[3], sT[1], sT[2]), valu("v_lshl_add_u32", vW[1], vLane, 4, sT[3]), valu("v_lshl_add_u32", vWB, vLane, 4, sWQ),
            salu("s_lshl_b32", sT[1], sCB2, 8), salu("s_add_u32", sT[1], sT[1], FLAGA_OFF + 96 * 128), salu("s_lshl_b32", sT[2], sGQ, 9), salu("s_add_u32", sT[2], sT[2], FLAGA_OFF + (80 if self.cfg.cone else 64) * 128),
            salu("s_lshr_b32", sT[3], sCB2, 1), salu("s_xor_b32", sT[3], sT[3], self.cfg.tx), salu("s_lshl_b32", sT[3], sT[3], 9), salu("s_add_u32", sT[3], sT[3], FLAGA_OFF + 80 * 128),
            salu("s_cmp_eq_u32", None, sW, 0), salu("s_cselect_b32", sT[1], sT[1], OOB), salu("s_cselect_b32", sT[2], sT[2], OOB), salu("s_cselect_b32", sT[3], sT[3], OOB),
            salu("s_cselect_b32", sW0, 1, 0),
            valu("v_and_b32", t0, 24, vLane), valu("v_lshlrev_b32", t0, 2, t0), valu("v_and_or_b32", t0, vLane, 7, t0), valu("v_and_b32", t1, 63, t0),
            valu("v_lshl_add_u32", t1, t1, 2, sT[1]), valu("v_lshl_add_u32", vP2, t0, 2, sT[3]),
            valu("v_cmp_lt_u32", "vcc", 31, vLane), valu("v_cndmask_b32", vP2, vP2, t1, "vcc"))
        if not self.B: add(valu("v_lshl_add_u32", vP6, t0, 2, sT[2]))

    def chunk_of(self, n): return 0 if n < 8 else (1 if n < 12 else 2)
    def dma_setup(self, ch):
        t0, t1 = T[0], T[1]
        o = []
        B = self.B
        half = (not B) and ch == 1
        stride = 3072 if (B and ch < 2) else 3584
        if half:
            return [salu("s_lshl_b32", sT[1], sGQ, 1), salu("s_add_u32", sT[1], sT[1], sJ), salu("s_lshl_b32", sT[1], sT[1], 16), salu("s_add_u32", sT[1], sT[1], sWQ),
                    salu("s_add_u32", sT[1], sT[1], P6_OFF - 2 * 65536), valu("v_lshl_add_u32", vDMA1, vLane, 4, sT[1])]
        else:
            o += [valu("v_lshrrev_b32", t0, 4, vLane), valu("v_and_b32", t1, 7, vLane), valu("v_xor_b32", t1, t0, t1), valu("v_lshrrev_b32", t0, 3, vLane)]
        o += [valu("v_mul_u32_u24", t0, stride, t0), valu("v_lshl_add_u32", t0, t1, 4, t0)]
        a, b = sT[1], sT[2]
        if B and ch == 0:
            o += [salu("s_lshl_b32", a, sGQ, 1), salu("s_add_u32", a, a, sJ), salu("s_lshl_b32", a, a, 7), salu("s_lshr_b32", b, sW, 1),
                  salu("s_add_u32", b, b, 1), salu("s_lshl_b32", b, b, 10), salu("s_add_u32", a, a, b), salu("s_and_b32", b, sW, 1),
                  salu("s_mul_i32", b, b, 32 * stride), salu("s_add_u32", a, a, b)]
        elif B and ch == 1:
            o += [salu("s_lshl_b32", a, sGQ, 1), salu("s_add_u32", a, a, sJ), salu("s_lshl_b32", a, a, 7), salu("s_mul_i32", b, sW, 32 * stride),
                  salu("s_add_u32", a, a, b)]
        else:
            if half: o += [salu("s_lshl_b32", b, sJ, 6), salu("s_add_u32", b, b, 6 * 128 - 128)]
            else: o += [salu("s_lshl_b32", b, sJ, 7), salu("s_sub_u32" if ch == 0 else "s_add_u32", b, b, 256)]
            o += [salu("s_mul_i32", a, sGQ, 7 * 128), salu("s_add_u32", a, a, b), salu("s_and_b32", b, sW, 1),
                  salu("s_mul_i32", b, b, (64 if half else 32) * stride), salu("s_add_u32", a, a, b)]
        o += [valu("v_add_u32", (vDMA0, vDMA1, vDMA2)[ch], a, t0)]
        return o
    def dma_slab(self):
        n = self.nslab; self.nslab += 1
        ch = self.chunk_of(n)
        B = self.B
        vd = (vDMA0, vDMA1, vDMA2)[ch]
        srd = rQKV if (B and ch < 2) else rGU
        so = (sOA if ch < 2 else sOB) if B else (sOB if ch == 1 else sOA)
        stride = 3072 if (B and ch < 2) else 3584
        o = [set_m0(sWQ, slab_slot(n) * SLOT, f"w{n}")]
        if ch == 1 and not B:
            if n > 8: o += [valu("v_add_u32", vd, 16384, vd)]
            return o + [buf_dma(vd, rWS, 0, i * 1024, flags="sc1", tag=f"w{n}") for i in range(4)]
        if n not in (0, 8, 12) and not self.cfg.dbg & 16: o += [valu("v_add_u32", vd, (128 if ch == 1 else 64) * stride, vd)]
        o += [buf_dma(vd, srd, so[i], i * 1024, flags="sc1" if self.cfg.dbg & 16 else self.cfg.wflags, tag=f"w{n}") for i in range(2 if (self.cfg.dbg & 512 and n >= 7) else 4)]
        return o
    def frag_list(self):
        L = []
        for n in range(20):
            ch = self.chunk_of(n)
            base = slab_slot(n) * SLOT
            if ch != 1:
                n0 = 0 if ch == 0 else 12
                for jj in range(2):
                    for cc in range(4):
                        for im in range(2):
                            L.append(([ACC1.sub(16 * im + 32 * th + 4 * cc, 4) for th in range(2)], 4 * (n - n0) + 2 * jj, n, base + im * 8192 + jj * 4096, cc, 1024))
            else:
                for jj in range(4):
                    for cc in range(4):
                        if self.B: L.append(([ACC2.sub(16 * th + 4 * cc, 4) for th in range(2)], 8 * (n - 8) + 2 * jj, n, base + jj * 4096, cc, 1024))
                        else: L.append(([ACC2.sub(16 * (cc & 1) + 8 * th + 4 * (cc >> 1), 4) for th in range(2)], 8 * (n - 8) + 2 * jj, n, base + (cc & 1) * 8192 + jj * 2048, 4 + (cc >> 1), 512))
        assert not self.cfg.nspl
        if self.cfg.chain:
            M = []
            for n in range(20):
                f = L[16 * n:16 * n + 16]
                h = 4 if self.chunk_of(n) == 1 else 8
                for a in range(0, 16, 2 * h):
                    for i in range(h): M += [f[a + i], f[a + h + i]]
            L = M
        return L
    def window(self, wins, which, reg, off, span):
        o = []
        if not (wins[which] <= off and off + span <= wins[which] + 65536):
            w = off // SLOT * SLOT
            d = w - wins[which]
            o += [valu("v_add_u32" if d > 0 else "v_subrev_u32", reg, abs(d), reg)]
            wins[which] = w
        return o, off - wins[which]
    def frag_reads(self, k, f):
        acc, step, n, off, which, ustep = f
        b = self.TR[which]
        o, imm = self.window(self.win, which, b, off, 2048)
        dst = WF.sub(4 * (k % self.cfg.NB), 4)
        o += [ds_read("ds_read_b64_tr_b16", dst.sub(0, 2), b, imm, tag=f"f{k}"), ds_read("ds_read_b64_tr_b16", dst.sub(2, 2), b, imm + ustep, tag=f"f{k}")]
        if self.cfg.dbg & 4096 and k >= 16: o.pop(-1 - (k // self.cfg.NB & 1))
        return o
    def ffn_epi(self, G, U, ch, kst, tag, pk=False):
        o = []
        for b in range(4):
            t = [T[4 + i] for i in range(4)]
            g = [G[4 * b + i] for i in range(4)]; u = [U[4 * b + i] for i in range(4)]
            if pk:
                t2 = [T.sub(4, 2), T.sub(6, 2)]; g2 = [G.sub(4 * b, 2), G.sub(4 * b + 2, 2)]; u2 = [U.sub(4 * b, 2), U.sub(4 * b + 2, 2)]
                o += [valu("v_pk_mul_f32", t2[i], g2[i], T.sub(0, 2)) for i in range(2)]
                o += [valu("v_exp_f32", t[i], t[i]) for i in range(4)]
                o += [valu("v_pk_mul_f32", u2[i], g2[i], u2[i]) for i in range(2)]
                o += [valu("v_pk_add_f32", t2[i], t2[i], T.sub(2, 2)) for i in range(2)]
                o += [valu("v_rcp_f32", t[i], t[i]) for i in range(4)]
                o += [valu("v_pk_mul_f32", u2[i], u2[i], t2[i]) for i in range(2)]
            else:
                o += [valu("v_mul_f32", t[i], sNL if self.cfg.sconst else f32(-LOG2E), g[i]) for i in range(4)]
                for i in range(4): o += [valu("v_exp_f32", t[i], t[i]), valu("v_mul_f32", u[i], g[i], u[i])]
                o += [valu("v_add_f32", t[i], "1.0", t[i]) for i in range(4)]
                o += [valu("v_rcp_f32", t[i], t[i]) for i in range(4)]
                o += [valu("v_mul_f32", u[i], u[i], t[i]) for i in range(4)]
            if self.cfg.dbg & 8192: o = [x for x in o if x.op not in ("v_add_f32", "v_pk_add_f32")]
            o += [valu("v_cvt_pk_bf16_f32", G[2 * b + i], u[2 * i], u[2 * i + 1]) for i in range(2)]
            if b & 1: o += [buf_store("buffer_store_dwordx4", G.sub(2 * (b - 1), 4), vSCR if ch == 1 else vHST, rWS, sHu[ch], kst + (b >> 1) * (256 if ch == 1 else 1024), flags=self.cfg.hflags, tag=tag)]
        return o
    def set_hu(self, ch):
        a = sT[1]
        if self.B and ch == 1:
            return [salu("s_lshl_b32", a, sGQ, 1), salu("s_add_u32", a, a, sJ), salu("s_lshl_b32", a, a, 12), salu("s_add_u32", sHu[ch], a, 112 * 1024)]
        o = [salu("s_mul_i32", sHu[ch], sGQ, 28 * 1024)]
        if ch == 1: o += [salu("s_lshl_b32", a, sJ, 11), salu("s_add_u32", a, a, 6 * 4096 - 4096)]
        else: o += [salu("s_lshl_b32", a, sJ, 12), salu("s_sub_u32" if ch == 0 else "s_add_u32", a, a, 8192)]
        return o + [salu("s_add_u32", sHu[ch], sHu[ch], a)]

    def phase1(self):
        c, add, B = self.cfg, self.add, self.B
        F = self.frag_list()
        NM = len(F)
        self.slow0 = self.slow
        assert not c.chain or (c.wstep % 2 == 0 and c.NB >= c.LA + 2)
        gaps = [[] for _ in range(NM)]
        tail = [[] for _ in range(NM)]
        load = [0] * NM
        def put(k, ins, last=False):
            if c.px & 2: ins = [x for x in ins if x.kind != "mfma"]
            if c.px & 4: ins = [x for x in ins if x.kind != "dsw"]
            if c.px & 8: ins = [x for x in ins if not (x.kind == "branch" or str(vPV) in x.rd | x.wr)]; self.slow = self.slow0
            if c.px & 64: ins = [x for x in ins if x.kind != "trans"]
            (tail if last else gaps)[k] += ins
            load[k] += sum(cyc(i) for i in ins)
        def spread(ins, k0, k1):
            tot = sum(cyc(i) for i in ins)
            lo, hi = 0.0, 1000.0
            for _ in range(40):
                mid = (lo + hi) / 2
                if sum(max(0, mid - load[k]) for k in range(k0, k1)) >= tot: hi = mid
                else: lo = mid
            cap, acc = [], 0.0
            for k in range(k0, k1):
                acc += max(0, hi - load[k]); cap.append(acc)
            k, used = 0, 0.0
            for i in ins:
                while k < len(cap) - 1 and used + cyc(i) / 2 > cap[k] and i.kind != "branch": k += 1
                put(k0 + k, [i]); used += cyc(i)
        bar_gap = {n: 16 * n - c.LA - 1 for n in range(1, 20)}
        bar_gap[0], bar_gap[20] = -1, NM
        self.bar_extra = {n: [] for n in range(1, 21)}
        need = {n: max(f[2] for f in F[:min(NM, bar_gap[n + 1] + c.LA + 1)]) for n in range(20)}
        skip = lambda n: c.bar2 and c.bar2 <= n < 19 and (n - c.bar2) % 2 == 1
        self.skip = skip
        for n in range(18, 0, -1):
            if skip(n + 1): need[n] = need[n + 1]
        for n in (c.pw_per, c.p6_per, c.f2_bar): assert not skip(n)
        lastx = lambda i: max(k for k, f in enumerate(F) if f[1] // 4 == i)
        plan = dict((int(p.split(":")[0]), p.split(":")[1].split(".")) for p in (c.planB if B else c.planC).split(",") if p)
        self.pool = list(ABUF) + VBUF[:5] + ([] if B else VBUF[5:7])
        put(bar_gap[c.pw_per] - 1 - c.pw_lead, self.poll_issue(vP2, rWS))
        put(bar_gap[c.pw_per] - 1, self.poll_check(vP2, rWS, sW0))
        if not B:
            assert bar_gap[c.p6_per] <= bar_gap[c.pw_per] - 1 - c.pw_lead
            put(bar_gap[c.p6_per] - 1 - c.pw_lead, self.poll_issue(vP6, rWS))
            put(bar_gap[c.p6_per] - 1, self.poll_check(vP6, rWS, sW0))
        assert not c.cone or c.ts_pos < 0
        if B or not c.cone: put(bar_gap[c.f2_bar] + 1, [buf_store("buffer_store_dword", vFV, vF2, rWS, 0, 2048, flags="sc1")])
        for n in range(20):
            k = bar_gap[n]
            if n and not skip(n): load[k] += 14
            if B and n and bar_gap[n - 1] < c.g_halo + 2 * (9 + c.att_w) <= k: self.pool += VBUF[5:]
            if n == 9 and not B: self.pool += VBUF[7:]
            ops = list(plan.get(n, []))
            ins = []
            while ops and ops[0] in ("r", "H"):
                ins += self.plan_op(ops.pop(0), n)
            w = []
            nw = 0
            while self.nslab < 20 and self.nslab <= n - (1 if skip(n) else 0) + c.NS - 2 and (B or self.nslab < 8 or n >= c.p6_per) and (self.nslab <= need[min(19, n + 2)] or nw + ops.count("w") < 1 or "w" in ops):
                if nw and "w" in ops: ops.remove("w")
                w += self.dma_slab(); nw += 1
            ops = [x for x in ops if x != "w"]
            assert self.nslab > need[min(19, n + 2)], n
            if n == max(c.ts_pos, 0): ins += self.ts
            while c.xfree and self.xf_n < 5 and lastx(self.xf_n) <= k: self.pool += [A(16 * self.xf_n, 16)]; self.xf_n += 1
            nxl = min(32 - self.nx, c.xr[n] if n < len(c.xr) else (c.xrate if n else max(1, c.xrate // 2)))
            for i in w:
                if i.kind == "dma" and nxl: ins += self.x_load(); nxl -= 1
                ins.append(i)
            for _ in range(nxl): ins += self.x_load()
            assert self.nx >= min(32, (bar_gap[n + 1] + 16) // 4 + (3 if c.chain else 1)), n
            if n == c.c_tile and not B: ins += self.tdma
            if n == (c.b_rest if B else c.c_rest): ins += self.rest
            for op in ops: ins += self.plan_op(op, n)
            if ins: spread(ins, k + 1, bar_gap[n + 1])
        if not B:
            ins = self.ffn_epi(ACC1.sub(0, 16), ACC1.sub(16, 16), 0, 0, "st1") + self.ffn_epi(ACC1.sub(32, 16), ACC1.sub(48, 16), 0, 256, "st1")
            spread(ins, 129, 191)
            if not c.one_pa: put(c.g_f1c, self.flag(L_P1, "st1"))
            spread(self.ffn_epi(ACC2.sub(0, 16), ACC2.sub(16, 16), 1, 0, "st2"), 194, c.h2_end)
            put(c.g_f2c, self.flag(L_HALF, "st2"))
        else:
            self.attention(put, spread, bar_gap, load)
        if c.nspl:
            k0 = max(320 - 8 * c.nspl + 2, self.att_end + 7 if B else 0)
            spread(self.ffn_epi(ACC1.sub(0, 16), ACC1.sub(16, 16), 2, 0, "st3"), k0, c.e0_end)
        o = [valu("v_lshl_add_u32", vH[0], vLane, 4, sP2h), valu("v_lshl_add_u32", vH[1], vLane, 4, sHS),
             valu("v_and_b32", vPOLL, 7, vLane), valu("v_lshrrev_b32", vTHR, 2, vPOLL), valu("v_lshl_add_u32", vPOLL, vPOLL, 2, sP2f),
             ]
        if not c.otr: o += [valu("v_and_b32", vXO, 31, vLane), valu("v_lshlrev_b32", vXO, 11, vXO), valu("v_and_or_b32", vXO, vLane, 32, vXO), valu("v_add_u32", vXO, sP2x, vXO)]
        spread(o, *((176, 192) if B else (200, c.g_pa)))
        la = L_HALF if c.one_pa else L_P1
        put(c.g_pa, self.poll_issue(vPOLL, rWS, la))
        assert c.g_pa < bar_gap[c.pa_per] - 1
        put(bar_gap[c.pa_per] - 1, self.poll_check(vPOLL, rWS, vTHR, la))
        self.pa2 = (vPOLL, rWS, vTHR, L_HALF)
        if c.m_pb == -1:
            put(c.g_pa2 - 2, [valu("v_lshlrev_b32", vP2, 7, vTHR), valu("v_sub_u32", vP2, vPOLL, vP2)])
            self.pa2 = (vP2, rWS, 1, L_O)
        if not c.one_pa: put(c.g_pa2, self.poll_issue(self.pa2[0], rWS, self.pa2[3]))
        if c.pa2_epi < 0 and not c.one_pa: put(319, self.poll_check(*self.pa2))
        spread([valu("v_mov_b32", T[0], f32(-LOG2E)), valu("v_mov_b32", T[1], f32(-LOG2E)), valu("v_mov_b32", T[2], "1.0"), valu("v_mov_b32", T[3], "1.0")], 312, 320)
        inv_bar = {v: n for n, v in bar_gap.items() if 1 <= n <= 19}
        for k in range(NM):
            acc, step, n, off, which, us = F[k]
            if k % c.wstep == 0: add(wait(lg=[f"f{i}" for i in range(k, k + c.wstep)]))
            rd = self.frag_reads(k + c.LA, F[k + c.LA]) if k + c.LA < NM else []
            fill = gaps[k]
            tot, u, n1 = sum(cyc(i) for i in fill), 0, 0
            while n1 < len(fill) and (u + cyc(fill[n1]) / 2 <= tot / 2 or fill[n1].kind == "branch"): u += cyc(fill[n1]); n1 += 1
            if 2 * u > tot + 4: r1 = 0 if len(rd) <= 2 else len(rd) - 1
            elif 2 * u < tot - 4: r1 = len(rd)
            else: r1 = max(0, len(rd) - 1)
            if c.chain:
                th = k & 1
                first = F[k & ~1][1] == 0
                mm = [mfma(16, acc[th], WF.sub(4 * (kk % c.NB), 4), X.sub(4 * (F[kk][1] + th), 4), 0 if (first and kk == k) else acc[th]) for kk in (k, k ^ 1)]
            else: mm = [mfma(16, acc[th], WF.sub(4 * (k % c.NB), 4), X.sub(4 * (step + th), 4), 0 if step == 0 else acc[th]) for th in range(2)]
            add(mm[0], self.jit(0.08))
            if k == 0: add(self.stamp(67))
            add(rd[:r1], fill[:n1])
            add(mm[1], rd[r1:], fill[n1:], tail[k])
            if k in inv_bar:
                n = inv_bar[k]
                assert not (skip(n) and self.bar_extra[n])
                if n == 19 or need[n] > need[n - 1]: add(wait(vm=[f"w{need[n]}"] + (["ts"] if n == c.f2_bar else []), lg=self.bar_extra[n] or None), barrier())
            if k in (127, 191): add(self.stamp())
            if k in (31, 63): add(self.stamp(64))
            if k % 32 == 31 and 31 < k < 319: add(self.stamp(2))
            if k in c.sg: add(self.stamp(32))
        add(self.stamp(131))
        self.load = load
    def plan_op(self, op, n):
        if op == "l":
            assert n >= self.cfg.pw_per
            return self.w2_load()
        if op == "h":
            assert n >= self.cfg.pa_per and self.h_n < 4
            return self.h_load()
        if op == "P": return self.poll_issue(vPOLLH, rWS)
        if op == "H":
            self.halo_period = n
            i = salu("s_mov_b32", "m0", sHM0); i.tag = "halo"
            return self.poll_check(vPOLLH, rWS, sTHR) + [i] + [buf_dma(vHLD, rWS, 0, 1024 * q, flags="sc1", tag="halo") for q in range(2)]
        slot = int(op[1:])
        if slot < self.cfg.NS: assert n - (1 if self.skip(n) else 0) >= 2 + max(x for x in range(20) if slab_slot(x) == slot)
        if self.B and slot >= 7: assert n >= 19
        assert n >= self.cfg.pw_per
        return self.w2_dma(slot)

    def att_setup(self):
        t0, t1 = T[0], T[1]
        o = [valu("v_and_b32", t0, 15, vLane), valu("v_mul_u32_u24", t0, RP, t0), valu("v_and_b32", t1, 48, vLane), valu("v_lshlrev_b32", t1, 1, t1),
             salu("s_mul_i32", sT[0], sW, 32 * RP), salu("s_add_u32", sT[0], sT[0], SCR), valu("v_add3_u32", vSCR, sT[0], t0, t1),
             valu("v_and_b32", t0, 3, vLane), valu("v_bfe_u32", vVTR, vLane, 2, 2), valu("v_lshl_add_u32", t0, t0, 2, vVTR),
             valu("v_mul_u32_u24", t0, RP, t0), valu("v_add3_u32", vVTR, sT[0], t0, t1),
             salu("s_mov_b32", sT[0], SCR + 128 * RP + 128), valu("v_lshl_add_u32", vHRB, vLane, 4, sT[0])]
        o += [salu("s_lshl_b32", sT[1], sRB, 3), salu("s_lshl_b32", sT[2], sGQ, 1), salu("s_add_u32", sT[1], sT[1], sT[2]), salu("s_add_u32", sT[1], sT[1], sJ),
              salu("s_lshl_b32", sC1, sT[1], 11), salu("s_add_u32", sC1, sC1, HALO_OFF),
              salu("s_cmp_eq_u32", None, sW, 3), salu("s_cselect_b32", sT[1], sC1, OOB), salu("s_cselect_b32", sH3, 0, OOB), valu("v_lshl_add_u32", vHALO, vLane, 4, sT[1]),
              salu("s_and_b32", sT[1], sRB, 7), salu("s_or_b32", sT[2], sT[1], sW), salu("s_cselect_b32", sM1[0], 0, "0xf000f"), salu("s_cselect_b32", sM2[0], 0, "0xff00ff"),
              salu("s_mov_b32", sM1[1], sM1[0]), salu("s_mov_b32", sM2[1], sM2[0]), salu("s_mov_b32", sHM0, SPARE),
              salu("s_cmp_eq_u32", None, sW, 0), salu("s_cselect_b32", sHM0, SCR + 128, sHM0), salu("s_cselect_b32", sT[1], sT[1], 0),
              salu("s_cmp_lg_u32", None, sT[1], 0), salu("s_cselect_b32", sTHR, 1, 0),
              salu("s_sub_u32", sT[2], sC1, 8 * 2048), salu("s_cmp_lg_u32", None, sTHR, 0), salu("s_cselect_b32", sT[2], sT[2], OOB),
              valu("v_lshl_add_u32", vHLD, vLane, 4, sT[2])]
        if self.cfg.kv_mode == 4:
            for q, dst in enumerate((vHLD, vHLD2)):
                o += [valu("v_add_u32", t0, 8 + 64 * q, vLane), valu("v_mul_u32_u24", t1, 241, t0), valu("v_lshrrev_b32", t1, 12, t1), valu("v_mul_u32_u24", dst, 17, t1),
                      valu("v_sub_u32", t0, t0, dst), valu("v_min_u32", t0, 15, t0), valu("v_lshlrev_b32", t1, 4, t1), valu("v_lshl_add_u32", t0, t0, 7, t1),
                      valu("v_add_u32", dst, sT[2], t0)]
                if q: o += [valu("v_subrev_u32", dst, 1024, dst)]
            o += [salu("s_sub_u32", sT[1], sC1, 24 * 16), salu("s_cmp_eq_u32", None, sW, 3), salu("s_cselect_b32", sT[1], sT[1], OOB),
                  valu("v_and_b32", t0, 31, vLane), valu("v_lshrrev_b32", t1, 5, vLane), valu("v_lshlrev_b32", t1, 8, t1), valu("v_lshl_add_u32", t1, t0, 4, t1),
                  valu("v_add_u32", t1, sT[1], t1), valu("v_cmp_lt_u32", "vcc", 23, t0), valu("v_mov_b32", t0, OOB), valu("v_cndmask_b32", vHALO, t0, t1, "vcc")]
        o += [
              salu("s_lshl_b32", sT[1], sRB, 3), salu("s_add_u32", sT[1], sT[1], sGQ), salu("s_lshl_b32", sT[1], sT[1], 10), salu("s_lshl_b32", sT[2], sJ, 3),
              salu("s_add_u32", sT[1], sT[1], sT[2]), salu("s_add_u32", sT[1], sT[1], FLAG_OFF - 4096 + 4), salu("s_cmp_lg_u32", None, sTHR, 0),
              salu("s_cselect_b32", sT[1], sT[1], OOB), valu("v_mov_b32", vPOLLH, sT[1]), salu("s_mov_b32", sCS, f32(0.25 * LOG2E))]
        o += [valu("v_and_b32", t0, 3, vLane), valu("v_mov_b32", t1, "0xffff"),
              valu("v_cmp_le_u32", sJ1, 1, t0), valu("v_cmp_le_u32", sJ2, 2, t0), valu("v_cmp_le_u32", sJ3, 3, t0),
              valu("v_cndmask_b32", vA01, t1, -1, sJ1), valu("v_cndmask_b32", vA23, 0, t1, sJ2), valu("v_cndmask_b32", vA23, vA23, -1, sJ3)]
        return o
    def attention(self, put, spread, bar_gap, load):
        c = self.cfg
        def pack(dst, a):
            o = [valu("v_cvt_pk_bf16_f32", dst[i], a[2 * i], a[2 * i + 1]) for i in range(8)]
            return o + [valu("v_permlane16_swap_b32", dst[i], dst[4 + i], rmw=True, wr2=dst[4 + i]) for i in range(4)]
        cv, wr = [], []
        for blk in range(4):
            a = ACC1.sub(16 * blk, 16)
            cv += pack(a, a)
            wr += [ds_write("ds_write_b128", vSCR, a.sub(4 * dh, 4), (blk & 1) * 128 + dh * 16 + (8 + 16 * (blk >> 1)) * RP, tag="kv") for dh in range(2)]
        hs = ACC1.sub(40, 8)
        assert c.kv_mode in (3, 5, 6)
        if c.kv_mode == 3:
            spread(cv, 129, c.kv_end - 3)
            put(c.kv_end - 3, wr)
        else:
            if c.kv_mode == 5:
                spread(cv[24:], 130, c.kv_end - 3)
                put(c.kv_end - 3, wr[4:])
            else: spread(cv[24:36] + wr[4:6] + cv[36:] + wr[6:], 130, c.kv_end - 2)
            spread(cv[:24], c.kv_end + 5, c.kv_end + 15)
            for n, x in enumerate(wr[:4]):
                k1 = c.kv_end + 15 + (180 - c.kv_end - 15) * n // 4
                while load[k1] > 0 and k1 < 181: k1 += 1
                put(k1, [x], last=True)
        put(c.kv_end - 1, [ds_read("ds_read_b128", hs.sub(4 * i, 4), vHRB, 1024 * i) for i in range(2)])
        if c.kv_mode != 4:
            put(c.kv_end + 2, [buf_store("buffer_store_dwordx4", hs.sub(0, 4), vHALO, rWS, 0, 0, flags="sc1", tag="st1")])
            put(c.kv_end + 4, [buf_store("buffer_store_dwordx4", hs.sub(4, 4), vHALO, rWS, 0, 1024, flags="sc1", tag="st1")])
            self.bar_extra[12] = ["kv"]
        assert c.kv_end + 4 < min(176, c.g_flag1)
        fl = self.flag(L_HALO, "st1")
        if c.halo3: fl[-1] = buf_store("buffer_store_dword", vFV, vFH, rWS, 0, L_HALO, flags="sc1")
        put(c.g_flag1, fl)
        Q = ACC2.sub(0, 16); O = ACC2.sub(16, 16)
        Sg = [SG.sub(0, 4), SG.sub(4, 4), SG.sub(8, 4)]
        P = [T.sub(0, 2), T.sub(2, 2), T.sub(4, 2)]
        tm, tz, big = SG[12], SG[13], SG[14]
        spread(pack(Q.sub(0, 8), ACC2.sub(0, 16)) + pack(Q.sub(8, 8), ACC2.sub(16, 16)) + [valu("v_mov_b32", big, f32(-1e30))], 194, min(215, c.g_halo + 4))
        k = c.g_halo
        cs = 0.25 * LOG2E
        for cb in ((1, 0) if c.th1 else (0, 1)):
            if cb == 0:
                assert k > bar_gap[self.halo_period + 1]
                put(k, [wait(vm="halo")])
            spread([ds_read("ds_read_b128", KA.sub(8 * g + 4 * dh, 4), vSCR, dh * 16 + (16 * cb + (2 - g) * 4) * RP) for g in range(3) for dh in range(2)], k, k + 4)
            k += 5
            for dq in range(4):
                put(k + dq // 2, [mfma(4, Sg[g], KA.sub(8 * g + 2 * dq, 2), Q.sub(8 * cb + 2 * dq, 2), Sg[g] if dq else 0) for g in range(3)], last=True)
            k += 2
            vr = [ds_read("ds_read_b64_tr_b16", KA.sub(8 * g + 2 * m, 2), vVTR, 128 + (0, 2, 1, 3)[m] * 8 + (16 * cb + (2 - g) * 4) * RP, tag="vr") for g in range(3) for m in range(4)]
            s = [Sg[0][i] for i in range(4)] + [Sg[1][i] for i in range(4)]
            o = vr[:4]
            if cb == 0:
                o += [valu("v_cndmask_b32", Sg[2][r], Sg[2][r], big, sM2) for r in (1, 2, 3)]
                o += [valu("v_cndmask_b32", Sg[1][r], Sg[1][r], big, sM1) for r in range(4)]
            o += [valu("v_cndmask_b32", Sg[0][r], Sg[2][r], Sg[0][r], (None, sJ1, sJ2, sJ3)[r]) for r in (1, 2, 3)]
            o += [valu("v_max3_f32", tm, s[0], s[1], s[2]), valu("v_max3_f32", tz, s[3], s[4], s[5]), valu("v_max3_f32", tm, tm, s[6], s[7]), valu("v_max_f32", tm, tm, tz),
                  valu("v_mul_f32", tm, f32(-cs), tm)]
            o += vr[4:8]
            o += [valu("v_fma_f32", s[i], s[i], sCS, tm) for i in range(8)]
            o += [valu("v_exp_f32", s[i], s[i]) for i in range(8)]
            u = [Sg[2][i] for i in range(4)]
            o += [valu("v_add_f32", u[i], s[2 * i], s[2 * i + 1]) for i in range(4)]
            o += [valu("v_add_f32", u[0], u[0], u[1]), valu("v_add_f32", u[2], u[2], u[3]), valu("v_add_f32", u[0], u[0], u[2]), valu("v_rcp_f32", tz, u[0])]
            o += vr[8:]
            o += [valu("v_mul_f32", s[i], s[i], tz) for i in range(8)]
            o += [valu("v_cvt_pk_bf16_f32", u[0], s[0], s[1]), valu("v_cvt_pk_bf16_f32", u[1], s[2], s[3]),
                  valu("v_cvt_pk_bf16_f32", P[1][0], s[4], s[5]), valu("v_cvt_pk_bf16_f32", P[1][1], s[6], s[7]),
                  valu("v_and_b32", P[0][0], u[0], vA01), valu("v_and_b32", P[0][1], u[1], vA23),
                  valu("v_bfi_b32", P[2][0], vA01, 0, u[0]), valu("v_bfi_b32", P[2][1], vA23, 0, u[1])]
            if c.px & 1: o = [x for x in o if x.kind == "dsr"] + o[-8:]
            spread(o, k, k + c.att_w)
            k += c.att_w
            for g in range(3):
                put(k + g // 2, [mfma(4, O.sub(4 * m, 4), KA.sub(8 * g + 2 * m, 2), P[g], O.sub(4 * m, 4) if g else 0) for m in range(4)], last=True)
            k += 2
            o = []
            for dh in range(2):
                o += [valu("v_cvt_pk_bf16_f32", O[4 * dh + i], O[8 * dh + 2 * i], O[8 * dh + 2 * i + 1]) for i in range(4)]
                o += [buf_store("buffer_store_dwordx4", O.sub(4 * dh, 4), vHST, rWS, sHu[1], cb * 256 + dh * 1024, flags=c.hflags, tag="st2")]
            spread(o, k + 1, k + 7)
        assert k <= bar_gap[19], k
        assert k == c.g_halo + 2 * (9 + c.att_w)
        self.att_end = k
        if not c.splf and c.f2_epi < 0: put(min(k + c.f2_lag, 317), self.flag(L_O, "st2"))

    GORD = ([("d", 0, 1, t) for t in range(4)] + [("d", 12, 1, 4 + t) for t in range(2)] + [("o", 0, 1, t) for t in range(4)]
            + [("d", 8, 1, t) for t in range(4)] + [("d", 4, 1, t) for t in range(4)])
    def w2_setup(self):
        return [salu("s_mov_b32", sNL, f32(-LOG2E)), salu("s_mul_i32", sHd, sW, 28 * 1024), salu("s_lshl_b32", sHo, sW, 13), salu("s_add_u32", sHo, sHo, 112 * 1024),
                salu("s_lshl_b32", sWd, sHd, 1), salu("s_lshl_b32", sWo, sHo, 1)]
    def h_load(self):
        gi = self.h_n; self.h_n += 1
        kind, g0, st, t = self.GORD[gi]
        o = [salu("s_add_u32", sT[0], sHd if kind == "d" else sHo, (g0 + (t & 3)) * 2048)]
        dst = self.hreg[gi] = self.pool.pop(0)
        for s in range(1 if self.cfg.dbg & 256 else 2):
            for tb in range(2):
                o += [buf_load("buffer_load_dwordx4", dst.sub(8 * s + 4 * tb, 4), vW[0] if self.cfg.dbg & 2 else vH[tb], rWS, 0 if self.cfg.dbg & 2 else sT[0], s * 1024, flags="sc1", tag=f"h{gi}")]
        return o
    def w2_addr(self):
        gi = self.w2_nd; self.w2_nd += 1
        kind, g, st, t = self.GORD[gi]
        return gi, [salu("s_add_u32", sWS, sWd if kind == "d" else sWo, (g + (t & 3)) * 4096)]
    def w2_load(self):
        gi, o = self.w2_addr()
        dst = self.wreg[gi] = self.pool.pop(0)
        return o + [buf_load("buffer_load_dwordx4", dst.sub(4 * i, 4), vW[i & 1], rWS, 0 if self.cfg.dbg & 4 else sWS, i * 1024, flags="sc1", tag=f"g{gi}") for i in range(2 if self.cfg.dbg & 128 else 4)]
    def w2_dma(self, slot):
        gi, o = self.w2_addr()
        assert slot not in self.w2slot.values()
        self.w2slot[gi] = slot
        return [set_m0(sWQ, slot * SLOT, f"g{gi}")] + o + [buf_dma(vW[i & 1], rWS, sWS, i * 1024, flags="sc1", tag=f"g{gi}") for i in range(4)]
    def w2_read(self):
        gi = min(self.w2slot)
        base = self.w2slot.pop(gi) * SLOT
        dst = self.wreg[gi] = self.pool.pop(0)
        o, imm = self.window(self.win2, 0, vWB, base, 4096)
        for i in o: i.tag = f"r{gi}"
        return [wait(vm=f"g{gi}")] + o + [ds_read("ds_read_b128", dst.sub(4 * i, 4), vWB, imm + i * 1024, tag=f"r{gi}") for i in range(4)]
    def phase2(self):
        c, add = self.cfg, self.add
        accF = [ACC2.sub(0, 16), A(80, 16), A(96, 16), A(112, 16)]
        accS = [ACC2.sub(16, 16)]
        PR = [None, ACC1.sub(0, 16), ACC1.sub(16, 16), ACC1.sub(32, 16)]
        xf = ACC1.sub(48, 16)
        red = [vSCR, vVTR, vTR0, vTR1, vDMA2, vHST]
        pool, hreg, wreg, h_load = self.pool, self.hreg, self.wreg, self.h_load
        pool += [A(128, 16), A(144, 16), A(160, 16)] + [A(16 * i, 16) for i in range(self.xf_n, 5)]
        light = []
        heavy = []
        pend = lambda q, tag: any(i.tag == tag for i in q)
        e = ([] if c.nspl else self.ffn_epi(ACC1.sub(0, 16), ACC1.sub(16, 16), 2, 0, "st3", pk=True)) + self.ffn_epi(ACC1.sub(32, 16), ACC1.sub(48, 16), 2, 256, "st4", pk=True)
        if c.px & 16: e = [x for x in e if x.kind == "vms" or x.op == "v_cvt_pk_bf16_f32"]
        if c.eov:
            e2 = self.ffn_epi(ACC1.sub(0, 16), ACC1.sub(16, 16), 2, 0, "st3") + self.ffn_epi(ACC1.sub(32, 16), ACC1.sub(48, 16), 2, 256, "st4")
            def cut(l, nb):
                k = [i for i, x in enumerate(l) if x.op == "v_cvt_pk_bf16_f32"][2 * nb - 1] + 1 if nb else 0
                return k + 1 if k < len(l) and l[k].kind == "vms" else k
            e, light[:] = e[:cut(e, 8 - c.eov)], e2[cut(e2, 8 - c.eov):]
            for i in light:
                if i.kind != "vms": i.tag = "ra"
        assert 9 not in self.w2slot.values()
        assert all(x < min(18, 20 - c.nspl) for x in range(20) if 6 <= slab_slot(x) <= 8)
        seq = []
        for gi in range(18):
            bl = (1, 2, 3) if gi >= 18 - c.defer else (0, 1, 2, 3)
            if c.snake and gi < 17: bl = (1, 3, 2) if len(bl) == 3 else (0, 1, 3, 2)
            seq += [(gi, s, b) for b in bl for s in range(2)] if gi == 17 else [(gi, s, b) for s in range(2) for b in bl]
        seq += [(gi, s, 0) for gi in range(18 - c.defer, 18) for s in range(2)]
        if c.tbs:
            g1 = 18 - c.tbs
            assert c.defer <= c.tbs
            seq = [(gi, s, b) for gi in range(g1) for s in range(2) for b in range(4)]
            seq += [(gi, s, b) for gi in range(g1, 18) for s in range(2) for b in (2, 3)]
            seq += [(gi, s, b) for gi in range(g1, 18) for s in range(2) for b in ((1,) if gi >= 18 - c.defer else (1, 0))]
            seq += [(gi, s, 0) for gi in range(18 - c.defer, 18) for s in range(2)]
        last = {gi: max(m for m, x in enumerate(seq) if x[0] == gi) for gi in range(18)}
        first = {gi: min(m for m, x in enumerate(seq) if x[0] == gi) for gi in range(18)}
        lastb = {b: max(m for m, x in enumerate(seq) if x[2] == b) for b in range(4)}
        g6 = 10 if c.m_pb == -1 else 6
        st = {"q": [], "gate": g6 if c.pa2_epi < 0 else 4, "x": False, "m": -1, "sw": False}
        def refill():
            okw = self.w2_nd < 18 and len(pool) > (1 if self.w2_nd <= self.h_n else c.keep)
            okh = self.h_n < (max(st["gate"], c.nogate) if st["gate"] else 0) and len(pool) > 1
            if okh and c.tbs and self.h_n == 18 - c.tbs:
                assert self.w2_nd == 18 and st["x"] and len(pool) >= c.tbs + len(self.w2slot), len(pool)
                ls = [h_load() for _ in range(c.tbs)]
                for tb in (1, 0):
                    for l in ls: st["q"] += [l[0], l[1 + tb], l[3 + tb]]
            elif okh and not (okw and self.w2_nd <= self.h_n + c.wlead): st["q"] += h_load()
            elif okw: st["q"] += self.w2_load()
            elif not st["x"] and st["m"] >= 0 and not pend(light, "ra"):
                st["x"] = True
                st["q"] += [set_m0(sWQ, 9 * SLOT, "xs"), salu("s_mov_b32", sT[1], 16384 - 1024),
                            buf_dma(red[4], rX, 0, 0, tag="xs"), buf_dma(red[4], rX, sT[1], 1024, tag="xs")]
        def pump():
            if not st["q"]: refill()
            while st["q"]:
                x = st["q"].pop(0); add(x)
                if x.kind in ("dma", "vml"): return True
            return False
        step = max(1, len(e) * 3 // 4 // max(1, c.epi_mem))
        k = 0
        for n, i in enumerate(e):
            if self.B and not c.splf and n == c.f2_epi: add(self.flag(L_O, "st2"))
            if n == c.pa2_epi: add(self.poll_check(*self.pa2)); st["gate"] = g6
            if n % step == 0 and k < c.epi_mem: pump(); k += 1
            add(i)
        add(self.stamp(129))
        started = set()
        ra = [salu("s_add_u32", sT[2], sWQ, 6 * SLOT), valu("v_lshl_add_u32", red[0], vLane, 4, sT[2])] + [valu("v_xor_b32", red[b], b * 4096, red[0]) for b in (1, 2, 3)]
        ra += [salu("s_and_b32", sT[2], sP2x, 64), salu("s_mul_i32", sT[3], sT[2], 511), salu("s_add_u32", sT[3], sT[3], sP2x),
               valu("v_lshrrev_b32", red[4], 3, vLane), valu("v_and_b32", red[5], 7, vLane), valu("v_lshlrev_b32", red[5], 4, red[5]),
               valu("v_lshl_add_u32", red[4], red[4], 11, red[5]), valu("v_add_u32", red[4], sT[3], red[4]),
               salu("s_lshr_b32", sT[3], sW, 1), salu("s_lshl_b32", sT[3], sT[3], 13), salu("s_add_u32", sT[3], sT[3], sT[2]), salu("s_add_u32", sT[3], sT[3], 9 * SLOT),
               valu("v_and_b32", red[5], 16, vLane), valu("v_lshlrev_b32", red[5], 1, red[5]), valu("v_and_or_b32", red[5], vLane, 15, red[5]), valu("v_lshlrev_b32", red[5], 7, red[5]),
               valu("v_and_or_b32", red[5], vLane, 32, red[5]), valu("v_add_u32", red[5], sT[3], red[5])]
        vOW, vOR = [vA01, vA23], vPOLLH
        if c.otr:
            ra += [valu("v_and_b32", vOR, 7, vLane), valu("v_lshlrev_b32", vOR, 4, vOR), valu("v_xor_b32", vOW[0], vOR, red[5]), valu("v_xor_b32", vOW[1], 16, vOW[0]),
                   valu("v_lshrrev_b32", vOR, 3, vLane), valu("v_xor_b32", vOR, vOR, vLane), salu("s_add_u32", sT[3], sWQ, 9 * SLOT), valu("v_lshl_add_u32", vOR, vOR, 4, sT[3])]
        for i in ra: i.tag = "ra"
        light += ra
        used = set()
        for m, (gi, s, b) in enumerate(seq):
            st["m"] = m
            kind = self.GORD[gi][0]
            if gi in self.w2slot or pend(light, f"r{gi}"):
                add(light); light.clear()
                while gi in self.w2slot: add(self.w2_read())
            while gi >= self.w2_nd or pend(st["q"], f"g{gi}"): assert pump(), (m, gi)
            while gi >= self.h_n or any(i.wr & set(hreg[gi].sub(8 * s + 4 * (b >> 1), 4).regs()) for i in st["q"]) or (not c.tbs and pend(st["q"], f"h{gi}")): assert pump(), (m, gi)
            a = (accF if kind == "d" else accS)[b]
            if c.gwait == 1: add(wait_regs(hreg[gi].sub(8 * s, 8), wreg[gi].sub(8 * s, 8)))
            if c.gwait == 2: add(wait_regs(hreg[gi], wreg[gi]))
            if c.m16 & 2:
                for q in range(2):
                    aq = a.sub(8 * s + 4 * q, 4)
                    if q and light and cyc(light[0]) <= 4 and light[0].kind == "valu":
                        add(light.pop(0))
                        if light and cyc(light[0]) <= 4 and light[0].kind == "valu": add(light.pop(0))
                    add(mfma(16, aq, wreg[gi].sub(8 * q + 4 * (b & 1), 4), hreg[gi].sub(8 * s + 4 * (b >> 1), 4), aq if (kind, b, s) in started else 0))
                started.add((kind, b, s))
            else: add(mfma(32, a, wreg[gi].sub(8 * s + 4 * (b & 1), 4), hreg[gi].sub(8 * s + 4 * (b >> 1), 4), a if (kind, b) in started else 0))
            started.add((kind, b))
            add(self.jit(0.1))
            if m == last[gi]:
                pool += [hreg[gi], wreg[gi]]
                if gi + (2 if c.ofirst else 0) in (3, 4, 5): accS.append(pool.pop())
                if gi in c.sp: add(self.stamp(128))
            busy = False
            if m == c.m_f4: add(self.flag(L_L0 if (c.m_pe > 0 and not self.B) else L_END, "st4"), self.stamp()); busy = True
            lb, lc = (L_L0 if c.splf else L_O), (L_L0 if c.m_pe > 0 else L_END)
            for mm, ln in ((c.m_pb, lb), (c.m_pc, lc), (c.m_pe, L_END)):
                if m == mm - c.m_pd: add(self.poll_issue(vPOLL, rWS, ln)); busy = True
            if m in (c.m_pb - 1, c.m_pe - 1) or (m == c.m_pc - 1 and c.m_pb > 0 and c.m_pe > 0): add(valu("v_xor_b32", vTHR, 1, vTHR))
            if m == c.m_pe: add(self.poll_check(vPOLL, rWS, vTHR, L_END)); st["gate"] = 18
            if m == c.m_pb: add(self.poll_check(vPOLL, rWS, vTHR, lb)); st["gate"] = 10
            if m == c.m_pc: add(self.poll_check(vPOLL, rWS, vTHR if c.m_pe > 0 else 1, lc), self.stamp()); st["gate"] = 14 if c.m_pe > 0 else 18; self.pre += (self.w2_nd, self.h_n)
            used.add((gi, s, b >> 1))
            ahead = 4 * self.h_n - sum(1 for i in st["q"] if i.kind == "vml") - len(used)
            if ((m % c.vstep < c.vnum if m < c.m_v1 else m % 2 == 0) or ahead < c.ahead) and not busy: busy = pump()
            if not light and self.w2slot and pool and m >= first[min(self.w2slot)] - c.rlead: light += self.w2_read()
            if m == last[7 if c.ofirst else 9] + 2:
                add(light); light.clear()
                while any(6 <= s_ <= 8 for s_ in self.w2slot.values()): add(self.w2_read())
                st["sw"] = True
                heavy += [wait(lg=[f"r{g}" for g in range(18)])]
                heavy += [ds_write("ds_write_b128", red[0], accS[b2].sub(4 * q, 4), (b2 - 1) * SLOT + q * 1024, tag="sw") for b2 in (1, 2, 3) for q in range(0 if c.dbg & 16384 else 4)]
            if m == c.m_sb:
                while not st["x"] or pend(st["q"], "xs"):
                    g18, nd = st["gate"], self.w2_nd; st["gate"] = 0; self.w2_nd = 18; assert pump(); st["gate"], self.w2_nd = g18, nd
                add(heavy); heavy = []
                add(wait(vm="xs", lg="sw"), barrier()); busy = True
                light += [ds_read("ds_read_b128", xf.sub(8 * i + 4, 4), red[5], 16 * i) for i in range(2)]
                light += [ds_read("ds_read_b128", PR[b2].sub(4 * q, 4), red[b2], (b2 - 1) * SLOT + q * 1024) for b2 in (1, 2, 3) for q in range(4)]
                for b2 in range(4):
                    i = valu("v_subrev_u32", red[b2], 6 * SLOT, red[b2]); i.tag = "ra"; light.append(i)
                for h in range(2):
                    for i in range(4):
                        src = xf[8 * h + 4 + i]
                        pr = [valu("v_lshlrev_b32", xf[8 * h + 2 * i], 16, src), valu("v_and_b32", xf[8 * h + 2 * i + 1], "0xffff0000", src)]
                        light += pr
                light += [valu("v_add_f32", accS[0][i], accS[0][i], PR[1][i]) for i in range(16)] + [valu("v_add_f32", PR[2][i], PR[2][i], PR[3][i]) for i in range(16)]
                light += [valu("v_add_f32", accS[0][i], accS[0][i], PR[2][i]) for i in range(16)]
            for b2 in (1, 2, 3):
                if m == lastb[b2] + 2:
                    assert m > c.m_sb
                    while pend(light, "ra"): add(light.pop(0))
                    heavy += [ds_write("ds_write_b128", red[0], accF[b2].sub(4 * q, 4), (b2 - 1) * SLOT + q * 1024) for q in range(0 if c.dbg & 32768 else 4)]
            if c.fbar and not st.get("fb") and m > max(lastb[1], lastb[2], lastb[3]) + 2 and not heavy:
                st["fb"] = True
                add(light); light.clear()
                add(wait(lg="all"), barrier(), self.jit())
                light += [ds_read("ds_read_b128", PR[b2].sub(4 * q, 4), red[b2], (b2 - 1) * SLOT + q * 1024) for q in range(4) for b2 in (1, 2, 3)]
                if c.fbar == 2:
                    light += [valu("v_add_f32", PR[2][i], PR[2][i], PR[3][i]) for i in range(16)] + [valu("v_add_f32", PR[2][i], PR[2][i], PR[1][i]) for i in range(16)]
            budget = 11 if busy else 24
            if st.get("fb"): budget = 36
            if any(i.kind == "vms" for i in light):
                assert m < c.m_f4
                budget = c.ebud - (14 if busy else 0)
                if light[0].kind == "vms": add(light.pop(0)); budget = 0
            if heavy and not busy and (m % c.hstep == 0 or m > lastb[1] or m < c.m_sb):
                while heavy:
                    x = heavy.pop(0); add(x)
                    if x.kind == "dsw": break
                budget = 0
            while light and cyc(light[0]) <= budget:
                budget -= cyc(light[0]); add(light.pop(0))
        assert self.h_n == 18 and self.w2_nd == 18 and not self.w2slot and not st["q"] and st["x"]
        add(self.stamp())
        add(heavy, light)
        if not st.get("fb"):
            add(wait(lg="all"), barrier(), self.jit())
            for q in range(4):
                for b in (1, 2, 3): add(ds_read("ds_read_b128", PR[b].sub(4 * q, 4), red[b], (b - 1) * SLOT + q * 1024))
        Fp, Sp, t = accF[0], accS[0], PR[1]
        if c.dbg & 32: add(valu("v_mov_b32", vXO, OOB))
        if c.dbg & 64: add(salu("s_lshl2_add_u32", sT[1], sWG, sW), salu("s_lshl_b32", sT[1], sT[1], 11), valu("v_lshl_add_u32", vXO, vLane, 4, sT[1]))
        for hq in range(2):
            r2 = range(8 * hq, 8 * hq + 8, 2); r1 = range(8 * hq, 8 * hq + 8)
            if not (c.fbar == 2 and st.get("fb")):
                add([valu("v_pk_add_f32", PR[2].sub(i, 2), PR[2].sub(i, 2), PR[3].sub(i, 2)) for i in r2])
                add([valu("v_pk_add_f32", Fp.sub(i, 2), Fp.sub(i, 2), PR[1].sub(i, 2)) for i in r2])
            add([valu("v_pk_add_f32", Fp.sub(i, 2), Fp.sub(i, 2), PR[2].sub(i, 2)) for i in r2])
            add([valu("v_pk_mul_f32", t.sub(i, 2), Fp.sub(i, 2), T.sub(0, 2)) for i in r2])
            if c.px & 32: r1 = []
            add([valu("v_exp_f32", t[i], t[i]) for i in r1])
            add([valu("v_pk_mul_f32", Sp.sub(i, 2), Sp.sub(i, 2), Fp.sub(i, 2)) for i in r2])
            add([valu("v_pk_add_f32", t.sub(i, 2), t.sub(i, 2), T.sub(2, 2)) for i in r2])
            add([valu("v_rcp_f32", t[i], t[i]) for i in r1])
            add([valu("v_pk_fma_f32", xf.sub(i, 2), Sp.sub(i, 2), t.sub(i, 2), xf.sub(i, 2)) for i in r2])
            add([valu("v_cvt_pk_bf16_f32", t[8 * hq + i], xf[8 * hq + 2 * i], xf[8 * hq + 2 * i + 1]) for i in range(4)])
            if c.otr: add(self.jit(), ds_write("ds_write_b128", vOW[hq], t.sub(8 * hq, 4)))
            else: add(buf_store("buffer_store_dwordx4", t.sub(8 * hq, 4), vXO, rOUT, 0, (1024 if c.dbg & 64 else 16) * hq, flags=c.outflags))
        if c.otr:
            add(salu("s_movk_i32", sT[1], 16384), wait(lg="all"), barrier(), [ds_read("ds_read_b128", xf.sub(4 * i, 4), vOR, 1024 * i) for i in range(2)])
            add([buf_store("buffer_store_dwordx4", xf.sub(4 * i, 4), red[4], rOUT, sT[1] if i else 0, flags=c.outflags) for i in range(2)])

    def finish(self):
        add = self.add
        if self.cfg.stamps:
            add(raw(f"{self.cfg.clock} s[14:15]", "smem"))
            add(wait(vm="all"))
            add(raw(f"{self.cfg.clock} s[16:17]\n    s_waitcnt lgkmcnt(0)", "smem"))
            add(valu("v_mov_b32", V(96), 0))
            for i in range(self.nst): add(raw(f"v_writelane_b32 v96, s{STAMPS[i]}, {1+i}", "valu", wr=["v96"]))
            add(raw(f"v_writelane_b32 v96, s{ST0}, 0", "valu", wr=["v96"]), raw(f"v_writelane_b32 v96, s14, {1+self.nst}", "valu", wr=["v96"]),
                raw(f"v_writelane_b32 v96, s16, {2+self.nst}", "valu", wr=["v96"]))
            add(salu("s_lshl_b32", sT[1], sWG, 2), salu("s_add_u32", sT[1], sT[1], sW), salu("s_lshl_b32", sT[1], sT[1], 6), salu("s_add_u32", sT[1], sT[1], STAMP_OFF),
                valu("v_lshl_add_u32", V(97), vLane, 2, sT[1]), salu("s_mov_b64", "exec", "0xffff"), buf_store("buffer_store_dword", V(96), V(97), rWS))
        add(raw("s_endpgm", "end"))

    def program(self):
        NS[0] = self.cfg.NS
        if self.cfg.ofirst:
            assert self.cfg.m_pb == -1
            G = Gen.GORD
            self.GORD = G[:4] + G[6:10] + G[4:6] + G[10:]
        assert self.cfg.NS <= (7 if self.B else 9)
        self.w2slot, self.slot_used, self.w2pos = {}, {}, {"d": 0, "o": 0}
        self.w2_nd = self.w2_nr = 0
        self.win2 = [0, 0]
        self.xf_n = 0
        self.h_n, self.hreg, self.wreg, self.hpos = 0, {}, {}, {"d": 0, "o": 0}
        self.e.comment('phase 0'); self.ramp(); self.e.comment('phase 1'); self.phase1(); self.e.comment('phase 2')
        self.pre = (self.w2_nd, len(self.w2slot), self.h_n)
        if not self.cfg.p1only: self.phase2()
        self.finish()
        return self.e.text() + self.slow

HEAD = open("recurrent_scan__sliding_local_dilated__swiglu_ffn__prompt.s.ref").read().split("; Override launch")[0]

DOC = """; One persistent launch, one workgroup (4 waves, 512 registers each) per CU; tokens are kept in parity-split order.
;  phase 1: 128 tokens x 320 weight columns per workgroup, weights streamed through an LDS ring (LDS-DMA + transposing reads),
;           B: k,v | q | gate,up with the dilated window attention done on 4x4x4 MFMAs; C: 2.5 gate/up pairs; h and o go to d_ws.
;  phase 2: 64 x 64 output tile per workgroup, K split over the waves, reduced through LDS; out = x + s * silu(ffn).
; Hand-offs: write-through (sc1) stores, counted wait, flag word; flag lines are cleared inside the launch (announced through d_debug).
"""
def build(cfg):
    s = HEAD + "; @launch grid=(256,1,1) block=(256,1,1) lds=163840\n"
    s += DOC
    s += f'.amdgcn_target "amdgcn-amd-amdhsa--gfx950"\n.text\n.globl {KNAME}\n.p2align 8\n.type {KNAME},@function\n{KNAME}:\n'
    s += f"""    s_cmp_ge_u32 s2, 256
    s_cbranch_scc0 L_go
    s_endpgm
L_go:
"""
    if cfg.stamps: s += f"    {cfg.clock} s[{ST0}:{ST0+1}]\n"
    s += f"""    s_load_dwordx2 s[24:25], s[0:1], 0
    s_load_dwordx16 s[4:19], s[0:1], 0
    s_load_dwordx4 s[20:23], s[0:1], 64
    v_lshrrev_b32 v1, 6, v0
    s_getpc_b64 s[28:29]
    v_readfirstlane_b32 {sW}, v1
    s_bfe_u32 s26, s2, 0x30003
    s_lshl_b32 s26, s26, 13
    v_lshrrev_b32 v2, 2, v0
    v_lshl_add_u32 v2, v2, 7, s26
    v_min_u32 v2, L_end-L_go-256, v2
    global_load_dword v3, v2, s[28:29]
    v_and_b32 {vLane}, 63, v0
    v_lshrrev_b32 v96, 3, {vLane}
    v_and_b32 v97, 7, v0
    s_lshl_b32 {sWQ}, {sW}, 12
    s_cmp_ge_u32 s2, 128
    s_cbranch_scc1 L_typeC
"""
    info = {}
    for typ in ("B", "C"):
        g = Gen(typ, cfg)
        g.e.vm.append(("pf", {"v3"}))
        s += f"L_type{typ}:\n" + g.program()
        info[typ] = (g.e.slots, g.e.nops, dict(g.e.count), [sum(max(32, 24 + x) for x in g.load[i:i + 32]) for i in range(0, 320, 32)], g.pre, g.nst + 3)
    s += "L_end:\n"
    s += f""".section .rodata,"a"
.p2align 6
.amdhsa_kernel {KNAME}
  .amdhsa_next_free_vgpr 512
  .amdhsa_next_free_sgpr 102
  .amdhsa_accum_offset 256
  .amdhsa_group_segment_fixed_size 0
  .amdhsa_kernarg_size 80
  .amdhsa_user_sgpr_count 2
  .amdhsa_user_sgpr_kernarg_segment_ptr 1
  .amdhsa_system_sgpr_workgroup_id_x 1
.end_amdhsa_kernel
"""
    return s, info

if __name__ == "__main__":
    cfg = Cfg()
    out = sys.argv[1]
    for a in sys.argv[2:]:
        k, v = a.split("=")
        assert hasattr(cfg, k) or hasattr(cfg, k[:-2]), k
        if k in ("outflags", "hflags", "pflags", "wflags"): v = v.replace("_", " ")
        elif k in ("sg", "sp", "xr", "xr_B", "xr_C"): v = [int(x) for x in v.split(",")]
        elif k not in ("clock", "planB", "planC"): v = int(v)
        setattr(cfg, k, v)
    s, info = build(cfg)
    open(out, "w").write(s)
    for k, v in info.items(): print(k, v)
```

```python
import sys, struct
sys.path.insert(0, "tools")
from emit import *
from asmlib import KNAME

FLAG_OFF, XN_OFF, HALO_OFF, WS_USED = 0x910000, 0x938000, 0xB38000, 0xF00000
WT_OFF, P6_OFF = 0xC01000, 0xE50000
L_HALO, L_P1, L_HALF, L_O, L_L0, L_END = [128 * i for i in range(6)]
FLAGA_OFF = 0x930000
STAMP_OFF = 0xB80000
OOB = 0x40000000
SLOT = 16384
HSTR = 145 * 1024
RP = 272
SCR = 7 * SLOT
SPARE = SCR + 137 * RP
LOG2E = 1.4426950408889634
def f32(x): return "0x%08x" % struct.unpack("<I", struct.pack("<f", x))[0]

class Cfg:
    stamps = 0
    clock = "s_memrealtime"
    sg = ()
    sp = ()
    p1only = 0
    LA = 8
    NB = 10
    spin = 1000000
    cbx = 0
    rot = 0
    sleep = 0
    w_x = 0
    w_y = 0
    cdbg = 2
    w_p_B = 2
    w_p = 1
    cone = 1
    px = 0
    ofirst = 0
    fbar = 0
    hstep = 2
    tbs = 6
    eov = 0
    ebud = 28
    nogate = 0
    jitter = 0
    bq = 1
    th1 = 1
    otr = 1
    chain = 1
    dpos = 1
    w_c0 = 3
    p0 = 1
    rlate = 0
    m16 = 0
    wstep = 4
    sconst = 1
    gwait = 0
    halo3 = 1
    c_delay = 1
    b_lean = 0
    xr = (2, 4, 6, 12)
    splf = 0
    bar2 = 8
    map2 = 0
    one_pa = 0
    q_early = 1
    patom = 8
    f2_lag = 24
    rsel = 1
    tx = 1
    b_rest = None
    tlin = 0
    wo_late = -1
    sig_early = 0
    nodbg = 0
    f2_epi = -1
    pa2_epi = -1
    dbg = 0
    nspl = 0
    e0_end = 312
    f3_at = 30
    setup_early = 0
    w_0 = 0
    w_a = 0
    w_b = 2
    w_c = 4
    nx0 = 8
    xrate = 5
    planB = "6:l,7:l,8:l,9:l,10:l,11:P.l,12:l.H,13:l,14:l,15:l.l,16:l.d6,17:l.d0,18:h.h,19:h.h.l"
    planC = "6:l,7:l,8:l,9:l.w,10:l,11:l,12:l,13:l,14:l,15:l.l,16:l.l,17:l.d8,18:h.h,19:h.h.d7"
    ts_pos = -1
    f2_bar = 2
    pw_lead = 14
    pw_per = 6
    NS = 7
    xfree = 1
    kv_end = 141
    kv_mode = 5
    kw_end = 214
    p6_per = 4
    c_rest = 5
    c_tile = -1
    g_flag1 = 163
    g_halo = 200
    att_w = 24
    g_f1c = 210
    g_pa = 262
    h2_end = 240
    g_f2c = 264
    g_pa2 = 304
    epi_mem = 8
    m_f4 = 24
    m_pe = -99
    pa_per = 18
    m_f3 = -1
    m_pb = 24
    m_pc = 68
    m_pd = 12
    m_sb = 106
    defer = 4
    vstep = 1
    vnum = 1
    m_v1 = 0
    wlead = 1
    rlead = 12
    keep = 4
    ahead = 12
    outflags = "sc1"
    hflags = "sc1"
    pflags = "sc1"
    wflags = ""
    snake = 0

sWG = S(2)
pX, pQKV, pWO, pG, pU, pD, pOUT, pDBG, pWS = S(4, 2), S(6, 2), S(8, 2), S(12, 2), S(14, 2), S(16, 2), S(18, 2), S(20, 2), S(22, 2)
rX, rQKV, rGU, rD, rWO, rOUT, rWS, rDBG = S(24, 4), S(28, 4), S(32, 4), S(36, 4), S(40, 4), S(44, 4), S(48, 4), S(52, 4)
sW, sRB, sGQ, sJ, sTB2, sCB2, sWQ = S(56), S(57), S(58), S(59), S(60), S(61), S(62)
sT = [S(3), S(63), S(64), S(65)]
sM1, sM2 = S(66, 2), S(68, 2)
sHM0, sXS = S(70), S(71)
sJ1, sJ2, sJ3 = S(72, 2), S(74, 2), S(76, 2)
sTHR, sCNT = S(78), S(79)
sU = [S(60), S(61), S(58), S(59)]
sUh = [S(0), S(1)]
sHu = [S(4), S(5), S(6)]
sCS, sC1, sHd, sHo = S(7), S(8), S(9), S(10)
sWd, sWo, sWS, sW0 = S(40), S(41), S(42), S(43)
sOA = [0, S(11), S(12), S(13)]
sOB = [0, S(14), S(15), S(16)]
sNL, sH3 = S(17), S(18)
sP2h, sP2f, sP2x, sHS = S(20), S(21), S(22), S(23)
STAMPS = list(range(82, 102, 2))
ST0 = 80

ACC1, ACC2 = V(0, 64), V(64, 32)
VBUF = [V(96 + 16 * i, 16) for i in range(8)]
KA, SG = V(176, 24), V(200, 16)
T = V(224, 8)
(vF2, vA23, vA01, vP2, vHRB, vWB, vDMA2, vDMA1, vW1, vFV, vPV, vW0, vPOLL, vHALO, vPOLLH, vHLD,
 vFLG, vVTR, vSCR, vHST, vDMA0, vTR1, vTR0, vLane) = [V(232 + i) for i in range(24)]
vW = [vW0, vW1]
vP6 = vA01
vHLD2, vFH = V(222), V(223)
vXN = V(216)
vTCH = [V(217), V(218), V(219), V(220), V(221)]
vH = [vHRB, vHALO]
vXO, vTHR = vDMA1, vDMA0
X = A(0, 128)
WF = A(128, 40)
aDUM = A(168)
ABUF = [A(176 + 16 * i, 16) for i in range(5)]
NS = [5]
def slab_slot(n): return n % NS[0]

def cyc(i):
    k = i.kind
    if k in ("wait", "waitr", "waitcnt", "mfma"): return 0
    if k == "trans": return 8
    if k in ("dma", "vml"): return 14
    if k == "vms": return 30 if i.op.endswith("x4") else 20
    if k == "dsw": return 26
    if k == "dsr": return 11 if i.op.endswith("b128") else 4
    if k == "bar": return 14
    if k == "branch": return 8
    return 4

class Gen:
    def __init__(self, typ, cfg):
        self.typ, self.cfg = typ, cfg
        self.B = typ == "B"
        import copy
        self.cfg = cfg = copy.copy(cfg)
        for k, v in list(vars(cfg).items()) + list(vars(Cfg).items()):
            if k.endswith('_' + typ): setattr(cfg, k[:-2], getattr(cfg, k))
        self.e = Emitter()
        self.nst = 0
        self.nlab = 0
        self.slow = ""
        self.mid = []
        import random
        self.rng, self.njit = random.Random(cfg.jitter * 2 + self.B), 0
        self.TR = [vTR0, vTR1, T[6], T[7]] if self.B else [vTR0, vTR1, vA23, vPOLLH, vVTR, vHLD]
    def add(self, *ins):
        for i in ins: self.e.add(i)
    def stamp(self, mode=1):
        if not (self.cfg.stamps & mode): return self.jit(0.6)
        r = S(STAMPS[self.nst], 2); self.nst += 1
        return [raw(f"{self.cfg.clock} {r}", "smem")]
    def jit(self, p=1.0):
        if not self.cfg.jitter or self.rng.random() > p: return []
        self.njit += 1
        l = f"L_{self.typ}_j{self.njit}"
        if self.rng.random() < 0.7: cond = f"s_cmp_eq_u32 {sW}, {self.rng.randrange(4)}"
        else: cond = f"s_bitcmp1_b32 {sWG}, {self.rng.randrange(7)}"
        return [raw(f"{cond}\n    s_cbranch_scc0 {l}\n    s_sleep {self.rng.choice((2, 8, 20, 60))}\n{l}:", "branch")]
    def touch(self, va, srd, flags=""):
        i = buf_load("buffer_load_dword", aDUM, va, srd, flags=flags)
        i.wr = set()
        return [i]
    def poll_text(self, vaddr, srd, off):
        n = {str(vPOLL): (8, 1), str(vPOLLH): (1, 2), str(vP2): (48, 4), str(vP6): (32, 4), "v105": (2, 8), "v106": (8, 16)}[str(vaddr)]
        if not self.cfg.patom & n[1]: return None
        return (f"v_mov_b32 {vPV}, 15\n    s_bfm_b64 exec, {n[0]}, 0\n    v_mov_b32 {vPV}, 0\n"
                f"    buffer_atomic_add {vPV}, {vaddr}, {srd}, 0 offen offset:{off} sc0 sc1\n    s_mov_b64 exec, -1")
    def poll_issue(self, vaddr, srd, off=0):
        t = self.poll_text(vaddr, srd, off)
        if t:
            i = buf_load("buffer_load_dword", vPV, vaddr, srd, 0, off); i.text = t
            return [i]
        return [buf_load("buffer_load_dword", vPV, vaddr, srd, 0, off, flags=self.cfg.pflags)]
    def poll_check(self, vaddr, srd, thr, off=0):
        self.nlab += 1
        l = f"L_{self.typ}_p{self.nlab}"
        sl = f"    s_sleep {self.cfg.sleep}\n" if self.cfg.sleep else ""
        if self.cfg.stamps & 512:
            sl += f"    s_add_u32 s{STAMPS[self.nlab - 1]}, s{STAMPS[self.nlab - 1]}, 1\n"; self.nst = 8
        self.slow += (f"{l}_slow:\n    s_mov_b32 {sCNT}, 0\n{l}_spin:\n"
                f"{sl}    {self.poll_issue(vaddr, srd, off)[0].text}\n    s_add_u32 {sCNT}, {sCNT}, 1\n    s_waitcnt vmcnt(0)\n"
                f"    v_cmp_gt_u32 vcc, {thr}, {vPV}\n    s_cmp_ge_u32 {sCNT}, {self.cfg.spin}\n    s_cbranch_scc1 {l}_ok\n"
                f"    s_cbranch_vccnz {l}_spin\n    s_branch {l}_ok\n")
        return [valu("v_cmp_gt_u32", "vcc", thr, vPV), raw(f"s_cbranch_vccnz {l}_slow\n{l}_ok:", "branch")]
    def flag(self, stage, tag):
        return [wait(vm=tag), buf_store("buffer_store_dword", vFV, vFLG, rWS, 0, stage, flags="sc1")]

    def ramp(self):
        c, add, B = self.cfg, self.add, self.B
        t0, t1, t2, t3 = V(96), V(97), V(98), V(99)
        vXL, vXS, vRS, vST, vF0, vP0, vDB, vTLB, vSG, vXR, vTL, vTS = [V(100 + i) for i in range(12)]
        vR2, vTB0, vTB1, vPL, vPS = [V(162 + i) for i in range(5)]
        tl, p6 = V(168, 16), V(184, 4)
        xr, lo, z, part = V(112, 16), V(128, 16), V(144, 4), V(148, 8)
        sm, sq, one = V(156), V(157), V(158)
        rb = V(160, 2)
        srd = lambda r, p, n: [salu("s_mov_b32", r[0], p[0]), salu("s_mov_b32", r[1], p[1]), salu("s_mov_b32", r[2], n), salu("s_mov_b32", r[3], "0x20000")]
        gu = [salu("s_cmp_lt_u32", None, sW, 2), salu("s_cselect_b32", rGU[0], pG[0], pU[0]), salu("s_cselect_b32", rGU[1], pG[1], pU[1])]
        sizes = ((rX, pX, 2048 * 1024), (rWS, pWS, WS_USED), (rDBG, pDBG, 256), (rQKV, pQKV, 512 * 3072), (rOUT, pOUT, 2048 * 1024))
        XL = 8 * SLOT
        self.nslab = 0
        if c.stamps & 1024:
            add(raw(f"s_getreg_b32 s{STAMPS[0]}, hwreg(HW_REG_XCC_ID)\n    s_getreg_b32 s{STAMPS[1]}, hwreg(HW_REG_HW_ID)", "salu")); self.nst = 2
        if c.stamps & 512: add([salu("s_mov_b32", S(r), 0) for r in STAMPS])
        add(self.stamp(256))
        TL = (7 if B else 9) * SLOT
        roles = [salu("s_lshr_b32", sT[0], sWG, 3), salu("s_and_b32", sT[1], sWG, 7), salu("s_and_b32", sRB, sWG, 1), salu("s_lshl_b32", sRB, sRB, 3),
                 salu("s_and_b32", sT[2], sT[0], 7), salu("s_add_u32", sRB, sRB, sT[2]), salu("s_lshr_b32", sGQ, sT[1], 1), salu("s_lshr_b32", sJ, sT[0], 3),
                 salu("s_lshl_b32", sTB2, sT[1], 2), salu("s_and_b32", sT[2], sT[0], 3), salu("s_add_u32", sTB2, sTB2, sT[2]), salu("s_lshr_b32", sCB2, sT[0], 2)]
        if c.map2 == 1:
            roles = roles[:8] + [salu("s_and_b32", sT[2], sT[0], 7), salu("s_lshl3_add_u32", sTB2, sGQ, sT[2]), salu("s_and_b32", sT[2], sWG, 1), salu("s_lshl2_add_u32", sCB2, sT[2], sJ)]
        if c.map2 == 2:
            roles = roles[:8] + [salu("s_lshr_b32", sT[2], sT[0], 2), salu("s_lshl3_add_u32", sTB2, sGQ, sT[2]), salu("s_and_b32", sT[2], sWG, 1), salu("s_and_b32", sCB2, sT[0], 3),
                                 salu("s_lshl2_add_u32", sCB2, sT[2], sCB2)]
        if c.map2 == 3:
            roles = roles[:8] + [salu("s_lshl2_add_u32", sTB2, sT[1], sJ), salu("s_and_b32", sCB2, sT[0], 7)]
        if c.cbx: roles += [salu("s_xor_b32", sCB2, sCB2, c.cbx)]
        def tile_setup():
            if B:
                o = [salu("s_lshl2_add_u32", sT[1], sRB, sW), salu("s_lshl_b32", sT[2], sT[1], 13), salu("s_lshl1_add_u32", sT[3], sGQ, sJ)] + srd(rD, pWO, 512 * 1024)
            else:
                o = [salu("s_lshr_b32", sT[1], sW, 1), salu("s_lshl1_add_u32", sT[1], sT[0], sT[1]), salu("s_lshl_b32", sT[2], sT[1], 15),
                     salu("s_xor_b32", sCNT, sGQ, c.tx), salu("s_and_b32", sT[3], sW, 1), salu("s_lshl1_add_u32", sT[3], sCNT, sT[3])] + srd(rD, pD, 1792 * 1024)
            o += [salu("s_lshl_b32", sCNT, sT[3], 7), salu("s_add_u32", sT[2], sT[2], sCNT),
                  valu("v_lshrrev_b32", t2, 2, vLane), valu("v_and_b32", t2, 4, t2), valu("v_xor_b32", t2, t2, t1), valu("v_lshlrev_b32", t2, 4, t2),
                  valu("v_lshl_add_u32", t2, t0, 10, t2), valu("v_add_u32", vTL, sT[2], t2)]
            o += [salu("s_mul_i32", sT[2], sT[3], 72 * 4096), salu("s_lshl_b32", sT[1], sT[1], 10 if B else 12), salu("s_add_u32", sT[2], sT[2], sT[1]),
                  salu("s_add_u32", sT[2], sT[2], WT_OFF + (56 * 4096 if B else 0)),
                  ]
            if B: o += [salu("s_lshl4_add_u32", sT[1], sT[3], sRB)]
            else: o += [salu("s_lshl_b32", sT[1], sGQ, 5), salu("s_add_u32", sT[1], sT[1], sT[0])]
            o += [salu("s_and_b32", sT[3], sT[1], 7), salu("s_lshr_b32", sT[1], sT[1], 3), salu("s_lshl_b32", sT[1], sT[1], 7), salu("s_lshl2_add_u32", sT[1], sT[3], sT[1]),
                  salu("s_add_u32", sT[1], sT[1], FLAGA_OFF + (80 if B else 64) * 128)]
            if not B: o += [salu("s_cmp_lt_u32", None, sRB, 14), salu("s_cselect_b32", sT[2], sT[2], OOB)]
            o += [salu("s_cmp_eq_u32", None, sW, 0), salu("s_cselect_b32", sT[1], sT[1], OOB),
                  valu("v_lshl_add_u32", vTS, vLane, 4, sT[2]), valu("v_mov_b32", vF2, OOB), raw(f"v_writelane_b32 {vF2}, {sT[1]}, 0", "valu", rd=[vF2], wr=[vF2])]
            return o
        def tile_store():
            o = [valu("v_bfe_u32", t2, vLane, 2, 2), valu("v_lshrrev_b32", t3, 5, vLane), valu("v_lshl_add_u32", vTB0, t3, 4 if B else 2, t2), valu("v_lshlrev_b32", vTB0, 7, vTB0),
                 valu("v_lshrrev_b32", t2, 1, t2), valu("v_lshl_add_u32", vTB0, t2, 6, vTB0), valu("v_and_b32", t2, 1, vLane), valu("v_lshl_add_u32", vTB0, t2, 5, vTB0),
                 valu("v_and_or_b32", vTB0, vLane, 16, vTB0), valu("v_and_b32", t2, 2, vLane), valu("v_lshl_add_u32", vTB0, t2, 2, vTB0)]
            if B:
                o += [salu("s_and_b32", sT[1], sW, 1), salu("s_lshl_b32", sT[1], sT[1], 6), valu("v_xor_b32", vTB0, sT[1], vTB0),
                      salu("s_lshr_b32", sT[1], sW, 1), salu("s_lshl_b32", sT[1], sT[1], 10), salu("s_add_u32", sT[1], sT[1], TL), valu("v_add_u32", vTB0, sT[1], vTB0)]
                return o, [ds_read("ds_read_b64_tr_b16", tl.sub(2 * u, 2), vTB0, u * 512) for u in range(2)], [buf_store("buffer_store_dwordx4", tl.sub(0, 4), vTS, rWS, flags="sc1", tag="ts")]
            o += [salu("s_add_u32", sT[1], sWQ, TL), valu("v_add_u32", vTB0, sT[1], vTB0), valu("v_xor_b32", vTB1, 64, vTB0), wait(vm="tl")]
            for s_ in range(2):
                for cb in range(2):
                    for u in range(2): o += [ds_read("ds_read_b64_tr_b16", tl.sub(8 * s_ + 4 * cb + 2 * u, 2), (vTB0, vTB1)[cb], s_ * 2048 + u * 1024)]
            return o, [buf_store("buffer_store_dword", vFV, vF2, rWS, 0, 2048 if c.cone else 0, flags="sc1")], [buf_store("buffer_store_dwordx4", tl.sub(4 * i, 4), vTS, rWS, 0, 1024 * i, flags="sc1", tag="ts") for i in range(2 if c.dbg & 2048 else 4)]
        if B:
            if c.p0 == 1:
                add(salu("s_and_b32", sT[2], sWG, 63), salu("s_lshl_b32", sT[2], sT[2], 15), salu("s_lshr_b32", sT[1], sWG, 6), salu("s_lshl2_add_u32", sT[1], sT[1], sW),
                    salu("s_lshl_b32", sT[1], sT[1], 8), salu("s_add_u32", sT[1], sT[1], sT[2]),
                    valu("v_xor_b32", t2, t0, t1), valu("v_lshlrev_b32", t2, 4, t2), valu("v_lshl_add_u32", vXL, t0, 11, t2),
                    salu("s_add_u32", sXS, sT[1], 16384 - 1024), srd(*sizes[0])[2:], set_m0(sWQ, XL, "x"))
                add(self.stamp(256), raw("s_waitcnt lgkmcnt(0)", "waitcnt"), self.stamp(256))
                add(buf_dma(vXL, rX, sT[1], 0, tag="x"), buf_dma(vXL, rX, sXS, 1024, tag="x"), set_m0(sWQ, XL + 2048 - 128, "x"), salu("s_mov_b32", rWS[0], pWS[0]),
                    buf_dma(vXL, rX, sT[1], 128, tag="x"), buf_dma(vXL, rX, sXS, 1024 + 128, tag="x"))
            else:
                add(salu("s_and_b32", sT[2], sWG, 63), salu("s_lshl2_add_u32", sT[2], sT[2], sW), salu("s_lshr_b32", sT[1], sWG, 6), salu("s_lshl3_add_u32", sT[1], sT[2], sT[1]),
                    salu("s_lshl_b32", sT[1], sT[1], 10), valu("v_lshl_add_u32", vXL, vLane, 4, sT[1]), salu("s_mul_i32", sCNT, sW, 4352),
                    salu("s_movk_i32", sT[1], 960), salu("s_movk_i32", sT[2], 1920), salu("s_movk_i32", sT[3], 2880), srd(*sizes[0])[2:], set_m0(sCNT, XL, "x"))
                add(self.stamp(256), raw("s_waitcnt lgkmcnt(0)", "waitcnt"), self.stamp(256))
                add([buf_dma(vXL, rX, sT[i] if i else 0, 1088 * i, tag="x") for i in range(4)], salu("s_mov_b32", rWS[0], pWS[0]))
                add(valu("v_and_b32", vST, 3, vLane), valu("v_mul_u32_u24", t2, 1088, vST), valu("v_lshrrev_b32", vXL, 2, vLane), valu("v_lshl_add_u32", t2, vXL, 4, t2),
                    salu("s_add_u32", sCNT, sCNT, XL), valu("v_add_u32", vXR, sCNT, t2))
            add(self.stamp(256))
            add(srd(*sizes[1])[1:])
            if c.rsel: add(salu("s_lshr_b32", sT[1], sWG, 3), salu("s_and_b32", sT[2], sWG, 1), salu("s_lshl1_add_u32", sT[1], sT[1], sT[2]), salu("s_and_b32", sT[3], sWG, "0xe6"))
            else: add(salu("s_mov_b32", sT[1], sWG), salu("s_lshr_b32", sT[3], sWG, 3))
            add(salu("s_lshl_b32", sT[2], sT[1], 11), salu("s_add_u32", sT[2], sT[2], FLAGA_OFF), salu("s_lshl_b32", sT[1], sT[1], 2),
                salu("s_or_b32", sT[3], sT[3], sW), salu("s_cselect_b32", sT[2], OOB, sT[2]), salu("s_cselect_b32", sT[1], OOB, sT[1]),
                salu("s_lshl_b32", sT[3], sWG, 10), salu("s_add_u32", sT[3], sT[3], FLAG_OFF), salu("s_cmp_eq_u32", None, sW, 1),
                [salu("s_cselect_b32", sT[3], sT[3], OOB), valu("v_lshl_add_u32", vR2, vLane, 4, sT[3]), salu("s_mov_b32", sT[3], 7)] if c.rlate else
                [salu("s_cselect_b32", sT[2], sT[3], sT[2]), salu("s_cselect_b32", sT[3], 6, 7)],
                valu("v_lshrrev_b32", t2, 2, vLane), valu("v_and_b32", t3, 3, vLane), valu("v_lshlrev_b32", t3, 4, t3), valu("v_lshl_add_u32", t2, t2, sT[3], t3),
                valu("v_add_u32", vRS, sT[2], t2), valu("v_mov_b32", vSG, sT[1]), [valu("v_mov_b32", z[i], 0) for i in range(4)])
            add(buf_store("buffer_store_dwordx4", z, vRS, rWS, flags="sc1", tag="reset"))
            add(roles)
            for q in sizes[2:]: add(srd(*q))
            if c.bq:
                add(salu("s_lshl1_add_u32", sT[0], sRB, sJ), salu("s_lshl2_add_u32", sT[1], sT[0], sW), salu("s_mul_i32", sT[1], sT[1], 4 * 3072), salu("s_lshl_b32", sT[2], sGQ, 8),
                    salu("s_add_u32", sT[1], sT[1], sT[2]),
                    valu("v_min_u32", t2, 5, t1), valu("v_and_b32", t3, 1, t2), valu("v_lshrrev_b32", t2, 1, t2), valu("v_lshl_add_u32", t2, t2, 3, t3),
                    valu("v_and_b32", t3, 3, t0), valu("v_mul_u32_u24", t3, 3072, t3), valu("v_lshl_add_u32", t2, t2, 7, t3), valu("v_add_u32", t2, sT[1], t2), self.touch(t2, rQKV))
            add(gu, srd(rGU, pG, 512 * 3584)[2:], tile_setup())
            if c.wo_late == -1: add(salu("s_lshr_b32", sT[1], sWQ, 2), set_m0(sT[1], TL, "tl"), buf_dma(vTL, rD, tag="tl"))
        else:
            add(roles)
            add(salu("s_lshl_b32", sT[0], sRB, 1), salu("s_add_u32", sT[0], sT[0], sJ), salu("s_sub_u32", sT[0], sT[0], 2),
                valu("v_and_b32", t3, 1, t1), [] if c.bq else [
                salu("s_lshl2_add_u32", sT[1], sT[0], sW), salu("s_mul_i32", sT[1], sT[1], 4 * 3072), salu("s_lshl_b32", sT[2], sGQ, 8), salu("s_add_u32", sT[1], sT[1], sT[2]),
                valu("v_and_b32", t2, 3, t0), valu("v_mul_u32_u24", t2, 3072, t2), valu("v_lshl_add_u32", t2, t3, 7, t2),
                valu("v_add_u32", vTCH[3], sT[1], t2), valu("v_bfe_u32", t2, t1, 1, 1), valu("v_add_u32", t2, 1, t2), valu("v_lshl_add_u32", vTCH[1], t2, 10, vTCH[3])],
                salu("s_and_b32", sT[2], sW, 1), salu("s_lshl1_add_u32", sT[1], sT[0], sT[2]), salu("s_mul_i32", sT[1], sT[1], 8 * 3584),
                salu("s_mul_i32", sT[2], sGQ, 7 * 128), salu("s_add_u32", sT[1], sT[1], sT[2]),
                valu("v_mul_u32_u24", t2, 3584, t0), valu("v_add_u32", t2, sT[1], t2), valu("v_lshl_add_u32", vTCH[0], t3, 7, t2))
            if c.tlin:
                add(salu("s_sub_u32", sT[2], sWG, 128), salu("s_lshl2_add_u32", sT[3], sT[2], sW), salu("s_mul_i32", sCNT, sT[3], 3072),
                    valu("v_min_u32", vTCH[1], 23, vLane), valu("v_lshl_add_u32", vTCH[1], vTCH[1], 7, sCNT),
                    salu("s_mul_i32", sCNT, sT[3], 3584), valu("v_min_u32", vTCH[4], 27, vLane), valu("v_lshl_add_u32", vTCH[4], vTCH[4], 7, sCNT),
                    salu("s_and_b32", sT[3], sW, 1), salu("s_lshl1_add_u32", sT[3], sT[2], sT[3]), salu("s_mul_i32", sT[3], sT[3], 7168),
                    valu("v_min_u32", vTCH[0], 55, vLane), valu("v_lshl_add_u32", vTCH[0], vTCH[0], 7, sT[3]))
            add([] if c.bq else srd(*sizes[3])[2:], srd(rGU, pG, 512 * 3584)[2:])
            add(self.stamp(256), raw("s_waitcnt lgkmcnt(0)", "waitcnt"), self.stamp(256))
            if c.c_delay:
                add(salu("s_mov_b32", sT[3], sT[1]), [self.dma_setup(ch) for ch in range(3)], salu("s_mov_b32", sT[1], sT[3]))
            if c.tlin == 2: add(srd(rD, pD, 1792 * 1024), self.touch(vTCH[4], rD))
            add([] if c.bq else srd(*sizes[3])[:2] + self.touch(vTCH[1], rQKV), gu, self.touch(vTCH[0], rGU), self.stamp(256))
            add(valu("v_and_b32", t3, 3, t1), valu("v_add_u32", t3, 2, t3), valu("v_lshl_add_u32", vTCH[2], t3, 7, t2),
                valu("v_bfe_u32", t2, vLane, 2, 3), valu("v_mul_u32_u24", t2, 3584, t2), valu("v_bfe_u32", t3, vLane, 4, 1), valu("v_xor_b32", t3, t3, vLane), valu("v_and_b32", t3, 3, t3),
                valu("v_lshl_add_u32", t2, t3, 4, t2),
                valu("v_lshrrev_b32", t3, 5, vLane), valu("v_lshl_add_u32", t2, t3, 6, t2), salu("s_add_u32", sT[1], sT[1], 768), valu("v_add_u32", vPL, sT[1], t2),
                buf_load("buffer_load_dwordx4", p6, vPL, rGU),
                salu("s_lshr_b32", sT[1], sT[0], 3), salu("s_lshl_b32", sT[1], sT[1], 14), salu("s_and_b32", sT[2], sT[0], 7), salu("s_lshl_b32", sT[2], sT[2], 10),
                salu("s_add_u32", sT[1], sT[1], sT[2]), salu("s_and_b32", sT[2], sW, 1), salu("s_lshl_b32", sT[2], sT[2], 9), salu("s_add_u32", sT[1], sT[1], sT[2]),
                salu("s_lshr_b32", sT[2], sW, 1), salu("s_lshl_b32", sT[2], sT[2], 13), salu("s_add_u32", sT[1], sT[1], sT[2]),
                salu("s_lshl_b32", sT[2], sGQ, 17), salu("s_add_u32", sT[1], sT[1], sT[2]), salu("s_add_u32", sT[1], sT[1], P6_OFF),
                valu("v_and_b32", t2, 31, vLane), valu("v_lshlrev_b32", t2, 4, t2), valu("v_lshl_add_u32", t2, t3, 16, t2), valu("v_add_u32", vPS, sT[1], t2),
                )
            add(tile_setup())
            tdma = [set_m0(sWQ, TL, "tl"), salu("s_mov_b32", sTHR, 7168)]
            for i in range(2 if c.dbg & 2048 else 4):
                tdma += [buf_dma(vTL, rD, sTHR if i else 0, 1024 * i, tag="tl")]
                if 0 < i < 3: tdma += [salu("s_add_u32", sTHR, sTHR, 7168)]
            self.rest = [] if (c.tlin or c.b_rest is not None) else self.touch(vTCH[3], rQKV) + self.touch(vTCH[2], rGU)
            self.tdma = tdma
            if c.c_tile == -1: add(tdma)
            if c.bq: self.rest.pop(0)
            elif c.q_early and self.rest: add(self.rest.pop(0))
            if c.c_rest == -1: add(self.rest)
            add(srd(*sizes[0])[2:])
            for q in sizes[1:3] + sizes[4:]: add(srd(*q))
        add(valu("v_mov_b32", vFV, 1))
        sa, sb = (8 * 3072, 8 * 3584) if B else (8 * 3584, 16 * 3584)
        for i in (1, 2, 3):
            add(salu("s_mov_b32", sOA[i], i * (sa - 1024)), [salu("s_mov_b32", sOB[i], i * (sb - 1024))] if B else [])
        if B or not c.c_delay: add(self.dma_setup(0))
        if B:
            for _ in range(c.w_0): add(self.dma_slab())
            add(salu("s_lshr_b32", sT[0], sWG, 1), salu("s_and_b32", sT[3], sWG, 1),
                salu("s_lshl_b32", sT[1], sT[0], 15), salu("s_lshl_b32", sT[2], sW, 13), salu("s_add_u32", sT[1], sT[1], sT[2]), salu("s_lshl_b32", sT[2], sT[3], 10),
                salu("s_add_u32", sT[1], sT[1], sT[2]), salu("s_add_u32", sT[1], sT[1], XN_OFF))
            if c.p0 == 1:
                add(valu("v_lshrrev_b32", t2, 4, vLane), valu("v_and_b32", t3, 2, t2), valu("v_xor_b32", t3, t3, t1), valu("v_lshlrev_b32", t3, 4, t3), valu("v_and_b32", vST, 15, vLane),
                    valu("v_lshl_add_u32", t3, vST, 7, t3), valu("v_and_b32", t2, 1, t2), valu("v_lshl_add_u32", t3, t2, 3, t3),
                    salu("s_add_u32", sT[2], sWQ, XL), valu("v_add_u32", vXR, sT[2], t3), valu("v_xor_b32", vXL, 64, vXR), valu("v_xor_b32", vPL, 16, vXR), valu("v_xor_b32", vPS, 16, vXL),
                    valu("v_lshl_add_u32", vXS, vLane, 4, sT[1]),
                    valu("v_lshlrev_b32", vST, 5, vST), valu("v_add_u32", vST, SPARE, vST),
                    salu("s_lshl_b32", sT[2], sW, 2), valu("v_lshrrev_b32", t3, 5, vLane), valu("v_lshl_add_u32", t3, t3, 4, sT[2]), valu("v_add_u32", vRS, t3, vST))
            else:
                add(valu("v_lshlrev_b32", t3, 4, vST), valu("v_lshl_add_u32", t3, vXL, 9, t3), valu("v_add_u32", vXS, sT[1], t3))
            add(
                salu("s_lshl_b32", sT[1], sT[0], 7), salu("s_lshl_b32", sT[2], sT[3], 2), salu("s_add_u32", sT[1], sT[1], sT[2]), salu("s_add_u32", sT[1], sT[1], FLAGA_OFF),
                salu("s_cmp_eq_u32", None, sW, 0), salu("s_cselect_b32", sT[1], sT[1], OOB),
                valu("v_mov_b32", t2, OOB), valu("v_mov_b32", t3, sT[1]), valu("v_cmp_eq_u32", "vcc", 0, vLane), valu("v_cndmask_b32", vF0, t2, t3, "vcc"),
                valu("v_mov_b32", one, "0x3f803f80"), valu("v_mov_b32", sm, 0), valu("v_mov_b32", sq, 0), salu("s_mov_b32", sXS, 4096))
        add(salu("s_lshl_b32", sT[1], sRB, 2), salu("s_add_u32", sT[1], sT[1], sW), salu("s_lshl_b32", sT[2], sT[1], 7), salu("s_add_u32", sT[2], sT[2], FLAGA_OFF),
            valu("v_and_b32", vPOLL, 1, vLane), valu("v_lshlrev_b32", vPOLL, 2, vPOLL), valu("v_add_u32", vP0, sT[2], vPOLL),
            salu("s_lshl_b32", sT[1], sT[1], 15), salu("s_add_u32", sT[1], sT[1], 0 if c.px & 128 else XN_OFF), valu("v_lshl_add_u32", vXN, vLane, 4, sT[1]),
            salu("s_cmp_eq_u32", None, sW, 0), salu("s_cselect_b32", sT[1], 0, OOB), salu("s_cselect_b32", sT[3], 0 if c.nodbg else 1, 0),
            valu("v_lshl_add_u32", vDB, t1, 2, sT[1]), valu("v_mov_b32", vTLB, sT[3]))
        if not B and not c.c_delay: add(self.dma_setup(1), self.dma_setup(2))
        if B and not c.b_lean: add(self.dma_setup(1), self.dma_setup(2))
        add(self.w2_setup())
        if c.setup_early or not B: self.misc_setup()
        add(self.stamp(65 + 256))
        if B:
            add(wait(vm="x"))
            if c.p0 == 1: add([ds_read("ds_read_b64", xr.sub(4 * i + 2 * u, 2), ((vXR, vPL), (vXL, vPS))[i & 1][u], 2048 * (i >> 1)) for i in range(4) for u in range(2)])
            else: add([ds_read("ds_read_b128", xr.sub(4 * i, 4), vXR, 256 * i) for i in range(4)])
            for _ in range(c.w_x): add(self.dma_slab())
            if c.sig_early: add(wait(vm="reset"), buf_store("buffer_store_dword", vFV, vSG, rDBG, flags="sc1"))
            add(self.stamp(64 + 256))
            for r in range(16): add(valu("v_dot2c_f32_bf16", sm, xr[r], one, rmw=True), valu("v_dot2c_f32_bf16", sq, xr[r], xr[r], rmw=True))
            add([valu("v_lshlrev_b32", lo[i], 16, xr[i]) for i in range(3)])
            add(valu("v_permlane32_swap_b32", sm, sq, rmw=True, wr2=sq), valu("v_add_f32", sm, sm, sq), valu("v_mov_b32", sq, sm))
            add([valu("v_lshlrev_b32", lo[i], 16, xr[i]) for i in (3, 4)])
            add(valu("v_permlane16_swap_b32", sm, sq, rmw=True, wr2=sq), valu("v_add_f32", sm, sm, sq))
            sig = [] if c.sig_early else [wait(vm="reset"), buf_store("buffer_store_dword", vFV, vSG, rDBG, flags="sc1")]
            shl = lambda a, b: [valu("v_lshlrev_b32", lo[i], 16, xr[i]) for i in range(a, b)]
            if c.p0 == 1:
                add(ds_write("ds_write_b32", vRS, sm, tag="st"), sig, shl(5, 16))
                add(wait(lg="st"), self.stamp(256), barrier(), self.stamp(256))
                add([ds_read("ds_read_b128", part.sub(4 * i, 4), vST, 16 * i) for i in range(2)])
                for _ in range(c.w_y): add(self.dma_slab())
                add([valu("v_and_b32", xr[i], "0xffff0000", xr[i]) for i in range(16)])
                add(valu("v_pk_add_f32", part.sub(0, 2), part.sub(0, 2), part.sub(2, 2)), valu("v_pk_add_f32", part.sub(4, 2), part.sub(4, 2), part.sub(6, 2)),
                    valu("v_add_f32", sm, part[0], part[1]), valu("v_add_f32", sq, part[4], part[5]))
            else:
                add(shl(5, 7), valu("v_add_f32_dpp", sm, sm, sm, extra="row_ror:8 row_mask:0xf bank_mask:0xf"),
                    shl(7, 9), valu("v_add_f32_dpp", sm, sm, sm, extra="row_ror:4 row_mask:0xf bank_mask:0xf"), valu("v_mov_b32", sq, sm),
                    shl(9, 11), valu("v_permlane32_swap_b32", sm, sq, rmw=True, wr2=sq), sig, shl(11, 16), self.stamp(256), self.stamp(256))
                add([valu("v_and_b32", xr[i], "0xffff0000", xr[i]) for i in range(16)])
            add(
                valu("v_mul_f32", sm, f32(1 / 512), sm), valu("v_mul_f32", sq, f32(1 / 512), sq),
                valu("v_fma_f32", sq, f"-{sm}", sm, sq), valu("v_max_f32", sq, 0, sq),
                valu("v_cvt_pk_bf16_f32", sq, sq, sm),
                valu("v_and_b32", sm, "0xffff0000", sq), valu("v_lshlrev_b32", sq, 16, sq),
                valu("v_add_f32", sq, f32(1e-5), sq), valu("v_cvt_pk_bf16_f32", sq, sq, sq), valu("v_lshlrev_b32", sq, 16, sq),
                valu("v_sqrt_f32", sq, sq), valu("v_cvt_pk_bf16_f32", sq, sq, sq), valu("v_lshlrev_b32", sq, 16, sq),
                valu("v_rcp_f32", rb[1], sq), valu("v_mul_f32", rb[0], f"-{sm}", rb[1]))
            for h in range(2 if c.dbg & 1024 else 4):
                for r in (lo, xr):
                    add([valu("v_pk_fma_f32", r.sub(i, 2), r.sub(i, 2), rb, rb, extra="op_sel:[0,1,0] op_sel_hi:[1,1,0]") for i in (4 * h, 4 * h + 2)])
                add([valu("v_cvt_pk_bf16_f32", xr[i], lo[i], xr[i]) for i in range(4 * h, 4 * h + 4)])
                if c.p0 == 1: add(buf_store("buffer_store_dwordx4", xr.sub(4 * h, 4), vXS, rWS, sXS if h >> 1 else 0, 2048 * (h & 1), flags="sc1", tag=f"xs{h}"))
                else: add(salu("s_movk_i32", sXS, 8192 * h), buf_store("buffer_store_dwordx4", xr.sub(4 * h, 4), vXS, rWS, sXS, flags="sc1"))
            if c.rlate: add(buf_store("buffer_store_dwordx4", z, vR2, rWS, flags="sc1"))
            if c.dpos == 0: add(self.poll_issue(vDB, rDBG))
            add(self.stamp(64 + 4096))
            if c.dpos != 2:
                for _ in range(c.w_a): add(self.dma_slab())
            if c.b_rest is not None:
                add(salu("s_lshl1_add_u32", sT[0], sRB, sJ), salu("s_lshl2_add_u32", sT[1], sT[0], sW), salu("s_mul_i32", sT[1], sT[1], 4 * 3072), salu("s_lshl_b32", sT[2], sGQ, 8),
                    salu("s_add_u32", sT[1], sT[1], sT[2]), valu("v_and_b32", t2, 3, t0), valu("v_mul_u32_u24", t2, 3072, t2), valu("v_and_b32", t3, 1, t1),
                    valu("v_lshl_add_u32", t2, t3, 7, t2), valu("v_add_u32", vTCH[3], sT[1], t2),
                    salu("s_and_b32", sT[2], sW, 1), salu("s_lshl1_add_u32", sT[1], sT[0], sT[2]), salu("s_mul_i32", sT[1], sT[1], 8 * 3584),
                    salu("s_mul_i32", sT[2], sGQ, 7 * 128), salu("s_add_u32", sT[1], sT[1], sT[2]), salu("s_add_u32", sT[1], sT[1], 256),
                    valu("v_mul_u32_u24", t2, 3584, t0), valu("v_add_u32", t2, sT[1], t2), valu("v_and_b32", t3, 3, t1), valu("v_lshl_add_u32", vTCH[2], t3, 7, t2))
                self.rest = self.touch(vTCH[3], rQKV) + self.touch(vTCH[2], rGU)
            if c.b_lean: add(self.dma_setup(1), self.dma_setup(2))
            self.mid = self.poll_issue(vDB, rDBG) if c.dpos == 3 else []
            if not c.setup_early: self.misc_setup()
            if c.dpos in (1, 2): add(self.poll_issue(vDB, rDBG))
            if c.dpos == 2:
                for _ in range(c.w_a): add(self.dma_slab())
            pre, rd, self.ts = tile_store()
            add(pre)
            if c.stamps & 4096: add(self.stamp(4096), wait(vm="xs0"), self.stamp(4096), wait(vm="xs3"), self.stamp(4096), wait(vm="w0"), self.stamp(4096))
            if not c.px & 256: add(self.poll_check(vDB, rDBG, vTLB))
            add(self.stamp(64 + 4096))
            add(barrier(), self.stamp(64), buf_store("buffer_store_dword", vFV, vF0, rWS, flags="sc1", tag="f0"))
            wo = [salu("s_lshr_b32", sT[1], sWQ, 2), set_m0(sT[1], TL, "tl"), buf_dma(vTL, rD, tag="tl")]
            if c.wo_late == 0: add(wo)
            for _ in range(c.w_b): add(self.dma_slab())
        else:
            pre, rd, self.ts = tile_store()
            for _ in range(c.w_c0): add(self.dma_slab())
            if c.cdbg == 1: add(self.poll_issue(vDB, rDBG))
            if c.c_tile == -1: add(pre)
            else:
                assert c.ts_pos > c.c_tile and c.ts_pos >= 0
                add(pre[:14]); self.ts = pre[14:] + self.ts
            if c.w_c0: add(self.stamp(64 + 256), self.stamp(256), self.stamp(64 + 256))
            else: add(self.stamp(64 + 256), self.dma_slab(), self.stamp(256), wait(vm="w0"), self.stamp(64 + 256))
            if c.cdbg == 2: add(self.poll_issue(vDB, rDBG))
            add(buf_store("buffer_store_dwordx4", p6, vPS, rWS, flags="sc1"))
            if c.ts_pos < 0: add(self.ts); self.ts = []
            if not c.cdbg: add(self.poll_issue(vDB, rDBG))
            while self.nslab < c.w_c: add(self.dma_slab())
            if c.c_tile == -2: add(tdma)
            if c.c_rest == -2: add(self.rest)
            if not c.px & 256: add(self.poll_check(vDB, rDBG, vTLB), self.stamp(64), barrier(), self.stamp(64))
        if not c.px & 128: add(self.poll_issue(vP0, rWS))
        for _ in range(c.w_p): add(self.dma_slab())
        if c.stamps & 4096:
            add(self.stamp(4096), wait(vm="f0"), self.stamp(4096), wait(vm=f"w{self.nslab-1}"), self.stamp(4096), wait_regs(vPV), self.stamp(4096))
            self.nst = 10
        if not c.px & 128: add(wait_regs(vPV), self.stamp(64), self.poll_check(vP0, rWS, 1))
        add(self.stamp(65 + 256))
        self.nx = 0
        for _ in range(c.nx0 // 2): add(self.x_load())
        add(wait(vm=["w0", "tl"] if B else "w0"), barrier(), rd)
        F = self.frag_list()
        for k in range(c.LA):
            add(self.frag_reads(k, F[k]))
            if k % 2 and self.nx < c.nx0: add(self.x_load())
        while self.nx < c.nx0: add(self.x_load())
    def x_load(self):
        j = self.nx; self.nx += 1
        o = []
        if j % 4 == 0: o += [salu("s_mov_b32", sXS, j * 1024)]
        return o + [buf_load("buffer_load_dwordx4", X.sub(4 * j, 4), vXN, rX if self.cfg.px & 128 else rWS, 0 if self.cfg.dbg & 8 else sXS, (j % 4) * 1024, flags="sc1")]

    def misc_setup(self):
        add = self.add
        t0, t1, t2, t3 = T[0], T[1], T[2], T[3]
        TR = self.TR
        add(valu("v_bfe_u32", t0, vLane, 2, 3), valu("v_and_b32", t1, 32, vLane), valu("v_lshrrev_b32", t1, 1, t1), valu("v_add_u32", t1, t1, t0),
            valu("v_and_b32", t2, 1, vLane), valu("v_lshlrev_b32", t2, 3, t2), valu("v_and_b32", t3, 2, vLane),
            valu("v_lshl_add_u32", TR[0], t1, 7, t2), valu("v_lshl_add_u32", TR[0], t3, 5, TR[0]), valu("v_lshrrev_b32", t0, 1, t0), valu("v_lshl_add_u32", TR[0], t0, 4, TR[0]),
            [valu("v_xor_b32", TR[i], 16 * i, TR[0]) for i in (1, 2, 3)])
        if not self.B:
            add(valu("v_lshl_add_u32", TR[4], t1, 6, t2), valu("v_lshl_add_u32", TR[4], t3, 4, TR[4]), valu("v_and_or_b32", TR[4], vLane, 16, TR[4]), valu("v_xor_b32", TR[5], 16, TR[4]))
        self.win = [0] * 6
        for ch in range(3):
            if not (self.B and ch == 0): add(self.set_hu(ch))
        if self.B: add(self.att_setup())
        add(self.mid)
        add(salu("s_lshl_b32", sT[1], sRB, 2), salu("s_add_u32", sT[1], sT[1], sW), salu("s_mul_i32", sT[2], sT[1], HSTR),
            valu("v_and_b32", t0, 16, vLane), valu("v_lshlrev_b32", t0, 1, t0), valu("v_and_or_b32", t0, vLane, 15, t0), valu("v_lshl_add_u32", t0, t0, 4, sT[2]),
            valu("v_and_b32", t1, 32, vLane), valu("v_lshl_add_u32", vHST, t1, 6, t0))
        if not self.B: add(valu("v_lshl_add_u32", vSCR, t1, 5, t0))
        if self.cfg.dbg & 1: add(valu("v_mov_b32", vHST, OOB))
        add(salu("s_lshr_b32", sT[1], sT[1], 1), salu("s_lshl_b32", sT[1], sT[1], 2), salu("s_add_u32", sT[1], sT[1], sGQ), salu("s_lshl_b32", sT[1], sT[1], 10),
            salu("s_and_b32", sT[2], sW, 1), salu("s_lshl_b32", sT[3], sJ, 1), salu("s_add_u32", sT[2], sT[2], sT[3]), salu("s_lshl_b32", sT[2], sT[2], 2),
            salu("s_add_u32", sT[1], sT[1], sT[2]), salu("s_add_u32", sT[1], sT[1], FLAG_OFF),
            valu("v_mov_b32", t0, OOB), valu("v_mov_b32", t1, sT[1]), valu("v_cmp_eq_u32", "vcc", 0, vLane), valu("v_cndmask_b32", vFLG, t0, t1, "vcc"))
        if self.B: add(valu("v_add_u32", vFH, sH3, vFLG))
        add(salu("s_lshl_b32", sT[1], sTB2, 1), salu("s_lshr_b32", sT[2], sW, 1), salu("s_add_u32", sT[1], sT[1], sT[2]), salu("s_mul_i32", sP2h, sT[1], HSTR),
            salu("s_xor_b32", sT[2], sT[1], 1), salu("s_mul_i32", sHS, sT[2], HSTR),
            salu("s_lshl_b32", sT[1], sT[1], 5),
            salu("s_and_b32", sT[2], sT[1], 1023), salu("s_lshl_b32", sT[2], sT[2], 11), salu("s_lshr_b32", sT[1], sT[1], 10), salu("s_lshl_b32", sT[1], sT[1], 10),
            salu("s_add_u32", sT[1], sT[1], sT[2]), salu("s_lshl_b32", sT[2], sCB2, 7), salu("s_add_u32", sT[1], sT[1], sT[2]),
            salu("s_and_b32", sT[2], sW, 1), salu("s_lshl_b32", sT[2], sT[2], 6), salu("s_add_u32", sP2x, sT[1], sT[2]),
            salu("s_lshl_b32", sT[1], sTB2, 2), salu("s_add_u32", sT[1], sT[1], sW), salu("s_lshl_b32", sT[1], sT[1], 10), salu("s_add_u32", sP2f, sT[1], FLAG_OFF))
        add(salu("s_mul_i32", sT[1], sCB2, 72 * 4096), salu("s_add_u32", sT[1], sT[1], WT_OFF), salu("s_lshl_b32", sT[2], sT[2], 4),
            salu("s_add_u32", sT[3], sT[1], sT[2]), valu("v_lshl_add_u32", vW[0], vLane, 4, sT[3]),
            salu("s_sub_u32", sT[3], sT[1], sT[2]), valu("v_lshl_add_u32", vW[1], vLane, 4, sT[3]), valu("v_lshl_add_u32", vWB, vLane, 4, sWQ),
            salu("s_lshl_b32", sT[1], sCB2, 8), salu("s_add_u32", sT[1], sT[1], FLAGA_OFF + 96 * 128), salu("s_lshl_b32", sT[2], sGQ, 9), salu("s_add_u32", sT[2], sT[2], FLAGA_OFF + (80 if self.cfg.cone else 64) * 128),
            salu("s_lshr_b32", sT[3], sCB2, 1), salu("s_xor_b32", sT[3], sT[3], self.cfg.tx), salu("s_lshl_b32", sT[3], sT[3], 9), salu("s_add_u32", sT[3], sT[3], FLAGA_OFF + 80 * 128),
            salu("s_cmp_eq_u32", None, sW, 0), salu("s_cselect_b32", sT[1], sT[1], OOB), salu("s_cselect_b32", sT[2], sT[2], OOB), salu("s_cselect_b32", sT[3], sT[3], OOB),
            salu("s_cselect_b32", sW0, 1, 0),
            valu("v_and_b32", t0, 24, vLane), valu("v_lshlrev_b32", t0, 2, t0), valu("v_and_or_b32", t0, vLane, 7, t0), valu("v_and_b32", t1, 63, t0),
            valu("v_lshl_add_u32", t1, t1, 2, sT[1]), valu("v_lshl_add_u32", vP2, t0, 2, sT[3]),
            valu("v_cmp_lt_u32", "vcc", 31, vLane), valu("v_cndmask_b32", vP2, vP2, t1, "vcc"))
        if not self.B: add(valu("v_lshl_add_u32", vP6, t0, 2, sT[2]))

    def chunk_of(self, n): return 0 if n < 8 else (1 if n < 12 else 2)
    def dma_setup(self, ch):
        t0, t1 = T[0], T[1]
        o = []
        B = self.B
        half = (not B) and ch == 1
        stride = 3072 if (B and ch < 2) else 3584
        if half:
            return [salu("s_lshl_b32", sT[1], sGQ, 1), salu("s_add_u32", sT[1], sT[1], sJ), salu("s_lshl_b32", sT[1], sT[1], 16), salu("s_add_u32", sT[1], sT[1], sWQ),
                    salu("s_add_u32", sT[1], sT[1], P6_OFF - 2 * 65536), valu("v_lshl_add_u32", vDMA1, vLane, 4, sT[1])]
        else:
            o += [valu("v_lshrrev_b32", t0, 4, vLane), valu("v_and_b32", t1, 7, vLane), valu("v_xor_b32", t1, t0, t1), valu("v_lshrrev_b32", t0, 3, vLane)]
        o += [valu("v_mul_u32_u24", t0, stride, t0), valu("v_lshl_add_u32", t0, t1, 4, t0)]
        a, b = sT[1], sT[2]
        if B and ch == 0:
            o += [salu("s_lshl_b32", a, sGQ, 1), salu("s_add_u32", a, a, sJ), salu("s_lshl_b32", a, a, 7), salu("s_lshr_b32", b, sW, 1),
                  salu("s_add_u32", b, b, 1), salu("s_lshl_b32", b, b, 10), salu("s_add_u32", a, a, b), salu("s_and_b32", b, sW, 1),
                  salu("s_mul_i32", b, b, 32 * stride), salu("s_add_u32", a, a, b)]
        elif B and ch == 1:
            o += [salu("s_lshl_b32", a, sGQ, 1), salu("s_add_u32", a, a, sJ), salu("s_lshl_b32", a, a, 7), salu("s_mul_i32", b, sW, 32 * stride),
                  salu("s_add_u32", a, a, b)]
        else:
            if half: o += [salu("s_lshl_b32", b, sJ, 6), salu("s_add_u32", b, b, 6 * 128 - 128)]
            else: o += [salu("s_lshl_b32", b, sJ, 7), salu("s_sub_u32" if ch == 0 else "s_add_u32", b, b, 256)]
            o += [salu("s_mul_i32", a, sGQ, 7 * 128), salu("s_add_u32", a, a, b), salu("s_and_b32", b, sW, 1),
                  salu("s_mul_i32", b, b, (64 if half else 32) * stride), salu("s_add_u32", a, a, b)]
        o += [valu("v_add_u32", (vDMA0, vDMA1, vDMA2)[ch], a, t0)]
        return o
    def dma_slab(self):
        n = self.nslab; self.nslab += 1
        ch = self.chunk_of(n)
        B = self.B
        vd = (vDMA0, vDMA1, vDMA2)[ch]
        srd = rQKV if (B and ch < 2) else rGU
        so = (sOA if ch < 2 else sOB) if B else (sOB if ch == 1 else sOA)
        stride = 3072 if (B and ch < 2) else 3584
        o = [set_m0(sWQ, slab_slot(n) * SLOT, f"w{n}")]
        if ch == 1 and not B:
            if n > 8: o += [valu("v_add_u32", vd, 16384, vd)]
            return o + [buf_dma(vd, rWS, 0, i * 1024, flags="sc1", tag=f"w{n}") for i in range(4)]
        if n not in (0, 8, 12) and not self.cfg.dbg & 16: o += [valu("v_add_u32", vd, (128 if ch == 1 else 64) * stride, vd)]
        o += [buf_dma(vd, srd, so[i], i * 1024, flags="sc1" if self.cfg.dbg & 16 else self.cfg.wflags, tag=f"w{n}") for i in range(2 if (self.cfg.dbg & 512 and n >= 7) else 4)]
        return o
    def frag_list(self):
        L = []
        for n in range(20):
            ch = self.chunk_of(n)
            base = slab_slot(n) * SLOT
            if ch != 1:
                n0 = 0 if ch == 0 else 12
                for jj in range(2):
                    for cc in range(4):
                        for im in range(2):
                            L.append(([ACC1.sub(16 * im + 32 * th + 4 * cc, 4) for th in range(2)], 4 * (n - n0) + 2 * jj, n, base + im * 8192 + jj * 4096, cc, 1024))
            else:
                for jj in range(4):
                    for cc in range(4):
                        if self.B: L.append(([ACC2.sub(16 * th + 4 * cc, 4) for th in range(2)], 8 * (n - 8) + 2 * jj, n, base + jj * 4096, cc, 1024))
                        else: L.append(([ACC2.sub(16 * (cc & 1) + 8 * th + 4 * (cc >> 1), 4) for th in range(2)], 8 * (n - 8) + 2 * jj, n, base + (cc & 1) * 8192 + jj * 2048, 4 + (cc >> 1), 512))
        assert not self.cfg.nspl
        if self.cfg.chain:
            M = []
            for n in range(20):
                f = L[16 * n:16 * n + 16]
                h = 4 if self.chunk_of(n) == 1 else 8
                for a in range(0, 16, 2 * h):
                    for i in range(h): M += [f[a + i], f[a + h + i]]
            L = M
        return L
    def window(self, wins, which, reg, off, span):
        o = []
        if not (wins[which] <= off and off + span <= wins[which] + 65536):
            w = off // SLOT * SLOT
            d = w - wins[which]
            o += [valu("v_add_u32" if d > 0 else "v_subrev_u32", reg, abs(d), reg)]
            wins[which] = w
        return o, off - wins[which]
    def frag_reads(self, k, f):
        acc, step, n, off, which, ustep = f
        b = self.TR[which]
        o, imm = self.window(self.win, which, b, off, 2048)
        dst = WF.sub(4 * (k % self.cfg.NB), 4)
        o += [ds_read("ds_read_b64_tr_b16", dst.sub(0, 2), b, imm, tag=f"f{k}"), ds_read("ds_read_b64_tr_b16", dst.sub(2, 2), b, imm + ustep, tag=f"f{k}")]
        if self.cfg.dbg & 4096 and k >= 16: o.pop(-1 - (k // self.cfg.NB & 1))
        return o
    def ffn_epi(self, G, U, ch, kst, tag, pk=False):
        o = []
        for b in range(4):
            t = [T[4 + i] for i in range(4)]
            g = [G[4 * b + i] for i in range(4)]; u = [U[4 * b + i] for i in range(4)]
            if pk:
                t2 = [T.sub(4, 2), T.sub(6, 2)]; g2 = [G.sub(4 * b, 2), G.sub(4 * b + 2, 2)]; u2 = [U.sub(4 * b, 2), U.sub(4 * b + 2, 2)]
                o += [valu("v_pk_mul_f32", t2[i], g2[i], T.sub(0, 2)) for i in range(2)]
                o += [valu("v_exp_f32", t[i], t[i]) for i in range(4)]
                o += [valu("v_pk_mul_f32", u2[i], g2[i], u2[i]) for i in range(2)]
                o += [valu("v_pk_add_f32", t2[i], t2[i], T.sub(2, 2)) for i in range(2)]
                o += [valu("v_rcp_f32", t[i], t[i]) for i in range(4)]
                o += [valu("v_pk_mul_f32", u2[i], u2[i], t2[i]) for i in range(2)]
            else:
                o += [valu("v_mul_f32", t[i], sNL if self.cfg.sconst else f32(-LOG2E), g[i]) for i in range(4)]
                for i in range(4): o += [valu("v_exp_f32", t[i], t[i]), valu("v_mul_f32", u[i], g[i], u[i])]
                o += [valu("v_add_f32", t[i], "1.0", t[i]) for i in range(4)]
                o += [valu("v_rcp_f32", t[i], t[i]) for i in range(4)]
                o += [valu("v_mul_f32", u[i], u[i], t[i]) for i in range(4)]
            if self.cfg.dbg & 8192: o = [x for x in o if x.op not in ("v_add_f32", "v_pk_add_f32")]
            o += [valu("v_cvt_pk_bf16_f32", G[2 * b + i], u[2 * i], u[2 * i + 1]) for i in range(2)]
            if b & 1: o += [buf_store("buffer_store_dwordx4", G.sub(2 * (b - 1), 4), vSCR if ch == 1 else vHST, rWS, sHu[ch], kst + (b >> 1) * (256 if ch == 1 else 1024), flags=self.cfg.hflags, tag=tag)]
        return o
    def set_hu(self, ch):
        a = sT[1]
        if self.B and ch == 1:
            return [salu("s_lshl_b32", a, sGQ, 1), salu("s_add_u32", a, a, sJ), salu("s_lshl_b32", a, a, 12), salu("s_add_u32", sHu[ch], a, 112 * 1024)]
        o = [salu("s_mul_i32", sHu[ch], sGQ, 28 * 1024)]
        if ch == 1: o += [salu("s_lshl_b32", a, sJ, 11), salu("s_add_u32", a, a, 6 * 4096 - 4096)]
        else: o += [salu("s_lshl_b32", a, sJ, 12), salu("s_sub_u32" if ch == 0 else "s_add_u32", a, a, 8192)]
        return o + [salu("s_add_u32", sHu[ch], sHu[ch], a)]

    def phase1(self):
        c, add, B = self.cfg, self.add, self.B
        F = self.frag_list()
        NM = len(F)
        self.slow0 = self.slow
        assert not c.chain or (c.wstep % 2 == 0 and c.NB >= c.LA + 2)
        gaps = [[] for _ in range(NM)]
        tail = [[] for _ in range(NM)]
        load = [0] * NM
        def put(k, ins, last=False):
            if c.px & 2: ins = [x for x in ins if x.kind != "mfma"]
            if c.px & 4: ins = [x for x in ins if x.kind != "dsw"]
            if c.px & 8: ins = [x for x in ins if not (x.kind == "branch" or str(vPV) in x.rd | x.wr)]; self.slow = self.slow0
            if c.px & 64: ins = [x for x in ins if x.kind != "trans"]
            (tail if last else gaps)[k] += ins
            load[k] += sum(cyc(i) for i in ins)
        def spread(ins, k0, k1):
            tot = sum(cyc(i) for i in ins)
            lo, hi = 0.0, 1000.0
            for _ in range(40):
                mid = (lo + hi) / 2
                if sum(max(0, mid - load[k]) for k in range(k0, k1)) >= tot: hi = mid
                else: lo = mid
            cap, acc = [], 0.0
            for k in range(k0, k1):
                acc += max(0, hi - load[k]); cap.append(acc)
            k, used = 0, 0.0
            for i in ins:
                while k < len(cap) - 1 and used + cyc(i) / 2 > cap[k] and i.kind != "branch": k += 1
                put(k0 + k, [i]); used += cyc(i)
        bar_gap = {n: 16 * n - c.LA - 1 for n in range(1, 20)}
        bar_gap[0], bar_gap[20] = -1, NM
        self.bar_extra = {n: [] for n in range(1, 21)}
        need = {n: max(f[2] for f in F[:min(NM, bar_gap[n + 1] + c.LA + 1)]) for n in range(20)}
        skip = lambda n: c.bar2 and c.bar2 <= n < 19 and (n - c.bar2) % 2 == 1
        self.skip = skip
        for n in range(18, 0, -1):
            if skip(n + 1): need[n] = need[n + 1]
        for n in (c.pw_per, c.p6_per, c.f2_bar): assert not skip(n)
        lastx = lambda i: max(k for k, f in enumerate(F) if f[1] // 4 == i)
        plan = dict((int(p.split(":")[0]), p.split(":")[1].split(".")) for p in (c.planB if B else c.planC).split(",") if p)
        self.pool = list(ABUF) + VBUF[:5] + ([] if B else VBUF[5:7])
        put(bar_gap[c.pw_per] - 1 - c.pw_lead, self.poll_issue(vP2, rWS))
        put(bar_gap[c.pw_per] - 1, self.poll_check(vP2, rWS, sW0))
        if not B:
            assert bar_gap[c.p6_per] <= bar_gap[c.pw_per] - 1 - c.pw_lead
            put(bar_gap[c.p6_per] - 1 - c.pw_lead, self.poll_issue(vP6, rWS))
            put(bar_gap[c.p6_per] - 1, self.poll_check(vP6, rWS, sW0))
        assert not c.cone or c.ts_pos < 0
        if B or not c.cone: put(bar_gap[c.f2_bar] + 1, [buf_store("buffer_store_dword", vFV, vF2, rWS, 0, 2048, flags="sc1")])
        for n in range(20):
            k = bar_gap[n]
            if n and not skip(n): load[k] += 14
            if B and n and bar_gap[n - 1] < c.g_halo + 2 * (9 + c.att_w) <= k: self.pool += VBUF[5:]
            if n == 9 and not B: self.pool += VBUF[7:]
            ops = list(plan.get(n, []))
            ins = []
            while ops and ops[0] in ("r", "H"):
                ins += self.plan_op(ops.pop(0), n)
            w = []
            nw = 0
            while self.nslab < 20 and self.nslab <= n - (1 if skip(n) else 0) + c.NS - 2 and (B or self.nslab < 8 or n >= c.p6_per) and (self.nslab <= need[min(19, n + 2)] or nw + ops.count("w") < 1 or "w" in ops):
                if nw and "w" in ops: ops.remove("w")
                w += self.dma_slab(); nw += 1
            ops = [x for x in ops if x != "w"]
            assert self.nslab > need[min(19, n + 2)], n
            if n == max(c.ts_pos, 0): ins += self.ts
            while c.xfree and self.xf_n < 5 and lastx(self.xf_n) <= k: self.pool += [A(16 * self.xf_n, 16)]; self.xf_n += 1
            nxl = min(32 - self.nx, c.xr[n] if n < len(c.xr) else (c.xrate if n else max(1, c.xrate // 2)))
            for i in w:
                if i.kind == "dma" and nxl: ins += self.x_load(); nxl -= 1
                ins.append(i)
            for _ in range(nxl): ins += self.x_load()
            assert self.nx >= min(32, (bar_gap[n + 1] + 16) // 4 + (3 if c.chain else 1)), n
            if n == c.c_tile and not B: ins += self.tdma
            if n == (c.b_rest if B else c.c_rest): ins += self.rest
            for op in ops: ins += self.plan_op(op, n)
            if ins: spread(ins, k + 1, bar_gap[n + 1])
        if not B:
            ins = self.ffn_epi(ACC1.sub(0, 16), ACC1.sub(16, 16), 0, 0, "st1") + self.ffn_epi(ACC1.sub(32, 16), ACC1.sub(48, 16), 0, 256, "st1")
            spread(ins, 129, 191)
            if not c.one_pa: put(c.g_f1c, self.flag(L_P1, "st1"))
            spread(self.ffn_epi(ACC2.sub(0, 16), ACC2.sub(16, 16), 1, 0, "st2"), 194, c.h2_end)
            put(c.g_f2c, self.flag(L_HALF, "st2"))
        else:
            self.attention(put, spread, bar_gap, load)
        if c.nspl:
            k0 = max(320 - 8 * c.nspl + 2, self.att_end + 7 if B else 0)
            spread(self.ffn_epi(ACC1.sub(0, 16), ACC1.sub(16, 16), 2, 0, "st3"), k0, c.e0_end)
        o = [valu("v_lshl_add_u32", vH[0], vLane, 4, sP2h), valu("v_lshl_add_u32", vH[1], vLane, 4, sHS),
             valu("v_and_b32", vPOLL, 7, vLane), valu("v_lshrrev_b32", vTHR, 2, vPOLL), valu("v_lshl_add_u32", vPOLL, vPOLL, 2, sP2f),
             ]
        if not c.otr: o += [valu("v_and_b32", vXO, 31, vLane), valu("v_lshlrev_b32", vXO, 11, vXO), valu("v_and_or_b32", vXO, vLane, 32, vXO), valu("v_add_u32", vXO, sP2x, vXO)]
        spread(o, *((176, 192) if B else (200, c.g_pa)))
        la = L_HALF if c.one_pa else L_P1
        put(c.g_pa, self.poll_issue(vPOLL, rWS, la))
        assert c.g_pa < bar_gap[c.pa_per] - 1
        put(bar_gap[c.pa_per] - 1, self.poll_check(vPOLL, rWS, vTHR, la))
        self.pa2 = (vPOLL, rWS, vTHR, L_HALF)
        if c.m_pb == -1:
            put(c.g_pa2 - 2, [valu("v_lshlrev_b32", vP2, 7, vTHR), valu("v_sub_u32", vP2, vPOLL, vP2)])
            self.pa2 = (vP2, rWS, 1, L_O)
        if not c.one_pa: put(c.g_pa2, self.poll_issue(self.pa2[0], rWS, self.pa2[3]))
        if c.pa2_epi < 0 and not c.one_pa: put(319, self.poll_check(*self.pa2))
        spread([valu("v_mov_b32", T[0], f32(-LOG2E)), valu("v_mov_b32", T[1], f32(-LOG2E)), valu("v_mov_b32", T[2], "1.0"), valu("v_mov_b32", T[3], "1.0")], 312, 320)
        inv_bar = {v: n for n, v in bar_gap.items() if 1 <= n <= 19}
        for k in range(NM):
            acc, step, n, off, which, us = F[k]
            if k % c.wstep == 0: add(wait(lg=[f"f{i}" for i in range(k, k + c.wstep)]))
            rd = self.frag_reads(k + c.LA, F[k + c.LA]) if k + c.LA < NM else []
            fill = gaps[k]
            tot, u, n1 = sum(cyc(i) for i in fill), 0, 0
            while n1 < len(fill) and (u + cyc(fill[n1]) / 2 <= tot / 2 or fill[n1].kind == "branch"): u += cyc(fill[n1]); n1 += 1
            if 2 * u > tot + 4: r1 = 0 if len(rd) <= 2 else len(rd) - 1
            elif 2 * u < tot - 4: r1 = len(rd)
            else: r1 = max(0, len(rd) - 1)
            if c.chain:
                th = k & 1
                first = F[k & ~1][1] == 0
                mm = [mfma(16, acc[th], WF.sub(4 * (kk % c.NB), 4), X.sub(4 * (F[kk][1] + th), 4), 0 if (first and kk == k) else acc[th]) for kk in (k, k ^ 1)]
            else: mm = [mfma(16, acc[th], WF.sub(4 * (k % c.NB), 4), X.sub(4 * (step + th), 4), 0 if step == 0 else acc[th]) for th in range(2)]
            add(mm[0], self.jit(0.08))
            if k == 0: add(self.stamp(67))
            add(rd[:r1], fill[:n1])
            add(mm[1], rd[r1:], fill[n1:], tail[k])
            if k in inv_bar:
                n = inv_bar[k]
                assert not (skip(n) and self.bar_extra[n])
                if n == 19 or need[n] > need[n - 1]: add(wait(vm=[f"w{need[n]}"] + (["ts"] if n == c.f2_bar else []), lg=self.bar_extra[n] or None), barrier())
            if k in (127, 191): add(self.stamp())
            if k in (31, 63): add(self.stamp(64))
            if k % 32 == 31 and 31 < k < 319: add(self.stamp(2))
            if k in c.sg: add(self.stamp(32))
        add(self.stamp(131))
        self.load = load
    def plan_op(self, op, n):
        if op == "l":
            assert n >= self.cfg.pw_per
            return self.w2_load()
        if op == "h":
            assert n >= self.cfg.pa_per and self.h_n < 4
            return self.h_load()
        if op == "P": return self.poll_issue(vPOLLH, rWS)
        if op == "H":
            self.halo_period = n
            i = salu("s_mov_b32", "m0", sHM0); i.tag = "halo"
            return self.poll_check(vPOLLH, rWS, sTHR) + [i] + [buf_dma(vHLD, rWS, 0, 1024 * q, flags="sc1", tag="halo") for q in range(2)]
        slot = int(op[1:])
        if slot < self.cfg.NS: assert n - (1 if self.skip(n) else 0) >= 2 + max(x for x in range(20) if slab_slot(x) == slot)
        if self.B and slot >= 7: assert n >= 19
        assert n >= self.cfg.pw_per
        return self.w2_dma(slot)

    def att_setup(self):
        t0, t1 = T[0], T[1]
        o = [valu("v_and_b32", t0, 15, vLane), valu("v_mul_u32_u24", t0, RP, t0), valu("v_and_b32", t1, 48, vLane), valu("v_lshlrev_b32", t1, 1, t1),
             salu("s_mul_i32", sT[0], sW, 32 * RP), salu("s_add_u32", sT[0], sT[0], SCR), valu("v_add3_u32", vSCR, sT[0], t0, t1),
             valu("v_and_b32", t0, 3, vLane), valu("v_bfe_u32", vVTR, vLane, 2, 2), valu("v_lshl_add_u32", t0, t0, 2, vVTR),
             valu("v_mul_u32_u24", t0, RP, t0), valu("v_add3_u32", vVTR, sT[0], t0, t1),
             salu("s_mov_b32", sT[0], SCR + 128 * RP + 128), valu("v_lshl_add_u32", vHRB, vLane, 4, sT[0])]
        o += [salu("s_lshl_b32", sT[1], sRB, 3), salu("s_lshl_b32", sT[2], sGQ, 1), salu("s_add_u32", sT[1], sT[1], sT[2]), salu("s_add_u32", sT[1], sT[1], sJ),
              salu("s_lshl_b32", sC1, sT[1], 11), salu("s_add_u32", sC1, sC1, HALO_OFF),
              salu("s_cmp_eq_u32", None, sW, 3), salu("s_cselect_b32", sT[1], sC1, OOB), salu("s_cselect_b32", sH3, 0, OOB), valu("v_lshl_add_u32", vHALO, vLane, 4, sT[1]),
              salu("s_and_b32", sT[1], sRB, 7), salu("s_or_b32", sT[2], sT[1], sW), salu("s_cselect_b32", sM1[0], 0, "0xf000f"), salu("s_cselect_b32", sM2[0], 0, "0xff00ff"),
              salu("s_mov_b32", sM1[1], sM1[0]), salu("s_mov_b32", sM2[1], sM2[0]), salu("s_mov_b32", sHM0, SPARE),
              salu("s_cmp_eq_u32", None, sW, 0), salu("s_cselect_b32", sHM0, SCR + 128, sHM0), salu("s_cselect_b32", sT[1], sT[1], 0),
              salu("s_cmp_lg_u32", None, sT[1], 0), salu("s_cselect_b32", sTHR, 1, 0),
              salu("s_sub_u32", sT[2], sC1, 8 * 2048), salu("s_cmp_lg_u32", None, sTHR, 0), salu("s_cselect_b32", sT[2], sT[2], OOB),
              valu("v_lshl_add_u32", vHLD, vLane, 4, sT[2])]
        if self.cfg.kv_mode == 4:
            for q, dst in enumerate((vHLD, vHLD2)):
                o += [valu("v_add_u32", t0, 8 + 64 * q, vLane), valu("v_mul_u32_u24", t1, 241, t0), valu("v_lshrrev_b32", t1, 12, t1), valu("v_mul_u32_u24", dst, 17, t1),
                      valu("v_sub_u32", t0, t0, dst), valu("v_min_u32", t0, 15, t0), valu("v_lshlrev_b32", t1, 4, t1), valu("v_lshl_add_u32", t0, t0, 7, t1),
                      valu("v_add_u32", dst, sT[2], t0)]
                if q: o += [valu("v_subrev_u32", dst, 1024, dst)]
            o += [salu("s_sub_u32", sT[1], sC1, 24 * 16), salu("s_cmp_eq_u32", None, sW, 3), salu("s_cselect_b32", sT[1], sT[1], OOB),
                  valu("v_and_b32", t0, 31, vLane), valu("v_lshrrev_b32", t1, 5, vLane), valu("v_lshlrev_b32", t1, 8, t1), valu("v_lshl_add_u32", t1, t0, 4, t1),
                  valu("v_add_u32", t1, sT[1], t1), valu("v_cmp_lt_u32", "vcc", 23, t0), valu("v_mov_b32", t0, OOB), valu("v_cndmask_b32", vHALO, t0, t1, "vcc")]
        o += [
              salu("s_lshl_b32", sT[1], sRB, 3), salu("s_add_u32", sT[1], sT[1], sGQ), salu("s_lshl_b32", sT[1], sT[1], 10), salu("s_lshl_b32", sT[2], sJ, 3),
              salu("s_add_u32", sT[1], sT[1], sT[2]), salu("s_add_u32", sT[1], sT[1], FLAG_OFF - 4096 + 4), salu("s_cmp_lg_u32", None, sTHR, 0),
              salu("s_cselect_b32", sT[1], sT[1], OOB), valu("v_mov_b32", vPOLLH, sT[1]), salu("s_mov_b32", sCS, f32(0.25 * LOG2E))]
        o += [valu("v_and_b32", t0, 3, vLane), valu("v_mov_b32", t1, "0xffff"),
              valu("v_cmp_le_u32", sJ1, 1, t0), valu("v_cmp_le_u32", sJ2, 2, t0), valu("v_cmp_le_u32", sJ3, 3, t0),
              valu("v_cndmask_b32", vA01, t1, -1, sJ1), valu("v_cndmask_b32", vA23, 0, t1, sJ2), valu("v_cndmask_b32", vA23, vA23, -1, sJ3)]
        return o
    def attention(self, put, spread, bar_gap, load):
        c = self.cfg
        def pack(dst, a):
            o = [valu("v_cvt_pk_bf16_f32", dst[i], a[2 * i], a[2 * i + 1]) for i in range(8)]
            return o + [valu("v_permlane16_swap_b32", dst[i], dst[4 + i], rmw=True, wr2=dst[4 + i]) for i in range(4)]
        cv, wr = [], []
        for blk in range(4):
            a = ACC1.sub(16 * blk, 16)
            cv += pack(a, a)
            wr += [ds_write("ds_write_b128", vSCR, a.sub(4 * dh, 4), (blk & 1) * 128 + dh * 16 + (8 + 16 * (blk >> 1)) * RP, tag="kv") for dh in range(2)]
        hs = ACC1.sub(40, 8)
        assert c.kv_mode in (3, 5, 6)
        if c.kv_mode == 3:
            spread(cv, 129, c.kv_end - 3)
            put(c.kv_end - 3, wr)
        else:
            if c.kv_mode == 5:
                spread(cv[24:], 130, c.kv_end - 3)
                put(c.kv_end - 3, wr[4:])
            else: spread(cv[24:36] + wr[4:6] + cv[36:] + wr[6:], 130, c.kv_end - 2)
            spread(cv[:24], c.kv_end + 5, c.kv_end + 15)
            for n, x in enumerate(wr[:4]):
                k1 = c.kv_end + 15 + (180 - c.kv_end - 15) * n // 4
                while load[k1] > 0 and k1 < 181: k1 += 1
                put(k1, [x], last=True)
        put(c.kv_end - 1, [ds_read("ds_read_b128", hs.sub(4 * i, 4), vHRB, 1024 * i) for i in range(2)])
        if c.kv_mode != 4:
            put(c.kv_end + 2, [buf_store("buffer_store_dwordx4", hs.sub(0, 4), vHALO, rWS, 0, 0, flags="sc1", tag="st1")])
            put(c.kv_end + 4, [buf_store("buffer_store_dwordx4", hs.sub(4, 4), vHALO, rWS, 0, 1024, flags="sc1", tag="st1")])
            self.bar_extra[12] = ["kv"]
        assert c.kv_end + 4 < min(176, c.g_flag1)
        fl = self.flag(L_HALO, "st1")
        if c.halo3: fl[-1] = buf_store("buffer_store_dword", vFV, vFH, rWS, 0, L_HALO, flags="sc1")
        put(c.g_flag1, fl)
        Q = ACC2.sub(0, 16); O = ACC2.sub(16, 16)
        Sg = [SG.sub(0, 4), SG.sub(4, 4), SG.sub(8, 4)]
        P = [T.sub(0, 2), T.sub(2, 2), T.sub(4, 2)]
        tm, tz, big = SG[12], SG[13], SG[14]
        spread(pack(Q.sub(0, 8), ACC2.sub(0, 16)) + pack(Q.sub(8, 8), ACC2.sub(16, 16)) + [valu("v_mov_b32", big, f32(-1e30))], 194, min(215, c.g_halo + 4))
        k = c.g_halo
        cs = 0.25 * LOG2E
        for cb in ((1, 0) if c.th1 else (0, 1)):
            if cb == 0:
                assert k > bar_gap[self.halo_period + 1]
                put(k, [wait(vm="halo")])
            spread([ds_read("ds_read_b128", KA.sub(8 * g + 4 * dh, 4), vSCR, dh * 16 + (16 * cb + (2 - g) * 4) * RP) for g in range(3) for dh in range(2)], k, k + 4)
            k += 5
            for dq in range(4):
                put(k + dq // 2, [mfma(4, Sg[g], KA.sub(8 * g + 2 * dq, 2), Q.sub(8 * cb + 2 * dq, 2), Sg[g] if dq else 0) for g in range(3)], last=True)
            k += 2
            vr = [ds_read("ds_read_b64_tr_b16", KA.sub(8 * g + 2 * m, 2), vVTR, 128 + (0, 2, 1, 3)[m] * 8 + (16 * cb + (2 - g) * 4) * RP, tag="vr") for g in range(3) for m in range(4)]
            s = [Sg[0][i] for i in range(4)] + [Sg[1][i] for i in range(4)]
            o = vr[:4]
            if cb == 0:
                o += [valu("v_cndmask_b32", Sg[2][r], Sg[2][r], big, sM2) for r in (1, 2, 3)]
                o += [valu("v_cndmask_b32", Sg[1][r], Sg[1][r], big, sM1) for r in range(4)]
            o += [valu("v_cndmask_b32", Sg[0][r], Sg[2][r], Sg[0][r], (None, sJ1, sJ2, sJ3)[r]) for r in (1, 2, 3)]
            o += [valu("v_max3_f32", tm, s[0], s[1], s[2]), valu("v_max3_f32", tz, s[3], s[4], s[5]), valu("v_max3_f32", tm, tm, s[6], s[7]), valu("v_max_f32", tm, tm, tz),
                  valu("v_mul_f32", tm, f32(-cs), tm)]
            o += vr[4:8]
            o += [valu("v_fma_f32", s[i], s[i], sCS, tm) for i in range(8)]
            o += [valu("v_exp_f32", s[i], s[i]) for i in range(8)]
            u = [Sg[2][i] for i in range(4)]
            o += [valu("v_add_f32", u[i], s[2 * i], s[2 * i + 1]) for i in range(4)]
            o += [valu("v_add_f32", u[0], u[0], u[1]), valu("v_add_f32", u[2], u[2], u[3]), valu("v_add_f32", u[0], u[0], u[2]), valu("v_rcp_f32", tz, u[0])]
            o += vr[8:]
            o += [valu("v_mul_f32", s[i], s[i], tz) for i in range(8)]
            o += [valu("v_cvt_pk_bf16_f32", u[0], s[0], s[1]), valu("v_cvt_pk_bf16_f32", u[1], s[2], s[3]),
                  valu("v_cvt_pk_bf16_f32", P[1][0], s[4], s[5]), valu("v_cvt_pk_bf16_f32", P[1][1], s[6], s[7]),
                  valu("v_and_b32", P[0][0], u[0], vA01), valu("v_and_b32", P[0][1], u[1], vA23),
                  valu("v_bfi_b32", P[2][0], vA01, 0, u[0]), valu("v_bfi_b32", P[2][1], vA23, 0, u[1])]
            if c.px & 1: o = [x for x in o if x.kind == "dsr"] + o[-8:]
            spread(o, k, k + c.att_w)
            k += c.att_w
            for g in range(3):
                put(k + g // 2, [mfma(4, O.sub(4 * m, 4), KA.sub(8 * g + 2 * m, 2), P[g], O.sub(4 * m, 4) if g else 0) for m in range(4)], last=True)
            k += 2
            o = []
            for dh in range(2):
                o += [valu("v_cvt_pk_bf16_f32", O[4 * dh + i], O[8 * dh + 2 * i], O[8 * dh + 2 * i + 1]) for i in range(4)]
                o += [buf_store("buffer_store_dwordx4", O.sub(4 * dh, 4), vHST, rWS, sHu[1], cb * 256 + dh * 1024, flags=c.hflags, tag="st2")]
            spread(o, k + 1, k + 7)
        assert k <= bar_gap[19], k
        assert k == c.g_halo + 2 * (9 + c.att_w)
        self.att_end = k
        if not c.splf and c.f2_epi < 0: put(min(k + c.f2_lag, 317), self.flag(L_O, "st2"))

    GORD = ([("d", 0, 1, t) for t in range(4)] + [("d", 12, 1, 4 + t) for t in range(2)] + [("o", 0, 1, t) for t in range(4)]
            + [("d", 8, 1, t) for t in range(4)] + [("d", 4, 1, t) for t in range(4)])
    def w2_setup(self):
        return [salu("s_mov_b32", sNL, f32(-LOG2E)), salu("s_mul_i32", sHd, sW, 28 * 1024), salu("s_lshl_b32", sHo, sW, 13), salu("s_add_u32", sHo, sHo, 112 * 1024),
                salu("s_lshl_b32", sWd, sHd, 1), salu("s_lshl_b32", sWo, sHo, 1)]
    def h_load(self):
        gi = self.h_n; self.h_n += 1
        kind, g0, st, t = self.GORD[gi]
        o = [salu("s_add_u32", sT[0], sHd if kind == "d" else sHo, (g0 + (t & 3)) * 2048)]
        dst = self.hreg[gi] = self.pool.pop(0)
        for s in range(1 if self.cfg.dbg & 256 else 2):
            for tb in range(2):
                o += [buf_load("buffer_load_dwordx4", dst.sub(8 * s + 4 * tb, 4), vW[0] if self.cfg.dbg & 2 else vH[tb], rWS, 0 if self.cfg.dbg & 2 else sT[0], s * 1024, flags="sc1", tag=f"h{gi}")]
        return o
    def w2_addr(self):
        gi = self.w2_nd; self.w2_nd += 1
        kind, g, st, t = self.GORD[gi]
        return gi, [salu("s_add_u32", sWS, sWd if kind == "d" else sWo, (g + (t & 3)) * 4096)]
    def w2_load(self):
        gi, o = self.w2_addr()
        dst = self.wreg[gi] = self.pool.pop(0)
        return o + [buf_load("buffer_load_dwordx4", dst.sub(4 * i, 4), vW[i & 1], rWS, 0 if self.cfg.dbg & 4 else sWS, i * 1024, flags="sc1", tag=f"g{gi}") for i in range(2 if self.cfg.dbg & 128 else 4)]
    def w2_dma(self, slot):
        gi, o = self.w2_addr()
        assert slot not in self.w2slot.values()
        self.w2slot[gi] = slot
        return [set_m0(sWQ, slot * SLOT, f"g{gi}")] + o + [buf_dma(vW[i & 1], rWS, sWS, i * 1024, flags="sc1", tag=f"g{gi}") for i in range(4)]
    def w2_read(self):
        gi = min(self.w2slot)
        base = self.w2slot.pop(gi) * SLOT
        dst = self.wreg[gi] = self.pool.pop(0)
        o, imm = self.window(self.win2, 0, vWB, base, 4096)
        for i in o: i.tag = f"r{gi}"
        return [wait(vm=f"g{gi}")] + o + [ds_read("ds_read_b128", dst.sub(4 * i, 4), vWB, imm + i * 1024, tag=f"r{gi}") for i in range(4)]
    def phase2(self):
        c, add = self.cfg, self.add
        accF = [ACC2.sub(0, 16), A(80, 16), A(96, 16), A(112, 16)]
        accS = [ACC2.sub(16, 16)]
        PR = [None, ACC1.sub(0, 16), ACC1.sub(16, 16), ACC1.sub(32, 16)]
        xf = ACC1.sub(48, 16)
        red = [vSCR, vVTR, vTR0, vTR1, vDMA2, vHST]
        pool, hreg, wreg, h_load = self.pool, self.hreg, self.wreg, self.h_load
        pool += [A(128, 16), A(144, 16), A(160, 16)] + [A(16 * i, 16) for i in range(self.xf_n, 5)]
        light = []
        heavy = []
        pend = lambda q, tag: any(i.tag == tag for i in q)
        e = ([] if c.nspl else self.ffn_epi(ACC1.sub(0, 16), ACC1.sub(16, 16), 2, 0, "st3", pk=True)) + self.ffn_epi(ACC1.sub(32, 16), ACC1.sub(48, 16), 2, 256, "st4", pk=True)
        if c.px & 16: e = [x for x in e if x.kind == "vms" or x.op == "v_cvt_pk_bf16_f32"]
        if c.eov:
            e2 = self.ffn_epi(ACC1.sub(0, 16), ACC1.sub(16, 16), 2, 0, "st3") + self.ffn_epi(ACC1.sub(32, 16), ACC1.sub(48, 16), 2, 256, "st4")
            def cut(l, nb):
                k = [i for i, x in enumerate(l) if x.op == "v_cvt_pk_bf16_f32"][2 * nb - 1] + 1 if nb else 0
                return k + 1 if k < len(l) and l[k].kind == "vms" else k
            e, light[:] = e[:cut(e, 8 - c.eov)], e2[cut(e2, 8 - c.eov):]
            for i in light:
                if i.kind != "vms": i.tag = "ra"
        assert 9 not in self.w2slot.values()
        assert all(x < min(18, 20 - c.nspl) for x in range(20) if 6 <= slab_slot(x) <= 8)
        seq = []
        for gi in range(18):
            bl = (1, 2, 3) if gi >= 18 - c.defer else (0, 1, 2, 3)
            if c.snake and gi < 17: bl = (1, 3, 2) if len(bl) == 3 else (0, 1, 3, 2)
            seq += [(gi, s, b) for b in bl for s in range(2)] if gi == 17 else [(gi, s, b) for s in range(2) for b in bl]
        seq += [(gi, s, 0) for gi in range(18 - c.defer, 18) for s in range(2)]
        if c.tbs:
            g1 = 18 - c.tbs
            assert c.defer <= c.tbs
            seq = [(gi, s, b) for gi in range(g1) for s in range(2) for b in range(4)]
            seq += [(gi, s, b) for gi in range(g1, 18) for s in range(2) for b in (2, 3)]
            seq += [(gi, s, b) for gi in range(g1, 18) for s in range(2) for b in ((1,) if gi >= 18 - c.defer else (1, 0))]
            seq += [(gi, s, 0) for gi in range(18 - c.defer, 18) for s in range(2)]
        last = {gi: max(m for m, x in enumerate(seq) if x[0] == gi) for gi in range(18)}
        first = {gi: min(m for m, x in enumerate(seq) if x[0] == gi) for gi in range(18)}
        lastb = {b: max(m for m, x in enumerate(seq) if x[2] == b) for b in range(4)}
        g6 = 10 if c.m_pb == -1 else 6
        st = {"q": [], "gate": g6 if c.pa2_epi < 0 else 4, "x": False, "m": -1, "sw": False}
        def refill():
            okw = self.w2_nd < 18 and len(pool) > (1 if self.w2_nd <= self.h_n else c.keep)
            okh = self.h_n < (max(st["gate"], c.nogate) if st["gate"] else 0) and len(pool) > 1
            if okh and c.tbs and self.h_n == 18 - c.tbs:
                assert self.w2_nd == 18 and st["x"] and len(pool) >= c.tbs + len(self.w2slot), len(pool)
                ls = [h_load() for _ in range(c.tbs)]
                for tb in (1, 0):
                    for l in ls: st["q"] += [l[0], l[1 + tb], l[3 + tb]]
            elif okh and not (okw and self.w2_nd <= self.h_n + c.wlead): st["q"] += h_load()
            elif okw: st["q"] += self.w2_load()
            elif not st["x"] and st["m"] >= 0 and not pend(light, "ra"):
                st["x"] = True
                st["q"] += [set_m0(sWQ, 9 * SLOT, "xs"), salu("s_mov_b32", sT[1], 16384 - 1024),
                            buf_dma(red[4], rX, 0, 0, tag="xs"), buf_dma(red[4], rX, sT[1], 1024, tag="xs")]
        def pump():
            if not st["q"]: refill()
            while st["q"]:
                x = st["q"].pop(0); add(x)
                if x.kind in ("dma", "vml"): return True
            return False
        step = max(1, len(e) * 3 // 4 // max(1, c.epi_mem))
        k = 0
        for n, i in enumerate(e):
            if self.B and not c.splf and n == c.f2_epi: add(self.flag(L_O, "st2"))
            if n == c.pa2_epi: add(self.poll_check(*self.pa2)); st["gate"] = g6
            if n % step == 0 and k < c.epi_mem: pump(); k += 1
            add(i)
        add(self.stamp(129))
        started = set()
        ra = [salu("s_add_u32", sT[2], sWQ, 6 * SLOT), valu("v_lshl_add_u32", red[0], vLane, 4, sT[2])] + [valu("v_xor_b32", red[b], b * 4096, red[0]) for b in (1, 2, 3)]
        ra += [salu("s_and_b32", sT[2], sP2x, 64), salu("s_mul_i32", sT[3], sT[2], 511), salu("s_add_u32", sT[3], sT[3], sP2x),
               valu("v_lshrrev_b32", red[4], 3, vLane), valu("v_and_b32", red[5], 7, vLane), valu("v_lshlrev_b32", red[5], 4, red[5]),
               valu("v_lshl_add_u32", red[4], red[4], 11, red[5]), valu("v_add_u32", red[4], sT[3], red[4]),
               salu("s_lshr_b32", sT[3], sW, 1), salu("s_lshl_b32", sT[3], sT[3], 13), salu("s_add_u32", sT[3], sT[3], sT[2]), salu("s_add_u32", sT[3], sT[3], 9 * SLOT),
               valu("v_and_b32", red[5], 16, vLane), valu("v_lshlrev_b32", red[5], 1, red[5]), valu("v_and_or_b32", red[5], vLane, 15, red[5]), valu("v_lshlrev_b32", red[5], 7, red[5]),
               valu("v_and_or_b32", red[5], vLane, 32, red[5]), valu("v_add_u32", red[5], sT[3], red[5])]
        vOW, vOR = [vA01, vA23], vPOLLH
        if c.otr:
            ra += [valu("v_and_b32", vOR, 7, vLane), valu("v_lshlrev_b32", vOR, 4, vOR), valu("v_xor_b32", vOW[0], vOR, red[5]), valu("v_xor_b32", vOW[1], 16, vOW[0]),
                   valu("v_lshrrev_b32", vOR, 3, vLane), valu("v_xor_b32", vOR, vOR, vLane), salu("s_add_u32", sT[3], sWQ, 9 * SLOT), valu("v_lshl_add_u32", vOR, vOR, 4, sT[3])]
        for i in ra: i.tag = "ra"
        light += ra
        used = set()
        for m, (gi, s, b) in enumerate(seq):
            st["m"] = m
            kind = self.GORD[gi][0]
            if gi in self.w2slot or pend(light, f"r{gi}"):
                add(light); light.clear()
                while gi in self.w2slot: add(self.w2_read())
            while gi >= self.w2_nd or pend(st["q"], f"g{gi}"): assert pump(), (m, gi)
            while gi >= self.h_n or any(i.wr & set(hreg[gi].sub(8 * s + 4 * (b >> 1), 4).regs()) for i in st["q"]) or (not c.tbs and pend(st["q"], f"h{gi}")): assert pump(), (m, gi)
            a = (accF if kind == "d" else accS)[b]
            if c.gwait == 1: add(wait_regs(hreg[gi].sub(8 * s, 8), wreg[gi].sub(8 * s, 8)))
            if c.gwait == 2: add(wait_regs(hreg[gi], wreg[gi]))
            if c.m16 & 2:
                for q in range(2):
                    aq = a.sub(8 * s + 4 * q, 4)
                    if q and light and cyc(light[0]) <= 4 and light[0].kind == "valu":
                        add(light.pop(0))
                        if light and cyc(light[0]) <= 4 and light[0].kind == "valu": add(light.pop(0))
                    add(mfma(16, aq, wreg[gi].sub(8 * q + 4 * (b & 1), 4), hreg[gi].sub(8 * s + 4 * (b >> 1), 4), aq if (kind, b, s) in started else 0))
                started.add((kind, b, s))
            else: add(mfma(32, a, wreg[gi].sub(8 * s + 4 * (b & 1), 4), hreg[gi].sub(8 * s + 4 * (b >> 1), 4), a if (kind, b) in started else 0))
            started.add((kind, b))
            add(self.jit(0.1))
            if m == last[gi]:
                pool += [hreg[gi], wreg[gi]]
                if gi + (2 if c.ofirst else 0) in (3, 4, 5): accS.append(pool.pop())
                if gi in c.sp: add(self.stamp(128))
            busy = False
            if m == c.m_f4: add(self.flag(L_L0 if (c.m_pe > 0 and not self.B) else L_END, "st4"), self.stamp()); busy = True
            lb, lc = (L_L0 if c.splf else L_O), (L_L0 if c.m_pe > 0 else L_END)
            for mm, ln in ((c.m_pb, lb), (c.m_pc, lc), (c.m_pe, L_END)):
                if m == mm - c.m_pd: add(self.poll_issue(vPOLL, rWS, ln)); busy = True
            if m in (c.m_pb - 1, c.m_pe - 1) or (m == c.m_pc - 1 and c.m_pb > 0 and c.m_pe > 0): add(valu("v_xor_b32", vTHR, 1, vTHR))
            if m == c.m_pe: add(self.poll_check(vPOLL, rWS, vTHR, L_END)); st["gate"] = 18
            if m == c.m_pb: add(self.poll_check(vPOLL, rWS, vTHR, lb)); st["gate"] = 10
            if m == c.m_pc: add(self.poll_check(vPOLL, rWS, vTHR if c.m_pe > 0 else 1, lc), self.stamp()); st["gate"] = 14 if c.m_pe > 0 else 18; self.pre += (self.w2_nd, self.h_n)
            used.add((gi, s, b >> 1))
            ahead = 4 * self.h_n - sum(1 for i in st["q"] if i.kind == "vml") - len(used)
            if ((m % c.vstep < c.vnum if m < c.m_v1 else m % 2 == 0) or ahead < c.ahead) and not busy: busy = pump()
            if not light and self.w2slot and pool and m >= first[min(self.w2slot)] - c.rlead: light += self.w2_read()
            if m == last[7 if c.ofirst else 9] + 2:
                add(light); light.clear()
                while any(6 <= s_ <= 8 for s_ in self.w2slot.values()): add(self.w2_read())
                st["sw"] = True
                heavy += [wait(lg=[f"r{g}" for g in range(18)])]
                heavy += [ds_write("ds_write_b128", red[0], accS[b2].sub(4 * q, 4), (b2 - 1) * SLOT + q * 1024, tag="sw") for b2 in (1, 2, 3) for q in range(0 if c.dbg & 16384 else 4)]
            if m == c.m_sb:
                while not st["x"] or pend(st["q"], "xs"):
                    g18, nd = st["gate"], self.w2_nd; st["gate"] = 0; self.w2_nd = 18; assert pump(); st["gate"], self.w2_nd = g18, nd
                add(heavy); heavy = []
                add(wait(vm="xs", lg="sw"), barrier()); busy = True
                light += [ds_read("ds_read_b128", xf.sub(8 * i + 4, 4), red[5], 16 * i) for i in range(2)]
                light += [ds_read("ds_read_b128", PR[b2].sub(4 * q, 4), red[b2], (b2 - 1) * SLOT + q * 1024) for b2 in (1, 2, 3) for q in range(4)]
                for b2 in range(4):
                    i = valu("v_subrev_u32", red[b2], 6 * SLOT, red[b2]); i.tag = "ra"; light.append(i)
                for h in range(2):
                    for i in range(4):
                        src = xf[8 * h + 4 + i]
                        pr = [valu("v_lshlrev_b32", xf[8 * h + 2 * i], 16, src), valu("v_and_b32", xf[8 * h + 2 * i + 1], "0xffff0000", src)]
                        light += pr
                light += [valu("v_add_f32", accS[0][i], accS[0][i], PR[1][i]) for i in range(16)] + [valu("v_add_f32", PR[2][i], PR[2][i], PR[3][i]) for i in range(16)]
                light += [valu("v_add_f32", accS[0][i], accS[0][i], PR[2][i]) for i in range(16)]
            for b2 in (1, 2, 3):
                if m == lastb[b2] + 2:
                    assert m > c.m_sb
                    while pend(light, "ra"): add(light.pop(0))
                    heavy += [ds_write("ds_write_b128", red[0], accF[b2].sub(4 * q, 4), (b2 - 1) * SLOT + q * 1024) for q in range(0 if c.dbg & 32768 else 4)]
            if c.fbar and not st.get("fb") and m > max(lastb[1], lastb[2], lastb[3]) + 2 and not heavy:
                st["fb"] = True
                add(light); light.clear()
                add(wait(lg="all"), barrier(), self.jit())
                light += [ds_read("ds_read_b128", PR[b2].sub(4 * q, 4), red[b2], (b2 - 1) * SLOT + q * 1024) for q in range(4) for b2 in (1, 2, 3)]
                if c.fbar == 2:
                    light += [valu("v_add_f32", PR[2][i], PR[2][i], PR[3][i]) for i in range(16)] + [valu("v_add_f32", PR[2][i], PR[2][i], PR[1][i]) for i in range(16)]
            budget = 11 if busy else 24
            if st.get("fb"): budget = 36
            if any(i.kind == "vms" for i in light):
                assert m < c.m_f4
                budget = c.ebud - (14 if busy else 0)
                if light[0].kind == "vms": add(light.pop(0)); budget = 0
            if heavy and not busy and (m % c.hstep == 0 or m > lastb[1] or m < c.m_sb):
                while heavy:
                    x = heavy.pop(0); add(x)
                    if x.kind == "dsw": break
                budget = 0
            while light and cyc(light[0]) <= budget:
                budget -= cyc(light[0]); add(light.pop(0))
        assert self.h_n == 18 and self.w2_nd == 18 and not self.w2slot and not st["q"] and st["x"]
        add(self.stamp())
        add(heavy, light)
        if not st.get("fb"):
            add(wait(lg="all"), barrier(), self.jit())
            for q in range(4):
                for b in (1, 2, 3): add(ds_read("ds_read_b128", PR[b].sub(4 * q, 4), red[b], (b - 1) * SLOT + q * 1024))
        Fp, Sp, t = accF[0], accS[0], PR[1]
        if c.dbg & 32: add(valu("v_mov_b32", vXO, OOB))
        if c.dbg & 64: add(salu("s_lshl2_add_u32", sT[1], sWG, sW), salu("s_lshl_b32", sT[1], sT[1], 11), valu("v_lshl_add_u32", vXO, vLane, 4, sT[1]))
        for hq in range(2):
            r2 = range(8 * hq, 8 * hq + 8, 2); r1 = range(8 * hq, 8 * hq + 8)
            if not (c.fbar == 2 and st.get("fb")):
                add([valu("v_pk_add_f32", PR[2].sub(i, 2), PR[2].sub(i, 2), PR[3].sub(i, 2)) for i in r2])
                add([valu("v_pk_add_f32", Fp.sub(i, 2), Fp.sub(i, 2), PR[1].sub(i, 2)) for i in r2])
            add([valu("v_pk_add_f32", Fp.sub(i, 2), Fp.sub(i, 2), PR[2].sub(i, 2)) for i in r2])
            add([valu("v_pk_mul_f32", t.sub(i, 2), Fp.sub(i, 2), T.sub(0, 2)) for i in r2])
            if c.px & 32: r1 = []
            add([valu("v_exp_f32", t[i], t[i]) for i in r1])
            add([valu("v_pk_mul_f32", Sp.sub(i, 2), Sp.sub(i, 2), Fp.sub(i, 2)) for i in r2])
            add([valu("v_pk_add_f32", t.sub(i, 2), t.sub(i, 2), T.sub(2, 2)) for i in r2])
            add([valu("v_rcp_f32", t[i], t[i]) for i in r1])
            add([valu("v_pk_fma_f32", xf.sub(i, 2), Sp.sub(i, 2), t.sub(i, 2), xf.sub(i, 2)) for i in r2])
            add([valu("v_cvt_pk_bf16_f32", t[8 * hq + i], xf[8 * hq + 2 * i], xf[8 * hq + 2 * i + 1]) for i in range(4)])
            if c.otr: add(self.jit(), ds_write("ds_write_b128", vOW[hq], t.sub(8 * hq, 4)))
            else: add(buf_store("buffer_store_dwordx4", t.sub(8 * hq, 4), vXO, rOUT, 0, (1024 if c.dbg & 64 else 16) * hq, flags=c.outflags))
        if c.otr:
            add(salu("s_movk_i32", sT[1], 16384), wait(lg="all"), barrier(), [ds_read("ds_read_b128", xf.sub(4 * i, 4), vOR, 1024 * i) for i in range(2)])
            add([buf_store("buffer_store_dwordx4", xf.sub(4 * i, 4), red[4], rOUT, sT[1] if i else 0, flags=c.outflags) for i in range(2)])

    def finish(self):
        add = self.add
        if self.cfg.stamps:
            add(raw(f"{self.cfg.clock} s[14:15]", "smem"))
            add(wait(vm="all"))
            add(raw(f"{self.cfg.clock} s[16:17]\n    s_waitcnt lgkmcnt(0)", "smem"))
            add(valu("v_mov_b32", V(96), 0))
            for i in range(self.nst): add(raw(f"v_writelane_b32 v96, s{STAMPS[i]}, {1+i}", "valu", wr=["v96"]))
            add(raw(f"v_writelane_b32 v96, s{ST0}, 0", "valu", wr=["v96"]), raw(f"v_writelane_b32 v96, s14, {1+self.nst}", "valu", wr=["v96"]),
                raw(f"v_writelane_b32 v96, s16, {2+self.nst}", "valu", wr=["v96"]))
            add(salu("s_lshl_b32", sT[1], sWG, 2), salu("s_add_u32", sT[1], sT[1], sW), salu("s_lshl_b32", sT[1], sT[1], 6), salu("s_add_u32", sT[1], sT[1], STAMP_OFF),
                valu("v_lshl_add_u32", V(97), vLane, 2, sT[1]), salu("s_mov_b64", "exec", "0xffff"), buf_store("buffer_store_dword", V(96), V(97), rWS))
        add(raw("s_endpgm", "end"))

    def program(self):
        NS[0] = self.cfg.NS
        if self.cfg.ofirst:
            assert self.cfg.m_pb == -1
            G = Gen.GORD
            self.GORD = G[:4] + G[6:10] + G[4:6] + G[10:]
        assert self.cfg.NS <= (7 if self.B else 9)
        self.w2slot, self.slot_used, self.w2pos = {}, {}, {"d": 0, "o": 0}
        self.w2_nd = self.w2_nr = 0
        self.win2 = [0, 0]
        self.xf_n = 0
        self.h_n, self.hreg, self.wreg, self.hpos = 0, {}, {}, {"d": 0, "o": 0}
        self.e.comment('phase 0'); self.ramp(); self.e.comment('phase 1'); self.phase1(); self.e.comment('phase 2')
        self.pre = (self.w2_nd, len(self.w2slot), self.h_n)
        if not self.cfg.p1only: self.phase2()
        self.finish()
        return self.e.text() + self.slow

HEAD = open("recurrent_scan__sliding_local_dilated__swiglu_ffn__prompt.s.ref").read().split("; Override launch")[0]

DOC = """; One persistent launch, one workgroup (4 waves, 512 registers each) per CU; tokens are kept in parity-split order.
;  phase 1: 128 tokens x 320 weight columns per workgroup, weights streamed through an LDS ring (LDS-DMA + transposing reads),
;           B: k,v | q | gate,up with the dilated window attention done on 4x4x4 MFMAs; C: 2.5 gate/up pairs; h and o go to d_ws.
;  phase 2: 64 x 64 output tile per workgroup, K split over the waves, reduced through LDS; out = x + s * silu(ffn).
; Hand-offs: write-through (sc1) stores, counted wait, flag word; flag lines are cleared inside the launch (announced through d_debug).
"""
def build(cfg):
    s = HEAD + "; @launch grid=(256,1,1) block=(256,1,1) lds=163840\n"
    s += DOC
    s += f'.amdgcn_target "amdgcn-amd-amdhsa--gfx950"\n.text\n.globl {KNAME}\n.p2align 8\n.type {KNAME},@function\n{KNAME}:\n'
    s += f"""    s_cmp_ge_u32 s2, 256
    s_cbranch_scc0 L_go
    s_endpgm
L_go:
"""
    if cfg.stamps: s += f"    {cfg.clock} s[{ST0}:{ST0+1}]\n"
    s += f"""    s_load_dwordx2 s[24:25], s[0:1], 0
    s_load_dwordx16 s[4:19], s[0:1], 0
    s_load_dwordx4 s[20:23], s[0:1], 64
    v_lshrrev_b32 v1, 6, v0
    s_getpc_b64 s[28:29]
    v_readfirstlane_b32 {sW}, v1
    s_bfe_u32 s26, s2, 0x30003
    s_lshl_b32 s26, s26, 13
    v_lshrrev_b32 v2, 2, v0
    v_lshl_add_u32 v2, v2, 7, s26
    v_min_u32 v2, L_end-L_go-256, v2
    global_load_dword v3, v2, s[28:29]
    v_and_b32 {vLane}, 63, v0
    v_lshrrev_b32 v96, 3, {vLane}
    v_and_b32 v97, 7, v0
    s_lshl_b32 {sWQ}, {sW}, 12
    s_cmp_ge_u32 s2, 128
    s_cbranch_scc1 L_typeC
"""
    info = {}
    for typ in ("B", "C"):
        g = Gen(typ, cfg)
        g.e.vm.append(("pf", {"v3"}))
        s += f"L_type{typ}:\n" + g.program()
        info[typ] = (g.e.slots, g.e.nops, dict(g.e.count), [sum(max(32, 24 + x) for x in g.load[i:i + 32]) for i in range(0, 320, 32)], g.pre, g.nst + 3)
    s += "L_end:\n"
    s += f""".section .rodata,"a"
.p2align 6
.amdhsa_kernel {KNAME}
  .amdhsa_next_free_vgpr 512
  .amdhsa_next_free_sgpr 102
  .amdhsa_accum_offset 256
  .amdhsa_group_segment_fixed_size 0
  .amdhsa_kernarg_size 80
  .amdhsa_user_sgpr_count 2
  .amdhsa_user_sgpr_kernarg_segment_ptr 1
  .amdhsa_system_sgpr_workgroup_id_x 1
.end_amdhsa_kernel
"""
    return s, info

if __name__ == "__main__":
    cfg = Cfg()
    out = sys.argv[1]
    for a in sys.argv[2:]:
        k, v = a.split("=")
        assert hasattr(cfg, k) or hasattr(cfg, k[:-2]), k
        if k in ("outflags", "hflags", "pflags", "wflags"): v = v.replace("_", " ")
        elif k in ("sg", "sp", "xr", "xr_B", "xr_C"): v = [int(x) for x in v.split(",")]
        elif k not in ("clock", "planB", "planC"): v = int(v)
        setattr(cfg, k, v)
    s, info = build(cfg)
    open(out, "w").write(s)
    for k, v in info.items(): print(k, v)
```

```python
import sys, struct
sys.path.insert(0, "tools")
from emit import *
from asmlib import KNAME

FLAG_OFF, XN_OFF, HALO_OFF, WS_USED = 0x910000, 0x938000, 0xB38000, 0xF00000
WT_OFF, P6_OFF = 0xC01000, 0xE50000
L_HALO, L_P1, L_HALF, L_O, L_L0, L_END = [128 * i for i in range(6)]
FLAGA_OFF = 0x930000
STAMP_OFF = 0xB80000
OOB = 0x40000000
SLOT = 16384
HSTR = 145 * 1024
RP = 272
SCR = 7 * SLOT
SPARE = SCR + 137 * RP
LOG2E = 1.4426950408889634
def f32(x): return "0x%08x" % struct.unpack("<I", struct.pack("<f", x))[0]

class Cfg:
    stamps = 0
    clock = "s_memrealtime"
    sg = ()
    sp = ()
    p1only = 0
    LA = 8
    NB = 10
    spin = 1000000
    cbx = 0
    rot = 0
    sleep = 0
    wdel = -1
    hb = 0
    w_x = 0
    w_y = 0
    cdbg = 2
    w_p_B = 2
    w_p = 1
    cone = 1
    px = 0
    ofirst = 0
    fbar = 0
    hstep = 2
    tbs = 6
    eov = 0
    ebud = 28
    nogate = 0
    jitter = 0
    bq = 1
    th1 = 1
    otr = 1
    chain = 1
    dpos = 1
    w_c0 = 3
    p0 = 1
    rlate = 0
    m16 = 0
    wstep = 4
    sconst = 1
    gwait = 0
    halo3 = 1
    c_delay = 1
    b_lean = 0
    xr = (2, 4, 6, 12)
    splf = 0
    bar2 = 8
    map2 = 0
    one_pa = 0
    q_early = 1
    patom = 8
    f2_lag = 24
    rsel = 1
    tx = 1
    b_rest = None
    tlin = 0
    wo_late = -1
    sig_early = 0
    nodbg = 0
    f2_epi = -1
    pa2_epi = -1
    dbg = 0
    nspl = 0
    e0_end = 312
    f3_at = 30
    setup_early = 0
    w_0 = 0
    w_a = 0
    w_b = 2
    w_c = 4
    nx0 = 8
    xrate = 5
    planB = "6:l,7:l,8:l,9:l,10:l,11:P.l,12:l.H,13:l,14:l,15:l,16:l.l,17:l.d0,18:h.h,19:h.h.l"
    planC = "6:l,7:l,8:l,9:l.w,10:l,11:l,12:l,13:l,14:l,15:l,16:l.l,17:l.l,18:h.h,19:h.h.d7"
    ts_pos = -1
    f2_bar = 2
    pw_lead = 14
    pw_per = 6
    NS = 7
    xfree = 1
    kv_end = 141
    kv_mode = 5
    kw_end = 214
    p6_per = 4
    c_rest = 5
    c_tile = -1
    g_flag1 = 163
    g_halo = 200
    att_w = 24
    g_f1c = 210
    g_pa = 262
    h2_end = 240
    g_f2c = 264
    g_pa2 = 304
    epi_mem = 8
    m_f4 = 24
    m_pe = -99
    pa_per = 18
    m_f3 = -1
    m_pb = 24
    m_pc = 68
    m_pd = 12
    m_sb = 106
    defer = 4
    vstep = 1
    vnum = 1
    m_v1 = 0
    wlead = 1
    rlead = 12
    keep = 4
    ahead = 12
    outflags = "sc1"
    hflags = "sc1"
    pflags = "sc1"
    wflags = ""
    snake = 0

sWG = S(2)
pX, pQKV, pWO, pG, pU, pD, pOUT, pDBG, pWS = S(4, 2), S(6, 2), S(8, 2), S(12, 2), S(14, 2), S(16, 2), S(18, 2), S(20, 2), S(22, 2)
rX, rQKV, rGU, rD, rWO, rOUT, rWS, rDBG = S(24, 4), S(28, 4), S(32, 4), S(36, 4), S(40, 4), S(44, 4), S(48, 4), S(52, 4)
sW, sRB, sGQ, sJ, sTB2, sCB2, sWQ = S(56), S(57), S(58), S(59), S(60), S(61), S(62)
sT = [S(3), S(63), S(64), S(65)]
sM1, sM2 = S(66, 2), S(68, 2)
sHM0, sXS = S(70), S(71)
sJ1, sJ2, sJ3 = S(72, 2), S(74, 2), S(76, 2)
sTHR, sCNT = S(78), S(79)
sU = [S(60), S(61), S(58), S(59)]
sUh = [S(0), S(1)]
sHu = [S(4), S(5), S(6)]
sCS, sC1, sHd, sHo = S(7), S(8), S(9), S(10)
sWd, sWo, sWS, sW0 = S(40), S(41), S(42), S(43)
sOA = [0, S(11), S(12), S(13)]
sOB = [0, S(14), S(15), S(16)]
sNL, sH3 = S(17), S(18)
sP2h, sP2f, sP2x, sHS = S(20), S(21), S(22), S(23)
STAMPS = list(range(82, 102, 2))
ST0 = 80

ACC1, ACC2 = V(0, 64), V(64, 32)
VBUF = [V(96 + 16 * i, 16) for i in range(8)]
KA, SG = V(176, 24), V(200, 16)
T = V(224, 8)
(vF2, vA23, vA01, vP2, vHRB, vWB, vDMA2, vDMA1, vW1, vFV, vPV, vW0, vPOLL, vHALO, vPOLLH, vHLD,
 vFLG, vVTR, vSCR, vHST, vDMA0, vTR1, vTR0, vLane) = [V(232 + i) for i in range(24)]
vW = [vW0, vW1]
vP6 = vA01
vHLD2, vFH = V(222), V(223)
vXN = V(216)
vTCH = [V(217), V(218), V(219), V(220), V(221)]
vH = [vHRB, vHALO]
vXO, vTHR = vDMA1, vDMA0
X = A(0, 128)
WF = A(128, 40)
aDUM = A(168)
ABUF = [A(176 + 16 * i, 16) for i in range(5)]
NS = [5]
def slab_slot(n): return n % NS[0]

def cyc(i):
    k = i.kind
    if k in ("wait", "waitr", "waitcnt", "mfma"): return 0
    if k == "trans": return 8
    if k in ("dma", "vml"): return 14
    if k == "vms": return 30 if i.op.endswith("x4") else 20
    if k == "dsw": return 26
    if k == "dsr": return 11 if i.op.endswith("b128") else 4
    if k == "bar": return 14
    if k == "branch": return 8
    return 4

class Gen:
    def __init__(self, typ, cfg):
        self.typ, self.cfg = typ, cfg
        self.B = typ == "B"
        import copy
        self.cfg = cfg = copy.copy(cfg)
        for k, v in list(vars(cfg).items()) + list(vars(Cfg).items()):
            if k.endswith('_' + typ): setattr(cfg, k[:-2], getattr(cfg, k))
        self.e = Emitter()
        self.nst = 0
        self.nlab = 0
        self.slow = ""
        self.mid = []
        import random
        self.rng, self.njit = random.Random(cfg.jitter * 2 + self.B), 0
        self.TR = [vTR0, vTR1, T[6], T[7]] if self.B else [vTR0, vTR1, vA23, vPOLLH, vVTR, vHLD]
    def add(self, *ins):
        for i in ins: self.e.add(i)
    def stamp(self, mode=1):
        if not (self.cfg.stamps & mode): return self.jit(0.6)
        r = S(STAMPS[self.nst], 2); self.nst += 1
        return [raw(f"{self.cfg.clock} {r}", "smem")]
    def jit(self, p=1.0):
        if not self.cfg.jitter or self.rng.random() > p: return []
        self.njit += 1
        l = f"L_{self.typ}_j{self.njit}"
        if self.rng.random() < 0.7: cond = f"s_cmp_eq_u32 {sW}, {self.rng.randrange(4)}"
        else: cond = f"s_bitcmp1_b32 {sWG}, {self.rng.randrange(7)}"
        return [raw(f"{cond}\n    s_cbranch_scc0 {l}\n    s_sleep {self.rng.choice((2, 8, 20, 60))}\n{l}:", "branch")]
    def touch(self, va, srd, flags=""):
        i = buf_load("buffer_load_dword", aDUM, va, srd, flags=flags)
        i.wr = set()
        return [i]
    def poll_text(self, vaddr, srd, off):
        n = {str(vPOLL): (8, 1), str(vPOLLH): (1, 2), str(vP2): (48, 4), str(vP6): (32, 4), "v105": (2, 8), "v106": (8, 16)}[str(vaddr)]
        if not self.cfg.patom & n[1]: return None
        return (f"v_mov_b32 {vPV}, 15\n    s_bfm_b64 exec, {n[0]}, 0\n    v_mov_b32 {vPV}, 0\n"
                f"    buffer_atomic_add {vPV}, {vaddr}, {srd}, 0 offen offset:{off} sc0 sc1\n    s_mov_b64 exec, -1")
    def poll_issue(self, vaddr, srd, off=0):
        t = self.poll_text(vaddr, srd, off)
        if t:
            i = buf_load("buffer_load_dword", vPV, vaddr, srd, 0, off); i.text = t
            return [i]
        return [buf_load("buffer_load_dword", vPV, vaddr, srd, 0, off, flags=self.cfg.pflags)]
    def poll_check(self, vaddr, srd, thr, off=0):
        self.nlab += 1
        l = f"L_{self.typ}_p{self.nlab}"
        sl = f"    s_sleep {self.cfg.sleep}\n" if self.cfg.sleep else ""
        if self.cfg.stamps & 512:
            sl += f"    s_add_u32 s{STAMPS[self.nlab - 1]}, s{STAMPS[self.nlab - 1]}, 1\n"; self.nst = 8
        self.slow += (f"{l}_slow:\n    s_mov_b32 {sCNT}, 0\n{l}_spin:\n"
                f"{sl}    {self.poll_issue(vaddr, srd, off)[0].text}\n    s_add_u32 {sCNT}, {sCNT}, 1\n    s_waitcnt vmcnt(0)\n"
                f"    v_cmp_gt_u32 vcc, {thr}, {vPV}\n    s_cmp_ge_u32 {sCNT}, {self.cfg.spin}\n    s_cbranch_scc1 {l}_ok\n"
                f"    s_cbranch_vccnz {l}_spin\n    s_branch {l}_ok\n")
        return [valu("v_cmp_gt_u32", "vcc", thr, vPV), raw(f"s_cbranch_vccnz {l}_slow\n{l}_ok:", "branch")]
    def flag(self, stage, tag):
        return [wait(vm=tag), buf_store("buffer_store_dword", vFV, vFLG, rWS, 0, stage, flags="sc1")]

    def ramp(self):
        c, add, B = self.cfg, self.add, self.B
        t0, t1, t2, t3 = V(96), V(97), V(98), V(99)
        vXL, vXS, vRS, vST, vF0, vP0, vDB, vTLB, vSG, vXR, vTL, vTS = [V(100 + i) for i in range(12)]
        vR2, vTB0, vTB1, vPL, vPS = [V(162 + i) for i in range(5)]
        tl, p6 = V(168, 16), V(184, 4)
        xr, lo, z, part = V(112, 16), V(128, 16), V(144, 4), V(148, 8)
        sm, sq, one = V(156), V(157), V(158)
        rb = V(160, 2)
        srd = lambda r, p, n: [salu("s_mov_b32", r[0], p[0]), salu("s_mov_b32", r[1], p[1]), salu("s_mov_b32", r[2], n), salu("s_mov_b32", r[3], "0x20000")]
        gu = [salu("s_cmp_lt_u32", None, sW, 2), salu("s_cselect_b32", rGU[0], pG[0], pU[0]), salu("s_cselect_b32", rGU[1], pG[1], pU[1])]
        sizes = ((rX, pX, 2048 * 1024), (rWS, pWS, WS_USED), (rDBG, pDBG, 256), (rQKV, pQKV, 512 * 3072), (rOUT, pOUT, 2048 * 1024))
        XL = 8 * SLOT
        self.nslab = 0
        if c.stamps & 1024:
            add(raw(f"s_getreg_b32 s{STAMPS[0]}, hwreg(HW_REG_XCC_ID)\n    s_getreg_b32 s{STAMPS[1]}, hwreg(HW_REG_HW_ID)", "salu")); self.nst = 2
        if c.stamps & 512: add([salu("s_mov_b32", S(r), 0) for r in STAMPS])
        add(self.stamp(256))
        TL = (7 if B else 9) * SLOT
        roles = [salu("s_lshr_b32", sT[0], sWG, 3), salu("s_and_b32", sT[1], sWG, 7), salu("s_and_b32", sRB, sWG, 1), salu("s_lshl_b32", sRB, sRB, 3),
                 salu("s_and_b32", sT[2], sT[0], 7), salu("s_add_u32", sRB, sRB, sT[2]), salu("s_lshr_b32", sGQ, sT[1], 1), salu("s_lshr_b32", sJ, sT[0], 3),
                 salu("s_lshl_b32", sTB2, sT[1], 2), salu("s_and_b32", sT[2], sT[0], 3), salu("s_add_u32", sTB2, sTB2, sT[2]), salu("s_lshr_b32", sCB2, sT[0], 2)]
        if c.map2 == 1:
            roles = roles[:8] + [salu("s_and_b32", sT[2], sT[0], 7), salu("s_lshl3_add_u32", sTB2, sGQ, sT[2]), salu("s_and_b32", sT[2], sWG, 1), salu("s_lshl2_add_u32", sCB2, sT[2], sJ)]
        if c.map2 == 2:
            roles = roles[:8] + [salu("s_lshr_b32", sT[2], sT[0], 2), salu("s_lshl3_add_u32", sTB2, sGQ, sT[2]), salu("s_and_b32", sT[2], sWG, 1), salu("s_and_b32", sCB2, sT[0], 3),
                                 salu("s_lshl2_add_u32", sCB2, sT[2], sCB2)]
        if c.map2 == 3:
            roles = roles[:8] + [salu("s_lshl2_add_u32", sTB2, sT[1], sJ), salu("s_and_b32", sCB2, sT[0], 7)]
        if c.cbx: roles += [salu("s_xor_b32", sCB2, sCB2, c.cbx)]
        def tile_setup():
            if B:
                o = [salu("s_lshl2_add_u32", sT[1], sRB, sW), salu("s_lshl_b32", sT[2], sT[1], 13), salu("s_lshl1_add_u32", sT[3], sGQ, sJ)] + srd(rD, pWO, 512 * 1024)
            else:
                o = [salu("s_lshr_b32", sT[1], sW, 1), salu("s_lshl1_add_u32", sT[1], sT[0], sT[1]), salu("s_lshl_b32", sT[2], sT[1], 15),
                     salu("s_xor_b32", sCNT, sGQ, c.tx), salu("s_and_b32", sT[3], sW, 1), salu("s_lshl1_add_u32", sT[3], sCNT, sT[3])] + srd(rD, pD, 1792 * 1024)
            o += [salu("s_lshl_b32", sCNT, sT[3], 7), salu("s_add_u32", sT[2], sT[2], sCNT),
                  valu("v_lshrrev_b32", t2, 2, vLane), valu("v_and_b32", t2, 4, t2), valu("v_xor_b32", t2, t2, t1), valu("v_lshlrev_b32", t2, 4, t2),
                  valu("v_lshl_add_u32", t2, t0, 10, t2), valu("v_add_u32", vTL, sT[2], t2)]
            o += [salu("s_mul_i32", sT[2], sT[3], 72 * 4096), salu("s_lshl_b32", sT[1], sT[1], 10 if B else 12), salu("s_add_u32", sT[2], sT[2], sT[1]),
                  salu("s_add_u32", sT[2], sT[2], WT_OFF + (56 * 4096 if B else 0)),
                  ]
            if B: o += [salu("s_lshl4_add_u32", sT[1], sT[3], sRB)]
            else: o += [salu("s_lshl_b32", sT[1], sGQ, 5), salu("s_add_u32", sT[1], sT[1], sT[0])]
            o += [salu("s_and_b32", sT[3], sT[1], 7), salu("s_lshr_b32", sT[1], sT[1], 3), salu("s_lshl_b32", sT[1], sT[1], 7), salu("s_lshl2_add_u32", sT[1], sT[3], sT[1]),
                  salu("s_add_u32", sT[1], sT[1], FLAGA_OFF + (80 if B else 64) * 128)]
            if not B: o += [salu("s_cmp_lt_u32", None, sRB, 14), salu("s_cselect_b32", sT[2], sT[2], OOB)]
            o += [salu("s_cmp_eq_u32", None, sW, 0), salu("s_cselect_b32", sT[1], sT[1], OOB),
                  valu("v_lshl_add_u32", vTS, vLane, 4, sT[2]), valu("v_mov_b32", vF2, OOB), raw(f"v_writelane_b32 {vF2}, {sT[1]}, 0", "valu", rd=[vF2], wr=[vF2])]
            return o
        def tile_store():
            o = [valu("v_bfe_u32", t2, vLane, 2, 2), valu("v_lshrrev_b32", t3, 5, vLane), valu("v_lshl_add_u32", vTB0, t3, 4 if B else 2, t2), valu("v_lshlrev_b32", vTB0, 7, vTB0),
                 valu("v_lshrrev_b32", t2, 1, t2), valu("v_lshl_add_u32", vTB0, t2, 6, vTB0), valu("v_and_b32", t2, 1, vLane), valu("v_lshl_add_u32", vTB0, t2, 5, vTB0),
                 valu("v_and_or_b32", vTB0, vLane, 16, vTB0), valu("v_and_b32", t2, 2, vLane), valu("v_lshl_add_u32", vTB0, t2, 2, vTB0)]
            if B:
                o += [salu("s_and_b32", sT[1], sW, 1), salu("s_lshl_b32", sT[1], sT[1], 6), valu("v_xor_b32", vTB0, sT[1], vTB0),
                      salu("s_lshr_b32", sT[1], sW, 1), salu("s_lshl_b32", sT[1], sT[1], 10), salu("s_add_u32", sT[1], sT[1], TL), valu("v_add_u32", vTB0, sT[1], vTB0)]
                return o, [ds_read("ds_read_b64_tr_b16", tl.sub(2 * u, 2), vTB0, u * 512) for u in range(2)], [buf_store("buffer_store_dwordx4", tl.sub(0, 4), vTS, rWS, flags="sc1", tag="ts")]
            o += [salu("s_add_u32", sT[1], sWQ, TL), valu("v_add_u32", vTB0, sT[1], vTB0), valu("v_xor_b32", vTB1, 64, vTB0), wait(vm="tl")]
            for s_ in range(2):
                for cb in range(2):
                    for u in range(2): o += [ds_read("ds_read_b64_tr_b16", tl.sub(8 * s_ + 4 * cb + 2 * u, 2), (vTB0, vTB1)[cb], s_ * 2048 + u * 1024)]
            return o, [buf_store("buffer_store_dword", vFV, vF2, rWS, 0, 2048 if c.cone else 0, flags="sc1")], [buf_store("buffer_store_dwordx4", tl.sub(4 * i, 4), vTS, rWS, 0, 1024 * i, flags="sc1", tag="ts") for i in range(2 if c.dbg & 2048 else 4)]
        if B:
            if c.p0 == 1:
                add(salu("s_and_b32", sT[2], sWG, 63), salu("s_lshl_b32", sT[2], sT[2], 15), salu("s_lshr_b32", sT[1], sWG, 6), salu("s_lshl2_add_u32", sT[1], sT[1], sW),
                    salu("s_lshl_b32", sT[1], sT[1], 8), salu("s_add_u32", sT[1], sT[1], sT[2]),
                    valu("v_xor_b32", t2, t0, t1), valu("v_lshlrev_b32", t2, 4, t2), valu("v_lshl_add_u32", vXL, t0, 11, t2),
                    salu("s_add_u32", sXS, sT[1], 16384 - 1024), srd(*sizes[0])[2:], set_m0(sWQ, XL, "x"))
                add(self.stamp(256), raw("s_waitcnt lgkmcnt(0)", "waitcnt"), self.stamp(256))
                add(buf_dma(vXL, rX, sT[1], 0, tag="x"), buf_dma(vXL, rX, sXS, 1024, tag="x"), set_m0(sWQ, XL + 2048 - 128, "x"), salu("s_mov_b32", rWS[0], pWS[0]),
                    buf_dma(vXL, rX, sT[1], 128, tag="x"), buf_dma(vXL, rX, sXS, 1024 + 128, tag="x"))
            else:
                add(salu("s_and_b32", sT[2], sWG, 63), salu("s_lshl2_add_u32", sT[2], sT[2], sW), salu("s_lshr_b32", sT[1], sWG, 6), salu("s_lshl3_add_u32", sT[1], sT[2], sT[1]),
                    salu("s_lshl_b32", sT[1], sT[1], 10), valu("v_lshl_add_u32", vXL, vLane, 4, sT[1]), salu("s_mul_i32", sCNT, sW, 4352),
                    salu("s_movk_i32", sT[1], 960), salu("s_movk_i32", sT[2], 1920), salu("s_movk_i32", sT[3], 2880), srd(*sizes[0])[2:], set_m0(sCNT, XL, "x"))
                add(self.stamp(256), raw("s_waitcnt lgkmcnt(0)", "waitcnt"), self.stamp(256))
                add([buf_dma(vXL, rX, sT[i] if i else 0, 1088 * i, tag="x") for i in range(4)], salu("s_mov_b32", rWS[0], pWS[0]))
                add(valu("v_and_b32", vST, 3, vLane), valu("v_mul_u32_u24", t2, 1088, vST), valu("v_lshrrev_b32", vXL, 2, vLane), valu("v_lshl_add_u32", t2, vXL, 4, t2),
                    salu("s_add_u32", sCNT, sCNT, XL), valu("v_add_u32", vXR, sCNT, t2))
            add(self.stamp(256))
            add(srd(*sizes[1])[1:])
            if c.rsel: add(salu("s_lshr_b32", sT[1], sWG, 3), salu("s_and_b32", sT[2], sWG, 1), salu("s_lshl1_add_u32", sT[1], sT[1], sT[2]), salu("s_and_b32", sT[3], sWG, "0xe6"))
            else: add(salu("s_mov_b32", sT[1], sWG), salu("s_lshr_b32", sT[3], sWG, 3))
            add(salu("s_lshl_b32", sT[2], sT[1], 11), salu("s_add_u32", sT[2], sT[2], FLAGA_OFF), salu("s_lshl_b32", sT[1], sT[1], 2),
                salu("s_or_b32", sT[3], sT[3], sW), salu("s_cselect_b32", sT[2], OOB, sT[2]), salu("s_cselect_b32", sT[1], OOB, sT[1]),
                salu("s_lshl_b32", sT[3], sWG, 10), salu("s_add_u32", sT[3], sT[3], FLAG_OFF), salu("s_cmp_eq_u32", None, sW, 1),
                [salu("s_cselect_b32", sT[3], sT[3], OOB), valu("v_lshl_add_u32", vR2, vLane, 4, sT[3]), salu("s_mov_b32", sT[3], 7)] if c.rlate else
                [salu("s_cselect_b32", sT[2], sT[3], sT[2]), salu("s_cselect_b32", sT[3], 6, 7)],
                valu("v_lshrrev_b32", t2, 2, vLane), valu("v_and_b32", t3, 3, vLane), valu("v_lshlrev_b32", t3, 4, t3), valu("v_lshl_add_u32", t2, t2, sT[3], t3),
                valu("v_add_u32", vRS, sT[2], t2), valu("v_mov_b32", vSG, sT[1]), [valu("v_mov_b32", z[i], 0) for i in range(4)])
            add(buf_store("buffer_store_dwordx4", z, vRS, rWS, flags="sc1", tag="reset"))
            add(roles)
            for q in sizes[2:]: add(srd(*q))
            if c.bq:
                add(salu("s_lshl1_add_u32", sT[0], sRB, sJ), salu("s_lshl2_add_u32", sT[1], sT[0], sW), salu("s_mul_i32", sT[1], sT[1], 4 * 3072), salu("s_lshl_b32", sT[2], sGQ, 8),
                    salu("s_add_u32", sT[1], sT[1], sT[2]),
                    valu("v_min_u32", t2, 5, t1), valu("v_and_b32", t3, 1, t2), valu("v_lshrrev_b32", t2, 1, t2), valu("v_lshl_add_u32", t2, t2, 3, t3),
                    valu("v_and_b32", t3, 3, t0), valu("v_mul_u32_u24", t3, 3072, t3), valu("v_lshl_add_u32", t2, t2, 7, t3), valu("v_add_u32", t2, sT[1], t2), self.touch(t2, rQKV))
            add(gu, srd(rGU, pG, 512 * 3584)[2:], tile_setup())
            if c.wo_late == -1: add(salu("s_lshr_b32", sT[1], sWQ, 2), set_m0(sT[1], TL, "tl"), buf_dma(vTL, rD, tag="tl"))
        else:
            add(roles)
            add(salu("s_lshl_b32", sT[0], sRB, 1), salu("s_add_u32", sT[0], sT[0], sJ), salu("s_sub_u32", sT[0], sT[0], 2),
                valu("v_and_b32", t3, 1, t1), [] if c.bq else [
                salu("s_lshl2_add_u32", sT[1], sT[0], sW), salu("s_mul_i32", sT[1], sT[1], 4 * 3072), salu("s_lshl_b32", sT[2], sGQ, 8), salu("s_add_u32", sT[1], sT[1], sT[2]),
                valu("v_and_b32", t2, 3, t0), valu("v_mul_u32_u24", t2, 3072, t2), valu("v_lshl_add_u32", t2, t3, 7, t2),
                valu("v_add_u32", vTCH[3], sT[1], t2), valu("v_bfe_u32", t2, t1, 1, 1), valu("v_add_u32", t2, 1, t2), valu("v_lshl_add_u32", vTCH[1], t2, 10, vTCH[3])],
                salu("s_and_b32", sT[2], sW, 1), salu("s_lshl1_add_u32", sT[1], sT[0], sT[2]), salu("s_mul_i32", sT[1], sT[1], 8 * 3584),
                salu("s_mul_i32", sT[2], sGQ, 7 * 128), salu("s_add_u32", sT[1], sT[1], sT[2]),
                valu("v_mul_u32_u24", t2, 3584, t0), valu("v_add_u32", t2, sT[1], t2), valu("v_lshl_add_u32", vTCH[0], t3, 7, t2))
            if c.tlin:
                add(salu("s_sub_u32", sT[2], sWG, 128), salu("s_lshl2_add_u32", sT[3], sT[2], sW), salu("s_mul_i32", sCNT, sT[3], 3072),
                    valu("v_min_u32", vTCH[1], 23, vLane), valu("v_lshl_add_u32", vTCH[1], vTCH[1], 7, sCNT),
                    salu("s_mul_i32", sCNT, sT[3], 3584), valu("v_min_u32", vTCH[4], 27, vLane), valu("v_lshl_add_u32", vTCH[4], vTCH[4], 7, sCNT),
                    salu("s_and_b32", sT[3], sW, 1), salu("s_lshl1_add_u32", sT[3], sT[2], sT[3]), salu("s_mul_i32", sT[3], sT[3], 7168),
                    valu("v_min_u32", vTCH[0], 55, vLane), valu("v_lshl_add_u32", vTCH[0], vTCH[0], 7, sT[3]))
            add([] if c.bq else srd(*sizes[3])[2:], srd(rGU, pG, 512 * 3584)[2:])
            add(self.stamp(256), raw("s_waitcnt lgkmcnt(0)", "waitcnt"), self.stamp(256))
            if c.c_delay:
                add(salu("s_mov_b32", sT[3], sT[1]), [self.dma_setup(ch) for ch in range(3)], salu("s_mov_b32", sT[1], sT[3]))
            if c.tlin == 2: add(srd(rD, pD, 1792 * 1024), self.touch(vTCH[4], rD))
            add([] if c.bq else srd(*sizes[3])[:2] + self.touch(vTCH[1], rQKV), gu, self.touch(vTCH[0], rGU), self.stamp(256))
            add(valu("v_and_b32", t3, 3, t1), valu("v_add_u32", t3, 2, t3), valu("v_lshl_add_u32", vTCH[2], t3, 7, t2),
                valu("v_bfe_u32", t2, vLane, 2, 3), valu("v_mul_u32_u24", t2, 3584, t2), valu("v_bfe_u32", t3, vLane, 4, 1), valu("v_xor_b32", t3, t3, vLane), valu("v_and_b32", t3, 3, t3),
                valu("v_lshl_add_u32", t2, t3, 4, t2),
                valu("v_lshrrev_b32", t3, 5, vLane), valu("v_lshl_add_u32", t2, t3, 6, t2), salu("s_add_u32", sT[1], sT[1], 768), valu("v_add_u32", vPL, sT[1], t2),
                buf_load("buffer_load_dwordx4", p6, vPL, rGU),
                salu("s_lshr_b32", sT[1], sT[0], 3), salu("s_lshl_b32", sT[1], sT[1], 14), salu("s_and_b32", sT[2], sT[0], 7), salu("s_lshl_b32", sT[2], sT[2], 10),
                salu("s_add_u32", sT[1], sT[1], sT[2]), salu("s_and_b32", sT[2], sW, 1), salu("s_lshl_b32", sT[2], sT[2], 9), salu("s_add_u32", sT[1], sT[1], sT[2]),
                salu("s_lshr_b32", sT[2], sW, 1), salu("s_lshl_b32", sT[2], sT[2], 13), salu("s_add_u32", sT[1], sT[1], sT[2]),
                salu("s_lshl_b32", sT[2], sGQ, 17), salu("s_add_u32", sT[1], sT[1], sT[2]), salu("s_add_u32", sT[1], sT[1], P6_OFF),
                valu("v_and_b32", t2, 31, vLane), valu("v_lshlrev_b32", t2, 4, t2), valu("v_lshl_add_u32", t2, t3, 16, t2), valu("v_add_u32", vPS, sT[1], t2),
                )
            add(tile_setup())
            tdma = [set_m0(sWQ, TL, "tl"), salu("s_mov_b32", sTHR, 7168)]
            for i in range(2 if c.dbg & 2048 else 4):
                tdma += [buf_dma(vTL, rD, sTHR if i else 0, 1024 * i, tag="tl")]
                if 0 < i < 3: tdma += [salu("s_add_u32", sTHR, sTHR, 7168)]
            self.rest = [] if (c.tlin or c.b_rest is not None) else self.touch(vTCH[3], rQKV) + self.touch(vTCH[2], rGU)
            self.tdma = tdma
            if c.c_tile == -1: add(tdma)
            if c.bq: self.rest.pop(0)
            elif c.q_early and self.rest: add(self.rest.pop(0))
            if c.c_rest == -1: add(self.rest)
            add(srd(*sizes[0])[2:])
            for q in sizes[1:3] + sizes[4:]: add(srd(*q))
        add(valu("v_mov_b32", vFV, 1))
        sa, sb = (8 * 3072, 8 * 3584) if B else (8 * 3584, 16 * 3584)
        for i in (1, 2, 3):
            add(salu("s_mov_b32", sOA[i], i * (sa - 1024)), [salu("s_mov_b32", sOB[i], i * (sb - 1024))] if B else [])
        if B or not c.c_delay: add(self.dma_setup(0))
        if B:
            for _ in range(c.w_0): add(self.dma_slab())
            add(salu("s_lshr_b32", sT[0], sWG, 1), salu("s_and_b32", sT[3], sWG, 1),
                salu("s_lshl_b32", sT[1], sT[0], 15), salu("s_lshl_b32", sT[2], sW, 13), salu("s_add_u32", sT[1], sT[1], sT[2]), salu("s_lshl_b32", sT[2], sT[3], 10),
                salu("s_add_u32", sT[1], sT[1], sT[2]), salu("s_add_u32", sT[1], sT[1], XN_OFF))
            if c.p0 == 1:
                add(valu("v_lshrrev_b32", t2, 4, vLane), valu("v_and_b32", t3, 2, t2), valu("v_xor_b32", t3, t3, t1), valu("v_lshlrev_b32", t3, 4, t3), valu("v_and_b32", vST, 15, vLane),
                    valu("v_lshl_add_u32", t3, vST, 7, t3), valu("v_and_b32", t2, 1, t2), valu("v_lshl_add_u32", t3, t2, 3, t3),
                    salu("s_add_u32", sT[2], sWQ, XL), valu("v_add_u32", vXR, sT[2], t3), valu("v_xor_b32", vXL, 64, vXR), valu("v_xor_b32", vPL, 16, vXR), valu("v_xor_b32", vPS, 16, vXL),
                    valu("v_lshl_add_u32", vXS, vLane, 4, sT[1]),
                    valu("v_lshlrev_b32", vST, 5, vST), valu("v_add_u32", vST, SPARE, vST),
                    salu("s_lshl_b32", sT[2], sW, 2), valu("v_lshrrev_b32", t3, 5, vLane), valu("v_lshl_add_u32", t3, t3, 4, sT[2]), valu("v_add_u32", vRS, t3, vST))
            else:
                add(valu("v_lshlrev_b32", t3, 4, vST), valu("v_lshl_add_u32", t3, vXL, 9, t3), valu("v_add_u32", vXS, sT[1], t3))
            add(
                salu("s_lshl_b32", sT[1], sT[0], 7), salu("s_lshl_b32", sT[2], sT[3], 2), salu("s_add_u32", sT[1], sT[1], sT[2]), salu("s_add_u32", sT[1], sT[1], FLAGA_OFF),
                salu("s_cmp_eq_u32", None, sW, 0), salu("s_cselect_b32", sT[1], sT[1], OOB),
                valu("v_mov_b32", t2, OOB), valu("v_mov_b32", t3, sT[1]), valu("v_cmp_eq_u32", "vcc", 0, vLane), valu("v_cndmask_b32", vF0, t2, t3, "vcc"),
                valu("v_mov_b32", one, "0x3f803f80"), valu("v_mov_b32", sm, 0), valu("v_mov_b32", sq, 0), salu("s_mov_b32", sXS, 4096))
        add(salu("s_lshl_b32", sT[1], sRB, 2), salu("s_add_u32", sT[1], sT[1], sW), salu("s_lshl_b32", sT[2], sT[1], 7), salu("s_add_u32", sT[2], sT[2], FLAGA_OFF),
            valu("v_and_b32", vPOLL, 1, vLane), valu("v_lshlrev_b32", vPOLL, 2, vPOLL), valu("v_add_u32", vP0, sT[2], vPOLL),
            salu("s_lshl_b32", sT[1], sT[1], 15), salu("s_add_u32", sT[1], sT[1], 0 if c.px & 128 else XN_OFF), valu("v_lshl_add_u32", vXN, vLane, 4, sT[1]),
            salu("s_cmp_eq_u32", None, sW, 0), salu("s_cselect_b32", sT[1], 0, OOB), salu("s_cselect_b32", sT[3], 0 if c.nodbg else 1, 0),
            valu("v_lshl_add_u32", vDB, t1, 2, sT[1]), valu("v_mov_b32", vTLB, sT[3]))
        if not B and not c.c_delay: add(self.dma_setup(1), self.dma_setup(2))
        if B and not c.b_lean: add(self.dma_setup(1), self.dma_setup(2))
        add(self.w2_setup())
        if c.setup_early or not B: self.misc_setup()
        add(self.stamp(65 + 256))
        if B:
            add(wait(vm="x"))
            if c.p0 == 1: add([ds_read("ds_read_b64", xr.sub(4 * i + 2 * u, 2), ((vXR, vPL), (vXL, vPS))[i & 1][u], 2048 * (i >> 1)) for i in range(4) for u in range(2)])
            else: add([ds_read("ds_read_b128", xr.sub(4 * i, 4), vXR, 256 * i) for i in range(4)])
            for _ in range(c.w_x): add(self.dma_slab())
            if c.sig_early: add(wait(vm="reset"), buf_store("buffer_store_dword", vFV, vSG, rDBG, flags="sc1"))
            add(self.stamp(64 + 256))
            for r in range(16): add(valu("v_dot2c_f32_bf16", sm, xr[r], one, rmw=True), valu("v_dot2c_f32_bf16", sq, xr[r], xr[r], rmw=True))
            add([valu("v_lshlrev_b32", lo[i], 16, xr[i]) for i in range(3)])
            add(valu("v_permlane32_swap_b32", sm, sq, rmw=True, wr2=sq), valu("v_add_f32", sm, sm, sq), valu("v_mov_b32", sq, sm))
            add([valu("v_lshlrev_b32", lo[i], 16, xr[i]) for i in (3, 4)])
            add(valu("v_permlane16_swap_b32", sm, sq, rmw=True, wr2=sq), valu("v_add_f32", sm, sm, sq))
            sig = [] if c.sig_early else [wait(vm="reset"), buf_store("buffer_store_dword", vFV, vSG, rDBG, flags="sc1")]
            shl = lambda a, b: [valu("v_lshlrev_b32", lo[i], 16, xr[i]) for i in range(a, b)]
            if c.p0 == 1:
                add(ds_write("ds_write_b32", vRS, sm, tag="st"), sig, shl(5, 16))
                add(wait(lg="st"), self.stamp(256), barrier(), self.stamp(256))
                add([ds_read("ds_read_b128", part.sub(4 * i, 4), vST, 16 * i) for i in range(2)])
                for _ in range(c.w_y): add(self.dma_slab())
                add([valu("v_and_b32", xr[i], "0xffff0000", xr[i]) for i in range(16)])
                add(valu("v_pk_add_f32", part.sub(0, 2), part.sub(0, 2), part.sub(2, 2)), valu("v_pk_add_f32", part.sub(4, 2), part.sub(4, 2), part.sub(6, 2)),
                    valu("v_add_f32", sm, part[0], part[1]), valu("v_add_f32", sq, part[4], part[5]))
            else:
                add(shl(5, 7), valu("v_add_f32_dpp", sm, sm, sm, extra="row_ror:8 row_mask:0xf bank_mask:0xf"),
                    shl(7, 9), valu("v_add_f32_dpp", sm, sm, sm, extra="row_ror:4 row_mask:0xf bank_mask:0xf"), valu("v_mov_b32", sq, sm),
                    shl(9, 11), valu("v_permlane32_swap_b32", sm, sq, rmw=True, wr2=sq), sig, shl(11, 16), self.stamp(256), self.stamp(256))
                add([valu("v_and_b32", xr[i], "0xffff0000", xr[i]) for i in range(16)])
            add(
                valu("v_mul_f32", sm, f32(1 / 512), sm), valu("v_mul_f32", sq, f32(1 / 512), sq),
                valu("v_fma_f32", sq, f"-{sm}", sm, sq), valu("v_max_f32", sq, 0, sq),
                valu("v_cvt_pk_bf16_f32", sq, sq, sm),
                valu("v_and_b32", sm, "0xffff0000", sq), valu("v_lshlrev_b32", sq, 16, sq),
                valu("v_add_f32", sq, f32(1e-5), sq), valu("v_cvt_pk_bf16_f32", sq, sq, sq), valu("v_lshlrev_b32", sq, 16, sq),
                valu("v_sqrt_f32", sq, sq), valu("v_cvt_pk_bf16_f32", sq, sq, sq), valu("v_lshlrev_b32", sq, 16, sq),
                valu("v_rcp_f32", rb[1], sq), valu("v_mul_f32", rb[0], f"-{sm}", rb[1]))
            for h in range(2 if c.dbg & 1024 else 4):
                for r in (lo, xr):
                    add([valu("v_pk_fma_f32", r.sub(i, 2), r.sub(i, 2), rb, rb, extra="op_sel:[0,1,0] op_sel_hi:[1,1,0]") for i in (4 * h, 4 * h + 2)])
                add([valu("v_cvt_pk_bf16_f32", xr[i], lo[i], xr[i]) for i in range(4 * h, 4 * h + 4)])
                if c.p0 == 1: add(buf_store("buffer_store_dwordx4", xr.sub(4 * h, 4), vXS, rWS, sXS if h >> 1 else 0, 2048 * (h & 1), flags="sc1", tag=f"xs{h}"))
                else: add(salu("s_movk_i32", sXS, 8192 * h), buf_store("buffer_store_dwordx4", xr.sub(4 * h, 4), vXS, rWS, sXS, flags="sc1"))
            if c.rlate: add(buf_store("buffer_store_dwordx4", z, vR2, rWS, flags="sc1"))
            if c.dpos == 0: add(self.poll_issue(vDB, rDBG))
            add(self.stamp(64 + 4096))
            if c.dpos != 2:
                for _ in range(c.w_a): add(self.dma_slab())
            if c.b_rest is not None:
                add(salu("s_lshl1_add_u32", sT[0], sRB, sJ), salu("s_lshl2_add_u32", sT[1], sT[0], sW), salu("s_mul_i32", sT[1], sT[1], 4 * 3072), salu("s_lshl_b32", sT[2], sGQ, 8),
                    salu("s_add_u32", sT[1], sT[1], sT[2]), valu("v_and_b32", t2, 3, t0), valu("v_mul_u32_u24", t2, 3072, t2), valu("v_and_b32", t3, 1, t1),
                    valu("v_lshl_add_u32", t2, t3, 7, t2), valu("v_add_u32", vTCH[3], sT[1], t2),
                    salu("s_and_b32", sT[2], sW, 1), salu("s_lshl1_add_u32", sT[1], sT[0], sT[2]), salu("s_mul_i32", sT[1], sT[1], 8 * 3584),
                    salu("s_mul_i32", sT[2], sGQ, 7 * 128), salu("s_add_u32", sT[1], sT[1], sT[2]), salu("s_add_u32", sT[1], sT[1], 256),
                    valu("v_mul_u32_u24", t2, 3584, t0), valu("v_add_u32", t2, sT[1], t2), valu("v_and_b32", t3, 3, t1), valu("v_lshl_add_u32", vTCH[2], t3, 7, t2))
                self.rest = self.touch(vTCH[3], rQKV) + self.touch(vTCH[2], rGU)
            if c.b_lean: add(self.dma_setup(1), self.dma_setup(2))
            self.mid = self.poll_issue(vDB, rDBG) if c.dpos == 3 else []
            if not c.setup_early: self.misc_setup()
            if c.dpos in (1, 2): add(self.poll_issue(vDB, rDBG))
            if c.dpos == 2:
                for _ in range(c.w_a): add(self.dma_slab())
            pre, rd, self.ts = tile_store()
            add(pre)
            if c.stamps & 4096: add(self.stamp(4096), wait(vm="xs0"), self.stamp(4096), wait(vm="xs3"), self.stamp(4096), wait(vm="w0"), self.stamp(4096))
            if not c.px & 256: add(self.poll_check(vDB, rDBG, vTLB))
            add(self.stamp(64 + 4096))
            add(barrier(), self.stamp(64), buf_store("buffer_store_dword", vFV, vF0, rWS, flags="sc1", tag="f0"))
            wo = [salu("s_lshr_b32", sT[1], sWQ, 2), set_m0(sT[1], TL, "tl"), buf_dma(vTL, rD, tag="tl")]
            if c.wo_late == 0: add(wo)
            for _ in range(c.w_b): add(self.dma_slab())
        else:
            pre, rd, self.ts = tile_store()
            for _ in range(c.w_c0): add(self.dma_slab())
            if c.cdbg == 1: add(self.poll_issue(vDB, rDBG))
            if c.c_tile == -1: add(pre)
            else:
                assert c.ts_pos > c.c_tile and c.ts_pos >= 0
                add(pre[:14]); self.ts = pre[14:] + self.ts
            if c.w_c0: add(self.stamp(64 + 256), self.stamp(256), self.stamp(64 + 256))
            else: add(self.stamp(64 + 256), self.dma_slab(), self.stamp(256), wait(vm="w0"), self.stamp(64 + 256))
            if c.cdbg == 2: add(self.poll_issue(vDB, rDBG))
            add(buf_store("buffer_store_dwordx4", p6, vPS, rWS, flags="sc1"))
            if c.ts_pos < 0: add(self.ts); self.ts = []
            if not c.cdbg: add(self.poll_issue(vDB, rDBG))
            while self.nslab < c.w_c: add(self.dma_slab())
            if c.c_tile == -2: add(tdma)
            if c.c_rest == -2: add(self.rest)
            if not c.px & 256: add(self.poll_check(vDB, rDBG, vTLB), self.stamp(64), barrier(), self.stamp(64))
        if not c.px & 128: add(self.poll_issue(vP0, rWS))
        for _ in range(c.w_p): add(self.dma_slab())
        if c.stamps & 4096:
            add(self.stamp(4096), wait(vm="f0"), self.stamp(4096), wait(vm=f"w{self.nslab-1}"), self.stamp(4096), wait_regs(vPV), self.stamp(4096))
            self.nst = 10
        if not c.px & 128: add(wait_regs(vPV), self.stamp(64), self.poll_check(vP0, rWS, 1))
        add(self.stamp(65 + 256))
        self.nx = 0
        for _ in range(c.nx0 // 2): add(self.x_load())
        add(wait(vm=["w0", "tl"] if B else "w0"), barrier(), rd)
        F = self.frag_list()
        for k in range(c.LA):
            add(self.frag_reads(k, F[k]))
            if k % 2 and self.nx < c.nx0: add(self.x_load())
        while self.nx < c.nx0: add(self.x_load())
    def x_load(self):
        j = self.nx; self.nx += 1
        o = []
        if j % 4 == 0: o += [salu("s_mov_b32", sXS, j * 1024)]
        return o + [buf_load("buffer_load_dwordx4", X.sub(4 * j, 4), vXN, rX if self.cfg.px & 128 else rWS, 0 if self.cfg.dbg & 8 else sXS, (j % 4) * 1024, flags="sc1")]

    def misc_setup(self):
        add = self.add
        t0, t1, t2, t3 = T[0], T[1], T[2], T[3]
        TR = self.TR
        add(valu("v_bfe_u32", t0, vLane, 2, 3), valu("v_and_b32", t1, 32, vLane), valu("v_lshrrev_b32", t1, 1, t1), valu("v_add_u32", t1, t1, t0),
            valu("v_and_b32", t2, 1, vLane), valu("v_lshlrev_b32", t2, 3, t2), valu("v_and_b32", t3, 2, vLane),
            valu("v_lshl_add_u32", TR[0], t1, 7, t2), valu("v_lshl_add_u32", TR[0], t3, 5, TR[0]), valu("v_lshrrev_b32", t0, 1, t0), valu("v_lshl_add_u32", TR[0], t0, 4, TR[0]),
            [valu("v_xor_b32", TR[i], 16 * i, TR[0]) for i in (1, 2, 3)])
        if not self.B:
            add(valu("v_lshl_add_u32", TR[4], t1, 6, t2), valu("v_lshl_add_u32", TR[4], t3, 4, TR[4]), valu("v_and_or_b32", TR[4], vLane, 16, TR[4]), valu("v_xor_b32", TR[5], 16, TR[4]))
        self.win = [0] * 6
        for ch in range(3):
            if not (self.B and ch == 0): add(self.set_hu(ch))
        if self.B: add(self.att_setup())
        add(self.mid)
        add(salu("s_lshl_b32", sT[1], sRB, 2), salu("s_add_u32", sT[1], sT[1], sW), salu("s_mul_i32", sT[2], sT[1], HSTR),
            valu("v_and_b32", t0, 16, vLane), valu("v_lshlrev_b32", t0, 1, t0), valu("v_and_or_b32", t0, vLane, 15, t0), valu("v_lshl_add_u32", t0, t0, 4, sT[2]),
            valu("v_and_b32", t1, 32, vLane), valu("v_lshl_add_u32", vHST, t1, 6, t0))
        if not self.B: add(valu("v_lshl_add_u32", vSCR, t1, 5, t0))
        if self.cfg.dbg & 1: add(valu("v_mov_b32", vHST, OOB))
        add(salu("s_lshr_b32", sT[1], sT[1], 1), salu("s_lshl_b32", sT[1], sT[1], 2), salu("s_add_u32", sT[1], sT[1], sGQ), salu("s_lshl_b32", sT[1], sT[1], 10),
            salu("s_and_b32", sT[2], sW, 1), salu("s_lshl_b32", sT[3], sJ, 1), salu("s_add_u32", sT[2], sT[2], sT[3]), salu("s_lshl_b32", sT[2], sT[2], 2),
            salu("s_add_u32", sT[1], sT[1], sT[2]), salu("s_add_u32", sT[1], sT[1], FLAG_OFF),
            valu("v_mov_b32", t0, OOB), valu("v_mov_b32", t1, sT[1]), valu("v_cmp_eq_u32", "vcc", 0, vLane), valu("v_cndmask_b32", vFLG, t0, t1, "vcc"))
        if self.B: add(valu("v_add_u32", vFH, sH3, vFLG))
        add(salu("s_lshl_b32", sT[1], sTB2, 1), salu("s_lshr_b32", sT[2], sW, 1), salu("s_add_u32", sT[1], sT[1], sT[2]), salu("s_mul_i32", sP2h, sT[1], HSTR),
            salu("s_xor_b32", sT[2], sT[1], 1), salu("s_mul_i32", sHS, sT[2], HSTR),
            salu("s_lshl_b32", sT[1], sT[1], 5),
            salu("s_and_b32", sT[2], sT[1], 1023), salu("s_lshl_b32", sT[2], sT[2], 11), salu("s_lshr_b32", sT[1], sT[1], 10), salu("s_lshl_b32", sT[1], sT[1], 10),
            salu("s_add_u32", sT[1], sT[1], sT[2]), salu("s_lshl_b32", sT[2], sCB2, 7), salu("s_add_u32", sT[1], sT[1], sT[2]),
            salu("s_and_b32", sT[2], sW, 1), salu("s_lshl_b32", sT[2], sT[2], 6), salu("s_add_u32", sP2x, sT[1], sT[2]),
            salu("s_lshl_b32", sT[1], sTB2, 2), salu("s_add_u32", sT[1], sT[1], sW), salu("s_lshl_b32", sT[1], sT[1], 10), salu("s_add_u32", sP2f, sT[1], FLAG_OFF))
        add(salu("s_mul_i32", sT[1], sCB2, 72 * 4096), salu("s_add_u32", sT[1], sT[1], WT_OFF), salu("s_lshl_b32", sT[2], sT[2], 4),
            salu("s_add_u32", sT[3], sT[1], sT[2]), valu("v_lshl_add_u32", vW[0], vLane, 4, sT[3]),
            salu("s_sub_u32", sT[3], sT[1], sT[2]), valu("v_lshl_add_u32", vW[1], vLane, 4, sT[3]), valu("v_lshl_add_u32", vWB, vLane, 4, sWQ),
            salu("s_lshl_b32", sT[1], sCB2, 8), salu("s_add_u32", sT[1], sT[1], FLAGA_OFF + 96 * 128), salu("s_lshl_b32", sT[2], sGQ, 9), salu("s_add_u32", sT[2], sT[2], FLAGA_OFF + (80 if self.cfg.cone else 64) * 128),
            salu("s_lshr_b32", sT[3], sCB2, 1), salu("s_xor_b32", sT[3], sT[3], self.cfg.tx), salu("s_lshl_b32", sT[3], sT[3], 9), salu("s_add_u32", sT[3], sT[3], FLAGA_OFF + 80 * 128),
            salu("s_cmp_eq_u32", None, sW, 0), salu("s_cselect_b32", sT[1], sT[1], OOB), salu("s_cselect_b32", sT[2], sT[2], OOB), salu("s_cselect_b32", sT[3], sT[3], OOB),
            salu("s_cselect_b32", sW0, 1, 0),
            valu("v_and_b32", t0, 24, vLane), valu("v_lshlrev_b32", t0, 2, t0), valu("v_and_or_b32", t0, vLane, 7, t0), valu("v_and_b32", t1, 63, t0),
            valu("v_lshl_add_u32", t1, t1, 2, sT[1]), valu("v_lshl_add_u32", vP2, t0, 2, sT[3]),
            valu("v_cmp_lt_u32", "vcc", 31, vLane), valu("v_cndmask_b32", vP2, vP2, t1, "vcc"))
        if not self.B: add(valu("v_lshl_add_u32", vP6, t0, 2, sT[2]))

    def chunk_of(self, n): return 0 if n < 8 else (1 if n < 12 else 2)
    def dma_setup(self, ch):
        t0, t1 = T[0], T[1]
        o = []
        B = self.B
        half = (not B) and ch == 1
        stride = 3072 if (B and ch < 2) else 3584
        if half:
            return [salu("s_lshl_b32", sT[1], sGQ, 1), salu("s_add_u32", sT[1], sT[1], sJ), salu("s_lshl_b32", sT[1], sT[1], 16), salu("s_add_u32", sT[1], sT[1], sWQ),
                    salu("s_add_u32", sT[1], sT[1], P6_OFF - 2 * 65536), valu("v_lshl_add_u32", vDMA1, vLane, 4, sT[1])]
        else:
            o += [valu("v_lshrrev_b32", t0, 4, vLane), valu("v_and_b32", t1, 7, vLane), valu("v_xor_b32", t1, t0, t1), valu("v_lshrrev_b32", t0, 3, vLane)]
        o += [valu("v_mul_u32_u24", t0, stride, t0), valu("v_lshl_add_u32", t0, t1, 4, t0)]
        a, b = sT[1], sT[2]
        if B and ch == 0:
            o += [salu("s_lshl_b32", a, sGQ, 1), salu("s_add_u32", a, a, sJ), salu("s_lshl_b32", a, a, 7), salu("s_lshr_b32", b, sW, 1),
                  salu("s_add_u32", b, b, 1), salu("s_lshl_b32", b, b, 10), salu("s_add_u32", a, a, b), salu("s_and_b32", b, sW, 1),
                  salu("s_mul_i32", b, b, 32 * stride), salu("s_add_u32", a, a, b)]
        elif B and ch == 1:
            o += [salu("s_lshl_b32", a, sGQ, 1), salu("s_add_u32", a, a, sJ), salu("s_lshl_b32", a, a, 7), salu("s_mul_i32", b, sW, 32 * stride),
                  salu("s_add_u32", a, a, b)]
        else:
            if half: o += [salu("s_lshl_b32", b, sJ, 6), salu("s_add_u32", b, b, 6 * 128 - 128)]
            else: o += [salu("s_lshl_b32", b, sJ, 7), salu("s_sub_u32" if ch == 0 else "s_add_u32", b, b, 256)]
            o += [salu("s_mul_i32", a, sGQ, 7 * 128), salu("s_add_u32", a, a, b), salu("s_and_b32", b, sW, 1),
                  salu("s_mul_i32", b, b, (64 if half else 32) * stride), salu("s_add_u32", a, a, b)]
        o += [valu("v_add_u32", (vDMA0, vDMA1, vDMA2)[ch], a, t0)]
        return o
    def dma_slab(self):
        n = self.nslab; self.nslab += 1
        ch = self.chunk_of(n)
        B = self.B
        vd = (vDMA0, vDMA1, vDMA2)[ch]
        srd = rQKV if (B and ch < 2) else rGU
        so = (sOA if ch < 2 else sOB) if B else (sOB if ch == 1 else sOA)
        stride = 3072 if (B and ch < 2) else 3584
        o = [set_m0(sWQ, slab_slot(n) * SLOT, f"w{n}")]
        if ch == 1 and not B:
            if n > 8: o += [valu("v_add_u32", vd, 16384, vd)]
            return o + [buf_dma(vd, rWS, 0, i * 1024, flags="sc1", tag=f"w{n}") for i in range(4)]
        if n not in (0, 8, 12) and not self.cfg.dbg & 16: o += [valu("v_add_u32", vd, (128 if ch == 1 else 64) * stride, vd)]
        o += [buf_dma(vd, srd, so[i], i * 1024, flags="sc1" if self.cfg.dbg & 16 else self.cfg.wflags, tag=f"w{n}") for i in range(2 if (self.cfg.dbg & 512 and n >= 7) else 4)]
        return o
    def frag_list(self):
        L = []
        for n in range(20):
            ch = self.chunk_of(n)
            base = slab_slot(n) * SLOT
            if ch != 1:
                n0 = 0 if ch == 0 else 12
                for jj in range(2):
                    for cc in range(4):
                        for im in range(2):
                            L.append(([ACC1.sub(16 * im + 32 * th + 4 * cc, 4) for th in range(2)], 4 * (n - n0) + 2 * jj, n, base + im * 8192 + jj * 4096, cc, 1024))
            else:
                for jj in range(4):
                    for cc in range(4):
                        if self.B: L.append(([ACC2.sub(16 * th + 4 * cc, 4) for th in range(2)], 8 * (n - 8) + 2 * jj, n, base + jj * 4096, cc, 1024))
                        else: L.append(([ACC2.sub(16 * (cc & 1) + 8 * th + 4 * (cc >> 1), 4) for th in range(2)], 8 * (n - 8) + 2 * jj, n, base + (cc & 1) * 8192 + jj * 2048, 4 + (cc >> 1), 512))
        assert not self.cfg.nspl
        if self.cfg.chain:
            M = []
            for n in range(20):
                f = L[16 * n:16 * n + 16]
                h = 4 if self.chunk_of(n) == 1 else 8
                for a in range(0, 16, 2 * h):
                    for i in range(h): M += [f[a + i], f[a + h + i]]
            L = M
        return L
    def window(self, wins, which, reg, off, span):
        o = []
        if not (wins[which] <= off and off + span <= wins[which] + 65536):
            w = off // SLOT * SLOT
            d = w - wins[which]
            o += [valu("v_add_u32" if d > 0 else "v_subrev_u32", reg, abs(d), reg)]
            wins[which] = w
        return o, off - wins[which]
    def frag_reads(self, k, f):
        acc, step, n, off, which, ustep = f
        b = self.TR[which]
        o, imm = self.window(self.win, which, b, off, 2048)
        dst = WF.sub(4 * (k % self.cfg.NB), 4)
        o += [ds_read("ds_read_b64_tr_b16", dst.sub(0, 2), b, imm, tag=f"f{k}"), ds_read("ds_read_b64_tr_b16", dst.sub(2, 2), b, imm + ustep, tag=f"f{k}")]
        if self.cfg.dbg & 4096 and k >= 16: o.pop(-1 - (k // self.cfg.NB & 1))
        return o
    def ffn_epi(self, G, U, ch, kst, tag, pk=False):
        o = []
        for b in range(4):
            t = [T[4 + i] for i in range(4)]
            g = [G[4 * b + i] for i in range(4)]; u = [U[4 * b + i] for i in range(4)]
            if pk:
                t2 = [T.sub(4, 2), T.sub(6, 2)]; g2 = [G.sub(4 * b, 2), G.sub(4 * b + 2, 2)]; u2 = [U.sub(4 * b, 2), U.sub(4 * b + 2, 2)]
                o += [valu("v_pk_mul_f32", t2[i], g2[i], T.sub(0, 2)) for i in range(2)]
                o += [valu("v_exp_f32", t[i], t[i]) for i in range(4)]
                o += [valu("v_pk_mul_f32", u2[i], g2[i], u2[i]) for i in range(2)]
                o += [valu("v_pk_add_f32", t2[i], t2[i], T.sub(2, 2)) for i in range(2)]
                o += [valu("v_rcp_f32", t[i], t[i]) for i in range(4)]
                o += [valu("v_pk_mul_f32", u2[i], u2[i], t2[i]) for i in range(2)]
            else:
                o += [valu("v_mul_f32", t[i], sNL if self.cfg.sconst else f32(-LOG2E), g[i]) for i in range(4)]
                for i in range(4): o += [valu("v_exp_f32", t[i], t[i]), valu("v_mul_f32", u[i], g[i], u[i])]
                o += [valu("v_add_f32", t[i], "1.0", t[i]) for i in range(4)]
                o += [valu("v_rcp_f32", t[i], t[i]) for i in range(4)]
                o += [valu("v_mul_f32", u[i], u[i], t[i]) for i in range(4)]
            if self.cfg.dbg & 8192: o = [x for x in o if x.op not in ("v_add_f32", "v_pk_add_f32")]
            o += [valu("v_cvt_pk_bf16_f32", G[2 * b + i], u[2 * i], u[2 * i + 1]) for i in range(2)]
            if b & 1: o += [buf_store("buffer_store_dwordx4", G.sub(2 * (b - 1), 4), vSCR if ch == 1 else vHST, rWS, sHu[ch], kst + (b >> 1) * (256 if ch == 1 else 1024), flags=self.cfg.hflags, tag=tag)]
        return o
    def set_hu(self, ch):
        a = sT[1]
        if self.B and ch == 1:
            return [salu("s_lshl_b32", a, sGQ, 1), salu("s_add_u32", a, a, sJ), salu("s_lshl_b32", a, a, 12), salu("s_add_u32", sHu[ch], a, 112 * 1024)]
        o = [salu("s_mul_i32", sHu[ch], sGQ, 28 * 1024)]
        if ch == 1: o += [salu("s_lshl_b32", a, sJ, 11), salu("s_add_u32", a, a, 6 * 4096 - 4096)]
        else: o += [salu("s_lshl_b32", a, sJ, 12), salu("s_sub_u32" if ch == 0 else "s_add_u32", a, a, 8192)]
        return o + [salu("s_add_u32", sHu[ch], sHu[ch], a)]

    def phase1(self):
        c, add, B = self.cfg, self.add, self.B
        F = self.frag_list()
        NM = len(F)
        self.slow0 = self.slow
        assert not c.chain or (c.wstep % 2 == 0 and c.NB >= c.LA + 2)
        gaps = [[] for _ in range(NM)]
        tail = [[] for _ in range(NM)]
        load = [0] * NM
        def put(k, ins, last=False):
            if c.px & 2: ins = [x for x in ins if x.kind != "mfma"]
            if c.px & 4: ins = [x for x in ins if x.kind != "dsw"]
            if c.px & 8: ins = [x for x in ins if not (x.kind == "branch" or str(vPV) in x.rd | x.wr)]; self.slow = self.slow0
            if c.px & 64: ins = [x for x in ins if x.kind != "trans"]
            (tail if last else gaps)[k] += ins
            load[k] += sum(cyc(i) for i in ins)
        def spread(ins, k0, k1):
            tot = sum(cyc(i) for i in ins)
            lo, hi = 0.0, 1000.0
            for _ in range(40):
                mid = (lo + hi) / 2
                if sum(max(0, mid - load[k]) for k in range(k0, k1)) >= tot: hi = mid
                else: lo = mid
            cap, acc = [], 0.0
            for k in range(k0, k1):
                acc += max(0, hi - load[k]); cap.append(acc)
            k, used = 0, 0.0
            for i in ins:
                while k < len(cap) - 1 and used + cyc(i) / 2 > cap[k] and i.kind != "branch": k += 1
                put(k0 + k, [i]); used += cyc(i)
        bar_gap = {n: 16 * n - c.LA - 1 for n in range(1, 20)}
        bar_gap[0], bar_gap[20] = -1, NM
        self.bar_extra = {n: [] for n in range(1, 21)}
        need = {n: max(f[2] for f in F[:min(NM, bar_gap[n + 1] + c.LA + 1)]) for n in range(20)}
        skip = lambda n: c.bar2 and c.bar2 <= n < 19 and (n - c.bar2) % 2 == 1
        self.skip = skip
        for n in range(18, 0, -1):
            if skip(n + 1): need[n] = need[n + 1]
        for n in (c.pw_per, c.p6_per, c.f2_bar): assert not skip(n)
        lastx = lambda i: max(k for k, f in enumerate(F) if f[1] // 4 == i)
        plan = dict((int(p.split(":")[0]), p.split(":")[1].split(".")) for p in (c.planB if B else c.planC).split(",") if p)
        self.pool = list(ABUF) + VBUF[:5] + ([] if B else VBUF[5:7])
        put(bar_gap[c.pw_per] - 1 - c.pw_lead, self.poll_issue(vP2, rWS))
        put(bar_gap[c.pw_per] - 1, self.poll_check(vP2, rWS, sW0))
        if not B:
            assert bar_gap[c.p6_per] <= bar_gap[c.pw_per] - 1 - c.pw_lead
            put(bar_gap[c.p6_per] - 1 - c.pw_lead, self.poll_issue(vP6, rWS))
            put(bar_gap[c.p6_per] - 1, self.poll_check(vP6, rWS, sW0))
        assert not c.cone or c.ts_pos < 0
        if B or not c.cone: put(bar_gap[c.f2_bar] + 1, [buf_store("buffer_store_dword", vFV, vF2, rWS, 0, 2048, flags="sc1")])
        for n in range(20):
            k = bar_gap[n]
            if n and not skip(n): load[k] += 14
            if B and n and bar_gap[n - 1] < c.g_halo + 2 * (9 + c.att_w) <= k: self.pool += VBUF[5:]
            if n == 9 and not B: self.pool += VBUF[7:]
            ops = list(plan.get(n, []))
            ins = []
            while ops and ops[0] in ("r", "H"):
                ins += self.plan_op(ops.pop(0), n)
            w = []
            nw = 0
            while self.nslab < 20 and self.nslab <= n - (1 if skip(n) else 0) + c.NS - 2 and (B or self.nslab < 8 or n >= c.p6_per) and (self.nslab <= need[min(19, n + 2)] or nw + ops.count("w") < 1 or "w" in ops):
                if nw and "w" in ops: ops.remove("w")
                w += self.dma_slab(); nw += 1
            ops = [x for x in ops if x != "w"]
            assert self.nslab > need[min(19, n + 2)], n
            if n == max(c.ts_pos, 0): ins += self.ts
            while c.xfree and self.xf_n < 5 and lastx(self.xf_n) <= k: self.pool += [A(16 * self.xf_n, 16)]; self.xf_n += 1
            nxl = min(32 - self.nx, c.xr[n] if n < len(c.xr) else (c.xrate if n else max(1, c.xrate // 2)))
            for i in w:
                if i.kind == "dma" and nxl: ins += self.x_load(); nxl -= 1
                ins.append(i)
            for _ in range(nxl): ins += self.x_load()
            assert self.nx >= min(32, (bar_gap[n + 1] + 16) // 4 + (3 if c.chain else 1)), n
            if n == c.c_tile and not B: ins += self.tdma
            if n == (c.b_rest if B else c.c_rest): ins += self.rest
            for op in ops: ins += self.plan_op(op, n)
            if ins: spread(ins, k + 1, bar_gap[n + 1])
        if not B:
            ins = self.ffn_epi(ACC1.sub(0, 16), ACC1.sub(16, 16), 0, 0, "st1") + self.ffn_epi(ACC1.sub(32, 16), ACC1.sub(48, 16), 0, 256, "st1")
            spread(ins, 129, 191)
            if not c.one_pa: put(c.g_f1c, self.flag(L_P1, "st1"))
            spread(self.ffn_epi(ACC2.sub(0, 16), ACC2.sub(16, 16), 1, 0, "st2"), 194, c.h2_end)
            put(c.g_f2c, self.flag(L_HALF, "st2"))
        else:
            self.attention(put, spread, bar_gap, load)
        if c.nspl:
            k0 = max(320 - 8 * c.nspl + 2, self.att_end + 7 if B else 0)
            spread(self.ffn_epi(ACC1.sub(0, 16), ACC1.sub(16, 16), 2, 0, "st3"), k0, c.e0_end)
        o = [valu("v_lshl_add_u32", vH[0], vLane, 4, sP2h), valu("v_lshl_add_u32", vH[1], vLane, 4, sHS),
             valu("v_and_b32", vPOLL, 7, vLane), valu("v_lshrrev_b32", vTHR, 2, vPOLL), valu("v_lshl_add_u32", vPOLL, vPOLL, 2, sP2f),
             ]
        if not c.otr: o += [valu("v_and_b32", vXO, 31, vLane), valu("v_lshlrev_b32", vXO, 11, vXO), valu("v_and_or_b32", vXO, vLane, 32, vXO), valu("v_add_u32", vXO, sP2x, vXO)]
        spread(o, *((176, 192) if B else (200, c.g_pa)))
        la = L_HALF if c.one_pa else L_P1
        put(c.g_pa, self.poll_issue(vPOLL, rWS, la))
        assert c.g_pa < bar_gap[c.pa_per] - 1
        put(bar_gap[c.pa_per] - 1, self.poll_check(vPOLL, rWS, vTHR, la))
        self.pa2 = (vPOLL, rWS, vTHR, L_HALF)
        if c.m_pb == -1 or c.hb:
            put(c.g_pa2 - 2, [valu("v_lshlrev_b32", vP2, 7, vTHR), valu("v_sub_u32", vP2, vPOLL, vP2)])
            self.pa2 = (vP2, rWS, 1, L_O)
        if not c.one_pa and c.hb != 1: put(c.g_pa2, self.poll_issue(self.pa2[0], rWS, self.pa2[3]))
        if c.pa2_epi < 0 and not c.one_pa and not c.hb: put(319, self.poll_check(*self.pa2))
        spread([valu("v_mov_b32", T[0], f32(-LOG2E)), valu("v_mov_b32", T[1], f32(-LOG2E)), valu("v_mov_b32", T[2], "1.0"), valu("v_mov_b32", T[3], "1.0")], 312, 320)
        inv_bar = {v: n for n, v in bar_gap.items() if 1 <= n <= 19}
        for k in range(NM):
            acc, step, n, off, which, us = F[k]
            if k % c.wstep == 0: add(wait(lg=[f"f{i}" for i in range(k, k + c.wstep)]))
            rd = self.frag_reads(k + c.LA, F[k + c.LA]) if k + c.LA < NM else []
            fill = gaps[k]
            tot, u, n1 = sum(cyc(i) for i in fill), 0, 0
            while n1 < len(fill) and (u + cyc(fill[n1]) / 2 <= tot / 2 or fill[n1].kind == "branch"): u += cyc(fill[n1]); n1 += 1
            if 2 * u > tot + 4: r1 = 0 if len(rd) <= 2 else len(rd) - 1
            elif 2 * u < tot - 4: r1 = len(rd)
            else: r1 = max(0, len(rd) - 1)
            if c.chain:
                th = k & 1
                first = F[k & ~1][1] == 0
                mm = [mfma(16, acc[th], WF.sub(4 * (kk % c.NB), 4), X.sub(4 * (F[kk][1] + th), 4), 0 if (first and kk == k) else acc[th]) for kk in (k, k ^ 1)]
            else: mm = [mfma(16, acc[th], WF.sub(4 * (k % c.NB), 4), X.sub(4 * (step + th), 4), 0 if step == 0 else acc[th]) for th in range(2)]
            add(mm[0], self.jit(0.08))
            if k == 0: add(self.stamp(67))
            add(rd[:r1], fill[:n1])
            add(mm[1], rd[r1:], fill[n1:], tail[k])
            if k in inv_bar:
                n = inv_bar[k]
                assert not (skip(n) and self.bar_extra[n])
                if n == 19 or need[n] > need[n - 1]: add(wait(vm=[f"w{need[n]}"] + (["ts"] if n == c.f2_bar else []), lg=self.bar_extra[n] or None), barrier())
            if k in (127, 191): add(self.stamp())
            if k in (31, 63): add(self.stamp(64))
            if k % 32 == 31 and 31 < k < 319: add(self.stamp(2))
            if k in c.sg: add(self.stamp(32))
        add(self.stamp(131))
        self.load = load
    def plan_op(self, op, n):
        if op == "l":
            assert n >= self.cfg.pw_per
            return self.w2_load()
        if op == "h":
            assert n >= self.cfg.pa_per and self.h_n < 4
            return self.h_load()
        if op == "P": return self.poll_issue(vPOLLH, rWS)
        if op == "H":
            self.halo_period = n
            i = salu("s_mov_b32", "m0", sHM0); i.tag = "halo"
            return self.poll_check(vPOLLH, rWS, sTHR) + [i] + [buf_dma(vHLD, rWS, 0, 1024 * q, flags="sc1", tag="halo") for q in range(2)]
        slot = int(op[1:])
        if slot < self.cfg.NS: assert n - (1 if self.skip(n) else 0) >= 2 + max(x for x in range(20) if slab_slot(x) == slot)
        if self.B and slot >= 7: assert n >= 19
        assert n >= self.cfg.pw_per
        return self.w2_dma(slot)

    def att_setup(self):
        t0, t1 = T[0], T[1]
        o = [valu("v_and_b32", t0, 15, vLane), valu("v_mul_u32_u24", t0, RP, t0), valu("v_and_b32", t1, 48, vLane), valu("v_lshlrev_b32", t1, 1, t1),
             salu("s_mul_i32", sT[0], sW, 32 * RP), salu("s_add_u32", sT[0], sT[0], SCR), valu("v_add3_u32", vSCR, sT[0], t0, t1),
             valu("v_and_b32", t0, 3, vLane), valu("v_bfe_u32", vVTR, vLane, 2, 2), valu("v_lshl_add_u32", t0, t0, 2, vVTR),
             valu("v_mul_u32_u24", t0, RP, t0), valu("v_add3_u32", vVTR, sT[0], t0, t1),
             salu("s_mov_b32", sT[0], SCR + 128 * RP + 128), valu("v_lshl_add_u32", vHRB, vLane, 4, sT[0])]
        o += [salu("s_lshl_b32", sT[1], sRB, 3), salu("s_lshl_b32", sT[2], sGQ, 1), salu("s_add_u32", sT[1], sT[1], sT[2]), salu("s_add_u32", sT[1], sT[1], sJ),
              salu("s_lshl_b32", sC1, sT[1], 11), salu("s_add_u32", sC1, sC1, HALO_OFF),
              salu("s_cmp_eq_u32", None, sW, 3), salu("s_cselect_b32", sT[1], sC1, OOB), salu("s_cselect_b32", sH3, 0, OOB), valu("v_lshl_add_u32", vHALO, vLane, 4, sT[1]),
              salu("s_and_b32", sT[1], sRB, 7), salu("s_or_b32", sT[2], sT[1], sW), salu("s_cselect_b32", sM1[0], 0, "0xf000f"), salu("s_cselect_b32", sM2[0], 0, "0xff00ff"),
              salu("s_mov_b32", sM1[1], sM1[0]), salu("s_mov_b32", sM2[1], sM2[0]), salu("s_mov_b32", sHM0, SPARE),
              salu("s_cmp_eq_u32", None, sW, 0), salu("s_cselect_b32", sHM0, SCR + 128, sHM0), salu("s_cselect_b32", sT[1], sT[1], 0),
              salu("s_cmp_lg_u32", None, sT[1], 0), salu("s_cselect_b32", sTHR, 1, 0),
              salu("s_sub_u32", sT[2], sC1, 8 * 2048), salu("s_cmp_lg_u32", None, sTHR, 0), salu("s_cselect_b32", sT[2], sT[2], OOB),
              valu("v_lshl_add_u32", vHLD, vLane, 4, sT[2])]
        if self.cfg.kv_mode == 4:
            for q, dst in enumerate((vHLD, vHLD2)):
                o += [valu("v_add_u32", t0, 8 + 64 * q, vLane), valu("v_mul_u32_u24", t1, 241, t0), valu("v_lshrrev_b32", t1, 12, t1), valu("v_mul_u32_u24", dst, 17, t1),
                      valu("v_sub_u32", t0, t0, dst), valu("v_min_u32", t0, 15, t0), valu("v_lshlrev_b32", t1, 4, t1), valu("v_lshl_add_u32", t0, t0, 7, t1),
                      valu("v_add_u32", dst, sT[2], t0)]
                if q: o += [valu("v_subrev_u32", dst, 1024, dst)]
            o += [salu("s_sub_u32", sT[1], sC1, 24 * 16), salu("s_cmp_eq_u32", None, sW, 3), salu("s_cselect_b32", sT[1], sT[1], OOB),
                  valu("v_and_b32", t0, 31, vLane), valu("v_lshrrev_b32", t1, 5, vLane), valu("v_lshlrev_b32", t1, 8, t1), valu("v_lshl_add_u32", t1, t0, 4, t1),
                  valu("v_add_u32", t1, sT[1], t1), valu("v_cmp_lt_u32", "vcc", 23, t0), valu("v_mov_b32", t0, OOB), valu("v_cndmask_b32", vHALO, t0, t1, "vcc")]
        o += [
              salu("s_lshl_b32", sT[1], sRB, 3), salu("s_add_u32", sT[1], sT[1], sGQ), salu("s_lshl_b32", sT[1], sT[1], 10), salu("s_lshl_b32", sT[2], sJ, 3),
              salu("s_add_u32", sT[1], sT[1], sT[2]), salu("s_add_u32", sT[1], sT[1], FLAG_OFF - 4096 + 4), salu("s_cmp_lg_u32", None, sTHR, 0),
              salu("s_cselect_b32", sT[1], sT[1], OOB), valu("v_mov_b32", vPOLLH, sT[1]), salu("s_mov_b32", sCS, f32(0.25 * LOG2E))]
        o += [valu("v_and_b32", t0, 3, vLane), valu("v_mov_b32", t1, "0xffff"),
              valu("v_cmp_le_u32", sJ1, 1, t0), valu("v_cmp_le_u32", sJ2, 2, t0), valu("v_cmp_le_u32", sJ3, 3, t0),
              valu("v_cndmask_b32", vA01, t1, -1, sJ1), valu("v_cndmask_b32", vA23, 0, t1, sJ2), valu("v_cndmask_b32", vA23, vA23, -1, sJ3)]
        return o
    def attention(self, put, spread, bar_gap, load):
        c = self.cfg
        def pack(dst, a):
            o = [valu("v_cvt_pk_bf16_f32", dst[i], a[2 * i], a[2 * i + 1]) for i in range(8)]
            return o + [valu("v_permlane16_swap_b32", dst[i], dst[4 + i], rmw=True, wr2=dst[4 + i]) for i in range(4)]
        cv, wr = [], []
        for blk in range(4):
            a = ACC1.sub(16 * blk, 16)
            cv += pack(a, a)
            wr += [ds_write("ds_write_b128", vSCR, a.sub(4 * dh, 4), (blk & 1) * 128 + dh * 16 + (8 + 16 * (blk >> 1)) * RP, tag="kv") for dh in range(2)]
        hs = ACC1.sub(40, 8)
        assert c.kv_mode in (3, 5, 6)
        if c.kv_mode == 3:
            spread(cv, 129, c.kv_end - 3)
            put(c.kv_end - 3, wr)
        else:
            if c.kv_mode == 5:
                spread(cv[24:], 130, c.kv_end - 3)
                put(c.kv_end - 3, wr[4:])
            else: spread(cv[24:36] + wr[4:6] + cv[36:] + wr[6:], 130, c.kv_end - 2)
            spread(cv[:24], c.kv_end + 5, c.kv_end + 15)
            for n, x in enumerate(wr[:4]):
                k1 = c.kv_end + 15 + (180 - c.kv_end - 15) * n // 4
                while load[k1] > 0 and k1 < 181: k1 += 1
                put(k1, [x], last=True)
        put(c.kv_end - 1, [ds_read("ds_read_b128", hs.sub(4 * i, 4), vHRB, 1024 * i) for i in range(2)])
        if c.kv_mode != 4:
            put(c.kv_end + 2, [buf_store("buffer_store_dwordx4", hs.sub(0, 4), vHALO, rWS, 0, 0, flags="sc1", tag="st1")])
            put(c.kv_end + 4, [buf_store("buffer_store_dwordx4", hs.sub(4, 4), vHALO, rWS, 0, 1024, flags="sc1", tag="st1")])
            self.bar_extra[12] = ["kv"]
        assert c.kv_end + 4 < min(176, c.g_flag1)
        fl = self.flag(L_HALO, "st1")
        if c.halo3: fl[-1] = buf_store("buffer_store_dword", vFV, vFH, rWS, 0, L_HALO, flags="sc1")
        put(c.g_flag1, fl)
        Q = ACC2.sub(0, 16); O = ACC2.sub(16, 16)
        Sg = [SG.sub(0, 4), SG.sub(4, 4), SG.sub(8, 4)]
        P = [T.sub(0, 2), T.sub(2, 2), T.sub(4, 2)]
        tm, tz, big = SG[12], SG[13], SG[14]
        spread(pack(Q.sub(0, 8), ACC2.sub(0, 16)) + pack(Q.sub(8, 8), ACC2.sub(16, 16)) + [valu("v_mov_b32", big, f32(-1e30))], 194, min(215, c.g_halo + 4))
        k = c.g_halo
        cs = 0.25 * LOG2E
        for cb in ((1, 0) if c.th1 else (0, 1)):
            if cb == 0:
                assert k > bar_gap[self.halo_period + 1]
                put(k, [wait(vm="halo")])
            spread([ds_read("ds_read_b128", KA.sub(8 * g + 4 * dh, 4), vSCR, dh * 16 + (16 * cb + (2 - g) * 4) * RP) for g in range(3) for dh in range(2)], k, k + 4)
            k += 5
            for dq in range(4):
                put(k + dq // 2, [mfma(4, Sg[g], KA.sub(8 * g + 2 * dq, 2), Q.sub(8 * cb + 2 * dq, 2), Sg[g] if dq else 0) for g in range(3)], last=True)
            k += 2
            vr = [ds_read("ds_read_b64_tr_b16", KA.sub(8 * g + 2 * m, 2), vVTR, 128 + (0, 2, 1, 3)[m] * 8 + (16 * cb + (2 - g) * 4) * RP, tag="vr") for g in range(3) for m in range(4)]
            s = [Sg[0][i] for i in range(4)] + [Sg[1][i] for i in range(4)]
            o = vr[:4]
            if cb == 0:
                o += [valu("v_cndmask_b32", Sg[2][r], Sg[2][r], big, sM2) for r in (1, 2, 3)]
                o += [valu("v_cndmask_b32", Sg[1][r], Sg[1][r], big, sM1) for r in range(4)]
            o += [valu("v_cndmask_b32", Sg[0][r], Sg[2][r], Sg[0][r], (None, sJ1, sJ2, sJ3)[r]) for r in (1, 2, 3)]
            o += [valu("v_max3_f32", tm, s[0], s[1], s[2]), valu("v_max3_f32", tz, s[3], s[4], s[5]), valu("v_max3_f32", tm, tm, s[6], s[7]), valu("v_max_f32", tm, tm, tz),
                  valu("v_mul_f32", tm, f32(-cs), tm)]
            o += vr[4:8]
            o += [valu("v_fma_f32", s[i], s[i], sCS, tm) for i in range(8)]
            o += [valu("v_exp_f32", s[i], s[i]) for i in range(8)]
            u = [Sg[2][i] for i in range(4)]
            o += [valu("v_add_f32", u[i], s[2 * i], s[2 * i + 1]) for i in range(4)]
            o += [valu("v_add_f32", u[0], u[0], u[1]), valu("v_add_f32", u[2], u[2], u[3]), valu("v_add_f32", u[0], u[0], u[2]), valu("v_rcp_f32", tz, u[0])]
            o += vr[8:]
            o += [valu("v_mul_f32", s[i], s[i], tz) for i in range(8)]
            o += [valu("v_cvt_pk_bf16_f32", u[0], s[0], s[1]), valu("v_cvt_pk_bf16_f32", u[1], s[2], s[3]),
                  valu("v_cvt_pk_bf16_f32", P[1][0], s[4], s[5]), valu("v_cvt_pk_bf16_f32", P[1][1], s[6], s[7]),
                  valu("v_and_b32", P[0][0], u[0], vA01), valu("v_and_b32", P[0][1], u[1], vA23),
                  valu("v_bfi_b32", P[2][0], vA01, 0, u[0]), valu("v_bfi_b32", P[2][1], vA23, 0, u[1])]
            if c.px & 1: o = [x for x in o if x.kind == "dsr"] + o[-8:]
            spread(o, k, k + c.att_w)
            k += c.att_w
            for g in range(3):
                put(k + g // 2, [mfma(4, O.sub(4 * m, 4), KA.sub(8 * g + 2 * m, 2), P[g], O.sub(4 * m, 4) if g else 0) for m in range(4)], last=True)
            k += 2
            o = []
            for dh in range(2):
                o += [valu("v_cvt_pk_bf16_f32", O[4 * dh + i], O[8 * dh + 2 * i], O[8 * dh + 2 * i + 1]) for i in range(4)]
                o += [buf_store("buffer_store_dwordx4", O.sub(4 * dh, 4), vHST, rWS, sHu[1], cb * 256 + dh * 1024, flags=c.hflags, tag="st2")]
            spread(o, k + 1, k + 7)
        assert k <= bar_gap[19], k
        assert k == c.g_halo + 2 * (9 + c.att_w)
        self.att_end = k
        if not c.splf and c.f2_epi < 0: put(min(k + c.f2_lag, 317), self.flag(L_O, "st2"))

    GORD = ([("d", 0, 1, t) for t in range(4)] + [("d", 12, 1, 4 + t) for t in range(2)] + [("o", 0, 1, t) for t in range(4)]
            + [("d", 8, 1, t) for t in range(4)] + [("d", 4, 1, t) for t in range(4)])
    def w2_setup(self):
        return [salu("s_mov_b32", sNL, f32(-LOG2E)), salu("s_mul_i32", sHd, sW, 28 * 1024), salu("s_lshl_b32", sHo, sW, 13), salu("s_add_u32", sHo, sHo, 112 * 1024),
                salu("s_lshl_b32", sWd, sHd, 1), salu("s_lshl_b32", sWo, sHo, 1)]
    def h_load(self):
        gi = self.h_n; self.h_n += 1
        kind, g0, st, t = self.GORD[gi]
        o = [salu("s_add_u32", sT[0], sHd if kind == "d" else sHo, (g0 + (t & 3)) * 2048)]
        dst = self.hreg[gi] = self.pool.pop(0)
        for s in range(1 if self.cfg.dbg & 256 else 2):
            for tb in range(2):
                o += [buf_load("buffer_load_dwordx4", dst.sub(8 * s + 4 * tb, 4), vW[0] if self.cfg.dbg & 2 else vH[tb], rWS, 0 if self.cfg.dbg & 2 else sT[0], s * 1024, flags="sc1", tag=f"h{gi}")]
        return o
    def w2_addr(self):
        gi = self.w2_nd; self.w2_nd += 1
        kind, g, st, t = self.GORD[gi]
        return gi, [salu("s_add_u32", sWS, sWd if kind == "d" else sWo, (g + (t & 3)) * 4096)]
    def w2_load(self):
        gi, o = self.w2_addr()
        dst = self.wreg[gi] = self.pool.pop(0)
        return o + [buf_load("buffer_load_dwordx4", dst.sub(4 * i, 4), vW[i & 1], rWS, 0 if self.cfg.dbg & 4 else sWS, i * 1024, flags="sc1", tag=f"g{gi}") for i in range(2 if self.cfg.dbg & 128 else 4)]
    def w2_dma(self, slot):
        gi, o = self.w2_addr()
        assert slot not in self.w2slot.values()
        self.w2slot[gi] = slot
        return [set_m0(sWQ, slot * SLOT, f"g{gi}")] + o + [buf_dma(vW[i & 1], rWS, sWS, i * 1024, flags="sc1", tag=f"g{gi}") for i in range(4)]
    def w2_read(self):
        gi = min(self.w2slot)
        base = self.w2slot.pop(gi) * SLOT
        dst = self.wreg[gi] = self.pool.pop(0)
        o, imm = self.window(self.win2, 0, vWB, base, 4096)
        for i in o: i.tag = f"r{gi}"
        return [wait(vm=f"g{gi}")] + o + [ds_read("ds_read_b128", dst.sub(4 * i, 4), vWB, imm + i * 1024, tag=f"r{gi}") for i in range(4)]
    def phase2(self):
        c, add = self.cfg, self.add
        accF = [ACC2.sub(0, 16), A(80, 16), A(96, 16), A(112, 16)]
        accS = [ACC2.sub(16, 16)]
        PR = [None, ACC1.sub(0, 16), ACC1.sub(16, 16), ACC1.sub(32, 16)]
        xf = ACC1.sub(48, 16)
        red = [vSCR, vVTR, vTR0, vTR1, vDMA2, vHST]
        pool, hreg, wreg, h_load = self.pool, self.hreg, self.wreg, self.h_load
        pool += [A(128, 16), A(144, 16), A(160, 16)] + [A(16 * i, 16) for i in range(self.xf_n, 5)]
        light = []
        heavy = []
        pend = lambda q, tag: any(i.tag == tag for i in q)
        e = ([] if c.nspl else self.ffn_epi(ACC1.sub(0, 16), ACC1.sub(16, 16), 2, 0, "st3", pk=True)) + self.ffn_epi(ACC1.sub(32, 16), ACC1.sub(48, 16), 2, 256, "st4", pk=True)
        if c.px & 16: e = [x for x in e if x.kind == "vms" or x.op == "v_cvt_pk_bf16_f32"]
        if c.eov:
            e2 = self.ffn_epi(ACC1.sub(0, 16), ACC1.sub(16, 16), 2, 0, "st3") + self.ffn_epi(ACC1.sub(32, 16), ACC1.sub(48, 16), 2, 256, "st4")
            def cut(l, nb):
                k = [i for i, x in enumerate(l) if x.op == "v_cvt_pk_bf16_f32"][2 * nb - 1] + 1 if nb else 0
                return k + 1 if k < len(l) and l[k].kind == "vms" else k
            e, light[:] = e[:cut(e, 8 - c.eov)], e2[cut(e2, 8 - c.eov):]
            for i in light:
                if i.kind != "vms": i.tag = "ra"
        assert 9 not in self.w2slot.values()
        assert all(x < min(18, 20 - c.nspl) for x in range(20) if 6 <= slab_slot(x) <= 8)
        seq = []
        for gi in range(18):
            bl = (1, 2, 3) if gi >= 18 - c.defer else (0, 1, 2, 3)
            if c.snake and gi < 17: bl = (1, 3, 2) if len(bl) == 3 else (0, 1, 3, 2)
            seq += [(gi, s, b) for b in bl for s in range(2)] if gi == 17 else [(gi, s, b) for s in range(2) for b in bl]
        seq += [(gi, s, 0) for gi in range(18 - c.defer, 18) for s in range(2)]
        if c.tbs:
            g1 = 18 - c.tbs
            assert c.defer <= c.tbs
            seq = [(gi, s, b) for gi in range(g1) for s in range(2) for b in range(4)]
            seq += [(gi, s, b) for gi in range(g1, 18) for s in range(2) for b in (2, 3)]
            seq += [(gi, s, b) for gi in range(g1, 18) for s in range(2) for b in ((1,) if gi >= 18 - c.defer else (1, 0))]
            seq += [(gi, s, 0) for gi in range(18 - c.defer, 18) for s in range(2)]
        last = {gi: max(m for m, x in enumerate(seq) if x[0] == gi) for gi in range(18)}
        first = {gi: min(m for m, x in enumerate(seq) if x[0] == gi) for gi in range(18)}
        lastb = {b: max(m for m, x in enumerate(seq) if x[2] == b) for b in range(4)}
        g6 = 10 if c.m_pb == -1 else (4 if c.hb else 6)
        st = {"q": [], "gate": g6 if c.pa2_epi < 0 else 4, "x": False, "m": -1, "sw": False}
        def refill():
            okw = self.w2_nd < 18 and st["m"] >= c.wdel and len(pool) > (1 if self.w2_nd <= self.h_n else c.keep)
            okh = self.h_n < (max(st["gate"], c.nogate) if st["gate"] else 0) and len(pool) > 1
            if okh and c.tbs and self.h_n == 18 - c.tbs:
                if self.w2_nd < 18: st["q"] += self.w2_load(); return
                assert st["x"] and len(pool) >= c.tbs + min(2, len(self.w2slot)), len(pool)
                ls = [h_load() for _ in range(c.tbs)]
                for tb in (1, 0):
                    for l in ls: st["q"] += [l[0], l[1 + tb], l[3 + tb]]
            elif okh and not (okw and self.w2_nd <= self.h_n + c.wlead): st["q"] += h_load()
            elif okw: st["q"] += self.w2_load()
            elif not st["x"] and st["m"] >= 0 and not pend(light, "ra"):
                st["x"] = True
                st["q"] += [set_m0(sWQ, 9 * SLOT, "xs"), salu("s_mov_b32", sT[1], 16384 - 1024),
                            buf_dma(red[4], rX, 0, 0, tag="xs"), buf_dma(red[4], rX, sT[1], 1024, tag="xs")]
        def pump():
            if not st["q"]: refill()
            while st["q"]:
                x = st["q"].pop(0); add(x)
                if x.kind in ("dma", "vml"): return True
            return False
        step = max(1, len(e) * 3 // 4 // max(1, c.epi_mem))
        k = 0
        for n, i in enumerate(e):
            if self.B and not c.splf and n == c.f2_epi: add(self.flag(L_O, "st2"))
            if n == c.pa2_epi: add(self.poll_check(*self.pa2)); st["gate"] = g6
            if n % step == 0 and k < c.epi_mem: pump(); k += 1
            add(i)
        add(self.stamp(129))
        started = set()
        ra = [salu("s_add_u32", sT[2], sWQ, 6 * SLOT), valu("v_lshl_add_u32", red[0], vLane, 4, sT[2])] + [valu("v_xor_b32", red[b], b * 4096, red[0]) for b in (1, 2, 3)]
        ra += [salu("s_and_b32", sT[2], sP2x, 64), salu("s_mul_i32", sT[3], sT[2], 511), salu("s_add_u32", sT[3], sT[3], sP2x),
               valu("v_lshrrev_b32", red[4], 3, vLane), valu("v_and_b32", red[5], 7, vLane), valu("v_lshlrev_b32", red[5], 4, red[5]),
               valu("v_lshl_add_u32", red[4], red[4], 11, red[5]), valu("v_add_u32", red[4], sT[3], red[4]),
               salu("s_lshr_b32", sT[3], sW, 1), salu("s_lshl_b32", sT[3], sT[3], 13), salu("s_add_u32", sT[3], sT[3], sT[2]), salu("s_add_u32", sT[3], sT[3], 9 * SLOT),
               valu("v_and_b32", red[5], 16, vLane), valu("v_lshlrev_b32", red[5], 1, red[5]), valu("v_and_or_b32", red[5], vLane, 15, red[5]), valu("v_lshlrev_b32", red[5], 7, red[5]),
               valu("v_and_or_b32", red[5], vLane, 32, red[5]), valu("v_add_u32", red[5], sT[3], red[5])]
        vOW, vOR = [vA01, vA23], vPOLLH
        if c.otr:
            ra += [valu("v_and_b32", vOR, 7, vLane), valu("v_lshlrev_b32", vOR, 4, vOR), valu("v_xor_b32", vOW[0], vOR, red[5]), valu("v_xor_b32", vOW[1], 16, vOW[0]),
                   valu("v_lshrrev_b32", vOR, 3, vLane), valu("v_xor_b32", vOR, vOR, vLane), salu("s_add_u32", sT[3], sWQ, 9 * SLOT), valu("v_lshl_add_u32", vOR, vOR, 4, sT[3])]
        for i in ra: i.tag = "ra"
        light += ra
        used = set()
        for m, (gi, s, b) in enumerate(seq):
            st["m"] = m
            kind = self.GORD[gi][0]
            if gi in self.w2slot or pend(light, f"r{gi}"):
                add(light); light.clear()
                while gi in self.w2slot: add(self.w2_read())
            while gi >= self.w2_nd or pend(st["q"], f"g{gi}"): assert pump(), (m, gi)
            while gi >= self.h_n or any(i.wr & set(hreg[gi].sub(8 * s + 4 * (b >> 1), 4).regs()) for i in st["q"]) or (not c.tbs and pend(st["q"], f"h{gi}")): assert pump(), (m, gi)
            a = (accF if kind == "d" else accS)[b]
            if c.gwait == 1: add(wait_regs(hreg[gi].sub(8 * s, 8), wreg[gi].sub(8 * s, 8)))
            if c.gwait == 2: add(wait_regs(hreg[gi], wreg[gi]))
            if c.m16 & 2:
                for q in range(2):
                    aq = a.sub(8 * s + 4 * q, 4)
                    if q and light and cyc(light[0]) <= 4 and light[0].kind == "valu":
                        add(light.pop(0))
                        if light and cyc(light[0]) <= 4 and light[0].kind == "valu": add(light.pop(0))
                    add(mfma(16, aq, wreg[gi].sub(8 * q + 4 * (b & 1), 4), hreg[gi].sub(8 * s + 4 * (b >> 1), 4), aq if (kind, b, s) in started else 0))
                started.add((kind, b, s))
            else: add(mfma(32, a, wreg[gi].sub(8 * s + 4 * (b & 1), 4), hreg[gi].sub(8 * s + 4 * (b >> 1), 4), a if (kind, b) in started else 0))
            started.add((kind, b))
            add(self.jit(0.1))
            if m == last[gi]:
                pool += [hreg[gi], wreg[gi]]
                if gi + (2 if c.ofirst else 0) in (3, 4, 5): accS.append(pool.pop())
                if gi in c.sp: add(self.stamp(128))
            busy = False
            if m == c.m_f4: add(self.flag(L_L0 if (c.m_pe > 0 and not self.B) else L_END, "st4"), self.stamp()); busy = True
            lb, lc = (L_L0 if c.splf else L_O), (L_L0 if c.m_pe > 0 else L_END)
            for mm, ln in ((c.m_pb, lb), (c.m_pc, lc), (c.m_pe, L_END)):
                if m == mm - c.m_pd and not (c.hb == 2 and mm == c.m_pb): add(self.poll_issue(vP2 if (c.hb and mm == c.m_pb) else vPOLL, rWS, ln)); busy = True
            if m in (c.m_pb - 1, c.m_pe - 1) or (m == c.m_pc - 1 and c.m_pb > 0 and c.m_pe > 0): add(valu("v_xor_b32", vTHR, 1, vTHR))
            if m == c.m_pe: add(self.poll_check(vPOLL, rWS, vTHR, L_END)); st["gate"] = 18
            if m == c.m_pb: add(self.poll_check(*self.pa2) if c.hb else self.poll_check(vPOLL, rWS, vTHR, lb)); st["gate"] = 10
            if m == c.m_pc: add(self.poll_check(vPOLL, rWS, vTHR if c.m_pe > 0 else 1, lc), self.stamp()); st["gate"] = 14 if c.m_pe > 0 else 18; self.pre += (self.w2_nd, self.h_n)
            used.add((gi, s, b >> 1))
            ahead = 4 * self.h_n - sum(1 for i in st["q"] if i.kind == "vml") - len(used)
            if ((m % c.vstep < c.vnum if m < c.m_v1 else m % 2 == 0) or ahead < c.ahead) and not busy: busy = pump()
            if not light and self.w2slot and pool and m >= first[min(self.w2slot)] - c.rlead: light += self.w2_read()
            if m == last[7 if c.ofirst else 9] + 2:
                add(light); light.clear()
                while any(6 <= s_ <= 8 for s_ in self.w2slot.values()): add(self.w2_read())
                st["sw"] = True
                heavy += [wait(lg=[f"r{g}" for g in range(18)])]
                heavy += [ds_write("ds_write_b128", red[0], accS[b2].sub(4 * q, 4), (b2 - 1) * SLOT + q * 1024, tag="sw") for b2 in (1, 2, 3) for q in range(0 if c.dbg & 16384 else 4)]
            if m == c.m_sb:
                while not st["x"] or pend(st["q"], "xs"):
                    g18, nd = st["gate"], self.w2_nd; st["gate"] = 0; self.w2_nd = 18; assert pump(); st["gate"], self.w2_nd = g18, nd
                add(heavy); heavy = []
                add(wait(vm="xs", lg="sw"), barrier()); busy = True
                light += [ds_read("ds_read_b128", xf.sub(8 * i + 4, 4), red[5], 16 * i) for i in range(2)]
                light += [ds_read("ds_read_b128", PR[b2].sub(4 * q, 4), red[b2], (b2 - 1) * SLOT + q * 1024) for b2 in (1, 2, 3) for q in range(4)]
                for b2 in range(4):
                    i = valu("v_subrev_u32", red[b2], 6 * SLOT, red[b2]); i.tag = "ra"; light.append(i)
                for h in range(2):
                    for i in range(4):
                        src = xf[8 * h + 4 + i]
                        pr = [valu("v_lshlrev_b32", xf[8 * h + 2 * i], 16, src), valu("v_and_b32", xf[8 * h + 2 * i + 1], "0xffff0000", src)]
                        light += pr
                light += [valu("v_add_f32", accS[0][i], accS[0][i], PR[1][i]) for i in range(16)] + [valu("v_add_f32", PR[2][i], PR[2][i], PR[3][i]) for i in range(16)]
                light += [valu("v_add_f32", accS[0][i], accS[0][i], PR[2][i]) for i in range(16)]
            for b2 in (1, 2, 3):
                if m == lastb[b2] + 2:
                    assert m > c.m_sb
                    while pend(light, "ra"): add(light.pop(0))
                    heavy += [ds_write("ds_write_b128", red[0], accF[b2].sub(4 * q, 4), (b2 - 1) * SLOT + q * 1024) for q in range(0 if c.dbg & 32768 else 4)]
            if c.fbar and not st.get("fb") and m > max(lastb[1], lastb[2], lastb[3]) + 2 and not heavy:
                st["fb"] = True
                add(light); light.clear()
                add(wait(lg="all"), barrier(), self.jit())
                light += [ds_read("ds_read_b128", PR[b2].sub(4 * q, 4), red[b2], (b2 - 1) * SLOT + q * 1024) for q in range(4) for b2 in (1, 2, 3)]
                if c.fbar == 2:
                    light += [valu("v_add_f32", PR[2][i], PR[2][i], PR[3][i]) for i in range(16)] + [valu("v_add_f32", PR[2][i], PR[2][i], PR[1][i]) for i in range(16)]
            budget = 11 if busy else 24
            if st.get("fb"): budget = 36
            if any(i.kind == "vms" for i in light):
                assert m < c.m_f4
                budget = c.ebud - (14 if busy else 0)
                if light[0].kind == "vms": add(light.pop(0)); budget = 0
            if heavy and not busy and (m % c.hstep == 0 or m > lastb[1] or m < c.m_sb):
                while heavy:
                    x = heavy.pop(0); add(x)
                    if x.kind == "dsw": break
                budget = 0
            while light and cyc(light[0]) <= budget:
                budget -= cyc(light[0]); add(light.pop(0))
        assert self.h_n == 18 and self.w2_nd == 18 and not self.w2slot and not st["q"] and st["x"]
        add(self.stamp())
        add(heavy, light)
        if not st.get("fb"):
            add(wait(lg="all"), barrier(), self.jit())
            for q in range(4):
                for b in (1, 2, 3): add(ds_read("ds_read_b128", PR[b].sub(4 * q, 4), red[b], (b - 1) * SLOT + q * 1024))
        Fp, Sp, t = accF[0], accS[0], PR[1]
        if c.dbg & 32: add(valu("v_mov_b32", vXO, OOB))
        if c.dbg & 64: add(salu("s_lshl2_add_u32", sT[1], sWG, sW), salu("s_lshl_b32", sT[1], sT[1], 11), valu("v_lshl_add_u32", vXO, vLane, 4, sT[1]))
        for hq in range(2):
            r2 = range(8 * hq, 8 * hq + 8, 2); r1 = range(8 * hq, 8 * hq + 8)
            if not (c.fbar == 2 and st.get("fb")):
                add([valu("v_pk_add_f32", PR[2].sub(i, 2), PR[2].sub(i, 2), PR[3].sub(i, 2)) for i in r2])
                add([valu("v_pk_add_f32", Fp.sub(i, 2), Fp.sub(i, 2), PR[1].sub(i, 2)) for i in r2])
            add([valu("v_pk_add_f32", Fp.sub(i, 2), Fp.sub(i, 2), PR[2].sub(i, 2)) for i in r2])
            add([valu("v_pk_mul_f32", t.sub(i, 2), Fp.sub(i, 2), T.sub(0, 2)) for i in r2])
            if c.px & 32: r1 = []
            add([valu("v_exp_f32", t[i], t[i]) for i in r1])
            add([valu("v_pk_mul_f32", Sp.sub(i, 2), Sp.sub(i, 2), Fp.sub(i, 2)) for i in r2])
            add([valu("v_pk_add_f32", t.sub(i, 2), t.sub(i, 2), T.sub(2, 2)) for i in r2])
            add([valu("v_rcp_f32", t[i], t[i]) for i in r1])
            add([valu("v_pk_fma_f32", xf.sub(i, 2), Sp.sub(i, 2), t.sub(i, 2), xf.sub(i, 2)) for i in r2])
            add([valu("v_cvt_pk_bf16_f32", t[8 * hq + i], xf[8 * hq + 2 * i], xf[8 * hq + 2 * i + 1]) for i in range(4)])
            if c.otr: add(self.jit(), ds_write("ds_write_b128", vOW[hq], t.sub(8 * hq, 4)))
            else: add(buf_store("buffer_store_dwordx4", t.sub(8 * hq, 4), vXO, rOUT, 0, (1024 if c.dbg & 64 else 16) * hq, flags=c.outflags))
        if c.otr:
            add(salu("s_movk_i32", sT[1], 16384), wait(lg="all"), barrier(), [ds_read("ds_read_b128", xf.sub(4 * i, 4), vOR, 1024 * i) for i in range(2)])
            add([buf_store("buffer_store_dwordx4", xf.sub(4 * i, 4), red[4], rOUT, sT[1] if i else 0, flags=c.outflags) for i in range(2)])

    def finish(self):
        add = self.add
        if self.cfg.stamps:
            add(raw(f"{self.cfg.clock} s[14:15]", "smem"))
            add(wait(vm="all"))
            add(raw(f"{self.cfg.clock} s[16:17]\n    s_waitcnt lgkmcnt(0)", "smem"))
            add(valu("v_mov_b32", V(96), 0))
            for i in range(self.nst): add(raw(f"v_writelane_b32 v96, s{STAMPS[i]}, {1+i}", "valu", wr=["v96"]))
            add(raw(f"v_writelane_b32 v96, s{ST0}, 0", "valu", wr=["v96"]), raw(f"v_writelane_b32 v96, s14, {1+self.nst}", "valu", wr=["v96"]),
                raw(f"v_writelane_b32 v96, s16, {2+self.nst}", "valu", wr=["v96"]))
            add(salu("s_lshl_b32", sT[1], sWG, 2), salu("s_add_u32", sT[1], sT[1], sW), salu("s_lshl_b32", sT[1], sT[1], 6), salu("s_add_u32", sT[1], sT[1], STAMP_OFF),
                valu("v_lshl_add_u32", V(97), vLane, 2, sT[1]), salu("s_mov_b64", "exec", "0xffff"), buf_store("buffer_store_dword", V(96), V(97), rWS))
        add(raw("s_endpgm", "end"))

    def program(self):
        NS[0] = self.cfg.NS
        if self.cfg.ofirst:
            assert self.cfg.m_pb == -1
            G = Gen.GORD
            self.GORD = G[:4] + G[6:10] + G[4:6] + G[10:]
        assert self.cfg.NS <= (7 if self.B else 9)
        self.w2slot, self.slot_used, self.w2pos = {}, {}, {"d": 0, "o": 0}
        self.w2_nd = self.w2_nr = 0
        self.win2 = [0, 0]
        self.xf_n = 0
        self.h_n, self.hreg, self.wreg, self.hpos = 0, {}, {}, {"d": 0, "o": 0}
        self.e.comment('phase 0'); self.ramp(); self.e.comment('phase 1'); self.phase1(); self.e.comment('phase 2')
        self.pre = (self.w2_nd, len(self.w2slot), self.h_n)
        if not self.cfg.p1only: self.phase2()
        self.finish()
        return self.e.text() + self.slow

HEAD = open("recurrent_scan__sliding_local_dilated__swiglu_ffn__prompt.s.ref").read().split("; Override launch")[0]

DOC = """; One persistent launch, one workgroup (4 waves, 512 registers each) per CU; tokens are kept in parity-split order.
;  phase 1: 128 tokens x 320 weight columns per workgroup, weights streamed through an LDS ring (LDS-DMA + transposing reads),
;           B: k,v | q | gate,up with the dilated window attention done on 4x4x4 MFMAs; C: 2.5 gate/up pairs; h and o go to d_ws.
;  phase 2: 64 x 64 output tile per workgroup, K split over the waves, reduced through LDS; out = x + s * silu(ffn).
; Hand-offs: write-through (sc1) stores, counted wait, flag word; flag lines are cleared inside the launch (announced through d_debug).
"""
def build(cfg):
    s = HEAD + "; @launch grid=(256,1,1) block=(256,1,1) lds=163840\n"
    s += DOC
    s += f'.amdgcn_target "amdgcn-amd-amdhsa--gfx950"\n.text\n.globl {KNAME}\n.p2align 8\n.type {KNAME},@function\n{KNAME}:\n'
    s += f"""    s_cmp_ge_u32 s2, 256
    s_cbranch_scc0 L_go
    s_endpgm
L_go:
"""
    if cfg.stamps: s += f"    {cfg.clock} s[{ST0}:{ST0+1}]\n"
    s += f"""    s_load_dwordx2 s[24:25], s[0:1], 0
    s_load_dwordx16 s[4:19], s[0:1], 0
    s_load_dwordx4 s[20:23], s[0:1], 64
    v_lshrrev_b32 v1, 6, v0
    s_getpc_b64 s[28:29]
    v_readfirstlane_b32 {sW}, v1
    s_bfe_u32 s26, s2, 0x30003
    s_lshl_b32 s26, s26, 13
    v_lshrrev_b32 v2, 2, v0
    v_lshl_add_u32 v2, v2, 7, s26
    v_min_u32 v2, L_end-L_go-256, v2
    global_load_dword v3, v2, s[28:29]
    v_and_b32 {vLane}, 63, v0
    v_lshrrev_b32 v96, 3, {vLane}
    v_and_b32 v97, 7, v0
    s_lshl_b32 {sWQ}, {sW}, 12
    s_cmp_ge_u32 s2, 128
    s_cbranch_scc1 L_typeC
"""
    info = {}
    for typ in ("B", "C"):
        g = Gen(typ, cfg)
        g.e.vm.append(("pf", {"v3"}))
        s += f"L_type{typ}:\n" + g.program()
        info[typ] = (g.e.slots, g.e.nops, dict(g.e.count), [sum(max(32, 24 + x) for x in g.load[i:i + 32]) for i in range(0, 320, 32)], g.pre, g.nst + 3)
    s += "L_end:\n"
    s += f""".section .rodata,"a"
.p2align 6
.amdhsa_kernel {KNAME}
  .amdhsa_next_free_vgpr 512
  .amdhsa_next_free_sgpr 102
  .amdhsa_accum_offset 256
  .amdhsa_group_segment_fixed_size 0
  .amdhsa_kernarg_size 80
  .amdhsa_user_sgpr_count 2
  .amdhsa_user_sgpr_kernarg_segment_ptr 1
  .amdhsa_system_sgpr_workgroup_id_x 1
.end_amdhsa_kernel
"""
    return s, info

if __name__ == "__main__":
    cfg = Cfg()
    out = sys.argv[1]
    for a in sys.argv[2:]:
        k, v = a.split("=")
        assert hasattr(cfg, k) or hasattr(cfg, k[:-2]), k
        if k in ("outflags", "hflags", "pflags", "wflags"): v = v.replace("_", " ")
        elif k in ("sg", "sp", "xr", "xr_B", "xr_C"): v = [int(x) for x in v.split(",")]
        elif k not in ("clock", "planB", "planC"): v = int(v)
        setattr(cfg, k, v)
    s, info = build(cfg)
    open(out, "w").write(s)
    for k, v in info.items(): print(k, v)
```
